```python
import torch

def _softmax(x, axis=-1):
    return torch.softmax(x, dim=axis)
def _gelu(x):
    return torch.nn.functional.gelu(x, approximate="tanh")
def _silu(x):
    return torch.nn.functional.silu(x)
def _sigmoid(x):
    return torch.sigmoid(x)
def _layernorm(x, axis=-1, eps=1e-5):
    m = x.mean(dim=axis, keepdim=True)
    v = x.var(dim=axis, keepdim=True, unbiased=False)
    return (x - m) / torch.sqrt(v + eps)
def _scatter_add(tgt, idx, src, axis=0):
    return tgt.clone().index_add_(axis, idx, src)
def _segment_sum(src, seg, n):
    out = torch.zeros((n,) + src.shape[1:], dtype=src.dtype)
    return out.index_add_(0, seg, src)
def _pad(x, pw):
    flat = tuple(v for pair in reversed(pw) for v in pair)
    return torch.nn.functional.pad(x, flat)

kernel_name = 'parallel_sum__spectral_fnet__dense_activation_relu__prompt'

def setup_inputs():

    _w = (lambda a: (lambda t: t.to(torch.bfloat16) if t.is_floating_point() else t)(torch.as_tensor(a)))
    def _A_setup():
        B, S, D = 1, 2048, 640
        ns = torch.arange(S)[:, None] * torch.arange(S)[None, :]
        nd = torch.arange(D)[:, None] * torch.arange(D)[None, :]
        Ws_re = torch.cos(-2.0 * torch.pi * ns / S).to(float)
        Ws_im = torch.sin(-2.0 * torch.pi * ns / S).to(float)
        Wd_re = torch.cos(-2.0 * torch.pi * nd / D).to(float)
        Wd_im = torch.sin(-2.0 * torch.pi * nd / D).to(float)
        return {
            "x": _w((lambda *s: torch.randn(*s, dtype=torch.bfloat16) * 0.05)(B, S, D)),
            "dft_seq_re": _w(Ws_re),
            "dft_seq_im": _w(Ws_im),
            "dft_hid_re": _w(Wd_re),
            "dft_hid_im": _w(Wd_im),
        }
    _A_in = _A_setup()

    def _B_setup():
        B, S, D, Dff = 1, 2048, 640, 1728
        return {
            "x": _w((lambda *s: torch.randn(*s, dtype=torch.bfloat16) * 0.05)(B, S, D)),
            "w1": _w((lambda *s: torch.randn(*s, dtype=torch.bfloat16) * 0.4)(D, Dff)),
            "w2": _w((lambda *s: torch.randn(*s, dtype=torch.bfloat16) * 0.4)(Dff, D)),
        }
    _B_in = _B_setup()

    return {
        "A_x": _A_in["x"],
        "A_dft_seq_re": _A_in["dft_seq_re"],
        "A_dft_seq_im": _A_in["dft_seq_im"],
        "A_dft_hid_re": _A_in["dft_hid_re"],
        "A_dft_hid_im": _A_in["dft_hid_im"],
        "B_x": _B_in["x"],
        "B_w1": _B_in["w1"],
        "B_w2": _B_in["w2"],
    }

def reference(A_x, A_dft_seq_re, A_dft_seq_im, A_dft_hid_re, A_dft_hid_im, B_x, B_w1, B_w2):
    def _A_ref(x, dft_seq_re, dft_seq_im, dft_hid_re, dft_hid_im):
        a = torch.einsum("bsd,ed->bse", x, dft_hid_re)
        b = torch.einsum("bsd,ed->bse", x, dft_hid_im)
        y = torch.einsum("ts,bse->bte", dft_seq_re, a) - torch.einsum("ts,bse->bte", dft_seq_im, b)
        return y

    def _B_ref(x, w1, w2):
        h = torch.einsum("bsd,df->bsf", x, w1)
        zero = torch.zeros_like(h)
        h = torch.maximum(h, zero)
        return torch.einsum("bsf,fd->bsd", h, w2)

    x = A_x
    xn = _layernorm(x, axis=-1)
    return x + _A_ref(xn, A_dft_seq_re, A_dft_seq_im, A_dft_hid_re, A_dft_hid_im) + _B_ref(xn, B_w1, B_w2)
```

```python
class Asm:
    def __init__(self):
        self.lines = []
    def __call__(self, s=""):
        for l in s.split("\n"):
            self.lines.append(l if (l.endswith(":") or l.startswith(".") or l.startswith(";")) else "  " + l)
    def c(self, s):
        self.lines.append("  ; " + s)
    def text(self):
        return "\n".join(self.lines) + "\n"

def v(a, n=1):
    return f"v{a}" if n == 1 else f"v[{a}:{a+n-1}]"
def s(a, n=1):
    return f"s{a}" if n == 1 else f"s[{a}:{a+n-1}]"

def srd(A, d, plo, nbytes, off=None):
    if off is None:
        A(f"s_mov_b32 s{d}, s{plo}\ns_mov_b32 s{d+1}, s{plo+1}")
    else:
        A(f"s_add_u32 s{d}, s{plo}, {off}\ns_addc_u32 s{d+1}, s{plo+1}, 0")
    A(f"s_mov_b32 s{d+2}, {nbytes}\ns_mov_b32 s{d+3}, 0x20000")

def kernel_head(A, name):
    A(f".globl {name}\n.p2align 8\n.type {name},@function\n{name}:")

def kernel_desc(name, vgpr, sgpr=102):
    return f""".amdhsa_kernel {name}
  .amdhsa_next_free_vgpr {vgpr}
  .amdhsa_next_free_sgpr {sgpr}
  .amdhsa_accum_offset {vgpr}
  .amdhsa_group_segment_fixed_size 0
  .amdhsa_kernarg_size 88
  .amdhsa_user_sgpr_count 2
  .amdhsa_user_sgpr_kernarg_segment_ptr 1
  .amdhsa_system_sgpr_workgroup_id_x 1
.end_amdhsa_kernel
"""
```

```python
from asmlib import *
from layout import *

def dpp_add(A, r, ctrl):
    A(f"v_add_f32_dpp v{r}, v{r}, v{r} {ctrl} row_mask:0xf bank_mask:0xf")

def emit_fjob(A, sn, sws_srd, s_tmp, vb):
    t = s_tmp
    A(f"s_lshr_b32 s{t}, s{sn}, 4")
    A(f"s_lshr_b32 s{t+1}, s{sn}, 2\ns_and_b32 s{t+1}, s{t+1}, 3")
    A(f"s_and_b32 s{t+2}, s{sn}, 3")
    A(f"s_lshr_b32 s{t+3}, s{t+1}, 1\ns_lshl_b32 s{t+3}, s{t+3}, 5\ns_add_u32 s{t+3}, s{t+3}, s{t}")
    A(f"s_and_b32 s{t+4}, s{t+1}, 1\ns_lshl_b32 s{t+4}, s{t+4}, 10\ns_add_u32 s{t+3}, s{t+3}, s{t+4}")
    A(f"s_lshl_b32 s{t+3}, s{t+3}, 12")
    A(f"s_lshl_b32 s{t+4}, s{t+2}, 4\ns_add_u32 s{t+3}, s{t+3}, s{t+4}")
    A(f"v_and_b32 v{vb}, 15, v1\nv_lshlrev_b32 v{vb}, 18, v{vb}")
    A(f"v_lshrrev_b32 v{vb+1}, 4, v1\nv_lshlrev_b32 v{vb+1}, 2, v{vb+1}\nv_add_u32 v{vb}, v{vb}, v{vb+1}")
    A(f"buffer_load_dword v{vb+2}, v{vb}, s[24:27], s{t+3} offen")
    A(f"buffer_load_dword v{vb+3}, v{vb}, s[24:27], s{t+3} offen offset:64")
    A(f"buffer_load_dword v{vb+4}, v{vb}, s[28:31], s{t+3} offen")
    A(f"buffer_load_dword v{vb+5}, v{vb}, s[28:31], s{t+3} offen offset:64")
    A(f"s_lshl_b32 s{t}, s{t}, 2\ns_add_u32 s{t}, s{t}, s{t+1}\ns_mul_i32 s{t}, s{t}, 58")
    A(f"s_add_u32 s{t}, s{t}, s{t+2}\ns_add_u32 s{t}, s{t}, 54\ns_lshl_b32 s{t}, s{t}, 10")
    A(f"s_add_u32 s{t}, s{t}, {HF_OFF}")
    A(f"s_mov_b32 s{t+4}, 0x05040100\ns_mov_b32 s{t+5}, 0x07060302")
    A(f"v_lshlrev_b32 v{vb+1}, 4, v1")
    A("s_waitcnt vmcnt(0)")
    A(f"v_perm_b32 v{vb+8}, v{vb+4}, v{vb+2}, s{t+4}")
    A(f"v_perm_b32 v{vb+9}, v{vb+4}, v{vb+2}, s{t+5}")
    A(f"v_perm_b32 v{vb+10}, v{vb+5}, v{vb+3}, s{t+4}")
    A(f"v_perm_b32 v{vb+11}, v{vb+5}, v{vb+3}, s{t+5}")
    A(f"buffer_store_dwordx4 v[{vb+8}:{vb+11}], v{vb+1}, s[{sws_srd}:{sws_srd+3}], s{t} offen")

def gen_k0(A, name):
    kernel_head(A, name)
    A("s_cmp_ge_u32 s2, 256\ns_cbranch_scc1 K0_end")
    A(f"s_load_dwordx4 s[4:7], s[0:1], {KA_X}")
    A(f"s_load_dwordx2 s[8:9], s[0:1], {KA_SIM}")
    A(f"s_load_dwordx4 s[12:15], s[0:1], {KA_W1}")
    A(f"s_load_dwordx2 s[10:11], s[0:1], {KA_WS}")
    A("v_lshrrev_b32 v2, 6, v0\nv_and_b32 v1, 63, v0\ns_nop 0\nv_readfirstlane_b32 s3, v2")
    A("s_waitcnt lgkmcnt(0)")
    srd(A, 16, 4, X_BYTES)
    srd(A, 20, 10, WS_USED)
    srd(A, 24, 6, SEQ_BYTES)
    srd(A, 28, 8, SEQ_BYTES)
    srd(A, 32, 12, W1_BYTES)
    srd(A, 36, 14, W2_BYTES)
    A("s_cmp_eq_u32 s3, 0\ns_cbranch_scc1 K0_x")
    A("s_cmp_eq_u32 s3, 1\ns_cbranch_scc1 K0_c")
    A("s_branch K0_w")
    A("K0_x:")
    A("s_lshr_b32 s40, s2, 4")
    A("s_and_b32 s41, s2, 15")
    A("s_lshr_b32 s42, s41, 2")
    A("s_and_b32 s43, s41, 3")
    A("s_lshl_b32 s44, s40, 1\ns_and_b32 s45, s42, 1\ns_add_u32 s44, s44, s45")
    A("s_lshr_b32 s45, s42, 1\ns_lshl_b32 s45, s45, 5\ns_add_u32 s44, s44, s45")
    A("s_lshl_b32 s45, s43, 9\ns_add_u32 s44, s44, s45")
    A("s_mul_i32 s44, s44, 1280")
    A("v_lshrrev_b32 v2, 3, v1\ns_mov_b32 s46, 81920\nv_mul_lo_u32 v2, s46, v2")
    A("v_and_b32 v3, 7, v1\nv_lshlrev_b32 v3, 4, v3\nv_add_u32 v2, v2, v3")
    for i in range(10):
        A(f"buffer_load_dwordx4 v[{8+4*i}:{11+4*i}], v2, s[16:19], s44 offen offset:{128*i}")
    A("v_mov_b32 v4, 0\nv_mov_b32 v5, 0\nv_mov_b32 v6, 0\nv_mov_b32 v7, 0")
    A("s_mov_b32 s47, 0x3f803f80")
    for i in range(10):
        A(f"s_waitcnt vmcnt({9-i})")
        for k in range(4):
            r = 8 + 4 * i + k
            A(f"v_dot2_f32_bf16 v{4+(k&1)}, v{r}, s47, v{4+(k&1)}")
            A(f"v_dot2_f32_bf16 v{6+(k&1)}, v{r}, v{r}, v{6+(k&1)}")
    A("s_nop 3")
    A("v_add_f32 v4, v4, v5\nv_add_f32 v6, v6, v7\ns_nop 1")
    for ctrl in ["quad_perm:[1,0,3,2]", "quad_perm:[2,3,0,1]", "row_half_mirror"]:
        dpp_add(A, 4, ctrl); dpp_add(A, 6, ctrl); A("s_nop 1")
    A("s_mov_b32 s46, 0x3acccccd")
    A("v_mul_f32 v4, s46, v4\nv_mul_f32 v6, s46, v6")
    A("v_fma_f32 v6, -v4, v4, v6")
    A("v_max_f32 v6, 0, v6")
    A("v_add_f32 v6, 0x3727c5ac, v6")
    A("v_rsq_f32 v5, v6")
    A("s_lshl_b32 s45, s40, 10\ns_lshl_b32 s46, s41, 5\ns_add_u32 s45, s45, s46")
    A(f"s_add_u32 s45, s45, {ST_OFF}")
    A("v_lshrrev_b32 v2, 3, v1\nv_lshlrev_b32 v2, 2, v2")
    A("v_and_b32 v3, 7, v1\nv_cmp_eq_u32 vcc, 0, v3\ns_and_saveexec_b64 s[48:49], vcc")
    A("buffer_store_dword v4, v2, s[20:23], s45 offen")
    A("buffer_store_dword v5, v2, s[20:23], s45 offen offset:512")
    A("s_mov_b64 exec, s[48:49]")
    A("s_lshl_b32 s50, s2, 1")
    emit_fjob(A, 50, 20, 52, 64)
    A("s_branch K0_end")
    A("K0_c:")
    A("s_cmp_ge_u32 s2, 216\ns_cbranch_scc1 K0_c_done")
    A("s_mov_b32 s46, 3456\nv_mul_lo_u32 v2, s46, v1")
    A("s_lshl_b32 s44, s2, 4")
    for i in range(10):
        A(f"buffer_load_dwordx4 v[{8+4*i}:{11+4*i}], v2, s[32:35], s44 offen")
        if i < 9: A(f"s_add_u32 s44, s44, {64*3456}")
    for k in range(8): A(f"v_mov_b32 v{48+k}, 0")
    A("s_mov_b32 s46, 0x00003f80\ns_mov_b32 s47, 0x3f800000")
    for i in range(10):
        A(f"s_waitcnt vmcnt({9-i})")
        for k in range(4):
            r = 8 + 4 * i + k
            A(f"v_dot2_f32_bf16 v{48+2*k}, v{r}, s46, v{48+2*k}")
            A(f"v_dot2_f32_bf16 v{49+2*k}, v{r}, s47, v{49+2*k}")
    A("s_nop 3")
    for ctrl in ["row_ror:8", "row_ror:4", "row_ror:2", "row_ror:1"]:
        for k in range(8): dpp_add(A, 48 + k, ctrl)
    for sw in ["v_permlane16_swap_b32", "v_permlane32_swap_b32"]:
        for k in range(8): A(f"v_mov_b32 v{56+k}, v{48+k}")
        A("s_nop 1")
        for k in range(8): A(f"{sw} v{48+k}, v{56+k}")
        A("s_nop 1")
        for k in range(8): A(f"v_add_f32 v{48+k}, v{48+k}, v{56+k}")
    A(f"s_lshl_b32 s45, s2, 5\ns_add_u32 s45, s45, {CS_OFF}")
    A("v_mov_b32 v2, 0")
    A("v_cmp_eq_u32 vcc, 0, v1\ns_and_saveexec_b64 s[48:49], vcc")
    A("buffer_store_dwordx4 v[48:51], v2, s[20:23], s45 offen")
    A("buffer_store_dwordx4 v[52:55], v2, s[20:23], s45 offen offset:16")
    A("s_mov_b64 exec, s[48:49]")
    A("K0_c_done:")
    A("s_lshl_b32 s50, s2, 1\ns_add_u32 s50, s50, 1")
    emit_fjob(A, 50, 20, 52, 64)
    A("s_branch K0_end")
    A("K0_w:")
    A("s_sub_u32 s41, s3, 2\ns_lshl_b32 s40, s2, 1\ns_add_u32 s40, s40, s41")
    A("s_cmp_ge_u32 s40, 432\ns_cbranch_scc1 K0_end")
    A("s_lshr_b32 s42, s40, 3\ns_and_b32 s43, s40, 7")
    A("s_mul_i32 s44, s42, 40960\ns_mul_i32 s45, s43, 160\ns_add_u32 s44, s44, s45")
    A("s_mul_i32 s46, s41, 5120")
    A("s_mov_b32 s47, 6554\ns_mov_b32 s48, 1280")
    for q in range(5):
        A(f"v_add_u32 v2, {64*q}, v1")
        A("v_mul_lo_u32 v3, s47, v2\nv_lshrrev_b32 v3, 16, v3")
        A("v_mul_u32_u24 v4, 10, v3\nv_sub_u32 v4, v2, v4\nv_lshlrev_b32 v4, 4, v4")
        A("v_mul_lo_u32 v3, s48, v3\nv_add_u32 v3, v3, v4")
        A(f"s_add_u32 m0, s46, {1024*q}\ns_nop 0")
        A("buffer_load_dwordx4 v3, s[36:39], s44 offen lds")
    A("v_lshrrev_b32 v2, 4, v1")
    A("v_lshrrev_b32 v3, 1, v2\nv_lshlrev_b32 v3, 4, v3")
    A("v_and_b32 v4, 1, v2\nv_lshlrev_b32 v4, 2, v4\nv_add_u32 v3, v3, v4")
    A("v_bfe_u32 v4, v1, 2, 2\nv_add_u32 v3, v3, v4")
    A("v_mul_u32_u24 v3, 160, v3")
    A("v_and_b32 v4, 3, v1\nv_lshlrev_b32 v4, 3, v4\nv_add_u32 v3, v3, v4\nv_add_u32 v3, s46, v3")
    A("s_waitcnt vmcnt(0)")
    for n in range(5):
        A(f"ds_read_b64_tr_b16 v[{8+4*n}:{9+4*n}], v3 offset:{32*n}")
        A(f"ds_read_b64_tr_b16 v[{10+4*n}:{11+4*n}], v3 offset:{32*n+1280}")
    A("s_mul_i32 s45, s43, 54\ns_add_u32 s45, s45, s42\ns_mul_i32 s45, s45, 5120")
    A(f"s_add_u32 s45, s45, {W2F_OFF}")
    A("v_lshlrev_b32 v2, 4, v1\nv_add_u32 v4, 4096, v2")
    A("s_waitcnt lgkmcnt(0)")
    for n in range(4):
        A(f"buffer_store_dwordx4 v[{8+4*n}:{11+4*n}], v2, s[20:23], s45 offen offset:{1024*n}")
    A("buffer_store_dwordx4 v[24:27], v4, s[20:23], s45 offen")
    A("K0_end:\ns_endpgm")
```

```python
from asmlib import *
from layout import *

RING = 32768
NS = 4
LST = NS * RING
LCS = LST + 1024
K1_LDS = LCS + 1024

MFMA32 = "v_mfma_f32_32x32x16_bf16"

S_B, S_C, S_F0, S_WV = 18, 19, 20, 3

def k1_common(A):
    A("s_cmp_ge_u32 s2, 256\ns_cbranch_scc1 K1_end")
    A(f"s_load_dwordx4 s[4:7], s[0:1], {KA_X}")
    A(f"s_load_dwordx4 s[8:11], s[0:1], {KA_SIM}")
    A(f"s_load_dwordx4 s[12:15], s[0:1], {KA_HIM}")
    A(f"s_load_dwordx2 s[14:15], s[0:1], {KA_W1}") if False else None
    A(f"s_load_dwordx2 s[22:23], s[0:1], {KA_W1}")
    A(f"s_load_dwordx2 s[16:17], s[0:1], {KA_WS}")
    A("v_lshrrev_b32 v2, 6, v0\nv_and_b32 v1, 63, v0\ns_nop 0\nv_readfirstlane_b32 s3, v2")
    A("s_and_b32 s24, s2, 7\ns_lshr_b32 s25, s2, 3")
    A("s_lshr_b32 s26, s24, 1\ns_lshl_b32 s26, s26, 2\ns_lshr_b32 s27, s25, 3")
    A(f"s_add_u32 s{S_B}, s26, s27")
    A("s_and_b32 s26, s24, 1\ns_lshl_b32 s26, s26, 3\ns_and_b32 s27, s25, 7")
    A(f"s_add_u32 s{S_C}, s26, s27")
    A(f"s_lshl_b32 s26, s{S_C}, 6\ns_lshl_b32 s27, s{S_C}, 7\ns_sub_u32 s27, s27, 320")
    A(f"s_cmp_lt_u32 s{S_C}, 5\ns_cselect_b32 s{S_F0}, s26, s27")
    A("s_waitcnt lgkmcnt(0)")
    A("s_mov_b32 s14, s22\ns_mov_b32 s15, s23")

def k1_loader(A):
    A("K1_loader:")
    A("s_sub_u32 s21, s3, 4")
    srd(A, 24, 4, X_BYTES)
    srd(A, 36, 16, WS_USED)
    A("v_lshrrev_b32 v4, 3, v1\ns_mov_b32 s40, 81920\nv_mul_lo_u32 v4, s40, v4")
    A("v_and_b32 v5, 7, v1\nv_lshrrev_b32 v6, 4, v1\nv_xor_b32 v5, v5, v6\nv_lshlrev_b32 v5, 4, v5")
    A("v_add_u32 v2, v4, v5")
    A(f"v_xor_b32 v5, 64, v5\nv_add_u32 v3, v4, v5\nv_add_u32 v3, {8*81920}, v3")
    A(f"s_lshl_b32 s40, s{S_B}, 1\ns_and_b32 s41, s21, 1\ns_add_u32 s40, s40, s41")
    A("s_lshr_b32 s41, s21, 1\ns_lshl_b32 s41, s41, 5\ns_add_u32 s40, s40, s41")
    A(f"s_mul_i32 s40, s40, 1280\ns_add_u32 s41, s40, {16*81920}")
    A(f"s_cmp_lt_u32 s{S_C}, 5\ns_cbranch_scc0 K1_ld_H")
    A("s_cmp_ge_u32 s21, 2\ns_cbranch_scc0 K1_ld_H")
    A("s_and_b32 s42, s21, 1\ns_cmp_eq_u32 s42, 0")
    A("s_cselect_b32 s28, s10, s12\ns_cselect_b32 s29, s11, s13")
    A(f"s_mov_b32 s30, {HID_BYTES}\ns_mov_b32 s31, 0x20000")
    A("v_bfe_u32 v5, v1, 4, 1\nv_lshlrev_b32 v5, 4, v5")
    A("v_bfe_u32 v6, v1, 5, 1\nv_lshlrev_b32 v6, 3, v6\nv_add_u32 v5, v5, v6")
    A("v_bfe_u32 v6, v1, 2, 2\nv_lshlrev_b32 v6, 1, v6\nv_add_u32 v5, v5, v6")
    A("v_mul_u32_u24 v5, 1280, v5")
    A("v_and_b32 v6, 3, v1\nv_lshlrev_b32 v6, 4, v6\nv_add_u32 v4, v5, v6")
    A(f"s_lshl_b32 s42, s{S_C}, 6")
    for q in range(4):
        A(f"s_add_u32 s{44+q}, s42, {(32*(q>>1)+(q&1))*1280}")
    A(f"s_mov_b32 s43, {64*1280}")
    A("s_branch K1_ld_go")
    A("K1_ld_H:")
    srd(A, 28, 14, W1_BYTES)
    A("v_lshrrev_b32 v5, 3, v1\nv_mul_u32_u24 v5, 3456, v5")
    A("v_and_b32 v6, 7, v1\nv_bfe_u32 v7, v1, 4, 1\nv_lshlrev_b32 v7, 2, v7\nv_xor_b32 v6, v6, v7")
    A("v_lshlrev_b32 v6, 4, v6\nv_add_u32 v4, v5, v6")
    A(f"s_and_b32 s42, s21, 1\ns_mul_i32 s42, s42, {32*3456}")
    A(f"s_lshr_b32 s43, s21, 1\ns_lshl_b32 s43, s43, 6\ns_add_u32 s43, s43, s{S_F0}\ns_lshl_b32 s43, s43, 1")
    A("s_add_u32 s42, s42, s43")
    for q in range(4):
        A(f"s_add_u32 s{44+q}, s42, {8*q*3456}")
    A(f"s_mov_b32 s43, {64*3456}")
    A("K1_ld_go:")
    A("s_lshl_b32 s48, s21, 12")
    A("v_lshlrev_b32 v8, 4, v1")
    A("s_cmp_eq_u32 s21, 0\ns_cbranch_scc0 K1_ld_n0")
    A(f"s_lshl_b32 s50, s{S_B}, 10\ns_add_u32 s50, s50, {ST_OFF}\ns_mov_b32 m0, {LST}\ns_nop 0")
    A("buffer_load_dwordx4 v8, s[36:39], s50 offen lds")
    A("K1_ld_n0:")
    A("s_cmp_eq_u32 s21, 1\ns_cbranch_scc0 K1_ld_n1")
    A(f"s_lshl_b32 s50, s{S_F0}, 2\ns_add_u32 s50, s50, {CS_OFF}\ns_mov_b32 m0, {LCS}\ns_nop 0")
    A("buffer_load_dwordx4 v8, s[36:39], s50 offen lds")
    A("K1_ld_n1:")

    def chunk(slot_reg):
        for q in range(4):
            A(f"s_add_u32 m0, s{slot_reg}, {q*1024}")
            A("s_nop 0")
            A(f"buffer_load_dwordx4 v{2+(q&1)}, s[24:27], s{40+(q>>1)} offen lds")
            A(f"s_add_u32 m0, s{slot_reg}, {16384+q*1024}")
            A("s_nop 0")
            A(f"buffer_load_dwordx4 v4, s[28:31], s{44+q} offen lds")
        A("s_add_u32 s40, s40, 128\ns_add_u32 s41, s41, 128")
        for q in range(4):
            A(f"s_add_u32 s{44+q}, s{44+q}, s43")
    A("s_mov_b32 s49, s48")
    for k in range(NS):
        chunk(49)
        A(f"s_add_u32 s49, s49, {RING}")
    A("s_mov_b32 s49, s48")
    A("s_waitcnt vmcnt(24)\ns_barrier")
    A("s_waitcnt vmcnt(16)\ns_barrier")
    A("s_mov_b32 s51, 6")
    A("K1_ld_loop:")
    chunk(49)
    A(f"s_add_u32 s49, s49, {RING}\ns_cmp_ge_u32 s49, {NS*RING}\ns_cselect_b32 s52, {NS*RING}, 0\ns_sub_u32 s49, s49, s52")
    A("s_waitcnt vmcnt(16)\ns_barrier")
    A("s_sub_u32 s51, s51, 1\ns_cmp_lg_u32 s51, 0\ns_cbranch_scc1 K1_ld_loop")
    A("s_waitcnt vmcnt(8)\ns_barrier")
    A("s_waitcnt vmcnt(0)\ns_barrier")
    A("s_barrier")
    A("s_endpgm")

def x_addr(A, dst, rowbase_sgpr, tmp):
    A(f"v_and_b32 v{tmp}, 31, v1\nv_add_u32 v{tmp+1}, s{rowbase_sgpr}, v{tmp}\nv_lshlrev_b32 v{tmp+1}, 7, v{tmp+1}")
    A(f"v_bfe_u32 v{tmp}, v1, 1, 3\nv_lshrrev_b32 v{tmp+2}, 5, v1\nv_xor_b32 v{tmp}, v{tmp}, v{tmp+2}")
    A(f"v_lshlrev_b32 v{tmp}, 4, v{tmp}\nv_add_u32 v{dst}, v{tmp+1}, v{tmp}")
    for j in range(1, 4):
        A(f"v_xor_b32 v{dst+j}, {32*j}, v{dst}")

def h_tr_addr(A, dst, tmp):
    A(f"v_bfe_u32 v{tmp}, v1, 5, 1\nv_lshlrev_b32 v{tmp}, 3, v{tmp}\nv_bfe_u32 v{tmp+1}, v1, 2, 2\nv_add_u32 v{tmp}, v{tmp}, v{tmp+1}")
    A(f"v_lshlrev_b32 v{tmp}, 7, v{tmp}")
    A(f"v_bfe_u32 v{tmp+1}, v1, 4, 1\nv_lshlrev_b32 v{tmp+1}, 1, v{tmp+1}\nv_bfe_u32 v{tmp+2}, v1, 1, 1\nv_add_u32 v{tmp+1}, v{tmp+1}, v{tmp+2}")
    A(f"v_bfe_u32 v{tmp+2}, v1, 3, 1\nv_lshlrev_b32 v{tmp+2}, 2, v{tmp+2}\nv_xor_b32 v{tmp+1}, v{tmp+1}, v{tmp+2}")
    A(f"v_lshlrev_b32 v{tmp+1}, 4, v{tmp+1}\nv_add_u32 v{tmp}, v{tmp}, v{tmp+1}")
    A(f"v_and_b32 v{tmp+1}, 1, v1\nv_lshlrev_b32 v{tmp+1}, 3, v{tmp+1}\nv_add_u32 v{dst}, v{tmp}, v{tmp+1}")

def d_tr_addr(A, dst, tmp):
    A(f"v_bfe_u32 v{tmp}, v1, 5, 1\nv_lshlrev_b32 v{tmp}, 3, v{tmp}\nv_bfe_u32 v{tmp+1}, v1, 2, 2\nv_add_u32 v{tmp}, v{tmp}, v{tmp+1}")
    A(f"v_lshlrev_b32 v{tmp}, 6, v{tmp}")
    A(f"v_bfe_u32 v{tmp+1}, v1, 4, 1\nv_lshlrev_b32 v{tmp+1}, 5, v{tmp+1}\nv_add_u32 v{tmp}, v{tmp}, v{tmp+1}")
    A(f"v_and_b32 v{tmp+1}, 3, v1\nv_lshlrev_b32 v{tmp+1}, 3, v{tmp+1}\nv_add_u32 v{dst}, v{tmp}, v{tmp+1}")

def interleave(A, mfmas, fillers, per_gap):
    k = 0
    for i, m in enumerate(mfmas):
        A(m)
        for _ in range(per_gap[i]):
            if k < len(fillers):
                A(fillers[k]); k += 1
    while k < len(fillers):
        A(fillers[k]); k += 1

def h_epilogue_tile(A, acc, mr, cs, tmp, vaddr, soff):
    for i in range(0, 16, 2):
        A(f"v_pk_fma_f32 v[{acc+i}:{acc+i+1}], v[{cs+i}:{cs+i+1}], v[{mr}:{mr+1}], v[{acc+i}:{acc+i+1}] op_sel:[0,0,0] op_sel_hi:[1,0,1] neg_lo:[0,1,0] neg_hi:[0,1,0]")
    for i in range(0, 16, 2):
        A(f"v_pk_mul_f32 v[{acc+i}:{acc+i+1}], v[{acc+i}:{acc+i+1}], v[{mr}:{mr+1}] op_sel:[0,1] op_sel_hi:[1,1]")
    for i in range(0, 16, 2):
        A(f"v_cvt_pk_bf16_f32 v{tmp+i//2}, v{acc+i}, v{acc+i+1}")
    for i in range(8):
        A(f"v_pk_max_i16 v{tmp+i}, v{tmp+i}, 0")
    A(f"buffer_store_dwordx4 v[{tmp}:{tmp+3}], v{vaddr}, s[36:39], s{soff} offen")
    A(f"buffer_store_dwordx4 v[{tmp+4}:{tmp+7}], v{vaddr}, s[36:39], s{soff} offen offset:512")

def h_store_voff(A, dst, tmp):
    A(f"v_bfe_u32 v{tmp}, v1, 4, 1\nv_mul_u32_u24 v{tmp}, {58*1024}, v{tmp}")
    A(f"v_lshrrev_b32 v{tmp+1}, 5, v1\nv_lshlrev_b32 v{tmp+1}, 8, v{tmp+1}\nv_add_u32 v{tmp}, v{tmp}, v{tmp+1}")
    A(f"v_and_b32 v{tmp+1}, 15, v1\nv_lshlrev_b32 v{tmp+1}, 4, v{tmp+1}\nv_add_u32 v{dst}, v{tmp}, v{tmp+1}")

def k1_hh(A):
    A("K1_hh:")
    ACC = 128
    P, Q = 32, 64
    XB, WB = 2, 6
    XC, WC = 8, 12
    srd(A, 36, 16, WS_USED)
    A("s_lshr_b32 s24, s3, 1\ns_and_b32 s25, s3, 1")
    A("s_lshl_b32 s26, s24, 6")
    x_addr(A, XB, 26, 20)
    h_tr_addr(A, WB, 20)
    A("s_lshl_b32 s27, s25, 13\ns_add_u32 s27, s27, 16384")
    A(f"v_add_u32 v{WB}, s27, v{WB}\nv_xor_b32 v{WB+1}, 64, v{WB}")
    for i in range(64): A(f"v_mov_b32 v{ACC+i}, 0")
    for j in range(4): A(f"v_mov_b32 v{XC+j}, v{XB+j}")
    for j in range(2): A(f"v_mov_b32 v{WC+j}, v{WB+j}")
    A("s_mov_b32 s28, 0")
    def reads(buf, g):
        out = []
        for jj in range(2):
            j = 2 * g + jj
            b = buf + 16 * jj
            out.append(f"ds_read_b128 v[{b}:{b+3}], v{XC+j}")
            out.append(f"ds_read_b64_tr_b16 v[{b+8}:{b+9}], v{WC} offset:{j*2048}")
            out.append(f"ds_read_b64_tr_b16 v[{b+10}:{b+11}], v{WC} offset:{j*2048+512}")
            out.append(f"ds_read_b128 v[{b+4}:{b+7}], v{XC+j} offset:4096")
            out.append(f"ds_read_b64_tr_b16 v[{b+12}:{b+13}], v{WC+1} offset:{j*2048}")
            out.append(f"ds_read_b64_tr_b16 v[{b+14}:{b+15}], v{WC+1} offset:{j*2048+512}")
        return out
    def mfmas(buf):
        out = []
        for jj in range(2):
            b = buf + 16 * jj
            for ft in range(2):
                for st in range(2):
                    a = ACC + 16 * (2 * ft + st)
                    out.append(f"{MFMA32} v[{a}:{a+15}], v[{b+8+4*ft}:{b+11+4*ft}], v[{b+4*st}:{b+3+4*st}], v[{a}:{a+15}]")
        return out
    A("s_barrier")
    for r in reads(P, 0): A(r)
    A("s_mov_b32 s29, 10")
    A("K1_hh_loop:")
    A("s_waitcnt lgkmcnt(0)")
    upd = [f"v_add_u32 v{XC+j}, s28, v{XB+j}" for j in range(4)] + [f"v_add_u32 v{WC+j}, s28, v{WB+j}" for j in range(2)]
    ring = [f"s_add_u32 s28, s28, {RING}", f"s_and_b32 s28, s28, {NS*RING-1}"]
    interleave(A, mfmas(P), reads(Q, 1) + ring + upd, [3, 3, 3, 3, 2, 3, 3, 0])
    A("s_waitcnt lgkmcnt(0)")
    A("s_barrier")
    interleave(A, mfmas(Q), reads(P, 0), [3, 3, 3, 3, 0, 0, 0, 0])
    A("s_sub_u32 s29, s29, 1\ns_cmp_lg_u32 s29, 0\ns_cbranch_scc1 K1_hh_loop")
    A("s_waitcnt lgkmcnt(0)")
    A(f"v_and_b32 v20, 31, v1\nv_add_u32 v20, s26, v20\nv_lshlrev_b32 v20, 2, v20\nv_add_u32 v20, {LST}, v20")
    A("ds_read_b32 v22, v20\nds_read_b32 v23, v20 offset:512\nds_read_b32 v24, v20 offset:128\nds_read_b32 v25, v20 offset:640")
    A(f"v_lshrrev_b32 v21, 5, v1\nv_lshlrev_b32 v21, 4, v21\ns_lshl_b32 s30, s25, 8\ns_add_u32 s30, s30, {LCS}\nv_add_u32 v21, s30, v21")
    for ft in range(2):
        for q in range(4):
            b = 32 + 16 * ft + 4 * q
            A(f"ds_read_b128 v[{b}:{b+3}], v21 offset:{ft*128+q*32}")
    h_store_voff(A, 26, 28)
    A(f"s_lshl_b32 s31, s{S_B}, 3\ns_lshl_b32 s32, s24, 1\ns_add_u32 s31, s31, s32\ns_mul_i32 s31, s31, 58")
    A(f"s_lshr_b32 s32, s{S_F0}, 5\ns_lshl_b32 s33, s25, 1\ns_add_u32 s32, s32, s33\ns_add_u32 s31, s31, s32")
    A(f"s_lshl_b32 s31, s31, 10\ns_add_u32 s31, s31, {HF_OFF}")
    A("s_waitcnt lgkmcnt(0)")
    A("s_nop 7")
    for st in range(2):
        for ft in range(2):
            A(f"s_add_u32 s32, s31, {(st*4*58+ft)*1024}")
            h_epilogue_tile(A, ACC + 16 * (2 * ft + st), 22 + 2 * st, 32 + 16 * ft, 64 + 8 * ((2 * st + ft) & 3), 26, 32)
    A("s_endpgm")

def k1_mx(A):
    A("K1_mx:")
    HA, HB = 128, 144
    EC, ES, OC, OS = 160, 176, 192, 208
    P, Q = 32, 72
    EV, OD = 112, 116
    G = 224
    XAB, XBB, WHB, WDB = 2, 6, 10, 11
    XAC, XBC, WHC, WDC = 12, 16, 20, 21
    srd(A, 36, 16, WS_USED)
    srd(A, 40, 6, SEQ_BYTES)
    srd(A, 44, 8, SEQ_BYTES)
    A("v_and_b32 v24, 31, v1\nv_lshlrev_b32 v24, 18, v24\nv_lshrrev_b32 v25, 5, v1\nv_lshlrev_b32 v25, 3, v25\nv_add_u32 v24, v24, v25")
    for p in range(2):
        for uh in range(2):
            A(f"buffer_load_dwordx2 v[{G+4*p+2*uh}:{G+4*p+2*uh+1}], v24, s[40:43], 0 offen offset:{32*p+16*uh}")
            A(f"buffer_load_dwordx2 v[{G+8+4*p+2*uh}:{G+8+4*p+2*uh+1}], v24, s[44:47], 0 offen offset:{32*p+16*uh}")
    A("s_lshr_b32 s24, s3, 1\ns_and_b32 s25, s3, 1")
    A("s_lshl_b32 s26, s3, 5")
    A("s_xor_b32 s27, s26, 32")
    x_addr(A, XAB, 26, 24)
    x_addr(A, XBB, 27, 24)
    h_tr_addr(A, WHB, 24)
    A(f"s_lshl_b32 s30, s25, 6\nv_xor_b32 v{WHB}, s30, v{WHB}\nv_add_u32 v{WHB}, 16384, v{WHB}")
    d_tr_addr(A, WDB, 24)
    A(f"v_add_u32 v{WDB}, {16384+8192}, v{WDB}")
    for i in range(96): A(f"v_mov_b32 v{HA+i}, 0")
    for j in range(10): A(f"v_mov_b32 v{XAC+j}, v{XAB+j}")
    A("v_and_b32 v24, 31, v1\nv_cmp_eq_u32 s[32:33], 0, v24")
    A(f"s_cmp_eq_u32 s{S_C}, 0\ns_cselect_b64 s[32:33], s[32:33], 0")
    A("v_mov_b32 v22, 0xbf803f80\nv_mov_b32 v23, 0x3f80bf80")
    A("s_mov_b32 s34, 0x05040100\ns_mov_b32 s35, 0x07060302")
    A("s_mov_b32 s28, 0")
    def reads(buf, m):
        out = []
        for jj in range(2):
            j = 2 * m + jj
            out.append(f"ds_read_b128 v[{buf+4*jj}:{buf+4*jj+3}], v{XAC+j}")
            out.append(f"ds_read_b64_tr_b16 v[{buf+16+4*jj}:{buf+17+4*jj}], v{WHC} offset:{j*2048}")
            out.append(f"ds_read_b64_tr_b16 v[{buf+18+4*jj}:{buf+19+4*jj}], v{WHC} offset:{j*2048+512}")
            out.append(f"ds_read_b128 v[{buf+8+4*jj}:{buf+11+4*jj}], v{XBC+j}")
        for par in range(2):
            jj = 2 * m + par
            for mat in range(2):
                b = buf + 24 + 8 * par + 4 * mat
                out.append(f"ds_read_b64_tr_b16 v[{b}:{b+1}], v{WDC} offset:{jj*1024+mat*4096}")
                out.append(f"ds_read_b64_tr_b16 v[{b+2}:{b+3}], v{WDC} offset:{jj*1024+256+mat*4096}")
        return out
    def valu(buf):
        out = []
        for jj in range(2):
            for k in range(2):
                a0, a1 = buf + 4 * jj + 2 * k, buf + 4 * jj + 2 * k + 1
                out.append(f"v_perm_b32 v{EV+2*jj+k}, v{a1}, v{a0}, s34")
                out.append(f"v_perm_b32 v{OD+2*jj+k}, v{a1}, v{a0}, s35")
        for k in range(4):
            out.append(f"v_cndmask_b32 v{buf+28+k}, v{buf+28+k}, v22, s[32:33]")
            out.append(f"v_cndmask_b32 v{buf+36+k}, v{buf+36+k}, v23, s[32:33]")
        return out
    def mfH(buf):
        out = []
        for jj in range(2):
            w = buf + 16 + 4 * jj
            out.append(f"{MFMA32} v[{HA}:{HA+15}], v[{w}:{w+3}], v[{buf+4*jj}:{buf+4*jj+3}], v[{HA}:{HA+15}]")
            out.append(f"{MFMA32} v[{HB}:{HB+15}], v[{w}:{w+3}], v[{buf+8+4*jj}:{buf+11+4*jj}], v[{HB}:{HB+15}]")
        return out
    def mfD(buf):
        return [f"{MFMA32} v[{EC}:{EC+15}], v[{EV}:{EV+3}], v[{buf+24}:{buf+27}], v[{EC}:{EC+15}]",
                f"{MFMA32} v[{OC}:{OC+15}], v[{OD}:{OD+3}], v[{buf+32}:{buf+35}], v[{OC}:{OC+15}]",
                f"{MFMA32} v[{ES}:{ES+15}], v[{EV}:{EV+3}], v[{buf+28}:{buf+31}], v[{ES}:{ES+15}]",
                f"{MFMA32} v[{OS}:{OS+15}], v[{OD}:{OD+3}], v[{buf+36}:{buf+39}], v[{OS}:{OS+15}]"]
    def half(cur, nxt, m_next, extra):
        rd = reads(nxt, m_next); va = valu(cur)
        H = mfH(cur); Dm = mfD(cur)
        k = 0
        for i in range(4):
            A(H[i])
            for t in va[4*i:4*i+4]: A(t)
            for t in rd[2*i:2*i+2]: A(t)
        rest = rd[8:] + extra
        n = [4, 4, 4, 99]
        k = 0
        for i in range(4):
            A(Dm[i])
            for t in rest[k:k+n[i]]: A(t)
            k += n[i]
    A("s_barrier")
    for r in reads(P, 0): A(r)
    A("s_mov_b32 s29, 10")
    A("K1_mx_loop:")
    A("s_waitcnt lgkmcnt(0)")
    ring = [f"s_add_u32 s28, s28, {RING}", f"s_and_b32 s28, s28, {NS*RING-1}"]
    upd = [f"v_add_u32 v{XAC+j}, s28, v{XAB+j}" for j in range(10)]
    half(P, Q, 1, ring + upd)
    A("s_waitcnt lgkmcnt(0)")
    A("s_barrier")
    half(Q, P, 0, [])
    A("s_sub_u32 s29, s29, 1\ns_cmp_lg_u32 s29, 0\ns_cbranch_scc1 K1_mx_loop")
    A("s_waitcnt lgkmcnt(0)")
    A(f"v_and_b32 v24, 31, v1\nv_add_u32 v25, s26, v24\nv_lshlrev_b32 v25, 2, v25\nv_add_u32 v25, {LST}, v25")
    A(f"v_add_u32 v26, s27, v24\nv_lshlrev_b32 v26, 2, v26\nv_add_u32 v26, {LST}, v26")
    A("ds_read_b32 v2, v25\nds_read_b32 v3, v25 offset:512\nds_read_b32 v4, v26\nds_read_b32 v5, v26 offset:512")
    A(f"v_lshrrev_b32 v27, 5, v1\nv_lshlrev_b32 v27, 4, v27\ns_lshl_b32 s30, s25, 7\ns_add_u32 s30, s30, {LCS}\nv_add_u32 v28, s30, v27")
    for q in range(4):
        A(f"ds_read_b128 v[{32+4*q}:{35+4*q}], v28 offset:{q*32}")
    A(f"s_lshl_b32 s30, s26, 2\ns_add_u32 s30, s30, {LST+512}\nv_add_u32 v28, s30, v27")
    for q in range(4):
        A(f"ds_read_b128 v[{48+4*q}:{51+4*q}], v28 offset:{q*32}")
    h_store_voff(A, 6, 28)
    A(f"s_lshl_b32 s31, s{S_B}, 3\ns_lshl_b32 s30, s24, 1\ns_add_u32 s31, s31, s30\ns_mul_i32 s31, s31, 58")
    A(f"s_lshr_b32 s30, s{S_F0}, 5\ns_add_u32 s30, s30, s25\ns_add_u32 s31, s31, s30")
    A(f"s_lshl_b32 s31, s31, 10\ns_add_u32 s31, s31, {HF_OFF}")
    A(f"s_mul_i32 s30, s25, {4*58*1024}\ns_add_u32 s48, s31, s30")
    A(f"s_xor_b32 s30, s25, 1\ns_mul_i32 s30, s30, {4*58*1024}\ns_add_u32 s49, s31, s30")
    A("s_waitcnt lgkmcnt(0)")
    A("s_nop 7")
    h_epilogue_tile(A, HA, 2, 32, 64, 6, 48)
    h_epilogue_tile(A, HB, 4, 32, 72, 6, 49)
    R = 48
    for i in range(0, 16, 2):
        for a in (EC, OC, ES, OS):
            A(f"v_pk_mul_f32 v[{a+i}:{a+i+1}], v[{a+i}:{a+i+1}], v[{R+i}:{R+i+1}]")
    T0, T1 = 80, 96
    for i in range(0, 16, 2):
        A(f"v_pk_add_f32 v[{T0+i}:{T0+i+1}], v[{EC+i}:{EC+i+1}], v[{OC+i}:{OC+i+1}]")
        A(f"v_pk_add_f32 v[{EC+i}:{EC+i+1}], v[{EC+i}:{EC+i+1}], v[{OC+i}:{OC+i+1}] neg_lo:[0,1] neg_hi:[0,1]")
        A(f"v_pk_add_f32 v[{T1+i}:{T1+i+1}], v[{ES+i}:{ES+i+1}], v[{OS+i}:{OS+i+1}]")
        A(f"v_pk_add_f32 v[{OC+i}:{OC+i+1}], v[{OS+i}:{OS+i+1}], v[{ES+i}:{ES+i+1}] neg_lo:[0,1] neg_hi:[0,1]")
    A(f"s_cmp_eq_u32 s{S_C}, 0\ns_cbranch_scc0 K1_mx_nofix")
    for i in range(16):
        A(f"v_cndmask_b32 v{T0+i}, v{T0+i}, v{ES+i}, s[32:33]")
        A(f"v_cndmask_b32 v{T1+i}, v{T1+i}, v{OS+i}, s[32:33]")
        A(f"v_cndmask_b32 v{OC+i}, v{OC+i}, 0, s[32:33]") if False else A(f"v_cndmask_b32_e64 v{OC+i}, v{OC+i}, 0, s[32:33]")
    A("K1_mx_nofix:")
    ZB = 32
    srcs = [T0, T1, EC, OC]
    for k, a in enumerate(srcs):
        for i in range(0, 16, 2):
            A(f"v_cvt_pk_bf16_f32 v{ZB+8*k+i//2}, v{a+i}, v{a+i+1}")
    A("s_waitcnt vmcnt(4)")
    for i in range(8):
        A(f"v_xor_b32 v{G+16+i}, 0x80008000, v{G+8+i}")
    Fr = lambda p: f"v[{G+4*p}:{G+4*p+3}]"
    Fi = lambda p: f"v[{G+8+4*p}:{G+8+4*p+3}]"
    nFi = lambda p: f"v[{G+16+4*p}:{G+16+4*p+3}]"
    Z = lambda k, p: f"v[{ZB+8*k+4*p}:{ZB+8*k+4*p+3}]"
    TR = [160, 192]; TI = [176, 208]
    A("s_nop 1")
    for st_ in range(2):
        zr, zi = 2 * st_, 2 * st_ + 1
        tr, ti = TR[st_], TI[st_]
        A(f"{MFMA32} v[{tr}:{tr+15}], {Fr(0)}, {Z(zr,0)}, 0")
        A(f"{MFMA32} v[{ti}:{ti+15}], {Fr(0)}, {Z(zi,0)}, 0")
        A(f"{MFMA32} v[{tr}:{tr+15}], {Fr(1)}, {Z(zr,1)}, v[{tr}:{tr+15}]")
        A(f"{MFMA32} v[{ti}:{ti+15}], {Fr(1)}, {Z(zi,1)}, v[{ti}:{ti+15}]")
        A(f"{MFMA32} v[{tr}:{tr+15}], {nFi(0)}, {Z(zi,0)}, v[{tr}:{tr+15}]")
        A(f"{MFMA32} v[{ti}:{ti+15}], {Fi(0)}, {Z(zr,0)}, v[{ti}:{ti+15}]")
        A(f"{MFMA32} v[{tr}:{tr+15}], {nFi(1)}, {Z(zi,1)}, v[{tr}:{tr+15}]")
        A(f"{MFMA32} v[{ti}:{ti+15}], {Fi(1)}, {Z(zr,1)}, v[{ti}:{ti+15}]")
    A("v_and_b32 v24, 31, v1\nv_lshlrev_b32 v24, 2, v24\nv_lshrrev_b32 v25, 5, v1\nv_lshlrev_b32 v25, 9, v25\nv_add_u32 v24, v24, v25")
    A("s_lshl_b32 s30, s3, 13\nv_add_u32 v24, s30, v24")
    A("s_nop 7\ns_nop 3")
    for st_ in range(2):
        for i in range(16):
            A(f"v_cvt_pk_bf16_f32 v{64+16*st_+i}, v{TR[st_]+i}, v{TI[st_]+i}")
    for st_ in range(2):
        for i in range(16):
            t0 = (i & 3) + 8 * (i >> 2)
            A(f"ds_write_b32 v24, v{64+16*st_+i} offset:{st_*4096+t0*128}")
    A("s_waitcnt lgkmcnt(0)\ns_barrier")
    A("v_and_b32 v24, 31, v1\nv_lshlrev_b32 v24, 2, v24\nv_lshrrev_b32 v25, 5, v1\nv_lshlrev_b32 v26, 7, v25\nv_add_u32 v24, v24, v26")
    A("s_lshl_b32 s30, s3, 10\nv_add_u32 v24, s30, v24")
    for st_ in range(2):
        for n in range(4):
            b = 64 + 16 * st_ + 4 * n
            for w in range(4):
                A(f"ds_read_b32 v{b+w}, v24 offset:{w*8192+st_*4096+n*256}")
    A(f"v_and_b32 v26, 31, v1\ns_lshl_b32 s30, s{S_C}, 5\nv_add_u32 v27, s30, v26")
    A("v_mov_b32 v28, 160\nv_cndmask_b32 v29, v27, v28, s[32:33]")
    A("v_sub_u32 v27, 320, v27")
    A(f"s_mov_b32 s30, {TF_T0}\nv_mul_lo_u32 v25, s30, v25")
    A("v_lshlrev_b32 v29, 4, v29\nv_add_u32 v29, v29, v25")
    A("v_lshlrev_b32 v27, 4, v27\nv_add_u32 v27, v27, v25")
    A(f"s_mul_i32 s30, s3, {8*TF_T0}\ns_mul_i32 s31, s{S_B}, {TF_ROW}\ns_add_u32 s30, s30, s31\ns_add_u32 s30, s30, {TF_OFF}")
    A("s_waitcnt lgkmcnt(0)")
    for st_ in range(2):
        for n in range(4):
            b = 64 + 16 * st_ + 4 * n
            A(f"s_add_u32 s31, s30, {2*n*TF_T0}")
            A(f"buffer_store_dwordx4 v[{b}:{b+3}], v{29 if st_ == 0 else 27}, s[36:39], s31 offen")
    A(f"s_cmp_eq_u32 s{S_C}, 0\ns_cbranch_scc0 K1_end")
    A("s_cmp_eq_u32 s3, 0\ns_cbranch_scc0 K1_end")
    A(f"s_mov_b32 s30, {TF_T0}\nv_and_b32 v24, 31, v1\nv_mul_lo_u32 v24, s30, v24")
    A("v_mov_b32 v4, 0\nv_mov_b32 v5, 0\nv_mov_b32 v6, 0\nv_mov_b32 v7, 0")
    A(f"s_mul_i32 s31, s{S_B}, {TF_ROW}\ns_add_u32 s31, s31, {TF_OFF}")
    A("buffer_store_dwordx4 v[4:7], v24, s[36:39], s31 offen")

def gen_k1(A, name):
    kernel_head(A, name)
    k1_common(A)
    A("s_cmp_ge_u32 s3, 4\ns_cbranch_scc1 K1_loader")
    A(f"s_cmp_lt_u32 s{S_C}, 5\ns_cbranch_scc0 K1_hh")
    k1_mx(A)
    A("K1_end:\ns_endpgm")
    k1_hh(A)
    k1_loader(A)
```

```python
from asmlib import *
from layout import *

SLOT = 20480
NS2 = 7
K2_LDS = NS2 * SLOT
MFMA16 = "v_mfma_f32_16x16x32_bf16"
S_T0, S_CT = 18, 19

def k2_common(A):
    A("s_cmp_ge_u32 s2, 256\ns_cbranch_scc1 K2_end")
    A(f"s_load_dwordx2 s[4:5], s[0:1], {KA_X}")
    A(f"s_load_dwordx2 s[6:7], s[0:1], {KA_OUT}")
    A(f"s_load_dwordx2 s[8:9], s[0:1], {KA_WS}")
    A("v_lshrrev_b32 v2, 6, v0\nv_and_b32 v1, 63, v0\ns_nop 0\nv_readfirstlane_b32 s3, v2")
    A("s_and_b32 s24, s2, 7\ns_lshr_b32 s25, s2, 3")
    A(f"s_lshl_b32 s24, s24, 2\ns_lshr_b32 s26, s25, 3\ns_add_u32 s{S_T0}, s24, s26")
    A(f"s_and_b32 s{S_CT}, s25, 7")
    A("s_waitcnt lgkmcnt(0)")

def k2_loader(A):
    A("K2_loader:")
    A("s_sub_u32 s21, s3, 4")
    srd(A, 24, 8, WS_USED)
    A("v_lshlrev_b32 v2, 4, v1\nv_add_u32 v3, 4096, v2")
    A(f"s_mul_i32 s40, s{S_CT}, 54\ns_add_u32 s40, s40, s21\ns_mul_i32 s40, s40, 5120\ns_add_u32 s40, s40, {W2F_OFF}")
    A(f"v_lshrrev_b32 v4, 4, v1\nv_mul_u32_u24 v4, {TF_ROW}, v4\nv_and_b32 v5, 15, v1")
    A(f"s_mul_i32 s41, s{S_CT}, 80")
    A("v_add_u32 v6, s41, v5")
    A("v_sub_u32 v7, 576, v6")
    A(f"s_cmp_lt_u32 s{S_CT}, 4\ns_cselect_b64 s[42:43], -1, 0")
    A("v_cndmask_b32 v6, v7, v6, s[42:43]")
    A("v_lshlrev_b32 v6, 4, v6\nv_add_u32 v4, v4, v6")
    A(f"s_sub_u32 s44, 32, s{S_T0}\ns_and_b32 s44, s44, 31")
    A(f"s_cmp_lt_u32 s{S_CT}, 4\ns_cselect_b32 s44, s{S_T0}, s44")
    A(f"s_mul_i32 s44, s44, {TF_T0}\ns_add_u32 s44, s44, {TF_OFF}")
    A(f"s_mov_b32 s45, 256\ns_mov_b32 s46, -256\ns_cmp_lt_u32 s{S_CT}, 4\ns_cselect_b32 s45, s45, s46\ns_cselect_b32 s46, 0, 1024")
    A("s_add_u32 s44, s44, s46")
    A("s_mul_i32 s48, s21, 5120")
    def w2_step(slot):
        A(f"s_mov_b32 m0, s{slot}\ns_nop 0")
        for n in range(4):
            A(f"buffer_load_dwordx4 v2, s[24:27], s40 offen offset:{1024*n} lds")
        A(f"s_add_u32 m0, s{slot}, 4096\ns_nop 0")
        A("buffer_load_dwordx4 v3, s[24:27], s40 offen lds")
        A(f"s_add_u32 s40, s40, {4*5120}")
    def t_step(slot, kp_sgpr):
        A(f"s_mul_i32 s47, s{kp_sgpr}, {4*TF_ROW}\ns_add_u32 s47, s47, s44")
        for n in range(5):
            A(f"s_add_u32 m0, s{slot}, {1024*n}\ns_nop 0")
            A("buffer_load_dwordx4 v4, s[24:27], s47 offen lds")
            if n < 4: A("s_add_u32 s47, s47, s45")
    def adv(slot):
        A(f"s_add_u32 s{slot}, s{slot}, {SLOT}\ns_cmp_ge_u32 s{slot}, {NS2*SLOT}\ns_cselect_b32 s52, {NS2*SLOT}, 0\ns_sub_u32 s{slot}, s{slot}, s52")
    A("s_mov_b32 s49, s48")
    for k in range(NS2):
        w2_step(49); adv(49)
    A(f"s_waitcnt vmcnt({5*(NS2-1)})\ns_barrier")
    A(f"s_waitcnt vmcnt({5*(NS2-2)})\ns_barrier")
    assert NS2 == 7
    A("s_mov_b32 s51, 6")
    A("K2_ld_loop:")
    w2_step(49); adv(49)
    A(f"s_waitcnt vmcnt({5*(NS2-2)})\ns_barrier")
    A("s_sub_u32 s51, s51, 1\ns_cmp_lg_u32 s51, 0\ns_cbranch_scc1 K2_ld_loop")
    A("s_cmp_lt_u32 s21, 2\ns_cbranch_scc0 K2_ld_t13")
    w2_step(49)
    A("s_branch K2_ld_13d")
    A("K2_ld_t13:")
    A("s_sub_u32 s50, s21, 2")
    t_step(49, 50)
    A("K2_ld_13d:")
    adv(49)
    A(f"s_waitcnt vmcnt({5*(NS2-2)})\ns_barrier")
    A("s_cmp_lt_u32 s21, 2\ns_cbranch_scc0 K2_ld_no14")
    A("s_add_u32 s50, s21, 2")
    t_step(49, 50)
    A(f"s_waitcnt vmcnt({5*5})\ns_barrier")
    for k in range(10, 15):
        A(f"s_waitcnt vmcnt({5*(14-k)})\ns_barrier")
    A("s_endpgm")
    A("K2_ld_no14:")
    A(f"s_waitcnt vmcnt({5*4})\ns_barrier")
    for k in range(10, 14):
        A(f"s_waitcnt vmcnt({5*(13-k)})\ns_barrier")
    A("s_barrier")
    A("s_endpgm")

PF = 8
def k2_compute(A):
    ACC = 16
    HB = 40
    WB = 72
    XR = 112
    mt = 3
    srd(A, 24, 8, HF_TILE, None)
    A(f"s_lshl_b32 s30, s{S_T0}, 2\ns_add_u32 s30, s30, s3\ns_mul_i32 s30, s30, {HF_TILE}")
    if HF_OFF: A(f"s_add_u32 s30, s30, {HF_OFF}")
    A("s_add_u32 s24, s24, s30\ns_addc_u32 s25, s25, 0")
    srd(A, 28, 4, X_BYTES)
    srd(A, 32, 6, X_BYTES)
    A("v_lshlrev_b32 v2, 4, v1")
    A("s_mov_b32 s36, 0")
    for k in range(PF):
        A(f"buffer_load_dwordx4 v[{HB+4*k}:{HB+4*k+3}], v2, s[24:27], s36 offen")
        A("s_add_u32 s36, s36, 1024")
    A("v_and_b32 v4, 15, v1\ns_mov_b32 s37, 81920\nv_mul_lo_u32 v4, s37, v4")
    A("v_lshrrev_b32 v5, 4, v1\nv_lshlrev_b32 v5, 3, v5\nv_add_u32 v4, v4, v5")
    A(f"s_lshr_b32 s38, s3, 1\ns_lshl_b32 s38, s38, 5\ns_add_u32 s38, s38, s{S_T0}")
    A("s_and_b32 s39, s3, 1\ns_lshl_b32 s39, s39, 10\ns_add_u32 s38, s38, s39\ns_mul_i32 s38, s38, 1280")
    A(f"s_mul_i32 s39, s{S_CT}, 160\ns_add_u32 s38, s38, s39")
    for i in range(20): A(f"v_mov_b32 v{ACC+i}, 0")
    A(f"s_cmp_lt_u32 s{S_CT}, 4\ns_cselect_b32 s40, 0x80000000, 0")
    A("s_mov_b32 s41, 0")
    A("s_mov_b32 s43, 0")
    A("v_mov_b32 v3, v2")
    def wreads(buf, step):
        return [f"ds_read_b128 v[{buf+4*n}:{buf+4*n+3}], v3 offset:{(step*5+n)*1024}" for n in range(5)]
    def mf(buf, h):
        return [f"{MFMA16} v[{ACC+4*n}:{ACC+4*n+3}], v[{buf+4*n}:{buf+4*n+3}], v[{h}:{h+3}], v[{ACC+4*n}:{ACC+4*n+3}]" for n in range(5)]
    def advance():
        A(f"s_add_u32 s41, s41, {SLOT}\ns_cmp_ge_u32 s41, {NS2*SLOT}\ns_cselect_b32 s42, {NS2*SLOT}, 0\ns_sub_u32 s41, s41, s42")
        A("v_add_u32 v3, s41, v2")
    W0, W1 = WB, WB + 20
    def step_code(pos, cur, nxt, next_reads, xor, prefetch, vm):
        h = HB + 4 * pos
        A(f"s_waitcnt vmcnt({vm})")
        if xor:
            for k in range(4): A(f"v_xor_b32 v{h+k}, s43, v{h+k}")
            A("s_nop 0")
        for r in next_reads: A(r)
        A(f"s_waitcnt lgkmcnt({len(next_reads)})")
        for m in mf(cur, h): A(m)
        if prefetch:
            A(f"buffer_load_dwordx4 v[{h}:{h+3}], v2, s[24:27], s36 offen")
            A("s_add_u32 s36, s36, 1024")
    def chunk(pos0, xor_last2, last=False):
        step_code(pos0 + 0, W0, W1, wreads(W1, 1), False, True, PF - 1)
        step_code(pos0 + 1, W1, W0, wreads(W0, 2), False, True, PF - 1)
        step_code(pos0 + 2, W0, W1, wreads(W1, 3), xor_last2, True, PF - 1)
        h = HB + 4 * (pos0 + 3)
        A(f"s_waitcnt vmcnt({PF-1}) lgkmcnt(0)")
        if xor_last2:
            for k in range(4): A(f"v_xor_b32 v{h+k}, s43, v{h+k}")
        advance()
        A("s_barrier")
        for r in wreads(W0, 0): A(r)
        for m in mf(W1, h): A(m)
        A(f"buffer_load_dwordx4 v[{h}:{h+3}], v2, s[24:27], s36 offen")
        A("s_add_u32 s36, s36, 1024")
    A("s_barrier")
    for r in wreads(W0, 0): A(r)
    A("s_mov_b32 s44, 7")
    A("K2_c_loop:")
    chunk(0, False)
    A("s_cmp_eq_u32 s44, 1\ns_cselect_b32 s43, s40, 0")
    chunk(4, True)
    A("s_sub_u32 s44, s44, 1\ns_cmp_lg_u32 s44, 0\ns_cbranch_scc1 K2_c_loop")
    for n in range(5):
        A(f"buffer_load_dwordx2 v[{XR+2*n}:{XR+2*n+1}], v4, s[28:31], s38 offen offset:{32*n}")
    A("s_waitcnt vmcnt(5)")
    for pos in range(2):
        for k in range(4): A(f"v_xor_b32 v{HB+4*pos+k}, s40, v{HB+4*pos+k}")
    for r in wreads(W1, 1): A(r)
    A("s_waitcnt lgkmcnt(5)")
    for m in mf(W0, HB): A(m)
    A("s_waitcnt lgkmcnt(0)")
    for m in mf(W1, HB + 4): A(m)
    A("s_waitcnt vmcnt(0)")
    A("s_nop 4")
    for n in range(5):
        a = ACC + 4 * n; x = XR + 2 * n; t = 72 + 4 * n
        A(f"v_lshlrev_b32 v{t}, 16, v{x}\nv_and_b32 v{t+1}, 0xffff0000, v{x}")
        A(f"v_lshlrev_b32 v{t+2}, 16, v{x+1}\nv_and_b32 v{t+3}, 0xffff0000, v{x+1}")
        for k in range(4): A(f"v_add_f32 v{t+k}, v{t+k}, v{a+k}")
        A(f"v_cvt_pk_bf16_f32 v{x}, v{t}, v{t+1}\nv_cvt_pk_bf16_f32 v{x+1}, v{t+2}, v{t+3}")
        A(f"buffer_store_dwordx2 v[{x}:{x+1}], v4, s[32:35], s38 offen offset:{32*n}")

def gen_k2(A, name):
    kernel_head(A, name)
    k2_common(A)
    A("s_cmp_ge_u32 s3, 4\ns_cbranch_scc1 K2_loader")
    k2_compute(A)
    A("K2_end:\ns_endpgm")
    k2_loader(A)
```

```python
S, D, F = 2048, 640, 1728
HF_OFF = 0
HF_TILE = 58 * 1024
HF_SIZE = 32 * 4 * HF_TILE
W2F_OFF = HF_OFF + HF_SIZE
W2F_SIZE = 8 * 54 * 5120
TF_OFF = W2F_OFF + W2F_SIZE
TF_ROW = 328 * 16
TF_T0 = 16 * TF_ROW
TF_SIZE = 32 * TF_T0
ST_OFF = TF_OFF + TF_SIZE
ST_SIZE = 2048 * 8
CS_OFF = ST_OFF + ST_SIZE
CS_SIZE = 2048 * 4
WS_USED = CS_OFF + CS_SIZE
X_BYTES = S * D * 2
W1_BYTES = D * F * 2
W2_BYTES = F * D * 2
SEQ_BYTES = S * S * 2
HID_BYTES = D * D * 2
KA_X, KA_SRE, KA_SIM, KA_HRE, KA_HIM, KA_BX, KA_W1, KA_W2, KA_OUT, KA_DBG, KA_WS = [8 * i for i in range(11)]
```

```python
import sys
from asmlib import *
from layout import *
import k0, k1, k2
HEADER = open("parallel_sum__spectral_fnet__dense_activation_relu__prompt.s.ref").read().split("; Override launch")[0]
def build():
    A = Asm()
    names = ["fnet_prep_kernel", "fnet_g1_kernel", "fnet_g2_kernel"]
    hdr = HEADER
    hdr += f"; @launch kernel={names[0]} grid=(256,1,1) block=(256,1,1) lds=10240\n"
    hdr += f"; @launch kernel={names[1]} grid=(256,1,1) block=(512,1,1) lds={k1.K1_LDS}\n"
    hdr += f"; @launch kernel={names[2]} grid=(256,1,1) block=(512,1,1) lds={k2.K2_LDS}\n"
    A('.amdgcn_target "amdgcn-amd-amdhsa--gfx950"\n.text')
    k0.gen_k0(A, names[0])
    k1.gen_k1(A, names[1])
    k2.gen_k2(A, names[2])
    A('.section .rodata,"a"\n.p2align 6')
    A(kernel_desc(names[0], 128)); A(".p2align 6")
    A(kernel_desc(names[1], 256)); A(".p2align 6")
    A(kernel_desc(names[2], 128))
    return hdr + A.text()
if __name__ == "__main__":
    out = sys.argv[1] if len(sys.argv) > 1 else "parallel_sum__spectral_fnet__dense_activation_relu__prompt.s"
    open(out, "w").write(build())
    print("wrote", out)
```

```python
class Asm:
    def __init__(self):
        self.lines = []
    def __call__(self, s=""):
        for l in s.split("\n"):
            self.lines.append(l if (l.endswith(":") or l.startswith(".") or l.startswith(";")) else "  " + l)
    def c(self, s):
        self.lines.append("  ; " + s)
    def text(self):
        return "\n".join(self.lines) + "\n"

def v(a, n=1):
    return f"v{a}" if n == 1 else f"v[{a}:{a+n-1}]"
def s(a, n=1):
    return f"s{a}" if n == 1 else f"s[{a}:{a+n-1}]"

def srd(A, d, plo, nbytes, off=None):
    if off is None:
        A(f"s_mov_b32 s{d}, s{plo}\ns_mov_b32 s{d+1}, s{plo+1}")
    else:
        A(f"s_add_u32 s{d}, s{plo}, {off}\ns_addc_u32 s{d+1}, s{plo+1}, 0")
    A(f"s_mov_b32 s{d+2}, {nbytes}\ns_mov_b32 s{d+3}, 0x20000")

def kernel_head(A, name):
    A(f".globl {name}\n.p2align 8\n.type {name},@function\n{name}:")

def kernel_desc(name, vgpr, sgpr=102):
    return f""".amdhsa_kernel {name}
  .amdhsa_next_free_vgpr {vgpr}
  .amdhsa_next_free_sgpr {sgpr}
  .amdhsa_accum_offset {vgpr}
  .amdhsa_group_segment_fixed_size 0
  .amdhsa_kernarg_size 88
  .amdhsa_user_sgpr_count 2
  .amdhsa_user_sgpr_kernarg_segment_ptr 1
  .amdhsa_system_sgpr_workgroup_id_x 1
.end_amdhsa_kernel
"""


PROFILE = False
PROF_OFF = 64 << 20
def stamp_init(A):
    if PROFILE: A("s_mov_b32 s97, 0\nv_mov_b32 v0, 0")
def stamp(A, i=None):
    if PROFILE:
        A("s_memrealtime s[98:99]\ns_waitcnt lgkmcnt(0)\ns_mov_b32 m0, s97\nv_writelane_b32 v0, s98, m0\ns_add_u32 s97, s97, 1")
def stamp_flush(A, kid, ws_lo, n=6):
    if not PROFILE: return
    A("s_waitcnt vmcnt(0) lgkmcnt(0)")
    stamp(A)
    A(f"s_add_u32 s92, s{ws_lo}, {PROF_OFF}\ns_addc_u32 s93, s{ws_lo+1}, 0\ns_mov_b32 s94, 0x100000\ns_mov_b32 s95, 0x20000")
    A("s_lshl_b32 s96, s2, 3\ns_add_u32 s96, s96, s3\ns_lshl_b32 s96, s96, 8")
    A("v_lshlrev_b32 v1, 2, v1\nbuffer_store_dword v0, v1, s[92:95], s96 offen")
    A("s_waitcnt vmcnt(0)")

OPT = {}
def opt(name, default=None):
    return OPT.get(name, default)
```

```python
from asmlib import *
import asmlib
from layout import *

MFMA32 = "v_mfma_f32_32x32x16_bf16"
MFMA16 = "v_mfma_f32_16x16x32_bf16"
RING = 32768; NS = 4
SLOT = 20480; NS2 = 6
LX = NS2 * SLOT
LW = 132 * 1024
LST = 152 * 1024
LCS = LST + 1024
LCNT = LST + 2048
LDS_TOTAL = LCNT + 64
X_, SRE, SIM, HRE, HIM, WS = 4, 6, 8, 10, 12, 16
W1, W2, OUT, DBG = 64, 66, 68, 70
S_B, S_C, S_F0, S_J = 18, 19, 20, 21
S_T0, S_CT = 72, 73
S_SPIN = 74
SC = "sc1"
SPIN_MAX = 200000

MAGIC = 0x5A3C96E1
S_E, S_EM = 75, 76
S_XCC = 77
S_LOCAL = 78

def spin(A, name, vp, vaddr, srdp, xcc=False):
    A(f"{name}:")
    if xcc:
        A(f"v_xor_b32 v{vp+1}, s{S_EM}, v{vp+1}\nv_cmp_ne_u32 vcc, s{S_E}, v{vp}\nv_cmp_lt_u32 s[60:61], 15, v{vp+1}\ns_nop 3\ns_or_b64 vcc, vcc, s[60:61]")
    else:
        A(f"v_cmp_ne_u32 vcc, s{S_E}, v{vp}\nv_cmp_ne_u32 s[60:61], s{S_EM}, v{vp+1}\ns_nop 3\ns_or_b64 vcc, vcc, s[60:61]")
    A(f"s_cbranch_vccz {name}_ok")
    A(f"s_sub_u32 s{S_SPIN}, s{S_SPIN}, 1\ns_cmp_eq_u32 s{S_SPIN}, 0\ns_cbranch_scc1 {name}_ok")
    A(f"s_sleep {opt('SLEEP', 4)}")
    A(f"buffer_load_dwordx2 v[{vp}:{vp+1}], v{vaddr}, s[{srdp}:{srdp+3}], 0 offen {SC}\ns_waitcnt vmcnt(0)")
    if opt("SPINSTAMP") == name: stamp(A)
    A(f"s_branch {name}\n{name}_ok:")

def store_flags(A, vaddr, nlanes, srdp, vt, xcc=False, local=None):
    if xcc:
        A(f"s_xor_b32 s62, s{S_EM}, s{S_XCC}\nv_mov_b32 v{vt}, s{S_E}\nv_mov_b32 v{vt+1}, s62\ns_mov_b64 exec, {(1 << nlanes) - 1}")
    else:
        A(f"v_mov_b32 v{vt}, s{S_E}\nv_mov_b32 v{vt+1}, s{S_EM}\ns_mov_b64 exec, {(1 << nlanes) - 1}")
    if local:
        A(f"s_cmp_eq_u32 s{S_LOCAL}, 1\ns_cbranch_scc1 {local}_fp")
    A(f"buffer_store_dwordx2 v[{vt}:{vt+1}], v{vaddr}, s[{srdp}:{srdp+3}], 0 offen {SC}")
    if local:
        A(f"s_branch {local}_fd\n{local}_fp:")
        A(f"buffer_store_dwordx2 v[{vt}:{vt+1}], v{vaddr}, s[{srdp}:{srdp+3}], 0 offen")
        A(f"{local}_fd:")
    A("s_mov_b64 exec, -1")

def flag_addr_h(A, v):
    A(f"s_lshl_b32 s62, s{S_B}, 4\ns_add_u32 s62, s62, s{S_C}\ns_lshl_b32 s62, s62, 3\ns_add_u32 s62, s62, {FH_OFF}\nv_mov_b32 v{v}, s62")
def flag_addr_t(A, v):
    A(f"s_lshl_b32 s62, s{S_C}, 4\ns_add_u32 s62, s62, s{S_B}\ns_lshl_b32 s62, s62, 3\ns_add_u32 s62, s62, {FT_OFF}")
    A(f"v_lshlrev_b32 v{v}, 10, v1\nv_add_u32 v{v}, s62, v{v}")
def flag_addr_early(A, v):
    A(f"s_lshl_b32 s62, s{S_B}, 4\ns_add_u32 s62, s62, s{S_C}\ns_lshl_b32 s62, s62, 3\ns_add_u32 s58, s62, {FR1_OFF}")
    A(f"s_lshl_b32 s62, s{S_C}, 4\ns_add_u32 s62, s62, s{S_B}\ns_lshl_b32 s62, s62, 3\ns_add_u32 s62, s62, {FC1_OFF}")
    A(f"s_cmp_eq_u32 s3, 1\ns_cselect_b32 s58, s62, s58\nv_mov_b32 v{v}, s58")

def epoch_ready(A):
    A("s_waitcnt lgkmcnt(0)")
    A(f"s_add_u32 s{S_E}, s{S_E}, 1\ns_xor_b32 s{S_EM}, s{S_E}, {MAGIC}")
    srd(A, 48, WS, WS_USED)

def lds_arrive(A, word, vt, sdst):
    A(f"v_mov_b32 v{vt}, {LCNT + 4*word}\nv_mov_b32 v{vt+1}, 1\ns_mov_b64 exec, 1")
    A(f"ds_add_rtn_u32 v{vt+1}, v{vt}, v{vt+1}\ns_waitcnt lgkmcnt(0)\ns_mov_b64 exec, -1\ns_nop 0")
    A(f"v_readfirstlane_b32 s{sdst}, v{vt+1}")
    A("s_nop 3")

def entry(A):
    A("s_cmp_ge_u32 s2, 256\ns_cbranch_scc1 L_end")
    A(f"s_load_dwordx4 s[4:7], s[0:1], {KA_X}")
    A(f"s_load_dwordx4 s[8:11], s[0:1], {KA_SIM}")
    A(f"s_load_dwordx2 s[12:13], s[0:1], {KA_HIM}")
    A(f"s_load_dwordx4 s[64:67], s[0:1], {KA_W1}")
    A(f"s_load_dwordx4 s[68:71], s[0:1], {KA_OUT}")
    A(f"s_load_dwordx2 s[16:17], s[0:1], {KA_WS}")
    A("v_lshrrev_b32 v2, 6, v0\nv_and_b32 v1, 63, v0\ns_nop 0\nv_readfirstlane_b32 s3, v2")
    A("s_and_b32 s24, s2, 7\ns_lshr_b32 s25, s2, 3\ns_lshr_b32 s27, s25, 3\ns_and_b32 s28, s25, 7")
    if opt("MAP1", 1):
        A(f"s_lshl_b32 s26, s24, 1\ns_lshr_b32 s29, s25, 4\ns_add_u32 s{S_B}, s26, s29\ns_and_b32 s{S_C}, s25, 15")
    else:
        A(f"s_lshr_b32 s26, s24, 1\ns_lshl_b32 s26, s26, 2\ns_add_u32 s{S_B}, s26, s27")
        A(f"s_and_b32 s26, s24, 1\ns_lshl_b32 s26, s26, 3\ns_add_u32 s{S_C}, s26, s28")
    A(f"s_lshl_b32 s26, s{S_C}, 6\ns_lshl_b32 s29, s{S_C}, 7\ns_sub_u32 s29, s29, 320")
    A(f"s_cmp_lt_u32 s{S_C}, 5\ns_cselect_b32 s{S_F0}, s26, s29")
    A(f"s_lshl_b32 s24, s24, 2\ns_add_u32 s{S_T0}, s24, s27\ns_mov_b32 s{S_CT}, s28")
    A(f"s_mov_b32 s{S_SPIN}, {SPIN_MAX}")
    A(f"s_getreg_b32 s{S_XCC}, hwreg(HW_REG_XCC_ID)\ns_and_b32 s{S_XCC}, s{S_XCC}, 15")
    A("s_waitcnt lgkmcnt(0)")
    stamp_init(A)
    A(f"s_mov_b32 s62, {EP_OFF}\ns_load_dword s{S_E}, s[{WS}:{WS+1}], s62")
    stamp(A, 0)

def jobs_issue(A):
    srd(A, 24, X_, X_BYTES); srd(A, 28, W1, W1_BYTES); srd(A, 36, WS, WS_USED)
    A("s_cmp_eq_u32 s3, 0\ns_cbranch_scc1 J_x_i\ns_cmp_eq_u32 s3, 1\ns_cbranch_scc1 J_c_i\ns_branch J_i_done")
    A("J_x_i:")
    A(f"s_lshr_b32 s48, s{S_C}, 2\ns_and_b32 s49, s{S_C}, 3")
    A(f"s_lshl_b32 s50, s{S_B}, 1\ns_and_b32 s51, s48, 1\ns_add_u32 s50, s50, s51")
    A("s_lshr_b32 s51, s48, 1\ns_lshl_b32 s51, s51, 5\ns_add_u32 s50, s50, s51")
    A("s_lshl_b32 s51, s49, 9\ns_add_u32 s50, s50, s51\ns_mul_i32 s50, s50, 1280")
    A("v_lshrrev_b32 v22, 3, v1\ns_mov_b32 s51, 81920\nv_mul_lo_u32 v22, s51, v22")
    A("v_and_b32 v23, 7, v1\nv_lshlrev_b32 v23, 4, v23\nv_add_u32 v22, v22, v23")
    for i in range(10):
        A(f"buffer_load_dwordx4 v[{32+4*i}:{35+4*i}], v22, s[24:27], s50 offen offset:{128*i}")
    A(f"v_mov_b32 v22, {LCNT}\nv_mov_b32 v24, 0\nv_mov_b32 v25, 0\nv_mov_b32 v26, 0\nv_mov_b32 v27, 0\nds_write_b128 v22, v[24:27]\nds_write_b128 v22, v[24:27] offset:16")
    A("s_branch J_i_done")
    A("J_c_i:")
    A("v_lshrrev_b32 v22, 4, v1\nv_mul_u32_u24 v22, 3456, v22\nv_and_b32 v23, 15, v1\nv_lshlrev_b32 v23, 4, v23\nv_add_u32 v22, v22, v23")
    A(f"s_mul_i32 s50, s{S_B}, {40*3456}\ns_lshl_b32 s51, s{S_F0}, 1\ns_add_u32 s50, s50, s51")
    for i in range(10):
        A(f"buffer_load_dwordx4 v[{32+4*i}:{35+4*i}], v22, s[28:31], s50 offen")
        if i < 9: A(f"s_add_u32 s50, s50, {4*3456}")
    A(f"s_cmp_eq_u32 s{S_C}, 0\ns_cbranch_scc0 J_i_done")
    A("v_and_b32 v23, 7, v1\nv_lshlrev_b32 v23, 4, v23\nv_bfe_u32 v24, v1, 3, 2\nv_lshlrev_b32 v24, 15, v24\nv_add_u32 v23, v23, v24")
    A(f"v_add_u32 v23, {16384+8192+4096}, v23")
    A("v_mov_b32 v24, 0xbf803f80\nv_mov_b32 v25, 0x3f80bf80\nv_mov_b32 v26, 0xbf803f80\nv_mov_b32 v27, 0x3f80bf80")
    A("ds_write_b128 v23, v[24:27]")
    A("s_branch J_i_done")
    A("J_i_done:")

def dpp_add(A, r, ctrl):
    A(f"v_add_f32_dpp v{r}, v{r}, v{r} {ctrl} row_mask:0xf bank_mask:0xf")

def jobs_finish(A, nG_, tagx):
    nG = tagx
    class _N(str):
        pass
    A("s_cmp_eq_u32 s3, 0\ns_cbranch_scc1 %s\ns_cmp_eq_u32 s3, 1\ns_cbranch_scc1 %s\ns_branch %s" % (f"J_x_{nG}", f"J_c_{nG}", f"J_done_{nG}"))
    A(f"J_x_{nG}:")
    A("v_mov_b32 v22, 0\nv_mov_b32 v23, 0\nv_mov_b32 v24, 0\nv_mov_b32 v25, 0\ns_mov_b32 s52, 0x3f803f80")
    for i in range(10):
        A(f"s_waitcnt vmcnt({9-i+nG_})")
        for k in range(4):
            r = 32 + 4 * i + k
            A(f"v_dot2_f32_bf16 v{22+(k&1)}, v{r}, s52, v{22+(k&1)}")
            A(f"v_dot2_f32_bf16 v{24+(k&1)}, v{r}, v{r}, v{24+(k&1)}")
    A("s_nop 2\nv_add_f32 v22, v22, v23\nv_add_f32 v24, v24, v25\ns_nop 1")
    for ctrl in ["quad_perm:[1,0,3,2]", "quad_perm:[2,3,0,1]", "row_half_mirror"]:
        dpp_add(A, 22, ctrl); dpp_add(A, 24, ctrl); A("s_nop 0")
    A("s_mov_b32 s52, 0x3acccccd\nv_mul_f32 v22, s52, v22\nv_mul_f32 v24, s52, v24")
    A("v_fma_f32 v24, -v22, v22, v24\nv_max_f32 v24, 0, v24\nv_add_f32 v24, 0x3727c5ac, v24\nv_rsq_f32 v23, v24")
    A(f"s_lshl_b32 s52, s{S_B}, 10\ns_lshl_b32 s53, s{S_C}, 5\ns_add_u32 s52, s52, s53\ns_add_u32 s52, s52, {ST_OFF}")
    A("v_lshrrev_b32 v25, 3, v1\nv_lshlrev_b32 v25, 2, v25")
    A("v_and_b32 v26, 7, v1\nv_cmp_eq_u32 vcc, 0, v26\ns_and_saveexec_b64 s[54:55], vcc")
    A(f"buffer_store_dword v22, v25, s[36:39], s52 offen {SC}\nbuffer_store_dword v23, v25, s[36:39], s52 offen offset:512 {SC}")
    A("s_mov_b64 exec, s[54:55]")
    A(f"s_branch J_done_{nG}")
    A(f"J_c_{nG}:")
    for k in range(8): A(f"v_mov_b32 v{72+k}, 0")
    A("s_mov_b32 s52, 0x00003f80\ns_mov_b32 s53, 0x3f800000")
    for i in range(10):
        A(f"s_waitcnt vmcnt({9-i+nG_})")
        for k in range(4):
            r = 32 + 4 * i + k
            A(f"v_dot2_f32_bf16 v{72+2*k}, v{r}, s52, v{72+2*k}")
            A(f"v_dot2_f32_bf16 v{73+2*k}, v{r}, s53, v{73+2*k}")
    A("s_nop 2")
    for sw in ["v_permlane16_swap_b32", "v_permlane32_swap_b32"]:
        for k in range(8): A(f"v_mov_b32 v{80+k}, v{72+k}")
        A("s_nop 0")
        for k in range(8): A(f"{sw} v{72+k}, v{80+k}")
        A("s_nop 0")
        for k in range(8): A(f"v_add_f32 v{72+k}, v{72+k}, v{80+k}")
    A(f"s_lshl_b32 s52, s{S_B}, 13\ns_lshl_b32 s53, s{S_F0}, 2\ns_add_u32 s52, s52, s53\ns_add_u32 s52, s52, {CS_OFF}")
    A(f"v_lshlrev_b32 v22, 5, v1\ns_mov_b32 s53, 16\ns_cmp_lt_u32 s{S_C}, 5\ns_cselect_b32 s53, 8, s53")
    A("v_cmp_gt_u32 vcc, s53, v1\ns_and_saveexec_b64 s[54:55], vcc")
    A(f"buffer_store_dwordx4 v[72:75], v22, s[36:39], s52 offen {SC}\nbuffer_store_dwordx4 v[76:79], v22, s[36:39], s52 offen offset:16 {SC}")
    A("s_mov_b64 exec, s[54:55]")
    A(f"s_branch J_done_{nG}")
    A(f"J_done_{nG}:")

def x_addr(A, dst, rowbase_sgpr, tmp):
    A(f"v_and_b32 v{tmp}, 31, v1\nv_add_u32 v{tmp+1}, s{rowbase_sgpr}, v{tmp}\nv_lshlrev_b32 v{tmp+1}, 7, v{tmp+1}")
    A(f"v_bfe_u32 v{tmp}, v1, 1, 3\nv_lshrrev_b32 v{tmp+2}, 5, v1\nv_xor_b32 v{tmp}, v{tmp}, v{tmp+2}")
    A(f"v_lshlrev_b32 v{tmp}, 4, v{tmp}\nv_add_u32 v{dst}, v{tmp+1}, v{tmp}")
    for j in range(1, 4):
        A(f"v_xor_b32 v{dst+j}, {32*j}, v{dst}")
def h_tr_addr(A, dst, tmp):
    A(f"v_bfe_u32 v{tmp}, v1, 5, 1\nv_lshlrev_b32 v{tmp}, 3, v{tmp}\nv_bfe_u32 v{tmp+1}, v1, 2, 2\nv_add_u32 v{tmp}, v{tmp}, v{tmp+1}")
    A(f"v_lshlrev_b32 v{tmp}, 7, v{tmp}")
    A(f"v_bfe_u32 v{tmp+1}, v1, 4, 1\nv_lshlrev_b32 v{tmp+1}, 1, v{tmp+1}\nv_bfe_u32 v{tmp+2}, v1, 1, 1\nv_add_u32 v{tmp+1}, v{tmp+1}, v{tmp+2}")
    A(f"v_bfe_u32 v{tmp+2}, v1, 3, 1\nv_lshlrev_b32 v{tmp+2}, 2, v{tmp+2}\nv_xor_b32 v{tmp+1}, v{tmp+1}, v{tmp+2}")
    A(f"v_lshlrev_b32 v{tmp+1}, 4, v{tmp+1}\nv_add_u32 v{tmp}, v{tmp}, v{tmp+1}")
    A(f"v_and_b32 v{tmp+1}, 1, v1\nv_lshlrev_b32 v{tmp+1}, 3, v{tmp+1}\nv_add_u32 v{dst}, v{tmp}, v{tmp+1}")
def interleave(A, mfmas, fillers, per_gap):
    if opt("NOCOMP1"):
        for f in fillers:
            if not f.startswith("ds_read") and not f.startswith("v_perm"): A(f)
        return
    k = 0
    for i, m in enumerate(mfmas):
        A(m)
        for _ in range(per_gap[i]):
            if k < len(fillers):
                A(fillers[k]); k += 1
    while k < len(fillers):
        A(fillers[k]); k += 1
def h_epilogue_tile(A, acc, mr, cs, tmp, vaddr, soff):
    for i in range(0, 16, 2):
        A(f"v_pk_fma_f32 v[{acc+i}:{acc+i+1}], v[{cs+i}:{cs+i+1}], v[{mr}:{mr+1}], v[{acc+i}:{acc+i+1}] op_sel:[0,0,0] op_sel_hi:[1,0,1] neg_lo:[0,1,0] neg_hi:[0,1,0]")
    for i in range(0, 16, 2):
        A(f"v_pk_mul_f32 v[{acc+i}:{acc+i+1}], v[{acc+i}:{acc+i+1}], v[{mr}:{mr+1}] op_sel:[0,1] op_sel_hi:[1,1]")
    for i in range(0, 16, 2):
        A(f"v_cvt_pk_bf16_f32 v{tmp+i//2}, v{acc+i}, v{acc+i+1}")
    for i in range(8):
        A(f"v_pk_max_i16 v{tmp+i}, v{tmp+i}, 0")
    h_epilogue_tile.n += 1
    n = h_epilogue_tile.n
    A(f"s_cmp_eq_u32 s{S_LOCAL}, 1\ns_cbranch_scc1 L_hst{n}_p")
    A(f"buffer_store_dwordx4 v[{tmp}:{tmp+3}], v{vaddr}, s[36:39], s{soff} offen {SC}")
    A(f"buffer_store_dwordx4 v[{tmp+4}:{tmp+7}], v{vaddr}, s[36:39], s{soff} offen offset:512 {SC}")
    A(f"s_branch L_hst{n}_d\nL_hst{n}_p:")
    A(f"buffer_store_dwordx4 v[{tmp}:{tmp+3}], v{vaddr}, s[36:39], s{soff} offen")
    A(f"buffer_store_dwordx4 v[{tmp+4}:{tmp+7}], v{vaddr}, s[36:39], s{soff} offen offset:512")
    A(f"L_hst{n}_d:")
h_epilogue_tile.n = 0
def h_store_voff(A, dst, tmp):
    A(f"v_bfe_u32 v{tmp}, v1, 4, 1\nv_mul_u32_u24 v{tmp}, {58*1024}, v{tmp}")
    A(f"v_lshrrev_b32 v{tmp+1}, 5, v1\nv_lshlrev_b32 v{tmp+1}, 8, v{tmp+1}\nv_add_u32 v{tmp}, v{tmp}, v{tmp+1}")
    A(f"v_and_b32 v{tmp+1}, 15, v1\nv_lshlrev_b32 v{tmp+1}, 4, v{tmp+1}\nv_add_u32 v{dst}, v{tmp}, v{tmp+1}")

def loop_hooks_top(A, tag):
    A(f"s_cmp_eq_u32 s29, s30\ns_cbranch_scc1 {tag}_flag1\n{tag}_flag1_ret:")
def loop_hooks_init(A):
    A(f"s_cmp_lt_u32 s3, 2\ns_cselect_b32 s30, {10 - opt('EARLY_IT', 1)}, 99")
def loop_hooks_ool(A, tag):
    A(f"{tag}_flag1:")
    flag_addr_early(A, 28)
    A("s_waitcnt vmcnt(0)")
    store_flags(A, 28, 1, 48, 30, xcc=True)
    A(f"s_branch {tag}_flag1_ret")

def publish(A, tag, word, kind, vt):
    A("s_waitcnt vmcnt(0)")
    lds_arrive(A, word, vt, 63)
    A(f"s_cmp_eq_u32 s63, 3\ns_cbranch_scc0 {tag}_np")
    if kind == "h":
        flag_addr_h(A, vt - 1); store_flags(A, vt - 1, 1, 48, vt, xcc=True, local=(tag if opt("LOCALF", 1) else None))
    else:
        flag_addr_t(A, vt - 1); store_flags(A, vt - 1, 8, 48, vt)
    A(f"{tag}_np:")

def p1_hh(A):
    A("L_hh:")
    ACC = 128; P, Q = 32, 64
    XB, WB = 2, 6; XC, WC = 8, 12
    A("s_lshr_b32 s24, s3, 1\ns_and_b32 s25, s3, 1")
    A("s_lshl_b32 s26, s24, 6")
    x_addr(A, XB, 26, 20)
    h_tr_addr(A, WB, 20)
    A("s_lshl_b32 s27, s25, 13\ns_add_u32 s27, s27, 16384")
    A(f"v_add_u32 v{WB}, s27, v{WB}\nv_xor_b32 v{WB+1}, 64, v{WB}")
    for i in range(64): A(f"v_mov_b32 v{ACC+i}, 0")
    for j in range(4): A(f"v_mov_b32 v{XC+j}, v{XB+j}")
    for j in range(2): A(f"v_mov_b32 v{WC+j}, v{WB+j}")
    jobs_finish(A, 0, 'h')
    epoch_ready(A)
    A("s_mov_b32 s28, 0")
    loop_hooks_init(A)
    def reads(buf, g):
        out = []
        for jj in range(2):
            j = 2 * g + jj; b = buf + 16 * jj
            out.append(f"ds_read_b128 v[{b}:{b+3}], v{XC+j}")
            out.append(f"ds_read_b64_tr_b16 v[{b+8}:{b+9}], v{WC} offset:{j*2048}")
            out.append(f"ds_read_b64_tr_b16 v[{b+10}:{b+11}], v{WC} offset:{j*2048+512}")
            out.append(f"ds_read_b128 v[{b+4}:{b+7}], v{XC+j} offset:4096")
            out.append(f"ds_read_b64_tr_b16 v[{b+12}:{b+13}], v{WC+1} offset:{j*2048}")
            out.append(f"ds_read_b64_tr_b16 v[{b+14}:{b+15}], v{WC+1} offset:{j*2048+512}")
        return out
    def mfmas(buf):
        out = []
        for jj in range(2):
            b = buf + 16 * jj
            for ft in range(2):
                for st in range(2):
                    a = ACC + 16 * (2 * ft + st)
                    out.append(f"{MFMA32} v[{a}:{a+15}], v[{b+8+4*ft}:{b+11+4*ft}], v[{b+4*st}:{b+3+4*st}], v[{a}:{a+15}]")
        return out
    stamp(A, 1)
    A("s_waitcnt lgkmcnt(0)\ns_barrier")
    stamp(A, 2)
    for r in reads(P, 0):
        if not opt("NOCOMP1"): A(r)
    A("s_mov_b32 s29, 10")
    A("L_hh_loop:")
    loop_hooks_top(A, "L_hh")
    A("s_waitcnt lgkmcnt(0)")
    upd = [f"v_add_u32 v{XC+j}, s28, v{XB+j}" for j in range(4)] + [f"v_add_u32 v{WC+j}, s28, v{WB+j}" for j in range(2)]
    ring = [f"s_add_u32 s28, s28, {RING}", f"s_and_b32 s28, s28, {NS*RING-1}"]
    interleave(A, mfmas(P), reads(Q, 1) + ring + upd, [3, 3, 3, 3, 2, 3, 3, 0])
    A("s_waitcnt lgkmcnt(0)")
    A("s_barrier")
    interleave(A, mfmas(Q), reads(P, 0), [3, 3, 3, 3, 0, 0, 0, 0])
    A("s_sub_u32 s29, s29, 1\ns_cmp_lg_u32 s29, 0\ns_cbranch_scc1 L_hh_loop")
    A("s_waitcnt lgkmcnt(0)")
    stamp(A, 3)
    A(f"v_and_b32 v20, 31, v1\nv_add_u32 v20, s26, v20\nv_lshlrev_b32 v20, 2, v20\nv_add_u32 v20, {LST}, v20")
    A("ds_read_b32 v22, v20\nds_read_b32 v23, v20 offset:512\nds_read_b32 v24, v20 offset:128\nds_read_b32 v25, v20 offset:640")
    A(f"v_mov_b32 v27, {LCNT + 12}\nds_read_b32 v27, v27")
    A(f"v_lshrrev_b32 v21, 5, v1\nv_lshlrev_b32 v21, 4, v21\ns_lshl_b32 s30, s25, 8\ns_add_u32 s30, s30, {LCS}\nv_add_u32 v21, s30, v21")
    for ft in range(2):
        for q in range(4):
            b = 32 + 16 * ft + 4 * q
            A(f"ds_read_b128 v[{b}:{b+3}], v21 offset:{ft*128+q*32}")
    h_store_voff(A, 26, 28)
    A(f"s_lshl_b32 s31, s{S_B}, 3\ns_lshl_b32 s32, s24, 1\ns_add_u32 s31, s31, s32\ns_mul_i32 s31, s31, 58")
    A(f"s_lshr_b32 s32, s{S_F0}, 5\ns_lshl_b32 s33, s25, 1\ns_add_u32 s32, s32, s33\ns_add_u32 s31, s31, s32")
    A(f"s_lshl_b32 s31, s31, 10\ns_add_u32 s31, s31, {HF_OFF}")
    A("s_waitcnt lgkmcnt(0)")
    A(f"v_readfirstlane_b32 s{S_LOCAL}, v27")
    A("s_nop 7")
    for st in range(2):
        for ft in range(2):
            A(f"s_add_u32 s32, s31, {(st*4*58+ft)*1024}")
            h_epilogue_tile(A, ACC + 16 * (2 * ft + st), 22 + 2 * st, 32 + 16 * ft, 64 + 8 * ((2 * st + ft) & 3), 26, 32)
    stamp(A, 4)
    publish(A, "L_hh_pub", 0, "h", 30)
    stamp(A)
    stamp_flush(A, 0, WS, 9)
    A("s_endpgm")
    loop_hooks_ool(A, "L_hh")

def p1_mx(A):
    A("L_mx:")
    P, Q = 32, 72
    EV, OD = 112, 116
    CE, CO, SE, SO = 120, 124, 128, 132
    HA, HB = 136, 152
    EC, ES, OC, OS = 168, 184, 200, 216
    G = 232
    XAB, WHB = 2, 6
    XAC, XBC, DAC, WHC = 7, 11, 15, 19
    A("v_and_b32 v24, 31, v1\nv_cvt_f32_u32 v24, v24\nv_lshrrev_b32 v25, 5, v1\nv_cvt_f32_u32 v25, v25")
    A("v_mul_f32 v25, 0x3e000000, v25\nv_mul_f32 v25, v25, v24")
    for p in range(2):
        for uh in range(2):
            for u2 in range(2):
                for k in range(2):
                    c = 16 * p + 8 * uh + 2 * u2 + k
                    import struct
                    lit = struct.unpack("<I", struct.pack("<f", c / 32.0))[0]
                    A(f"v_fmamk_f32 v26, v24, {lit:#x}, v25\nv_fract_f32 v26, v26")
                    A(f"v_cos_f32 v{28+k}, v26\nv_sin_f32 v{30+k}, v26")
                A("s_nop 0")
                A(f"v_cvt_pk_bf16_f32 v{G+4*p+2*uh+u2}, v28, v29\nv_cvt_pk_bf16_f32 v{G+16+4*p+2*uh+u2}, v30, v31")
    for i in range(8):
        A(f"v_xor_b32 v{G+8+i}, 0x80008000, v{G+16+i}")
    A("s_lshr_b32 s24, s3, 1\ns_and_b32 s25, s3, 1")
    A("s_lshl_b32 s26, s3, 5\ns_xor_b32 s27, s26, 32")
    x_addr(A, XAB, 26, 24)
    h_tr_addr(A, WHB, 24)
    A(f"s_lshl_b32 s30, s25, 6\nv_xor_b32 v{WHB}, s30, v{WHB}\nv_add_u32 v{WHB}, 16384, v{WHB}")
    for i in range(96): A(f"v_mov_b32 v{HA+i}, 0")
    A("s_lshl_b32 s31, s3, 12\ns_sub_u32 s31, 24576, s31")
    def upd():
        o = [f"v_add_u32 v{XAC+j}, s28, v{XAB+j}" for j in range(4)] + [f"v_add_u32 v{WHC}, s28, v{WHB}"]
        o += [f"v_xor_b32 v{XBC+j}, 0x1000, v{XAC+j}" for j in range(4)]
        o += [f"v_add_u32 v{DAC+j}, s31, v{XAC+j}" for j in range(4)]
        return o
    A("s_mov_b32 s28, 0")
    for t in upd(): A(t)
    jobs_finish(A, 0, 'm')
    epoch_ready(A)
    loop_hooks_init(A)
    A("s_mov_b32 s34, 0x05040100\ns_mov_b32 s35, 0x07060302")
    def reads(buf, m):
        out = []
        for jj in range(2):
            j = 2 * m + jj
            out.append(f"ds_read_b128 v[{buf+4*jj}:{buf+4*jj+3}], v{XAC+j}")
        for jj in range(2):
            j = 2 * m + jj
            out.append(f"ds_read_b64_tr_b16 v[{buf+16+4*jj}:{buf+17+4*jj}], v{WHC} offset:{j*2048}")
            out.append(f"ds_read_b64_tr_b16 v[{buf+18+4*jj}:{buf+19+4*jj}], v{WHC} offset:{j*2048+512}")
            out.append(f"ds_read_b128 v[{buf+8+4*jj}:{buf+11+4*jj}], v{XBC+j}")
        for jj in range(2):
            j = 2 * m + jj
            out.append(f"ds_read_b128 v[{buf+24+4*jj}:{buf+27+4*jj}], v{DAC+j}")
            out.append(f"ds_read_b128 v[{buf+32+4*jj}:{buf+35+4*jj}], v{DAC+j} offset:4096")
        return out
    def perms(src, e, o):
        ev = [f"v_perm_b32 v{e+k}, v{src+2*k+1}, v{src+2*k}, s34" for k in range(4)]
        od = [f"v_perm_b32 v{o+k}, v{src+2*k+1}, v{src+2*k}, s35" for k in range(4)]
        return ev, od
    def half(cur, nxt, m_next, extra):
        rd = reads(nxt, m_next)
        if opt("NOCOMP1"):
            for t in extra: A(t)
            return
        xe, xo = perms(cur, EV, OD); ce, co = perms(cur + 24, CE, CO); se, so = perms(cur + 32, SE, SO)
        H = []
        for jj in range(2):
            w = cur + 16 + 4 * jj
            H.append(f"{MFMA32} v[{HA}:{HA+15}], v[{w}:{w+3}], v[{cur+4*jj}:{cur+4*jj+3}], v[{HA}:{HA+15}]")
            H.append(f"{MFMA32} v[{HB}:{HB+15}], v[{w}:{w+3}], v[{cur+8+4*jj}:{cur+11+4*jj}], v[{HB}:{HB+15}]")
        Dm = [f"{MFMA32} v[{EC}:{EC+15}], v[{EV}:{EV+3}], v[{CE}:{CE+3}], v[{EC}:{EC+15}]",
              f"{MFMA32} v[{OC}:{OC+15}], v[{OD}:{OD+3}], v[{CO}:{CO+3}], v[{OC}:{OC+15}]",
              f"{MFMA32} v[{ES}:{ES+15}], v[{EV}:{EV+3}], v[{SE}:{SE+3}], v[{ES}:{ES+15}]",
              f"{MFMA32} v[{OS}:{OS+15}], v[{OD}:{OD+3}], v[{SO}:{SO+3}], v[{OS}:{OS+15}]"]
        gaps = [xe + rd[0:2], ce + rd[2:4], xo + rd[4:6], co + rd[6:8], se + rd[8:10], so + rd[10:12], extra[:8], extra[8:]]
        ms = H + Dm
        for i in range(8):
            A(ms[i])
            for t in gaps[i]: A(t)
    stamp(A, 1)
    A("s_waitcnt lgkmcnt(0)\ns_barrier")
    stamp(A, 2)
    for r in reads(P, 0):
        if not opt("NOCOMP1"): A(r)
    A("s_mov_b32 s29, 10")
    A("L_mx_loop:")
    loop_hooks_top(A, "L_mx")
    A("s_waitcnt lgkmcnt(0)")
    ring = [f"s_add_u32 s28, s28, {RING}", f"s_and_b32 s28, s28, {NS*RING-1}"]
    half(P, Q, 1, ring + upd())
    A("s_waitcnt lgkmcnt(0)")
    A("s_barrier")
    half(Q, P, 0, [])
    A("s_sub_u32 s29, s29, 1\ns_cmp_lg_u32 s29, 0\ns_cbranch_scc1 L_mx_loop")
    A("s_waitcnt lgkmcnt(0)")
    stamp(A, 3)
    A(f"v_and_b32 v24, 31, v1\nv_add_u32 v25, s26, v24\nv_lshlrev_b32 v25, 2, v25\nv_add_u32 v25, {LST}, v25")
    A(f"v_add_u32 v26, s27, v24\nv_lshlrev_b32 v26, 2, v26\nv_add_u32 v26, {LST}, v26")
    A("ds_read_b32 v2, v25\nds_read_b32 v3, v25 offset:512\nds_read_b32 v4, v26\nds_read_b32 v5, v26 offset:512")
    A(f"v_mov_b32 v7, {LCNT + 12}\nds_read_b32 v7, v7")
    A(f"v_lshrrev_b32 v27, 5, v1\nv_lshlrev_b32 v27, 4, v27\ns_lshl_b32 s30, s25, 7\ns_add_u32 s30, s30, {LCS}\nv_add_u32 v28, s30, v27")
    for q in range(4):
        A(f"ds_read_b128 v[{32+4*q}:{35+4*q}], v28 offset:{q*32}")
    A(f"s_lshl_b32 s30, s26, 2\ns_add_u32 s30, s30, {LST+512}\nv_add_u32 v28, s30, v27")
    for q in range(4):
        A(f"ds_read_b128 v[{48+4*q}:{51+4*q}], v28 offset:{q*32}")
    h_store_voff(A, 6, 28)
    A(f"s_lshl_b32 s31, s{S_B}, 3\ns_lshl_b32 s30, s24, 1\ns_add_u32 s31, s31, s30\ns_mul_i32 s31, s31, 58")
    A(f"s_lshr_b32 s30, s{S_F0}, 5\ns_add_u32 s30, s30, s25\ns_add_u32 s31, s31, s30")
    A(f"s_lshl_b32 s31, s31, 10\ns_add_u32 s31, s31, {HF_OFF}")
    A(f"s_mul_i32 s30, s25, {4*58*1024}\ns_add_u32 s32, s31, s30")
    A(f"s_xor_b32 s30, s25, 1\ns_mul_i32 s30, s30, {4*58*1024}\ns_add_u32 s33, s31, s30")
    A("s_waitcnt lgkmcnt(0)")
    A(f"v_readfirstlane_b32 s{S_LOCAL}, v7")
    A("s_nop 7")
    h_epilogue_tile(A, HA, 2, 32, 64, 6, 32)
    h_epilogue_tile(A, HB, 4, 32, 72, 6, 33)
    stamp(A, 4)
    if opt("MXPUB", 1): publish(A, "L_mx_pubh", 0, "h", 30)
    stamp(A)
    R = 48
    for i in range(0, 16, 2):
        for a in (EC, OC, ES, OS):
            A(f"v_pk_mul_f32 v[{a+i}:{a+i+1}], v[{a+i}:{a+i+1}], v[{R+i}:{R+i+1}]")
    T0, T1 = 80, 96
    for i in range(0, 16, 2):
        A(f"v_pk_add_f32 v[{T0+i}:{T0+i+1}], v[{EC+i}:{EC+i+1}], v[{OC+i}:{OC+i+1}]")
        A(f"v_pk_add_f32 v[{EC+i}:{EC+i+1}], v[{EC+i}:{EC+i+1}], v[{OC+i}:{OC+i+1}] neg_lo:[0,1] neg_hi:[0,1]")
        A(f"v_pk_add_f32 v[{T1+i}:{T1+i+1}], v[{ES+i}:{ES+i+1}], v[{OS+i}:{OS+i+1}]")
        A(f"v_pk_add_f32 v[{OC+i}:{OC+i+1}], v[{OS+i}:{OS+i+1}], v[{ES+i}:{ES+i+1}] neg_lo:[0,1] neg_hi:[0,1]")
    A("v_and_b32 v24, 31, v1\nv_cmp_eq_u32 s[40:41], 0, v24\ns_nop 3")
    A(f"s_cmp_eq_u32 s{S_C}, 0\ns_cselect_b64 s[40:41], s[40:41], 0\ns_cbranch_scc0 L_mx_nofix")
    for i in range(16):
        A(f"v_cndmask_b32 v{T0+i}, v{T0+i}, v{ES+i}, s[40:41]")
        A(f"v_cndmask_b32 v{T1+i}, v{T1+i}, v{OS+i}, s[40:41]")
        A(f"v_cndmask_b32_e64 v{OC+i}, v{OC+i}, 0, s[40:41]")
    A("L_mx_nofix:")
    ZB = 32
    for k, a in enumerate([T0, T1, EC, OC]):
        for i in range(0, 16, 2):
            A(f"v_cvt_pk_bf16_f32 v{ZB+8*k+i//2}, v{a+i}, v{a+i+1}")
    Fr = lambda p: f"v[{G+4*p}:{G+4*p+3}]"
    Fi = lambda p: f"v[{G+8+4*p}:{G+8+4*p+3}]"
    nFi = lambda p: f"v[{G+16+4*p}:{G+16+4*p+3}]"
    Z = lambda k, p: f"v[{ZB+8*k+4*p}:{ZB+8*k+4*p+3}]"
    TR = [EC, OC]; TI = [ES, OS]
    A("s_nop 1")
    for st_ in range(2):
        zr, zi = 2 * st_, 2 * st_ + 1
        tr, ti = TR[st_], TI[st_]
        A(f"{MFMA32} v[{tr}:{tr+15}], {Fr(0)}, {Z(zr,0)}, 0")
        A(f"{MFMA32} v[{ti}:{ti+15}], {Fr(0)}, {Z(zi,0)}, 0")
        A(f"{MFMA32} v[{tr}:{tr+15}], {Fr(1)}, {Z(zr,1)}, v[{tr}:{tr+15}]")
        A(f"{MFMA32} v[{ti}:{ti+15}], {Fr(1)}, {Z(zi,1)}, v[{ti}:{ti+15}]")
        A(f"{MFMA32} v[{tr}:{tr+15}], {nFi(0)}, {Z(zi,0)}, v[{tr}:{tr+15}]")
        A(f"{MFMA32} v[{ti}:{ti+15}], {Fi(0)}, {Z(zr,0)}, v[{ti}:{ti+15}]")
        A(f"{MFMA32} v[{tr}:{tr+15}], {nFi(1)}, {Z(zi,1)}, v[{tr}:{tr+15}]")
        A(f"{MFMA32} v[{ti}:{ti+15}], {Fi(1)}, {Z(zr,1)}, v[{ti}:{ti+15}]")
    if not opt("MXPUB", 1): publish(A, "L_mx_pubh", 0, "h", 30)
    else: A("s_nop 7")
    stamp(A)
    A(f"v_and_b32 v24, 31, v1\nv_lshlrev_b32 v24, 2, v24\nv_lshrrev_b32 v25, 5, v1\nv_lshlrev_b32 v25, 9, v25\nv_add_u32 v24, v24, v25")
    A(f"s_lshl_b32 s30, s3, 13\ns_add_u32 s30, s30, {LX}\nv_add_u32 v24, s30, v24")
    A("s_nop 7")
    for st_ in range(2):
        for i in range(16):
            A(f"v_cvt_pk_bf16_f32 v{64+16*st_+i}, v{TR[st_]+i}, v{TI[st_]+i}")
    for st_ in range(2):
        for i in range(16):
            t0 = (i & 3) + 8 * (i >> 2)
            A(f"ds_write_b32 v24, v{64+16*st_+i} offset:{st_*4096+t0*128}")
    A("s_waitcnt lgkmcnt(0)")
    stamp(A)
    lds_arrive(A, 1, 30, 63)
    A(f"v_mov_b32 v30, {LCNT+4}")
    A("L_mx_rv:\nds_read_b32 v31, v30\ns_waitcnt lgkmcnt(0)\ns_nop 0\nv_readfirstlane_b32 s63, v31\ns_nop 3\ns_cmp_ge_u32 s63, 4\ns_cbranch_scc1 L_mx_rv_ok")
    A(f"s_sub_u32 s{S_SPIN}, s{S_SPIN}, 1\ns_cmp_eq_u32 s{S_SPIN}, 0\ns_cbranch_scc0 L_mx_rv\nL_mx_rv_ok:")
    A("v_and_b32 v24, 31, v1\nv_lshlrev_b32 v24, 2, v24\nv_lshrrev_b32 v25, 5, v1\nv_lshlrev_b32 v26, 7, v25\nv_add_u32 v24, v24, v26")
    A(f"s_lshl_b32 s30, s3, 10\ns_add_u32 s30, s30, {LX}\nv_add_u32 v24, s30, v24")
    for st_ in range(2):
        for n in range(4):
            b = 64 + 16 * st_ + 4 * n
            for w in range(4):
                A(f"ds_read_b32 v{b+w}, v24 offset:{w*8192+st_*4096+n*256}")
    A(f"v_and_b32 v26, 31, v1\ns_lshl_b32 s30, s{S_C}, 5\nv_add_u32 v27, s30, v26")
    A("v_mov_b32 v28, 160\nv_cndmask_b32 v29, v27, v28, s[40:41]")
    A("v_sub_u32 v27, 320, v27")
    A(f"s_mov_b32 s30, {TF_T0}\nv_mul_lo_u32 v25, s30, v25")
    A("v_lshlrev_b32 v29, 4, v29\nv_add_u32 v29, v29, v25")
    A("v_lshlrev_b32 v27, 4, v27\nv_add_u32 v27, v27, v25")
    A(f"s_mul_i32 s30, s3, {8*TF_T0}\ns_mul_i32 s31, s{S_B}, {TF_ROW}\ns_add_u32 s30, s30, s31\ns_add_u32 s30, s30, {TF_OFF}")
    A("s_waitcnt lgkmcnt(0)")
    for st_ in range(2):
        for n in range(4):
            b = 64 + 16 * st_ + 4 * n
            A(f"s_add_u32 s31, s30, {2*n*TF_T0}")
            A(f"buffer_store_dwordx4 v[{b}:{b+3}], v{29 if st_ == 0 else 27}, s[36:39], s31 offen {SC}")
    stamp(A)
    A(f"s_cmp_eq_u32 s{S_C}, 0\ns_cbranch_scc0 L_mx_noz\ns_cmp_eq_u32 s3, 0\ns_cbranch_scc0 L_mx_noz")
    A(f"s_mov_b32 s30, {TF_T0}\nv_and_b32 v24, 31, v1\nv_mul_lo_u32 v24, s30, v24")
    A("v_mov_b32 v4, 0\nv_mov_b32 v5, 0\nv_mov_b32 v6, 0\nv_mov_b32 v7, 0")
    A(f"s_mul_i32 s31, s{S_B}, {TF_ROW}\ns_add_u32 s31, s31, {TF_OFF}")
    A(f"buffer_store_dwordx4 v[4:7], v24, s[36:39], s31 offen {SC}")
    A("L_mx_noz:")
    publish(A, "L_mx_pubt", 2, "t", 30)
    stamp(A)
    stamp_flush(A, 0, WS, 9)
    A("s_endpgm")
    loop_hooks_ool(A, "L_mx")

def loader(A):
    A("L_loader:")
    A(f"s_sub_u32 s{S_J}, s3, 4")
    srd(A, 24, X_, X_BYTES)
    srd(A, 36, WS, WS_USED)
    for r in [11, 12, 13, 52, 53, 54, 55, 56, 57, 58, 59]: A(f"v_mov_b32 v{r}, 0")
    A("s_mov_b32 s58, 0\ns_mov_b32 s59, 99\ns_mov_b32 s63, 0")
    A("v_lshrrev_b32 v4, 3, v1\ns_mov_b32 s40, 81920\nv_mul_lo_u32 v8, s40, v4")
    A("v_and_b32 v5, 7, v1\nv_lshrrev_b32 v6, 4, v1\nv_xor_b32 v5, v5, v6\nv_lshlrev_b32 v5, 4, v5")
    A("v_add_u32 v2, v8, v5\nv_xor_b32 v7, 64, v5")
    A(f"v_add_u32 v3, v8, v7\nv_add_u32 v3, {8*81920}, v3")
    A(f"s_lshl_b32 s40, s{S_B}, 1\ns_and_b32 s41, s{S_J}, 1\ns_add_u32 s40, s40, s41")
    A(f"s_lshr_b32 s41, s{S_J}, 1\ns_lshl_b32 s41, s41, 5\ns_add_u32 s40, s40, s41")
    A(f"s_mul_i32 s40, s40, 1280\ns_add_u32 s41, s40, {16*81920}")
    A("s_mov_b64 s[56:57], -1")
    A(f"s_cmp_lt_u32 s{S_C}, 5\ns_cbranch_scc0 L_ld_H")
    A(f"s_cmp_ge_u32 s{S_J}, 2\ns_cbranch_scc0 L_ld_H")
    A(f"s_and_b32 s42, s{S_J}, 1\ns_cmp_eq_u32 s42, 0")
    A(f"s_cselect_b32 s28, s{HRE}, s{HIM}\ns_cselect_b32 s29, s{HRE+1}, s{HIM+1}")
    A(f"s_mov_b32 s30, {HID_BYTES}\ns_mov_b32 s31, 0x20000")
    A("v_mul_u32_u24 v8, 1280, v4\nv_add_u32 v9, v8, v5")
    A(f"v_add_u32 v10, v8, v7\nv_add_u32 v10, {8*1280}, v10")
    A(f"s_mul_i32 s42, s{S_C}, {32*1280}")
    A(f"s_mov_b32 s44, s42\ns_mov_b32 s45, s42\ns_add_u32 s46, s42, {16*1280}\ns_add_u32 s47, s42, {16*1280}")
    A("s_mov_b32 s43, 128")
    A(f"s_cmp_eq_u32 s{S_C}, 0\ns_cbranch_scc0 L_ld_go\ns_cmp_eq_u32 s{S_J}, 3\ns_cbranch_scc0 L_ld_go")
    A("s_mov_b32 s56, 0xffffff00")
    A("s_branch L_ld_go")
    A("L_ld_H:")
    srd(A, 28, W1, W1_BYTES)
    A("v_mul_u32_u24 v8, 3456, v4")
    A("v_and_b32 v9, 7, v1\nv_bfe_u32 v10, v1, 4, 1\nv_lshlrev_b32 v10, 2, v10\nv_xor_b32 v9, v9, v10")
    A("v_lshlrev_b32 v9, 4, v9\nv_add_u32 v9, v8, v9\nv_mov_b32 v10, v9")
    A(f"s_and_b32 s42, s{S_J}, 1\ns_mul_i32 s42, s42, {32*3456}")
    A(f"s_lshr_b32 s43, s{S_J}, 1\ns_lshl_b32 s43, s43, 6\ns_add_u32 s43, s43, s{S_F0}\ns_lshl_b32 s43, s43, 1")
    A("s_add_u32 s42, s42, s43")
    for q in range(4):
        A(f"s_add_u32 s{44+q}, s42, {8*q*3456}")
    A(f"s_mov_b32 s43, {64*3456}")
    A("L_ld_go:")
    A(f"s_lshl_b32 s48, s{S_J}, 12")
    def chunk(slot_reg):
        for q in range(4):
            A(f"s_add_u32 m0, s{slot_reg}, {q*1024}")
            A("s_nop 0")
            A(f"buffer_load_dwordx4 v{2+(q&1)}, s[24:27], s{40+(q>>1)} offen lds")
            A(f"s_add_u32 m0, s{slot_reg}, {16384+q*1024}")
            if q == 0: A("s_mov_b64 exec, s[56:57]")
            else: A("s_nop 0")
            A(f"buffer_load_dwordx4 v{9+(q&1)}, s[28:31], s{44+q} offen lds")
            if q == 0: A("s_mov_b64 exec, -1")
        A("s_add_u32 s40, s40, 128\ns_add_u32 s41, s41, 128")
        for q in range(4):
            A(f"s_add_u32 s{44+q}, s{44+q}, s43")
        A(f"s_add_u32 s{slot_reg}, s{slot_reg}, {RING}\ns_cmp_ge_u32 s{slot_reg}, {NS*RING}\ns_cselect_b32 s52, {NS*RING}, 0\ns_sub_u32 s{slot_reg}, s{slot_reg}, s52")
    A("s_mov_b32 s49, s48")
    chunk(49); chunk(49)
    stamp(A, 1)
    srd(A, 32, WS, WS_USED)
    A("s_waitcnt lgkmcnt(0)")
    A(f"s_add_u32 s{S_E}, s{S_E}, 1\ns_xor_b32 s{S_EM}, s{S_E}, {MAGIC}")
    A(f"s_cmp_ge_u32 s{S_J}, 2\ns_cbranch_scc0 L_ld_su01")
    A(f"s_sub_u32 s58, s{S_J}, 2\ns_lshl_b32 s59, s{S_T0}, 1\ns_add_u32 s59, s59, s58")
    A("s_mov_b32 s50, 6554\ns_mov_b32 s53, 1280")
    for q in range(5):
        A(f"v_add_u32 v22, {64*q}, v1")
        A("v_mul_lo_u32 v23, s50, v22\nv_lshrrev_b32 v23, 16, v23")
        A("v_mul_u32_u24 v24, 10, v23\nv_sub_u32 v24, v22, v24\nv_lshlrev_b32 v24, 4, v24")
        A(f"v_mul_lo_u32 v23, s53, v23\nv_add_u32 v{52+q}, v23, v24")
    A("v_lshrrev_b32 v23, 4, v1\nv_lshrrev_b32 v24, 1, v23\nv_lshlrev_b32 v24, 4, v24")
    A("v_and_b32 v25, 1, v23\nv_lshlrev_b32 v25, 2, v25\nv_add_u32 v24, v24, v25\nv_bfe_u32 v25, v1, 2, 2\nv_add_u32 v24, v24, v25")
    A("v_mul_u32_u24 v24, 160, v24\nv_and_b32 v25, 3, v1\nv_lshlrev_b32 v25, 3, v25\nv_add_u32 v24, v24, v25")
    A(f"s_mul_i32 s50, s58, 5120\ns_add_u32 s50, s50, {LW}\nv_add_u32 v57, s50, v24")
    A(f"s_lshl_b32 s50, s{S_CT}, 1\ns_add_u32 s50, s50, s58\ns_lshr_b32 s53, s50, 2\ns_and_b32 s50, s50, 3")
    A(f"s_lshr_b32 s54, s53, 1\ns_lshl_b32 s54, s54, 5\ns_add_u32 s54, s54, s{S_T0}")
    A("s_and_b32 s55, s53, 1\ns_lshl_b32 s55, s55, 10\ns_add_u32 s54, s54, s55")
    A("v_and_b32 v22, 15, v1\nv_lshlrev_b32 v22, 6, v22\nv_add_u32 v22, s54, v22")
    A("s_lshl_b32 s55, s50, 3\nv_lshrrev_b32 v23, 4, v1\nv_lshlrev_b32 v23, 1, v23\nv_add_u32 v23, s55, v23")
    A("s_mov_b32 s55, 0x3a000000")
    for k, ds in enumerate([0, 1, 32, 33]):
        A(f"v_add_u32 v24, {ds}, v23\nv_mul_u32_u24 v24, v22, v24\nv_and_b32 v24, 0x7ff, v24\nv_cvt_f32_u32 v24, v24\nv_mul_f32 v24, s55, v24")
        A(f"v_cos_f32 v25, v24\nv_sin_f32 v26, v24\ns_nop 0\nv_cvt_pk_bf16_f32 v{60+k}, v25, -v26")
    A(f"s_lshl_b32 s63, s{S_T0}, 2\ns_add_u32 s63, s63, s53\ns_mul_i32 s63, s63, 58\ns_add_u32 s63, s63, s50\ns_add_u32 s63, s63, 54")
    A(f"s_lshl_b32 s63, s63, 10\ns_add_u32 s63, s63, {HF_OFF}")
    A(f"s_lshl_b32 s50, s{S_CT}, 6\ns_add_u32 s50, s50, s59\ns_lshl_b32 s50, s50, 3\ns_add_u32 s50, s50, {FW_OFF}\nv_mov_b32 v58, s50")
    A(f"s_lshl_b32 s50, s{S_T0}, 4\ns_lshl_b32 s53, s{S_CT}, 1\ns_add_u32 s50, s50, s53\ns_add_u32 s50, s50, s58\ns_lshl_b32 s50, s50, 3\ns_add_u32 s50, s50, {FF_OFF}\nv_mov_b32 v59, s50")
    A("v_cmp_eq_u32 vcc, 1, v1\ns_nop 1\nv_cndmask_b32 v58, v58, v59, vcc")
    A("s_branch L_ld_sud")
    A("L_ld_su01:")
    A("v_lshlrev_b32 v13, 3, v1\nv_and_b32 v16, 31, v1\nv_lshlrev_b32 v15, 3, v16")
    A(f"s_lshl_b32 s50, s{S_B}, 7\ns_add_u32 s50, s50, {FR1_OFF}\nv_add_u32 v12, s50, v15")
    A(f"s_lshl_b32 s50, s{S_C}, 7\ns_add_u32 s50, s50, {FC1_OFF-128}\nv_add_u32 v15, s50, v15")
    A("v_cmp_le_u32 vcc, 16, v16\ns_nop 1\nv_cndmask_b32 v12, v12, v15, vcc")
    A(f"s_lshl_b32 s50, s{S_CT}, 9\ns_add_u32 s50, s50, {FW_OFF}\nv_add_u32 v11, s50, v13")
    A(f"s_lshl_b32 s50, s{S_T0}, 7\ns_add_u32 s50, s50, {FF_OFF}\nv_and_b32 v14, 15, v1\nv_lshlrev_b32 v14, 3, v14\nv_add_u32 v59, s50, v14")
    A("L_ld_sud:")
    A("s_waitcnt vmcnt(8)")
    stamp(A, 2)
    A("s_barrier")
    chunk(49)
    A("s_waitcnt vmcnt(8)\ns_barrier")
    stamp(A)
    pk = opt("POLLK", 5)
    assert pk in (5, 6)
    A(f"s_mov_b32 s53, 99\ns_mov_b32 s54, 99\ns_mov_b32 s55, 0\ns_mov_b32 s79, 99\ns_mov_b32 s81, 99")
    A(f"s_cmp_eq_u32 s{S_J}, 0\ns_cselect_b32 s53, {9-pk}, s53\ns_cselect_b32 s54, {9-pk-2}, s54\ns_cselect_b32 s55, {9-pk-1}, s55\ns_cselect_b32 s81, {9-pk-2}, s81")
    A(f"s_cmp_eq_u32 s{S_J}, 1\ns_cselect_b32 s53, {opt('FWPOLL', 1)}, s53")
    if opt("WSTAG", 1):
        A(f"s_lshr_b32 s62, s2, 3\ns_and_b32 s62, s62, {opt('WSTAG', 1)}")
    else:
        A("s_mov_b32 s62, 0")
    A("s_sub_u32 s50, 7, s62\ns_sub_u32 s60, 5, s62\ns_sub_u32 s61, 4, s62")
    A(f"s_cmp_ge_u32 s{S_J}, 2\ns_cselect_b32 s53, s50, s53\ns_cselect_b32 s54, s60, s54\ns_cselect_b32 s79, s61, s79")
    A("s_mov_b32 s51, 7")
    A("L_ld_loop:")
    A("s_cmp_eq_u32 s51, s54\ns_cbranch_scc1 L_ld_h2\nL_ld_h2_ret:")
    A("s_cmp_eq_u32 s51, s79\ns_cbranch_scc1 L_ld_h3\nL_ld_h3_ret:")
    chunk(49)
    A("s_cmp_eq_u32 s51, s53\ns_cbranch_scc1 L_ld_h1\nL_ld_h1_ret:")
    A("s_cmp_eq_u32 s51, s81\ns_cbranch_scc1 L_ld_h4\nL_ld_h4_ret:")
    A("s_cmp_lt_u32 s51, s55\ns_cbranch_scc1 L_ld_w25")
    A("s_waitcnt vmcnt(8)\ns_branch L_ld_wd\nL_ld_w25:\ns_waitcnt vmcnt(17)\nL_ld_wd:")
    stamp(A)
    A("s_barrier")
    stamp(A)
    A("s_sub_u32 s51, s51, 1\ns_cmp_lg_u32 s51, 0\ns_cbranch_scc1 L_ld_loop")
    A("s_waitcnt vmcnt(0)")
    A(f"s_cmp_eq_u32 s{S_J}, 1\ns_cbranch_scc0 L_ld_no1")
    spin(A, "L_ld_spw", 48, 11, 32, xcc=True)
    spin(A, "L_ld_spf", 50, 59, 32, xcc=True)
    A("L_ld_no1:")
    A(f"s_cmp_eq_u32 s{S_J}, 0\ns_cbranch_scc0 L_ld_nored")
    for b_ in range(1, 8):
        for k in range(4): A(f"v_add_f32 v{16+k}, v{16+k}, v{16+4*b_+k}")
    for k in range(4): A(f"v_mov_b32 v{20+k}, v{16+k}")
    A("s_nop 1")
    for k in range(4): A(f"v_permlane32_swap_b32 v{16+k}, v{20+k}")
    A("s_nop 0")
    for k in range(4): A(f"v_add_f32 v{16+k}, v{16+k}, v{20+k}")
    A(f"v_add_u32 v13, {LCS}, v13\nds_write_b128 v13, v[16:19]\ns_waitcnt lgkmcnt(0)")
    A("L_ld_nored:")
    A("s_barrier")
    stamp(A)
    A("s_barrier")
    A("s_branch L_ld_p2")
    A("L_ld_h1:")
    A(f"s_cmp_ge_u32 s{S_J}, 2\ns_cbranch_scc1 L_ld_h1w")
    A(f"s_cmp_eq_u32 s{S_J}, 1\ns_cbranch_scc1 L_ld_h1f")
    A(f"buffer_load_dwordx2 v[14:15], v12, s[32:35], 0 offen {SC}")
    A("s_branch L_ld_h1_ret")
    A("L_ld_h1f:")
    A(f"buffer_load_dwordx2 v[48:49], v11, s[32:35], 0 offen {SC}")
    A(f"buffer_load_dwordx2 v[50:51], v59, s[32:35], 0 offen {SC}")
    A("s_branch L_ld_h1_ret")
    A("L_ld_h1w:")
    A("s_cmp_ge_u32 s59, 54\ns_cbranch_scc1 L_ld_h1_ret")
    srd(A, 84, W2, W2_BYTES)
    A(f"s_mul_i32 s50, s59, 40960\ns_mul_i32 s62, s{S_CT}, 160\ns_add_u32 s50, s50, s62")
    A(f"s_mul_i32 s62, s58, 5120\ns_add_u32 s62, s62, {LW}")
    for q in range(5):
        A(f"s_add_u32 m0, s62, {1024*q}\ns_nop 0")
        A(f"buffer_load_dwordx4 v{52+q}, s[84:87], s50 offen lds")
    A("s_branch L_ld_h1_ret")
    A("L_ld_h2:")
    A(f"s_cmp_ge_u32 s{S_J}, 2\ns_cbranch_scc1 L_ld_h2w")
    spin(A, "L_ld_sp", 14, 12, 32, xcc=True)
    A(f"v_and_b32 v50, 16, v1\nv_cmp_eq_u32 s[60:61], 0, v50\nv_cmp_ne_u32 vcc, s{S_XCC}, v15\ns_nop 3\ns_and_b64 vcc, vcc, s[60:61]")
    A(f"s_cmp_eq_u64 vcc, 0\ns_cselect_b32 s62, {1 if opt('LOCALH', 1) and opt('MAP1', 1) else 0}, 0")
    A(f"v_mov_b32 v50, {LCNT + 12}\nv_mov_b32 v51, s62\nds_write_b32 v50, v51")
    A("s_branch L_ld_h2_ret")
    A("L_ld_h4:")
    A(f"s_lshl_b32 s50, s{S_B}, 10\ns_add_u32 s50, s50, {ST_OFF}\ns_mov_b32 m0, {LST}\nv_lshlrev_b32 v13, 4, v1")
    A(f"buffer_load_dwordx4 v13, s[36:39], s50 offen {SC} lds")
    A(f"s_lshl_b32 s50, s{S_F0}, 2\ns_add_u32 s50, s50, {CS_OFF}")
    A("v_and_b32 v13, 31, v1\nv_lshlrev_b32 v13, 4, v13\nv_lshrrev_b32 v14, 5, v1\nv_lshlrev_b32 v14, 13, v14\nv_add_u32 v14, v13, v14")
    for b_ in range(8):
        A(f"buffer_load_dwordx4 v[{16+4*b_}:{19+4*b_}], v14, s[36:39], s50 offen {SC}")
        if b_ < 7: A("s_add_u32 s50, s50, 16384")
    A("s_branch L_ld_h4_ret")
    A("L_ld_h2w:")
    A(f"v_lshlrev_b32 v22, 4, v1\nbuffer_store_dwordx4 v[60:63], v22, s[32:35], s63 offen {SC}")
    A("s_cmp_ge_u32 s59, 54\ns_cbranch_scc1 L_ld_h2_ret")
    for n in range(5):
        A(f"ds_read_b64_tr_b16 v[{24+4*n}:{25+4*n}], v57 offset:{32*n}")
        A(f"ds_read_b64_tr_b16 v[{26+4*n}:{27+4*n}], v57 offset:{32*n+1280}")
    A(f"s_mul_i32 s50, s{S_CT}, 54\ns_add_u32 s50, s50, s59\ns_mul_i32 s50, s50, 5120\ns_add_u32 s50, s50, {W2F_OFF}")
    A("v_add_u32 v23, 4096, v22\ns_waitcnt lgkmcnt(0)")
    for n in range(4):
        A(f"buffer_store_dwordx4 v[{24+4*n}:{27+4*n}], v22, s[32:35], s50 offen offset:{1024*n} {SC}")
    A(f"buffer_store_dwordx4 v[40:43], v23, s[32:35], s50 offen {SC}")
    A("s_branch L_ld_h2_ret")
    A("L_ld_h3:")
    store_flags(A, 58, 2, 32, 64, xcc=True)
    A("s_branch L_ld_h3_ret")
    A("L_ld_p2:")
    stamp(A, 3)
    p2(A)

def p2(A):
    J = S_J
    HSC = "" if opt("HPLAIN") else SC
    WSC = "" if opt("WPLAIN") else SC
    ACC = 16
    SET = [96, 132, 168]
    XR = 204
    VP = 214
    acc = lambda nt, a: ACC + 4 * (4 * nt + a)
    srd(A, 24, WS, WS_USED)
    srd(A, 28, WS, 4 * HF_TILE)
    A(f"s_mul_i32 s50, s{S_T0}, {4*HF_TILE}")
    if HF_OFF: A(f"s_add_u32 s50, s50, {HF_OFF}")
    A("s_add_u32 s28, s28, s50\ns_addc_u32 s29, s29, 0")
    srd(A, 32, X_, X_BYTES)
    srd(A, 40, OUT, X_BYTES)
    A("v_lshlrev_b32 v2, 4, v1\nv_add_u32 v3, 4096, v2")
    for a_ in range(4):
        A(f"s_add_u32 s50, s{J}, {a_}\ns_and_b32 s50, s50, 3\ns_mul_i32 s50, s50, {HF_TILE}\nv_add_u32 v{4+a_}, s50, v2")
    A("v_and_b32 v8, 15, v1\ns_mov_b32 s50, 81920\nv_mul_lo_u32 v8, s50, v8")
    A("v_lshrrev_b32 v9, 4, v1\nv_lshlrev_b32 v9, 3, v9\nv_add_u32 v8, v8, v9")
    A(f"s_lshr_b32 s38, s{J}, 1\ns_lshl_b32 s38, s38, 5\ns_add_u32 s38, s38, s{S_T0}")
    A(f"s_and_b32 s39, s{J}, 1\ns_lshl_b32 s39, s39, 10\ns_add_u32 s38, s38, s39\ns_mul_i32 s38, s38, 1280")
    A(f"s_mul_i32 s39, s{S_CT}, 160\ns_add_u32 s38, s38, s39")
    rotn = opt("ROT2", 2)
    A(f"s_and_b32 s50, s{S_T0}, {rotn - 1 if rotn else 0}\ns_mul_i32 s50, s50, {14 // rotn if rotn else 0}")
    A(f"s_lshl_b32 s50, s50, 2\ns_add_u32 s44, s50, s{J}\ns_mov_b32 s45, s44")
    A(f"s_mul_i32 s49, s{S_CT}, {54*5120}\ns_add_u32 s49, s49, {W2F_OFF}")
    def adv(r):
        A(f"s_add_u32 s{r}, s{r}, 4\ns_cmp_ge_u32 s{r}, 54\ns_cselect_b32 s{r}, s{J}, s{r}")
    def loadB(si):
        b = SET[si]
        A("s_mul_i32 s50, s44, 5120\ns_add_u32 s50, s50, s49")
        for n in range(4):
            A(f"buffer_load_dwordx4 v[{b+4*n}:{b+4*n+3}], v2, s[24:27], s50 offen offset:{1024*n} {WSC}")
        A(f"buffer_load_dwordx4 v[{b+16}:{b+19}], v3, s[24:27], s50 offen {WSC}")
        adv(44)
    def loadA(si, tstep=False):
        b = SET[si] + 20
        if tstep:
            A(f"s_add_u32 s50, s{J}, 2\ns_and_b32 s50, s50, 3\ns_add_u32 s50, s50, 54\ns_lshl_b32 s50, s50, 10")
        else:
            A("s_lshl_b32 s50, s45, 10")
        for a_ in range(4):
            A(f"buffer_load_dwordx4 v[{b+4*a_}:{b+4*a_+3}], v{4+a_}, s[28:31], s50 offen {HSC}")
        if not tstep: adv(45)
    def loadT(si):
        b = SET[si]
        A("s_mov_b32 s50, s46")
        for n in range(5):
            A(f"buffer_load_dwordx4 v[{b+4*n}:{b+4*n+3}], v10, s[24:27], s50 offen {SC}")
            if n < 4: A("s_add_u32 s50, s50, s47")
    def mfmas(si):
        b = SET[si]
        for a_ in range(4):
            for nt in range(5):
                c = acc(nt, a_)
                if not opt("NOCOMP2"):
                    A(f"{MFMA16} v[{c}:{c+3}], v[{b+4*nt}:{b+4*nt+3}], v[{b+20+4*a_}:{b+23+4*a_}], v[{c}:{c+3}]")
    def xorA(si):
        b = SET[si] + 20
        for k in range(16): A(f"v_xor_b32 v{b+k}, s48, v{b+k}")
        A("s_nop 0")
    NB0 = opt("NB0", 2)
    for si in range(NB0): loadB(si)
    for i in range(80): A(f"v_mov_b32 v{ACC+i}, 0")
    A(f"v_lshrrev_b32 v10, 4, v1\nv_mul_u32_u24 v10, {TF_ROW}, v10\nv_and_b32 v11, 15, v1")
    A(f"s_mul_i32 s50, s{S_CT}, 80\nv_add_u32 v12, s50, v11\nv_sub_u32 v13, 576, v12")
    A(f"s_cmp_lt_u32 s{S_CT}, 4\ns_cselect_b64 s[60:61], -1, 0\nv_cndmask_b32 v12, v13, v12, s[60:61]")
    A("v_lshlrev_b32 v12, 4, v12\nv_add_u32 v10, v10, v12")
    A(f"s_sub_u32 s46, 32, s{S_T0}\ns_and_b32 s46, s46, 31\ns_cmp_lt_u32 s{S_CT}, 4\ns_cselect_b32 s46, s{S_T0}, s46")
    A(f"s_mul_i32 s46, s46, {TF_T0}\ns_add_u32 s46, s46, {TF_OFF}")
    A(f"s_mov_b32 s47, 256\ns_mov_b32 s50, -256\ns_cmp_lt_u32 s{S_CT}, 4\ns_cselect_b32 s47, s47, s50\ns_cselect_b32 s50, 0, 1024\ns_cselect_b32 s48, 0x80000000, 0")
    A("s_add_u32 s46, s46, s50")
    A(f"s_add_u32 s50, s{J}, 2\ns_and_b32 s50, s50, 3\ns_mul_i32 s50, s50, {4*TF_ROW}\ns_add_u32 s46, s46, s50")
    A(f"s_lshl_b32 s50, s{S_CT}, 10\ns_add_u32 s50, s50, {FT_OFF}\nv_lshlrev_b32 v12, 3, v1\nv_add_u32 v12, s50, v12")
    A("v_and_b32 v13, 15, v1\nv_lshlrev_b32 v13, 3, v13\nv_add_u32 v13, s50, v13\nv_add_u32 v13, 512, v13")
    A(f"s_cmp_eq_u32 s{J}, 0\ns_cbranch_scc0 L_p2_lw")
    A(f"s_lshr_b32 s50, s{S_T0}, 1\ns_lshl_b32 s50, s50, 7\ns_add_u32 s50, s50, {FH_OFF}")
    A("v_and_b32 v14, 15, v1\nv_lshlrev_b32 v14, 3, v14\nv_add_u32 v11, s50, v14")
    A(f"buffer_load_dwordx2 v[{VP}:{VP+1}], v11, s[24:27], 0 offen {SC}\ns_waitcnt vmcnt(0)")
    if opt("SPINSTAMP") == "L_p2_sp1": stamp(A)
    spin(A, "L_p2_sp1", VP, 11, 24, xcc=True)
    A(f"v_mov_b32 v14, {LCNT + 16}\nv_mov_b32 v15, 1\nds_write_b32 v14, v15\ns_waitcnt lgkmcnt(0)")
    A("s_branch L_p2_go")
    A("L_p2_lw:")
    A(f"v_mov_b32 v14, {LCNT + 16}")
    A("L_p2_lw1:\nds_read_b32 v15, v14\ns_waitcnt lgkmcnt(0)\ns_nop 0\nv_readfirstlane_b32 s50, v15\ns_nop 3\ns_cmp_eq_u32 s50, 1\ns_cbranch_scc1 L_p2_go")
    A(f"s_sleep 1\ns_sub_u32 s{S_SPIN}, s{S_SPIN}, 1\ns_cmp_eq_u32 s{S_SPIN}, 0\ns_cbranch_scc0 L_p2_lw1")
    A("L_p2_go:")
    stamp(A, 5)
    for si in range(NB0): loadA(si)
    for si in range(NB0, 3):
        loadB(si); loadA(si)
    if not opt("NOXR"):
        for n in range(5):
            A(f"buffer_load_dwordx2 v[{XR+2*n}:{XR+2*n+1}], v8, s[32:35], s38 offen offset:{32*n}")
    def step(si, vm, pre):
        A(f"s_waitcnt vmcnt({vm})")
        mfmas(si)
        pre()
    reg = lambda si: (lambda: (loadB(si), loadA(si)))
    order = [(si, 4) for si in range(NB0)] + [(si, 9) for si in range(NB0, 3)] + [(-1, 5)]
    for st_ in range(3):
        idx = max(i for i, (si, n) in enumerate(order) if si == st_)
        younger = sum(n for (si, n) in order[idx+1:]) + 9 * st_
        step(st_, younger, reg(st_))
        if opt("STEPSTAMP"): stamp(A)
    stamp(A)
    A("s_mov_b32 s51, 2")
    A("L_p2_loop:")
    for si in range(3):
        step(si, 18, reg(si))
        if opt("STEPSTAMP"): stamp(A)
    A("s_cmp_eq_u32 s51, 2\ns_cbranch_scc0 L_p2_nt")
    A(f"buffer_load_dwordx2 v[{VP}:{VP+1}], v12, s[24:27], 0 offen {SC}\nbuffer_load_dwordx2 v[{VP+2}:{VP+3}], v13, s[24:27], 0 offen {SC}")
    A("L_p2_nt:")
    A("s_sub_u32 s51, s51, 1\ns_cmp_lg_u32 s51, 0\ns_cbranch_scc1 L_p2_loop")
    stamp(A)
    step(0, 18, reg(0))
    spin(A, "L_p2_sp2", VP, 12, 24)
    spin(A, "L_p2_sp3", VP + 2, 13, 24)
    A(f"s_cmp_eq_u32 s2, 0\ns_cbranch_scc0 L_p2_noep\ns_cmp_eq_u32 s{J}, 0\ns_cbranch_scc0 L_p2_noep")
    A(f"v_mov_b32 v14, s{S_E}\nv_mov_b32 v15, {EP_OFF}\ns_mov_b64 exec, 1\nbuffer_store_dword v14, v15, s[24:27], 0 offen {SC}\ns_mov_b64 exec, -1")
    A("L_p2_noep:")
    stamp(A)
    A(f"s_cmp_lt_u32 s{J}, 2\ns_cbranch_scc0 L_p2_hi")
    step(1, 18, reg(1))
    step(2, 18, lambda: (loadT(2), loadA(2, True)))
    step(0, 18, lambda: None)
    step(1, 9, lambda: None)
    A("s_waitcnt vmcnt(0)"); xorA(2); mfmas(2)
    A("s_branch L_p2_red")
    A("L_p2_hi:")
    step(1, 18, lambda: (loadT(1), loadA(1, True)))
    step(2, 18, lambda: None)
    step(0, 9, lambda: None)
    A("s_waitcnt vmcnt(0)"); xorA(1); mfmas(1)
    A("L_p2_red:")
    stamp(A)
    A("s_nop 7")
    for a_ in range(1, 4):
        A(f"s_add_u32 s50, s{J}, {a_}\ns_and_b32 s50, s50, 3\ns_mul_i32 s50, s50, 3\ns_add_u32 s50, s50, {a_-1}\ns_mul_i32 s50, s50, 5120\nv_add_u32 v14, s50, v2")
        for nt in range(5):
            c = acc(nt, a_)
            A(f"ds_write_b128 v14, v[{c}:{c+3}] offset:{nt*1024}")
    A("s_waitcnt lgkmcnt(0)\ns_barrier")
    A(f"s_mul_i32 s50, s{J}, {3*5120}\nv_add_u32 v14, s50, v2")
    for pos in range(3):
        for nt in range(5):
            r = 96 + 20 * pos + 4 * nt
            A(f"ds_read_b128 v[{r}:{r+3}], v14 offset:{pos*5120+nt*1024}")
    for pos in range(3):
        A(f"s_waitcnt lgkmcnt({10 - 5*pos})")
        for nt in range(5):
            r = 96 + 20 * pos + 4 * nt; c = acc(nt, 0)
            for k in range(4): A(f"v_add_f32 v{c+k}, v{c+k}, v{r+k}")
    for n in range(5):
        c = acc(n, 0); x = XR + 2 * n; t = 168 + 4 * n
        A(f"v_lshlrev_b32 v{t}, 16, v{x}\nv_and_b32 v{t+1}, 0xffff0000, v{x}")
        A(f"v_lshlrev_b32 v{t+2}, 16, v{x+1}\nv_and_b32 v{t+3}, 0xffff0000, v{x+1}")
        for k in range(4): A(f"v_add_f32 v{t+k}, v{t+k}, v{c+k}")
        A(f"v_cvt_pk_bf16_f32 v{x}, v{t}, v{t+1}\nv_cvt_pk_bf16_f32 v{x+1}, v{t+2}, v{t+3}")
        A(f"buffer_store_dwordx2 v[{x}:{x+1}], v8, s[40:43], s38 offen offset:{32*n}")
    stamp(A)
    stamp_flush(A, 0, WS, 9)
    A("s_endpgm")

def gen(A, name):
    kernel_head(A, name)
    entry(A)
    A("s_cmp_ge_u32 s3, 4\ns_cbranch_scc1 L_loader")
    jobs_issue(A)
    A(f"s_cmp_lt_u32 s{S_C}, 5\ns_cbranch_scc1 L_mx")
    p1_hh(A)
    p1_mx(A)
    loader(A)
    A("L_end:\ns_endpgm")
```

```python
S, D, F = 2048, 640, 1728
HF_OFF = 0
HF_TILE = 58 * 1024
HF_SIZE = 32 * 4 * HF_TILE
W2F_OFF = HF_OFF + HF_SIZE
W2F_SIZE = 8 * 54 * 5120
TF_OFF = W2F_OFF + W2F_SIZE
TF_ROW = 328 * 16
TF_T0 = 16 * TF_ROW
TF_SIZE = 32 * TF_T0
ST_OFF = TF_OFF + TF_SIZE
ST_SIZE = 2048 * 8
CS_OFF = ST_OFF + ST_SIZE
CS_SIZE = 16 * 2048 * 4
EP_OFF = CS_OFF + CS_SIZE
FR1_OFF = EP_OFF + 4096
FC1_OFF = FR1_OFF + 16 * 128
FW_OFF = FC1_OFF + 16 * 128
FF_OFF = FW_OFF + 8 * 512
FH_OFF = FF_OFF + 32 * 128
FT_OFF = FH_OFF + 16 * 128
FL_END = FT_OFF + 8 * 1024
WS_USED = FL_END
X_BYTES = S * D * 2
W1_BYTES = D * F * 2
W2_BYTES = F * D * 2
SEQ_BYTES = S * S * 2
HID_BYTES = D * D * 2
KA_X, KA_SRE, KA_SIM, KA_HRE, KA_HIM, KA_BX, KA_W1, KA_W2, KA_OUT, KA_DBG, KA_WS = [8 * i for i in range(11)]
```

```python
import sys
from asmlib import *
import asmlib
from layout import *
KN = "parallel_sum__spectral_fnet__dense_activation_relu__prompt"
HEADER = open(f"cdna_kernels/{KN}.s.ref").read().split("; Override launch")[0]
def build():
    import fused
    A = Asm()
    name = KN + "_kernel"
    hdr = HEADER + f"; @launch grid=(256,1,1) block=(512,1,1) lds={fused.LDS_TOTAL}\n"
    A('.amdgcn_target "amdgcn-amd-amdhsa--gfx950"\n.text')
    fused.gen(A, name)
    A('.section .rodata,"a"\n.p2align 6')
    A(kernel_desc(name, 256))
    return hdr + A.text()
if __name__ == "__main__":
    if "--prof" in sys.argv:
        sys.argv.remove("--prof"); asmlib.PROFILE = True
    if "--light" in sys.argv:
        sys.argv.remove("--light"); asmlib.PROFILE = True; asmlib.LIGHT = True
    for a in list(sys.argv):
        if a.startswith("-D"):
            sys.argv.remove(a); k, _, val = a[2:].partition("="); asmlib.OPT[k] = (int(val) if val.lstrip("-").isdigit() else val) if val else 1
    out = sys.argv[1] if len(sys.argv) > 1 else f"cdna_kernels/{KN}.s"
    open(out, "w").write(build())
    print("wrote", out)
```

```python
from asmlib import *
import asmlib
from layout import *

MFMA32 = "v_mfma_f32_32x32x16_bf16"
MFMA16 = "v_mfma_f32_16x16x32_bf16"
RING = 32768; NS = 4
SLOT = 20480; NS2 = 6
LX = NS2 * SLOT
LW = 132 * 1024
LST = 152 * 1024
LCS = LST + 1024
LCNT = LST + 2048
LDS_TOTAL = LCNT + 64
X_, SRE, SIM, HRE, HIM, WS = 4, 6, 8, 10, 12, 16
W1, W2, OUT, DBG = 64, 66, 68, 70
S_B, S_C, S_F0, S_J = 18, 19, 20, 21
S_T0, S_CT = 72, 73
S_SPIN = 74
SC = "sc1"
SPIN_MAX = 200000

MAGIC = 0x5A3C96E1
S_E, S_EM = 75, 76
S_XCC = 77
S_LOCAL = 78

def spin(A, name, vp, vaddr, srdp, xcc=False):
    A(f"{name}:")
    if xcc:
        A(f"v_xor_b32 v{vp+1}, s{S_EM}, v{vp+1}\nv_cmp_ne_u32 vcc, s{S_E}, v{vp}\nv_cmp_lt_u32 s[60:61], 15, v{vp+1}\ns_nop 3\ns_or_b64 vcc, vcc, s[60:61]")
    else:
        A(f"v_cmp_ne_u32 vcc, s{S_E}, v{vp}\nv_cmp_ne_u32 s[60:61], s{S_EM}, v{vp+1}\ns_nop 3\ns_or_b64 vcc, vcc, s[60:61]")
    A(f"s_cbranch_vccz {name}_ok")
    if opt("P2ONLY"): A(f"s_branch {name}_ok")
    A(f"s_sub_u32 s{S_SPIN}, s{S_SPIN}, 1\ns_cmp_eq_u32 s{S_SPIN}, 0\ns_cbranch_scc1 {name}_ok")
    A(f"s_sleep {opt('SLEEP', 4)}")
    A(f"buffer_load_dwordx2 v[{vp}:{vp+1}], v{vaddr}, s[{srdp}:{srdp+3}], 0 offen {SC}\ns_waitcnt vmcnt(0)")
    if opt("SPINSTAMP") == name: stamp(A)
    A(f"s_branch {name}\n{name}_ok:")

def store_flags(A, vaddr, nlanes, srdp, vt, xcc=False, local=None):
    if xcc:
        A(f"s_xor_b32 s62, s{S_EM}, s{S_XCC}\nv_mov_b32 v{vt}, s{S_E}\nv_mov_b32 v{vt+1}, s62\ns_mov_b64 exec, {(1 << nlanes) - 1}")
    else:
        A(f"v_mov_b32 v{vt}, s{S_E}\nv_mov_b32 v{vt+1}, s{S_EM}\ns_mov_b64 exec, {(1 << nlanes) - 1}")
    if local:
        A(f"s_cmp_eq_u32 s{S_LOCAL}, 1\ns_cbranch_scc1 {local}_fp")
    A(f"buffer_store_dwordx2 v[{vt}:{vt+1}], v{vaddr}, s[{srdp}:{srdp+3}], 0 offen {SC}")
    if local:
        A(f"s_branch {local}_fd\n{local}_fp:")
        A(f"buffer_store_dwordx2 v[{vt}:{vt+1}], v{vaddr}, s[{srdp}:{srdp+3}], 0 offen")
        A(f"{local}_fd:")
    A("s_mov_b64 exec, -1")

def flag_addr_h(A, v):
    A(f"s_lshl_b32 s62, s{S_B}, 4\ns_add_u32 s62, s62, s{S_C}\ns_lshl_b32 s62, s62, 3\ns_add_u32 s62, s62, {FH_OFF}\nv_mov_b32 v{v}, s62")
def flag_addr_t(A, v):
    A(f"s_lshl_b32 s62, s{S_C}, 4\ns_add_u32 s62, s62, s{S_B}\ns_lshl_b32 s62, s62, 3\ns_add_u32 s62, s62, {FT_OFF}")
    A(f"v_lshlrev_b32 v{v}, 10, v1\nv_add_u32 v{v}, s62, v{v}")
def flag_addr_early(A, v):
    A(f"s_lshl_b32 s62, s{S_B}, 4\ns_add_u32 s62, s62, s{S_C}\ns_lshl_b32 s62, s62, 3\ns_add_u32 s58, s62, {FR1_OFF}")
    A(f"s_lshl_b32 s62, s{S_C}, 4\ns_add_u32 s62, s62, s{S_B}\ns_lshl_b32 s62, s62, 3\ns_add_u32 s62, s62, {FC1_OFF}")
    A(f"s_cmp_eq_u32 s3, 1\ns_cselect_b32 s58, s62, s58\nv_mov_b32 v{v}, s58")

def epoch_ready(A):
    A("s_waitcnt lgkmcnt(0)")
    A(f"s_add_u32 s{S_E}, s{S_E}, 1\ns_xor_b32 s{S_EM}, s{S_E}, {MAGIC}")
    srd(A, 48, WS, WS_USED)

def lds_arrive(A, word, vt, sdst):
    A(f"v_mov_b32 v{vt}, {LCNT + 4*word}\nv_mov_b32 v{vt+1}, 1\ns_mov_b64 exec, 1")
    A(f"ds_add_rtn_u32 v{vt+1}, v{vt}, v{vt+1}\ns_waitcnt lgkmcnt(0)\ns_mov_b64 exec, -1\ns_nop 0")
    A(f"v_readfirstlane_b32 s{sdst}, v{vt+1}")
    A("s_nop 3")

def entry(A):
    A("s_cmp_ge_u32 s2, 256\ns_cbranch_scc1 L_end")
    A(f"s_load_dwordx4 s[4:7], s[0:1], {KA_X}")
    A(f"s_load_dwordx4 s[8:11], s[0:1], {KA_SIM}")
    A(f"s_load_dwordx2 s[12:13], s[0:1], {KA_HIM}")
    A(f"s_load_dwordx4 s[64:67], s[0:1], {KA_W1}")
    A(f"s_load_dwordx4 s[68:71], s[0:1], {KA_OUT}")
    A(f"s_load_dwordx2 s[16:17], s[0:1], {KA_WS}")
    A("v_lshrrev_b32 v2, 6, v0\nv_and_b32 v1, 63, v0\ns_nop 0\nv_readfirstlane_b32 s3, v2")
    A("s_and_b32 s24, s2, 7\ns_lshr_b32 s25, s2, 3\ns_lshr_b32 s27, s25, 3\ns_and_b32 s28, s25, 7")
    if opt("MAP1", 1):
        A(f"s_lshl_b32 s26, s24, 1\ns_lshr_b32 s29, s25, 4\ns_add_u32 s{S_B}, s26, s29\ns_and_b32 s{S_C}, s25, 15")
    else:
        A(f"s_lshr_b32 s26, s24, 1\ns_lshl_b32 s26, s26, 2\ns_add_u32 s{S_B}, s26, s27")
        A(f"s_and_b32 s26, s24, 1\ns_lshl_b32 s26, s26, 3\ns_add_u32 s{S_C}, s26, s28")
    A(f"s_lshl_b32 s26, s{S_C}, 6\ns_lshl_b32 s29, s{S_C}, 7\ns_sub_u32 s29, s29, 320")
    A(f"s_cmp_lt_u32 s{S_C}, 5\ns_cselect_b32 s{S_F0}, s26, s29")
    A(f"s_lshl_b32 s24, s24, 2\ns_add_u32 s{S_T0}, s24, s27\ns_mov_b32 s{S_CT}, s28")
    A(f"s_mov_b32 s{S_SPIN}, {SPIN_MAX}")
    A(f"s_getreg_b32 s{S_XCC}, hwreg(HW_REG_XCC_ID)\ns_and_b32 s{S_XCC}, s{S_XCC}, 15")
    A("s_waitcnt lgkmcnt(0)")
    stamp_init(A)
    if opt("CLK"): A("s_memtime s[88:89]\ns_waitcnt lgkmcnt(0)")
    A(f"s_mov_b32 s62, {EP_OFF}\ns_load_dword s{S_E}, s[{WS}:{WS+1}], s62")
    stamp(A, 0)

def jobs_issue(A):
    srd(A, 24, X_, X_BYTES); srd(A, 28, W1, W1_BYTES); srd(A, 36, WS, WS_USED)
    A("s_cmp_eq_u32 s3, 0\ns_cbranch_scc1 J_x_i\ns_cmp_eq_u32 s3, 1\ns_cbranch_scc1 J_c_i\ns_branch J_i_done")
    A("J_x_i:")
    A(f"s_lshr_b32 s48, s{S_C}, 2\ns_and_b32 s49, s{S_C}, 3")
    A(f"s_lshl_b32 s50, s{S_B}, 1\ns_and_b32 s51, s48, 1\ns_add_u32 s50, s50, s51")
    A("s_lshr_b32 s51, s48, 1\ns_lshl_b32 s51, s51, 5\ns_add_u32 s50, s50, s51")
    A("s_lshl_b32 s51, s49, 9\ns_add_u32 s50, s50, s51\ns_mul_i32 s50, s50, 1280")
    A("v_lshrrev_b32 v22, 3, v1\ns_mov_b32 s51, 81920\nv_mul_lo_u32 v22, s51, v22")
    A("v_and_b32 v23, 7, v1\nv_lshlrev_b32 v23, 4, v23\nv_add_u32 v22, v22, v23")
    for i in range(10):
        A(f"buffer_load_dwordx4 v[{32+4*i}:{35+4*i}], v22, s[24:27], s50 offen offset:{128*i}")
    A(f"v_mov_b32 v22, {LCNT}\nv_mov_b32 v24, 0\nv_mov_b32 v25, 0\nv_mov_b32 v26, 0\nv_mov_b32 v27, 0\nds_write_b128 v22, v[24:27]\nds_write_b128 v22, v[24:27] offset:16")
    A("s_branch J_i_done")
    A("J_c_i:")
    A("v_lshrrev_b32 v22, 4, v1\nv_mul_u32_u24 v22, 3456, v22\nv_and_b32 v23, 15, v1\nv_lshlrev_b32 v23, 4, v23\nv_add_u32 v22, v22, v23")
    A(f"s_mul_i32 s50, s{S_B}, {40*3456}\ns_lshl_b32 s51, s{S_F0}, 1\ns_add_u32 s50, s50, s51")
    for i in range(10):
        A(f"buffer_load_dwordx4 v[{32+4*i}:{35+4*i}], v22, s[28:31], s50 offen")
        if i < 9: A(f"s_add_u32 s50, s50, {4*3456}")
    A(f"s_cmp_eq_u32 s{S_C}, 0\ns_cbranch_scc0 J_i_done")
    A("v_and_b32 v23, 7, v1\nv_lshlrev_b32 v23, 4, v23\nv_bfe_u32 v24, v1, 3, 2\nv_lshlrev_b32 v24, 15, v24\nv_add_u32 v23, v23, v24")
    A(f"v_add_u32 v23, {16384+8192+4096}, v23")
    A("v_mov_b32 v24, 0xbf803f80\nv_mov_b32 v25, 0x3f80bf80\nv_mov_b32 v26, 0xbf803f80\nv_mov_b32 v27, 0x3f80bf80")
    A("ds_write_b128 v23, v[24:27]")
    A("s_branch J_i_done")
    A("J_i_done:")

def dpp_add(A, r, ctrl):
    A(f"v_add_f32_dpp v{r}, v{r}, v{r} {ctrl} row_mask:0xf bank_mask:0xf")

def jobs_finish(A, nG_, tagx):
    nG = tagx
    class _N(str):
        pass
    A("s_cmp_eq_u32 s3, 0\ns_cbranch_scc1 %s\ns_cmp_eq_u32 s3, 1\ns_cbranch_scc1 %s\ns_branch %s" % (f"J_x_{nG}", f"J_c_{nG}", f"J_done_{nG}"))
    A(f"J_x_{nG}:")
    A("v_mov_b32 v22, 0\nv_mov_b32 v23, 0\nv_mov_b32 v24, 0\nv_mov_b32 v25, 0\ns_mov_b32 s52, 0x3f803f80")
    for i in range(10):
        A(f"s_waitcnt vmcnt({9-i+nG_})")
        for k in range(4):
            r = 32 + 4 * i + k
            A(f"v_dot2_f32_bf16 v{22+(k&1)}, v{r}, s52, v{22+(k&1)}")
            A(f"v_dot2_f32_bf16 v{24+(k&1)}, v{r}, v{r}, v{24+(k&1)}")
    A("s_nop 2\nv_add_f32 v22, v22, v23\nv_add_f32 v24, v24, v25\ns_nop 1")
    for ctrl in ["quad_perm:[1,0,3,2]", "quad_perm:[2,3,0,1]", "row_half_mirror"]:
        dpp_add(A, 22, ctrl); dpp_add(A, 24, ctrl); A("s_nop 0")
    A("s_mov_b32 s52, 0x3acccccd\nv_mul_f32 v22, s52, v22\nv_mul_f32 v24, s52, v24")
    A("v_fma_f32 v24, -v22, v22, v24\nv_max_f32 v24, 0, v24\nv_add_f32 v24, 0x3727c5ac, v24\nv_rsq_f32 v23, v24")
    A(f"s_lshl_b32 s52, s{S_B}, 10\ns_lshl_b32 s53, s{S_C}, 5\ns_add_u32 s52, s52, s53\ns_add_u32 s52, s52, {ST_OFF}")
    A("v_lshrrev_b32 v25, 3, v1\nv_lshlrev_b32 v25, 2, v25")
    A("v_and_b32 v26, 7, v1\nv_cmp_eq_u32 vcc, 0, v26\ns_and_saveexec_b64 s[54:55], vcc")
    A(f"buffer_store_dword v22, v25, s[36:39], s52 offen {SC}\nbuffer_store_dword v23, v25, s[36:39], s52 offen offset:512 {SC}")
    A("s_mov_b64 exec, s[54:55]")
    A(f"s_branch J_done_{nG}")
    A(f"J_c_{nG}:")
    for k in range(8): A(f"v_mov_b32 v{72+k}, 0")
    A("s_mov_b32 s52, 0x00003f80\ns_mov_b32 s53, 0x3f800000")
    for i in range(10):
        A(f"s_waitcnt vmcnt({9-i+nG_})")
        for k in range(4):
            r = 32 + 4 * i + k
            A(f"v_dot2_f32_bf16 v{72+2*k}, v{r}, s52, v{72+2*k}")
            A(f"v_dot2_f32_bf16 v{73+2*k}, v{r}, s53, v{73+2*k}")
    A("s_nop 2")
    for sw in ["v_permlane16_swap_b32", "v_permlane32_swap_b32"]:
        for k in range(8): A(f"v_mov_b32 v{80+k}, v{72+k}")
        A("s_nop 0")
        for k in range(8): A(f"{sw} v{72+k}, v{80+k}")
        A("s_nop 0")
        for k in range(8): A(f"v_add_f32 v{72+k}, v{72+k}, v{80+k}")
    A(f"s_lshl_b32 s52, s{S_B}, 13\ns_lshl_b32 s53, s{S_F0}, 2\ns_add_u32 s52, s52, s53\ns_add_u32 s52, s52, {CS_OFF}")
    A(f"v_lshlrev_b32 v22, 5, v1\ns_mov_b32 s53, 16\ns_cmp_lt_u32 s{S_C}, 5\ns_cselect_b32 s53, 8, s53")
    A("v_cmp_gt_u32 vcc, s53, v1\ns_and_saveexec_b64 s[54:55], vcc")
    A(f"buffer_store_dwordx4 v[72:75], v22, s[36:39], s52 offen {SC}\nbuffer_store_dwordx4 v[76:79], v22, s[36:39], s52 offen offset:16 {SC}")
    A("s_mov_b64 exec, s[54:55]")
    A(f"s_branch J_done_{nG}")
    A(f"J_done_{nG}:")

def x_addr(A, dst, rowbase_sgpr, tmp):
    A(f"v_and_b32 v{tmp}, 31, v1\nv_add_u32 v{tmp+1}, s{rowbase_sgpr}, v{tmp}\nv_lshlrev_b32 v{tmp+1}, 7, v{tmp+1}")
    A(f"v_bfe_u32 v{tmp}, v1, 1, 3\nv_lshrrev_b32 v{tmp+2}, 5, v1\nv_xor_b32 v{tmp}, v{tmp}, v{tmp+2}")
    A(f"v_lshlrev_b32 v{tmp}, 4, v{tmp}\nv_add_u32 v{dst}, v{tmp+1}, v{tmp}")
    for j in range(1, 4):
        A(f"v_xor_b32 v{dst+j}, {32*j}, v{dst}")
def h_tr_addr(A, dst, tmp):
    A(f"v_bfe_u32 v{tmp}, v1, 5, 1\nv_lshlrev_b32 v{tmp}, 3, v{tmp}\nv_bfe_u32 v{tmp+1}, v1, 2, 2\nv_add_u32 v{tmp}, v{tmp}, v{tmp+1}")
    A(f"v_lshlrev_b32 v{tmp}, 7, v{tmp}")
    A(f"v_bfe_u32 v{tmp+1}, v1, 4, 1\nv_lshlrev_b32 v{tmp+1}, 1, v{tmp+1}\nv_bfe_u32 v{tmp+2}, v1, 1, 1\nv_add_u32 v{tmp+1}, v{tmp+1}, v{tmp+2}")
    A(f"v_bfe_u32 v{tmp+2}, v1, 3, 1\nv_lshlrev_b32 v{tmp+2}, 2, v{tmp+2}\nv_xor_b32 v{tmp+1}, v{tmp+1}, v{tmp+2}")
    A(f"v_lshlrev_b32 v{tmp+1}, 4, v{tmp+1}\nv_add_u32 v{tmp}, v{tmp}, v{tmp+1}")
    A(f"v_and_b32 v{tmp+1}, 1, v1\nv_lshlrev_b32 v{tmp+1}, 3, v{tmp+1}\nv_add_u32 v{dst}, v{tmp}, v{tmp+1}")
def interleave(A, mfmas, fillers, per_gap):
    if opt("NOCOMP1"):
        for f in fillers:
            if not f.startswith("ds_read") and not f.startswith("v_perm"): A(f)
        return
    k = 0
    for i, m in enumerate(mfmas):
        A(m)
        for _ in range(per_gap[i]):
            if k < len(fillers):
                A(fillers[k]); k += 1
    while k < len(fillers):
        A(fillers[k]); k += 1
def h_epilogue_tile(A, acc, mr, cs, tmp, vaddr, soff):
    for i in range(0, 16, 2):
        A(f"v_pk_fma_f32 v[{acc+i}:{acc+i+1}], v[{cs+i}:{cs+i+1}], v[{mr}:{mr+1}], v[{acc+i}:{acc+i+1}] op_sel:[0,0,0] op_sel_hi:[1,0,1] neg_lo:[0,1,0] neg_hi:[0,1,0]")
    for i in range(0, 16, 2):
        A(f"v_pk_mul_f32 v[{acc+i}:{acc+i+1}], v[{acc+i}:{acc+i+1}], v[{mr}:{mr+1}] op_sel:[0,1] op_sel_hi:[1,1]")
    for i in range(0, 16, 2):
        A(f"v_cvt_pk_bf16_f32 v{tmp+i//2}, v{acc+i}, v{acc+i+1}")
    for i in range(8):
        A(f"v_pk_max_i16 v{tmp+i}, v{tmp+i}, 0")
    h_epilogue_tile.n += 1
    n = h_epilogue_tile.n
    A(f"s_cmp_eq_u32 s{S_LOCAL}, {1 if opt('LOCALH', 1) == 1 else 7}\ns_cbranch_scc1 L_hst{n}_p")
    A(f"buffer_store_dwordx4 v[{tmp}:{tmp+3}], v{vaddr}, s[36:39], s{soff} offen {SC}")
    A(f"buffer_store_dwordx4 v[{tmp+4}:{tmp+7}], v{vaddr}, s[36:39], s{soff} offen offset:512 {SC}")
    A(f"s_branch L_hst{n}_d\nL_hst{n}_p:")
    A(f"buffer_store_dwordx4 v[{tmp}:{tmp+3}], v{vaddr}, s[36:39], s{soff} offen")
    A(f"buffer_store_dwordx4 v[{tmp+4}:{tmp+7}], v{vaddr}, s[36:39], s{soff} offen offset:512")
    A(f"L_hst{n}_d:")
h_epilogue_tile.n = 0
def h_store_voff(A, dst, tmp):
    A(f"v_bfe_u32 v{tmp}, v1, 4, 1\nv_mul_u32_u24 v{tmp}, {58*1024}, v{tmp}")
    A(f"v_lshrrev_b32 v{tmp+1}, 5, v1\nv_lshlrev_b32 v{tmp+1}, 8, v{tmp+1}\nv_add_u32 v{tmp}, v{tmp}, v{tmp+1}")
    A(f"v_and_b32 v{tmp+1}, 15, v1\nv_lshlrev_b32 v{tmp+1}, 4, v{tmp+1}\nv_add_u32 v{dst}, v{tmp}, v{tmp+1}")

def loop_hooks_top(A, tag):
    A(f"s_cmp_eq_u32 s29, s30\ns_cbranch_scc1 {tag}_flag1\n{tag}_flag1_ret:")
def loop_hooks_init(A):
    A(f"s_cmp_lt_u32 s3, 2\ns_cselect_b32 s30, {10 - opt('EARLY_IT', 1)}, 99")
def loop_hooks_ool(A, tag):
    A(f"{tag}_flag1:")
    flag_addr_early(A, 28)
    A("s_waitcnt vmcnt(0)")
    store_flags(A, 28, 1, 48, 30, xcc=True)
    A(f"s_branch {tag}_flag1_ret")

def publish(A, tag, word, kind, vt):
    A("s_waitcnt vmcnt(0)")
    lds_arrive(A, word, vt, 63)
    A(f"s_cmp_eq_u32 s63, 3\ns_cbranch_scc0 {tag}_np")
    if kind == "h":
        flag_addr_h(A, vt - 1); store_flags(A, vt - 1, 1, 48, vt, xcc=True, local=(tag if opt("LOCALF", 1) else None))
    else:
        flag_addr_t(A, vt - 1); store_flags(A, vt - 1, 8, 48, vt)
    A(f"{tag}_np:")

def p1_hh(A):
    A("L_hh:")
    ACC = 128; P, Q = 32, 64
    XB, WB = 2, 6; XC, WC = 8, 12
    A("s_lshr_b32 s24, s3, 1\ns_and_b32 s25, s3, 1")
    A("s_lshl_b32 s26, s24, 6")
    x_addr(A, XB, 26, 20)
    h_tr_addr(A, WB, 20)
    A("s_lshl_b32 s27, s25, 13\ns_add_u32 s27, s27, 16384")
    A(f"v_add_u32 v{WB}, s27, v{WB}\nv_xor_b32 v{WB+1}, 64, v{WB}")
    for i in range(64): A(f"v_mov_b32 v{ACC+i}, 0")
    for j in range(4): A(f"v_mov_b32 v{XC+j}, v{XB+j}")
    for j in range(2): A(f"v_mov_b32 v{WC+j}, v{WB+j}")
    jobs_finish(A, 0, 'h')
    epoch_ready(A)
    A("s_mov_b32 s28, 0")
    loop_hooks_init(A)
    def reads(buf, g):
        out = []
        for jj in range(2):
            j = 2 * g + jj; b = buf + 16 * jj
            out.append(f"ds_read_b128 v[{b}:{b+3}], v{XC+j}")
            out.append(f"ds_read_b64_tr_b16 v[{b+8}:{b+9}], v{WC} offset:{j*2048}")
            out.append(f"ds_read_b64_tr_b16 v[{b+10}:{b+11}], v{WC} offset:{j*2048+512}")
            out.append(f"ds_read_b128 v[{b+4}:{b+7}], v{XC+j} offset:4096")
            out.append(f"ds_read_b64_tr_b16 v[{b+12}:{b+13}], v{WC+1} offset:{j*2048}")
            out.append(f"ds_read_b64_tr_b16 v[{b+14}:{b+15}], v{WC+1} offset:{j*2048+512}")
        return out
    def mfmas(buf):
        out = []
        for jj in range(2):
            b = buf + 16 * jj
            for ft in range(2):
                for st in range(2):
                    a = ACC + 16 * (2 * ft + st)
                    out.append(f"{MFMA32} v[{a}:{a+15}], v[{b+8+4*ft}:{b+11+4*ft}], v[{b+4*st}:{b+3+4*st}], v[{a}:{a+15}]")
        return out
    stamp(A, 1)
    A("s_waitcnt lgkmcnt(0)\ns_barrier")
    stamp(A, 2)
    for r in reads(P, 0):
        if not opt("NOCOMP1"): A(r)
    A("s_mov_b32 s29, 10")
    A("L_hh_loop:")
    loop_hooks_top(A, "L_hh")
    A("s_waitcnt lgkmcnt(0)")
    upd = [f"v_add_u32 v{XC+j}, s28, v{XB+j}" for j in range(4)] + [f"v_add_u32 v{WC+j}, s28, v{WB+j}" for j in range(2)]
    ring = [f"s_add_u32 s28, s28, {RING}", f"s_and_b32 s28, s28, {NS*RING-1}"]
    interleave(A, mfmas(P), reads(Q, 1) + ring + upd, [3, 3, 3, 3, 2, 3, 3, 0])
    A("s_waitcnt lgkmcnt(0)")
    A("s_barrier")
    interleave(A, mfmas(Q), reads(P, 0), [3, 3, 3, 3, 0, 0, 0, 0])
    A("s_sub_u32 s29, s29, 1\ns_cmp_lg_u32 s29, 0\ns_cbranch_scc1 L_hh_loop")
    A("s_waitcnt lgkmcnt(0)")
    stamp(A, 3)
    A(f"v_and_b32 v20, 31, v1\nv_add_u32 v20, s26, v20\nv_lshlrev_b32 v20, 2, v20\nv_add_u32 v20, {LST}, v20")
    A("ds_read_b32 v22, v20\nds_read_b32 v23, v20 offset:512\nds_read_b32 v24, v20 offset:128\nds_read_b32 v25, v20 offset:640")
    A(f"v_mov_b32 v27, {LCNT + 12}\nds_read_b32 v27, v27")
    A(f"v_lshrrev_b32 v21, 5, v1\nv_lshlrev_b32 v21, 4, v21\ns_lshl_b32 s30, s25, 8\ns_add_u32 s30, s30, {LCS}\nv_add_u32 v21, s30, v21")
    for ft in range(2):
        for q in range(4):
            b = 32 + 16 * ft + 4 * q
            A(f"ds_read_b128 v[{b}:{b+3}], v21 offset:{ft*128+q*32}")
    h_store_voff(A, 26, 28)
    A(f"s_lshl_b32 s31, s{S_B}, 3\ns_lshl_b32 s32, s24, 1\ns_add_u32 s31, s31, s32\ns_mul_i32 s31, s31, 58")
    A(f"s_lshr_b32 s32, s{S_F0}, 5\ns_lshl_b32 s33, s25, 1\ns_add_u32 s32, s32, s33\ns_add_u32 s31, s31, s32")
    A(f"s_lshl_b32 s31, s31, 10\ns_add_u32 s31, s31, {HF_OFF}")
    A("s_waitcnt lgkmcnt(0)")
    A(f"v_readfirstlane_b32 s{S_LOCAL}, v27")
    A("s_nop 7")
    for st in range(2):
        for ft in range(2):
            A(f"s_add_u32 s32, s31, {(st*4*58+ft)*1024}")
            h_epilogue_tile(A, ACC + 16 * (2 * ft + st), 22 + 2 * st, 32 + 16 * ft, 64 + 8 * ((2 * st + ft) & 3), 26, 32)
    stamp(A, 4)
    publish(A, "L_hh_pub", 0, "h", 30)
    stamp(A)
    stamp_flush(A, 0, WS, 9)
    A("s_endpgm")
    loop_hooks_ool(A, "L_hh")

def p1_mx(A):
    A("L_mx:")
    P, Q = 32, 72
    EV, OD = 112, 116
    CE, CO, SE, SO = 120, 124, 128, 132
    HA, HB = 136, 152
    EC, ES, OC, OS = 168, 184, 200, 216
    G = 232
    XAB, WHB = 2, 6
    XAC, XBC, DAC, WHC = 7, 11, 15, 19
    A("v_and_b32 v24, 31, v1\nv_cvt_f32_u32 v24, v24\nv_lshrrev_b32 v25, 5, v1\nv_cvt_f32_u32 v25, v25")
    A("v_mul_f32 v25, 0x3e000000, v25\nv_mul_f32 v25, v25, v24")
    for p in range(2):
        for uh in range(2):
            for u2 in range(2):
                for k in range(2):
                    c = 16 * p + 8 * uh + 2 * u2 + k
                    import struct
                    lit = struct.unpack("<I", struct.pack("<f", c / 32.0))[0]
                    A(f"v_fmamk_f32 v26, v24, {lit:#x}, v25\nv_fract_f32 v26, v26")
                    A(f"v_cos_f32 v{28+k}, v26\nv_sin_f32 v{30+k}, v26")
                A("s_nop 0")
                A(f"v_cvt_pk_bf16_f32 v{G+4*p+2*uh+u2}, v28, v29\nv_cvt_pk_bf16_f32 v{G+16+4*p+2*uh+u2}, v30, v31")
    for i in range(8):
        A(f"v_xor_b32 v{G+8+i}, 0x80008000, v{G+16+i}")
    A("s_lshr_b32 s24, s3, 1\ns_and_b32 s25, s3, 1")
    A("s_lshl_b32 s26, s3, 5\ns_xor_b32 s27, s26, 32")
    x_addr(A, XAB, 26, 24)
    h_tr_addr(A, WHB, 24)
    A(f"s_lshl_b32 s30, s25, 6\nv_xor_b32 v{WHB}, s30, v{WHB}\nv_add_u32 v{WHB}, 16384, v{WHB}")
    for i in range(96): A(f"v_mov_b32 v{HA+i}, 0")
    A("s_lshl_b32 s31, s3, 12\ns_sub_u32 s31, 24576, s31")
    def upd():
        o = [f"v_add_u32 v{XAC+j}, s28, v{XAB+j}" for j in range(4)] + [f"v_add_u32 v{WHC}, s28, v{WHB}"]
        o += [f"v_xor_b32 v{XBC+j}, 0x1000, v{XAC+j}" for j in range(4)]
        o += [f"v_add_u32 v{DAC+j}, s31, v{XAC+j}" for j in range(4)]
        return o
    A("s_mov_b32 s28, 0")
    for t in upd(): A(t)
    jobs_finish(A, 0, 'm')
    epoch_ready(A)
    loop_hooks_init(A)
    A("s_mov_b32 s34, 0x05040100\ns_mov_b32 s35, 0x07060302")
    def reads(buf, m):
        out = []
        for jj in range(2):
            j = 2 * m + jj
            out.append(f"ds_read_b128 v[{buf+4*jj}:{buf+4*jj+3}], v{XAC+j}")
        for jj in range(2):
            j = 2 * m + jj
            out.append(f"ds_read_b64_tr_b16 v[{buf+16+4*jj}:{buf+17+4*jj}], v{WHC} offset:{j*2048}")
            out.append(f"ds_read_b64_tr_b16 v[{buf+18+4*jj}:{buf+19+4*jj}], v{WHC} offset:{j*2048+512}")
            out.append(f"ds_read_b128 v[{buf+8+4*jj}:{buf+11+4*jj}], v{XBC+j}")
        for jj in range(2):
            j = 2 * m + jj
            out.append(f"ds_read_b128 v[{buf+24+4*jj}:{buf+27+4*jj}], v{DAC+j}")
            out.append(f"ds_read_b128 v[{buf+32+4*jj}:{buf+35+4*jj}], v{DAC+j} offset:4096")
        return out
    def perms(src, e, o):
        ev = [f"v_perm_b32 v{e+k}, v{src+2*k+1}, v{src+2*k}, s34" for k in range(4)]
        od = [f"v_perm_b32 v{o+k}, v{src+2*k+1}, v{src+2*k}, s35" for k in range(4)]
        return ev, od
    def half(cur, nxt, m_next, extra):
        rd = reads(nxt, m_next)
        if opt("NOCOMP1"):
            for t in extra: A(t)
            return
        xe, xo = perms(cur, EV, OD); ce, co = perms(cur + 24, CE, CO); se, so = perms(cur + 32, SE, SO)
        H = []
        for jj in range(2):
            w = cur + 16 + 4 * jj
            H.append(f"{MFMA32} v[{HA}:{HA+15}], v[{w}:{w+3}], v[{cur+4*jj}:{cur+4*jj+3}], v[{HA}:{HA+15}]")
            H.append(f"{MFMA32} v[{HB}:{HB+15}], v[{w}:{w+3}], v[{cur+8+4*jj}:{cur+11+4*jj}], v[{HB}:{HB+15}]")
        Dm = [f"{MFMA32} v[{EC}:{EC+15}], v[{EV}:{EV+3}], v[{CE}:{CE+3}], v[{EC}:{EC+15}]",
              f"{MFMA32} v[{OC}:{OC+15}], v[{OD}:{OD+3}], v[{CO}:{CO+3}], v[{OC}:{OC+15}]",
              f"{MFMA32} v[{ES}:{ES+15}], v[{EV}:{EV+3}], v[{SE}:{SE+3}], v[{ES}:{ES+15}]",
              f"{MFMA32} v[{OS}:{OS+15}], v[{OD}:{OD+3}], v[{SO}:{SO+3}], v[{OS}:{OS+15}]"]
        gaps = [xe + rd[0:2], ce + rd[2:4], xo + rd[4:6], co + rd[6:8], se + rd[8:10], so + rd[10:12], extra[:8], extra[8:]]
        ms = H + Dm
        for i in range(8):
            A(ms[i])
            for t in gaps[i]: A(t)
    stamp(A, 1)
    A("s_waitcnt lgkmcnt(0)\ns_barrier")
    stamp(A, 2)
    for r in reads(P, 0):
        if not opt("NOCOMP1"): A(r)
    A("s_mov_b32 s29, 10")
    A("L_mx_loop:")
    loop_hooks_top(A, "L_mx")
    A("s_waitcnt lgkmcnt(0)")
    ring = [f"s_add_u32 s28, s28, {RING}", f"s_and_b32 s28, s28, {NS*RING-1}"]
    half(P, Q, 1, ring + upd())
    A("s_waitcnt lgkmcnt(0)")
    A("s_barrier")
    half(Q, P, 0, [])
    A("s_sub_u32 s29, s29, 1\ns_cmp_lg_u32 s29, 0\ns_cbranch_scc1 L_mx_loop")
    A("s_waitcnt lgkmcnt(0)")
    stamp(A, 3)
    A(f"v_and_b32 v24, 31, v1\nv_add_u32 v25, s26, v24\nv_lshlrev_b32 v25, 2, v25\nv_add_u32 v25, {LST}, v25")
    A(f"v_add_u32 v26, s27, v24\nv_lshlrev_b32 v26, 2, v26\nv_add_u32 v26, {LST}, v26")
    A("ds_read_b32 v2, v25\nds_read_b32 v3, v25 offset:512\nds_read_b32 v4, v26\nds_read_b32 v5, v26 offset:512")
    A(f"v_mov_b32 v7, {LCNT + 12}\nds_read_b32 v7, v7")
    A(f"v_lshrrev_b32 v27, 5, v1\nv_lshlrev_b32 v27, 4, v27\ns_lshl_b32 s30, s25, 7\ns_add_u32 s30, s30, {LCS}\nv_add_u32 v28, s30, v27")
    for q in range(4):
        A(f"ds_read_b128 v[{32+4*q}:{35+4*q}], v28 offset:{q*32}")
    A(f"s_lshl_b32 s30, s26, 2\ns_add_u32 s30, s30, {LST+512}\nv_add_u32 v28, s30, v27")
    for q in range(4):
        A(f"ds_read_b128 v[{48+4*q}:{51+4*q}], v28 offset:{q*32}")
    h_store_voff(A, 6, 28)
    A(f"s_lshl_b32 s31, s{S_B}, 3\ns_lshl_b32 s30, s24, 1\ns_add_u32 s31, s31, s30\ns_mul_i32 s31, s31, 58")
    A(f"s_lshr_b32 s30, s{S_F0}, 5\ns_add_u32 s30, s30, s25\ns_add_u32 s31, s31, s30")
    A(f"s_lshl_b32 s31, s31, 10\ns_add_u32 s31, s31, {HF_OFF}")
    A(f"s_mul_i32 s30, s25, {4*58*1024}\ns_add_u32 s32, s31, s30")
    A(f"s_xor_b32 s30, s25, 1\ns_mul_i32 s30, s30, {4*58*1024}\ns_add_u32 s33, s31, s30")
    A("s_waitcnt lgkmcnt(0)")
    A(f"v_readfirstlane_b32 s{S_LOCAL}, v7")
    A("s_nop 7")
    h_epilogue_tile(A, HA, 2, 32, 64, 6, 32)
    h_epilogue_tile(A, HB, 4, 32, 72, 6, 33)
    stamp(A, 4)
    if opt("MXPUB", 1): publish(A, "L_mx_pubh", 0, "h", 30)
    stamp(A)
    R = 48
    for i in range(0, 16, 2):
        for a in (EC, OC, ES, OS):
            A(f"v_pk_mul_f32 v[{a+i}:{a+i+1}], v[{a+i}:{a+i+1}], v[{R+i}:{R+i+1}]")
    T0, T1 = 80, 96
    for i in range(0, 16, 2):
        A(f"v_pk_add_f32 v[{T0+i}:{T0+i+1}], v[{EC+i}:{EC+i+1}], v[{OC+i}:{OC+i+1}]")
        A(f"v_pk_add_f32 v[{EC+i}:{EC+i+1}], v[{EC+i}:{EC+i+1}], v[{OC+i}:{OC+i+1}] neg_lo:[0,1] neg_hi:[0,1]")
        A(f"v_pk_add_f32 v[{T1+i}:{T1+i+1}], v[{ES+i}:{ES+i+1}], v[{OS+i}:{OS+i+1}]")
        A(f"v_pk_add_f32 v[{OC+i}:{OC+i+1}], v[{OS+i}:{OS+i+1}], v[{ES+i}:{ES+i+1}] neg_lo:[0,1] neg_hi:[0,1]")
    A("v_and_b32 v24, 31, v1\nv_cmp_eq_u32 s[40:41], 0, v24\ns_nop 3")
    A(f"s_cmp_eq_u32 s{S_C}, 0\ns_cselect_b64 s[40:41], s[40:41], 0\ns_cbranch_scc0 L_mx_nofix")
    for i in range(16):
        A(f"v_cndmask_b32 v{T0+i}, v{T0+i}, v{ES+i}, s[40:41]")
        A(f"v_cndmask_b32 v{T1+i}, v{T1+i}, v{OS+i}, s[40:41]")
        A(f"v_cndmask_b32_e64 v{OC+i}, v{OC+i}, 0, s[40:41]")
    A("L_mx_nofix:")
    ZB = 32
    for k, a in enumerate([T0, T1, EC, OC]):
        for i in range(0, 16, 2):
            A(f"v_cvt_pk_bf16_f32 v{ZB+8*k+i//2}, v{a+i}, v{a+i+1}")
    Fr = lambda p: f"v[{G+4*p}:{G+4*p+3}]"
    Fi = lambda p: f"v[{G+8+4*p}:{G+8+4*p+3}]"
    nFi = lambda p: f"v[{G+16+4*p}:{G+16+4*p+3}]"
    Z = lambda k, p: f"v[{ZB+8*k+4*p}:{ZB+8*k+4*p+3}]"
    TR = [EC, OC]; TI = [ES, OS]
    A("s_nop 1")
    for st_ in range(2):
        zr, zi = 2 * st_, 2 * st_ + 1
        tr, ti = TR[st_], TI[st_]
        A(f"{MFMA32} v[{tr}:{tr+15}], {Fr(0)}, {Z(zr,0)}, 0")
        A(f"{MFMA32} v[{ti}:{ti+15}], {Fr(0)}, {Z(zi,0)}, 0")
        A(f"{MFMA32} v[{tr}:{tr+15}], {Fr(1)}, {Z(zr,1)}, v[{tr}:{tr+15}]")
        A(f"{MFMA32} v[{ti}:{ti+15}], {Fr(1)}, {Z(zi,1)}, v[{ti}:{ti+15}]")
        A(f"{MFMA32} v[{tr}:{tr+15}], {nFi(0)}, {Z(zi,0)}, v[{tr}:{tr+15}]")
        A(f"{MFMA32} v[{ti}:{ti+15}], {Fi(0)}, {Z(zr,0)}, v[{ti}:{ti+15}]")
        A(f"{MFMA32} v[{tr}:{tr+15}], {nFi(1)}, {Z(zi,1)}, v[{tr}:{tr+15}]")
        A(f"{MFMA32} v[{ti}:{ti+15}], {Fi(1)}, {Z(zr,1)}, v[{ti}:{ti+15}]")
    if not opt("MXPUB", 1): publish(A, "L_mx_pubh", 0, "h", 30)
    else: A("s_nop 7")
    stamp(A)
    A(f"v_and_b32 v24, 31, v1\nv_lshlrev_b32 v24, 2, v24\nv_lshrrev_b32 v25, 5, v1\nv_lshlrev_b32 v25, 9, v25\nv_add_u32 v24, v24, v25")
    A(f"s_lshl_b32 s30, s3, 13\ns_add_u32 s30, s30, {LX}\nv_add_u32 v24, s30, v24")
    A("s_nop 7")
    for st_ in range(2):
        for i in range(16):
            A(f"v_cvt_pk_bf16_f32 v{64+16*st_+i}, v{TR[st_]+i}, v{TI[st_]+i}")
    for st_ in range(2):
        for i in range(16):
            t0 = (i & 3) + 8 * (i >> 2)
            A(f"ds_write_b32 v24, v{64+16*st_+i} offset:{st_*4096+t0*128}")
    A("s_waitcnt lgkmcnt(0)")
    stamp(A)
    lds_arrive(A, 1, 30, 63)
    A(f"v_mov_b32 v30, {LCNT+4}")
    A("L_mx_rv:\nds_read_b32 v31, v30\ns_waitcnt lgkmcnt(0)\ns_nop 0\nv_readfirstlane_b32 s63, v31\ns_nop 3\ns_cmp_ge_u32 s63, 4\ns_cbranch_scc1 L_mx_rv_ok")
    A(f"s_sub_u32 s{S_SPIN}, s{S_SPIN}, 1\ns_cmp_eq_u32 s{S_SPIN}, 0\ns_cbranch_scc0 L_mx_rv\nL_mx_rv_ok:")
    A("v_and_b32 v24, 31, v1\nv_lshlrev_b32 v24, 2, v24\nv_lshrrev_b32 v25, 5, v1\nv_lshlrev_b32 v26, 7, v25\nv_add_u32 v24, v24, v26")
    A(f"s_lshl_b32 s30, s3, 10\ns_add_u32 s30, s30, {LX}\nv_add_u32 v24, s30, v24")
    for st_ in range(2):
        for n in range(4):
            b = 64 + 16 * st_ + 4 * n
            for w in range(4):
                A(f"ds_read_b32 v{b+w}, v24 offset:{w*8192+st_*4096+n*256}")
    A(f"v_and_b32 v26, 31, v1\ns_lshl_b32 s30, s{S_C}, 5\nv_add_u32 v27, s30, v26")
    A("v_mov_b32 v28, 160\nv_cndmask_b32 v29, v27, v28, s[40:41]")
    A("v_sub_u32 v27, 320, v27")
    A(f"s_mov_b32 s30, {TF_T0}\nv_mul_lo_u32 v25, s30, v25")
    A("v_lshlrev_b32 v29, 4, v29\nv_add_u32 v29, v29, v25")
    A("v_lshlrev_b32 v27, 4, v27\nv_add_u32 v27, v27, v25")
    A(f"s_mul_i32 s30, s3, {8*TF_T0}\ns_mul_i32 s31, s{S_B}, {TF_ROW}\ns_add_u32 s30, s30, s31\ns_add_u32 s30, s30, {TF_OFF}")
    A("s_waitcnt lgkmcnt(0)")
    for st_ in range(2):
        for n in range(4):
            b = 64 + 16 * st_ + 4 * n
            A(f"s_add_u32 s31, s30, {2*n*TF_T0}")
            A(f"buffer_store_dwordx4 v[{b}:{b+3}], v{29 if st_ == 0 else 27}, s[36:39], s31 offen {SC}")
    stamp(A)
    A(f"s_cmp_eq_u32 s{S_C}, 0\ns_cbranch_scc0 L_mx_noz\ns_cmp_eq_u32 s3, 0\ns_cbranch_scc0 L_mx_noz")
    A(f"s_mov_b32 s30, {TF_T0}\nv_and_b32 v24, 31, v1\nv_mul_lo_u32 v24, s30, v24")
    A("v_mov_b32 v4, 0\nv_mov_b32 v5, 0\nv_mov_b32 v6, 0\nv_mov_b32 v7, 0")
    A(f"s_mul_i32 s31, s{S_B}, {TF_ROW}\ns_add_u32 s31, s31, {TF_OFF}")
    A(f"buffer_store_dwordx4 v[4:7], v24, s[36:39], s31 offen {SC}")
    A("L_mx_noz:")
    publish(A, "L_mx_pubt", 2, "t", 30)
    stamp(A)
    stamp_flush(A, 0, WS, 9)
    A("s_endpgm")
    loop_hooks_ool(A, "L_mx")

def loader(A):
    A("L_loader:")
    A(f"s_sub_u32 s{S_J}, s3, 4")
    srd(A, 24, X_, X_BYTES)
    srd(A, 36, WS, WS_USED)
    for r in [11, 12, 13, 52, 53, 54, 55, 56, 57, 58, 59]: A(f"v_mov_b32 v{r}, 0")
    A("s_mov_b32 s58, 0\ns_mov_b32 s59, 99\ns_mov_b32 s63, 0")
    A("v_lshrrev_b32 v4, 3, v1\ns_mov_b32 s40, 81920\nv_mul_lo_u32 v8, s40, v4")
    A("v_and_b32 v5, 7, v1\nv_lshrrev_b32 v6, 4, v1\nv_xor_b32 v5, v5, v6\nv_lshlrev_b32 v5, 4, v5")
    A("v_add_u32 v2, v8, v5\nv_xor_b32 v7, 64, v5")
    A(f"v_add_u32 v3, v8, v7\nv_add_u32 v3, {8*81920}, v3")
    A(f"s_lshl_b32 s40, s{S_B}, 1\ns_and_b32 s41, s{S_J}, 1\ns_add_u32 s40, s40, s41")
    A(f"s_lshr_b32 s41, s{S_J}, 1\ns_lshl_b32 s41, s41, 5\ns_add_u32 s40, s40, s41")
    A(f"s_mul_i32 s40, s40, 1280\ns_add_u32 s41, s40, {16*81920}")
    A("s_mov_b64 s[56:57], -1")
    A(f"s_cmp_lt_u32 s{S_C}, 5\ns_cbranch_scc0 L_ld_H")
    A(f"s_cmp_ge_u32 s{S_J}, 2\ns_cbranch_scc0 L_ld_H")
    A(f"s_and_b32 s42, s{S_J}, 1\ns_cmp_eq_u32 s42, 0")
    A(f"s_cselect_b32 s28, s{HRE}, s{HIM}\ns_cselect_b32 s29, s{HRE+1}, s{HIM+1}")
    A(f"s_mov_b32 s30, {HID_BYTES}\ns_mov_b32 s31, 0x20000")
    A("v_mul_u32_u24 v8, 1280, v4\nv_add_u32 v9, v8, v5")
    A(f"v_add_u32 v10, v8, v7\nv_add_u32 v10, {8*1280}, v10")
    A(f"s_mul_i32 s42, s{S_C}, {32*1280}")
    A(f"s_mov_b32 s44, s42\ns_mov_b32 s45, s42\ns_add_u32 s46, s42, {16*1280}\ns_add_u32 s47, s42, {16*1280}")
    A("s_mov_b32 s43, 128")
    A(f"s_cmp_eq_u32 s{S_C}, 0\ns_cbranch_scc0 L_ld_go\ns_cmp_eq_u32 s{S_J}, 3\ns_cbranch_scc0 L_ld_go")
    A("s_mov_b32 s56, 0xffffff00")
    A("s_branch L_ld_go")
    A("L_ld_H:")
    srd(A, 28, W1, W1_BYTES)
    A("v_mul_u32_u24 v8, 3456, v4")
    A("v_and_b32 v9, 7, v1\nv_bfe_u32 v10, v1, 4, 1\nv_lshlrev_b32 v10, 2, v10\nv_xor_b32 v9, v9, v10")
    A("v_lshlrev_b32 v9, 4, v9\nv_add_u32 v9, v8, v9\nv_mov_b32 v10, v9")
    A(f"s_and_b32 s42, s{S_J}, 1\ns_mul_i32 s42, s42, {32*3456}")
    A(f"s_lshr_b32 s43, s{S_J}, 1\ns_lshl_b32 s43, s43, 6\ns_add_u32 s43, s43, s{S_F0}\ns_lshl_b32 s43, s43, 1")
    A("s_add_u32 s42, s42, s43")
    for q in range(4):
        A(f"s_add_u32 s{44+q}, s42, {8*q*3456}")
    A(f"s_mov_b32 s43, {64*3456}")
    A("L_ld_go:")
    A(f"s_lshl_b32 s48, s{S_J}, 12")
    def chunk(slot_reg):
        for q in range(4):
            A(f"s_add_u32 m0, s{slot_reg}, {q*1024}")
            A("s_nop 0")
            A(f"buffer_load_dwordx4 v{2+(q&1)}, s[24:27], s{40+(q>>1)} offen lds")
            A(f"s_add_u32 m0, s{slot_reg}, {16384+q*1024}")
            if q == 0: A("s_mov_b64 exec, s[56:57]")
            else: A("s_nop 0")
            A(f"buffer_load_dwordx4 v{9+(q&1)}, s[28:31], s{44+q} offen lds")
            if q == 0: A("s_mov_b64 exec, -1")
        A("s_add_u32 s40, s40, 128\ns_add_u32 s41, s41, 128")
        for q in range(4):
            A(f"s_add_u32 s{44+q}, s{44+q}, s43")
        A(f"s_add_u32 s{slot_reg}, s{slot_reg}, {RING}\ns_cmp_ge_u32 s{slot_reg}, {NS*RING}\ns_cselect_b32 s52, {NS*RING}, 0\ns_sub_u32 s{slot_reg}, s{slot_reg}, s52")
    A("s_mov_b32 s49, s48")
    chunk(49); chunk(49)
    stamp(A, 1)
    srd(A, 32, WS, WS_USED)
    A("s_waitcnt lgkmcnt(0)")
    A(f"s_add_u32 s{S_E}, s{S_E}, 1\ns_xor_b32 s{S_EM}, s{S_E}, {MAGIC}")
    A(f"s_cmp_ge_u32 s{S_J}, 2\ns_cbranch_scc0 L_ld_su01")
    A(f"s_sub_u32 s58, s{S_J}, 2\ns_lshl_b32 s59, s{S_T0}, 1\ns_add_u32 s59, s59, s58")
    A("s_mov_b32 s50, 6554\ns_mov_b32 s53, 1280")
    for q in range(5):
        A(f"v_add_u32 v22, {64*q}, v1")
        A("v_mul_lo_u32 v23, s50, v22\nv_lshrrev_b32 v23, 16, v23")
        A("v_mul_u32_u24 v24, 10, v23\nv_sub_u32 v24, v22, v24\nv_lshlrev_b32 v24, 4, v24")
        A(f"v_mul_lo_u32 v23, s53, v23\nv_add_u32 v{52+q}, v23, v24")
    A("v_lshrrev_b32 v23, 4, v1\nv_lshrrev_b32 v24, 1, v23\nv_lshlrev_b32 v24, 4, v24")
    A("v_and_b32 v25, 1, v23\nv_lshlrev_b32 v25, 2, v25\nv_add_u32 v24, v24, v25\nv_bfe_u32 v25, v1, 2, 2\nv_add_u32 v24, v24, v25")
    A("v_mul_u32_u24 v24, 160, v24\nv_and_b32 v25, 3, v1\nv_lshlrev_b32 v25, 3, v25\nv_add_u32 v24, v24, v25")
    A(f"s_mul_i32 s50, s58, 5120\ns_add_u32 s50, s50, {LW}\nv_add_u32 v57, s50, v24")
    A(f"s_lshl_b32 s50, s{S_CT}, 1\ns_add_u32 s50, s50, s58\ns_lshr_b32 s53, s50, 2\ns_and_b32 s50, s50, 3")
    A(f"s_lshr_b32 s54, s53, 1\ns_lshl_b32 s54, s54, 5\ns_add_u32 s54, s54, s{S_T0}")
    A("s_and_b32 s55, s53, 1\ns_lshl_b32 s55, s55, 10\ns_add_u32 s54, s54, s55")
    A("v_and_b32 v22, 15, v1\nv_lshlrev_b32 v22, 6, v22\nv_add_u32 v22, s54, v22")
    A("s_lshl_b32 s55, s50, 3\nv_lshrrev_b32 v23, 4, v1\nv_lshlrev_b32 v23, 1, v23\nv_add_u32 v23, s55, v23")
    A("s_mov_b32 s55, 0x3a000000")
    for k, ds in enumerate([0, 1, 32, 33]):
        A(f"v_add_u32 v24, {ds}, v23\nv_mul_u32_u24 v24, v22, v24\nv_and_b32 v24, 0x7ff, v24\nv_cvt_f32_u32 v24, v24\nv_mul_f32 v24, s55, v24")
        A(f"v_cos_f32 v25, v24\nv_sin_f32 v26, v24\ns_nop 0\nv_cvt_pk_bf16_f32 v{60+k}, v25, -v26")
    A(f"s_lshl_b32 s63, s{S_T0}, 2\ns_add_u32 s63, s63, s53\ns_mul_i32 s63, s63, 58\ns_add_u32 s63, s63, s50\ns_add_u32 s63, s63, 54")
    A(f"s_lshl_b32 s63, s63, 10\ns_add_u32 s63, s63, {HF_OFF}")
    A(f"s_lshl_b32 s50, s{S_CT}, 6\ns_add_u32 s50, s50, s59\ns_lshl_b32 s50, s50, 3\ns_add_u32 s50, s50, {FW_OFF}\nv_mov_b32 v58, s50")
    A(f"s_lshl_b32 s50, s{S_T0}, 4\ns_lshl_b32 s53, s{S_CT}, 1\ns_add_u32 s50, s50, s53\ns_add_u32 s50, s50, s58\ns_lshl_b32 s50, s50, 3\ns_add_u32 s50, s50, {FF_OFF}\nv_mov_b32 v59, s50")
    A("v_cmp_eq_u32 vcc, 1, v1\ns_nop 1\nv_cndmask_b32 v58, v58, v59, vcc")
    A("s_branch L_ld_sud")
    A("L_ld_su01:")
    A("v_lshlrev_b32 v13, 3, v1\nv_and_b32 v16, 31, v1\nv_lshlrev_b32 v15, 3, v16")
    A(f"s_lshl_b32 s50, s{S_B}, 7\ns_add_u32 s50, s50, {FR1_OFF}\nv_add_u32 v12, s50, v15")
    A(f"s_lshl_b32 s50, s{S_C}, 7\ns_add_u32 s50, s50, {FC1_OFF-128}\nv_add_u32 v15, s50, v15")
    A("v_cmp_le_u32 vcc, 16, v16\ns_nop 1\nv_cndmask_b32 v12, v12, v15, vcc")
    A(f"s_lshl_b32 s50, s{S_CT}, 9\ns_add_u32 s50, s50, {FW_OFF}\nv_add_u32 v11, s50, v13")
    A(f"s_lshl_b32 s50, s{S_T0}, 7\ns_add_u32 s50, s50, {FF_OFF}\nv_and_b32 v14, 15, v1\nv_lshlrev_b32 v14, 3, v14\nv_add_u32 v59, s50, v14")
    A("L_ld_sud:")
    A("s_waitcnt vmcnt(8)")
    stamp(A, 2)
    A("s_barrier")
    chunk(49)
    A("s_waitcnt vmcnt(8)\ns_barrier")
    stamp(A)
    pk = opt("POLLK", 5)
    assert pk in (5, 6)
    A(f"s_mov_b32 s53, 99\ns_mov_b32 s54, 99\ns_mov_b32 s55, 0\ns_mov_b32 s79, 99\ns_mov_b32 s81, 99")
    A(f"s_cmp_eq_u32 s{S_J}, 0\ns_cselect_b32 s53, {9-pk}, s53\ns_cselect_b32 s54, {9-pk-2}, s54\ns_cselect_b32 s55, {9-pk-1}, s55\ns_cselect_b32 s81, {9-pk-2}, s81")
    A(f"s_cmp_eq_u32 s{S_J}, 1\ns_cselect_b32 s53, {opt('FWPOLL', 1)}, s53")
    if opt("WSTAG", 1):
        A(f"s_lshr_b32 s62, s2, 3\ns_and_b32 s62, s62, {opt('WSTAG', 1)}")
    else:
        A("s_mov_b32 s62, 0")
    A("s_sub_u32 s50, 7, s62\ns_sub_u32 s60, 5, s62\ns_sub_u32 s61, 4, s62")
    A(f"s_cmp_ge_u32 s{S_J}, 2\ns_cselect_b32 s53, s50, s53\ns_cselect_b32 s54, s60, s54\ns_cselect_b32 s79, s61, s79")
    A("s_mov_b32 s51, 7")
    A("L_ld_loop:")
    A("s_cmp_eq_u32 s51, s54\ns_cbranch_scc1 L_ld_h2\nL_ld_h2_ret:")
    A("s_cmp_eq_u32 s51, s79\ns_cbranch_scc1 L_ld_h3\nL_ld_h3_ret:")
    chunk(49)
    A("s_cmp_eq_u32 s51, s53\ns_cbranch_scc1 L_ld_h1\nL_ld_h1_ret:")
    A("s_cmp_eq_u32 s51, s81\ns_cbranch_scc1 L_ld_h4\nL_ld_h4_ret:")
    A("s_cmp_lt_u32 s51, s55\ns_cbranch_scc1 L_ld_w25")
    A("s_waitcnt vmcnt(8)\ns_branch L_ld_wd\nL_ld_w25:\ns_waitcnt vmcnt(17)\nL_ld_wd:")
    stamp(A)
    A("s_barrier")
    stamp(A)
    A("s_sub_u32 s51, s51, 1\ns_cmp_lg_u32 s51, 0\ns_cbranch_scc1 L_ld_loop")
    A("s_waitcnt vmcnt(0)")
    A(f"s_cmp_eq_u32 s{S_J}, 1\ns_cbranch_scc0 L_ld_no1")
    spin(A, "L_ld_spw", 48, 11, 32, xcc=True)
    spin(A, "L_ld_spf", 50, 59, 32, xcc=True)
    A("L_ld_no1:")
    A(f"s_cmp_eq_u32 s{S_J}, 0\ns_cbranch_scc0 L_ld_nored")
    for b_ in range(1, 8):
        for k in range(4): A(f"v_add_f32 v{16+k}, v{16+k}, v{16+4*b_+k}")
    for k in range(4): A(f"v_mov_b32 v{20+k}, v{16+k}")
    A("s_nop 1")
    for k in range(4): A(f"v_permlane32_swap_b32 v{16+k}, v{20+k}")
    A("s_nop 0")
    for k in range(4): A(f"v_add_f32 v{16+k}, v{16+k}, v{20+k}")
    A(f"v_add_u32 v13, {LCS}, v13\nds_write_b128 v13, v[16:19]\ns_waitcnt lgkmcnt(0)")
    A("L_ld_nored:")
    A("s_barrier")
    stamp(A)
    A("s_barrier")
    A("s_branch L_ld_p2")
    A("L_ld_h1:")
    A(f"s_cmp_ge_u32 s{S_J}, 2\ns_cbranch_scc1 L_ld_h1w")
    A(f"s_cmp_eq_u32 s{S_J}, 1\ns_cbranch_scc1 L_ld_h1f")
    A(f"buffer_load_dwordx2 v[14:15], v12, s[32:35], 0 offen {SC}")
    A("s_branch L_ld_h1_ret")
    A("L_ld_h1f:")
    A(f"buffer_load_dwordx2 v[48:49], v11, s[32:35], 0 offen {SC}")
    A(f"buffer_load_dwordx2 v[50:51], v59, s[32:35], 0 offen {SC}")
    A("s_branch L_ld_h1_ret")
    A("L_ld_h1w:")
    if opt("NOW"): A("s_branch L_ld_h1_ret")
    A("s_cmp_ge_u32 s59, 54\ns_cbranch_scc1 L_ld_h1_ret")
    srd(A, 84, W2, W2_BYTES)
    A(f"s_mul_i32 s50, s59, 40960\ns_mul_i32 s62, s{S_CT}, 160\ns_add_u32 s50, s50, s62")
    A(f"s_mul_i32 s62, s58, 5120\ns_add_u32 s62, s62, {LW}")
    for q in range(5):
        A(f"s_add_u32 m0, s62, {1024*q}\ns_nop 0")
        A(f"buffer_load_dwordx4 v{52+q}, s[84:87], s50 offen lds")
    A("s_branch L_ld_h1_ret")
    A("L_ld_h2:")
    A(f"s_cmp_ge_u32 s{S_J}, 2\ns_cbranch_scc1 L_ld_h2w")
    spin(A, "L_ld_sp", 14, 12, 32, xcc=True)
    A(f"v_and_b32 v50, 16, v1\nv_cmp_eq_u32 s[60:61], 0, v50\nv_cmp_ne_u32 vcc, s{S_XCC}, v15\ns_nop 3\ns_and_b64 vcc, vcc, s[60:61]")
    A(f"s_cmp_eq_u64 vcc, 0\ns_cselect_b32 s62, {1 if opt('LOCALH', 1) and opt('MAP1', 1) else 0}, 0")
    A(f"v_mov_b32 v50, {LCNT + 12}\nv_mov_b32 v51, s62\nds_write_b32 v50, v51")
    A("s_branch L_ld_h2_ret")
    A("L_ld_h4:")
    A(f"s_lshl_b32 s50, s{S_B}, 10\ns_add_u32 s50, s50, {ST_OFF}\ns_mov_b32 m0, {LST}\nv_lshlrev_b32 v13, 4, v1")
    A(f"buffer_load_dwordx4 v13, s[36:39], s50 offen {SC} lds")
    A(f"s_lshl_b32 s50, s{S_F0}, 2\ns_add_u32 s50, s50, {CS_OFF}")
    A("v_and_b32 v13, 31, v1\nv_lshlrev_b32 v13, 4, v13\nv_lshrrev_b32 v14, 5, v1\nv_lshlrev_b32 v14, 13, v14\nv_add_u32 v14, v13, v14")
    for b_ in range(8):
        A(f"buffer_load_dwordx4 v[{16+4*b_}:{19+4*b_}], v14, s[36:39], s50 offen {SC}")
        if b_ < 7: A("s_add_u32 s50, s50, 16384")
    A("s_branch L_ld_h4_ret")
    A("L_ld_h2w:")
    A(f"v_lshlrev_b32 v22, 4, v1\nbuffer_store_dwordx4 v[60:63], v22, s[32:35], s63 offen {SC}")
    if opt("NOW"): A("s_branch L_ld_h2_ret")
    A("s_cmp_ge_u32 s59, 54\ns_cbranch_scc1 L_ld_h2_ret")
    for n in range(5):
        A(f"ds_read_b64_tr_b16 v[{24+4*n}:{25+4*n}], v57 offset:{32*n}")
        A(f"ds_read_b64_tr_b16 v[{26+4*n}:{27+4*n}], v57 offset:{32*n+1280}")
    A(f"s_mul_i32 s50, s{S_CT}, 54\ns_add_u32 s50, s50, s59\ns_mul_i32 s50, s50, 5120\ns_add_u32 s50, s50, {W2F_OFF}")
    A("v_add_u32 v23, 4096, v22\ns_waitcnt lgkmcnt(0)")
    for n in range(4):
        A(f"buffer_store_dwordx4 v[{24+4*n}:{27+4*n}], v22, s[32:35], s50 offen offset:{1024*n} {SC}")
    A(f"buffer_store_dwordx4 v[40:43], v23, s[32:35], s50 offen {SC}")
    A("s_branch L_ld_h2_ret")
    A("L_ld_h3:")
    store_flags(A, 58, 2, 32, 64, xcc=True)
    A("s_branch L_ld_h3_ret")
    A("L_ld_p2:")
    stamp(A, 3)
    p2(A)

def p2(A):
    J = S_J
    HSC = "" if opt("HPLAIN") else SC
    WSC = "" if opt("WPLAIN") else SC
    ACC = 16
    SET = [96, 132, 168]
    XR = 204
    VP = 214
    acc = lambda nt, a: ACC + 4 * (4 * nt + a)
    srd(A, 24, WS, WS_USED)
    srd(A, 28, WS, 4 * HF_TILE)
    A(f"s_mul_i32 s50, s{S_T0}, {4*HF_TILE}")
    if HF_OFF: A(f"s_add_u32 s50, s50, {HF_OFF}")
    A("s_add_u32 s28, s28, s50\ns_addc_u32 s29, s29, 0")
    srd(A, 32, X_, X_BYTES)
    srd(A, 40, OUT, X_BYTES)
    A("v_lshlrev_b32 v2, 4, v1\nv_add_u32 v3, 4096, v2")
    for a_ in range(4):
        A(f"s_add_u32 s50, s{J}, {a_}\ns_and_b32 s50, s50, 3\ns_mul_i32 s50, s50, {HF_TILE}\nv_add_u32 v{4+a_}, s50, v2")
    A("v_and_b32 v8, 15, v1\ns_mov_b32 s50, 81920\nv_mul_lo_u32 v8, s50, v8")
    A("v_lshrrev_b32 v9, 4, v1\nv_lshlrev_b32 v9, 3, v9\nv_add_u32 v8, v8, v9")
    A(f"s_lshr_b32 s38, s{J}, 1\ns_lshl_b32 s38, s38, 5\ns_add_u32 s38, s38, s{S_T0}")
    A(f"s_and_b32 s39, s{J}, 1\ns_lshl_b32 s39, s39, 10\ns_add_u32 s38, s38, s39\ns_mul_i32 s38, s38, 1280")
    A(f"s_mul_i32 s39, s{S_CT}, 160\ns_add_u32 s38, s38, s39")
    rotn = opt("ROT2", 2)
    A(f"s_and_b32 s50, s{S_T0}, {rotn - 1 if rotn else 0}\ns_mul_i32 s50, s50, {14 // rotn if rotn else 0}")
    A(f"s_lshl_b32 s50, s50, 2\ns_add_u32 s44, s50, s{J}\ns_mov_b32 s45, s44")
    A(f"s_mul_i32 s49, s{S_CT}, {54*5120}\ns_add_u32 s49, s49, {W2F_OFF}")
    def adv(r):
        A(f"s_add_u32 s{r}, s{r}, 4\ns_cmp_ge_u32 s{r}, 54\ns_cselect_b32 s{r}, s{J}, s{r}")
    def loadB(si):
        b = SET[si]
        A("s_mul_i32 s50, s44, 5120\ns_add_u32 s50, s50, s49")
        for n in range(4):
            A(f"buffer_load_dwordx4 v[{b+4*n}:{b+4*n+3}], v2, s[24:27], s50 offen offset:{1024*n} {WSC}")
        A(f"buffer_load_dwordx4 v[{b+16}:{b+19}], v3, s[24:27], s50 offen {WSC}")
        adv(44)
    def loadA(si, tstep=False):
        b = SET[si] + 20
        if tstep:
            A(f"s_add_u32 s50, s{J}, 2\ns_and_b32 s50, s50, 3\ns_add_u32 s50, s50, 54\ns_lshl_b32 s50, s50, 10")
        else:
            A("s_lshl_b32 s50, s45, 10")
        for a_ in range(4):
            A(f"buffer_load_dwordx4 v[{b+4*a_}:{b+4*a_+3}], v{4+a_}, s[28:31], s50 offen {HSC}")
        if not tstep: adv(45)
    def loadT(si):
        b = SET[si]
        A("s_mov_b32 s50, s46")
        for n in range(5):
            A(f"buffer_load_dwordx4 v[{b+4*n}:{b+4*n+3}], v10, s[24:27], s50 offen {SC}")
            if n < 4: A("s_add_u32 s50, s50, s47")
    def mfmas(si):
        b = SET[si]
        for a_ in range(4):
            for nt in range(5):
                c = acc(nt, a_)
                if not opt("NOCOMP2"):
                    A(f"{MFMA16} v[{c}:{c+3}], v[{b+4*nt}:{b+4*nt+3}], v[{b+20+4*a_}:{b+23+4*a_}], v[{c}:{c+3}]")
    def xorA(si):
        b = SET[si] + 20
        for k in range(16): A(f"v_xor_b32 v{b+k}, s48, v{b+k}")
        A("s_nop 0")
    NB0 = opt("NB0", 2)
    for si in range(NB0): loadB(si)
    for i in range(80): A(f"v_mov_b32 v{ACC+i}, 0")
    A(f"v_lshrrev_b32 v10, 4, v1\nv_mul_u32_u24 v10, {TF_ROW}, v10\nv_and_b32 v11, 15, v1")
    A(f"s_mul_i32 s50, s{S_CT}, 80\nv_add_u32 v12, s50, v11\nv_sub_u32 v13, 576, v12")
    A(f"s_cmp_lt_u32 s{S_CT}, 4\ns_cselect_b64 s[60:61], -1, 0\nv_cndmask_b32 v12, v13, v12, s[60:61]")
    A("v_lshlrev_b32 v12, 4, v12\nv_add_u32 v10, v10, v12")
    A(f"s_sub_u32 s46, 32, s{S_T0}\ns_and_b32 s46, s46, 31\ns_cmp_lt_u32 s{S_CT}, 4\ns_cselect_b32 s46, s{S_T0}, s46")
    A(f"s_mul_i32 s46, s46, {TF_T0}\ns_add_u32 s46, s46, {TF_OFF}")
    A(f"s_mov_b32 s47, 256\ns_mov_b32 s50, -256\ns_cmp_lt_u32 s{S_CT}, 4\ns_cselect_b32 s47, s47, s50\ns_cselect_b32 s50, 0, 1024\ns_cselect_b32 s48, 0x80000000, 0")
    A("s_add_u32 s46, s46, s50")
    A(f"s_add_u32 s50, s{J}, 2\ns_and_b32 s50, s50, 3\ns_mul_i32 s50, s50, {4*TF_ROW}\ns_add_u32 s46, s46, s50")
    A(f"s_lshl_b32 s50, s{S_CT}, 10\ns_add_u32 s50, s50, {FT_OFF}\nv_lshlrev_b32 v12, 3, v1\nv_add_u32 v12, s50, v12")
    A("v_and_b32 v13, 15, v1\nv_lshlrev_b32 v13, 3, v13\nv_add_u32 v13, s50, v13\nv_add_u32 v13, 512, v13")
    A(f"s_cmp_eq_u32 s{J}, 0\ns_cbranch_scc0 L_p2_lw")
    A(f"s_lshr_b32 s50, s{S_T0}, 1\ns_lshl_b32 s50, s50, 7\ns_add_u32 s50, s50, {FH_OFF}")
    A("v_and_b32 v14, 15, v1\nv_lshlrev_b32 v14, 3, v14\nv_add_u32 v11, s50, v14")
    A(f"buffer_load_dwordx2 v[{VP}:{VP+1}], v11, s[24:27], 0 offen {SC}\ns_waitcnt vmcnt(0)")
    if opt("SPINSTAMP") == "L_p2_sp1": stamp(A)
    spin(A, "L_p2_sp1", VP, 11, 24, xcc=True)
    A(f"v_mov_b32 v14, {LCNT + 16}\nv_mov_b32 v15, 1\nds_write_b32 v14, v15\ns_waitcnt lgkmcnt(0)")
    A("s_branch L_p2_go")
    A("L_p2_lw:")
    if opt("P2ONLY"): A("s_branch L_p2_go")
    A(f"v_mov_b32 v14, {LCNT + 16}")
    A("L_p2_lw1:\nds_read_b32 v15, v14\ns_waitcnt lgkmcnt(0)\ns_nop 0\nv_readfirstlane_b32 s50, v15\ns_nop 3\ns_cmp_eq_u32 s50, 1\ns_cbranch_scc1 L_p2_go")
    A(f"s_sleep 1\ns_sub_u32 s{S_SPIN}, s{S_SPIN}, 1\ns_cmp_eq_u32 s{S_SPIN}, 0\ns_cbranch_scc0 L_p2_lw1")
    A("L_p2_go:")
    stamp(A, 5)
    for si in range(NB0): loadA(si)
    for si in range(NB0, 3):
        loadB(si); loadA(si)
    def loadX():
        for n in range(5):
            A(f"buffer_load_dwordx2 v[{XR+2*n}:{XR+2*n+1}], v8, s[32:35], s38 offen offset:{32*n}")
    XLATE = opt("XLATE", 1)
    if not XLATE: loadX()
    def step(si, vm, pre):
        A(f"s_waitcnt vmcnt({vm})")
        mfmas(si)
        pre()
    reg = lambda si: (lambda: (loadB(si), loadA(si)))
    order = [(si, 4) for si in range(NB0)] + [(si, 9) for si in range(NB0, 3)] + ([] if XLATE else [(-1, 5)])
    for st_ in range(3):
        idx = max(i for i, (si, n) in enumerate(order) if si == st_)
        younger = sum(n for (si, n) in order[idx+1:]) + 9 * st_
        step(st_, younger, reg(st_))
        if opt("STEPSTAMP"): stamp(A)
    stamp(A)
    A("s_mov_b32 s51, 2")
    A("L_p2_loop:")
    for si in range(3):
        step(si, 18, reg(si))
        if opt("STEPSTAMP"): stamp(A)
    A("s_cmp_eq_u32 s51, 2\ns_cbranch_scc0 L_p2_nt")
    A(f"buffer_load_dwordx2 v[{VP}:{VP+1}], v12, s[24:27], 0 offen {SC}\nbuffer_load_dwordx2 v[{VP+2}:{VP+3}], v13, s[24:27], 0 offen {SC}")
    A("L_p2_nt:")
    A("s_sub_u32 s51, s51, 1\ns_cmp_lg_u32 s51, 0\ns_cbranch_scc1 L_p2_loop")
    stamp(A)
    step(0, 18, reg(0))
    spin(A, "L_p2_sp2", VP, 12, 24)
    spin(A, "L_p2_sp3", VP + 2, 13, 24)
    A(f"s_cmp_eq_u32 s2, 0\ns_cbranch_scc0 L_p2_noep\ns_cmp_eq_u32 s{J}, 0\ns_cbranch_scc0 L_p2_noep")
    A(f"v_mov_b32 v14, s{S_E}\nv_mov_b32 v15, {EP_OFF}\ns_mov_b64 exec, 1\nbuffer_store_dword v14, v15, s[24:27], 0 offen {SC}\ns_mov_b64 exec, -1")
    A("L_p2_noep:")
    stamp(A)
    A(f"s_cmp_lt_u32 s{J}, 2\ns_cbranch_scc0 L_p2_hi")
    step(1, 18, reg(1))
    step(2, 18, lambda: (loadT(2), loadA(2, True), loadX() if XLATE else None))
    xq = 5 if XLATE else 0
    step(0, 18 + xq, lambda: None)
    step(1, 9 + xq, lambda: None)
    A(f"s_waitcnt vmcnt({xq})"); xorA(2); mfmas(2)
    A("s_branch L_p2_red")
    A("L_p2_hi:")
    step(1, 18, lambda: (loadT(1), loadA(1, True), loadX() if XLATE else None))
    step(2, 18 + xq, lambda: None)
    step(0, 9 + xq, lambda: None)
    A(f"s_waitcnt vmcnt({xq})"); xorA(1); mfmas(1)
    A("L_p2_red:")
    stamp(A)
    A("s_nop 7")
    for a_ in range(1, 4):
        A(f"s_add_u32 s50, s{J}, {a_}\ns_and_b32 s50, s50, 3\ns_mul_i32 s50, s50, 3\ns_add_u32 s50, s50, {a_-1}\ns_mul_i32 s50, s50, 5120\nv_add_u32 v14, s50, v2")
        for nt in range(5):
            c = acc(nt, a_)
            A(f"ds_write_b128 v14, v[{c}:{c+3}] offset:{nt*1024}")
    A("s_waitcnt lgkmcnt(0)\ns_barrier")
    A(f"s_mul_i32 s50, s{J}, {3*5120}\nv_add_u32 v14, s50, v2")
    for pos in range(3):
        for nt in range(5):
            r = 96 + 20 * pos + 4 * nt
            A(f"ds_read_b128 v[{r}:{r+3}], v14 offset:{pos*5120+nt*1024}")
    for pos in range(3):
        A(f"s_waitcnt lgkmcnt({10 - 5*pos})")
        for nt in range(5):
            r = 96 + 20 * pos + 4 * nt; c = acc(nt, 0)
            for k in range(4): A(f"v_add_f32 v{c+k}, v{c+k}, v{r+k}")
    A("s_waitcnt vmcnt(0)")
    for n in range(5):
        c = acc(n, 0); x = XR + 2 * n; t = 168 + 4 * n
        A(f"v_lshlrev_b32 v{t}, 16, v{x}\nv_and_b32 v{t+1}, 0xffff0000, v{x}")
        A(f"v_lshlrev_b32 v{t+2}, 16, v{x+1}\nv_and_b32 v{t+3}, 0xffff0000, v{x+1}")
        for k in range(4): A(f"v_add_f32 v{t+k}, v{t+k}, v{c+k}")
        A(f"v_cvt_pk_bf16_f32 v{x}, v{t}, v{t+1}\nv_cvt_pk_bf16_f32 v{x+1}, v{t+2}, v{t+3}")
        A(f"buffer_store_dwordx2 v[{x}:{x+1}], v8, s[40:43], s38 offen offset:{32*n}")
    stamp(A)
    if opt("CLK") and asmlib.PROFILE:
        A("s_memtime s[90:91]\ns_waitcnt lgkmcnt(0)\ns_sub_u32 s90, s90, s88\ns_mov_b32 m0, 62\nv_writelane_b32 v0, s90, m0")
    stamp_flush(A, 0, WS, 9)
    A("s_endpgm")

def gen(A, name):
    kernel_head(A, name)
    entry(A)
    if opt("P2ONLY"):
        A(f"s_mov_b32 s{S_SPIN}, 1\ns_cmp_lt_u32 s3, 4\ns_cbranch_scc1 L_end\ns_sub_u32 s{S_J}, s3, 4\ns_waitcnt lgkmcnt(0)\ns_branch L_ld_p2")
    A("s_cmp_ge_u32 s3, 4\ns_cbranch_scc1 L_loader")
    jobs_issue(A)
    A(f"s_cmp_lt_u32 s{S_C}, 5\ns_cbranch_scc1 L_mx")
    p1_hh(A)
    p1_mx(A)
    loader(A)
    A("L_end:\ns_endpgm")
```

```python
class Asm:
    def __init__(self):
        self.lines = []
        self.drop = []
    def __call__(self, s=""):
        for l in s.split("\n"):
            if self.drop and any(l.strip().startswith(p) for p in self.drop): continue
            self.lines.append(l if (l.endswith(":") or l.startswith(".") or l.startswith(";")) else "  " + l)
    def c(self, s):
        self.lines.append("  ; " + s)
    def text(self):
        return "\n".join(self.lines) + "\n"

def v(a, n=1):
    return f"v{a}" if n == 1 else f"v[{a}:{a+n-1}]"
def s(a, n=1):
    return f"s{a}" if n == 1 else f"s[{a}:{a+n-1}]"

def srd(A, d, plo, nbytes, off=None):
    if off is None:
        A(f"s_mov_b32 s{d}, s{plo}\ns_mov_b32 s{d+1}, s{plo+1}")
    else:
        A(f"s_add_u32 s{d}, s{plo}, {off}\ns_addc_u32 s{d+1}, s{plo+1}, 0")
    A(f"s_mov_b32 s{d+2}, {nbytes}\ns_mov_b32 s{d+3}, 0x20000")

def kernel_head(A, name):
    A(f".globl {name}\n.p2align 8\n.type {name},@function\n{name}:")

def kernel_desc(name, vgpr, sgpr=102):
    return f""".amdhsa_kernel {name}
  .amdhsa_next_free_vgpr {vgpr}
  .amdhsa_next_free_sgpr {sgpr}
  .amdhsa_accum_offset {vgpr}
  .amdhsa_group_segment_fixed_size 0
  .amdhsa_kernarg_size 88
  .amdhsa_user_sgpr_count 2
  .amdhsa_user_sgpr_kernarg_segment_ptr 1
  .amdhsa_system_sgpr_workgroup_id_x 1
.end_amdhsa_kernel
"""


PROFILE = False
PROF_OFF = 64 << 20
def stamp_init(A):
    if PROFILE: A("s_mov_b32 s97, 0\nv_mov_b32 v0, 0")
LIGHT = False
def stamp(A, i=None, force=False):
    if PROFILE and (force or not LIGHT):
        A("s_memrealtime s[98:99]\ns_waitcnt lgkmcnt(0)\ns_mov_b32 m0, s97\nv_writelane_b32 v0, s98, m0\ns_add_u32 s97, s97, 1")
def stamp_flush(A, kid, ws_lo, n=6):
    if not PROFILE: return
    A("s_waitcnt vmcnt(0) lgkmcnt(0)")
    stamp(A, force=True)
    A(f"s_add_u32 s92, s{ws_lo}, {PROF_OFF}\ns_addc_u32 s93, s{ws_lo+1}, 0\ns_mov_b32 s94, 0x100000\ns_mov_b32 s95, 0x20000")
    A("s_lshl_b32 s96, s2, 3\ns_add_u32 s96, s96, s3\ns_lshl_b32 s96, s96, 8")
    A("v_lshlrev_b32 v1, 2, v1\nbuffer_store_dword v0, v1, s[92:95], s96 offen")
    A("s_waitcnt vmcnt(0)")

OPT = {}
def opt(name, default=None):
    return OPT.get(name, default)
```

```python
from asmlib import *
import asmlib
from layout import *

MFMA32 = "v_mfma_f32_32x32x16_bf16"
MFMA16 = "v_mfma_f32_16x16x32_bf16"
RING = 32768; NS = 4
SLOT = 20480; NS2 = 6
LX = NS2 * SLOT
LW = 132 * 1024
LST = 152 * 1024
LCS = LST + 1024
LCNT = LST + 2048
LDS_TOTAL = LCNT + 64
X_, SRE, SIM, HRE, HIM, WS = 4, 6, 8, 10, 12, 16
W1, W2, OUT, DBG = 64, 66, 68, 70
S_B, S_C, S_F0, S_J = 18, 19, 20, 21
S_T0, S_CT = 72, 73
S_SPIN = 74
SC = "sc1"
SPIN_MAX = 200000

MAGIC = 0x5A3C96E1
S_E, S_EM = 75, 76
S_XCC = 77
S_LOCAL = 78

def spin(A, name, vp, vaddr, srdp, xcc=False):
    A(f"{name}:")
    if xcc:
        A(f"v_xor_b32 v{vp+1}, s{S_EM}, v{vp+1}\nv_cmp_ne_u32 vcc, s{S_E}, v{vp}\nv_cmp_lt_u32 s[60:61], 15, v{vp+1}\ns_nop 3\ns_or_b64 vcc, vcc, s[60:61]")
    else:
        A(f"v_cmp_ne_u32 vcc, s{S_E}, v{vp}\nv_cmp_ne_u32 s[60:61], s{S_EM}, v{vp+1}\ns_nop 3\ns_or_b64 vcc, vcc, s[60:61]")
    A(f"s_cbranch_vccz {name}_ok")
    if opt("P2ONLY"): A(f"s_branch {name}_ok")
    A(f"s_sub_u32 s{S_SPIN}, s{S_SPIN}, 1\ns_cmp_eq_u32 s{S_SPIN}, 0\ns_cbranch_scc1 {name}_ok")
    A(f"s_sleep {opt('SLEEP', 4)}")
    A(f"buffer_load_dwordx2 v[{vp}:{vp+1}], v{vaddr}, s[{srdp}:{srdp+3}], 0 offen {SC}\ns_waitcnt vmcnt(0)")
    if opt("SPINSTAMP") == name: stamp(A)
    A(f"s_branch {name}\n{name}_ok:")

def store_flags(A, vaddr, nlanes, srdp, vt, xcc=False, local=None):
    if xcc:
        A(f"s_xor_b32 s62, s{S_EM}, s{S_XCC}\nv_mov_b32 v{vt}, s{S_E}\nv_mov_b32 v{vt+1}, s62\ns_mov_b64 exec, {(1 << nlanes) - 1}")
    else:
        A(f"v_mov_b32 v{vt}, s{S_E}\nv_mov_b32 v{vt+1}, s{S_EM}\ns_mov_b64 exec, {(1 << nlanes) - 1}")
    if local:
        A(f"s_cmp_eq_u32 s{S_LOCAL}, 1\ns_cbranch_scc1 {local}_fp")
    A(f"buffer_store_dwordx2 v[{vt}:{vt+1}], v{vaddr}, s[{srdp}:{srdp+3}], 0 offen {SC}")
    if local:
        A(f"s_branch {local}_fd\n{local}_fp:")
        A(f"buffer_store_dwordx2 v[{vt}:{vt+1}], v{vaddr}, s[{srdp}:{srdp+3}], 0 offen")
        A(f"{local}_fd:")
    A("s_mov_b64 exec, -1")

def flag_addr_h(A, v):
    A(f"s_lshl_b32 s62, s{S_B}, 4\ns_add_u32 s62, s62, s{S_C}\ns_lshl_b32 s62, s62, 3\ns_add_u32 s62, s62, {FH_OFF}\nv_mov_b32 v{v}, s62")
def flag_addr_t(A, v):
    A(f"s_lshl_b32 s62, s{S_C}, 4\ns_add_u32 s62, s62, s{S_B}\ns_lshl_b32 s62, s62, 3\ns_add_u32 s62, s62, {FT_OFF}")
    A(f"v_lshlrev_b32 v{v}, 10, v1\nv_add_u32 v{v}, s62, v{v}")
def flag_addr_early(A, v):
    A(f"s_lshl_b32 s62, s{S_B}, 4\ns_add_u32 s62, s62, s{S_C}\ns_lshl_b32 s62, s62, 3\ns_add_u32 s58, s62, {FR1_OFF}")
    A(f"s_lshl_b32 s62, s{S_C}, 4\ns_add_u32 s62, s62, s{S_B}\ns_lshl_b32 s62, s62, 3\ns_add_u32 s62, s62, {FC1_OFF}")
    A(f"s_cmp_eq_u32 s3, 1\ns_cselect_b32 s58, s62, s58\nv_mov_b32 v{v}, s58")

def epoch_ready(A):
    A("s_waitcnt lgkmcnt(0)")
    A(f"s_add_u32 s{S_E}, s{S_E}, 1\ns_xor_b32 s{S_EM}, s{S_E}, {MAGIC}")
    srd(A, 48, WS, WS_USED)

def lds_arrive(A, word, vt, sdst):
    A(f"v_mov_b32 v{vt}, {LCNT + 4*word}\nv_mov_b32 v{vt+1}, 1\ns_mov_b64 exec, 1")
    A(f"ds_add_rtn_u32 v{vt+1}, v{vt}, v{vt+1}\ns_waitcnt lgkmcnt(0)\ns_mov_b64 exec, -1\ns_nop 0")
    A(f"v_readfirstlane_b32 s{sdst}, v{vt+1}")
    A("s_nop 3")

def entry(A):
    A("s_cmp_ge_u32 s2, 256\ns_cbranch_scc1 L_end")
    A(f"s_load_dwordx4 s[4:7], s[0:1], {KA_X}")
    A(f"s_load_dwordx4 s[8:11], s[0:1], {KA_SIM}")
    A(f"s_load_dwordx2 s[12:13], s[0:1], {KA_HIM}")
    A(f"s_load_dwordx4 s[64:67], s[0:1], {KA_W1}")
    A(f"s_load_dwordx4 s[68:71], s[0:1], {KA_OUT}")
    A(f"s_load_dwordx2 s[16:17], s[0:1], {KA_WS}")
    A("v_lshrrev_b32 v2, 6, v0\nv_and_b32 v1, 63, v0\ns_nop 0\nv_readfirstlane_b32 s3, v2")
    A("s_and_b32 s24, s2, 7\ns_lshr_b32 s25, s2, 3\ns_lshr_b32 s27, s25, 3\ns_and_b32 s28, s25, 7")
    if opt("MAP1", 1):
        A(f"s_lshl_b32 s26, s24, 1\ns_lshr_b32 s29, s25, 4\ns_add_u32 s{S_B}, s26, s29\ns_and_b32 s{S_C}, s25, 15")
    else:
        A(f"s_lshr_b32 s26, s24, 1\ns_lshl_b32 s26, s26, 2\ns_add_u32 s{S_B}, s26, s27")
        A(f"s_and_b32 s26, s24, 1\ns_lshl_b32 s26, s26, 3\ns_add_u32 s{S_C}, s26, s28")
    A(f"s_lshl_b32 s26, s{S_C}, 6\ns_lshl_b32 s29, s{S_C}, 7\ns_sub_u32 s29, s29, 320")
    A(f"s_cmp_lt_u32 s{S_C}, 5\ns_cselect_b32 s{S_F0}, s26, s29")
    A(f"s_lshl_b32 s24, s24, 2\ns_add_u32 s{S_T0}, s24, s27\ns_mov_b32 s{S_CT}, s28")
    A(f"s_mov_b32 s{S_SPIN}, {SPIN_MAX}")
    A(f"s_getreg_b32 s{S_XCC}, hwreg(HW_REG_XCC_ID)\ns_and_b32 s{S_XCC}, s{S_XCC}, 15")
    A("s_waitcnt lgkmcnt(0)")
    stamp_init(A)
    if opt("CLK"): A("s_memtime s[88:89]\ns_waitcnt lgkmcnt(0)")
    A(f"s_mov_b32 s62, {EP_OFF}\ns_load_dword s{S_E}, s[{WS}:{WS+1}], s62")
    stamp(A, 0, force=True)

def jobs_issue(A):
    srd(A, 24, X_, X_BYTES); srd(A, 28, W1, W1_BYTES); srd(A, 36, WS, WS_USED)
    A("s_cmp_eq_u32 s3, 0\ns_cbranch_scc1 J_x_i\ns_cmp_eq_u32 s3, 1\ns_cbranch_scc1 J_c_i")
    if opt("CODEPF", 1):
        A("s_cmp_eq_u32 s3, 2\ns_cbranch_scc0 J_i_done")
        A("s_getpc_b64 s[50:51]\nJ_pc:")
        A(f"s_sub_u32 s50, s50, J_pc-{KNAME}\ns_subb_u32 s51, s51, 0")
        A("s_lshr_b32 s52, s2, 3\ns_mul_i32 s52, s52, 6\nv_add_u32 v22, s52, v1")
        A(f"s_mov_b32 s52, ((L_code_end-{KNAME})>>7)-1\nv_min_u32 v22, s52, v22\nv_lshlrev_b32 v22, 7, v22")
        A("v_mov_b32 v23, s51\nv_add_co_u32 v22, vcc, s50, v22\ns_nop 1\nv_addc_co_u32 v23, vcc, 0, v23, vcc")
        A("s_mov_b64 exec, 63\nglobal_load_dword v127, v[22:23], off\ns_mov_b64 exec, -1")
    A("s_branch J_i_done")
    A("J_x_i:")
    A(f"s_lshr_b32 s48, s{S_C}, 2\ns_and_b32 s49, s{S_C}, 3")
    A(f"s_lshl_b32 s50, s{S_B}, 1\ns_and_b32 s51, s48, 1\ns_add_u32 s50, s50, s51")
    A("s_lshr_b32 s51, s48, 1\ns_lshl_b32 s51, s51, 5\ns_add_u32 s50, s50, s51")
    A("s_lshl_b32 s51, s49, 9\ns_add_u32 s50, s50, s51\ns_mul_i32 s50, s50, 1280")
    A("v_lshrrev_b32 v22, 3, v1\ns_mov_b32 s51, 81920\nv_mul_lo_u32 v22, s51, v22")
    A("v_and_b32 v23, 7, v1\nv_lshlrev_b32 v23, 4, v23\nv_add_u32 v22, v22, v23")
    for i in range(10):
        A(f"buffer_load_dwordx4 v[{32+4*i}:{35+4*i}], v22, s[24:27], s50 offen offset:{128*i}")
    A(f"v_mov_b32 v22, {LCNT}\nv_mov_b32 v24, 0\nv_mov_b32 v25, 0\nv_mov_b32 v26, 0\nv_mov_b32 v27, 0\nds_write_b128 v22, v[24:27]\nds_write_b128 v22, v[24:27] offset:16")
    A("s_branch J_i_done")
    A("J_c_i:")
    A("v_lshrrev_b32 v22, 4, v1\nv_mul_u32_u24 v22, 3456, v22\nv_and_b32 v23, 15, v1\nv_lshlrev_b32 v23, 4, v23\nv_add_u32 v22, v22, v23")
    A(f"s_mul_i32 s50, s{S_B}, {40*3456}\ns_lshl_b32 s51, s{S_F0}, 1\ns_add_u32 s50, s50, s51")
    for i in range(10):
        A(f"buffer_load_dwordx4 v[{32+4*i}:{35+4*i}], v22, s[28:31], s50 offen")
        if i < 9: A(f"s_add_u32 s50, s50, {4*3456}")
    A(f"s_cmp_eq_u32 s{S_C}, 0\ns_cbranch_scc0 J_i_done")
    A("v_and_b32 v23, 7, v1\nv_lshlrev_b32 v23, 4, v23\nv_bfe_u32 v24, v1, 3, 2\nv_lshlrev_b32 v24, 15, v24\nv_add_u32 v23, v23, v24")
    A(f"v_add_u32 v23, {16384+8192+4096}, v23")
    A("v_mov_b32 v24, 0xbf803f80\nv_mov_b32 v25, 0x3f80bf80\nv_mov_b32 v26, 0xbf803f80\nv_mov_b32 v27, 0x3f80bf80")
    A("ds_write_b128 v23, v[24:27]")
    A("s_branch J_i_done")
    A("J_i_done:")

def dpp_add(A, r, ctrl):
    A(f"v_add_f32_dpp v{r}, v{r}, v{r} {ctrl} row_mask:0xf bank_mask:0xf")

def jobs_finish(A, nG_, tagx):
    nG = tagx
    class _N(str):
        pass
    A("s_cmp_eq_u32 s3, 0\ns_cbranch_scc1 %s\ns_cmp_eq_u32 s3, 1\ns_cbranch_scc1 %s\ns_branch %s" % (f"J_x_{nG}", f"J_c_{nG}", f"J_done_{nG}"))
    A(f"J_x_{nG}:")
    A("v_mov_b32 v22, 0\nv_mov_b32 v23, 0\nv_mov_b32 v24, 0\nv_mov_b32 v25, 0\ns_mov_b32 s52, 0x3f803f80")
    for i in range(10):
        A(f"s_waitcnt vmcnt({9-i+nG_})")
        for k in range(4):
            r = 32 + 4 * i + k
            A(f"v_dot2_f32_bf16 v{22+(k&1)}, v{r}, s52, v{22+(k&1)}")
            A(f"v_dot2_f32_bf16 v{24+(k&1)}, v{r}, v{r}, v{24+(k&1)}")
    A("s_nop 2\nv_add_f32 v22, v22, v23\nv_add_f32 v24, v24, v25\ns_nop 1")
    for ctrl in ["quad_perm:[1,0,3,2]", "quad_perm:[2,3,0,1]", "row_half_mirror"]:
        dpp_add(A, 22, ctrl); dpp_add(A, 24, ctrl); A("s_nop 0")
    A("s_mov_b32 s52, 0x3acccccd\nv_mul_f32 v22, s52, v22\nv_mul_f32 v24, s52, v24")
    A("v_fma_f32 v24, -v22, v22, v24\nv_max_f32 v24, 0, v24\nv_add_f32 v24, 0x3727c5ac, v24\nv_rsq_f32 v23, v24")
    A(f"s_lshl_b32 s52, s{S_B}, 10\ns_lshl_b32 s53, s{S_C}, 5\ns_add_u32 s52, s52, s53\ns_add_u32 s52, s52, {ST_OFF}")
    A("v_lshrrev_b32 v25, 3, v1\nv_lshlrev_b32 v25, 2, v25")
    A("v_and_b32 v26, 7, v1\nv_cmp_eq_u32 vcc, 0, v26\ns_and_saveexec_b64 s[54:55], vcc")
    A(f"buffer_store_dword v22, v25, s[36:39], s52 offen {SC}\nbuffer_store_dword v23, v25, s[36:39], s52 offen offset:512 {SC}")
    A("s_mov_b64 exec, s[54:55]")
    A(f"s_branch J_done_{nG}")
    A(f"J_c_{nG}:")
    for k in range(8): A(f"v_mov_b32 v{72+k}, 0")
    A("s_mov_b32 s52, 0x00003f80\ns_mov_b32 s53, 0x3f800000")
    for i in range(10):
        A(f"s_waitcnt vmcnt({9-i+nG_})")
        for k in range(4):
            r = 32 + 4 * i + k
            A(f"v_dot2_f32_bf16 v{72+2*k}, v{r}, s52, v{72+2*k}")
            A(f"v_dot2_f32_bf16 v{73+2*k}, v{r}, s53, v{73+2*k}")
    A("s_nop 2")
    for sw in ["v_permlane16_swap_b32", "v_permlane32_swap_b32"]:
        for k in range(8): A(f"v_mov_b32 v{80+k}, v{72+k}")
        A("s_nop 0")
        for k in range(8): A(f"{sw} v{72+k}, v{80+k}")
        A("s_nop 0")
        for k in range(8): A(f"v_add_f32 v{72+k}, v{72+k}, v{80+k}")
    A(f"s_lshl_b32 s52, s{S_B}, 13\ns_lshl_b32 s53, s{S_F0}, 2\ns_add_u32 s52, s52, s53\ns_add_u32 s52, s52, {CS_OFF}")
    A(f"v_lshlrev_b32 v22, 5, v1\ns_mov_b32 s53, 16\ns_cmp_lt_u32 s{S_C}, 5\ns_cselect_b32 s53, 8, s53")
    A("v_cmp_gt_u32 vcc, s53, v1\ns_and_saveexec_b64 s[54:55], vcc")
    A(f"buffer_store_dwordx4 v[72:75], v22, s[36:39], s52 offen {SC}\nbuffer_store_dwordx4 v[76:79], v22, s[36:39], s52 offen offset:16 {SC}")
    A("s_mov_b64 exec, s[54:55]")
    A(f"s_branch J_done_{nG}")
    A(f"J_done_{nG}:")
    if opt("CODEPF", 1): A(f"s_cmp_eq_u32 s3, 2\ns_cbranch_scc0 J_dn2_{nG}\ns_waitcnt vmcnt(0)\nJ_dn2_{nG}:")

def x_addr(A, dst, rowbase_sgpr, tmp):
    A(f"v_and_b32 v{tmp}, 31, v1\nv_add_u32 v{tmp+1}, s{rowbase_sgpr}, v{tmp}\nv_lshlrev_b32 v{tmp+1}, 7, v{tmp+1}")
    A(f"v_bfe_u32 v{tmp}, v1, 1, 3\nv_lshrrev_b32 v{tmp+2}, 5, v1\nv_xor_b32 v{tmp}, v{tmp}, v{tmp+2}")
    A(f"v_lshlrev_b32 v{tmp}, 4, v{tmp}\nv_add_u32 v{dst}, v{tmp+1}, v{tmp}")
    for j in range(1, 4):
        A(f"v_xor_b32 v{dst+j}, {32*j}, v{dst}")
def h_tr_addr(A, dst, tmp):
    A(f"v_bfe_u32 v{tmp}, v1, 5, 1\nv_lshlrev_b32 v{tmp}, 3, v{tmp}\nv_bfe_u32 v{tmp+1}, v1, 2, 2\nv_add_u32 v{tmp}, v{tmp}, v{tmp+1}")
    A(f"v_lshlrev_b32 v{tmp}, 7, v{tmp}")
    A(f"v_bfe_u32 v{tmp+1}, v1, 4, 1\nv_lshlrev_b32 v{tmp+1}, 1, v{tmp+1}\nv_bfe_u32 v{tmp+2}, v1, 1, 1\nv_add_u32 v{tmp+1}, v{tmp+1}, v{tmp+2}")
    A(f"v_bfe_u32 v{tmp+2}, v1, 3, 1\nv_lshlrev_b32 v{tmp+2}, 2, v{tmp+2}\nv_xor_b32 v{tmp+1}, v{tmp+1}, v{tmp+2}")
    A(f"v_lshlrev_b32 v{tmp+1}, 4, v{tmp+1}\nv_add_u32 v{tmp}, v{tmp}, v{tmp+1}")
    A(f"v_and_b32 v{tmp+1}, 1, v1\nv_lshlrev_b32 v{tmp+1}, 3, v{tmp+1}\nv_add_u32 v{dst}, v{tmp}, v{tmp+1}")
def interleave(A, mfmas, fillers, per_gap):
    if opt("NOCOMP1"):
        for f in fillers:
            if not f.startswith("ds_read") and not f.startswith("v_perm"): A(f)
        return
    k = 0
    for i, m in enumerate(mfmas):
        A(m)
        for _ in range(per_gap[i]):
            if k < len(fillers):
                A(fillers[k]); k += 1
    while k < len(fillers):
        A(fillers[k]); k += 1
def h_epilogue_tile(A, acc, mr, cs, tmp, vaddr, soff):
    for i in range(0, 16, 2):
        A(f"v_pk_fma_f32 v[{acc+i}:{acc+i+1}], v[{cs+i}:{cs+i+1}], v[{mr}:{mr+1}], v[{acc+i}:{acc+i+1}] op_sel:[0,0,0] op_sel_hi:[1,0,1] neg_lo:[0,1,0] neg_hi:[0,1,0]")
    for i in range(0, 16, 2):
        A(f"v_pk_mul_f32 v[{acc+i}:{acc+i+1}], v[{acc+i}:{acc+i+1}], v[{mr}:{mr+1}] op_sel:[0,1] op_sel_hi:[1,1]")
    for i in range(0, 16, 2):
        A(f"v_cvt_pk_bf16_f32 v{tmp+i//2}, v{acc+i}, v{acc+i+1}")
    for i in range(8):
        A(f"v_pk_max_i16 v{tmp+i}, v{tmp+i}, 0")
    h_epilogue_tile.n += 1
    n = h_epilogue_tile.n
    A(f"s_cmp_eq_u32 s{S_LOCAL}, {1 if opt('LOCALH', 2) == 1 else 7}\ns_cbranch_scc1 L_hst{n}_p")
    A(f"buffer_store_dwordx4 v[{tmp}:{tmp+3}], v{vaddr}, s[36:39], s{soff} offen {SC}")
    A(f"buffer_store_dwordx4 v[{tmp+4}:{tmp+7}], v{vaddr}, s[36:39], s{soff} offen offset:512 {SC}")
    A(f"s_branch L_hst{n}_d\nL_hst{n}_p:")
    hst = {0: "", 1: "nt", 2: "sc0", 3: "sc0 nt"}[opt("HST", 0)]
    A(f"buffer_store_dwordx4 v[{tmp}:{tmp+3}], v{vaddr}, s[36:39], s{soff} offen {hst}")
    A(f"buffer_store_dwordx4 v[{tmp+4}:{tmp+7}], v{vaddr}, s[36:39], s{soff} offen offset:512 {hst}")
    A(f"L_hst{n}_d:")
h_epilogue_tile.n = 0
def h_store_voff(A, dst, tmp):
    A(f"v_bfe_u32 v{tmp}, v1, 4, 1\nv_mul_u32_u24 v{tmp}, {58*1024}, v{tmp}")
    A(f"v_lshrrev_b32 v{tmp+1}, 5, v1\nv_lshlrev_b32 v{tmp+1}, 8, v{tmp+1}\nv_add_u32 v{tmp}, v{tmp}, v{tmp+1}")
    A(f"v_and_b32 v{tmp+1}, 15, v1\nv_lshlrev_b32 v{tmp+1}, 4, v{tmp+1}\nv_add_u32 v{dst}, v{tmp}, v{tmp+1}")

def loop_hooks_top(A, tag):
    A(f"s_cmp_eq_u32 s29, s30\ns_cbranch_scc1 {tag}_flag1\n{tag}_flag1_ret:")
def loop_hooks_init(A):
    A(f"s_cmp_lt_u32 s3, 2\ns_cselect_b32 s30, {10 - opt('EARLY_IT', 1)}, 99")
def loop_hooks_ool(A, tag):
    A(f"{tag}_flag1:")
    flag_addr_early(A, 28)
    A("s_waitcnt vmcnt(0)")
    store_flags(A, 28, 1, 48, 30, xcc=True)
    A(f"s_branch {tag}_flag1_ret")

def publish(A, tag, word, kind, vt):
    A("s_waitcnt vmcnt(0)")
    lds_arrive(A, word, vt, 63)
    A(f"s_cmp_eq_u32 s63, 3\ns_cbranch_scc0 {tag}_np")
    if kind == "h":
        flag_addr_h(A, vt - 1); store_flags(A, vt - 1, 1, 48, vt, xcc=True, local=(tag if opt("LOCALF", 1) else None))
    else:
        flag_addr_t(A, vt - 1); store_flags(A, vt - 1, 8, 48, vt)
    A(f"{tag}_np:")

def p1_hh(A):
    A("L_hh:")
    ACC = 128; P, Q = 32, 64
    XB, WB = 2, 6; XC, WC = 8, 12
    A("s_lshr_b32 s24, s3, 1\ns_and_b32 s25, s3, 1")
    A("s_lshl_b32 s26, s24, 6")
    x_addr(A, XB, 26, 20)
    h_tr_addr(A, WB, 20)
    A("s_lshl_b32 s27, s25, 13\ns_add_u32 s27, s27, 16384")
    A(f"v_add_u32 v{WB}, s27, v{WB}\nv_xor_b32 v{WB+1}, 64, v{WB}")
    for i in range(64): A(f"v_mov_b32 v{ACC+i}, 0")
    for j in range(4): A(f"v_mov_b32 v{XC+j}, v{XB+j}")
    for j in range(2): A(f"v_mov_b32 v{WC+j}, v{WB+j}")
    jobs_finish(A, 0, 'h')
    epoch_ready(A)
    A("s_mov_b32 s28, 0")
    loop_hooks_init(A)
    def reads(buf, g):
        out = []
        for jj in range(2):
            j = 2 * g + jj; b = buf + 16 * jj
            out.append(f"ds_read_b128 v[{b}:{b+3}], v{XC+j}")
            out.append(f"ds_read_b64_tr_b16 v[{b+8}:{b+9}], v{WC} offset:{j*2048}")
            out.append(f"ds_read_b64_tr_b16 v[{b+10}:{b+11}], v{WC} offset:{j*2048+512}")
            out.append(f"ds_read_b128 v[{b+4}:{b+7}], v{XC+j} offset:4096")
            out.append(f"ds_read_b64_tr_b16 v[{b+12}:{b+13}], v{WC+1} offset:{j*2048}")
            out.append(f"ds_read_b64_tr_b16 v[{b+14}:{b+15}], v{WC+1} offset:{j*2048+512}")
        return out
    def mfmas(buf):
        out = []
        for jj in range(2):
            b = buf + 16 * jj
            for ft in range(2):
                for st in range(2):
                    a = ACC + 16 * (2 * ft + st)
                    out.append(f"{MFMA32} v[{a}:{a+15}], v[{b+8+4*ft}:{b+11+4*ft}], v[{b+4*st}:{b+3+4*st}], v[{a}:{a+15}]")
        return out
    stamp(A, 1)
    A("s_waitcnt lgkmcnt(0)\ns_barrier")
    stamp(A, 2)
    for r in reads(P, 0):
        if not opt("NOCOMP1"): A(r)
    A("s_mov_b32 s29, 10")
    A("L_hh_loop:")
    A.drop = (["v_mfma"] if opt("NOMF1") else []) + (["ds_read"] if opt("NODS1") else []) + (["v_perm"] if opt("NOPERM") else [])
    loop_hooks_top(A, "L_hh")
    A("s_waitcnt lgkmcnt(0)")
    upd = [f"v_add_u32 v{XC+j}, s28, v{XB+j}" for j in range(4)] + [f"v_add_u32 v{WC+j}, s28, v{WB+j}" for j in range(2)]
    ring = [f"s_add_u32 s28, s28, {RING}", f"s_and_b32 s28, s28, {NS*RING-1}"]
    interleave(A, mfmas(P), reads(Q, 1) + ring + upd, [3, 3, 3, 3, 2, 3, 3, 0])
    A("s_waitcnt lgkmcnt(0)")
    A("s_barrier")
    interleave(A, mfmas(Q), reads(P, 0), [3, 3, 3, 3, 0, 0, 0, 0])
    A.drop = []
    A("s_sub_u32 s29, s29, 1\ns_cmp_lg_u32 s29, 0\ns_cbranch_scc1 L_hh_loop")
    A("s_waitcnt lgkmcnt(0)")
    stamp(A, 3)
    A(f"v_and_b32 v20, 31, v1\nv_add_u32 v20, s26, v20\nv_lshlrev_b32 v20, 2, v20\nv_add_u32 v20, {LST}, v20")
    A("ds_read_b32 v22, v20\nds_read_b32 v23, v20 offset:512\nds_read_b32 v24, v20 offset:128\nds_read_b32 v25, v20 offset:640")
    A(f"v_mov_b32 v27, {LCNT + 12}\nds_read_b32 v27, v27")
    A(f"v_lshrrev_b32 v21, 5, v1\nv_lshlrev_b32 v21, 4, v21\ns_lshl_b32 s30, s25, 8\ns_add_u32 s30, s30, {LCS}\nv_add_u32 v21, s30, v21")
    for ft in range(2):
        for q in range(4):
            b = 32 + 16 * ft + 4 * q
            A(f"ds_read_b128 v[{b}:{b+3}], v21 offset:{ft*128+q*32}")
    h_store_voff(A, 26, 28)
    A(f"s_lshl_b32 s31, s{S_B}, 3\ns_lshl_b32 s32, s24, 1\ns_add_u32 s31, s31, s32\ns_mul_i32 s31, s31, 58")
    A(f"s_lshr_b32 s32, s{S_F0}, 5\ns_lshl_b32 s33, s25, 1\ns_add_u32 s32, s32, s33\ns_add_u32 s31, s31, s32")
    A(f"s_lshl_b32 s31, s31, 10\ns_add_u32 s31, s31, {HF_OFF}")
    A("s_waitcnt lgkmcnt(0)")
    A(f"v_readfirstlane_b32 s{S_LOCAL}, v27")
    A("s_nop 7")
    for st in range(2):
        for ft in range(2):
            A(f"s_add_u32 s32, s31, {(st*4*58+ft)*1024}")
            h_epilogue_tile(A, ACC + 16 * (2 * ft + st), 22 + 2 * st, 32 + 16 * ft, 64 + 8 * ((2 * st + ft) & 3), 26, 32)
    stamp(A, 4)
    publish(A, "L_hh_pub", 0, "h", 30)
    stamp(A)
    stamp_flush(A, 0, WS, 9)
    A("s_endpgm")
    loop_hooks_ool(A, "L_hh")

def p1_mx(A):
    A("L_mx:")
    P, Q = 32, 72
    EV, OD = 112, 116
    CE, CO, SE, SO = 120, 124, 128, 132
    HA, HB = 136, 152
    EC, ES, OC, OS = 168, 184, 200, 216
    G = 232
    XAB, WHB = 2, 6
    XAC, XBC, DAC, WHC = 7, 11, 15, 19
    A("v_and_b32 v24, 31, v1\nv_cvt_f32_u32 v24, v24\nv_lshrrev_b32 v25, 5, v1\nv_cvt_f32_u32 v25, v25")
    A("v_mul_f32 v25, 0x3e000000, v25\nv_mul_f32 v25, v25, v24")
    for p in range(2):
        for uh in range(2):
            for u2 in range(2):
                for k in range(2):
                    c = 16 * p + 8 * uh + 2 * u2 + k
                    import struct
                    lit = struct.unpack("<I", struct.pack("<f", c / 32.0))[0]
                    A(f"v_fmamk_f32 v26, v24, {lit:#x}, v25\nv_fract_f32 v26, v26")
                    A(f"v_cos_f32 v{28+k}, v26\nv_sin_f32 v{30+k}, v26")
                A("s_nop 0")
                A(f"v_cvt_pk_bf16_f32 v{G+4*p+2*uh+u2}, v28, v29\nv_cvt_pk_bf16_f32 v{G+16+4*p+2*uh+u2}, v30, v31")
    for i in range(8):
        A(f"v_xor_b32 v{G+8+i}, 0x80008000, v{G+16+i}")
    A("s_lshr_b32 s24, s3, 1\ns_and_b32 s25, s3, 1")
    A("s_lshl_b32 s26, s3, 5\ns_xor_b32 s27, s26, 32")
    x_addr(A, XAB, 26, 24)
    h_tr_addr(A, WHB, 24)
    A(f"s_lshl_b32 s30, s25, 6\nv_xor_b32 v{WHB}, s30, v{WHB}\nv_add_u32 v{WHB}, 16384, v{WHB}")
    for i in range(96): A(f"v_mov_b32 v{HA+i}, 0")
    A("s_lshl_b32 s31, s3, 12\ns_sub_u32 s31, 24576, s31")
    def upd(js=(0, 1, 2, 3), wh=True):
        o = [f"v_add_u32 v{XAC+j}, s28, v{XAB+j}" for j in js] + ([f"v_add_u32 v{WHC}, s28, v{WHB}"] if wh else [])
        o += [f"v_xor_b32 v{XBC+j}, 0x1000, v{XAC+j}" for j in js]
        o += [f"v_add_u32 v{DAC+j}, s31, v{XAC+j}" for j in js]
        return o
    A("s_mov_b32 s28, 0")
    for t in upd(): A(t)
    jobs_finish(A, 0, 'm')
    epoch_ready(A)
    loop_hooks_init(A)
    A("s_mov_b32 s34, 0x05040100\ns_mov_b32 s35, 0x07060302")
    def reads(buf, m):
        out = []
        for jj in range(2):
            j = 2 * m + jj
            out.append(f"ds_read_b128 v[{buf+4*jj}:{buf+4*jj+3}], v{XAC+j}")
        for jj in range(2):
            j = 2 * m + jj
            out.append(f"ds_read_b64_tr_b16 v[{buf+16+4*jj}:{buf+17+4*jj}], v{WHC} offset:{j*2048}")
            out.append(f"ds_read_b64_tr_b16 v[{buf+18+4*jj}:{buf+19+4*jj}], v{WHC} offset:{j*2048+512}")
            out.append(f"ds_read_b128 v[{buf+8+4*jj}:{buf+11+4*jj}], v{XBC+j}")
        for jj in range(2):
            j = 2 * m + jj
            out.append(f"ds_read_b128 v[{buf+24+4*jj}:{buf+27+4*jj}], v{DAC+j}")
            out.append(f"ds_read_b128 v[{buf+32+4*jj}:{buf+35+4*jj}], v{DAC+j} offset:4096")
        return out
    def perms(src, e, o):
        ev = [f"v_perm_b32 v{e+k}, v{src+2*k+1}, v{src+2*k}, s34" for k in range(4)]
        od = [f"v_perm_b32 v{o+k}, v{src+2*k+1}, v{src+2*k}, s35" for k in range(4)]
        return ev, od
    def half(cur, nxt, m_next, extra):
        rd = reads(nxt, m_next)
        if opt("NOCOMP1"):
            for t in extra: A(t)
            return
        xe, xo = perms(cur, EV, OD); ce, co = perms(cur + 24, CE, CO); se, so = perms(cur + 32, SE, SO)
        H = []
        for jj in range(2):
            w = cur + 16 + 4 * jj
            H.append(f"{MFMA32} v[{HA}:{HA+15}], v[{w}:{w+3}], v[{cur+4*jj}:{cur+4*jj+3}], v[{HA}:{HA+15}]")
            H.append(f"{MFMA32} v[{HB}:{HB+15}], v[{w}:{w+3}], v[{cur+8+4*jj}:{cur+11+4*jj}], v[{HB}:{HB+15}]")
        Dm = [f"{MFMA32} v[{EC}:{EC+15}], v[{EV}:{EV+3}], v[{CE}:{CE+3}], v[{EC}:{EC+15}]",
              f"{MFMA32} v[{OC}:{OC+15}], v[{OD}:{OD+3}], v[{CO}:{CO+3}], v[{OC}:{OC+15}]",
              f"{MFMA32} v[{ES}:{ES+15}], v[{EV}:{EV+3}], v[{SE}:{SE+3}], v[{ES}:{ES+15}]",
              f"{MFMA32} v[{OS}:{OS+15}], v[{OD}:{OD+3}], v[{SO}:{SO+3}], v[{OS}:{OS+15}]"]
        if opt("MXSCHED", 1):
            ex = list(extra)
            def take(n):
                t = ex[:n]; del ex[:n]; return t
            pad = lambda n: (take(n) + ["s_nop 0"] * n)[:n]
            ms = H + [Dm[0], Dm[2], Dm[1], Dm[3]]
            gaps = [xe[0:2] + rd[0:3], xe[2:4] + rd[3:6], ce[0:2] + rd[6:9], ce[2:4] + rd[9:12],
                    se + xo[0:2], xo[2:4] + co + pad(2), so + pad(2), None]
            gaps[7] = ex
        else:
            gaps = [xe + rd[0:2], ce + rd[2:4], xo + rd[4:6], co + rd[6:8], se + rd[8:10], so + rd[10:12], extra[:8], extra[8:]]
            ms = H + Dm
        for i in range(8):
            A(ms[i])
            for t in gaps[i]: A(t)
    stamp(A, 1)
    A("s_waitcnt lgkmcnt(0)\ns_barrier")
    stamp(A, 2)
    for r in reads(P, 0):
        if not opt("NOCOMP1"): A(r)
    A("s_mov_b32 s29, 10")
    A("L_mx_loop:")
    A.drop = (["v_mfma"] if opt("NOMF1") else []) + (["ds_read"] if opt("NODS1") else []) + (["v_perm"] if opt("NOPERM") else [])
    loop_hooks_top(A, "L_mx")
    A("s_waitcnt lgkmcnt(0)")
    ring = [f"s_add_u32 s28, s28, {RING}", f"s_and_b32 s28, s28, {NS*RING-1}"]
    if opt("MXSCHED", 1):
        half(P, Q, 1, ring + upd((0, 1), True))
        A("s_waitcnt lgkmcnt(0)")
        A("s_barrier")
        half(Q, P, 0, upd((2, 3), False))
    else:
        half(P, Q, 1, ring + upd())
        A("s_waitcnt lgkmcnt(0)")
        A("s_barrier")
        half(Q, P, 0, [])
    A.drop = []
    A("s_sub_u32 s29, s29, 1\ns_cmp_lg_u32 s29, 0\ns_cbranch_scc1 L_mx_loop")
    A("s_waitcnt lgkmcnt(0)")
    stamp(A, 3)
    A(f"v_and_b32 v24, 31, v1\nv_add_u32 v25, s26, v24\nv_lshlrev_b32 v25, 2, v25\nv_add_u32 v25, {LST}, v25")
    A(f"v_add_u32 v26, s27, v24\nv_lshlrev_b32 v26, 2, v26\nv_add_u32 v26, {LST}, v26")
    A("ds_read_b32 v2, v25\nds_read_b32 v3, v25 offset:512\nds_read_b32 v4, v26\nds_read_b32 v5, v26 offset:512")
    A(f"v_mov_b32 v7, {LCNT + 12}\nds_read_b32 v7, v7")
    A(f"v_lshrrev_b32 v27, 5, v1\nv_lshlrev_b32 v27, 4, v27\ns_lshl_b32 s30, s25, 7\ns_add_u32 s30, s30, {LCS}\nv_add_u32 v28, s30, v27")
    for q in range(4):
        A(f"ds_read_b128 v[{32+4*q}:{35+4*q}], v28 offset:{q*32}")
    A(f"s_lshl_b32 s30, s26, 2\ns_add_u32 s30, s30, {LST+512}\nv_add_u32 v28, s30, v27")
    for q in range(4):
        A(f"ds_read_b128 v[{48+4*q}:{51+4*q}], v28 offset:{q*32}")
    h_store_voff(A, 6, 28)
    A(f"s_lshl_b32 s31, s{S_B}, 3\ns_lshl_b32 s30, s24, 1\ns_add_u32 s31, s31, s30\ns_mul_i32 s31, s31, 58")
    A(f"s_lshr_b32 s30, s{S_F0}, 5\ns_add_u32 s30, s30, s25\ns_add_u32 s31, s31, s30")
    A(f"s_lshl_b32 s31, s31, 10\ns_add_u32 s31, s31, {HF_OFF}")
    A(f"s_mul_i32 s30, s25, {4*58*1024}\ns_add_u32 s32, s31, s30")
    A(f"s_xor_b32 s30, s25, 1\ns_mul_i32 s30, s30, {4*58*1024}\ns_add_u32 s33, s31, s30")
    A("s_waitcnt lgkmcnt(0)")
    A(f"v_readfirstlane_b32 s{S_LOCAL}, v7")
    A("s_nop 7")
    h_epilogue_tile(A, HA, 2, 32, 64, 6, 32)
    h_epilogue_tile(A, HB, 4, 32, 72, 6, 33)
    stamp(A, 4)
    if opt("MXPUB", 1): publish(A, "L_mx_pubh", 0, "h", 30)
    stamp(A)
    R = 48
    for i in range(0, 16, 2):
        for a in (EC, OC, ES, OS):
            A(f"v_pk_mul_f32 v[{a+i}:{a+i+1}], v[{a+i}:{a+i+1}], v[{R+i}:{R+i+1}]")
    T0, T1 = 80, 96
    for i in range(0, 16, 2):
        A(f"v_pk_add_f32 v[{T0+i}:{T0+i+1}], v[{EC+i}:{EC+i+1}], v[{OC+i}:{OC+i+1}]")
        A(f"v_pk_add_f32 v[{EC+i}:{EC+i+1}], v[{EC+i}:{EC+i+1}], v[{OC+i}:{OC+i+1}] neg_lo:[0,1] neg_hi:[0,1]")
        A(f"v_pk_add_f32 v[{T1+i}:{T1+i+1}], v[{ES+i}:{ES+i+1}], v[{OS+i}:{OS+i+1}]")
        A(f"v_pk_add_f32 v[{OC+i}:{OC+i+1}], v[{OS+i}:{OS+i+1}], v[{ES+i}:{ES+i+1}] neg_lo:[0,1] neg_hi:[0,1]")
    A("v_and_b32 v24, 31, v1\nv_cmp_eq_u32 s[40:41], 0, v24\ns_nop 3")
    A(f"s_cmp_eq_u32 s{S_C}, 0\ns_cselect_b64 s[40:41], s[40:41], 0\ns_cbranch_scc0 L_mx_nofix")
    for i in range(16):
        A(f"v_cndmask_b32 v{T0+i}, v{T0+i}, v{ES+i}, s[40:41]")
        A(f"v_cndmask_b32 v{T1+i}, v{T1+i}, v{OS+i}, s[40:41]")
        A(f"v_cndmask_b32_e64 v{OC+i}, v{OC+i}, 0, s[40:41]")
    A("L_mx_nofix:")
    ZB = 32
    for k, a in enumerate([T0, T1, EC, OC]):
        for i in range(0, 16, 2):
            A(f"v_cvt_pk_bf16_f32 v{ZB+8*k+i//2}, v{a+i}, v{a+i+1}")
    Fr = lambda p: f"v[{G+4*p}:{G+4*p+3}]"
    Fi = lambda p: f"v[{G+8+4*p}:{G+8+4*p+3}]"
    nFi = lambda p: f"v[{G+16+4*p}:{G+16+4*p+3}]"
    Z = lambda k, p: f"v[{ZB+8*k+4*p}:{ZB+8*k+4*p+3}]"
    TR = [EC, OC]; TI = [ES, OS]
    A("s_nop 1")
    for st_ in range(2):
        zr, zi = 2 * st_, 2 * st_ + 1
        tr, ti = TR[st_], TI[st_]
        A(f"{MFMA32} v[{tr}:{tr+15}], {Fr(0)}, {Z(zr,0)}, 0")
        A(f"{MFMA32} v[{ti}:{ti+15}], {Fr(0)}, {Z(zi,0)}, 0")
        A(f"{MFMA32} v[{tr}:{tr+15}], {Fr(1)}, {Z(zr,1)}, v[{tr}:{tr+15}]")
        A(f"{MFMA32} v[{ti}:{ti+15}], {Fr(1)}, {Z(zi,1)}, v[{ti}:{ti+15}]")
        A(f"{MFMA32} v[{tr}:{tr+15}], {nFi(0)}, {Z(zi,0)}, v[{tr}:{tr+15}]")
        A(f"{MFMA32} v[{ti}:{ti+15}], {Fi(0)}, {Z(zr,0)}, v[{ti}:{ti+15}]")
        A(f"{MFMA32} v[{tr}:{tr+15}], {nFi(1)}, {Z(zi,1)}, v[{tr}:{tr+15}]")
        A(f"{MFMA32} v[{ti}:{ti+15}], {Fi(1)}, {Z(zr,1)}, v[{ti}:{ti+15}]")
    if not opt("MXPUB", 1): publish(A, "L_mx_pubh", 0, "h", 30)
    else: A("s_nop 7")
    stamp(A)
    A(f"v_and_b32 v24, 31, v1\nv_lshlrev_b32 v24, 2, v24\nv_lshrrev_b32 v25, 5, v1\nv_lshlrev_b32 v25, 9, v25\nv_add_u32 v24, v24, v25")
    A(f"s_lshl_b32 s30, s3, 13\ns_add_u32 s30, s30, {LX}\nv_add_u32 v24, s30, v24")
    A("s_nop 7")
    for st_ in range(2):
        for i in range(16):
            A(f"v_cvt_pk_bf16_f32 v{64+16*st_+i}, v{TR[st_]+i}, v{TI[st_]+i}")
    for st_ in range(2):
        for i in range(16):
            t0 = (i & 3) + 8 * (i >> 2)
            A(f"ds_write_b32 v24, v{64+16*st_+i} offset:{st_*4096+t0*128}")
    A("s_waitcnt lgkmcnt(0)")
    stamp(A)
    lds_arrive(A, 1, 30, 63)
    A(f"v_mov_b32 v30, {LCNT+4}")
    A("L_mx_rv:\nds_read_b32 v31, v30\ns_waitcnt lgkmcnt(0)\ns_nop 0\nv_readfirstlane_b32 s63, v31\ns_nop 3\ns_cmp_ge_u32 s63, 4\ns_cbranch_scc1 L_mx_rv_ok")
    A(f"s_sub_u32 s{S_SPIN}, s{S_SPIN}, 1\ns_cmp_eq_u32 s{S_SPIN}, 0\ns_cbranch_scc0 L_mx_rv\nL_mx_rv_ok:")
    A("v_and_b32 v24, 31, v1\nv_lshlrev_b32 v24, 2, v24\nv_lshrrev_b32 v25, 5, v1\nv_lshlrev_b32 v26, 7, v25\nv_add_u32 v24, v24, v26")
    A(f"s_lshl_b32 s30, s3, 10\ns_add_u32 s30, s30, {LX}\nv_add_u32 v24, s30, v24")
    for st_ in range(2):
        for n in range(4):
            b = 64 + 16 * st_ + 4 * n
            for w in range(4):
                A(f"ds_read_b32 v{b+w}, v24 offset:{w*8192+st_*4096+n*256}")
    A(f"v_and_b32 v26, 31, v1\ns_lshl_b32 s30, s{S_C}, 5\nv_add_u32 v27, s30, v26")
    A("v_mov_b32 v28, 160\nv_cndmask_b32 v29, v27, v28, s[40:41]")
    A("v_sub_u32 v27, 320, v27")
    A(f"s_mov_b32 s30, {TF_T0}\nv_mul_lo_u32 v25, s30, v25")
    A("v_lshlrev_b32 v29, 4, v29\nv_add_u32 v29, v29, v25")
    A("v_lshlrev_b32 v27, 4, v27\nv_add_u32 v27, v27, v25")
    A(f"s_mul_i32 s30, s3, {8*TF_T0}\ns_mul_i32 s31, s{S_B}, {TF_ROW}\ns_add_u32 s30, s30, s31\ns_add_u32 s30, s30, {TF_OFF}")
    A("s_waitcnt lgkmcnt(0)")
    for st_ in range(2):
        for n in range(4):
            b = 64 + 16 * st_ + 4 * n
            A(f"s_add_u32 s31, s30, {2*n*TF_T0}")
            if not opt("NOTST"): A(f"buffer_store_dwordx4 v[{b}:{b+3}], v{29 if st_ == 0 else 27}, s[36:39], s31 offen {'' if opt('TPLAIN') else SC}")
    stamp(A)
    A(f"s_cmp_eq_u32 s{S_C}, 0\ns_cbranch_scc0 L_mx_noz\ns_cmp_eq_u32 s3, 0\ns_cbranch_scc0 L_mx_noz")
    A(f"s_mov_b32 s30, {TF_T0}\nv_and_b32 v24, 31, v1\nv_mul_lo_u32 v24, s30, v24")
    A("v_mov_b32 v4, 0\nv_mov_b32 v5, 0\nv_mov_b32 v6, 0\nv_mov_b32 v7, 0")
    A(f"s_mul_i32 s31, s{S_B}, {TF_ROW}\ns_add_u32 s31, s31, {TF_OFF}")
    A(f"buffer_store_dwordx4 v[4:7], v24, s[36:39], s31 offen {SC}")
    A("L_mx_noz:")
    publish(A, "L_mx_pubt", 2, "t", 30)
    stamp(A)
    stamp_flush(A, 0, WS, 9)
    A("s_endpgm")
    loop_hooks_ool(A, "L_mx")

def loader(A):
    A("L_loader:")
    A(f"s_sub_u32 s{S_J}, s3, 4")
    srd(A, 24, X_, X_BYTES)
    srd(A, 36, WS, WS_USED)
    for r in [11, 12, 13, 52, 53, 54, 55, 56, 57, 58, 59]: A(f"v_mov_b32 v{r}, 0")
    A("s_mov_b32 s58, 0\ns_mov_b32 s59, 99\ns_mov_b32 s63, 0")
    RS = 1280 if opt("XLIN") else 81920
    A(f"v_lshrrev_b32 v4, 3, v1\ns_mov_b32 s40, {RS}\nv_mul_lo_u32 v8, s40, v4")
    A("v_and_b32 v5, 7, v1\nv_lshrrev_b32 v6, 4, v1\nv_xor_b32 v5, v5, v6\nv_lshlrev_b32 v5, 4, v5")
    A("v_add_u32 v2, v8, v5\nv_xor_b32 v7, 64, v5")
    A(f"v_add_u32 v3, v8, v7\nv_add_u32 v3, {8*RS}, v3")
    A(f"s_lshl_b32 s40, s{S_B}, 1\ns_and_b32 s41, s{S_J}, 1\ns_add_u32 s40, s40, s41")
    A(f"s_lshr_b32 s41, s{S_J}, 1\ns_lshl_b32 s41, s41, 5\ns_add_u32 s40, s40, s41")
    if opt("XLIN"):
        A(f"s_lshl_b32 s40, s{S_B}, 2\ns_add_u32 s40, s40, s{S_J}\ns_mul_i32 s40, s40, {32*1280}\ns_add_u32 s41, s40, {16*1280}")
    else:
        A(f"s_mul_i32 s40, s40, 1280\ns_add_u32 s41, s40, {16*81920}")
    A("s_mov_b64 s[56:57], -1")
    A(f"s_cmp_lt_u32 s{S_C}, 5\ns_cbranch_scc0 L_ld_H")
    A(f"s_cmp_ge_u32 s{S_J}, 2\ns_cbranch_scc0 L_ld_H")
    A(f"s_and_b32 s42, s{S_J}, 1\ns_cmp_eq_u32 s42, 0")
    A(f"s_cselect_b32 s28, s{HRE}, s{HIM}\ns_cselect_b32 s29, s{HRE+1}, s{HIM+1}")
    A(f"s_mov_b32 s30, {HID_BYTES}\ns_mov_b32 s31, 0x20000")
    A("v_mul_u32_u24 v8, 1280, v4\nv_add_u32 v9, v8, v5")
    A(f"v_add_u32 v10, v8, v7\nv_add_u32 v10, {8*1280}, v10")
    A(f"s_mul_i32 s42, s{S_C}, {32*1280}")
    A(f"s_mov_b32 s44, s42\ns_mov_b32 s45, s42\ns_add_u32 s46, s42, {16*1280}\ns_add_u32 s47, s42, {16*1280}")
    A("s_mov_b32 s43, 128")
    A(f"s_cmp_eq_u32 s{S_C}, 0\ns_cbranch_scc0 L_ld_go\ns_cmp_eq_u32 s{S_J}, 3\ns_cbranch_scc0 L_ld_go")
    A("s_mov_b32 s56, 0xffffff00")
    A("s_branch L_ld_go")
    A("L_ld_H:")
    srd(A, 28, W1, W1_BYTES)
    A("v_mul_u32_u24 v8, 3456, v4")
    A("v_and_b32 v9, 7, v1\nv_bfe_u32 v10, v1, 4, 1\nv_lshlrev_b32 v10, 2, v10\nv_xor_b32 v9, v9, v10")
    A("v_lshlrev_b32 v9, 4, v9\nv_add_u32 v9, v8, v9\nv_mov_b32 v10, v9")
    A(f"s_and_b32 s42, s{S_J}, 1\ns_mul_i32 s42, s42, {32*3456}")
    A(f"s_lshr_b32 s43, s{S_J}, 1\ns_lshl_b32 s43, s43, 6\ns_add_u32 s43, s43, s{S_F0}\ns_lshl_b32 s43, s43, 1")
    A("s_add_u32 s42, s42, s43")
    for q in range(4):
        A(f"s_add_u32 s{44+q}, s42, {8*q*3456}")
    A(f"s_mov_b32 s43, {64*3456}")
    A("L_ld_go:")
    A(f"s_lshl_b32 s48, s{S_J}, 12")
    def chunk(slot_reg):
        for q in range(4):
            A(f"s_add_u32 m0, s{slot_reg}, {q*1024}")
            A("s_nop 0")
            A(f"buffer_load_dwordx4 v{2+(q&1)}, s[24:27], s{40+(q>>1)} offen {'nt ' if opt('XNT') else ''}lds")
            A(f"s_add_u32 m0, s{slot_reg}, {16384+q*1024}")
            if q == 0: A("s_mov_b64 exec, s[56:57]")
            else: A("s_nop 0")
            A(f"buffer_load_dwordx4 v{9+(q&1)}, s[28:31], s{44+q} offen {'nt ' if opt('WNT') else ''}lds")
            if q == 0: A("s_mov_b64 exec, -1")
        A("s_add_u32 s40, s40, 128\ns_add_u32 s41, s41, 128")
        for q in range(4):
            A(f"s_add_u32 s{44+q}, s{44+q}, s43")
        A(f"s_add_u32 s{slot_reg}, s{slot_reg}, {RING}\ns_cmp_ge_u32 s{slot_reg}, {NS*RING}\ns_cselect_b32 s52, {NS*RING}, 0\ns_sub_u32 s{slot_reg}, s{slot_reg}, s52")
    A("s_mov_b32 s49, s48")
    chunk(49); chunk(49)
    stamp(A, 1)
    srd(A, 32, WS, WS_USED)
    A("s_waitcnt lgkmcnt(0)")
    A(f"s_add_u32 s{S_E}, s{S_E}, 1\ns_xor_b32 s{S_EM}, s{S_E}, {MAGIC}")
    A(f"s_cmp_ge_u32 s{S_J}, 2\ns_cbranch_scc0 L_ld_su01")
    A(f"s_sub_u32 s58, s{S_J}, 2\ns_lshl_b32 s59, s{S_T0}, 1\ns_add_u32 s59, s59, s58")
    A("s_mov_b32 s50, 6554\ns_mov_b32 s53, 1280")
    for q in range(5):
        A(f"v_add_u32 v22, {64*q}, v1")
        A("v_mul_lo_u32 v23, s50, v22\nv_lshrrev_b32 v23, 16, v23")
        A("v_mul_u32_u24 v24, 10, v23\nv_sub_u32 v24, v22, v24\nv_lshlrev_b32 v24, 4, v24")
        A(f"v_mul_lo_u32 v23, s53, v23\nv_add_u32 v{52+q}, v23, v24")
    A("v_lshrrev_b32 v23, 4, v1\nv_lshrrev_b32 v24, 1, v23\nv_lshlrev_b32 v24, 4, v24")
    A("v_and_b32 v25, 1, v23\nv_lshlrev_b32 v25, 2, v25\nv_add_u32 v24, v24, v25\nv_bfe_u32 v25, v1, 2, 2\nv_add_u32 v24, v24, v25")
    A("v_mul_u32_u24 v24, 160, v24\nv_and_b32 v25, 3, v1\nv_lshlrev_b32 v25, 3, v25\nv_add_u32 v24, v24, v25")
    A(f"s_mul_i32 s50, s58, 5120\ns_add_u32 s50, s50, {LW}\nv_add_u32 v57, s50, v24")
    A(f"s_lshl_b32 s50, s{S_CT}, 1\ns_add_u32 s50, s50, s58\ns_lshr_b32 s53, s50, 2\ns_and_b32 s50, s50, 3")
    A(f"s_lshr_b32 s54, s53, 1\ns_lshl_b32 s54, s54, 5\ns_add_u32 s54, s54, s{S_T0}")
    A("s_and_b32 s55, s53, 1\ns_lshl_b32 s55, s55, 10\ns_add_u32 s54, s54, s55")
    A("v_and_b32 v22, 15, v1\nv_lshlrev_b32 v22, 6, v22\nv_add_u32 v22, s54, v22")
    A("s_lshl_b32 s55, s50, 3\nv_lshrrev_b32 v23, 4, v1\nv_lshlrev_b32 v23, 1, v23\nv_add_u32 v23, s55, v23")
    A("s_mov_b32 s55, 0x3a000000")
    for k, ds in enumerate([0, 1, 32, 33]):
        A(f"v_add_u32 v24, {ds}, v23\nv_mul_u32_u24 v24, v22, v24\nv_and_b32 v24, 0x7ff, v24\nv_cvt_f32_u32 v24, v24\nv_mul_f32 v24, s55, v24")
        A(f"v_cos_f32 v25, v24\nv_sin_f32 v26, v24\ns_nop 0\nv_cvt_pk_bf16_f32 v{60+k}, v25, -v26")
    A(f"s_lshl_b32 s63, s{S_T0}, 2\ns_add_u32 s63, s63, s53\ns_mul_i32 s63, s63, 58\ns_add_u32 s63, s63, s50\ns_add_u32 s63, s63, 54")
    A(f"s_lshl_b32 s63, s63, 10\ns_add_u32 s63, s63, {HF_OFF}")
    A(f"s_lshl_b32 s50, s{S_CT}, 6\ns_add_u32 s50, s50, s59\ns_lshl_b32 s50, s50, 3\ns_add_u32 s50, s50, {FW_OFF}\nv_mov_b32 v58, s50")
    A(f"s_lshl_b32 s50, s{S_T0}, 4\ns_lshl_b32 s53, s{S_CT}, 1\ns_add_u32 s50, s50, s53\ns_add_u32 s50, s50, s58\ns_lshl_b32 s50, s50, 3\ns_add_u32 s50, s50, {FF_OFF}\nv_mov_b32 v59, s50")
    A("v_cmp_eq_u32 vcc, 1, v1\ns_nop 1\nv_cndmask_b32 v58, v58, v59, vcc")
    A("s_branch L_ld_sud")
    A("L_ld_su01:")
    A("v_lshlrev_b32 v13, 3, v1\nv_and_b32 v16, 31, v1\nv_lshlrev_b32 v15, 3, v16")
    A(f"s_lshl_b32 s50, s{S_B}, 7\ns_add_u32 s50, s50, {FR1_OFF}\nv_add_u32 v12, s50, v15")
    A(f"s_lshl_b32 s50, s{S_C}, 7\ns_add_u32 s50, s50, {FC1_OFF-128}\nv_add_u32 v15, s50, v15")
    A("v_cmp_le_u32 vcc, 16, v16\ns_nop 1\nv_cndmask_b32 v12, v12, v15, vcc")
    A(f"s_lshl_b32 s50, s{S_CT}, 9\ns_add_u32 s50, s50, {FW_OFF}\nv_add_u32 v11, s50, v13")
    A(f"s_lshl_b32 s50, s{S_T0}, 7\ns_add_u32 s50, s50, {FF_OFF}\nv_and_b32 v14, 15, v1\nv_lshlrev_b32 v14, 3, v14\nv_add_u32 v59, s50, v14")
    A("L_ld_sud:")
    A("s_waitcnt vmcnt(8)")
    stamp(A, 2)
    A("s_barrier")
    chunk(49)
    A(f"s_cmp_ge_u32 s{S_J}, 2\ns_cbranch_scc1 L_ld_h1w\nL_ld_h1w_ret:")
    A(f"s_cmp_ge_u32 s{S_J}, 2\ns_cbranch_scc1 L_ld_b1w")
    A("s_waitcnt vmcnt(8)\ns_branch L_ld_b1d\nL_ld_b1w:")
    A("s_cmp_ge_u32 s59, 54\ns_cbranch_scc1 L_ld_b1n\ns_waitcnt vmcnt(13)\ns_branch L_ld_b1d\nL_ld_b1n:\ns_waitcnt vmcnt(8)\nL_ld_b1d:")
    A("s_barrier")
    stamp(A)
    pk = opt("POLLK", 5)
    assert pk in (5, 6)
    A(f"s_mov_b32 s53, 99\ns_mov_b32 s54, 99\ns_mov_b32 s55, 0\ns_mov_b32 s79, 99\ns_mov_b32 s81, 99\ns_mov_b32 s82, 99\ns_mov_b32 s83, 0")
    A(f"s_cmp_eq_u32 s{S_J}, 0\ns_cselect_b32 s53, {9-pk}, s53\ns_cselect_b32 s54, {9-pk-2}, s54\ns_cselect_b32 s55, {9-pk-1}, s55\ns_cselect_b32 s81, {9-pk-2}, s81")
    A(f"s_cmp_eq_u32 s{S_J}, 1\ns_cselect_b32 s53, {opt('FWPOLL', 1)}, s53")
    A(f"s_cmp_ge_u32 s{S_J}, 2\ns_cselect_b32 s82, 6, s82\ns_cselect_b32 s79, 3, s79\ns_cselect_b32 s83, 1, s83")
    A("s_mov_b32 s51, 7")
    A("L_ld_loop:")
    A("s_cmp_eq_u32 s51, s54\ns_cbranch_scc1 L_ld_h2\nL_ld_h2_ret:")
    chunk(49)
    A("s_cmp_eq_u32 s51, s79\ns_cbranch_scc1 L_ld_h3\nL_ld_h3_ret:")
    A("s_cmp_eq_u32 s51, s53\ns_cbranch_scc1 L_ld_h1\nL_ld_h1_ret:")
    A("s_cmp_eq_u32 s51, s81\ns_cbranch_scc1 L_ld_h4\nL_ld_h4_ret:")
    A("s_cmp_eq_u32 s51, s82\ns_cbranch_scc1 L_ld_h2w\nL_ld_h2w_ret:")
    A("s_cmp_lt_u32 s51, s55\ns_cbranch_scc1 L_ld_w25")
    A("s_cmp_eq_u32 s83, 0\ns_cbranch_scc1 L_ld_w8")
    A("s_cmp_eq_u32 s51, 6\ns_cbranch_scc1 L_ld_wW\ns_cmp_eq_u32 s51, 5\ns_cbranch_scc1 L_ld_wW")
    A("s_cmp_eq_u32 s51, 3\ns_cbranch_scc1 L_ld_w9\ns_cmp_eq_u32 s51, 2\ns_cbranch_scc1 L_ld_w9")
    A("L_ld_w8:\ns_waitcnt vmcnt(8)\ns_branch L_ld_wd")
    A("L_ld_wW:\ns_cmp_ge_u32 s59, 54\ns_cbranch_scc1 L_ld_w9\ns_waitcnt vmcnt(14)\ns_branch L_ld_wd\nL_ld_w9:\ns_waitcnt vmcnt(9)\ns_branch L_ld_wd")
    A("L_ld_w25:\ns_waitcnt vmcnt(17)\nL_ld_wd:")
    stamp(A)
    A("s_barrier")
    stamp(A)
    A("s_sub_u32 s51, s51, 1\ns_cmp_lg_u32 s51, 0\ns_cbranch_scc1 L_ld_loop")
    A("s_waitcnt vmcnt(0)")
    if not opt("WLATE", 1):
        A(f"s_cmp_eq_u32 s{S_J}, 1\ns_cbranch_scc0 L_ld_no1")
        spin(A, "L_ld_spw", 48, 11, 32, xcc=True)
        spin(A, "L_ld_spf", 50, 59, 32, xcc=True)
        A("L_ld_no1:")
    A(f"s_cmp_eq_u32 s{S_J}, 0\ns_cbranch_scc0 L_ld_nored")
    for b_ in range(1, 8):
        for k in range(4): A(f"v_add_f32 v{16+k}, v{16+k}, v{16+4*b_+k}")
    for k in range(4): A(f"v_mov_b32 v{20+k}, v{16+k}")
    A("s_nop 1")
    for k in range(4): A(f"v_permlane32_swap_b32 v{16+k}, v{20+k}")
    A("s_nop 0")
    for k in range(4): A(f"v_add_f32 v{16+k}, v{16+k}, v{20+k}")
    A(f"v_add_u32 v13, {LCS}, v13\nds_write_b128 v13, v[16:19]\ns_waitcnt lgkmcnt(0)")
    A("L_ld_nored:")
    A("s_barrier")
    stamp(A)
    A("s_barrier")
    A("s_branch L_ld_p2")
    A("L_ld_h1:")
    A(f"s_cmp_eq_u32 s{S_J}, 1\ns_cbranch_scc1 L_ld_h1f")
    A(f"buffer_load_dwordx2 v[14:15], v12, s[32:35], 0 offen {SC}")
    A("s_branch L_ld_h1_ret")
    A("L_ld_h1f:")
    A(f"buffer_load_dwordx2 v[48:49], v11, s[32:35], 0 offen {SC}")
    A(f"buffer_load_dwordx2 v[50:51], v59, s[32:35], 0 offen {SC}")
    A("s_branch L_ld_h1_ret")
    A("L_ld_h1w:")
    if opt("NOW"): A("s_branch L_ld_h1w_ret")
    A("s_cmp_ge_u32 s59, 54\ns_cbranch_scc1 L_ld_h1w_ret")
    srd(A, 84, W2, W2_BYTES)
    A(f"s_mul_i32 s50, s59, 40960\ns_mul_i32 s62, s{S_CT}, 160\ns_add_u32 s50, s50, s62")
    A(f"s_mul_i32 s62, s58, 5120\ns_add_u32 s62, s62, {LW}")
    for q in range(5):
        A(f"s_add_u32 m0, s62, {1024*q}\ns_nop 0")
        A(f"buffer_load_dwordx4 v{52+q}, s[84:87], s50 offen lds")
    A("s_branch L_ld_h1w_ret")
    A("L_ld_h2:")
    spin(A, "L_ld_sp", 14, 12, 32, xcc=True)
    A(f"v_and_b32 v50, 16, v1\nv_cmp_eq_u32 s[60:61], 0, v50\nv_cmp_ne_u32 vcc, s{S_XCC}, v15\ns_nop 3\ns_and_b64 vcc, vcc, s[60:61]")
    A(f"s_cmp_eq_u64 vcc, 0\ns_cselect_b32 s62, {1 if opt('LOCALH', 2) and opt('MAP1', 1) else 0}, 0")
    A(f"v_mov_b32 v50, {LCNT + 12}\nv_mov_b32 v51, s62\nds_write_b32 v50, v51")
    A("s_branch L_ld_h2_ret")
    A("L_ld_h4:")
    A(f"s_lshl_b32 s50, s{S_B}, 10\ns_add_u32 s50, s50, {ST_OFF}\ns_mov_b32 m0, {LST}\nv_lshlrev_b32 v13, 4, v1")
    A(f"buffer_load_dwordx4 v13, s[36:39], s50 offen {SC} lds")
    A(f"s_lshl_b32 s50, s{S_F0}, 2\ns_add_u32 s50, s50, {CS_OFF}")
    A("v_and_b32 v13, 31, v1\nv_lshlrev_b32 v13, 4, v13\nv_lshrrev_b32 v14, 5, v1\nv_lshlrev_b32 v14, 13, v14\nv_add_u32 v14, v13, v14")
    for b_ in range(8):
        A(f"buffer_load_dwordx4 v[{16+4*b_}:{19+4*b_}], v14, s[36:39], s50 offen {SC}")
        if b_ < 7: A("s_add_u32 s50, s50, 16384")
    A("s_branch L_ld_h4_ret")
    A("L_ld_h2w:")
    A(f"v_lshlrev_b32 v22, 4, v1\nbuffer_store_dwordx4 v[60:63], v22, s[32:35], s63 offen {SC}")
    if opt("NOW"): A("s_branch L_ld_h2w_ret")
    A("s_cmp_ge_u32 s59, 54\ns_cbranch_scc1 L_ld_h2w_ret")
    for n in range(5):
        A(f"ds_read_b64_tr_b16 v[{24+4*n}:{25+4*n}], v57 offset:{32*n}")
        A(f"ds_read_b64_tr_b16 v[{26+4*n}:{27+4*n}], v57 offset:{32*n+1280}")
    A(f"s_mul_i32 s50, s{S_CT}, 54\ns_add_u32 s50, s50, s59\ns_mul_i32 s50, s50, 5120\ns_add_u32 s50, s50, {W2F_OFF}")
    A("v_add_u32 v23, 4096, v22\ns_waitcnt lgkmcnt(0)")
    for n in range(4):
        A(f"buffer_store_dwordx4 v[{24+4*n}:{27+4*n}], v22, s[32:35], s50 offen offset:{1024*n} {SC}")
    A(f"buffer_store_dwordx4 v[40:43], v23, s[32:35], s50 offen {SC}")
    A("s_branch L_ld_h2w_ret")
    A("L_ld_h3:")
    store_flags(A, 58, 2, 32, 64, xcc=True)
    A("s_branch L_ld_h3_ret")
    A("L_ld_p2:")
    stamp(A, 3)
    if opt("P1ONLY"):
        stamp_flush(A, 0, WS, 9)
        A("s_endpgm")
    if opt("WLATE", 1):
        A(f"v_mov_b32 v16, {LCNT + 20}")
        A(f"s_cmp_eq_u32 s{S_J}, 1\ns_cbranch_scc0 L_ld_ww")
        spin(A, "L_ld_spw", 48, 11, 32, xcc=True)
        spin(A, "L_ld_spf", 50, 59, 32, xcc=True)
        A("v_mov_b32 v17, 1\nds_write_b32 v16, v17\ns_waitcnt lgkmcnt(0)\ns_branch L_ld_wgo")
        A("L_ld_ww:\nds_read_b32 v17, v16\ns_waitcnt lgkmcnt(0)\ns_nop 0\nv_readfirstlane_b32 s50, v17\ns_nop 3\ns_cmp_eq_u32 s50, 1\ns_cbranch_scc1 L_ld_wgo")
        A(f"s_sub_u32 s{S_SPIN}, s{S_SPIN}, 1\ns_cmp_eq_u32 s{S_SPIN}, 0\ns_cbranch_scc0 L_ld_ww")
        A("L_ld_wgo:")
    p2(A)

def p2(A):
    J = S_J
    HSC = "" if opt("HPLAIN") else SC
    WSC = "" if opt("WPLAIN") else SC
    if opt("W2NT"): WSC += " nt"
    ACC = 16
    SET = [96, 132, 168]
    XR = 204
    VP = 214
    acc = lambda nt, a: ACC + 4 * (4 * nt + a)
    srd(A, 24, WS, WS_USED)
    srd(A, 28, WS, 4 * HF_TILE)
    A(f"s_mul_i32 s50, s{S_T0}, {4*HF_TILE}")
    if HF_OFF: A(f"s_add_u32 s50, s50, {HF_OFF}")
    A("s_add_u32 s28, s28, s50\ns_addc_u32 s29, s29, 0")
    srd(A, 32, X_, X_BYTES)
    srd(A, 40, OUT, X_BYTES)
    A("v_lshlrev_b32 v2, 4, v1\nv_add_u32 v3, 4096, v2")
    for a_ in range(4):
        A(f"s_add_u32 s50, s{J}, {a_}\ns_and_b32 s50, s50, 3\ns_mul_i32 s50, s50, {HF_TILE}\nv_add_u32 v{4+a_}, s50, v2")
    A("v_and_b32 v8, 15, v1\ns_mov_b32 s50, 81920\nv_mul_lo_u32 v8, s50, v8")
    A("v_lshrrev_b32 v9, 4, v1\nv_lshlrev_b32 v9, 3, v9\nv_add_u32 v8, v8, v9")
    A(f"s_lshr_b32 s38, s{J}, 1\ns_lshl_b32 s38, s38, 5\ns_add_u32 s38, s38, s{S_T0}")
    A(f"s_and_b32 s39, s{J}, 1\ns_lshl_b32 s39, s39, 10\ns_add_u32 s38, s38, s39\ns_mul_i32 s38, s38, 1280")
    A(f"s_mul_i32 s39, s{S_CT}, 160\ns_add_u32 s38, s38, s39")
    rotn = opt("ROT2", 2)
    A(f"s_and_b32 s50, s{S_T0}, {rotn - 1 if rotn else 0}\ns_mul_i32 s50, s50, {14 // rotn if rotn else 0}")
    A(f"s_lshl_b32 s50, s50, 2\ns_add_u32 s44, s50, s{J}\ns_mov_b32 s45, s44")
    A(f"s_mul_i32 s49, s{S_CT}, {54*5120}\ns_add_u32 s49, s49, {W2F_OFF}")
    def adv(r):
        A(f"s_add_u32 s{r}, s{r}, 4\ns_cmp_ge_u32 s{r}, 54\ns_cselect_b32 s{r}, s{J}, s{r}")
    def loadB(si):
        b = SET[si]
        A("s_mul_i32 s50, s44, 5120\ns_add_u32 s50, s50, s49")
        for n in range(4):
            A(f"buffer_load_dwordx4 v[{b+4*n}:{b+4*n+3}], v2, s[24:27], s50 offen offset:{1024*n} {WSC}")
        A(f"buffer_load_dwordx4 v[{b+16}:{b+19}], v3, s[24:27], s50 offen {WSC}")
        adv(44)
    def loadA(si, tstep=False):
        b = SET[si] + 20
        if tstep:
            A(f"s_add_u32 s50, s{J}, 2\ns_and_b32 s50, s50, 3\ns_add_u32 s50, s50, 54\ns_lshl_b32 s50, s50, 10")
        else:
            A("s_lshl_b32 s50, s45, 10")
        for a_ in range(4):
            A(f"buffer_load_dwordx4 v[{b+4*a_}:{b+4*a_+3}], v{4+a_}, s[28:31], s50 offen {HSC}")
        if not tstep: adv(45)
    def loadT(si):
        b = SET[si]
        A("s_mov_b32 s50, s46")
        for n in range(5):
            A(f"buffer_load_dwordx4 v[{b+4*n}:{b+4*n+3}], v10, s[24:27], s50 offen {SC}")
            if n < 4: A("s_add_u32 s50, s50, s47")
    def mfmas(si):
        b = SET[si]
        for a_ in range(4):
            for nt in range(5):
                c = acc(nt, a_)
                if not opt("NOCOMP2"):
                    A(f"{MFMA16} v[{c}:{c+3}], v[{b+4*nt}:{b+4*nt+3}], v[{b+20+4*a_}:{b+23+4*a_}], v[{c}:{c+3}]")
    def xorA(si):
        b = SET[si] + 20
        for k in range(16): A(f"v_xor_b32 v{b+k}, s48, v{b+k}")
        A("s_nop 0")
    NB0 = opt("NB0", 2)
    for si in range(NB0): loadB(si)
    for i in range(80): A(f"v_mov_b32 v{ACC+i}, 0")
    A(f"v_lshrrev_b32 v10, 4, v1\nv_mul_u32_u24 v10, {TF_ROW}, v10\nv_and_b32 v11, 15, v1")
    A(f"s_mul_i32 s50, s{S_CT}, 80\nv_add_u32 v12, s50, v11\nv_sub_u32 v13, 576, v12")
    A(f"s_cmp_lt_u32 s{S_CT}, 4\ns_cselect_b64 s[60:61], -1, 0\nv_cndmask_b32 v12, v13, v12, s[60:61]")
    A("v_lshlrev_b32 v12, 4, v12\nv_add_u32 v10, v10, v12")
    A(f"s_sub_u32 s46, 32, s{S_T0}\ns_and_b32 s46, s46, 31\ns_cmp_lt_u32 s{S_CT}, 4\ns_cselect_b32 s46, s{S_T0}, s46")
    A(f"s_mul_i32 s46, s46, {TF_T0}\ns_add_u32 s46, s46, {TF_OFF}")
    A(f"s_mov_b32 s47, 256\ns_mov_b32 s50, -256\ns_cmp_lt_u32 s{S_CT}, 4\ns_cselect_b32 s47, s47, s50\ns_cselect_b32 s50, 0, 1024\ns_cselect_b32 s48, 0x80000000, 0")
    A("s_add_u32 s46, s46, s50")
    A(f"s_add_u32 s50, s{J}, 2\ns_and_b32 s50, s50, 3\ns_mul_i32 s50, s50, {4*TF_ROW}\ns_add_u32 s46, s46, s50")
    A(f"s_lshl_b32 s50, s{S_CT}, 10\ns_add_u32 s50, s50, {FT_OFF}\nv_lshlrev_b32 v12, 3, v1\nv_add_u32 v12, s50, v12")
    A("v_and_b32 v13, 15, v1\nv_lshlrev_b32 v13, 3, v13\nv_add_u32 v13, s50, v13\nv_add_u32 v13, 512, v13")
    A(f"s_cmp_eq_u32 s{J}, 0\ns_cbranch_scc0 L_p2_lw")
    A(f"s_lshr_b32 s50, s{S_T0}, 1\ns_lshl_b32 s50, s50, 7\ns_add_u32 s50, s50, {FH_OFF}")
    A("v_and_b32 v14, 15, v1\nv_lshlrev_b32 v14, 3, v14\nv_add_u32 v11, s50, v14")
    A(f"buffer_load_dwordx2 v[{VP}:{VP+1}], v11, s[24:27], 0 offen {SC}\ns_waitcnt vmcnt(0)")
    if opt("SPINSTAMP") == "L_p2_sp1": stamp(A)
    spin(A, "L_p2_sp1", VP, 11, 24, xcc=True)
    A(f"v_mov_b32 v14, {LCNT + 16}\nv_mov_b32 v15, 1\nds_write_b32 v14, v15\ns_waitcnt lgkmcnt(0)")
    A("s_branch L_p2_go")
    A("L_p2_lw:")
    if opt("P2ONLY"): A("s_branch L_p2_go")
    A(f"v_mov_b32 v14, {LCNT + 16}")
    A("L_p2_lw1:\nds_read_b32 v15, v14\ns_waitcnt lgkmcnt(0)\ns_nop 0\nv_readfirstlane_b32 s50, v15\ns_nop 3\ns_cmp_eq_u32 s50, 1\ns_cbranch_scc1 L_p2_go")
    A(f"s_sleep 1\ns_sub_u32 s{S_SPIN}, s{S_SPIN}, 1\ns_cmp_eq_u32 s{S_SPIN}, 0\ns_cbranch_scc0 L_p2_lw1")
    A("L_p2_go:")
    stamp(A, 5)
    for si in range(NB0): loadA(si)
    for si in range(NB0, 3):
        loadB(si); loadA(si)
    def loadX():
        for n in range(5):
            A(f"buffer_load_dwordx2 v[{XR+2*n}:{XR+2*n+1}], v8, s[32:35], s38 offen offset:{32*n}")
    XLATE = opt("XLATE", 1)
    if not XLATE: loadX()
    def step(si, vm, pre):
        A(f"s_waitcnt vmcnt({vm})")
        mfmas(si)
        pre()
    reg = lambda si: (lambda: (loadB(si), loadA(si)))
    order = [(si, 4) for si in range(NB0)] + [(si, 9) for si in range(NB0, 3)] + ([] if XLATE else [(-1, 5)])
    for st_ in range(3):
        idx = max(i for i, (si, n) in enumerate(order) if si == st_)
        younger = sum(n for (si, n) in order[idx+1:]) + 9 * st_
        step(st_, younger, reg(st_))
        if opt("STEPSTAMP"): stamp(A)
    stamp(A)
    A("s_mov_b32 s51, 2")
    A("L_p2_loop:")
    for si in range(3):
        step(si, 18, reg(si))
        if opt("STEPSTAMP"): stamp(A)
    A("s_cmp_eq_u32 s51, 2\ns_cbranch_scc0 L_p2_nt")
    A(f"buffer_load_dwordx2 v[{VP}:{VP+1}], v12, s[24:27], 0 offen {SC}\nbuffer_load_dwordx2 v[{VP+2}:{VP+3}], v13, s[24:27], 0 offen {SC}")
    A("L_p2_nt:")
    A("s_sub_u32 s51, s51, 1\ns_cmp_lg_u32 s51, 0\ns_cbranch_scc1 L_p2_loop")
    stamp(A)
    step(0, 18, reg(0))
    spin(A, "L_p2_sp2", VP, 12, 24)
    spin(A, "L_p2_sp3", VP + 2, 13, 24)
    A(f"s_cmp_eq_u32 s2, 0\ns_cbranch_scc0 L_p2_noep\ns_cmp_eq_u32 s{J}, 0\ns_cbranch_scc0 L_p2_noep")
    A(f"v_mov_b32 v14, s{S_E}\nv_mov_b32 v15, {EP_OFF}\ns_mov_b64 exec, 1\nbuffer_store_dword v14, v15, s[24:27], 0 offen {SC}\ns_mov_b64 exec, -1")
    A("L_p2_noep:")
    stamp(A)
    A(f"s_cmp_lt_u32 s{J}, 2\ns_cbranch_scc0 L_p2_hi")
    step(1, 18, reg(1))
    step(2, 18, lambda: (loadT(2), loadA(2, True), loadX() if XLATE else None))
    xq = 5 if XLATE else 0
    step(0, 18 + xq, lambda: None)
    step(1, 9 + xq, lambda: None)
    A(f"s_waitcnt vmcnt({xq})"); xorA(2); mfmas(2)
    A("s_branch L_p2_red")
    A("L_p2_hi:")
    step(1, 18, lambda: (loadT(1), loadA(1, True), loadX() if XLATE else None))
    step(2, 18 + xq, lambda: None)
    step(0, 9 + xq, lambda: None)
    A(f"s_waitcnt vmcnt({xq})"); xorA(1); mfmas(1)
    A("L_p2_red:")
    stamp(A)
    A("s_nop 7")
    for a_ in range(1, 4):
        A(f"s_add_u32 s50, s{J}, {a_}\ns_and_b32 s50, s50, 3\ns_mul_i32 s50, s50, 3\ns_add_u32 s50, s50, {a_-1}\ns_mul_i32 s50, s50, 5120\nv_add_u32 v14, s50, v2")
        for nt in range(5):
            c = acc(nt, a_)
            A(f"ds_write_b128 v14, v[{c}:{c+3}] offset:{nt*1024}")
    A("s_waitcnt lgkmcnt(0)\ns_barrier")
    A(f"s_mul_i32 s50, s{J}, {3*5120}\nv_add_u32 v14, s50, v2")
    for pos in range(3):
        for nt in range(5):
            r = 96 + 20 * pos + 4 * nt
            A(f"ds_read_b128 v[{r}:{r+3}], v14 offset:{pos*5120+nt*1024}")
    for pos in range(3):
        A(f"s_waitcnt lgkmcnt({10 - 5*pos})")
        for nt in range(5):
            r = 96 + 20 * pos + 4 * nt; c = acc(nt, 0)
            for k in range(4): A(f"v_add_f32 v{c+k}, v{c+k}, v{r+k}")
    A("s_waitcnt vmcnt(0)")
    for n in range(5):
        c = acc(n, 0); x = XR + 2 * n; t = 168 + 4 * n
        A(f"v_lshlrev_b32 v{t}, 16, v{x}\nv_and_b32 v{t+1}, 0xffff0000, v{x}")
        A(f"v_lshlrev_b32 v{t+2}, 16, v{x+1}\nv_and_b32 v{t+3}, 0xffff0000, v{x+1}")
        for k in range(4): A(f"v_add_f32 v{t+k}, v{t+k}, v{c+k}")
        A(f"v_cvt_pk_bf16_f32 v{x}, v{t}, v{t+1}\nv_cvt_pk_bf16_f32 v{x+1}, v{t+2}, v{t+3}")
        A(f"buffer_store_dwordx2 v[{x}:{x+1}], v8, s[40:43], s38 offen offset:{32*n}")
    stamp(A)
    if opt("CLK") and asmlib.PROFILE:
        A("s_memtime s[90:91]\ns_waitcnt lgkmcnt(0)\ns_sub_u32 s90, s90, s88\ns_mov_b32 m0, 62\nv_writelane_b32 v0, s90, m0")
    stamp_flush(A, 0, WS, 9)
    A("s_endpgm")

def gen(A, name):
    global KNAME
    KNAME = name
    kernel_head(A, name)
    entry(A)
    if opt("P2ONLY"):
        A(f"s_mov_b32 s{S_SPIN}, 1\ns_cmp_lt_u32 s3, 4\ns_cbranch_scc1 L_end\ns_sub_u32 s{S_J}, s3, 4\ns_waitcnt lgkmcnt(0)\ns_branch L_ld_p2")
    A("s_cmp_ge_u32 s3, 4\ns_cbranch_scc1 L_loader")
    jobs_issue(A)
    A(f"s_cmp_lt_u32 s{S_C}, 5\ns_cbranch_scc1 L_mx")
    p1_hh(A)
    p1_mx(A)
    loader(A)
    A("L_end:\ns_endpgm\nL_code_end:")
```

```python
from asmlib import *
import asmlib
from layout import *

MFMA32 = "v_mfma_f32_32x32x16_bf16"
MFMA16 = "v_mfma_f32_16x16x32_bf16"
RING = 32768; NS = 4
SLOT = 20480; NS2 = 6
LX = NS2 * SLOT
LW = 132 * 1024
LST = 152 * 1024
LCS = LST + 1024
LCNT = LST + 2048
LDS_TOTAL = LCNT + 64
X_, SRE, SIM, HRE, HIM, WS = 4, 6, 8, 10, 12, 16
W1, W2, OUT, DBG = 64, 66, 68, 70
S_B, S_C, S_F0, S_J = 18, 19, 20, 21
S_T0, S_CT = 72, 73
S_SPIN = 74
SC = "sc1"
SPIN_MAX = 200000
CPW = 3

MAGIC = 0x5A3C96E1
S_E, S_EM = 75, 76
S_XCC = 77
S_LOCAL = 78

def spin(A, name, vp, vaddr, srdp, xcc=False):
    A(f"{name}:")
    if xcc:
        A(f"v_xor_b32 v{vp+1}, s{S_EM}, v{vp+1}\nv_cmp_ne_u32 vcc, s{S_E}, v{vp}\nv_cmp_lt_u32 s[60:61], 15, v{vp+1}\ns_nop 3\ns_or_b64 vcc, vcc, s[60:61]")
    else:
        A(f"v_cmp_ne_u32 vcc, s{S_E}, v{vp}\nv_cmp_ne_u32 s[60:61], s{S_EM}, v{vp+1}\ns_nop 3\ns_or_b64 vcc, vcc, s[60:61]")
    A(f"s_cbranch_vccz {name}_ok")
    if opt("P2ONLY"): A(f"s_branch {name}_ok")
    A(f"s_sub_u32 s{S_SPIN}, s{S_SPIN}, 1\ns_cmp_eq_u32 s{S_SPIN}, 0\ns_cbranch_scc1 {name}_ok")
    A(f"s_sleep {opt('SLEEP', 4)}")
    A(f"buffer_load_dwordx2 v[{vp}:{vp+1}], v{vaddr}, s[{srdp}:{srdp+3}], 0 offen {SC}\ns_waitcnt vmcnt(0)")
    if opt("SPINSTAMP") == name: stamp(A)
    A(f"s_branch {name}\n{name}_ok:")

def store_flags(A, vaddr, nlanes, srdp, vt, xcc=False, local=None):
    if xcc:
        A(f"s_xor_b32 s62, s{S_EM}, s{S_XCC}\nv_mov_b32 v{vt}, s{S_E}\nv_mov_b32 v{vt+1}, s62\ns_mov_b64 exec, {(1 << nlanes) - 1}")
    else:
        A(f"v_mov_b32 v{vt}, s{S_E}\nv_mov_b32 v{vt+1}, s{S_EM}\ns_mov_b64 exec, {(1 << nlanes) - 1}")
    if local:
        A(f"s_cmp_eq_u32 s{S_LOCAL}, 1\ns_cbranch_scc1 {local}_fp")
    A(f"buffer_store_dwordx2 v[{vt}:{vt+1}], v{vaddr}, s[{srdp}:{srdp+3}], 0 offen {SC}")
    if local:
        A(f"s_branch {local}_fd\n{local}_fp:")
        A(f"buffer_store_dwordx2 v[{vt}:{vt+1}], v{vaddr}, s[{srdp}:{srdp+3}], 0 offen")
        A(f"{local}_fd:")
    A("s_mov_b64 exec, -1")

def flag_addr_h(A, v):
    A(f"s_lshl_b32 s62, s{S_B}, 4\ns_add_u32 s62, s62, s{S_C}\ns_lshl_b32 s62, s62, 3\ns_add_u32 s62, s62, {FH_OFF}\nv_mov_b32 v{v}, s62")
def flag_addr_t(A, v):
    A(f"s_lshl_b32 s62, s{S_C}, 4\ns_add_u32 s62, s62, s{S_B}\ns_lshl_b32 s62, s62, 3\ns_add_u32 s62, s62, {FT_OFF}")
    A(f"v_lshlrev_b32 v{v}, 10, v1\nv_add_u32 v{v}, s62, v{v}")
def flag_addr_early(A, v):
    A(f"s_lshl_b32 s62, s{S_B}, 4\ns_add_u32 s62, s62, s{S_C}\ns_lshl_b32 s62, s62, 3\ns_add_u32 s58, s62, {FR1_OFF}")
    A(f"s_lshl_b32 s62, s{S_C}, 4\ns_add_u32 s62, s62, s{S_B}\ns_lshl_b32 s62, s62, 3\ns_add_u32 s62, s62, {FC1_OFF}")
    A(f"s_cmp_eq_u32 s3, 1\ns_cselect_b32 s58, s62, s58\nv_mov_b32 v{v}, s58")

def epoch_ready(A):
    A("s_waitcnt lgkmcnt(0)")
    A(f"s_add_u32 s{S_E}, s{S_E}, 1\ns_xor_b32 s{S_EM}, s{S_E}, {MAGIC}")
    srd(A, 48, WS, WS_USED)

def lds_arrive(A, word, vt, sdst):
    A(f"v_mov_b32 v{vt}, {LCNT + 4*word}\nv_mov_b32 v{vt+1}, 1\ns_mov_b64 exec, 1")
    A(f"ds_add_rtn_u32 v{vt+1}, v{vt}, v{vt+1}\ns_waitcnt lgkmcnt(0)\ns_mov_b64 exec, -1\ns_nop 0")
    A(f"v_readfirstlane_b32 s{sdst}, v{vt+1}")
    A("s_nop 3")

def entry(A):
    A("s_cmp_ge_u32 s2, 256\ns_cbranch_scc1 L_end")
    A(f"s_load_dwordx4 s[4:7], s[0:1], {KA_X}")
    A(f"s_load_dwordx4 s[8:11], s[0:1], {KA_SIM}")
    A(f"s_load_dwordx2 s[12:13], s[0:1], {KA_HIM}")
    A(f"s_load_dwordx4 s[64:67], s[0:1], {KA_W1}")
    A(f"s_load_dwordx4 s[68:71], s[0:1], {KA_OUT}")
    A(f"s_load_dwordx2 s[16:17], s[0:1], {KA_WS}")
    A("v_lshrrev_b32 v2, 6, v0\nv_and_b32 v1, 63, v0\ns_nop 0\nv_readfirstlane_b32 s3, v2")
    if opt("CODEPF", 1):
        A(f"s_nop 3\ns_cmp_eq_u32 s3, {CPW}\ns_cbranch_scc0 L_nocp")
        A("s_getpc_b64 s[50:51]\nJ_pc:")
        A(f"s_sub_u32 s50, s50, J_pc-{KNAME}\ns_subb_u32 s51, s51, 0")
        mode = opt("CPMODE", 1)
        A(f"s_mov_b32 s52, ((L_code_end-{KNAME})>>7)-1")
        if mode == 0:
            A("s_lshr_b32 s53, s2, 3\ns_mul_i32 s53, s53, 6\nv_add_u32 v22, s53, v1\nv_min_u32 v22, s52, v22\nv_lshlrev_b32 v22, 7, v22")
            A("v_mov_b32 v23, s51\nv_add_co_u32 v22, vcc, s50, v22\ns_nop 1\nv_addc_co_u32 v23, vcc, 0, v23, vcc")
            A("s_mov_b64 exec, 63\nglobal_load_dword v127, v[22:23], off\ns_mov_b64 exec, -1")
        else:
            for n in range(3):
                A(f"v_add_u32 v22, {64*n}, v1\nv_min_u32 v22, s52, v22\nv_lshlrev_b32 v22, 7, v22")
                A("v_mov_b32 v23, s51\nv_add_co_u32 v22, vcc, s50, v22\ns_nop 1\nv_addc_co_u32 v23, vcc, 0, v23, vcc")
                A(f"global_load_dword v{125+n}, v[22:23], off")
        A("L_nocp:")
    A("s_and_b32 s24, s2, 7\ns_lshr_b32 s25, s2, 3\ns_lshr_b32 s27, s25, 3\ns_and_b32 s28, s25, 7")
    if opt("MAP1", 1):
        A(f"s_lshl_b32 s26, s24, 1\ns_lshr_b32 s29, s25, 4\ns_add_u32 s{S_B}, s26, s29\ns_and_b32 s{S_C}, s25, 15")
    else:
        A(f"s_lshr_b32 s26, s24, 1\ns_lshl_b32 s26, s26, 2\ns_add_u32 s{S_B}, s26, s27")
        A(f"s_and_b32 s26, s24, 1\ns_lshl_b32 s26, s26, 3\ns_add_u32 s{S_C}, s26, s28")
    A(f"s_lshl_b32 s26, s{S_C}, 6\ns_lshl_b32 s29, s{S_C}, 7\ns_sub_u32 s29, s29, 320")
    A(f"s_cmp_lt_u32 s{S_C}, 5\ns_cselect_b32 s{S_F0}, s26, s29")
    A(f"s_lshl_b32 s24, s24, 2\ns_add_u32 s{S_T0}, s24, s27\ns_mov_b32 s{S_CT}, s28")
    A(f"s_mov_b32 s{S_SPIN}, {SPIN_MAX}")
    A(f"s_getreg_b32 s{S_XCC}, hwreg(HW_REG_XCC_ID)\ns_and_b32 s{S_XCC}, s{S_XCC}, 15")
    A("s_waitcnt lgkmcnt(0)")
    stamp_init(A)
    if opt("CLK"): A("s_memtime s[88:89]\ns_waitcnt lgkmcnt(0)")
    A(f"s_mov_b32 s62, {EP_OFF}\ns_load_dword s{S_E}, s[{WS}:{WS+1}], s62")
    stamp(A, 0, force=True)

def jobs_issue(A):
    srd(A, 24, X_, X_BYTES); srd(A, 28, W1, W1_BYTES); srd(A, 36, WS, WS_USED)
    A("s_cmp_eq_u32 s3, 0\ns_cbranch_scc1 J_x_i\ns_cmp_eq_u32 s3, 1\ns_cbranch_scc1 J_c_i")
    A("s_branch J_i_done")
    A("J_x_i:")
    A(f"s_lshr_b32 s48, s{S_C}, 2\ns_and_b32 s49, s{S_C}, 3")
    A(f"s_lshl_b32 s50, s{S_B}, 1\ns_and_b32 s51, s48, 1\ns_add_u32 s50, s50, s51")
    A("s_lshr_b32 s51, s48, 1\ns_lshl_b32 s51, s51, 5\ns_add_u32 s50, s50, s51")
    A("s_lshl_b32 s51, s49, 9\ns_add_u32 s50, s50, s51\ns_mul_i32 s50, s50, 1280")
    A("v_lshrrev_b32 v22, 3, v1\ns_mov_b32 s51, 81920\nv_mul_lo_u32 v22, s51, v22")
    A("v_and_b32 v23, 7, v1\nv_lshlrev_b32 v23, 4, v23\nv_add_u32 v22, v22, v23")
    for i in range(10):
        A(f"buffer_load_dwordx4 v[{32+4*i}:{35+4*i}], v22, s[24:27], s50 offen offset:{128*i}")
    A(f"v_mov_b32 v22, {LCNT}\nv_mov_b32 v24, 0\nv_mov_b32 v25, 0\nv_mov_b32 v26, 0\nv_mov_b32 v27, 0\nds_write_b128 v22, v[24:27]\nds_write_b128 v22, v[24:27] offset:16")
    A("s_branch J_i_done")
    A("J_c_i:")
    A("v_lshrrev_b32 v22, 4, v1\nv_mul_u32_u24 v22, 3456, v22\nv_and_b32 v23, 15, v1\nv_lshlrev_b32 v23, 4, v23\nv_add_u32 v22, v22, v23")
    A(f"s_mul_i32 s50, s{S_B}, {40*3456}\ns_lshl_b32 s51, s{S_F0}, 1\ns_add_u32 s50, s50, s51")
    for i in range(10):
        A(f"buffer_load_dwordx4 v[{32+4*i}:{35+4*i}], v22, s[28:31], s50 offen")
        if i < 9: A(f"s_add_u32 s50, s50, {4*3456}")
    A(f"s_cmp_eq_u32 s{S_C}, 0\ns_cbranch_scc0 J_i_done")
    A("v_and_b32 v23, 7, v1\nv_lshlrev_b32 v23, 4, v23\nv_bfe_u32 v24, v1, 3, 2\nv_lshlrev_b32 v24, 15, v24\nv_add_u32 v23, v23, v24")
    A(f"v_add_u32 v23, {16384+8192+4096}, v23")
    A("v_mov_b32 v24, 0xbf803f80\nv_mov_b32 v25, 0x3f80bf80\nv_mov_b32 v26, 0xbf803f80\nv_mov_b32 v27, 0x3f80bf80")
    A("ds_write_b128 v23, v[24:27]")
    A("s_branch J_i_done")
    A("J_i_done:")

def dpp_add(A, r, ctrl):
    A(f"v_add_f32_dpp v{r}, v{r}, v{r} {ctrl} row_mask:0xf bank_mask:0xf")

def jobs_finish(A, nG_, tagx):
    nG = tagx
    class _N(str):
        pass
    A("s_cmp_eq_u32 s3, 0\ns_cbranch_scc1 %s\ns_cmp_eq_u32 s3, 1\ns_cbranch_scc1 %s\ns_branch %s" % (f"J_x_{nG}", f"J_c_{nG}", f"J_done_{nG}"))
    A(f"J_x_{nG}:")
    A("v_mov_b32 v22, 0\nv_mov_b32 v23, 0\nv_mov_b32 v24, 0\nv_mov_b32 v25, 0\ns_mov_b32 s52, 0x3f803f80")
    for i in range(10):
        A(f"s_waitcnt vmcnt({9-i+nG_})")
        for k in range(4):
            r = 32 + 4 * i + k
            A(f"v_dot2_f32_bf16 v{22+(k&1)}, v{r}, s52, v{22+(k&1)}")
            A(f"v_dot2_f32_bf16 v{24+(k&1)}, v{r}, v{r}, v{24+(k&1)}")
    A("s_nop 2\nv_add_f32 v22, v22, v23\nv_add_f32 v24, v24, v25\ns_nop 1")
    for ctrl in ["quad_perm:[1,0,3,2]", "quad_perm:[2,3,0,1]", "row_half_mirror"]:
        dpp_add(A, 22, ctrl); dpp_add(A, 24, ctrl); A("s_nop 0")
    A("s_mov_b32 s52, 0x3acccccd\nv_mul_f32 v22, s52, v22\nv_mul_f32 v24, s52, v24")
    A("v_fma_f32 v24, -v22, v22, v24\nv_max_f32 v24, 0, v24\nv_add_f32 v24, 0x3727c5ac, v24\nv_rsq_f32 v23, v24")
    A(f"s_lshl_b32 s52, s{S_B}, 10\ns_lshl_b32 s53, s{S_C}, 5\ns_add_u32 s52, s52, s53\ns_add_u32 s52, s52, {ST_OFF}")
    A("v_lshrrev_b32 v25, 3, v1\nv_lshlrev_b32 v25, 2, v25")
    A("v_and_b32 v26, 7, v1\nv_cmp_eq_u32 vcc, 0, v26\ns_and_saveexec_b64 s[54:55], vcc")
    A(f"buffer_store_dword v22, v25, s[36:39], s52 offen {SC}\nbuffer_store_dword v23, v25, s[36:39], s52 offen offset:512 {SC}")
    A("s_mov_b64 exec, s[54:55]")
    A(f"s_branch J_done_{nG}")
    A(f"J_c_{nG}:")
    for k in range(8): A(f"v_mov_b32 v{72+k}, 0")
    A("s_mov_b32 s52, 0x00003f80\ns_mov_b32 s53, 0x3f800000")
    for i in range(10):
        A(f"s_waitcnt vmcnt({9-i+nG_})")
        for k in range(4):
            r = 32 + 4 * i + k
            A(f"v_dot2_f32_bf16 v{72+2*k}, v{r}, s52, v{72+2*k}")
            A(f"v_dot2_f32_bf16 v{73+2*k}, v{r}, s53, v{73+2*k}")
    A("s_nop 2")
    for sw in ["v_permlane16_swap_b32", "v_permlane32_swap_b32"]:
        for k in range(8): A(f"v_mov_b32 v{80+k}, v{72+k}")
        A("s_nop 0")
        for k in range(8): A(f"{sw} v{72+k}, v{80+k}")
        A("s_nop 0")
        for k in range(8): A(f"v_add_f32 v{72+k}, v{72+k}, v{80+k}")
    A(f"s_lshl_b32 s52, s{S_B}, 13\ns_lshl_b32 s53, s{S_F0}, 2\ns_add_u32 s52, s52, s53\ns_add_u32 s52, s52, {CS_OFF}")
    A(f"v_lshlrev_b32 v22, 5, v1\ns_mov_b32 s53, 16\ns_cmp_lt_u32 s{S_C}, 5\ns_cselect_b32 s53, 8, s53")
    A("v_cmp_gt_u32 vcc, s53, v1\ns_and_saveexec_b64 s[54:55], vcc")
    A(f"buffer_store_dwordx4 v[72:75], v22, s[36:39], s52 offen {SC}\nbuffer_store_dwordx4 v[76:79], v22, s[36:39], s52 offen offset:16 {SC}")
    A("s_mov_b64 exec, s[54:55]")
    A(f"s_branch J_done_{nG}")
    A(f"J_done_{nG}:")
    if opt("CODEPF", 1): A(f"s_cmp_eq_u32 s3, {CPW}\ns_cbranch_scc0 J_dn2_{nG}\ns_waitcnt vmcnt(0)\nJ_dn2_{nG}:")

def x_addr(A, dst, rowbase_sgpr, tmp):
    A(f"v_and_b32 v{tmp}, 31, v1\nv_add_u32 v{tmp+1}, s{rowbase_sgpr}, v{tmp}\nv_lshlrev_b32 v{tmp+1}, 7, v{tmp+1}")
    A(f"v_bfe_u32 v{tmp}, v1, 1, 3\nv_lshrrev_b32 v{tmp+2}, 5, v1\nv_xor_b32 v{tmp}, v{tmp}, v{tmp+2}")
    A(f"v_lshlrev_b32 v{tmp}, 4, v{tmp}\nv_add_u32 v{dst}, v{tmp+1}, v{tmp}")
    for j in range(1, 4):
        A(f"v_xor_b32 v{dst+j}, {32*j}, v{dst}")
def h_tr_addr(A, dst, tmp):
    A(f"v_bfe_u32 v{tmp}, v1, 5, 1\nv_lshlrev_b32 v{tmp}, 3, v{tmp}\nv_bfe_u32 v{tmp+1}, v1, 2, 2\nv_add_u32 v{tmp}, v{tmp}, v{tmp+1}")
    A(f"v_lshlrev_b32 v{tmp}, 7, v{tmp}")
    A(f"v_bfe_u32 v{tmp+1}, v1, 4, 1\nv_lshlrev_b32 v{tmp+1}, 1, v{tmp+1}\nv_bfe_u32 v{tmp+2}, v1, 1, 1\nv_add_u32 v{tmp+1}, v{tmp+1}, v{tmp+2}")
    A(f"v_bfe_u32 v{tmp+2}, v1, 3, 1\nv_lshlrev_b32 v{tmp+2}, 2, v{tmp+2}\nv_xor_b32 v{tmp+1}, v{tmp+1}, v{tmp+2}")
    A(f"v_lshlrev_b32 v{tmp+1}, 4, v{tmp+1}\nv_add_u32 v{tmp}, v{tmp}, v{tmp+1}")
    A(f"v_and_b32 v{tmp+1}, 1, v1\nv_lshlrev_b32 v{tmp+1}, 3, v{tmp+1}\nv_add_u32 v{dst}, v{tmp}, v{tmp+1}")
def interleave(A, mfmas, fillers, per_gap):
    if opt("NOCOMP1"):
        for f in fillers:
            if not f.startswith("ds_read") and not f.startswith("v_perm"): A(f)
        return
    k = 0
    for i, m in enumerate(mfmas):
        A(m)
        for _ in range(per_gap[i]):
            if k < len(fillers):
                A(fillers[k]); k += 1
    while k < len(fillers):
        A(fillers[k]); k += 1
def h_epilogue_tile(A, acc, mr, cs, tmp, vaddr, soff):
    for i in range(0, 16, 2):
        A(f"v_pk_fma_f32 v[{acc+i}:{acc+i+1}], v[{cs+i}:{cs+i+1}], v[{mr}:{mr+1}], v[{acc+i}:{acc+i+1}] op_sel:[0,0,0] op_sel_hi:[1,0,1] neg_lo:[0,1,0] neg_hi:[0,1,0]")
    for i in range(0, 16, 2):
        A(f"v_pk_mul_f32 v[{acc+i}:{acc+i+1}], v[{acc+i}:{acc+i+1}], v[{mr}:{mr+1}] op_sel:[0,1] op_sel_hi:[1,1]")
    for i in range(0, 16, 2):
        A(f"v_cvt_pk_bf16_f32 v{tmp+i//2}, v{acc+i}, v{acc+i+1}")
    for i in range(8):
        A(f"v_pk_max_i16 v{tmp+i}, v{tmp+i}, 0")
    h_epilogue_tile.n += 1
    n = h_epilogue_tile.n
    A(f"s_cmp_eq_u32 s{S_LOCAL}, {1 if opt('LOCALH', 2) == 1 else 7}\ns_cbranch_scc1 L_hst{n}_p")
    A(f"buffer_store_dwordx4 v[{tmp}:{tmp+3}], v{vaddr}, s[36:39], s{soff} offen {SC}")
    A(f"buffer_store_dwordx4 v[{tmp+4}:{tmp+7}], v{vaddr}, s[36:39], s{soff} offen offset:512 {SC}")
    A(f"s_branch L_hst{n}_d\nL_hst{n}_p:")
    hst = {0: "", 1: "nt", 2: "sc0", 3: "sc0 nt"}[opt("HST", 0)]
    A(f"buffer_store_dwordx4 v[{tmp}:{tmp+3}], v{vaddr}, s[36:39], s{soff} offen {hst}")
    A(f"buffer_store_dwordx4 v[{tmp+4}:{tmp+7}], v{vaddr}, s[36:39], s{soff} offen offset:512 {hst}")
    A(f"L_hst{n}_d:")
h_epilogue_tile.n = 0
def h_store_voff(A, dst, tmp):
    A(f"v_bfe_u32 v{tmp}, v1, 4, 1\nv_mul_u32_u24 v{tmp}, {58*1024}, v{tmp}")
    A(f"v_lshrrev_b32 v{tmp+1}, 5, v1\nv_lshlrev_b32 v{tmp+1}, 8, v{tmp+1}\nv_add_u32 v{tmp}, v{tmp}, v{tmp+1}")
    A(f"v_and_b32 v{tmp+1}, 15, v1\nv_lshlrev_b32 v{tmp+1}, 4, v{tmp+1}\nv_add_u32 v{dst}, v{tmp}, v{tmp+1}")

def loop_hooks_top(A, tag):
    A(f"s_cmp_eq_u32 s29, s30\ns_cbranch_scc1 {tag}_flag1\n{tag}_flag1_ret:")
def loop_hooks_init(A):
    A(f"s_cmp_lt_u32 s3, 2\ns_cselect_b32 s30, {10 - opt('EARLY_IT', 1)}, 99")
def loop_hooks_ool(A, tag):
    A(f"{tag}_flag1:")
    flag_addr_early(A, 28)
    A("s_waitcnt vmcnt(0)")
    store_flags(A, 28, 1, 48, 30, xcc=True)
    A(f"s_branch {tag}_flag1_ret")

def publish(A, tag, word, kind, vt):
    A("s_waitcnt vmcnt(0)")
    lds_arrive(A, word, vt, 63)
    A(f"s_cmp_eq_u32 s63, 3\ns_cbranch_scc0 {tag}_np")
    if kind == "h":
        flag_addr_h(A, vt - 1); store_flags(A, vt - 1, 1, 48, vt, xcc=True, local=(tag if opt("LOCALF", 1) else None))
    else:
        flag_addr_t(A, vt - 1); store_flags(A, vt - 1, 8, 48, vt)
    A(f"{tag}_np:")

def p1_hh(A):
    A("L_hh:")
    ACC = 128; P, Q = 32, 64
    XB, WB = 2, 6; XC, WC = 8, 12
    A("s_lshr_b32 s24, s3, 1\ns_and_b32 s25, s3, 1")
    A("s_lshl_b32 s26, s24, 6")
    x_addr(A, XB, 26, 20)
    h_tr_addr(A, WB, 20)
    A("s_lshl_b32 s27, s25, 13\ns_add_u32 s27, s27, 16384")
    A(f"v_add_u32 v{WB}, s27, v{WB}\nv_xor_b32 v{WB+1}, 64, v{WB}")
    for i in range(64): A(f"v_mov_b32 v{ACC+i}, 0")
    for j in range(4): A(f"v_mov_b32 v{XC+j}, v{XB+j}")
    for j in range(2): A(f"v_mov_b32 v{WC+j}, v{WB+j}")
    jobs_finish(A, 0, 'h')
    epoch_ready(A)
    A("s_mov_b32 s28, 0")
    loop_hooks_init(A)
    def reads(buf, g):
        out = []
        for jj in range(2):
            j = 2 * g + jj; b = buf + 16 * jj
            out.append(f"ds_read_b128 v[{b}:{b+3}], v{XC+j}")
            out.append(f"ds_read_b64_tr_b16 v[{b+8}:{b+9}], v{WC} offset:{j*2048}")
            out.append(f"ds_read_b64_tr_b16 v[{b+10}:{b+11}], v{WC} offset:{j*2048+512}")
            out.append(f"ds_read_b128 v[{b+4}:{b+7}], v{XC+j} offset:4096")
            out.append(f"ds_read_b64_tr_b16 v[{b+12}:{b+13}], v{WC+1} offset:{j*2048}")
            out.append(f"ds_read_b64_tr_b16 v[{b+14}:{b+15}], v{WC+1} offset:{j*2048+512}")
        return out
    def mfmas(buf):
        out = []
        for jj in range(2):
            b = buf + 16 * jj
            for ft in range(2):
                for st in range(2):
                    a = ACC + 16 * (2 * ft + st)
                    out.append(f"{MFMA32} v[{a}:{a+15}], v[{b+8+4*ft}:{b+11+4*ft}], v[{b+4*st}:{b+3+4*st}], v[{a}:{a+15}]")
        return out
    stamp(A, 1)
    A("s_waitcnt lgkmcnt(0)\ns_barrier")
    stamp(A, 2)
    for r in reads(P, 0):
        if not opt("NOCOMP1"): A(r)
    A("s_mov_b32 s29, 10")
    A("L_hh_loop:")
    A.drop = (["v_mfma"] if opt("NOMF1") else []) + (["ds_read"] if opt("NODS1") else []) + (["v_perm"] if opt("NOPERM") else [])
    loop_hooks_top(A, "L_hh")
    A("s_waitcnt lgkmcnt(0)")
    upd = [f"v_add_u32 v{XC+j}, s28, v{XB+j}" for j in range(4)] + [f"v_add_u32 v{WC+j}, s28, v{WB+j}" for j in range(2)]
    ring = [f"s_add_u32 s28, s28, {RING}", f"s_and_b32 s28, s28, {NS*RING-1}"]
    interleave(A, mfmas(P), reads(Q, 1) + ring + upd, [3, 3, 3, 3, 2, 3, 3, 0])
    A("s_waitcnt lgkmcnt(0)")
    A("s_barrier")
    interleave(A, mfmas(Q), reads(P, 0), [3, 3, 3, 3, 0, 0, 0, 0])
    A.drop = []
    A("s_sub_u32 s29, s29, 1\ns_cmp_lg_u32 s29, 0\ns_cbranch_scc1 L_hh_loop")
    A("s_waitcnt lgkmcnt(0)")
    stamp(A, 3)
    A(f"v_and_b32 v20, 31, v1\nv_add_u32 v20, s26, v20\nv_lshlrev_b32 v20, 2, v20\nv_add_u32 v20, {LST}, v20")
    A("ds_read_b32 v22, v20\nds_read_b32 v23, v20 offset:512\nds_read_b32 v24, v20 offset:128\nds_read_b32 v25, v20 offset:640")
    A(f"v_mov_b32 v27, {LCNT + 12}\nds_read_b32 v27, v27")
    A(f"v_lshrrev_b32 v21, 5, v1\nv_lshlrev_b32 v21, 4, v21\ns_lshl_b32 s30, s25, 8\ns_add_u32 s30, s30, {LCS}\nv_add_u32 v21, s30, v21")
    for ft in range(2):
        for q in range(4):
            b = 32 + 16 * ft + 4 * q
            A(f"ds_read_b128 v[{b}:{b+3}], v21 offset:{ft*128+q*32}")
    h_store_voff(A, 26, 28)
    A(f"s_lshl_b32 s31, s{S_B}, 3\ns_lshl_b32 s32, s24, 1\ns_add_u32 s31, s31, s32\ns_mul_i32 s31, s31, 58")
    A(f"s_lshr_b32 s32, s{S_F0}, 5\ns_lshl_b32 s33, s25, 1\ns_add_u32 s32, s32, s33\ns_add_u32 s31, s31, s32")
    A(f"s_lshl_b32 s31, s31, 10\ns_add_u32 s31, s31, {HF_OFF}")
    A("s_waitcnt lgkmcnt(0)")
    A(f"v_readfirstlane_b32 s{S_LOCAL}, v27")
    A("s_nop 7")
    for st in range(2):
        for ft in range(2):
            A(f"s_add_u32 s32, s31, {(st*4*58+ft)*1024}")
            h_epilogue_tile(A, ACC + 16 * (2 * ft + st), 22 + 2 * st, 32 + 16 * ft, 64 + 8 * ((2 * st + ft) & 3), 26, 32)
    stamp(A, 4)
    publish(A, "L_hh_pub", 0, "h", 30)
    stamp(A)
    stamp_flush(A, 0, WS, 9)
    A("s_endpgm")
    loop_hooks_ool(A, "L_hh")

def p1_mx(A):
    A("L_mx:")
    P, Q = 32, 72
    EV, OD = 112, 116
    CE, CO, SE, SO = 120, 124, 128, 132
    HA, HB = 136, 152
    EC, ES, OC, OS = 168, 184, 200, 216
    G = 232
    XAB, WHB = 2, 6
    XAC, XBC, DAC, WHC = 7, 11, 15, 19
    A("v_and_b32 v24, 31, v1\nv_cvt_f32_u32 v24, v24\nv_lshrrev_b32 v25, 5, v1\nv_cvt_f32_u32 v25, v25")
    A("v_mul_f32 v25, 0x3e000000, v25\nv_mul_f32 v25, v25, v24")
    for p in range(2):
        for uh in range(2):
            for u2 in range(2):
                for k in range(2):
                    c = 16 * p + 8 * uh + 2 * u2 + k
                    import struct
                    lit = struct.unpack("<I", struct.pack("<f", c / 32.0))[0]
                    A(f"v_fmamk_f32 v26, v24, {lit:#x}, v25\nv_fract_f32 v26, v26")
                    A(f"v_cos_f32 v{28+k}, v26\nv_sin_f32 v{30+k}, v26")
                A("s_nop 0")
                A(f"v_cvt_pk_bf16_f32 v{G+4*p+2*uh+u2}, v28, v29\nv_cvt_pk_bf16_f32 v{G+16+4*p+2*uh+u2}, v30, v31")
    for i in range(8):
        A(f"v_xor_b32 v{G+8+i}, 0x80008000, v{G+16+i}")
    A("s_lshr_b32 s24, s3, 1\ns_and_b32 s25, s3, 1")
    A("s_lshl_b32 s26, s3, 5\ns_xor_b32 s27, s26, 32")
    x_addr(A, XAB, 26, 24)
    h_tr_addr(A, WHB, 24)
    A(f"s_lshl_b32 s30, s25, 6\nv_xor_b32 v{WHB}, s30, v{WHB}\nv_add_u32 v{WHB}, 16384, v{WHB}")
    for i in range(96): A(f"v_mov_b32 v{HA+i}, 0")
    A("s_lshl_b32 s31, s3, 12\ns_sub_u32 s31, 24576, s31")
    def upd(js=(0, 1, 2, 3), wh=True):
        o = [f"v_add_u32 v{XAC+j}, s28, v{XAB+j}" for j in js] + ([f"v_add_u32 v{WHC}, s28, v{WHB}"] if wh else [])
        o += [f"v_xor_b32 v{XBC+j}, 0x1000, v{XAC+j}" for j in js]
        o += [f"v_add_u32 v{DAC+j}, s31, v{XAC+j}" for j in js]
        return o
    A("s_mov_b32 s28, 0")
    for t in upd(): A(t)
    jobs_finish(A, 0, 'm')
    epoch_ready(A)
    loop_hooks_init(A)
    A("s_mov_b32 s34, 0x05040100\ns_mov_b32 s35, 0x07060302")
    def reads(buf, m):
        out = []
        for jj in range(2):
            j = 2 * m + jj
            out.append(f"ds_read_b128 v[{buf+4*jj}:{buf+4*jj+3}], v{XAC+j}")
        for jj in range(2):
            j = 2 * m + jj
            out.append(f"ds_read_b64_tr_b16 v[{buf+16+4*jj}:{buf+17+4*jj}], v{WHC} offset:{j*2048}")
            out.append(f"ds_read_b64_tr_b16 v[{buf+18+4*jj}:{buf+19+4*jj}], v{WHC} offset:{j*2048+512}")
            out.append(f"ds_read_b128 v[{buf+8+4*jj}:{buf+11+4*jj}], v{XBC+j}")
        for jj in range(2):
            j = 2 * m + jj
            out.append(f"ds_read_b128 v[{buf+24+4*jj}:{buf+27+4*jj}], v{DAC+j}")
            out.append(f"ds_read_b128 v[{buf+32+4*jj}:{buf+35+4*jj}], v{DAC+j} offset:4096")
        return out
    def perms(src, e, o):
        ev = [f"v_perm_b32 v{e+k}, v{src+2*k+1}, v{src+2*k}, s34" for k in range(4)]
        od = [f"v_perm_b32 v{o+k}, v{src+2*k+1}, v{src+2*k}, s35" for k in range(4)]
        return ev, od
    def half(cur, nxt, m_next, extra):
        rd = reads(nxt, m_next)
        if opt("NOCOMP1"):
            for t in extra: A(t)
            return
        xe, xo = perms(cur, EV, OD); ce, co = perms(cur + 24, CE, CO); se, so = perms(cur + 32, SE, SO)
        H = []
        for jj in range(2):
            w = cur + 16 + 4 * jj
            H.append(f"{MFMA32} v[{HA}:{HA+15}], v[{w}:{w+3}], v[{cur+4*jj}:{cur+4*jj+3}], v[{HA}:{HA+15}]")
            H.append(f"{MFMA32} v[{HB}:{HB+15}], v[{w}:{w+3}], v[{cur+8+4*jj}:{cur+11+4*jj}], v[{HB}:{HB+15}]")
        Dm = [f"{MFMA32} v[{EC}:{EC+15}], v[{EV}:{EV+3}], v[{CE}:{CE+3}], v[{EC}:{EC+15}]",
              f"{MFMA32} v[{OC}:{OC+15}], v[{OD}:{OD+3}], v[{CO}:{CO+3}], v[{OC}:{OC+15}]",
              f"{MFMA32} v[{ES}:{ES+15}], v[{EV}:{EV+3}], v[{SE}:{SE+3}], v[{ES}:{ES+15}]",
              f"{MFMA32} v[{OS}:{OS+15}], v[{OD}:{OD+3}], v[{SO}:{SO+3}], v[{OS}:{OS+15}]"]
        if opt("MXSCHED", 1):
            ex = list(extra)
            def take(n):
                t = ex[:n]; del ex[:n]; return t
            pad = lambda n: (take(n) + ["s_nop 0"] * n)[:n]
            ms = H + [Dm[0], Dm[2], Dm[1], Dm[3]]
            gaps = [xe[0:2] + rd[0:3], xe[2:4] + rd[3:6], ce[0:2] + rd[6:9], ce[2:4] + rd[9:12],
                    se + xo[0:2], xo[2:4] + co + pad(2), so + pad(2), None]
            gaps[7] = ex
        else:
            gaps = [xe + rd[0:2], ce + rd[2:4], xo + rd[4:6], co + rd[6:8], se + rd[8:10], so + rd[10:12], extra[:8], extra[8:]]
            ms = H + Dm
        for i in range(8):
            A(ms[i])
            for t in gaps[i]: A(t)
    stamp(A, 1)
    A("s_waitcnt lgkmcnt(0)\ns_barrier")
    stamp(A, 2)
    for r in reads(P, 0):
        if not opt("NOCOMP1"): A(r)
    A("s_mov_b32 s29, 10")
    A("L_mx_loop:")
    A.drop = (["v_mfma"] if opt("NOMF1") else []) + (["ds_read"] if opt("NODS1") else []) + (["v_perm"] if opt("NOPERM") else [])
    loop_hooks_top(A, "L_mx")
    A("s_waitcnt lgkmcnt(0)")
    ring = [f"s_add_u32 s28, s28, {RING}", f"s_and_b32 s28, s28, {NS*RING-1}"]
    if opt("MXSCHED", 1):
        half(P, Q, 1, ring + upd((0, 1), True))
        A("s_waitcnt lgkmcnt(0)")
        A("s_barrier")
        half(Q, P, 0, upd((2, 3), False))
    else:
        half(P, Q, 1, ring + upd())
        A("s_waitcnt lgkmcnt(0)")
        A("s_barrier")
        half(Q, P, 0, [])
    A.drop = []
    A("s_sub_u32 s29, s29, 1\ns_cmp_lg_u32 s29, 0\ns_cbranch_scc1 L_mx_loop")
    A("s_waitcnt lgkmcnt(0)")
    stamp(A, 3)
    A(f"v_and_b32 v24, 31, v1\nv_add_u32 v25, s26, v24\nv_lshlrev_b32 v25, 2, v25\nv_add_u32 v25, {LST}, v25")
    A(f"v_add_u32 v26, s27, v24\nv_lshlrev_b32 v26, 2, v26\nv_add_u32 v26, {LST}, v26")
    A("ds_read_b32 v2, v25\nds_read_b32 v3, v25 offset:512\nds_read_b32 v4, v26\nds_read_b32 v5, v26 offset:512")
    A(f"v_mov_b32 v7, {LCNT + 12}\nds_read_b32 v7, v7")
    A(f"v_lshrrev_b32 v27, 5, v1\nv_lshlrev_b32 v27, 4, v27\ns_lshl_b32 s30, s25, 7\ns_add_u32 s30, s30, {LCS}\nv_add_u32 v28, s30, v27")
    for q in range(4):
        A(f"ds_read_b128 v[{32+4*q}:{35+4*q}], v28 offset:{q*32}")
    A(f"s_lshl_b32 s30, s26, 2\ns_add_u32 s30, s30, {LST+512}\nv_add_u32 v28, s30, v27")
    for q in range(4):
        A(f"ds_read_b128 v[{48+4*q}:{51+4*q}], v28 offset:{q*32}")
    h_store_voff(A, 6, 28)
    A(f"s_lshl_b32 s31, s{S_B}, 3\ns_lshl_b32 s30, s24, 1\ns_add_u32 s31, s31, s30\ns_mul_i32 s31, s31, 58")
    A(f"s_lshr_b32 s30, s{S_F0}, 5\ns_add_u32 s30, s30, s25\ns_add_u32 s31, s31, s30")
    A(f"s_lshl_b32 s31, s31, 10\ns_add_u32 s31, s31, {HF_OFF}")
    A(f"s_mul_i32 s30, s25, {4*58*1024}\ns_add_u32 s32, s31, s30")
    A(f"s_xor_b32 s30, s25, 1\ns_mul_i32 s30, s30, {4*58*1024}\ns_add_u32 s33, s31, s30")
    A("s_waitcnt lgkmcnt(0)")
    A(f"v_readfirstlane_b32 s{S_LOCAL}, v7")
    A("s_nop 7")
    h_epilogue_tile(A, HA, 2, 32, 64, 6, 32)
    h_epilogue_tile(A, HB, 4, 32, 72, 6, 33)
    stamp(A, 4)
    if opt("MXPUB", 1): publish(A, "L_mx_pubh", 0, "h", 30)
    stamp(A)
    R = 48
    for i in range(0, 16, 2):
        for a in (EC, OC, ES, OS):
            A(f"v_pk_mul_f32 v[{a+i}:{a+i+1}], v[{a+i}:{a+i+1}], v[{R+i}:{R+i+1}]")
    T0, T1 = 80, 96
    for i in range(0, 16, 2):
        A(f"v_pk_add_f32 v[{T0+i}:{T0+i+1}], v[{EC+i}:{EC+i+1}], v[{OC+i}:{OC+i+1}]")
        A(f"v_pk_add_f32 v[{EC+i}:{EC+i+1}], v[{EC+i}:{EC+i+1}], v[{OC+i}:{OC+i+1}] neg_lo:[0,1] neg_hi:[0,1]")
        A(f"v_pk_add_f32 v[{T1+i}:{T1+i+1}], v[{ES+i}:{ES+i+1}], v[{OS+i}:{OS+i+1}]")
        A(f"v_pk_add_f32 v[{OC+i}:{OC+i+1}], v[{OS+i}:{OS+i+1}], v[{ES+i}:{ES+i+1}] neg_lo:[0,1] neg_hi:[0,1]")
    A("v_and_b32 v24, 31, v1\nv_cmp_eq_u32 s[40:41], 0, v24\ns_nop 3")
    A(f"s_cmp_eq_u32 s{S_C}, 0\ns_cselect_b64 s[40:41], s[40:41], 0\ns_cbranch_scc0 L_mx_nofix")
    for i in range(16):
        A(f"v_cndmask_b32 v{T0+i}, v{T0+i}, v{ES+i}, s[40:41]")
        A(f"v_cndmask_b32 v{T1+i}, v{T1+i}, v{OS+i}, s[40:41]")
        A(f"v_cndmask_b32_e64 v{OC+i}, v{OC+i}, 0, s[40:41]")
    A("L_mx_nofix:")
    ZB = 32
    for k, a in enumerate([T0, T1, EC, OC]):
        for i in range(0, 16, 2):
            A(f"v_cvt_pk_bf16_f32 v{ZB+8*k+i//2}, v{a+i}, v{a+i+1}")
    Fr = lambda p: f"v[{G+4*p}:{G+4*p+3}]"
    Fi = lambda p: f"v[{G+8+4*p}:{G+8+4*p+3}]"
    nFi = lambda p: f"v[{G+16+4*p}:{G+16+4*p+3}]"
    Z = lambda k, p: f"v[{ZB+8*k+4*p}:{ZB+8*k+4*p+3}]"
    TR = [EC, OC]; TI = [ES, OS]
    A("s_nop 1")
    for st_ in range(2):
        zr, zi = 2 * st_, 2 * st_ + 1
        tr, ti = TR[st_], TI[st_]
        A(f"{MFMA32} v[{tr}:{tr+15}], {Fr(0)}, {Z(zr,0)}, 0")
        A(f"{MFMA32} v[{ti}:{ti+15}], {Fr(0)}, {Z(zi,0)}, 0")
        A(f"{MFMA32} v[{tr}:{tr+15}], {Fr(1)}, {Z(zr,1)}, v[{tr}:{tr+15}]")
        A(f"{MFMA32} v[{ti}:{ti+15}], {Fr(1)}, {Z(zi,1)}, v[{ti}:{ti+15}]")
        A(f"{MFMA32} v[{tr}:{tr+15}], {nFi(0)}, {Z(zi,0)}, v[{tr}:{tr+15}]")
        A(f"{MFMA32} v[{ti}:{ti+15}], {Fi(0)}, {Z(zr,0)}, v[{ti}:{ti+15}]")
        A(f"{MFMA32} v[{tr}:{tr+15}], {nFi(1)}, {Z(zi,1)}, v[{tr}:{tr+15}]")
        A(f"{MFMA32} v[{ti}:{ti+15}], {Fi(1)}, {Z(zr,1)}, v[{ti}:{ti+15}]")
    if not opt("MXPUB", 1): publish(A, "L_mx_pubh", 0, "h", 30)
    else: A("s_nop 7")
    stamp(A)
    A(f"v_and_b32 v24, 31, v1\nv_lshlrev_b32 v24, 2, v24\nv_lshrrev_b32 v25, 5, v1\nv_lshlrev_b32 v25, 9, v25\nv_add_u32 v24, v24, v25")
    A(f"s_lshl_b32 s30, s3, 13\ns_add_u32 s30, s30, {LX}\nv_add_u32 v24, s30, v24")
    A("s_nop 7")
    for st_ in range(2):
        for i in range(16):
            A(f"v_cvt_pk_bf16_f32 v{64+16*st_+i}, v{TR[st_]+i}, v{TI[st_]+i}")
    for st_ in range(2):
        for i in range(16):
            t0 = (i & 3) + 8 * (i >> 2)
            A(f"ds_write_b32 v24, v{64+16*st_+i} offset:{st_*4096+t0*128}")
    A("s_waitcnt lgkmcnt(0)")
    stamp(A)
    lds_arrive(A, 1, 30, 63)
    A(f"v_mov_b32 v30, {LCNT+4}")
    A("L_mx_rv:\nds_read_b32 v31, v30\ns_waitcnt lgkmcnt(0)\ns_nop 0\nv_readfirstlane_b32 s63, v31\ns_nop 3\ns_cmp_ge_u32 s63, 4\ns_cbranch_scc1 L_mx_rv_ok")
    A(f"s_sub_u32 s{S_SPIN}, s{S_SPIN}, 1\ns_cmp_eq_u32 s{S_SPIN}, 0\ns_cbranch_scc0 L_mx_rv\nL_mx_rv_ok:")
    A("v_and_b32 v24, 31, v1\nv_lshlrev_b32 v24, 2, v24\nv_lshrrev_b32 v25, 5, v1\nv_lshlrev_b32 v26, 7, v25\nv_add_u32 v24, v24, v26")
    A(f"s_lshl_b32 s30, s3, 10\ns_add_u32 s30, s30, {LX}\nv_add_u32 v24, s30, v24")
    for st_ in range(2):
        for n in range(4):
            b = 64 + 16 * st_ + 4 * n
            for w in range(4):
                A(f"ds_read_b32 v{b+w}, v24 offset:{w*8192+st_*4096+n*256}")
    A(f"v_and_b32 v26, 31, v1\ns_lshl_b32 s30, s{S_C}, 5\nv_add_u32 v27, s30, v26")
    A("v_mov_b32 v28, 160\nv_cndmask_b32 v29, v27, v28, s[40:41]")
    A("v_sub_u32 v27, 320, v27")
    A(f"s_mov_b32 s30, {TF_T0}\nv_mul_lo_u32 v25, s30, v25")
    A("v_lshlrev_b32 v29, 4, v29\nv_add_u32 v29, v29, v25")
    A("v_lshlrev_b32 v27, 4, v27\nv_add_u32 v27, v27, v25")
    A(f"s_mul_i32 s30, s3, {8*TF_T0}\ns_mul_i32 s31, s{S_B}, {TF_ROW}\ns_add_u32 s30, s30, s31\ns_add_u32 s30, s30, {TF_OFF}")
    A("s_waitcnt lgkmcnt(0)")
    for st_ in range(2):
        for n in range(4):
            b = 64 + 16 * st_ + 4 * n
            A(f"s_add_u32 s31, s30, {2*n*TF_T0}")
            if not opt("NOTST"): A(f"buffer_store_dwordx4 v[{b}:{b+3}], v{29 if st_ == 0 else 27}, s[36:39], s31 offen {'' if opt('TPLAIN') else SC}")
    stamp(A)
    A(f"s_cmp_eq_u32 s{S_C}, 0\ns_cbranch_scc0 L_mx_noz\ns_cmp_eq_u32 s3, 0\ns_cbranch_scc0 L_mx_noz")
    A(f"s_mov_b32 s30, {TF_T0}\nv_and_b32 v24, 31, v1\nv_mul_lo_u32 v24, s30, v24")
    A("v_mov_b32 v4, 0\nv_mov_b32 v5, 0\nv_mov_b32 v6, 0\nv_mov_b32 v7, 0")
    A(f"s_mul_i32 s31, s{S_B}, {TF_ROW}\ns_add_u32 s31, s31, {TF_OFF}")
    A(f"buffer_store_dwordx4 v[4:7], v24, s[36:39], s31 offen {SC}")
    A("L_mx_noz:")
    publish(A, "L_mx_pubt", 2, "t", 30)
    stamp(A)
    stamp_flush(A, 0, WS, 9)
    A("s_endpgm")
    loop_hooks_ool(A, "L_mx")

def loader(A):
    A("L_loader:")
    A(f"s_sub_u32 s{S_J}, s3, 4")
    srd(A, 24, X_, X_BYTES)
    srd(A, 36, WS, WS_USED)
    for r in [11, 12, 13, 52, 53, 54, 55, 56, 57, 58, 59]: A(f"v_mov_b32 v{r}, 0")
    A("s_mov_b32 s58, 0\ns_mov_b32 s59, 99\ns_mov_b32 s63, 0")
    RS = 1280 if opt("XLIN") else 81920
    A(f"v_lshrrev_b32 v4, 3, v1\ns_mov_b32 s40, {RS}\nv_mul_lo_u32 v8, s40, v4")
    A("v_and_b32 v5, 7, v1\nv_lshrrev_b32 v6, 4, v1\nv_xor_b32 v5, v5, v6\nv_lshlrev_b32 v5, 4, v5")
    A("v_add_u32 v2, v8, v5\nv_xor_b32 v7, 64, v5")
    A(f"v_add_u32 v3, v8, v7\nv_add_u32 v3, {8*RS}, v3")
    A(f"s_lshl_b32 s40, s{S_B}, 1\ns_and_b32 s41, s{S_J}, 1\ns_add_u32 s40, s40, s41")
    A(f"s_lshr_b32 s41, s{S_J}, 1\ns_lshl_b32 s41, s41, 5\ns_add_u32 s40, s40, s41")
    if opt("XLIN"):
        A(f"s_lshl_b32 s40, s{S_B}, 2\ns_add_u32 s40, s40, s{S_J}\ns_mul_i32 s40, s40, {32*1280}\ns_add_u32 s41, s40, {16*1280}")
    else:
        A(f"s_mul_i32 s40, s40, 1280\ns_add_u32 s41, s40, {16*81920}")
    A("s_mov_b64 s[56:57], -1")
    A(f"s_cmp_lt_u32 s{S_C}, 5\ns_cbranch_scc0 L_ld_H")
    A(f"s_cmp_ge_u32 s{S_J}, 2\ns_cbranch_scc0 L_ld_H")
    A(f"s_and_b32 s42, s{S_J}, 1\ns_cmp_eq_u32 s42, 0")
    A(f"s_cselect_b32 s28, s{HRE}, s{HIM}\ns_cselect_b32 s29, s{HRE+1}, s{HIM+1}")
    A(f"s_mov_b32 s30, {HID_BYTES}\ns_mov_b32 s31, 0x20000")
    A("v_mul_u32_u24 v8, 1280, v4\nv_add_u32 v9, v8, v5")
    A(f"v_add_u32 v10, v8, v7\nv_add_u32 v10, {8*1280}, v10")
    A(f"s_mul_i32 s42, s{S_C}, {32*1280}")
    A(f"s_mov_b32 s44, s42\ns_mov_b32 s45, s42\ns_add_u32 s46, s42, {16*1280}\ns_add_u32 s47, s42, {16*1280}")
    A("s_mov_b32 s43, 128")
    A(f"s_cmp_eq_u32 s{S_C}, 0\ns_cbranch_scc0 L_ld_go\ns_cmp_eq_u32 s{S_J}, 3\ns_cbranch_scc0 L_ld_go")
    A("s_mov_b32 s56, 0xffffff00")
    A("s_branch L_ld_go")
    A("L_ld_H:")
    srd(A, 28, W1, W1_BYTES)
    A("v_mul_u32_u24 v8, 3456, v4")
    A("v_and_b32 v9, 7, v1\nv_bfe_u32 v10, v1, 4, 1\nv_lshlrev_b32 v10, 2, v10\nv_xor_b32 v9, v9, v10")
    A("v_lshlrev_b32 v9, 4, v9\nv_add_u32 v9, v8, v9\nv_mov_b32 v10, v9")
    A(f"s_and_b32 s42, s{S_J}, 1\ns_mul_i32 s42, s42, {32*3456}")
    A(f"s_lshr_b32 s43, s{S_J}, 1\ns_lshl_b32 s43, s43, 6\ns_add_u32 s43, s43, s{S_F0}\ns_lshl_b32 s43, s43, 1")
    A("s_add_u32 s42, s42, s43")
    for q in range(4):
        A(f"s_add_u32 s{44+q}, s42, {8*q*3456}")
    A(f"s_mov_b32 s43, {64*3456}")
    A("L_ld_go:")
    A(f"s_lshl_b32 s48, s{S_J}, 12")
    def chunk(slot_reg):
        for q in range(4):
            A(f"s_add_u32 m0, s{slot_reg}, {q*1024}")
            A("s_nop 0")
            A(f"buffer_load_dwordx4 v{2+(q&1)}, s[24:27], s{40+(q>>1)} offen {'nt ' if opt('XNT') else ''}lds")
            A(f"s_add_u32 m0, s{slot_reg}, {16384+q*1024}")
            if q == 0: A("s_mov_b64 exec, s[56:57]")
            else: A("s_nop 0")
            A(f"buffer_load_dwordx4 v{9+(q&1)}, s[28:31], s{44+q} offen {'nt ' if opt('WNT') else ''}lds")
            if q == 0: A("s_mov_b64 exec, -1")
        A("s_add_u32 s40, s40, 128\ns_add_u32 s41, s41, 128")
        for q in range(4):
            A(f"s_add_u32 s{44+q}, s{44+q}, s43")
        A(f"s_add_u32 s{slot_reg}, s{slot_reg}, {RING}\ns_cmp_ge_u32 s{slot_reg}, {NS*RING}\ns_cselect_b32 s52, {NS*RING}, 0\ns_sub_u32 s{slot_reg}, s{slot_reg}, s52")
    A("s_mov_b32 s49, s48")
    chunk(49); chunk(49)
    stamp(A, 1)
    srd(A, 32, WS, WS_USED)
    A("s_waitcnt lgkmcnt(0)")
    A(f"s_add_u32 s{S_E}, s{S_E}, 1\ns_xor_b32 s{S_EM}, s{S_E}, {MAGIC}")
    A(f"s_cmp_ge_u32 s{S_J}, 2\ns_cbranch_scc0 L_ld_su01")
    A(f"s_sub_u32 s58, s{S_J}, 2\ns_lshl_b32 s59, s{S_T0}, 1\ns_add_u32 s59, s59, s58")
    A("s_mov_b32 s50, 6554\ns_mov_b32 s53, 1280")
    for q in range(5):
        A(f"v_add_u32 v22, {64*q}, v1")
        A("v_mul_lo_u32 v23, s50, v22\nv_lshrrev_b32 v23, 16, v23")
        A("v_mul_u32_u24 v24, 10, v23\nv_sub_u32 v24, v22, v24\nv_lshlrev_b32 v24, 4, v24")
        A(f"v_mul_lo_u32 v23, s53, v23\nv_add_u32 v{52+q}, v23, v24")
    A("v_lshrrev_b32 v23, 4, v1\nv_lshrrev_b32 v24, 1, v23\nv_lshlrev_b32 v24, 4, v24")
    A("v_and_b32 v25, 1, v23\nv_lshlrev_b32 v25, 2, v25\nv_add_u32 v24, v24, v25\nv_bfe_u32 v25, v1, 2, 2\nv_add_u32 v24, v24, v25")
    A("v_mul_u32_u24 v24, 160, v24\nv_and_b32 v25, 3, v1\nv_lshlrev_b32 v25, 3, v25\nv_add_u32 v24, v24, v25")
    A(f"s_mul_i32 s50, s58, 5120\ns_add_u32 s50, s50, {LW}\nv_add_u32 v57, s50, v24")
    A(f"s_lshl_b32 s50, s{S_CT}, 1\ns_add_u32 s50, s50, s58\ns_lshr_b32 s53, s50, 2\ns_and_b32 s50, s50, 3")
    A(f"s_lshr_b32 s54, s53, 1\ns_lshl_b32 s54, s54, 5\ns_add_u32 s54, s54, s{S_T0}")
    A("s_and_b32 s55, s53, 1\ns_lshl_b32 s55, s55, 10\ns_add_u32 s54, s54, s55")
    A("v_and_b32 v22, 15, v1\nv_lshlrev_b32 v22, 6, v22\nv_add_u32 v22, s54, v22")
    A("s_lshl_b32 s55, s50, 3\nv_lshrrev_b32 v23, 4, v1\nv_lshlrev_b32 v23, 1, v23\nv_add_u32 v23, s55, v23")
    A("s_mov_b32 s55, 0x3a000000")
    for k, ds in enumerate([0, 1, 32, 33]):
        A(f"v_add_u32 v24, {ds}, v23\nv_mul_u32_u24 v24, v22, v24\nv_and_b32 v24, 0x7ff, v24\nv_cvt_f32_u32 v24, v24\nv_mul_f32 v24, s55, v24")
        A(f"v_cos_f32 v25, v24\nv_sin_f32 v26, v24\ns_nop 0\nv_cvt_pk_bf16_f32 v{60+k}, v25, -v26")
    A(f"s_lshl_b32 s63, s{S_T0}, 2\ns_add_u32 s63, s63, s53\ns_mul_i32 s63, s63, 58\ns_add_u32 s63, s63, s50\ns_add_u32 s63, s63, 54")
    A(f"s_lshl_b32 s63, s63, 10\ns_add_u32 s63, s63, {HF_OFF}")
    A(f"s_lshl_b32 s50, s{S_CT}, 6\ns_add_u32 s50, s50, s59\ns_lshl_b32 s50, s50, 3\ns_add_u32 s50, s50, {FW_OFF}\nv_mov_b32 v58, s50")
    A(f"s_lshl_b32 s50, s{S_T0}, 4\ns_lshl_b32 s53, s{S_CT}, 1\ns_add_u32 s50, s50, s53\ns_add_u32 s50, s50, s58\ns_lshl_b32 s50, s50, 3\ns_add_u32 s50, s50, {FF_OFF}\nv_mov_b32 v59, s50")
    A("v_cmp_eq_u32 vcc, 1, v1\ns_nop 1\nv_cndmask_b32 v58, v58, v59, vcc")
    A("s_branch L_ld_sud")
    A("L_ld_su01:")
    A("v_lshlrev_b32 v13, 3, v1\nv_and_b32 v16, 31, v1\nv_lshlrev_b32 v15, 3, v16")
    A(f"s_lshl_b32 s50, s{S_B}, 7\ns_add_u32 s50, s50, {FR1_OFF}\nv_add_u32 v12, s50, v15")
    A(f"s_lshl_b32 s50, s{S_C}, 7\ns_add_u32 s50, s50, {FC1_OFF-128}\nv_add_u32 v15, s50, v15")
    A("v_cmp_le_u32 vcc, 16, v16\ns_nop 1\nv_cndmask_b32 v12, v12, v15, vcc")
    A(f"s_lshl_b32 s50, s{S_CT}, 9\ns_add_u32 s50, s50, {FW_OFF}\nv_add_u32 v11, s50, v13")
    A(f"s_lshl_b32 s50, s{S_T0}, 7\ns_add_u32 s50, s50, {FF_OFF}\nv_and_b32 v14, 15, v1\nv_lshlrev_b32 v14, 3, v14\nv_add_u32 v59, s50, v14")
    A("L_ld_sud:")
    A("s_waitcnt vmcnt(8)")
    stamp(A, 2)
    A("s_barrier")
    chunk(49)
    A(f"s_cmp_ge_u32 s{S_J}, 2\ns_cbranch_scc1 L_ld_h1w\nL_ld_h1w_ret:")
    A(f"s_cmp_ge_u32 s{S_J}, 2\ns_cbranch_scc1 L_ld_b1w")
    A("s_waitcnt vmcnt(8)\ns_branch L_ld_b1d\nL_ld_b1w:")
    A("s_cmp_ge_u32 s59, 54\ns_cbranch_scc1 L_ld_b1n\ns_waitcnt vmcnt(13)\ns_branch L_ld_b1d\nL_ld_b1n:\ns_waitcnt vmcnt(8)\nL_ld_b1d:")
    A("s_barrier")
    stamp(A)
    pk = opt("POLLK", 5)
    assert pk in (5, 6)
    A(f"s_mov_b32 s53, 99\ns_mov_b32 s54, 99\ns_mov_b32 s55, 0\ns_mov_b32 s79, 99\ns_mov_b32 s81, 99\ns_mov_b32 s82, 99\ns_mov_b32 s83, 0")
    A(f"s_cmp_eq_u32 s{S_J}, 0\ns_cselect_b32 s53, {9-pk}, s53\ns_cselect_b32 s54, {9-pk-2}, s54\ns_cselect_b32 s55, {9-pk-1}, s55\ns_cselect_b32 s81, {9-pk-2}, s81")
    A(f"s_cmp_eq_u32 s{S_J}, 1\ns_cselect_b32 s53, {opt('FWPOLL', 1)}, s53")
    A(f"s_cmp_ge_u32 s{S_J}, 2\ns_cselect_b32 s82, 6, s82\ns_cselect_b32 s79, 3, s79\ns_cselect_b32 s83, 1, s83")
    A("s_mov_b32 s51, 7")
    A("L_ld_loop:")
    A("s_cmp_eq_u32 s51, s54\ns_cbranch_scc1 L_ld_h2\nL_ld_h2_ret:")
    chunk(49)
    A("s_cmp_eq_u32 s51, s79\ns_cbranch_scc1 L_ld_h3\nL_ld_h3_ret:")
    A("s_cmp_eq_u32 s51, s53\ns_cbranch_scc1 L_ld_h1\nL_ld_h1_ret:")
    A("s_cmp_eq_u32 s51, s81\ns_cbranch_scc1 L_ld_h4\nL_ld_h4_ret:")
    A("s_cmp_eq_u32 s51, s82\ns_cbranch_scc1 L_ld_h2w\nL_ld_h2w_ret:")
    A("s_cmp_lt_u32 s51, s55\ns_cbranch_scc1 L_ld_w25")
    A("s_cmp_eq_u32 s83, 0\ns_cbranch_scc1 L_ld_w8")
    A("s_cmp_eq_u32 s51, 6\ns_cbranch_scc1 L_ld_wW\ns_cmp_eq_u32 s51, 5\ns_cbranch_scc1 L_ld_wW")
    A("s_cmp_eq_u32 s51, 3\ns_cbranch_scc1 L_ld_w9\ns_cmp_eq_u32 s51, 2\ns_cbranch_scc1 L_ld_w9")
    A("L_ld_w8:\ns_waitcnt vmcnt(8)\ns_branch L_ld_wd")
    A("L_ld_wW:\ns_cmp_ge_u32 s59, 54\ns_cbranch_scc1 L_ld_w9\ns_waitcnt vmcnt(14)\ns_branch L_ld_wd\nL_ld_w9:\ns_waitcnt vmcnt(9)\ns_branch L_ld_wd")
    A("L_ld_w25:\ns_waitcnt vmcnt(17)\nL_ld_wd:")
    stamp(A)
    A("s_barrier")
    stamp(A)
    A("s_sub_u32 s51, s51, 1\ns_cmp_lg_u32 s51, 0\ns_cbranch_scc1 L_ld_loop")
    A("s_waitcnt vmcnt(0)")
    if not opt("WLATE", 1):
        A(f"s_cmp_eq_u32 s{S_J}, 1\ns_cbranch_scc0 L_ld_no1")
        spin(A, "L_ld_spw", 48, 11, 32, xcc=True)
        spin(A, "L_ld_spf", 50, 59, 32, xcc=True)
        A("L_ld_no1:")
    A(f"s_cmp_eq_u32 s{S_J}, 0\ns_cbranch_scc0 L_ld_nored")
    for b_ in range(1, 8):
        for k in range(4): A(f"v_add_f32 v{16+k}, v{16+k}, v{16+4*b_+k}")
    for k in range(4): A(f"v_mov_b32 v{20+k}, v{16+k}")
    A("s_nop 1")
    for k in range(4): A(f"v_permlane32_swap_b32 v{16+k}, v{20+k}")
    A("s_nop 0")
    for k in range(4): A(f"v_add_f32 v{16+k}, v{16+k}, v{20+k}")
    A(f"v_add_u32 v13, {LCS}, v13\nds_write_b128 v13, v[16:19]\ns_waitcnt lgkmcnt(0)")
    A("L_ld_nored:")
    A("s_barrier")
    stamp(A)
    A("s_barrier")
    A("s_branch L_ld_p2")
    A("L_ld_h1:")
    A(f"s_cmp_eq_u32 s{S_J}, 1\ns_cbranch_scc1 L_ld_h1f")
    A(f"buffer_load_dwordx2 v[14:15], v12, s[32:35], 0 offen {SC}")
    A("s_branch L_ld_h1_ret")
    A("L_ld_h1f:")
    A(f"buffer_load_dwordx2 v[48:49], v11, s[32:35], 0 offen {SC}")
    A(f"buffer_load_dwordx2 v[50:51], v59, s[32:35], 0 offen {SC}")
    A("s_branch L_ld_h1_ret")
    A("L_ld_h1w:")
    if opt("NOW"): A("s_branch L_ld_h1w_ret")
    A("s_cmp_ge_u32 s59, 54\ns_cbranch_scc1 L_ld_h1w_ret")
    srd(A, 84, W2, W2_BYTES)
    A(f"s_mul_i32 s50, s59, 40960\ns_mul_i32 s62, s{S_CT}, 160\ns_add_u32 s50, s50, s62")
    A(f"s_mul_i32 s62, s58, 5120\ns_add_u32 s62, s62, {LW}")
    for q in range(5):
        A(f"s_add_u32 m0, s62, {1024*q}\ns_nop 0")
        A(f"buffer_load_dwordx4 v{52+q}, s[84:87], s50 offen lds")
    A("s_branch L_ld_h1w_ret")
    A("L_ld_h2:")
    spin(A, "L_ld_sp", 14, 12, 32, xcc=True)
    A(f"v_and_b32 v50, 16, v1\nv_cmp_eq_u32 s[60:61], 0, v50\nv_cmp_ne_u32 vcc, s{S_XCC}, v15\ns_nop 3\ns_and_b64 vcc, vcc, s[60:61]")
    A(f"s_cmp_eq_u64 vcc, 0\ns_cselect_b32 s62, {1 if opt('LOCALH', 2) and opt('MAP1', 1) else 0}, 0")
    A(f"v_mov_b32 v50, {LCNT + 12}\nv_mov_b32 v51, s62\nds_write_b32 v50, v51")
    A("s_branch L_ld_h2_ret")
    A("L_ld_h4:")
    A(f"s_lshl_b32 s50, s{S_B}, 10\ns_add_u32 s50, s50, {ST_OFF}\ns_mov_b32 m0, {LST}\nv_lshlrev_b32 v13, 4, v1")
    A(f"buffer_load_dwordx4 v13, s[36:39], s50 offen {SC} lds")
    A(f"s_lshl_b32 s50, s{S_F0}, 2\ns_add_u32 s50, s50, {CS_OFF}")
    A("v_and_b32 v13, 31, v1\nv_lshlrev_b32 v13, 4, v13\nv_lshrrev_b32 v14, 5, v1\nv_lshlrev_b32 v14, 13, v14\nv_add_u32 v14, v13, v14")
    for b_ in range(8):
        A(f"buffer_load_dwordx4 v[{16+4*b_}:{19+4*b_}], v14, s[36:39], s50 offen {SC}")
        if b_ < 7: A("s_add_u32 s50, s50, 16384")
    A("s_branch L_ld_h4_ret")
    A("L_ld_h2w:")
    A(f"v_lshlrev_b32 v22, 4, v1\nbuffer_store_dwordx4 v[60:63], v22, s[32:35], s63 offen {SC}")
    if opt("NOW"): A("s_branch L_ld_h2w_ret")
    A("s_cmp_ge_u32 s59, 54\ns_cbranch_scc1 L_ld_h2w_ret")
    for n in range(5):
        A(f"ds_read_b64_tr_b16 v[{24+4*n}:{25+4*n}], v57 offset:{32*n}")
        A(f"ds_read_b64_tr_b16 v[{26+4*n}:{27+4*n}], v57 offset:{32*n+1280}")
    A(f"s_mul_i32 s50, s{S_CT}, 54\ns_add_u32 s50, s50, s59\ns_mul_i32 s50, s50, 5120\ns_add_u32 s50, s50, {W2F_OFF}")
    A("v_add_u32 v23, 4096, v22\ns_waitcnt lgkmcnt(0)")
    for n in range(4):
        A(f"buffer_store_dwordx4 v[{24+4*n}:{27+4*n}], v22, s[32:35], s50 offen offset:{1024*n} {SC}")
    A(f"buffer_store_dwordx4 v[40:43], v23, s[32:35], s50 offen {SC}")
    A("s_branch L_ld_h2w_ret")
    A("L_ld_h3:")
    store_flags(A, 58, 2, 32, 64, xcc=True)
    A("s_branch L_ld_h3_ret")
    A("L_ld_p2:")
    stamp(A, 3)
    if opt("P1ONLY"):
        stamp_flush(A, 0, WS, 9)
        A("s_endpgm")
    if opt("WLATE", 1):
        A(f"v_mov_b32 v16, {LCNT + 20}")
        A(f"s_cmp_eq_u32 s{S_J}, 1\ns_cbranch_scc0 L_ld_ww")
        spin(A, "L_ld_spw", 48, 11, 32, xcc=True)
        spin(A, "L_ld_spf", 50, 59, 32, xcc=True)
        A("v_mov_b32 v17, 1\nds_write_b32 v16, v17\ns_waitcnt lgkmcnt(0)\ns_branch L_ld_wgo")
        A("L_ld_ww:\nds_read_b32 v17, v16\ns_waitcnt lgkmcnt(0)\ns_nop 0\nv_readfirstlane_b32 s50, v17\ns_nop 3\ns_cmp_eq_u32 s50, 1\ns_cbranch_scc1 L_ld_wgo")
        A(f"s_sub_u32 s{S_SPIN}, s{S_SPIN}, 1\ns_cmp_eq_u32 s{S_SPIN}, 0\ns_cbranch_scc0 L_ld_ww")
        A("L_ld_wgo:")
    p2(A)

def p2(A):
    J = S_J
    HSC = "" if opt("HPLAIN") else SC
    WSC = "" if opt("WPLAIN") else SC
    if opt("W2NT"): WSC += " nt"
    ACC = 16
    SET = [96, 132, 168]
    XR = 204
    VP = 214
    acc = lambda nt, a: ACC + 4 * (4 * nt + a)
    srd(A, 24, WS, WS_USED)
    srd(A, 28, WS, 4 * HF_TILE)
    A(f"s_mul_i32 s50, s{S_T0}, {4*HF_TILE}")
    if HF_OFF: A(f"s_add_u32 s50, s50, {HF_OFF}")
    A("s_add_u32 s28, s28, s50\ns_addc_u32 s29, s29, 0")
    srd(A, 32, X_, X_BYTES)
    srd(A, 40, OUT, X_BYTES)
    A("v_lshlrev_b32 v2, 4, v1\nv_add_u32 v3, 4096, v2")
    for a_ in range(4):
        A(f"s_add_u32 s50, s{J}, {a_}\ns_and_b32 s50, s50, 3\ns_mul_i32 s50, s50, {HF_TILE}\nv_add_u32 v{4+a_}, s50, v2")
    A("v_and_b32 v8, 15, v1\ns_mov_b32 s50, 81920\nv_mul_lo_u32 v8, s50, v8")
    A("v_lshrrev_b32 v9, 4, v1\nv_lshlrev_b32 v9, 3, v9\nv_add_u32 v8, v8, v9")
    A(f"s_lshr_b32 s38, s{J}, 1\ns_lshl_b32 s38, s38, 5\ns_add_u32 s38, s38, s{S_T0}")
    A(f"s_and_b32 s39, s{J}, 1\ns_lshl_b32 s39, s39, 10\ns_add_u32 s38, s38, s39\ns_mul_i32 s38, s38, 1280")
    A(f"s_mul_i32 s39, s{S_CT}, 160\ns_add_u32 s38, s38, s39")
    rotn = opt("ROT2", 2)
    A(f"s_and_b32 s50, s{S_T0}, {rotn - 1 if rotn else 0}\ns_mul_i32 s50, s50, {14 // rotn if rotn else 0}")
    A(f"s_lshl_b32 s50, s50, 2\ns_add_u32 s44, s50, s{J}\ns_mov_b32 s45, s44")
    A(f"s_mul_i32 s49, s{S_CT}, {54*5120}\ns_add_u32 s49, s49, {W2F_OFF}")
    def adv(r):
        A(f"s_add_u32 s{r}, s{r}, 4\ns_cmp_ge_u32 s{r}, 54\ns_cselect_b32 s{r}, s{J}, s{r}")
    def loadB(si):
        b = SET[si]
        A("s_mul_i32 s50, s44, 5120\ns_add_u32 s50, s50, s49")
        for n in range(4):
            A(f"buffer_load_dwordx4 v[{b+4*n}:{b+4*n+3}], v2, s[24:27], s50 offen offset:{1024*n} {WSC}")
        A(f"buffer_load_dwordx4 v[{b+16}:{b+19}], v3, s[24:27], s50 offen {WSC}")
        adv(44)
    def loadA(si, tstep=False):
        b = SET[si] + 20
        if tstep:
            A(f"s_add_u32 s50, s{J}, 2\ns_and_b32 s50, s50, 3\ns_add_u32 s50, s50, 54\ns_lshl_b32 s50, s50, 10")
        else:
            A("s_lshl_b32 s50, s45, 10")
        for a_ in range(4):
            A(f"buffer_load_dwordx4 v[{b+4*a_}:{b+4*a_+3}], v{4+a_}, s[28:31], s50 offen {HSC}")
        if not tstep: adv(45)
    def loadT(si):
        b = SET[si]
        A("s_mov_b32 s50, s46")
        for n in range(5):
            A(f"buffer_load_dwordx4 v[{b+4*n}:{b+4*n+3}], v10, s[24:27], s50 offen {SC}")
            if n < 4: A("s_add_u32 s50, s50, s47")
    def mfmas(si):
        b = SET[si]
        for a_ in range(4):
            for nt in range(5):
                c = acc(nt, a_)
                if not opt("NOCOMP2"):
                    A(f"{MFMA16} v[{c}:{c+3}], v[{b+4*nt}:{b+4*nt+3}], v[{b+20+4*a_}:{b+23+4*a_}], v[{c}:{c+3}]")
    def xorA(si):
        b = SET[si] + 20
        for k in range(16): A(f"v_xor_b32 v{b+k}, s48, v{b+k}")
        A("s_nop 0")
    NB0 = opt("NB0", 2)
    for si in range(NB0): loadB(si)
    for i in range(80): A(f"v_mov_b32 v{ACC+i}, 0")
    A(f"v_lshrrev_b32 v10, 4, v1\nv_mul_u32_u24 v10, {TF_ROW}, v10\nv_and_b32 v11, 15, v1")
    A(f"s_mul_i32 s50, s{S_CT}, 80\nv_add_u32 v12, s50, v11\nv_sub_u32 v13, 576, v12")
    A(f"s_cmp_lt_u32 s{S_CT}, 4\ns_cselect_b64 s[60:61], -1, 0\nv_cndmask_b32 v12, v13, v12, s[60:61]")
    A("v_lshlrev_b32 v12, 4, v12\nv_add_u32 v10, v10, v12")
    A(f"s_sub_u32 s46, 32, s{S_T0}\ns_and_b32 s46, s46, 31\ns_cmp_lt_u32 s{S_CT}, 4\ns_cselect_b32 s46, s{S_T0}, s46")
    A(f"s_mul_i32 s46, s46, {TF_T0}\ns_add_u32 s46, s46, {TF_OFF}")
    A(f"s_mov_b32 s47, 256\ns_mov_b32 s50, -256\ns_cmp_lt_u32 s{S_CT}, 4\ns_cselect_b32 s47, s47, s50\ns_cselect_b32 s50, 0, 1024\ns_cselect_b32 s48, 0x80000000, 0")
    A("s_add_u32 s46, s46, s50")
    A(f"s_add_u32 s50, s{J}, 2\ns_and_b32 s50, s50, 3\ns_mul_i32 s50, s50, {4*TF_ROW}\ns_add_u32 s46, s46, s50")
    A(f"s_lshl_b32 s50, s{S_CT}, 10\ns_add_u32 s50, s50, {FT_OFF}\nv_lshlrev_b32 v12, 3, v1\nv_add_u32 v12, s50, v12")
    A("v_and_b32 v13, 15, v1\nv_lshlrev_b32 v13, 3, v13\nv_add_u32 v13, s50, v13\nv_add_u32 v13, 512, v13")
    A(f"s_cmp_eq_u32 s{J}, 0\ns_cbranch_scc0 L_p2_lw")
    A(f"s_lshr_b32 s50, s{S_T0}, 1\ns_lshl_b32 s50, s50, 7\ns_add_u32 s50, s50, {FH_OFF}")
    A("v_and_b32 v14, 15, v1\nv_lshlrev_b32 v14, 3, v14\nv_add_u32 v11, s50, v14")
    A(f"buffer_load_dwordx2 v[{VP}:{VP+1}], v11, s[24:27], 0 offen {SC}\ns_waitcnt vmcnt(0)")
    if opt("SPINSTAMP") == "L_p2_sp1": stamp(A)
    spin(A, "L_p2_sp1", VP, 11, 24, xcc=True)
    A(f"v_mov_b32 v14, {LCNT + 16}\nv_mov_b32 v15, 1\nds_write_b32 v14, v15\ns_waitcnt lgkmcnt(0)")
    A("s_branch L_p2_go")
    A("L_p2_lw:")
    if opt("P2ONLY"): A("s_branch L_p2_go")
    A(f"v_mov_b32 v14, {LCNT + 16}")
    A("L_p2_lw1:\nds_read_b32 v15, v14\ns_waitcnt lgkmcnt(0)\ns_nop 0\nv_readfirstlane_b32 s50, v15\ns_nop 3\ns_cmp_eq_u32 s50, 1\ns_cbranch_scc1 L_p2_go")
    A(f"s_sleep 1\ns_sub_u32 s{S_SPIN}, s{S_SPIN}, 1\ns_cmp_eq_u32 s{S_SPIN}, 0\ns_cbranch_scc0 L_p2_lw1")
    A("L_p2_go:")
    stamp(A, 5)
    for si in range(NB0): loadA(si)
    for si in range(NB0, 3):
        loadB(si); loadA(si)
    def loadX():
        for n in range(5):
            A(f"buffer_load_dwordx2 v[{XR+2*n}:{XR+2*n+1}], v8, s[32:35], s38 offen offset:{32*n}")
    XLATE = opt("XLATE", 1)
    if not XLATE: loadX()
    def step(si, vm, pre):
        A(f"s_waitcnt vmcnt({vm})")
        mfmas(si)
        pre()
    reg = lambda si: (lambda: (loadB(si), loadA(si)))
    order = [(si, 4) for si in range(NB0)] + [(si, 9) for si in range(NB0, 3)] + ([] if XLATE else [(-1, 5)])
    for st_ in range(3):
        idx = max(i for i, (si, n) in enumerate(order) if si == st_)
        younger = sum(n for (si, n) in order[idx+1:]) + 9 * st_
        step(st_, younger, reg(st_))
        if opt("STEPSTAMP"): stamp(A)
    stamp(A)
    A("s_mov_b32 s51, 2")
    A("L_p2_loop:")
    for si in range(3):
        step(si, 18, reg(si))
        if opt("STEPSTAMP"): stamp(A)
    A("s_cmp_eq_u32 s51, 2\ns_cbranch_scc0 L_p2_nt")
    A(f"buffer_load_dwordx2 v[{VP}:{VP+1}], v12, s[24:27], 0 offen {SC}\nbuffer_load_dwordx2 v[{VP+2}:{VP+3}], v13, s[24:27], 0 offen {SC}")
    A("L_p2_nt:")
    A("s_sub_u32 s51, s51, 1\ns_cmp_lg_u32 s51, 0\ns_cbranch_scc1 L_p2_loop")
    stamp(A)
    step(0, 18, reg(0))
    spin(A, "L_p2_sp2", VP, 12, 24)
    spin(A, "L_p2_sp3", VP + 2, 13, 24)
    A(f"s_cmp_eq_u32 s2, 0\ns_cbranch_scc0 L_p2_noep\ns_cmp_eq_u32 s{J}, 0\ns_cbranch_scc0 L_p2_noep")
    A(f"v_mov_b32 v14, s{S_E}\nv_mov_b32 v15, {EP_OFF}\ns_mov_b64 exec, 1\nbuffer_store_dword v14, v15, s[24:27], 0 offen {SC}\ns_mov_b64 exec, -1")
    A("L_p2_noep:")
    stamp(A)
    A(f"s_cmp_lt_u32 s{J}, 2\ns_cbranch_scc0 L_p2_hi")
    step(1, 18, reg(1))
    step(2, 18, lambda: (loadT(2), loadA(2, True), loadX() if XLATE else None))
    xq = 5 if XLATE else 0
    step(0, 18 + xq, lambda: None)
    step(1, 9 + xq, lambda: None)
    A(f"s_waitcnt vmcnt({xq})"); xorA(2); mfmas(2)
    A("s_branch L_p2_red")
    A("L_p2_hi:")
    step(1, 18, lambda: (loadT(1), loadA(1, True), loadX() if XLATE else None))
    step(2, 18 + xq, lambda: None)
    step(0, 9 + xq, lambda: None)
    A(f"s_waitcnt vmcnt({xq})"); xorA(1); mfmas(1)
    A("L_p2_red:")
    stamp(A)
    A("s_nop 7")
    for a_ in range(1, 4):
        A(f"s_add_u32 s50, s{J}, {a_}\ns_and_b32 s50, s50, 3\ns_mul_i32 s50, s50, 3\ns_add_u32 s50, s50, {a_-1}\ns_mul_i32 s50, s50, 5120\nv_add_u32 v14, s50, v2")
        for nt in range(5):
            c = acc(nt, a_)
            A(f"ds_write_b128 v14, v[{c}:{c+3}] offset:{nt*1024}")
    A("s_waitcnt lgkmcnt(0)\ns_barrier")
    A(f"s_mul_i32 s50, s{J}, {3*5120}\nv_add_u32 v14, s50, v2")
    for pos in range(3):
        for nt in range(5):
            r = 96 + 20 * pos + 4 * nt
            A(f"ds_read_b128 v[{r}:{r+3}], v14 offset:{pos*5120+nt*1024}")
    for pos in range(3):
        A(f"s_waitcnt lgkmcnt({10 - 5*pos})")
        for nt in range(5):
            r = 96 + 20 * pos + 4 * nt; c = acc(nt, 0)
            for k in range(4): A(f"v_add_f32 v{c+k}, v{c+k}, v{r+k}")
    A("s_waitcnt vmcnt(0)")
    for n in range(5):
        c = acc(n, 0); x = XR + 2 * n; t = 168 + 4 * n
        A(f"v_lshlrev_b32 v{t}, 16, v{x}\nv_and_b32 v{t+1}, 0xffff0000, v{x}")
        A(f"v_lshlrev_b32 v{t+2}, 16, v{x+1}\nv_and_b32 v{t+3}, 0xffff0000, v{x+1}")
        for k in range(4): A(f"v_add_f32 v{t+k}, v{t+k}, v{c+k}")
        A(f"v_cvt_pk_bf16_f32 v{x}, v{t}, v{t+1}\nv_cvt_pk_bf16_f32 v{x+1}, v{t+2}, v{t+3}")
        A(f"buffer_store_dwordx2 v[{x}:{x+1}], v8, s[40:43], s38 offen offset:{32*n}")
    stamp(A)
    if opt("CLK") and asmlib.PROFILE:
        A("s_memtime s[90:91]\ns_waitcnt lgkmcnt(0)\ns_sub_u32 s90, s90, s88\ns_mov_b32 m0, 62\nv_writelane_b32 v0, s90, m0")
    stamp_flush(A, 0, WS, 9)
    A("s_endpgm")

def gen(A, name):
    global KNAME
    KNAME = name
    kernel_head(A, name)
    entry(A)
    if opt("P2ONLY"):
        A(f"s_mov_b32 s{S_SPIN}, 1\ns_cmp_lt_u32 s3, 4\ns_cbranch_scc1 L_end\ns_sub_u32 s{S_J}, s3, 4\ns_waitcnt lgkmcnt(0)\ns_branch L_ld_p2")
    A("s_cmp_ge_u32 s3, 4\ns_cbranch_scc1 L_loader")
    jobs_issue(A)
    A(f"s_cmp_lt_u32 s{S_C}, 5\ns_cbranch_scc1 L_mx")
    p1_hh(A)
    p1_mx(A)
    loader(A)
    A("L_end:\ns_endpgm\nL_code_end:")
```

```python
from asmlib import *
import asmlib
from layout import *

MFMA32 = "v_mfma_f32_32x32x16_bf16"
MFMA16 = "v_mfma_f32_16x16x32_bf16"
RING = 32768; NS = 4
SLOT = 20480; NS2 = 6
LX = NS2 * SLOT
LW = 132 * 1024
LST = 152 * 1024
LCS = LST + 1024
LCNT = LST + 2048
LDS_TOTAL = LCNT + 64
X_, SRE, SIM, HRE, HIM, WS = 4, 6, 8, 10, 12, 16
W1, W2, OUT, DBG = 64, 66, 68, 70
S_B, S_C, S_F0, S_J = 18, 19, 20, 21
S_T0, S_CT = 72, 73
S_SPIN = 74
SC = "sc1"
SPIN_MAX = 200000
CPW = 3

MAGIC = 0x5A3C96E1
S_E, S_EM = 75, 76
S_XCC = 77
S_LOCAL = 78

def spin(A, name, vp, vaddr, srdp, xcc=False):
    A(f"{name}:")
    if xcc:
        A(f"v_xor_b32 v{vp+1}, s{S_EM}, v{vp+1}\nv_cmp_ne_u32 vcc, s{S_E}, v{vp}\nv_cmp_lt_u32 s[60:61], 15, v{vp+1}\ns_nop 3\ns_or_b64 vcc, vcc, s[60:61]")
    else:
        A(f"v_cmp_ne_u32 vcc, s{S_E}, v{vp}\nv_cmp_ne_u32 s[60:61], s{S_EM}, v{vp+1}\ns_nop 3\ns_or_b64 vcc, vcc, s[60:61]")
    A(f"s_cbranch_vccz {name}_ok")
    if opt("P2ONLY"): A(f"s_branch {name}_ok")
    A(f"s_sub_u32 s{S_SPIN}, s{S_SPIN}, 1\ns_cmp_eq_u32 s{S_SPIN}, 0\ns_cbranch_scc1 {name}_ok")
    A(f"s_sleep {opt('SLEEP', 4)}")
    A(f"buffer_load_dwordx2 v[{vp}:{vp+1}], v{vaddr}, s[{srdp}:{srdp+3}], 0 offen {SC}\ns_waitcnt vmcnt(0)")
    if opt("SPINSTAMP") == name: stamp(A)
    A(f"s_branch {name}\n{name}_ok:")

def store_flags(A, vaddr, nlanes, srdp, vt, xcc=False, local=None):
    if xcc:
        A(f"s_xor_b32 s62, s{S_EM}, s{S_XCC}\nv_mov_b32 v{vt}, s{S_E}\nv_mov_b32 v{vt+1}, s62\ns_mov_b64 exec, {(1 << nlanes) - 1}")
    else:
        A(f"v_mov_b32 v{vt}, s{S_E}\nv_mov_b32 v{vt+1}, s{S_EM}\ns_mov_b64 exec, {(1 << nlanes) - 1}")
    if local:
        A(f"s_cmp_eq_u32 s{S_LOCAL}, 1\ns_cbranch_scc1 {local}_fp")
    A(f"buffer_store_dwordx2 v[{vt}:{vt+1}], v{vaddr}, s[{srdp}:{srdp+3}], 0 offen {SC}")
    if local:
        A(f"s_branch {local}_fd\n{local}_fp:")
        A(f"buffer_store_dwordx2 v[{vt}:{vt+1}], v{vaddr}, s[{srdp}:{srdp+3}], 0 offen")
        A(f"{local}_fd:")
    A("s_mov_b64 exec, -1")

def flag_addr_h(A, v):
    A(f"s_lshl_b32 s62, s{S_B}, 4\ns_add_u32 s62, s62, s{S_C}\ns_lshl_b32 s62, s62, 3\ns_add_u32 s62, s62, {FH_OFF}\nv_mov_b32 v{v}, s62")
def flag_addr_t(A, v):
    A(f"s_lshl_b32 s62, s{S_C}, 4\ns_add_u32 s62, s62, s{S_B}\ns_lshl_b32 s62, s62, 3\ns_add_u32 s62, s62, {FT_OFF}")
    A(f"v_lshlrev_b32 v{v}, 10, v1\nv_add_u32 v{v}, s62, v{v}")
def flag_addr_early(A, v):
    A(f"s_lshl_b32 s62, s{S_B}, 4\ns_add_u32 s62, s62, s{S_C}\ns_lshl_b32 s62, s62, 3\ns_add_u32 s58, s62, {FR1_OFF}")
    A(f"s_lshl_b32 s62, s{S_C}, 4\ns_add_u32 s62, s62, s{S_B}\ns_lshl_b32 s62, s62, 3\ns_add_u32 s62, s62, {FC1_OFF}")
    A(f"s_cmp_eq_u32 s3, 1\ns_cselect_b32 s58, s62, s58\nv_mov_b32 v{v}, s58")

def epoch_ready(A):
    A("s_waitcnt lgkmcnt(0)")
    A(f"s_add_u32 s{S_E}, s{S_E}, 1\ns_xor_b32 s{S_EM}, s{S_E}, {MAGIC}")
    srd(A, 48, WS, WS_USED)

def lds_arrive(A, word, vt, sdst):
    A(f"v_mov_b32 v{vt}, {LCNT + 4*word}\nv_mov_b32 v{vt+1}, 1\ns_mov_b64 exec, 1")
    A(f"ds_add_rtn_u32 v{vt+1}, v{vt}, v{vt+1}\ns_waitcnt lgkmcnt(0)\ns_mov_b64 exec, -1\ns_nop 0")
    A(f"v_readfirstlane_b32 s{sdst}, v{vt+1}")
    A("s_nop 3")

def entry(A):
    A("s_cmp_ge_u32 s2, 256\ns_cbranch_scc1 L_end")
    A(f"s_load_dwordx4 s[4:7], s[0:1], {KA_X}")
    A(f"s_load_dwordx4 s[8:11], s[0:1], {KA_SIM}")
    A(f"s_load_dwordx2 s[12:13], s[0:1], {KA_HIM}")
    A(f"s_load_dwordx4 s[64:67], s[0:1], {KA_W1}")
    A(f"s_load_dwordx4 s[68:71], s[0:1], {KA_OUT}")
    A(f"s_load_dwordx2 s[16:17], s[0:1], {KA_WS}")
    A("v_lshrrev_b32 v2, 6, v0\nv_and_b32 v1, 63, v0\ns_nop 0\nv_readfirstlane_b32 s3, v2")
    if opt("CODEPF", 1):
        A(f"s_nop 3\ns_cmp_eq_u32 s3, {CPW}\ns_cbranch_scc0 L_nocp")
        A("s_getpc_b64 s[50:51]\nJ_pc:")
        A(f"s_sub_u32 s50, s50, J_pc-{KNAME}\ns_subb_u32 s51, s51, 0")
        mode = opt("CPMODE", 1)
        A(f"s_mov_b32 s52, ((L_code_end-{KNAME})>>7)-1")
        if mode == 0:
            A("s_lshr_b32 s53, s2, 3\ns_mul_i32 s53, s53, 6\nv_add_u32 v22, s53, v1\nv_min_u32 v22, s52, v22\nv_lshlrev_b32 v22, 7, v22")
            A("v_mov_b32 v23, s51\nv_add_co_u32 v22, vcc, s50, v22\ns_nop 1\nv_addc_co_u32 v23, vcc, 0, v23, vcc")
            A("s_mov_b64 exec, 63\nglobal_load_dword v127, v[22:23], off\ns_mov_b64 exec, -1")
        else:
            for n in range(3):
                A(f"v_add_u32 v22, {64*n}, v1\nv_min_u32 v22, s52, v22\nv_lshlrev_b32 v22, 7, v22")
                A("v_mov_b32 v23, s51\nv_add_co_u32 v22, vcc, s50, v22\ns_nop 1\nv_addc_co_u32 v23, vcc, 0, v23, vcc")
                A(f"global_load_dword v{125+n}, v[22:23], off")
        A("L_nocp:")
    A("s_and_b32 s24, s2, 7\ns_lshr_b32 s25, s2, 3\ns_lshr_b32 s27, s25, 3\ns_and_b32 s28, s25, 7")
    if opt("MAP1", 1):
        A(f"s_lshl_b32 s26, s24, 1\ns_lshr_b32 s29, s25, 4\ns_add_u32 s{S_B}, s26, s29\ns_and_b32 s{S_C}, s25, 15")
    else:
        A(f"s_lshr_b32 s26, s24, 1\ns_lshl_b32 s26, s26, 2\ns_add_u32 s{S_B}, s26, s27")
        A(f"s_and_b32 s26, s24, 1\ns_lshl_b32 s26, s26, 3\ns_add_u32 s{S_C}, s26, s28")
    A(f"s_lshl_b32 s26, s{S_C}, 6\ns_lshl_b32 s29, s{S_C}, 7\ns_sub_u32 s29, s29, 320")
    A(f"s_cmp_lt_u32 s{S_C}, 5\ns_cselect_b32 s{S_F0}, s26, s29")
    A(f"s_lshl_b32 s24, s24, 2\ns_add_u32 s{S_T0}, s24, s27\ns_mov_b32 s{S_CT}, s28")
    A(f"s_mov_b32 s{S_SPIN}, {SPIN_MAX}")
    A(f"s_getreg_b32 s{S_XCC}, hwreg(HW_REG_XCC_ID)\ns_and_b32 s{S_XCC}, s{S_XCC}, 15")
    A("s_waitcnt lgkmcnt(0)")
    stamp_init(A)
    if opt("CLK"): A("s_memtime s[88:89]\ns_waitcnt lgkmcnt(0)")
    A(f"s_mov_b32 s62, {EP_OFF}\ns_load_dword s{S_E}, s[{WS}:{WS+1}], s62")
    stamp(A, 0, force=True)

def jobs_issue(A):
    srd(A, 24, X_, X_BYTES); srd(A, 28, W1, W1_BYTES); srd(A, 36, WS, WS_USED)
    A("s_cmp_eq_u32 s3, 0\ns_cbranch_scc1 J_x_i\ns_cmp_eq_u32 s3, 1\ns_cbranch_scc1 J_c_i")
    if opt("TLBPF", 1):
        A("s_cmp_eq_u32 s3, 2\ns_cbranch_scc0 J_i_done")
        srd(A, 40, OUT, X_BYTES); srd(A, 44, W2, W2_BYTES)
        A("v_lshlrev_b32 v22, 20, v1")
        A(f"s_mov_b64 exec, {(1 << ((WS_USED >> 20) + 1)) - 1}\nbuffer_load_dword v125, v22, s[36:39], 0 offen {SC}")
        A(f"s_mov_b64 exec, 7\nbuffer_load_dword v126, v22, s[40:43], 0 offen {SC}\nbuffer_load_dword v127, v22, s[44:47], 0 offen\ns_mov_b64 exec, -1")
    A("s_branch J_i_done")
    A("J_x_i:")
    A(f"s_lshr_b32 s48, s{S_C}, 2\ns_and_b32 s49, s{S_C}, 3")
    A(f"s_lshl_b32 s50, s{S_B}, 1\ns_and_b32 s51, s48, 1\ns_add_u32 s50, s50, s51")
    A("s_lshr_b32 s51, s48, 1\ns_lshl_b32 s51, s51, 5\ns_add_u32 s50, s50, s51")
    A("s_lshl_b32 s51, s49, 9\ns_add_u32 s50, s50, s51\ns_mul_i32 s50, s50, 1280")
    A("v_lshrrev_b32 v22, 3, v1\ns_mov_b32 s51, 81920\nv_mul_lo_u32 v22, s51, v22")
    A("v_and_b32 v23, 7, v1\nv_lshlrev_b32 v23, 4, v23\nv_add_u32 v22, v22, v23")
    for i in range(10):
        A(f"buffer_load_dwordx4 v[{32+4*i}:{35+4*i}], v22, s[24:27], s50 offen offset:{128*i}")
    A(f"v_mov_b32 v22, {LCNT}\nv_mov_b32 v24, 0\nv_mov_b32 v25, 0\nv_mov_b32 v26, 0\nv_mov_b32 v27, 0\nds_write_b128 v22, v[24:27]\nds_write_b128 v22, v[24:27] offset:16")
    A("s_branch J_i_done")
    A("J_c_i:")
    A("v_lshrrev_b32 v22, 4, v1\nv_mul_u32_u24 v22, 3456, v22\nv_and_b32 v23, 15, v1\nv_lshlrev_b32 v23, 4, v23\nv_add_u32 v22, v22, v23")
    A(f"s_mul_i32 s50, s{S_B}, {40*3456}\ns_lshl_b32 s51, s{S_F0}, 1\ns_add_u32 s50, s50, s51")
    for i in range(10):
        A(f"buffer_load_dwordx4 v[{32+4*i}:{35+4*i}], v22, s[28:31], s50 offen")
        if i < 9: A(f"s_add_u32 s50, s50, {4*3456}")
    A(f"s_cmp_eq_u32 s{S_C}, 0\ns_cbranch_scc0 J_i_done")
    A("v_and_b32 v23, 7, v1\nv_lshlrev_b32 v23, 4, v23\nv_bfe_u32 v24, v1, 3, 2\nv_lshlrev_b32 v24, 15, v24\nv_add_u32 v23, v23, v24")
    A(f"v_add_u32 v23, {16384+8192+4096}, v23")
    A("v_mov_b32 v24, 0xbf803f80\nv_mov_b32 v25, 0x3f80bf80\nv_mov_b32 v26, 0xbf803f80\nv_mov_b32 v27, 0x3f80bf80")
    A("ds_write_b128 v23, v[24:27]")
    A("s_branch J_i_done")
    A("J_i_done:")

def dpp_add(A, r, ctrl):
    A(f"v_add_f32_dpp v{r}, v{r}, v{r} {ctrl} row_mask:0xf bank_mask:0xf")

def jobs_finish(A, nG_, tagx):
    nG = tagx
    class _N(str):
        pass
    A("s_cmp_eq_u32 s3, 0\ns_cbranch_scc1 %s\ns_cmp_eq_u32 s3, 1\ns_cbranch_scc1 %s\ns_branch %s" % (f"J_x_{nG}", f"J_c_{nG}", f"J_done_{nG}"))
    A(f"J_x_{nG}:")
    A("v_mov_b32 v22, 0\nv_mov_b32 v23, 0\nv_mov_b32 v24, 0\nv_mov_b32 v25, 0\ns_mov_b32 s52, 0x3f803f80")
    for i in range(10):
        A(f"s_waitcnt vmcnt({9-i+nG_})")
        for k in range(4):
            r = 32 + 4 * i + k
            A(f"v_dot2_f32_bf16 v{22+(k&1)}, v{r}, s52, v{22+(k&1)}")
            A(f"v_dot2_f32_bf16 v{24+(k&1)}, v{r}, v{r}, v{24+(k&1)}")
    A("s_nop 2\nv_add_f32 v22, v22, v23\nv_add_f32 v24, v24, v25\ns_nop 1")
    for ctrl in ["quad_perm:[1,0,3,2]", "quad_perm:[2,3,0,1]", "row_half_mirror"]:
        dpp_add(A, 22, ctrl); dpp_add(A, 24, ctrl); A("s_nop 0")
    A("s_mov_b32 s52, 0x3acccccd\nv_mul_f32 v22, s52, v22\nv_mul_f32 v24, s52, v24")
    A("v_fma_f32 v24, -v22, v22, v24\nv_max_f32 v24, 0, v24\nv_add_f32 v24, 0x3727c5ac, v24\nv_rsq_f32 v23, v24")
    A(f"s_lshl_b32 s52, s{S_B}, 10\ns_lshl_b32 s53, s{S_C}, 5\ns_add_u32 s52, s52, s53\ns_add_u32 s52, s52, {ST_OFF}")
    A("v_lshrrev_b32 v25, 3, v1\nv_lshlrev_b32 v25, 2, v25")
    A("v_and_b32 v26, 7, v1\nv_cmp_eq_u32 vcc, 0, v26\ns_and_saveexec_b64 s[54:55], vcc")
    A(f"buffer_store_dword v22, v25, s[36:39], s52 offen {SC}\nbuffer_store_dword v23, v25, s[36:39], s52 offen offset:512 {SC}")
    A("s_mov_b64 exec, s[54:55]")
    A(f"s_branch J_done_{nG}")
    A(f"J_c_{nG}:")
    for k in range(8): A(f"v_mov_b32 v{72+k}, 0")
    A("s_mov_b32 s52, 0x00003f80\ns_mov_b32 s53, 0x3f800000")
    for i in range(10):
        A(f"s_waitcnt vmcnt({9-i+nG_})")
        for k in range(4):
            r = 32 + 4 * i + k
            A(f"v_dot2_f32_bf16 v{72+2*k}, v{r}, s52, v{72+2*k}")
            A(f"v_dot2_f32_bf16 v{73+2*k}, v{r}, s53, v{73+2*k}")
    A("s_nop 2")
    for sw in ["v_permlane16_swap_b32", "v_permlane32_swap_b32"]:
        for k in range(8): A(f"v_mov_b32 v{80+k}, v{72+k}")
        A("s_nop 0")
        for k in range(8): A(f"{sw} v{72+k}, v{80+k}")
        A("s_nop 0")
        for k in range(8): A(f"v_add_f32 v{72+k}, v{72+k}, v{80+k}")
    A(f"s_lshl_b32 s52, s{S_B}, 13\ns_lshl_b32 s53, s{S_F0}, 2\ns_add_u32 s52, s52, s53\ns_add_u32 s52, s52, {CS_OFF}")
    A(f"v_lshlrev_b32 v22, 5, v1\ns_mov_b32 s53, 16\ns_cmp_lt_u32 s{S_C}, 5\ns_cselect_b32 s53, 8, s53")
    A("v_cmp_gt_u32 vcc, s53, v1\ns_and_saveexec_b64 s[54:55], vcc")
    A(f"buffer_store_dwordx4 v[72:75], v22, s[36:39], s52 offen {SC}\nbuffer_store_dwordx4 v[76:79], v22, s[36:39], s52 offen offset:16 {SC}")
    A("s_mov_b64 exec, s[54:55]")
    A(f"s_branch J_done_{nG}")
    A(f"J_done_{nG}:")
    A(f"s_cmp_ge_u32 s3, 2\ns_cbranch_scc0 J_dn2_{nG}\ns_waitcnt vmcnt(0)\nJ_dn2_{nG}:")

def x_addr(A, dst, rowbase_sgpr, tmp):
    A(f"v_and_b32 v{tmp}, 31, v1\nv_add_u32 v{tmp+1}, s{rowbase_sgpr}, v{tmp}\nv_lshlrev_b32 v{tmp+1}, 7, v{tmp+1}")
    A(f"v_bfe_u32 v{tmp}, v1, 1, 3\nv_lshrrev_b32 v{tmp+2}, 5, v1\nv_xor_b32 v{tmp}, v{tmp}, v{tmp+2}")
    A(f"v_lshlrev_b32 v{tmp}, 4, v{tmp}\nv_add_u32 v{dst}, v{tmp+1}, v{tmp}")
    for j in range(1, 4):
        A(f"v_xor_b32 v{dst+j}, {32*j}, v{dst}")
def h_tr_addr(A, dst, tmp):
    A(f"v_bfe_u32 v{tmp}, v1, 5, 1\nv_lshlrev_b32 v{tmp}, 3, v{tmp}\nv_bfe_u32 v{tmp+1}, v1, 2, 2\nv_add_u32 v{tmp}, v{tmp}, v{tmp+1}")
    A(f"v_lshlrev_b32 v{tmp}, 7, v{tmp}")
    A(f"v_bfe_u32 v{tmp+1}, v1, 4, 1\nv_lshlrev_b32 v{tmp+1}, 1, v{tmp+1}\nv_bfe_u32 v{tmp+2}, v1, 1, 1\nv_add_u32 v{tmp+1}, v{tmp+1}, v{tmp+2}")
    A(f"v_bfe_u32 v{tmp+2}, v1, 3, 1\nv_lshlrev_b32 v{tmp+2}, 2, v{tmp+2}\nv_xor_b32 v{tmp+1}, v{tmp+1}, v{tmp+2}")
    A(f"v_lshlrev_b32 v{tmp+1}, 4, v{tmp+1}\nv_add_u32 v{tmp}, v{tmp}, v{tmp+1}")
    A(f"v_and_b32 v{tmp+1}, 1, v1\nv_lshlrev_b32 v{tmp+1}, 3, v{tmp+1}\nv_add_u32 v{dst}, v{tmp}, v{tmp+1}")
def interleave(A, mfmas, fillers, per_gap):
    if opt("NOCOMP1"):
        for f in fillers:
            if not f.startswith("ds_read") and not f.startswith("v_perm"): A(f)
        return
    k = 0
    for i, m in enumerate(mfmas):
        A(m)
        for _ in range(per_gap[i]):
            if k < len(fillers):
                A(fillers[k]); k += 1
    while k < len(fillers):
        A(fillers[k]); k += 1
def h_epilogue_tile(A, acc, mr, cs, tmp, vaddr, soff):
    for i in range(0, 16, 2):
        A(f"v_pk_fma_f32 v[{acc+i}:{acc+i+1}], v[{cs+i}:{cs+i+1}], v[{mr}:{mr+1}], v[{acc+i}:{acc+i+1}] op_sel:[0,0,0] op_sel_hi:[1,0,1] neg_lo:[0,1,0] neg_hi:[0,1,0]")
    for i in range(0, 16, 2):
        A(f"v_pk_mul_f32 v[{acc+i}:{acc+i+1}], v[{acc+i}:{acc+i+1}], v[{mr}:{mr+1}] op_sel:[0,1] op_sel_hi:[1,1]")
    for i in range(0, 16, 2):
        A(f"v_cvt_pk_bf16_f32 v{tmp+i//2}, v{acc+i}, v{acc+i+1}")
    for i in range(8):
        A(f"v_pk_max_i16 v{tmp+i}, v{tmp+i}, 0")
    h_epilogue_tile.n += 1
    n = h_epilogue_tile.n
    A(f"s_cmp_eq_u32 s{S_LOCAL}, {1 if opt('LOCALH', 2) == 1 else 7}\ns_cbranch_scc1 L_hst{n}_p")
    A(f"buffer_store_dwordx4 v[{tmp}:{tmp+3}], v{vaddr}, s[36:39], s{soff} offen {SC}")
    A(f"buffer_store_dwordx4 v[{tmp+4}:{tmp+7}], v{vaddr}, s[36:39], s{soff} offen offset:512 {SC}")
    A(f"s_branch L_hst{n}_d\nL_hst{n}_p:")
    hst = {0: "", 1: "nt", 2: "sc0", 3: "sc0 nt"}[opt("HST", 0)]
    A(f"buffer_store_dwordx4 v[{tmp}:{tmp+3}], v{vaddr}, s[36:39], s{soff} offen {hst}")
    A(f"buffer_store_dwordx4 v[{tmp+4}:{tmp+7}], v{vaddr}, s[36:39], s{soff} offen offset:512 {hst}")
    A(f"L_hst{n}_d:")
h_epilogue_tile.n = 0
def h_store_voff(A, dst, tmp):
    A(f"v_bfe_u32 v{tmp}, v1, 4, 1\nv_mul_u32_u24 v{tmp}, {58*1024}, v{tmp}")
    A(f"v_lshrrev_b32 v{tmp+1}, 5, v1\nv_lshlrev_b32 v{tmp+1}, 8, v{tmp+1}\nv_add_u32 v{tmp}, v{tmp}, v{tmp+1}")
    A(f"v_and_b32 v{tmp+1}, 15, v1\nv_lshlrev_b32 v{tmp+1}, 4, v{tmp+1}\nv_add_u32 v{dst}, v{tmp}, v{tmp+1}")

def loop_hooks_top(A, tag):
    A(f"s_cmp_eq_u32 s29, s30\ns_cbranch_scc1 {tag}_flag1\n{tag}_flag1_ret:")
def loop_hooks_init(A):
    A(f"s_cmp_lt_u32 s3, 2\ns_cselect_b32 s30, {10 - opt('EARLY_IT', 1)}, 99")
def loop_hooks_ool(A, tag):
    A(f"{tag}_flag1:")
    flag_addr_early(A, 28)
    A("s_waitcnt vmcnt(0)")
    store_flags(A, 28, 1, 48, 30, xcc=True)
    A(f"s_branch {tag}_flag1_ret")

def publish(A, tag, word, kind, vt):
    A("s_waitcnt vmcnt(0)")
    lds_arrive(A, word, vt, 63)
    A(f"s_cmp_eq_u32 s63, 3\ns_cbranch_scc0 {tag}_np")
    if kind == "h":
        flag_addr_h(A, vt - 1); store_flags(A, vt - 1, 1, 48, vt, xcc=True, local=(tag if opt("LOCALF", 1) else None))
    else:
        flag_addr_t(A, vt - 1); store_flags(A, vt - 1, 8, 48, vt)
    A(f"{tag}_np:")

def p1_hh(A):
    A("L_hh:")
    ACC = 128; P, Q = 32, 64
    XB, WB = 2, 6; XC, WC = 8, 12
    A("s_lshr_b32 s24, s3, 1\ns_and_b32 s25, s3, 1")
    A("s_lshl_b32 s26, s24, 6")
    x_addr(A, XB, 26, 20)
    h_tr_addr(A, WB, 20)
    A("s_lshl_b32 s27, s25, 13\ns_add_u32 s27, s27, 16384")
    A(f"v_add_u32 v{WB}, s27, v{WB}\nv_xor_b32 v{WB+1}, 64, v{WB}")
    for i in range(64): A(f"v_mov_b32 v{ACC+i}, 0")
    for j in range(4): A(f"v_mov_b32 v{XC+j}, v{XB+j}")
    for j in range(2): A(f"v_mov_b32 v{WC+j}, v{WB+j}")
    jobs_finish(A, 0, 'h')
    epoch_ready(A)
    A("s_mov_b32 s28, 0")
    loop_hooks_init(A)
    def reads(buf, g):
        out = []
        for jj in range(2):
            j = 2 * g + jj; b = buf + 16 * jj
            out.append(f"ds_read_b128 v[{b}:{b+3}], v{XC+j}")
            out.append(f"ds_read_b64_tr_b16 v[{b+8}:{b+9}], v{WC} offset:{j*2048}")
            out.append(f"ds_read_b64_tr_b16 v[{b+10}:{b+11}], v{WC} offset:{j*2048+512}")
            out.append(f"ds_read_b128 v[{b+4}:{b+7}], v{XC+j} offset:4096")
            out.append(f"ds_read_b64_tr_b16 v[{b+12}:{b+13}], v{WC+1} offset:{j*2048}")
            out.append(f"ds_read_b64_tr_b16 v[{b+14}:{b+15}], v{WC+1} offset:{j*2048+512}")
        return out
    def mfmas(buf):
        out = []
        for jj in range(2):
            b = buf + 16 * jj
            for ft in range(2):
                for st in range(2):
                    a = ACC + 16 * (2 * ft + st)
                    out.append(f"{MFMA32} v[{a}:{a+15}], v[{b+8+4*ft}:{b+11+4*ft}], v[{b+4*st}:{b+3+4*st}], v[{a}:{a+15}]")
        return out
    stamp(A, 1)
    A("s_waitcnt lgkmcnt(0)\ns_barrier")
    stamp(A, 2)
    for r in reads(P, 0):
        if not opt("NOCOMP1"): A(r)
    A("s_mov_b32 s29, 10")
    A("L_hh_loop:")
    A.drop = (["v_mfma"] if opt("NOMF1") else []) + (["ds_read"] if opt("NODS1") else []) + (["v_perm"] if opt("NOPERM") else [])
    loop_hooks_top(A, "L_hh")
    A("s_waitcnt lgkmcnt(0)")
    upd = [f"v_add_u32 v{XC+j}, s28, v{XB+j}" for j in range(4)] + [f"v_add_u32 v{WC+j}, s28, v{WB+j}" for j in range(2)]
    ring = [f"s_add_u32 s28, s28, {RING}", f"s_and_b32 s28, s28, {NS*RING-1}"]
    interleave(A, mfmas(P), reads(Q, 1) + ring + upd, [3, 3, 3, 3, 2, 3, 3, 0])
    A("s_waitcnt lgkmcnt(0)")
    A("s_barrier")
    interleave(A, mfmas(Q), reads(P, 0), [3, 3, 3, 3, 0, 0, 0, 0])
    A.drop = []
    A("s_sub_u32 s29, s29, 1\ns_cmp_lg_u32 s29, 0\ns_cbranch_scc1 L_hh_loop")
    A("s_waitcnt lgkmcnt(0)")
    stamp(A, 3)
    A(f"v_and_b32 v20, 31, v1\nv_add_u32 v20, s26, v20\nv_lshlrev_b32 v20, 2, v20\nv_add_u32 v20, {LST}, v20")
    A("ds_read_b32 v22, v20\nds_read_b32 v23, v20 offset:512\nds_read_b32 v24, v20 offset:128\nds_read_b32 v25, v20 offset:640")
    A(f"v_mov_b32 v27, {LCNT + 12}\nds_read_b32 v27, v27")
    A(f"v_lshrrev_b32 v21, 5, v1\nv_lshlrev_b32 v21, 4, v21\ns_lshl_b32 s30, s25, 8\ns_add_u32 s30, s30, {LCS}\nv_add_u32 v21, s30, v21")
    for ft in range(2):
        for q in range(4):
            b = 32 + 16 * ft + 4 * q
            A(f"ds_read_b128 v[{b}:{b+3}], v21 offset:{ft*128+q*32}")
    h_store_voff(A, 26, 28)
    A(f"s_lshl_b32 s31, s{S_B}, 3\ns_lshl_b32 s32, s24, 1\ns_add_u32 s31, s31, s32\ns_mul_i32 s31, s31, 58")
    A(f"s_lshr_b32 s32, s{S_F0}, 5\ns_lshl_b32 s33, s25, 1\ns_add_u32 s32, s32, s33\ns_add_u32 s31, s31, s32")
    A(f"s_lshl_b32 s31, s31, 10\ns_add_u32 s31, s31, {HF_OFF}")
    A("s_waitcnt lgkmcnt(0)")
    A(f"v_readfirstlane_b32 s{S_LOCAL}, v27")
    A("s_nop 7")
    for st in range(2):
        for ft in range(2):
            A(f"s_add_u32 s32, s31, {(st*4*58+ft)*1024}")
            h_epilogue_tile(A, ACC + 16 * (2 * ft + st), 22 + 2 * st, 32 + 16 * ft, 64 + 8 * ((2 * st + ft) & 3), 26, 32)
    stamp(A, 4)
    publish(A, "L_hh_pub", 0, "h", 30)
    stamp(A)
    stamp_flush(A, 0, WS, 9)
    A("s_endpgm")
    loop_hooks_ool(A, "L_hh")

def p1_mx(A):
    A("L_mx:")
    P, Q = 32, 72
    EV, OD = 112, 116
    CE, CO, SE, SO = 120, 124, 128, 132
    HA, HB = 136, 152
    EC, ES, OC, OS = 168, 184, 200, 216
    G = 232
    XAB, WHB = 2, 6
    XAC, XBC, DAC, WHC = 7, 11, 15, 19
    A("v_and_b32 v24, 31, v1\nv_cvt_f32_u32 v24, v24\nv_lshrrev_b32 v25, 5, v1\nv_cvt_f32_u32 v25, v25")
    A("v_mul_f32 v25, 0x3e000000, v25\nv_mul_f32 v25, v25, v24")
    for p in range(2):
        for uh in range(2):
            for u2 in range(2):
                for k in range(2):
                    c = 16 * p + 8 * uh + 2 * u2 + k
                    import struct
                    lit = struct.unpack("<I", struct.pack("<f", c / 32.0))[0]
                    A(f"v_fmamk_f32 v26, v24, {lit:#x}, v25\nv_fract_f32 v26, v26")
                    A(f"v_cos_f32 v{28+k}, v26\nv_sin_f32 v{30+k}, v26")
                A("s_nop 0")
                A(f"v_cvt_pk_bf16_f32 v{G+4*p+2*uh+u2}, v28, v29\nv_cvt_pk_bf16_f32 v{G+16+4*p+2*uh+u2}, v30, v31")
    for i in range(8):
        A(f"v_xor_b32 v{G+8+i}, 0x80008000, v{G+16+i}")
    A("s_lshr_b32 s24, s3, 1\ns_and_b32 s25, s3, 1")
    A("s_lshl_b32 s26, s3, 5\ns_xor_b32 s27, s26, 32")
    x_addr(A, XAB, 26, 24)
    h_tr_addr(A, WHB, 24)
    A(f"s_lshl_b32 s30, s25, 6\nv_xor_b32 v{WHB}, s30, v{WHB}\nv_add_u32 v{WHB}, 16384, v{WHB}")
    for i in range(96): A(f"v_mov_b32 v{HA+i}, 0")
    A("s_lshl_b32 s31, s3, 12\ns_sub_u32 s31, 24576, s31")
    def upd(js=(0, 1, 2, 3), wh=True):
        o = [f"v_add_u32 v{XAC+j}, s28, v{XAB+j}" for j in js] + ([f"v_add_u32 v{WHC}, s28, v{WHB}"] if wh else [])
        o += [f"v_xor_b32 v{XBC+j}, 0x1000, v{XAC+j}" for j in js]
        o += [f"v_add_u32 v{DAC+j}, s31, v{XAC+j}" for j in js]
        return o
    A("s_mov_b32 s28, 0")
    for t in upd(): A(t)
    jobs_finish(A, 0, 'm')
    epoch_ready(A)
    loop_hooks_init(A)
    A("s_mov_b32 s34, 0x05040100\ns_mov_b32 s35, 0x07060302")
    def reads(buf, m):
        out = []
        for jj in range(2):
            j = 2 * m + jj
            out.append(f"ds_read_b128 v[{buf+4*jj}:{buf+4*jj+3}], v{XAC+j}")
        for jj in range(2):
            j = 2 * m + jj
            out.append(f"ds_read_b64_tr_b16 v[{buf+16+4*jj}:{buf+17+4*jj}], v{WHC} offset:{j*2048}")
            out.append(f"ds_read_b64_tr_b16 v[{buf+18+4*jj}:{buf+19+4*jj}], v{WHC} offset:{j*2048+512}")
            out.append(f"ds_read_b128 v[{buf+8+4*jj}:{buf+11+4*jj}], v{XBC+j}")
        for jj in range(2):
            j = 2 * m + jj
            out.append(f"ds_read_b128 v[{buf+24+4*jj}:{buf+27+4*jj}], v{DAC+j}")
            out.append(f"ds_read_b128 v[{buf+32+4*jj}:{buf+35+4*jj}], v{DAC+j} offset:4096")
        return out
    def perms(src, e, o):
        ev = [f"v_perm_b32 v{e+k}, v{src+2*k+1}, v{src+2*k}, s34" for k in range(4)]
        od = [f"v_perm_b32 v{o+k}, v{src+2*k+1}, v{src+2*k}, s35" for k in range(4)]
        return ev, od
    def half(cur, nxt, m_next, extra):
        rd = reads(nxt, m_next)
        if opt("NOCOMP1"):
            for t in extra: A(t)
            return
        xe, xo = perms(cur, EV, OD); ce, co = perms(cur + 24, CE, CO); se, so = perms(cur + 32, SE, SO)
        H = []
        for jj in range(2):
            w = cur + 16 + 4 * jj
            H.append(f"{MFMA32} v[{HA}:{HA+15}], v[{w}:{w+3}], v[{cur+4*jj}:{cur+4*jj+3}], v[{HA}:{HA+15}]")
            H.append(f"{MFMA32} v[{HB}:{HB+15}], v[{w}:{w+3}], v[{cur+8+4*jj}:{cur+11+4*jj}], v[{HB}:{HB+15}]")
        Dm = [f"{MFMA32} v[{EC}:{EC+15}], v[{EV}:{EV+3}], v[{CE}:{CE+3}], v[{EC}:{EC+15}]",
              f"{MFMA32} v[{OC}:{OC+15}], v[{OD}:{OD+3}], v[{CO}:{CO+3}], v[{OC}:{OC+15}]",
              f"{MFMA32} v[{ES}:{ES+15}], v[{EV}:{EV+3}], v[{SE}:{SE+3}], v[{ES}:{ES+15}]",
              f"{MFMA32} v[{OS}:{OS+15}], v[{OD}:{OD+3}], v[{SO}:{SO+3}], v[{OS}:{OS+15}]"]
        if opt("MXSCHED", 1):
            ex = list(extra)
            def take(n):
                t = ex[:n]; del ex[:n]; return t
            pad = lambda n: (take(n) + ["s_nop 0"] * n)[:n]
            ms = H + [Dm[0], Dm[2], Dm[1], Dm[3]]
            gaps = [xe[0:2] + rd[0:3], xe[2:4] + rd[3:6], ce[0:2] + rd[6:9], ce[2:4] + rd[9:12],
                    se + xo[0:2], xo[2:4] + co + pad(2), so + pad(2), None]
            gaps[7] = ex
        else:
            gaps = [xe + rd[0:2], ce + rd[2:4], xo + rd[4:6], co + rd[6:8], se + rd[8:10], so + rd[10:12], extra[:8], extra[8:]]
            ms = H + Dm
        for i in range(8):
            A(ms[i])
            for t in gaps[i]: A(t)
    stamp(A, 1)
    A("s_waitcnt lgkmcnt(0)\ns_barrier")
    stamp(A, 2)
    for r in reads(P, 0):
        if not opt("NOCOMP1"): A(r)
    A("s_mov_b32 s29, 10")
    A("L_mx_loop:")
    A.drop = (["v_mfma"] if opt("NOMF1") else []) + (["ds_read"] if opt("NODS1") else []) + (["v_perm"] if opt("NOPERM") else [])
    loop_hooks_top(A, "L_mx")
    A("s_waitcnt lgkmcnt(0)")
    ring = [f"s_add_u32 s28, s28, {RING}", f"s_and_b32 s28, s28, {NS*RING-1}"]
    if opt("MXSCHED", 1):
        half(P, Q, 1, ring + upd((0, 1), True))
        A("s_waitcnt lgkmcnt(0)")
        A("s_barrier")
        half(Q, P, 0, upd((2, 3), False))
    else:
        half(P, Q, 1, ring + upd())
        A("s_waitcnt lgkmcnt(0)")
        A("s_barrier")
        half(Q, P, 0, [])
    A.drop = []
    A("s_sub_u32 s29, s29, 1\ns_cmp_lg_u32 s29, 0\ns_cbranch_scc1 L_mx_loop")
    A("s_waitcnt lgkmcnt(0)")
    stamp(A, 3)
    A(f"v_and_b32 v24, 31, v1\nv_add_u32 v25, s26, v24\nv_lshlrev_b32 v25, 2, v25\nv_add_u32 v25, {LST}, v25")
    A(f"v_add_u32 v26, s27, v24\nv_lshlrev_b32 v26, 2, v26\nv_add_u32 v26, {LST}, v26")
    A("ds_read_b32 v2, v25\nds_read_b32 v3, v25 offset:512\nds_read_b32 v4, v26\nds_read_b32 v5, v26 offset:512")
    A(f"v_mov_b32 v7, {LCNT + 12}\nds_read_b32 v7, v7")
    A(f"v_lshrrev_b32 v27, 5, v1\nv_lshlrev_b32 v27, 4, v27\ns_lshl_b32 s30, s25, 7\ns_add_u32 s30, s30, {LCS}\nv_add_u32 v28, s30, v27")
    for q in range(4):
        A(f"ds_read_b128 v[{32+4*q}:{35+4*q}], v28 offset:{q*32}")
    A(f"s_lshl_b32 s30, s26, 2\ns_add_u32 s30, s30, {LST+512}\nv_add_u32 v28, s30, v27")
    for q in range(4):
        A(f"ds_read_b128 v[{48+4*q}:{51+4*q}], v28 offset:{q*32}")
    h_store_voff(A, 6, 28)
    A(f"s_lshl_b32 s31, s{S_B}, 3\ns_lshl_b32 s30, s24, 1\ns_add_u32 s31, s31, s30\ns_mul_i32 s31, s31, 58")
    A(f"s_lshr_b32 s30, s{S_F0}, 5\ns_add_u32 s30, s30, s25\ns_add_u32 s31, s31, s30")
    A(f"s_lshl_b32 s31, s31, 10\ns_add_u32 s31, s31, {HF_OFF}")
    A(f"s_mul_i32 s30, s25, {4*58*1024}\ns_add_u32 s32, s31, s30")
    A(f"s_xor_b32 s30, s25, 1\ns_mul_i32 s30, s30, {4*58*1024}\ns_add_u32 s33, s31, s30")
    A("s_waitcnt lgkmcnt(0)")
    A(f"v_readfirstlane_b32 s{S_LOCAL}, v7")
    A("s_nop 7")
    h_epilogue_tile(A, HA, 2, 32, 64, 6, 32)
    h_epilogue_tile(A, HB, 4, 32, 72, 6, 33)
    stamp(A, 4)
    if opt("MXPUB", 1): publish(A, "L_mx_pubh", 0, "h", 30)
    stamp(A)
    R = 48
    for i in range(0, 16, 2):
        for a in (EC, OC, ES, OS):
            A(f"v_pk_mul_f32 v[{a+i}:{a+i+1}], v[{a+i}:{a+i+1}], v[{R+i}:{R+i+1}]")
    T0, T1 = 80, 96
    for i in range(0, 16, 2):
        A(f"v_pk_add_f32 v[{T0+i}:{T0+i+1}], v[{EC+i}:{EC+i+1}], v[{OC+i}:{OC+i+1}]")
        A(f"v_pk_add_f32 v[{EC+i}:{EC+i+1}], v[{EC+i}:{EC+i+1}], v[{OC+i}:{OC+i+1}] neg_lo:[0,1] neg_hi:[0,1]")
        A(f"v_pk_add_f32 v[{T1+i}:{T1+i+1}], v[{ES+i}:{ES+i+1}], v[{OS+i}:{OS+i+1}]")
        A(f"v_pk_add_f32 v[{OC+i}:{OC+i+1}], v[{OS+i}:{OS+i+1}], v[{ES+i}:{ES+i+1}] neg_lo:[0,1] neg_hi:[0,1]")
    A("v_and_b32 v24, 31, v1\nv_cmp_eq_u32 s[40:41], 0, v24\ns_nop 3")
    A(f"s_cmp_eq_u32 s{S_C}, 0\ns_cselect_b64 s[40:41], s[40:41], 0\ns_cbranch_scc0 L_mx_nofix")
    for i in range(16):
        A(f"v_cndmask_b32 v{T0+i}, v{T0+i}, v{ES+i}, s[40:41]")
        A(f"v_cndmask_b32 v{T1+i}, v{T1+i}, v{OS+i}, s[40:41]")
        A(f"v_cndmask_b32_e64 v{OC+i}, v{OC+i}, 0, s[40:41]")
    A("L_mx_nofix:")
    ZB = 32
    for k, a in enumerate([T0, T1, EC, OC]):
        for i in range(0, 16, 2):
            A(f"v_cvt_pk_bf16_f32 v{ZB+8*k+i//2}, v{a+i}, v{a+i+1}")
    Fr = lambda p: f"v[{G+4*p}:{G+4*p+3}]"
    Fi = lambda p: f"v[{G+8+4*p}:{G+8+4*p+3}]"
    nFi = lambda p: f"v[{G+16+4*p}:{G+16+4*p+3}]"
    Z = lambda k, p: f"v[{ZB+8*k+4*p}:{ZB+8*k+4*p+3}]"
    TR = [EC, OC]; TI = [ES, OS]
    A("s_nop 1")
    for st_ in range(2):
        zr, zi = 2 * st_, 2 * st_ + 1
        tr, ti = TR[st_], TI[st_]
        A(f"{MFMA32} v[{tr}:{tr+15}], {Fr(0)}, {Z(zr,0)}, 0")
        A(f"{MFMA32} v[{ti}:{ti+15}], {Fr(0)}, {Z(zi,0)}, 0")
        A(f"{MFMA32} v[{tr}:{tr+15}], {Fr(1)}, {Z(zr,1)}, v[{tr}:{tr+15}]")
        A(f"{MFMA32} v[{ti}:{ti+15}], {Fr(1)}, {Z(zi,1)}, v[{ti}:{ti+15}]")
        A(f"{MFMA32} v[{tr}:{tr+15}], {nFi(0)}, {Z(zi,0)}, v[{tr}:{tr+15}]")
        A(f"{MFMA32} v[{ti}:{ti+15}], {Fi(0)}, {Z(zr,0)}, v[{ti}:{ti+15}]")
        A(f"{MFMA32} v[{tr}:{tr+15}], {nFi(1)}, {Z(zi,1)}, v[{tr}:{tr+15}]")
        A(f"{MFMA32} v[{ti}:{ti+15}], {Fi(1)}, {Z(zr,1)}, v[{ti}:{ti+15}]")
    if not opt("MXPUB", 1): publish(A, "L_mx_pubh", 0, "h", 30)
    else: A("s_nop 7")
    stamp(A)
    A(f"v_and_b32 v24, 31, v1\nv_lshlrev_b32 v24, 2, v24\nv_lshrrev_b32 v25, 5, v1\nv_lshlrev_b32 v25, 9, v25\nv_add_u32 v24, v24, v25")
    A(f"s_lshl_b32 s30, s3, 13\ns_add_u32 s30, s30, {LX}\nv_add_u32 v24, s30, v24")
    A("s_nop 7")
    for st_ in range(2):
        for i in range(16):
            A(f"v_cvt_pk_bf16_f32 v{64+16*st_+i}, v{TR[st_]+i}, v{TI[st_]+i}")
    for st_ in range(2):
        for i in range(16):
            t0 = (i & 3) + 8 * (i >> 2)
            A(f"ds_write_b32 v24, v{64+16*st_+i} offset:{st_*4096+t0*128}")
    A("s_waitcnt lgkmcnt(0)")
    stamp(A)
    lds_arrive(A, 1, 30, 63)
    A(f"v_mov_b32 v30, {LCNT+4}")
    A("L_mx_rv:\nds_read_b32 v31, v30\ns_waitcnt lgkmcnt(0)\ns_nop 0\nv_readfirstlane_b32 s63, v31\ns_nop 3\ns_cmp_ge_u32 s63, 4\ns_cbranch_scc1 L_mx_rv_ok")
    A(f"s_sub_u32 s{S_SPIN}, s{S_SPIN}, 1\ns_cmp_eq_u32 s{S_SPIN}, 0\ns_cbranch_scc0 L_mx_rv\nL_mx_rv_ok:")
    A("v_and_b32 v24, 31, v1\nv_lshlrev_b32 v24, 2, v24\nv_lshrrev_b32 v25, 5, v1\nv_lshlrev_b32 v26, 7, v25\nv_add_u32 v24, v24, v26")
    A(f"s_lshl_b32 s30, s3, 10\ns_add_u32 s30, s30, {LX}\nv_add_u32 v24, s30, v24")
    for st_ in range(2):
        for n in range(4):
            b = 64 + 16 * st_ + 4 * n
            for w in range(4):
                A(f"ds_read_b32 v{b+w}, v24 offset:{w*8192+st_*4096+n*256}")
    A(f"v_and_b32 v26, 31, v1\ns_lshl_b32 s30, s{S_C}, 5\nv_add_u32 v27, s30, v26")
    A("v_mov_b32 v28, 160\nv_cndmask_b32 v29, v27, v28, s[40:41]")
    A("v_sub_u32 v27, 320, v27")
    A(f"s_mov_b32 s30, {TF_T0}\nv_mul_lo_u32 v25, s30, v25")
    A("v_lshlrev_b32 v29, 4, v29\nv_add_u32 v29, v29, v25")
    A("v_lshlrev_b32 v27, 4, v27\nv_add_u32 v27, v27, v25")
    A(f"s_mul_i32 s30, s3, {8*TF_T0}\ns_mul_i32 s31, s{S_B}, {TF_ROW}\ns_add_u32 s30, s30, s31\ns_add_u32 s30, s30, {TF_OFF}")
    A("s_waitcnt lgkmcnt(0)")
    for st_ in range(2):
        for n in range(4):
            b = 64 + 16 * st_ + 4 * n
            A(f"s_add_u32 s31, s30, {2*n*TF_T0}")
            if not opt("NOTST"): A(f"buffer_store_dwordx4 v[{b}:{b+3}], v{29 if st_ == 0 else 27}, s[36:39], s31 offen {'' if opt('TPLAIN') else SC}")
    stamp(A)
    A(f"s_cmp_eq_u32 s{S_C}, 0\ns_cbranch_scc0 L_mx_noz\ns_cmp_eq_u32 s3, 0\ns_cbranch_scc0 L_mx_noz")
    A(f"s_mov_b32 s30, {TF_T0}\nv_and_b32 v24, 31, v1\nv_mul_lo_u32 v24, s30, v24")
    A("v_mov_b32 v4, 0\nv_mov_b32 v5, 0\nv_mov_b32 v6, 0\nv_mov_b32 v7, 0")
    A(f"s_mul_i32 s31, s{S_B}, {TF_ROW}\ns_add_u32 s31, s31, {TF_OFF}")
    A(f"buffer_store_dwordx4 v[4:7], v24, s[36:39], s31 offen {SC}")
    A("L_mx_noz:")
    publish(A, "L_mx_pubt", 2, "t", 30)
    stamp(A)
    stamp_flush(A, 0, WS, 9)
    A("s_endpgm")
    loop_hooks_ool(A, "L_mx")

def loader(A):
    A("L_loader:")
    A(f"s_sub_u32 s{S_J}, s3, 4")
    srd(A, 24, X_, X_BYTES)
    srd(A, 36, WS, WS_USED)
    for r in [11, 12, 13, 52, 53, 54, 55, 56, 57, 58, 59]: A(f"v_mov_b32 v{r}, 0")
    A("s_mov_b32 s58, 0\ns_mov_b32 s59, 99\ns_mov_b32 s63, 0")
    RS = 1280 if opt("XLIN") else 81920
    A(f"v_lshrrev_b32 v4, 3, v1\ns_mov_b32 s40, {RS}\nv_mul_lo_u32 v8, s40, v4")
    A("v_and_b32 v5, 7, v1\nv_lshrrev_b32 v6, 4, v1\nv_xor_b32 v5, v5, v6\nv_lshlrev_b32 v5, 4, v5")
    A("v_add_u32 v2, v8, v5\nv_xor_b32 v7, 64, v5")
    A(f"v_add_u32 v3, v8, v7\nv_add_u32 v3, {8*RS}, v3")
    A(f"s_lshl_b32 s40, s{S_B}, 1\ns_and_b32 s41, s{S_J}, 1\ns_add_u32 s40, s40, s41")
    A(f"s_lshr_b32 s41, s{S_J}, 1\ns_lshl_b32 s41, s41, 5\ns_add_u32 s40, s40, s41")
    if opt("XLIN"):
        A(f"s_lshl_b32 s40, s{S_B}, 2\ns_add_u32 s40, s40, s{S_J}\ns_mul_i32 s40, s40, {32*1280}\ns_add_u32 s41, s40, {16*1280}")
    else:
        A(f"s_mul_i32 s40, s40, 1280\ns_add_u32 s41, s40, {16*81920}")
    A("s_mov_b64 s[56:57], -1")
    A(f"s_cmp_lt_u32 s{S_C}, 5\ns_cbranch_scc0 L_ld_H")
    A(f"s_cmp_ge_u32 s{S_J}, 2\ns_cbranch_scc0 L_ld_H")
    A(f"s_and_b32 s42, s{S_J}, 1\ns_cmp_eq_u32 s42, 0")
    A(f"s_cselect_b32 s28, s{HRE}, s{HIM}\ns_cselect_b32 s29, s{HRE+1}, s{HIM+1}")
    A(f"s_mov_b32 s30, {HID_BYTES}\ns_mov_b32 s31, 0x20000")
    A("v_mul_u32_u24 v8, 1280, v4\nv_add_u32 v9, v8, v5")
    A(f"v_add_u32 v10, v8, v7\nv_add_u32 v10, {8*1280}, v10")
    A(f"s_mul_i32 s42, s{S_C}, {32*1280}")
    A(f"s_mov_b32 s44, s42\ns_mov_b32 s45, s42\ns_add_u32 s46, s42, {16*1280}\ns_add_u32 s47, s42, {16*1280}")
    A("s_mov_b32 s43, 128")
    A(f"s_cmp_eq_u32 s{S_C}, 0\ns_cbranch_scc0 L_ld_go\ns_cmp_eq_u32 s{S_J}, 3\ns_cbranch_scc0 L_ld_go")
    A("s_mov_b32 s56, 0xffffff00")
    A("s_branch L_ld_go")
    A("L_ld_H:")
    srd(A, 28, W1, W1_BYTES)
    A("v_mul_u32_u24 v8, 3456, v4")
    A("v_and_b32 v9, 7, v1\nv_bfe_u32 v10, v1, 4, 1\nv_lshlrev_b32 v10, 2, v10\nv_xor_b32 v9, v9, v10")
    A("v_lshlrev_b32 v9, 4, v9\nv_add_u32 v9, v8, v9\nv_mov_b32 v10, v9")
    A(f"s_and_b32 s42, s{S_J}, 1\ns_mul_i32 s42, s42, {32*3456}")
    A(f"s_lshr_b32 s43, s{S_J}, 1\ns_lshl_b32 s43, s43, 6\ns_add_u32 s43, s43, s{S_F0}\ns_lshl_b32 s43, s43, 1")
    A("s_add_u32 s42, s42, s43")
    for q in range(4):
        A(f"s_add_u32 s{44+q}, s42, {8*q*3456}")
    A(f"s_mov_b32 s43, {64*3456}")
    A("L_ld_go:")
    A(f"s_lshl_b32 s48, s{S_J}, 12")
    def chunk(slot_reg):
        for q in range(4):
            A(f"s_add_u32 m0, s{slot_reg}, {q*1024}")
            A("s_nop 0")
            A(f"buffer_load_dwordx4 v{2+(q&1)}, s[24:27], s{40+(q>>1)} offen {'nt ' if opt('XNT') else ''}lds")
            A(f"s_add_u32 m0, s{slot_reg}, {16384+q*1024}")
            if q == 0: A("s_mov_b64 exec, s[56:57]")
            else: A("s_nop 0")
            A(f"buffer_load_dwordx4 v{9+(q&1)}, s[28:31], s{44+q} offen {'nt ' if opt('WNT') else ''}lds")
            if q == 0: A("s_mov_b64 exec, -1")
        A("s_add_u32 s40, s40, 128\ns_add_u32 s41, s41, 128")
        for q in range(4):
            A(f"s_add_u32 s{44+q}, s{44+q}, s43")
        A(f"s_add_u32 s{slot_reg}, s{slot_reg}, {RING}\ns_cmp_ge_u32 s{slot_reg}, {NS*RING}\ns_cselect_b32 s52, {NS*RING}, 0\ns_sub_u32 s{slot_reg}, s{slot_reg}, s52")
    A("s_mov_b32 s49, s48")
    chunk(49); chunk(49)
    stamp(A, 1)
    srd(A, 32, WS, WS_USED)
    A("s_waitcnt lgkmcnt(0)")
    A(f"s_add_u32 s{S_E}, s{S_E}, 1\ns_xor_b32 s{S_EM}, s{S_E}, {MAGIC}")
    A(f"s_cmp_ge_u32 s{S_J}, 2\ns_cbranch_scc0 L_ld_su01")
    A(f"s_sub_u32 s58, s{S_J}, 2\ns_lshl_b32 s59, s{S_T0}, 1\ns_add_u32 s59, s59, s58")
    A("s_mov_b32 s50, 6554\ns_mov_b32 s53, 1280")
    for q in range(5):
        A(f"v_add_u32 v22, {64*q}, v1")
        A("v_mul_lo_u32 v23, s50, v22\nv_lshrrev_b32 v23, 16, v23")
        A("v_mul_u32_u24 v24, 10, v23\nv_sub_u32 v24, v22, v24\nv_lshlrev_b32 v24, 4, v24")
        A(f"v_mul_lo_u32 v23, s53, v23\nv_add_u32 v{52+q}, v23, v24")
    A("v_lshrrev_b32 v23, 4, v1\nv_lshrrev_b32 v24, 1, v23\nv_lshlrev_b32 v24, 4, v24")
    A("v_and_b32 v25, 1, v23\nv_lshlrev_b32 v25, 2, v25\nv_add_u32 v24, v24, v25\nv_bfe_u32 v25, v1, 2, 2\nv_add_u32 v24, v24, v25")
    A("v_mul_u32_u24 v24, 160, v24\nv_and_b32 v25, 3, v1\nv_lshlrev_b32 v25, 3, v25\nv_add_u32 v24, v24, v25")
    A(f"s_mul_i32 s50, s58, 5120\ns_add_u32 s50, s50, {LW}\nv_add_u32 v57, s50, v24")
    A(f"s_lshl_b32 s50, s{S_CT}, 1\ns_add_u32 s50, s50, s58\ns_lshr_b32 s53, s50, 2\ns_and_b32 s50, s50, 3")
    A(f"s_lshr_b32 s54, s53, 1\ns_lshl_b32 s54, s54, 5\ns_add_u32 s54, s54, s{S_T0}")
    A("s_and_b32 s55, s53, 1\ns_lshl_b32 s55, s55, 10\ns_add_u32 s54, s54, s55")
    A("v_and_b32 v22, 15, v1\nv_lshlrev_b32 v22, 6, v22\nv_add_u32 v22, s54, v22")
    A("s_lshl_b32 s55, s50, 3\nv_lshrrev_b32 v23, 4, v1\nv_lshlrev_b32 v23, 1, v23\nv_add_u32 v23, s55, v23")
    A("s_mov_b32 s55, 0x3a000000")
    for k, ds in enumerate([0, 1, 32, 33]):
        A(f"v_add_u32 v24, {ds}, v23\nv_mul_u32_u24 v24, v22, v24\nv_and_b32 v24, 0x7ff, v24\nv_cvt_f32_u32 v24, v24\nv_mul_f32 v24, s55, v24")
        A(f"v_cos_f32 v25, v24\nv_sin_f32 v26, v24\ns_nop 0\nv_cvt_pk_bf16_f32 v{60+k}, v25, -v26")
    A(f"s_lshl_b32 s63, s{S_T0}, 2\ns_add_u32 s63, s63, s53\ns_mul_i32 s63, s63, 58\ns_add_u32 s63, s63, s50\ns_add_u32 s63, s63, 54")
    A(f"s_lshl_b32 s63, s63, 10\ns_add_u32 s63, s63, {HF_OFF}")
    A(f"s_lshl_b32 s50, s{S_CT}, 6\ns_add_u32 s50, s50, s59\ns_lshl_b32 s50, s50, 3\ns_add_u32 s50, s50, {FW_OFF}\nv_mov_b32 v58, s50")
    A(f"s_lshl_b32 s50, s{S_T0}, 4\ns_lshl_b32 s53, s{S_CT}, 1\ns_add_u32 s50, s50, s53\ns_add_u32 s50, s50, s58\ns_lshl_b32 s50, s50, 3\ns_add_u32 s50, s50, {FF_OFF}\nv_mov_b32 v59, s50")
    A("v_cmp_eq_u32 vcc, 1, v1\ns_nop 1\nv_cndmask_b32 v58, v58, v59, vcc")
    A("s_branch L_ld_sud")
    A("L_ld_su01:")
    A("v_lshlrev_b32 v13, 3, v1\nv_and_b32 v16, 31, v1\nv_lshlrev_b32 v15, 3, v16")
    A(f"s_lshl_b32 s50, s{S_B}, 7\ns_add_u32 s50, s50, {FR1_OFF}\nv_add_u32 v12, s50, v15")
    A(f"s_lshl_b32 s50, s{S_C}, 7\ns_add_u32 s50, s50, {FC1_OFF-128}\nv_add_u32 v15, s50, v15")
    A("v_cmp_le_u32 vcc, 16, v16\ns_nop 1\nv_cndmask_b32 v12, v12, v15, vcc")
    A(f"s_lshl_b32 s50, s{S_CT}, 9\ns_add_u32 s50, s50, {FW_OFF}\nv_add_u32 v11, s50, v13")
    A(f"s_lshl_b32 s50, s{S_T0}, 7\ns_add_u32 s50, s50, {FF_OFF}\nv_and_b32 v14, 15, v1\nv_lshlrev_b32 v14, 3, v14\nv_add_u32 v59, s50, v14")
    A("L_ld_sud:")
    A("s_waitcnt vmcnt(8)")
    stamp(A, 2)
    A("s_barrier")
    chunk(49)
    A(f"s_cmp_ge_u32 s{S_J}, 2\ns_cbranch_scc1 L_ld_h1w\nL_ld_h1w_ret:")
    A(f"s_cmp_ge_u32 s{S_J}, 2\ns_cbranch_scc1 L_ld_b1w")
    A("s_waitcnt vmcnt(8)\ns_branch L_ld_b1d\nL_ld_b1w:")
    A("s_cmp_ge_u32 s59, 54\ns_cbranch_scc1 L_ld_b1n\ns_waitcnt vmcnt(13)\ns_branch L_ld_b1d\nL_ld_b1n:\ns_waitcnt vmcnt(8)\nL_ld_b1d:")
    A("s_barrier")
    stamp(A)
    pk = opt("POLLK", 5)
    assert pk in (5, 6)
    A(f"s_mov_b32 s53, 99\ns_mov_b32 s54, 99\ns_mov_b32 s55, 0\ns_mov_b32 s79, 99\ns_mov_b32 s81, 99\ns_mov_b32 s82, 99\ns_mov_b32 s83, 0")
    A(f"s_cmp_eq_u32 s{S_J}, 0\ns_cselect_b32 s53, {9-pk}, s53\ns_cselect_b32 s54, {9-pk-2}, s54\ns_cselect_b32 s55, {9-pk-1}, s55\ns_cselect_b32 s81, {9-pk-2}, s81")
    A(f"s_cmp_eq_u32 s{S_J}, 1\ns_cselect_b32 s53, {opt('FWPOLL', 1)}, s53")
    A(f"s_cmp_ge_u32 s{S_J}, 2\ns_cselect_b32 s82, 6, s82\ns_cselect_b32 s79, 3, s79\ns_cselect_b32 s83, 1, s83")
    A("s_mov_b32 s51, 7")
    A("L_ld_loop:")
    A("s_cmp_eq_u32 s51, s54\ns_cbranch_scc1 L_ld_h2\nL_ld_h2_ret:")
    chunk(49)
    A("s_cmp_eq_u32 s51, s79\ns_cbranch_scc1 L_ld_h3\nL_ld_h3_ret:")
    A("s_cmp_eq_u32 s51, s53\ns_cbranch_scc1 L_ld_h1\nL_ld_h1_ret:")
    A("s_cmp_eq_u32 s51, s81\ns_cbranch_scc1 L_ld_h4\nL_ld_h4_ret:")
    A("s_cmp_eq_u32 s51, s82\ns_cbranch_scc1 L_ld_h2w\nL_ld_h2w_ret:")
    A("s_cmp_lt_u32 s51, s55\ns_cbranch_scc1 L_ld_w25")
    A("s_cmp_eq_u32 s83, 0\ns_cbranch_scc1 L_ld_w8")
    A("s_cmp_eq_u32 s51, 6\ns_cbranch_scc1 L_ld_wW\ns_cmp_eq_u32 s51, 5\ns_cbranch_scc1 L_ld_wW")
    A("s_cmp_eq_u32 s51, 3\ns_cbranch_scc1 L_ld_w9\ns_cmp_eq_u32 s51, 2\ns_cbranch_scc1 L_ld_w9")
    A("L_ld_w8:\ns_waitcnt vmcnt(8)\ns_branch L_ld_wd")
    A("L_ld_wW:\ns_cmp_ge_u32 s59, 54\ns_cbranch_scc1 L_ld_w9\ns_waitcnt vmcnt(14)\ns_branch L_ld_wd\nL_ld_w9:\ns_waitcnt vmcnt(9)\ns_branch L_ld_wd")
    A("L_ld_w25:\ns_waitcnt vmcnt(17)\nL_ld_wd:")
    stamp(A)
    A("s_barrier")
    stamp(A)
    A("s_sub_u32 s51, s51, 1\ns_cmp_lg_u32 s51, 0\ns_cbranch_scc1 L_ld_loop")
    A("s_waitcnt vmcnt(0)")
    if not opt("WLATE", 1):
        A(f"s_cmp_eq_u32 s{S_J}, 1\ns_cbranch_scc0 L_ld_no1")
        spin(A, "L_ld_spw", 48, 11, 32, xcc=True)
        spin(A, "L_ld_spf", 50, 59, 32, xcc=True)
        A("L_ld_no1:")
    A(f"s_cmp_eq_u32 s{S_J}, 0\ns_cbranch_scc0 L_ld_nored")
    for b_ in range(1, 8):
        for k in range(4): A(f"v_add_f32 v{16+k}, v{16+k}, v{16+4*b_+k}")
    for k in range(4): A(f"v_mov_b32 v{20+k}, v{16+k}")
    A("s_nop 1")
    for k in range(4): A(f"v_permlane32_swap_b32 v{16+k}, v{20+k}")
    A("s_nop 0")
    for k in range(4): A(f"v_add_f32 v{16+k}, v{16+k}, v{20+k}")
    A(f"v_add_u32 v13, {LCS}, v13\nds_write_b128 v13, v[16:19]\ns_waitcnt lgkmcnt(0)")
    A("L_ld_nored:")
    A("s_barrier")
    stamp(A)
    A("s_barrier")
    A("s_branch L_ld_p2")
    A("L_ld_h1:")
    A(f"s_cmp_eq_u32 s{S_J}, 1\ns_cbranch_scc1 L_ld_h1f")
    A(f"buffer_load_dwordx2 v[14:15], v12, s[32:35], 0 offen {SC}")
    A("s_branch L_ld_h1_ret")
    A("L_ld_h1f:")
    A(f"buffer_load_dwordx2 v[48:49], v11, s[32:35], 0 offen {SC}")
    A(f"buffer_load_dwordx2 v[50:51], v59, s[32:35], 0 offen {SC}")
    A("s_branch L_ld_h1_ret")
    A("L_ld_h1w:")
    if opt("NOW"): A("s_branch L_ld_h1w_ret")
    A("s_cmp_ge_u32 s59, 54\ns_cbranch_scc1 L_ld_h1w_ret")
    srd(A, 84, W2, W2_BYTES)
    A(f"s_mul_i32 s50, s59, 40960\ns_mul_i32 s62, s{S_CT}, 160\ns_add_u32 s50, s50, s62")
    A(f"s_mul_i32 s62, s58, 5120\ns_add_u32 s62, s62, {LW}")
    for q in range(5):
        A(f"s_add_u32 m0, s62, {1024*q}\ns_nop 0")
        A(f"buffer_load_dwordx4 v{52+q}, s[84:87], s50 offen lds")
    A("s_branch L_ld_h1w_ret")
    A("L_ld_h2:")
    spin(A, "L_ld_sp", 14, 12, 32, xcc=True)
    A(f"v_and_b32 v50, 16, v1\nv_cmp_eq_u32 s[60:61], 0, v50\nv_cmp_ne_u32 vcc, s{S_XCC}, v15\ns_nop 3\ns_and_b64 vcc, vcc, s[60:61]")
    A(f"s_cmp_eq_u64 vcc, 0\ns_cselect_b32 s62, {1 if opt('LOCALH', 2) and opt('MAP1', 1) else 0}, 0")
    A(f"v_mov_b32 v50, {LCNT + 12}\nv_mov_b32 v51, s62\nds_write_b32 v50, v51")
    A("s_branch L_ld_h2_ret")
    A("L_ld_h4:")
    A(f"s_lshl_b32 s50, s{S_B}, 10\ns_add_u32 s50, s50, {ST_OFF}\ns_mov_b32 m0, {LST}\nv_lshlrev_b32 v13, 4, v1")
    A(f"buffer_load_dwordx4 v13, s[36:39], s50 offen {SC} lds")
    A(f"s_lshl_b32 s50, s{S_F0}, 2\ns_add_u32 s50, s50, {CS_OFF}")
    A("v_and_b32 v13, 31, v1\nv_lshlrev_b32 v13, 4, v13\nv_lshrrev_b32 v14, 5, v1\nv_lshlrev_b32 v14, 13, v14\nv_add_u32 v14, v13, v14")
    for b_ in range(8):
        A(f"buffer_load_dwordx4 v[{16+4*b_}:{19+4*b_}], v14, s[36:39], s50 offen {SC}")
        if b_ < 7: A("s_add_u32 s50, s50, 16384")
    A("s_branch L_ld_h4_ret")
    A("L_ld_h2w:")
    A(f"v_lshlrev_b32 v22, 4, v1\nbuffer_store_dwordx4 v[60:63], v22, s[32:35], s63 offen {SC}")
    if opt("NOW"): A("s_branch L_ld_h2w_ret")
    A("s_cmp_ge_u32 s59, 54\ns_cbranch_scc1 L_ld_h2w_ret")
    for n in range(5):
        A(f"ds_read_b64_tr_b16 v[{24+4*n}:{25+4*n}], v57 offset:{32*n}")
        A(f"ds_read_b64_tr_b16 v[{26+4*n}:{27+4*n}], v57 offset:{32*n+1280}")
    A(f"s_mul_i32 s50, s{S_CT}, 54\ns_add_u32 s50, s50, s59\ns_mul_i32 s50, s50, 5120\ns_add_u32 s50, s50, {W2F_OFF}")
    A("v_add_u32 v23, 4096, v22\ns_waitcnt lgkmcnt(0)")
    for n in range(4):
        A(f"buffer_store_dwordx4 v[{24+4*n}:{27+4*n}], v22, s[32:35], s50 offen offset:{1024*n} {SC}")
    A(f"buffer_store_dwordx4 v[40:43], v23, s[32:35], s50 offen {SC}")
    A("s_branch L_ld_h2w_ret")
    A("L_ld_h3:")
    store_flags(A, 58, 2, 32, 64, xcc=True)
    A("s_branch L_ld_h3_ret")
    A("L_ld_p2:")
    stamp(A, 3)
    if opt("P1ONLY"):
        stamp_flush(A, 0, WS, 9)
        A("s_endpgm")
    if opt("WLATE", 1):
        A(f"v_mov_b32 v16, {LCNT + 20}")
        A(f"s_cmp_eq_u32 s{S_J}, 1\ns_cbranch_scc0 L_ld_ww")
        spin(A, "L_ld_spw", 48, 11, 32, xcc=True)
        spin(A, "L_ld_spf", 50, 59, 32, xcc=True)
        A("v_mov_b32 v17, 1\nds_write_b32 v16, v17\ns_waitcnt lgkmcnt(0)\ns_branch L_ld_wgo")
        A("L_ld_ww:\nds_read_b32 v17, v16\ns_waitcnt lgkmcnt(0)\ns_nop 0\nv_readfirstlane_b32 s50, v17\ns_nop 3\ns_cmp_eq_u32 s50, 1\ns_cbranch_scc1 L_ld_wgo")
        A(f"s_sub_u32 s{S_SPIN}, s{S_SPIN}, 1\ns_cmp_eq_u32 s{S_SPIN}, 0\ns_cbranch_scc0 L_ld_ww")
        A("L_ld_wgo:")
    p2(A)

def p2(A):
    J = S_J
    HSC = "" if opt("HPLAIN") else SC
    WSC = "" if opt("WPLAIN") else SC
    if opt("W2NT"): WSC += " nt"
    ACC = 16
    SET = [96, 132, 168]
    XR = 204
    VP = 214
    acc = lambda nt, a: ACC + 4 * (4 * nt + a)
    srd(A, 24, WS, WS_USED)
    srd(A, 28, WS, 4 * HF_TILE)
    A(f"s_mul_i32 s50, s{S_T0}, {4*HF_TILE}")
    if HF_OFF: A(f"s_add_u32 s50, s50, {HF_OFF}")
    A("s_add_u32 s28, s28, s50\ns_addc_u32 s29, s29, 0")
    srd(A, 32, X_, X_BYTES)
    srd(A, 40, OUT, X_BYTES)
    A("v_lshlrev_b32 v2, 4, v1\nv_add_u32 v3, 4096, v2")
    for a_ in range(4):
        A(f"s_add_u32 s50, s{J}, {a_}\ns_and_b32 s50, s50, 3\ns_mul_i32 s50, s50, {HF_TILE}\nv_add_u32 v{4+a_}, s50, v2")
    A("v_and_b32 v8, 15, v1\ns_mov_b32 s50, 81920\nv_mul_lo_u32 v8, s50, v8")
    A("v_lshrrev_b32 v9, 4, v1\nv_lshlrev_b32 v9, 3, v9\nv_add_u32 v8, v8, v9")
    A(f"s_lshr_b32 s38, s{J}, 1\ns_lshl_b32 s38, s38, 5\ns_add_u32 s38, s38, s{S_T0}")
    A(f"s_and_b32 s39, s{J}, 1\ns_lshl_b32 s39, s39, 10\ns_add_u32 s38, s38, s39\ns_mul_i32 s38, s38, 1280")
    A(f"s_mul_i32 s39, s{S_CT}, 160\ns_add_u32 s38, s38, s39")
    rotn = opt("ROT2", 2)
    A(f"s_and_b32 s50, s{S_T0}, {rotn - 1 if rotn else 0}\ns_mul_i32 s50, s50, {14 // rotn if rotn else 0}")
    A(f"s_lshl_b32 s50, s50, 2\ns_add_u32 s44, s50, s{J}\ns_mov_b32 s45, s44")
    A(f"s_mul_i32 s49, s{S_CT}, {54*5120}\ns_add_u32 s49, s49, {W2F_OFF}")
    def adv(r):
        A(f"s_add_u32 s{r}, s{r}, 4\ns_cmp_ge_u32 s{r}, 54\ns_cselect_b32 s{r}, s{J}, s{r}")
    def loadB(si):
        b = SET[si]
        A("s_mul_i32 s50, s44, 5120\ns_add_u32 s50, s50, s49")
        for n in range(4):
            A(f"buffer_load_dwordx4 v[{b+4*n}:{b+4*n+3}], v2, s[24:27], s50 offen offset:{1024*n} {WSC}")
        A(f"buffer_load_dwordx4 v[{b+16}:{b+19}], v3, s[24:27], s50 offen {WSC}")
        adv(44)
    def loadA(si, tstep=False):
        b = SET[si] + 20
        if tstep:
            A(f"s_add_u32 s50, s{J}, 2\ns_and_b32 s50, s50, 3\ns_add_u32 s50, s50, 54\ns_lshl_b32 s50, s50, 10")
        else:
            A("s_lshl_b32 s50, s45, 10")
        for a_ in range(4):
            A(f"buffer_load_dwordx4 v[{b+4*a_}:{b+4*a_+3}], v{4+a_}, s[28:31], s50 offen {HSC}")
        if not tstep: adv(45)
    def loadT(si):
        b = SET[si]
        A("s_mov_b32 s50, s46")
        for n in range(5):
            A(f"buffer_load_dwordx4 v[{b+4*n}:{b+4*n+3}], v10, s[24:27], s50 offen {SC}")
            if n < 4: A("s_add_u32 s50, s50, s47")
    def mfmas(si):
        b = SET[si]
        for a_ in range(4):
            for nt in range(5):
                c = acc(nt, a_)
                if not opt("NOCOMP2"):
                    A(f"{MFMA16} v[{c}:{c+3}], v[{b+4*nt}:{b+4*nt+3}], v[{b+20+4*a_}:{b+23+4*a_}], v[{c}:{c+3}]")
    def xorA(si):
        b = SET[si] + 20
        for k in range(16): A(f"v_xor_b32 v{b+k}, s48, v{b+k}")
        A("s_nop 0")
    NB0 = opt("NB0", 2)
    for si in range(NB0): loadB(si)
    for i in range(80): A(f"v_mov_b32 v{ACC+i}, 0")
    A(f"v_lshrrev_b32 v10, 4, v1\nv_mul_u32_u24 v10, {TF_ROW}, v10\nv_and_b32 v11, 15, v1")
    A(f"s_mul_i32 s50, s{S_CT}, 80\nv_add_u32 v12, s50, v11\nv_sub_u32 v13, 576, v12")
    A(f"s_cmp_lt_u32 s{S_CT}, 4\ns_cselect_b64 s[60:61], -1, 0\nv_cndmask_b32 v12, v13, v12, s[60:61]")
    A("v_lshlrev_b32 v12, 4, v12\nv_add_u32 v10, v10, v12")
    A(f"s_sub_u32 s46, 32, s{S_T0}\ns_and_b32 s46, s46, 31\ns_cmp_lt_u32 s{S_CT}, 4\ns_cselect_b32 s46, s{S_T0}, s46")
    A(f"s_mul_i32 s46, s46, {TF_T0}\ns_add_u32 s46, s46, {TF_OFF}")
    A(f"s_mov_b32 s47, 256\ns_mov_b32 s50, -256\ns_cmp_lt_u32 s{S_CT}, 4\ns_cselect_b32 s47, s47, s50\ns_cselect_b32 s50, 0, 1024\ns_cselect_b32 s48, 0x80000000, 0")
    A("s_add_u32 s46, s46, s50")
    A(f"s_add_u32 s50, s{J}, 2\ns_and_b32 s50, s50, 3\ns_mul_i32 s50, s50, {4*TF_ROW}\ns_add_u32 s46, s46, s50")
    A(f"s_lshl_b32 s50, s{S_CT}, 10\ns_add_u32 s50, s50, {FT_OFF}\nv_lshlrev_b32 v12, 3, v1\nv_add_u32 v12, s50, v12")
    A("v_and_b32 v13, 15, v1\nv_lshlrev_b32 v13, 3, v13\nv_add_u32 v13, s50, v13\nv_add_u32 v13, 512, v13")
    A(f"s_cmp_eq_u32 s{J}, 0\ns_cbranch_scc0 L_p2_lw")
    A(f"s_lshr_b32 s50, s{S_T0}, 1\ns_lshl_b32 s50, s50, 7\ns_add_u32 s50, s50, {FH_OFF}")
    A("v_and_b32 v14, 15, v1\nv_lshlrev_b32 v14, 3, v14\nv_add_u32 v11, s50, v14")
    A(f"buffer_load_dwordx2 v[{VP}:{VP+1}], v11, s[24:27], 0 offen {SC}\ns_waitcnt vmcnt(0)")
    if opt("SPINSTAMP") == "L_p2_sp1": stamp(A)
    spin(A, "L_p2_sp1", VP, 11, 24, xcc=True)
    A(f"v_mov_b32 v14, {LCNT + 16}\nv_mov_b32 v15, 1\nds_write_b32 v14, v15\ns_waitcnt lgkmcnt(0)")
    A("s_branch L_p2_go")
    A("L_p2_lw:")
    if opt("P2ONLY"): A("s_branch L_p2_go")
    A(f"v_mov_b32 v14, {LCNT + 16}")
    A("L_p2_lw1:\nds_read_b32 v15, v14\ns_waitcnt lgkmcnt(0)\ns_nop 0\nv_readfirstlane_b32 s50, v15\ns_nop 3\ns_cmp_eq_u32 s50, 1\ns_cbranch_scc1 L_p2_go")
    A(f"s_sleep 1\ns_sub_u32 s{S_SPIN}, s{S_SPIN}, 1\ns_cmp_eq_u32 s{S_SPIN}, 0\ns_cbranch_scc0 L_p2_lw1")
    A("L_p2_go:")
    stamp(A, 5)
    for si in range(NB0): loadA(si)
    for si in range(NB0, 3):
        loadB(si); loadA(si)
    def loadX():
        for n in range(5):
            A(f"buffer_load_dwordx2 v[{XR+2*n}:{XR+2*n+1}], v8, s[32:35], s38 offen offset:{32*n}")
    XLATE = opt("XLATE", 1)
    if not XLATE: loadX()
    def step(si, vm, pre):
        A(f"s_waitcnt vmcnt({vm})")
        mfmas(si)
        pre()
    reg = lambda si: (lambda: (loadB(si), loadA(si)))
    order = [(si, 4) for si in range(NB0)] + [(si, 9) for si in range(NB0, 3)] + ([] if XLATE else [(-1, 5)])
    for st_ in range(3):
        idx = max(i for i, (si, n) in enumerate(order) if si == st_)
        younger = sum(n for (si, n) in order[idx+1:]) + 9 * st_
        step(st_, younger, reg(st_))
        if opt("STEPSTAMP"): stamp(A)
    stamp(A)
    A("s_mov_b32 s51, 2")
    A("L_p2_loop:")
    for si in range(3):
        step(si, 18, reg(si))
        if opt("STEPSTAMP"): stamp(A)
    A("s_cmp_eq_u32 s51, 2\ns_cbranch_scc0 L_p2_nt")
    A(f"buffer_load_dwordx2 v[{VP}:{VP+1}], v12, s[24:27], 0 offen {SC}\nbuffer_load_dwordx2 v[{VP+2}:{VP+3}], v13, s[24:27], 0 offen {SC}")
    A("L_p2_nt:")
    A("s_sub_u32 s51, s51, 1\ns_cmp_lg_u32 s51, 0\ns_cbranch_scc1 L_p2_loop")
    stamp(A)
    step(0, 18, reg(0))
    spin(A, "L_p2_sp2", VP, 12, 24)
    spin(A, "L_p2_sp3", VP + 2, 13, 24)
    A(f"s_cmp_eq_u32 s2, 0\ns_cbranch_scc0 L_p2_noep\ns_cmp_eq_u32 s{J}, 0\ns_cbranch_scc0 L_p2_noep")
    A(f"v_mov_b32 v14, s{S_E}\nv_mov_b32 v15, {EP_OFF}\ns_mov_b64 exec, 1\nbuffer_store_dword v14, v15, s[24:27], 0 offen {SC}\ns_mov_b64 exec, -1")
    A("L_p2_noep:")
    stamp(A)
    A(f"s_cmp_lt_u32 s{J}, 2\ns_cbranch_scc0 L_p2_hi")
    step(1, 18, reg(1))
    step(2, 18, lambda: (loadT(2), loadA(2, True), loadX() if XLATE else None))
    xq = 5 if XLATE else 0
    step(0, 18 + xq, lambda: None)
    step(1, 9 + xq, lambda: None)
    A(f"s_waitcnt vmcnt({xq})"); xorA(2); mfmas(2)
    A("s_branch L_p2_red")
    A("L_p2_hi:")
    step(1, 18, lambda: (loadT(1), loadA(1, True), loadX() if XLATE else None))
    step(2, 18 + xq, lambda: None)
    step(0, 9 + xq, lambda: None)
    A(f"s_waitcnt vmcnt({xq})"); xorA(1); mfmas(1)
    A("L_p2_red:")
    stamp(A)
    A("s_nop 7")
    for a_ in range(1, 4):
        A(f"s_add_u32 s50, s{J}, {a_}\ns_and_b32 s50, s50, 3\ns_mul_i32 s50, s50, 3\ns_add_u32 s50, s50, {a_-1}\ns_mul_i32 s50, s50, 5120\nv_add_u32 v14, s50, v2")
        for nt in range(5):
            c = acc(nt, a_)
            A(f"ds_write_b128 v14, v[{c}:{c+3}] offset:{nt*1024}")
    A("s_waitcnt lgkmcnt(0)\ns_barrier")
    A(f"s_mul_i32 s50, s{J}, {3*5120}\nv_add_u32 v14, s50, v2")
    for pos in range(3):
        for nt in range(5):
            r = 96 + 20 * pos + 4 * nt
            A(f"ds_read_b128 v[{r}:{r+3}], v14 offset:{pos*5120+nt*1024}")
    for pos in range(3):
        A(f"s_waitcnt lgkmcnt({10 - 5*pos})")
        for nt in range(5):
            r = 96 + 20 * pos + 4 * nt; c = acc(nt, 0)
            for k in range(4): A(f"v_add_f32 v{c+k}, v{c+k}, v{r+k}")
    A("s_waitcnt vmcnt(0)")
    for n in range(5):
        c = acc(n, 0); x = XR + 2 * n; t = 168 + 4 * n
        A(f"v_lshlrev_b32 v{t}, 16, v{x}\nv_and_b32 v{t+1}, 0xffff0000, v{x}")
        A(f"v_lshlrev_b32 v{t+2}, 16, v{x+1}\nv_and_b32 v{t+3}, 0xffff0000, v{x+1}")
        for k in range(4): A(f"v_add_f32 v{t+k}, v{t+k}, v{c+k}")
        A(f"v_cvt_pk_bf16_f32 v{x}, v{t}, v{t+1}\nv_cvt_pk_bf16_f32 v{x+1}, v{t+2}, v{t+3}")
        A(f"buffer_store_dwordx2 v[{x}:{x+1}], v8, s[40:43], s38 offen offset:{32*n}")
    stamp(A)
    if opt("CLK") and asmlib.PROFILE:
        A("s_memtime s[90:91]\ns_waitcnt lgkmcnt(0)\ns_sub_u32 s90, s90, s88\ns_mov_b32 m0, 62\nv_writelane_b32 v0, s90, m0")
    stamp_flush(A, 0, WS, 9)
    A("s_endpgm")

def gen(A, name):
    global KNAME
    KNAME = name
    kernel_head(A, name)
    entry(A)
    if opt("P2ONLY"):
        A(f"s_mov_b32 s{S_SPIN}, 1\ns_cmp_lt_u32 s3, 4\ns_cbranch_scc1 L_end\ns_sub_u32 s{S_J}, s3, 4\ns_waitcnt lgkmcnt(0)\ns_branch L_ld_p2")
    A("s_cmp_ge_u32 s3, 4\ns_cbranch_scc1 L_loader")
    jobs_issue(A)
    A(f"s_cmp_lt_u32 s{S_C}, 5\ns_cbranch_scc1 L_mx")
    p1_hh(A)
    p1_mx(A)
    loader(A)
    A("L_end:\ns_endpgm\nL_code_end:")
```

```python
from asmlib import *
import asmlib
from layout import *

MFMA32 = "v_mfma_f32_32x32x16_bf16"
MFMA16 = "v_mfma_f32_16x16x32_bf16"
RING = 32768; NS = 4
SLOT = 20480; NS2 = 6
LX = NS2 * SLOT
LW = 132 * 1024
LST = 152 * 1024
LCS = LST + 1024
LCNT = LST + 2048
LDS_TOTAL = LCNT + 64
X_, SRE, SIM, HRE, HIM, WS = 4, 6, 8, 10, 12, 16
W1, W2, OUT, DBG = 64, 66, 68, 70
S_B, S_C, S_F0, S_J = 18, 19, 20, 21
S_T0, S_CT = 72, 73
S_SPIN = 74
SC = "sc1"
SPIN_MAX = 200000
CPW = 3

MAGIC = 0x5A3C96E1
S_E, S_EM = 75, 76
S_XCC = 77
S_LOCAL = 78

def spin(A, name, vp, vaddr, srdp, xcc=False):
    A(f"{name}:")
    if xcc:
        A(f"v_xor_b32 v{vp+1}, s{S_EM}, v{vp+1}\nv_cmp_ne_u32 vcc, s{S_E}, v{vp}\nv_cmp_lt_u32 s[60:61], 15, v{vp+1}\ns_nop 3\ns_or_b64 vcc, vcc, s[60:61]")
    else:
        A(f"v_cmp_ne_u32 vcc, s{S_E}, v{vp}\nv_cmp_ne_u32 s[60:61], s{S_EM}, v{vp+1}\ns_nop 3\ns_or_b64 vcc, vcc, s[60:61]")
    A(f"s_cbranch_vccz {name}_ok")
    if opt("P2ONLY"): A(f"s_branch {name}_ok")
    A(f"s_sub_u32 s{S_SPIN}, s{S_SPIN}, 1\ns_cmp_eq_u32 s{S_SPIN}, 0\ns_cbranch_scc1 {name}_ok")
    A(f"s_sleep {opt('SLEEP', 4)}")
    A(f"buffer_load_dwordx2 v[{vp}:{vp+1}], v{vaddr}, s[{srdp}:{srdp+3}], 0 offen {SC}\ns_waitcnt vmcnt(0)")
    if opt("SPINSTAMP") == name: stamp(A)
    A(f"s_branch {name}\n{name}_ok:")

def store_flags(A, vaddr, nlanes, srdp, vt, xcc=False, local=None):
    if xcc:
        A(f"s_xor_b32 s62, s{S_EM}, s{S_XCC}\nv_mov_b32 v{vt}, s{S_E}\nv_mov_b32 v{vt+1}, s62\ns_mov_b64 exec, {(1 << nlanes) - 1}")
    else:
        A(f"v_mov_b32 v{vt}, s{S_E}\nv_mov_b32 v{vt+1}, s{S_EM}\ns_mov_b64 exec, {(1 << nlanes) - 1}")
    if local:
        A(f"s_cmp_eq_u32 s{S_LOCAL}, 1\ns_cbranch_scc1 {local}_fp")
    A(f"buffer_store_dwordx2 v[{vt}:{vt+1}], v{vaddr}, s[{srdp}:{srdp+3}], 0 offen {SC}")
    if local:
        A(f"s_branch {local}_fd\n{local}_fp:")
        A(f"buffer_store_dwordx2 v[{vt}:{vt+1}], v{vaddr}, s[{srdp}:{srdp+3}], 0 offen")
        A(f"{local}_fd:")
    A("s_mov_b64 exec, -1")

def flag_addr_h(A, v):
    A(f"s_lshl_b32 s62, s{S_B}, 4\ns_add_u32 s62, s62, s{S_C}\ns_lshl_b32 s62, s62, 3\ns_add_u32 s62, s62, {FH_OFF}\nv_mov_b32 v{v}, s62")
def flag_addr_t(A, v):
    A(f"s_lshl_b32 s62, s{S_C}, 4\ns_add_u32 s62, s62, s{S_B}\ns_lshl_b32 s62, s62, 3\ns_add_u32 s62, s62, {FT_OFF}")
    A(f"v_lshlrev_b32 v{v}, 10, v1\nv_add_u32 v{v}, s62, v{v}")
def flag_addr_early(A, v):
    A(f"s_lshl_b32 s62, s{S_B}, 4\ns_add_u32 s62, s62, s{S_C}\ns_lshl_b32 s62, s62, 3\ns_add_u32 s58, s62, {FR1_OFF}")
    A(f"s_lshl_b32 s62, s{S_C}, 4\ns_add_u32 s62, s62, s{S_B}\ns_lshl_b32 s62, s62, 3\ns_add_u32 s62, s62, {FC1_OFF}")
    A(f"s_cmp_eq_u32 s3, 1\ns_cselect_b32 s58, s62, s58\nv_mov_b32 v{v}, s58")

def epoch_ready(A):
    A("s_waitcnt lgkmcnt(0)")
    A(f"s_add_u32 s{S_E}, s{S_E}, 1\ns_xor_b32 s{S_EM}, s{S_E}, {MAGIC}")
    srd(A, 48, WS, WS_USED)

def lds_arrive(A, word, vt, sdst):
    A(f"v_mov_b32 v{vt}, {LCNT + 4*word}\nv_mov_b32 v{vt+1}, 1\ns_mov_b64 exec, 1")
    A(f"ds_add_rtn_u32 v{vt+1}, v{vt}, v{vt+1}\ns_waitcnt lgkmcnt(0)\ns_mov_b64 exec, -1\ns_nop 0")
    A(f"v_readfirstlane_b32 s{sdst}, v{vt+1}")
    A("s_nop 3")

def entry(A):
    A("s_cmp_ge_u32 s2, 256\ns_cbranch_scc1 L_end")
    A(f"s_load_dwordx4 s[4:7], s[0:1], {KA_X}")
    A(f"s_load_dwordx4 s[8:11], s[0:1], {KA_SIM}")
    A(f"s_load_dwordx2 s[12:13], s[0:1], {KA_HIM}")
    A(f"s_load_dwordx4 s[64:67], s[0:1], {KA_W1}")
    A(f"s_load_dwordx4 s[68:71], s[0:1], {KA_OUT}")
    A(f"s_load_dwordx2 s[16:17], s[0:1], {KA_WS}")
    A("v_lshrrev_b32 v2, 6, v0\nv_and_b32 v1, 63, v0\ns_nop 0\nv_readfirstlane_b32 s3, v2")
    if opt("CODEPF", 1):
        A(f"s_nop 3\ns_cmp_eq_u32 s3, {CPW}\ns_cbranch_scc0 L_nocp")
        A("s_getpc_b64 s[50:51]\nJ_pc:")
        A(f"s_sub_u32 s50, s50, J_pc-{KNAME}\ns_subb_u32 s51, s51, 0")
        mode = opt("CPMODE", 1)
        A(f"s_mov_b32 s52, ((L_code_end-{KNAME})>>7)-1")
        if mode == 0:
            A("s_lshr_b32 s53, s2, 3\ns_mul_i32 s53, s53, 6\nv_add_u32 v22, s53, v1\nv_min_u32 v22, s52, v22\nv_lshlrev_b32 v22, 7, v22")
            A("v_mov_b32 v23, s51\nv_add_co_u32 v22, vcc, s50, v22\ns_nop 1\nv_addc_co_u32 v23, vcc, 0, v23, vcc")
            A("s_mov_b64 exec, 63\nglobal_load_dword v127, v[22:23], off\ns_mov_b64 exec, -1")
        else:
            for n in range(3):
                A(f"v_add_u32 v22, {64*n}, v1\nv_min_u32 v22, s52, v22\nv_lshlrev_b32 v22, 7, v22")
                A("v_mov_b32 v23, s51\nv_add_co_u32 v22, vcc, s50, v22\ns_nop 1\nv_addc_co_u32 v23, vcc, 0, v23, vcc")
                A(f"global_load_dword v{125+n}, v[22:23], off")
        A("L_nocp:")
    A("s_and_b32 s24, s2, 7\ns_lshr_b32 s25, s2, 3\ns_lshr_b32 s27, s25, 3\ns_and_b32 s28, s25, 7")
    if opt("MAP1", 1):
        A(f"s_lshl_b32 s26, s24, 1\ns_lshr_b32 s29, s25, 4\ns_add_u32 s{S_B}, s26, s29\ns_and_b32 s{S_C}, s25, 15")
    else:
        A(f"s_lshr_b32 s26, s24, 1\ns_lshl_b32 s26, s26, 2\ns_add_u32 s{S_B}, s26, s27")
        A(f"s_and_b32 s26, s24, 1\ns_lshl_b32 s26, s26, 3\ns_add_u32 s{S_C}, s26, s28")
    A(f"s_lshl_b32 s26, s{S_C}, 6\ns_lshl_b32 s29, s{S_C}, 7\ns_sub_u32 s29, s29, 320")
    A(f"s_cmp_lt_u32 s{S_C}, 5\ns_cselect_b32 s{S_F0}, s26, s29")
    A(f"s_lshl_b32 s24, s24, 2\ns_add_u32 s{S_T0}, s24, s27\ns_mov_b32 s{S_CT}, s28")
    A(f"s_mov_b32 s{S_SPIN}, {SPIN_MAX}")
    A(f"s_getreg_b32 s{S_XCC}, hwreg(HW_REG_XCC_ID)\ns_and_b32 s{S_XCC}, s{S_XCC}, 15")
    stamp_init(A)
    if opt("P2ONLY"): args_ready(A)

def args_ready(A):
    A("s_waitcnt lgkmcnt(0)")
    if opt("CLK"): A("s_memtime s[88:89]\ns_waitcnt lgkmcnt(0)")
    A(f"s_mov_b32 s62, {EP_OFF}\ns_load_dword s{S_E}, s[{WS}:{WS+1}], s62")
    stamp(A, 0, force=True)

def jobs_issue(A):
    A("s_cmp_eq_u32 s3, 0\ns_cbranch_scc1 J_x_i\ns_cmp_eq_u32 s3, 1\ns_cbranch_scc1 J_c_i")
    args_ready(A)
    srd(A, 36, WS, WS_USED)
    if opt("TLBPF", 1):
        A("s_cmp_eq_u32 s3, 2\ns_cbranch_scc0 J_i_done")
        srd(A, 40, OUT, X_BYTES); srd(A, 44, W2, W2_BYTES)
        A("v_lshlrev_b32 v22, 20, v1")
        A(f"s_mov_b64 exec, {(1 << ((WS_USED >> 20) + 1)) - 1}\nbuffer_load_dword v125, v22, s[36:39], 0 offen {SC}")
        A(f"s_mov_b64 exec, 7\nbuffer_load_dword v126, v22, s[40:43], 0 offen {SC}\nbuffer_load_dword v127, v22, s[44:47], 0 offen\ns_mov_b64 exec, -1")
    A("s_branch J_i_done")
    A("J_x_i:")
    A(f"s_lshr_b32 s48, s{S_C}, 2\ns_and_b32 s49, s{S_C}, 3")
    A(f"s_lshl_b32 s50, s{S_B}, 1\ns_and_b32 s51, s48, 1\ns_add_u32 s50, s50, s51")
    A("s_lshr_b32 s51, s48, 1\ns_lshl_b32 s51, s51, 5\ns_add_u32 s50, s50, s51")
    A("s_lshl_b32 s51, s49, 9\ns_add_u32 s50, s50, s51\ns_mul_i32 s50, s50, 1280")
    A("v_lshrrev_b32 v22, 3, v1\ns_mov_b32 s51, 81920\nv_mul_lo_u32 v22, s51, v22")
    A("v_and_b32 v23, 7, v1\nv_lshlrev_b32 v23, 4, v23\nv_add_u32 v22, v22, v23")
    A(f"v_mov_b32 v20, {LCNT}\nv_mov_b32 v24, 0\nv_mov_b32 v25, 0\nv_mov_b32 v26, 0\nv_mov_b32 v27, 0\nds_write_b128 v20, v[24:27]\nds_write_b128 v20, v[24:27] offset:16")
    args_ready(A)
    srd(A, 24, X_, X_BYTES)
    for i in range(10):
        A(f"buffer_load_dwordx4 v[{32+4*i}:{35+4*i}], v22, s[24:27], s50 offen offset:{128*i}")
    srd(A, 36, WS, WS_USED)
    A("s_branch J_i_done")
    A("J_c_i:")
    A("v_lshrrev_b32 v22, 4, v1\nv_mul_u32_u24 v22, 3456, v22\nv_and_b32 v23, 15, v1\nv_lshlrev_b32 v23, 4, v23\nv_add_u32 v22, v22, v23")
    A(f"s_mul_i32 s50, s{S_B}, {40*3456}\ns_lshl_b32 s51, s{S_F0}, 1\ns_add_u32 s50, s50, s51")
    A(f"s_cmp_eq_u32 s{S_C}, 0\ns_cbranch_scc0 J_c_np")
    A("v_and_b32 v23, 7, v1\nv_lshlrev_b32 v23, 4, v23\nv_bfe_u32 v24, v1, 3, 2\nv_lshlrev_b32 v24, 15, v24\nv_add_u32 v23, v23, v24")
    A(f"v_add_u32 v23, {16384+8192+4096}, v23")
    A("v_mov_b32 v24, 0xbf803f80\nv_mov_b32 v25, 0x3f80bf80\nv_mov_b32 v26, 0xbf803f80\nv_mov_b32 v27, 0x3f80bf80")
    A("ds_write_b128 v23, v[24:27]")
    A("J_c_np:")
    args_ready(A)
    srd(A, 28, W1, W1_BYTES)
    for i in range(10):
        A(f"buffer_load_dwordx4 v[{32+4*i}:{35+4*i}], v22, s[28:31], s50 offen")
        if i < 9: A(f"s_add_u32 s50, s50, {4*3456}")
    srd(A, 36, WS, WS_USED)
    A("J_i_done:")

def dpp_add(A, r, ctrl):
    A(f"v_add_f32_dpp v{r}, v{r}, v{r} {ctrl} row_mask:0xf bank_mask:0xf")

def jobs_finish(A, nG_, tagx):
    nG = tagx
    class _N(str):
        pass
    A("s_cmp_eq_u32 s3, 0\ns_cbranch_scc1 %s\ns_cmp_eq_u32 s3, 1\ns_cbranch_scc1 %s\ns_branch %s" % (f"J_x_{nG}", f"J_c_{nG}", f"J_done_{nG}"))
    A(f"J_x_{nG}:")
    A("v_mov_b32 v22, 0\nv_mov_b32 v23, 0\nv_mov_b32 v24, 0\nv_mov_b32 v25, 0\ns_mov_b32 s52, 0x3f803f80")
    for i in range(10):
        A(f"s_waitcnt vmcnt({9-i+nG_})")
        for k in range(4):
            r = 32 + 4 * i + k
            A(f"v_dot2_f32_bf16 v{22+(k&1)}, v{r}, s52, v{22+(k&1)}")
            A(f"v_dot2_f32_bf16 v{24+(k&1)}, v{r}, v{r}, v{24+(k&1)}")
    A("s_nop 2\nv_add_f32 v22, v22, v23\nv_add_f32 v24, v24, v25\ns_nop 1")
    for ctrl in ["quad_perm:[1,0,3,2]", "quad_perm:[2,3,0,1]", "row_half_mirror"]:
        dpp_add(A, 22, ctrl); dpp_add(A, 24, ctrl); A("s_nop 0")
    A("s_mov_b32 s52, 0x3acccccd\nv_mul_f32 v22, s52, v22\nv_mul_f32 v24, s52, v24")
    A("v_fma_f32 v24, -v22, v22, v24\nv_max_f32 v24, 0, v24\nv_add_f32 v24, 0x3727c5ac, v24\nv_rsq_f32 v23, v24")
    A(f"s_lshl_b32 s52, s{S_B}, 10\ns_lshl_b32 s53, s{S_C}, 5\ns_add_u32 s52, s52, s53\ns_add_u32 s52, s52, {ST_OFF}")
    A("v_lshrrev_b32 v25, 3, v1\nv_lshlrev_b32 v25, 2, v25")
    A("v_and_b32 v26, 7, v1\nv_cmp_eq_u32 vcc, 0, v26\ns_and_saveexec_b64 s[54:55], vcc")
    A(f"buffer_store_dword v22, v25, s[36:39], s52 offen {SC}\nbuffer_store_dword v23, v25, s[36:39], s52 offen offset:512 {SC}")
    A("s_mov_b64 exec, s[54:55]")
    A(f"s_branch J_done_{nG}")
    A(f"J_c_{nG}:")
    for k in range(8): A(f"v_mov_b32 v{72+k}, 0")
    A("s_mov_b32 s52, 0x00003f80\ns_mov_b32 s53, 0x3f800000")
    for i in range(10):
        A(f"s_waitcnt vmcnt({9-i+nG_})")
        for k in range(4):
            r = 32 + 4 * i + k
            A(f"v_dot2_f32_bf16 v{72+2*k}, v{r}, s52, v{72+2*k}")
            A(f"v_dot2_f32_bf16 v{73+2*k}, v{r}, s53, v{73+2*k}")
    A("s_nop 2")
    for sw in ["v_permlane16_swap_b32", "v_permlane32_swap_b32"]:
        for k in range(8): A(f"v_mov_b32 v{80+k}, v{72+k}")
        A("s_nop 0")
        for k in range(8): A(f"{sw} v{72+k}, v{80+k}")
        A("s_nop 0")
        for k in range(8): A(f"v_add_f32 v{72+k}, v{72+k}, v{80+k}")
    A(f"s_lshl_b32 s52, s{S_B}, 13\ns_lshl_b32 s53, s{S_F0}, 2\ns_add_u32 s52, s52, s53\ns_add_u32 s52, s52, {CS_OFF}")
    A(f"v_lshlrev_b32 v22, 5, v1\ns_mov_b32 s53, 16\ns_cmp_lt_u32 s{S_C}, 5\ns_cselect_b32 s53, 8, s53")
    A("v_cmp_gt_u32 vcc, s53, v1\ns_and_saveexec_b64 s[54:55], vcc")
    A(f"buffer_store_dwordx4 v[72:75], v22, s[36:39], s52 offen {SC}\nbuffer_store_dwordx4 v[76:79], v22, s[36:39], s52 offen offset:16 {SC}")
    A("s_mov_b64 exec, s[54:55]")
    A(f"s_branch J_done_{nG}")
    A(f"J_done_{nG}:")
    A(f"s_cmp_ge_u32 s3, 2\ns_cbranch_scc0 J_dn2_{nG}\ns_waitcnt vmcnt(0)\nJ_dn2_{nG}:")

def x_addr(A, dst, rowbase_sgpr, tmp):
    A(f"v_and_b32 v{tmp}, 31, v1\nv_add_u32 v{tmp+1}, s{rowbase_sgpr}, v{tmp}\nv_lshlrev_b32 v{tmp+1}, 7, v{tmp+1}")
    A(f"v_bfe_u32 v{tmp}, v1, 1, 3\nv_lshrrev_b32 v{tmp+2}, 5, v1\nv_xor_b32 v{tmp}, v{tmp}, v{tmp+2}")
    A(f"v_lshlrev_b32 v{tmp}, 4, v{tmp}\nv_add_u32 v{dst}, v{tmp+1}, v{tmp}")
    for j in range(1, 4):
        A(f"v_xor_b32 v{dst+j}, {32*j}, v{dst}")
def h_tr_addr(A, dst, tmp):
    A(f"v_bfe_u32 v{tmp}, v1, 5, 1\nv_lshlrev_b32 v{tmp}, 3, v{tmp}\nv_bfe_u32 v{tmp+1}, v1, 2, 2\nv_add_u32 v{tmp}, v{tmp}, v{tmp+1}")
    A(f"v_lshlrev_b32 v{tmp}, 7, v{tmp}")
    A(f"v_bfe_u32 v{tmp+1}, v1, 4, 1\nv_lshlrev_b32 v{tmp+1}, 1, v{tmp+1}\nv_bfe_u32 v{tmp+2}, v1, 1, 1\nv_add_u32 v{tmp+1}, v{tmp+1}, v{tmp+2}")
    A(f"v_bfe_u32 v{tmp+2}, v1, 3, 1\nv_lshlrev_b32 v{tmp+2}, 2, v{tmp+2}\nv_xor_b32 v{tmp+1}, v{tmp+1}, v{tmp+2}")
    A(f"v_lshlrev_b32 v{tmp+1}, 4, v{tmp+1}\nv_add_u32 v{tmp}, v{tmp}, v{tmp+1}")
    A(f"v_and_b32 v{tmp+1}, 1, v1\nv_lshlrev_b32 v{tmp+1}, 3, v{tmp+1}\nv_add_u32 v{dst}, v{tmp}, v{tmp+1}")
def interleave(A, mfmas, fillers, per_gap):
    if opt("NOCOMP1"):
        for f in fillers:
            if not f.startswith("ds_read") and not f.startswith("v_perm"): A(f)
        return
    k = 0
    for i, m in enumerate(mfmas):
        A(m)
        for _ in range(per_gap[i]):
            if k < len(fillers):
                A(fillers[k]); k += 1
    while k < len(fillers):
        A(fillers[k]); k += 1
def h_epilogue_tile(A, acc, mr, cs, tmp, vaddr, soff):
    for i in range(0, 16, 2):
        A(f"v_pk_fma_f32 v[{acc+i}:{acc+i+1}], v[{cs+i}:{cs+i+1}], v[{mr}:{mr+1}], v[{acc+i}:{acc+i+1}] op_sel:[0,0,0] op_sel_hi:[1,0,1] neg_lo:[0,1,0] neg_hi:[0,1,0]")
    for i in range(0, 16, 2):
        A(f"v_pk_mul_f32 v[{acc+i}:{acc+i+1}], v[{acc+i}:{acc+i+1}], v[{mr}:{mr+1}] op_sel:[0,1] op_sel_hi:[1,1]")
    for i in range(0, 16, 2):
        A(f"v_cvt_pk_bf16_f32 v{tmp+i//2}, v{acc+i}, v{acc+i+1}")
    for i in range(8):
        A(f"v_pk_max_i16 v{tmp+i}, v{tmp+i}, 0")
    h_epilogue_tile.n += 1
    n = h_epilogue_tile.n
    A(f"s_cmp_eq_u32 s{S_LOCAL}, {1 if opt('LOCALH', 2) == 1 else 7}\ns_cbranch_scc1 L_hst{n}_p")
    A(f"buffer_store_dwordx4 v[{tmp}:{tmp+3}], v{vaddr}, s[36:39], s{soff} offen {SC}")
    A(f"buffer_store_dwordx4 v[{tmp+4}:{tmp+7}], v{vaddr}, s[36:39], s{soff} offen offset:512 {SC}")
    A(f"s_branch L_hst{n}_d\nL_hst{n}_p:")
    hst = {0: "", 1: "nt", 2: "sc0", 3: "sc0 nt"}[opt("HST", 0)]
    A(f"buffer_store_dwordx4 v[{tmp}:{tmp+3}], v{vaddr}, s[36:39], s{soff} offen {hst}")
    A(f"buffer_store_dwordx4 v[{tmp+4}:{tmp+7}], v{vaddr}, s[36:39], s{soff} offen offset:512 {hst}")
    A(f"L_hst{n}_d:")
h_epilogue_tile.n = 0
def h_store_voff(A, dst, tmp):
    A(f"v_bfe_u32 v{tmp}, v1, 4, 1\nv_mul_u32_u24 v{tmp}, {58*1024}, v{tmp}")
    A(f"v_lshrrev_b32 v{tmp+1}, 5, v1\nv_lshlrev_b32 v{tmp+1}, 8, v{tmp+1}\nv_add_u32 v{tmp}, v{tmp}, v{tmp+1}")
    A(f"v_and_b32 v{tmp+1}, 15, v1\nv_lshlrev_b32 v{tmp+1}, 4, v{tmp+1}\nv_add_u32 v{dst}, v{tmp}, v{tmp+1}")

def loop_hooks_top(A, tag):
    A(f"s_cmp_eq_u32 s29, s30\ns_cbranch_scc1 {tag}_flag1\n{tag}_flag1_ret:")
def loop_hooks_init(A):
    A(f"s_cmp_lt_u32 s3, 2\ns_cselect_b32 s30, {10 - opt('EARLY_IT', 1)}, 99")
def loop_hooks_ool(A, tag):
    A(f"{tag}_flag1:")
    flag_addr_early(A, 28)
    A("s_waitcnt vmcnt(0)")
    store_flags(A, 28, 1, 48, 30, xcc=True)
    A(f"s_branch {tag}_flag1_ret")

def publish(A, tag, word, kind, vt):
    A("s_waitcnt vmcnt(0)")
    lds_arrive(A, word, vt, 63)
    A(f"s_cmp_eq_u32 s63, 3\ns_cbranch_scc0 {tag}_np")
    if kind == "h":
        flag_addr_h(A, vt - 1); store_flags(A, vt - 1, 1, 48, vt, xcc=True, local=(tag if opt("LOCALF", 1) else None))
    else:
        flag_addr_t(A, vt - 1); store_flags(A, vt - 1, 8, 48, vt)
    A(f"{tag}_np:")

def p1_hh(A):
    A("L_hh:")
    ACC = 128; P, Q = 32, 64
    XB, WB = 2, 6; XC, WC = 8, 12
    A("s_lshr_b32 s24, s3, 1\ns_and_b32 s25, s3, 1")
    A("s_lshl_b32 s26, s24, 6")
    x_addr(A, XB, 26, 20)
    h_tr_addr(A, WB, 20)
    A("s_lshl_b32 s27, s25, 13\ns_add_u32 s27, s27, 16384")
    A(f"v_add_u32 v{WB}, s27, v{WB}\nv_xor_b32 v{WB+1}, 64, v{WB}")
    for i in range(64): A(f"v_mov_b32 v{ACC+i}, 0")
    for j in range(4): A(f"v_mov_b32 v{XC+j}, v{XB+j}")
    for j in range(2): A(f"v_mov_b32 v{WC+j}, v{WB+j}")
    jobs_finish(A, 0, 'h')
    epoch_ready(A)
    A("s_mov_b32 s28, 0")
    loop_hooks_init(A)
    def reads(buf, g):
        out = []
        for jj in range(2):
            j = 2 * g + jj; b = buf + 16 * jj
            out.append(f"ds_read_b128 v[{b}:{b+3}], v{XC+j}")
            out.append(f"ds_read_b64_tr_b16 v[{b+8}:{b+9}], v{WC} offset:{j*2048}")
            out.append(f"ds_read_b64_tr_b16 v[{b+10}:{b+11}], v{WC} offset:{j*2048+512}")
            out.append(f"ds_read_b128 v[{b+4}:{b+7}], v{XC+j} offset:4096")
            out.append(f"ds_read_b64_tr_b16 v[{b+12}:{b+13}], v{WC+1} offset:{j*2048}")
            out.append(f"ds_read_b64_tr_b16 v[{b+14}:{b+15}], v{WC+1} offset:{j*2048+512}")
        return out
    def mfmas(buf):
        out = []
        for jj in range(2):
            b = buf + 16 * jj
            for ft in range(2):
                for st in range(2):
                    a = ACC + 16 * (2 * ft + st)
                    out.append(f"{MFMA32} v[{a}:{a+15}], v[{b+8+4*ft}:{b+11+4*ft}], v[{b+4*st}:{b+3+4*st}], v[{a}:{a+15}]")
        return out
    stamp(A, 1)
    A("s_waitcnt lgkmcnt(0)\ns_barrier")
    stamp(A, 2)
    for r in reads(P, 0):
        if not opt("NOCOMP1"): A(r)
    A("s_mov_b32 s29, 10")
    A("L_hh_loop:")
    A.drop = (["v_mfma"] if opt("NOMF1") else []) + (["ds_read"] if opt("NODS1") else []) + (["v_perm"] if opt("NOPERM") else [])
    loop_hooks_top(A, "L_hh")
    A("s_waitcnt lgkmcnt(0)")
    upd = [f"v_add_u32 v{XC+j}, s28, v{XB+j}" for j in range(4)] + [f"v_add_u32 v{WC+j}, s28, v{WB+j}" for j in range(2)]
    ring = [f"s_add_u32 s28, s28, {RING}", f"s_and_b32 s28, s28, {NS*RING-1}"]
    interleave(A, mfmas(P), reads(Q, 1) + ring + upd, [3, 3, 3, 3, 2, 3, 3, 0])
    A("s_waitcnt lgkmcnt(0)")
    A("s_barrier")
    interleave(A, mfmas(Q), reads(P, 0), [3, 3, 3, 3, 0, 0, 0, 0])
    A.drop = []
    A("s_sub_u32 s29, s29, 1\ns_cmp_lg_u32 s29, 0\ns_cbranch_scc1 L_hh_loop")
    A("s_waitcnt lgkmcnt(0)")
    stamp(A, 3)
    A(f"v_and_b32 v20, 31, v1\nv_add_u32 v20, s26, v20\nv_lshlrev_b32 v20, 2, v20\nv_add_u32 v20, {LST}, v20")
    A("ds_read_b32 v22, v20\nds_read_b32 v23, v20 offset:512\nds_read_b32 v24, v20 offset:128\nds_read_b32 v25, v20 offset:640")
    A(f"v_mov_b32 v27, {LCNT + 12}\nds_read_b32 v27, v27")
    A(f"v_lshrrev_b32 v21, 5, v1\nv_lshlrev_b32 v21, 4, v21\ns_lshl_b32 s30, s25, 8\ns_add_u32 s30, s30, {LCS}\nv_add_u32 v21, s30, v21")
    for ft in range(2):
        for q in range(4):
            b = 32 + 16 * ft + 4 * q
            A(f"ds_read_b128 v[{b}:{b+3}], v21 offset:{ft*128+q*32}")
    h_store_voff(A, 26, 28)
    A(f"s_lshl_b32 s31, s{S_B}, 3\ns_lshl_b32 s32, s24, 1\ns_add_u32 s31, s31, s32\ns_mul_i32 s31, s31, 58")
    A(f"s_lshr_b32 s32, s{S_F0}, 5\ns_lshl_b32 s33, s25, 1\ns_add_u32 s32, s32, s33\ns_add_u32 s31, s31, s32")
    A(f"s_lshl_b32 s31, s31, 10\ns_add_u32 s31, s31, {HF_OFF}")
    A("s_waitcnt lgkmcnt(0)")
    A(f"v_readfirstlane_b32 s{S_LOCAL}, v27")
    A("s_nop 7")
    for st in range(2):
        for ft in range(2):
            A(f"s_add_u32 s32, s31, {(st*4*58+ft)*1024}")
            h_epilogue_tile(A, ACC + 16 * (2 * ft + st), 22 + 2 * st, 32 + 16 * ft, 64 + 8 * ((2 * st + ft) & 3), 26, 32)
    stamp(A, 4)
    publish(A, "L_hh_pub", 0, "h", 30)
    stamp(A)
    stamp_flush(A, 0, WS, 9)
    A("s_endpgm")
    loop_hooks_ool(A, "L_hh")

def p1_mx(A):
    A("L_mx:")
    P, Q = 32, 72
    EV, OD = 112, 116
    CE, CO, SE, SO = 120, 124, 128, 132
    HA, HB = 136, 152
    EC, ES, OC, OS = 168, 184, 200, 216
    G = 232
    XAB, WHB = 2, 6
    XAC, XBC, DAC, WHC = 7, 11, 15, 19
    A("v_and_b32 v24, 31, v1\nv_cvt_f32_u32 v24, v24\nv_lshrrev_b32 v25, 5, v1\nv_cvt_f32_u32 v25, v25")
    A("v_mul_f32 v25, 0x3e000000, v25\nv_mul_f32 v25, v25, v24")
    for p in range(2):
        for uh in range(2):
            for u2 in range(2):
                for k in range(2):
                    c = 16 * p + 8 * uh + 2 * u2 + k
                    import struct
                    lit = struct.unpack("<I", struct.pack("<f", c / 32.0))[0]
                    A(f"v_fmamk_f32 v26, v24, {lit:#x}, v25\nv_fract_f32 v26, v26")
                    A(f"v_cos_f32 v{28+k}, v26\nv_sin_f32 v{30+k}, v26")
                A("s_nop 0")
                A(f"v_cvt_pk_bf16_f32 v{G+4*p+2*uh+u2}, v28, v29\nv_cvt_pk_bf16_f32 v{G+16+4*p+2*uh+u2}, v30, v31")
    for i in range(8):
        A(f"v_xor_b32 v{G+8+i}, 0x80008000, v{G+16+i}")
    A("s_lshr_b32 s24, s3, 1\ns_and_b32 s25, s3, 1")
    A("s_lshl_b32 s26, s3, 5\ns_xor_b32 s27, s26, 32")
    x_addr(A, XAB, 26, 24)
    h_tr_addr(A, WHB, 24)
    A(f"s_lshl_b32 s30, s25, 6\nv_xor_b32 v{WHB}, s30, v{WHB}\nv_add_u32 v{WHB}, 16384, v{WHB}")
    for i in range(96): A(f"v_mov_b32 v{HA+i}, 0")
    A("s_lshl_b32 s31, s3, 12\ns_sub_u32 s31, 24576, s31")
    def upd(js=(0, 1, 2, 3), wh=True):
        o = [f"v_add_u32 v{XAC+j}, s28, v{XAB+j}" for j in js] + ([f"v_add_u32 v{WHC}, s28, v{WHB}"] if wh else [])
        o += [f"v_xor_b32 v{XBC+j}, 0x1000, v{XAC+j}" for j in js]
        o += [f"v_add_u32 v{DAC+j}, s31, v{XAC+j}" for j in js]
        return o
    A("s_mov_b32 s28, 0")
    for t in upd(): A(t)
    jobs_finish(A, 0, 'm')
    epoch_ready(A)
    loop_hooks_init(A)
    A("s_mov_b32 s34, 0x05040100\ns_mov_b32 s35, 0x07060302")
    def reads(buf, m):
        out = []
        for jj in range(2):
            j = 2 * m + jj
            out.append(f"ds_read_b128 v[{buf+4*jj}:{buf+4*jj+3}], v{XAC+j}")
        for jj in range(2):
            j = 2 * m + jj
            out.append(f"ds_read_b64_tr_b16 v[{buf+16+4*jj}:{buf+17+4*jj}], v{WHC} offset:{j*2048}")
            out.append(f"ds_read_b64_tr_b16 v[{buf+18+4*jj}:{buf+19+4*jj}], v{WHC} offset:{j*2048+512}")
            out.append(f"ds_read_b128 v[{buf+8+4*jj}:{buf+11+4*jj}], v{XBC+j}")
        for jj in range(2):
            j = 2 * m + jj
            out.append(f"ds_read_b128 v[{buf+24+4*jj}:{buf+27+4*jj}], v{DAC+j}")
            out.append(f"ds_read_b128 v[{buf+32+4*jj}:{buf+35+4*jj}], v{DAC+j} offset:4096")
        return out
    def perms(src, e, o):
        ev = [f"v_perm_b32 v{e+k}, v{src+2*k+1}, v{src+2*k}, s34" for k in range(4)]
        od = [f"v_perm_b32 v{o+k}, v{src+2*k+1}, v{src+2*k}, s35" for k in range(4)]
        return ev, od
    def half(cur, nxt, m_next, extra):
        rd = reads(nxt, m_next)
        if opt("NOCOMP1"):
            for t in extra: A(t)
            return
        xe, xo = perms(cur, EV, OD); ce, co = perms(cur + 24, CE, CO); se, so = perms(cur + 32, SE, SO)
        H = []
        for jj in range(2):
            w = cur + 16 + 4 * jj
            H.append(f"{MFMA32} v[{HA}:{HA+15}], v[{w}:{w+3}], v[{cur+4*jj}:{cur+4*jj+3}], v[{HA}:{HA+15}]")
            H.append(f"{MFMA32} v[{HB}:{HB+15}], v[{w}:{w+3}], v[{cur+8+4*jj}:{cur+11+4*jj}], v[{HB}:{HB+15}]")
        Dm = [f"{MFMA32} v[{EC}:{EC+15}], v[{EV}:{EV+3}], v[{CE}:{CE+3}], v[{EC}:{EC+15}]",
              f"{MFMA32} v[{OC}:{OC+15}], v[{OD}:{OD+3}], v[{CO}:{CO+3}], v[{OC}:{OC+15}]",
              f"{MFMA32} v[{ES}:{ES+15}], v[{EV}:{EV+3}], v[{SE}:{SE+3}], v[{ES}:{ES+15}]",
              f"{MFMA32} v[{OS}:{OS+15}], v[{OD}:{OD+3}], v[{SO}:{SO+3}], v[{OS}:{OS+15}]"]
        if opt("MXSCHED", 1):
            ex = list(extra)
            def take(n):
                t = ex[:n]; del ex[:n]; return t
            pad = lambda n: (take(n) + ["s_nop 0"] * n)[:n]
            ms = H + [Dm[0], Dm[2], Dm[1], Dm[3]]
            gaps = [xe[0:2] + rd[0:3], xe[2:4] + rd[3:6], ce[0:2] + rd[6:9], ce[2:4] + rd[9:12],
                    se + xo[0:2], xo[2:4] + co + pad(2), so + pad(2), None]
            gaps[7] = ex
        else:
            gaps = [xe + rd[0:2], ce + rd[2:4], xo + rd[4:6], co + rd[6:8], se + rd[8:10], so + rd[10:12], extra[:8], extra[8:]]
            ms = H + Dm
        for i in range(8):
            A(ms[i])
            for t in gaps[i]: A(t)
    stamp(A, 1)
    A("s_waitcnt lgkmcnt(0)\ns_barrier")
    stamp(A, 2)
    for r in reads(P, 0):
        if not opt("NOCOMP1"): A(r)
    A("s_mov_b32 s29, 10")
    A("L_mx_loop:")
    A.drop = (["v_mfma"] if opt("NOMF1") else []) + (["ds_read"] if opt("NODS1") else []) + (["v_perm"] if opt("NOPERM") else [])
    loop_hooks_top(A, "L_mx")
    A("s_waitcnt lgkmcnt(0)")
    ring = [f"s_add_u32 s28, s28, {RING}", f"s_and_b32 s28, s28, {NS*RING-1}"]
    if opt("MXSCHED", 1):
        half(P, Q, 1, ring + upd((0, 1), True))
        A("s_waitcnt lgkmcnt(0)")
        A("s_barrier")
        half(Q, P, 0, upd((2, 3), False))
    else:
        half(P, Q, 1, ring + upd())
        A("s_waitcnt lgkmcnt(0)")
        A("s_barrier")
        half(Q, P, 0, [])
    A.drop = []
    A("s_sub_u32 s29, s29, 1\ns_cmp_lg_u32 s29, 0\ns_cbranch_scc1 L_mx_loop")
    A("s_waitcnt lgkmcnt(0)")
    stamp(A, 3)
    A(f"v_and_b32 v24, 31, v1\nv_add_u32 v25, s26, v24\nv_lshlrev_b32 v25, 2, v25\nv_add_u32 v25, {LST}, v25")
    A(f"v_add_u32 v26, s27, v24\nv_lshlrev_b32 v26, 2, v26\nv_add_u32 v26, {LST}, v26")
    A("ds_read_b32 v2, v25\nds_read_b32 v3, v25 offset:512\nds_read_b32 v4, v26\nds_read_b32 v5, v26 offset:512")
    A(f"v_mov_b32 v7, {LCNT + 12}\nds_read_b32 v7, v7")
    A(f"v_lshrrev_b32 v27, 5, v1\nv_lshlrev_b32 v27, 4, v27\ns_lshl_b32 s30, s25, 7\ns_add_u32 s30, s30, {LCS}\nv_add_u32 v28, s30, v27")
    for q in range(4):
        A(f"ds_read_b128 v[{32+4*q}:{35+4*q}], v28 offset:{q*32}")
    A(f"s_lshl_b32 s30, s26, 2\ns_add_u32 s30, s30, {LST+512}\nv_add_u32 v28, s30, v27")
    for q in range(4):
        A(f"ds_read_b128 v[{48+4*q}:{51+4*q}], v28 offset:{q*32}")
    h_store_voff(A, 6, 28)
    A(f"s_lshl_b32 s31, s{S_B}, 3\ns_lshl_b32 s30, s24, 1\ns_add_u32 s31, s31, s30\ns_mul_i32 s31, s31, 58")
    A(f"s_lshr_b32 s30, s{S_F0}, 5\ns_add_u32 s30, s30, s25\ns_add_u32 s31, s31, s30")
    A(f"s_lshl_b32 s31, s31, 10\ns_add_u32 s31, s31, {HF_OFF}")
    A(f"s_mul_i32 s30, s25, {4*58*1024}\ns_add_u32 s32, s31, s30")
    A(f"s_xor_b32 s30, s25, 1\ns_mul_i32 s30, s30, {4*58*1024}\ns_add_u32 s33, s31, s30")
    A("s_waitcnt lgkmcnt(0)")
    A(f"v_readfirstlane_b32 s{S_LOCAL}, v7")
    A("s_nop 7")
    h_epilogue_tile(A, HA, 2, 32, 64, 6, 32)
    h_epilogue_tile(A, HB, 4, 32, 72, 6, 33)
    stamp(A, 4)
    if opt("MXPUB", 1): publish(A, "L_mx_pubh", 0, "h", 30)
    stamp(A)
    R = 48
    for i in range(0, 16, 2):
        for a in (EC, OC, ES, OS):
            A(f"v_pk_mul_f32 v[{a+i}:{a+i+1}], v[{a+i}:{a+i+1}], v[{R+i}:{R+i+1}]")
    T0, T1 = 80, 96
    for i in range(0, 16, 2):
        A(f"v_pk_add_f32 v[{T0+i}:{T0+i+1}], v[{EC+i}:{EC+i+1}], v[{OC+i}:{OC+i+1}]")
        A(f"v_pk_add_f32 v[{EC+i}:{EC+i+1}], v[{EC+i}:{EC+i+1}], v[{OC+i}:{OC+i+1}] neg_lo:[0,1] neg_hi:[0,1]")
        A(f"v_pk_add_f32 v[{T1+i}:{T1+i+1}], v[{ES+i}:{ES+i+1}], v[{OS+i}:{OS+i+1}]")
        A(f"v_pk_add_f32 v[{OC+i}:{OC+i+1}], v[{OS+i}:{OS+i+1}], v[{ES+i}:{ES+i+1}] neg_lo:[0,1] neg_hi:[0,1]")
    A("v_and_b32 v24, 31, v1\nv_cmp_eq_u32 s[40:41], 0, v24\ns_nop 3")
    A(f"s_cmp_eq_u32 s{S_C}, 0\ns_cselect_b64 s[40:41], s[40:41], 0\ns_cbranch_scc0 L_mx_nofix")
    for i in range(16):
        A(f"v_cndmask_b32 v{T0+i}, v{T0+i}, v{ES+i}, s[40:41]")
        A(f"v_cndmask_b32 v{T1+i}, v{T1+i}, v{OS+i}, s[40:41]")
        A(f"v_cndmask_b32_e64 v{OC+i}, v{OC+i}, 0, s[40:41]")
    A("L_mx_nofix:")
    ZB = 32
    for k, a in enumerate([T0, T1, EC, OC]):
        for i in range(0, 16, 2):
            A(f"v_cvt_pk_bf16_f32 v{ZB+8*k+i//2}, v{a+i}, v{a+i+1}")
    Fr = lambda p: f"v[{G+4*p}:{G+4*p+3}]"
    Fi = lambda p: f"v[{G+8+4*p}:{G+8+4*p+3}]"
    nFi = lambda p: f"v[{G+16+4*p}:{G+16+4*p+3}]"
    Z = lambda k, p: f"v[{ZB+8*k+4*p}:{ZB+8*k+4*p+3}]"
    TR = [EC, OC]; TI = [ES, OS]
    A("s_nop 1")
    for st_ in range(2):
        zr, zi = 2 * st_, 2 * st_ + 1
        tr, ti = TR[st_], TI[st_]
        A(f"{MFMA32} v[{tr}:{tr+15}], {Fr(0)}, {Z(zr,0)}, 0")
        A(f"{MFMA32} v[{ti}:{ti+15}], {Fr(0)}, {Z(zi,0)}, 0")
        A(f"{MFMA32} v[{tr}:{tr+15}], {Fr(1)}, {Z(zr,1)}, v[{tr}:{tr+15}]")
        A(f"{MFMA32} v[{ti}:{ti+15}], {Fr(1)}, {Z(zi,1)}, v[{ti}:{ti+15}]")
        A(f"{MFMA32} v[{tr}:{tr+15}], {nFi(0)}, {Z(zi,0)}, v[{tr}:{tr+15}]")
        A(f"{MFMA32} v[{ti}:{ti+15}], {Fi(0)}, {Z(zr,0)}, v[{ti}:{ti+15}]")
        A(f"{MFMA32} v[{tr}:{tr+15}], {nFi(1)}, {Z(zi,1)}, v[{tr}:{tr+15}]")
        A(f"{MFMA32} v[{ti}:{ti+15}], {Fi(1)}, {Z(zr,1)}, v[{ti}:{ti+15}]")
    if not opt("MXPUB", 1): publish(A, "L_mx_pubh", 0, "h", 30)
    else: A("s_nop 7")
    stamp(A)
    A(f"v_and_b32 v24, 31, v1\nv_lshlrev_b32 v24, 2, v24\nv_lshrrev_b32 v25, 5, v1\nv_lshlrev_b32 v25, 9, v25\nv_add_u32 v24, v24, v25")
    A(f"s_lshl_b32 s30, s3, 13\ns_add_u32 s30, s30, {LX}\nv_add_u32 v24, s30, v24")
    A("s_nop 7")
    for st_ in range(2):
        for i in range(16):
            A(f"v_cvt_pk_bf16_f32 v{64+16*st_+i}, v{TR[st_]+i}, v{TI[st_]+i}")
    for st_ in range(2):
        for i in range(16):
            t0 = (i & 3) + 8 * (i >> 2)
            A(f"ds_write_b32 v24, v{64+16*st_+i} offset:{st_*4096+t0*128}")
    A("s_waitcnt lgkmcnt(0)")
    stamp(A)
    lds_arrive(A, 1, 30, 63)
    A(f"v_mov_b32 v30, {LCNT+4}")
    A("L_mx_rv:\nds_read_b32 v31, v30\ns_waitcnt lgkmcnt(0)\ns_nop 0\nv_readfirstlane_b32 s63, v31\ns_nop 3\ns_cmp_ge_u32 s63, 4\ns_cbranch_scc1 L_mx_rv_ok")
    A(f"s_sub_u32 s{S_SPIN}, s{S_SPIN}, 1\ns_cmp_eq_u32 s{S_SPIN}, 0\ns_cbranch_scc0 L_mx_rv\nL_mx_rv_ok:")
    A("v_and_b32 v24, 31, v1\nv_lshlrev_b32 v24, 2, v24\nv_lshrrev_b32 v25, 5, v1\nv_lshlrev_b32 v26, 7, v25\nv_add_u32 v24, v24, v26")
    A(f"s_lshl_b32 s30, s3, 10\ns_add_u32 s30, s30, {LX}\nv_add_u32 v24, s30, v24")
    for st_ in range(2):
        for n in range(4):
            b = 64 + 16 * st_ + 4 * n
            for w in range(4):
                A(f"ds_read_b32 v{b+w}, v24 offset:{w*8192+st_*4096+n*256}")
    A(f"v_and_b32 v26, 31, v1\ns_lshl_b32 s30, s{S_C}, 5\nv_add_u32 v27, s30, v26")
    A("v_mov_b32 v28, 160\nv_cndmask_b32 v29, v27, v28, s[40:41]")
    A("v_sub_u32 v27, 320, v27")
    A(f"s_mov_b32 s30, {TF_T0}\nv_mul_lo_u32 v25, s30, v25")
    A("v_lshlrev_b32 v29, 4, v29\nv_add_u32 v29, v29, v25")
    A("v_lshlrev_b32 v27, 4, v27\nv_add_u32 v27, v27, v25")
    A(f"s_mul_i32 s30, s3, {8*TF_T0}\ns_mul_i32 s31, s{S_B}, {TF_ROW}\ns_add_u32 s30, s30, s31\ns_add_u32 s30, s30, {TF_OFF}")
    A("s_waitcnt lgkmcnt(0)")
    for st_ in range(2):
        for n in range(4):
            b = 64 + 16 * st_ + 4 * n
            A(f"s_add_u32 s31, s30, {2*n*TF_T0}")
            if not opt("NOTST"): A(f"buffer_store_dwordx4 v[{b}:{b+3}], v{29 if st_ == 0 else 27}, s[36:39], s31 offen {'' if opt('TPLAIN') else SC}")
    stamp(A)
    A(f"s_cmp_eq_u32 s{S_C}, 0\ns_cbranch_scc0 L_mx_noz\ns_cmp_eq_u32 s3, 0\ns_cbranch_scc0 L_mx_noz")
    A(f"s_mov_b32 s30, {TF_T0}\nv_and_b32 v24, 31, v1\nv_mul_lo_u32 v24, s30, v24")
    A("v_mov_b32 v4, 0\nv_mov_b32 v5, 0\nv_mov_b32 v6, 0\nv_mov_b32 v7, 0")
    A(f"s_mul_i32 s31, s{S_B}, {TF_ROW}\ns_add_u32 s31, s31, {TF_OFF}")
    A(f"buffer_store_dwordx4 v[4:7], v24, s[36:39], s31 offen {SC}")
    A("L_mx_noz:")
    publish(A, "L_mx_pubt", 2, "t", 30)
    stamp(A)
    stamp_flush(A, 0, WS, 9)
    A("s_endpgm")
    loop_hooks_ool(A, "L_mx")

def loader(A):
    A("L_loader:")
    A(f"s_sub_u32 s{S_J}, s3, 4")
    for r in [11, 12, 13, 52, 53, 54, 55, 56, 57, 58, 59]: A(f"v_mov_b32 v{r}, 0")
    A("s_mov_b32 s58, 0\ns_mov_b32 s59, 99\ns_mov_b32 s63, 0")
    RS = 1280 if opt("XLIN") else 81920
    A(f"v_lshrrev_b32 v4, 3, v1\ns_mov_b32 s40, {RS}\nv_mul_lo_u32 v8, s40, v4")
    A("v_and_b32 v5, 7, v1\nv_lshrrev_b32 v6, 4, v1\nv_xor_b32 v5, v5, v6\nv_lshlrev_b32 v5, 4, v5")
    A("v_add_u32 v2, v8, v5\nv_xor_b32 v7, 64, v5")
    A(f"v_add_u32 v3, v8, v7\nv_add_u32 v3, {8*RS}, v3")
    A(f"s_lshl_b32 s40, s{S_B}, 1\ns_and_b32 s41, s{S_J}, 1\ns_add_u32 s40, s40, s41")
    A(f"s_lshr_b32 s41, s{S_J}, 1\ns_lshl_b32 s41, s41, 5\ns_add_u32 s40, s40, s41")
    if opt("XLIN"):
        A(f"s_lshl_b32 s40, s{S_B}, 2\ns_add_u32 s40, s40, s{S_J}\ns_mul_i32 s40, s40, {32*1280}\ns_add_u32 s41, s40, {16*1280}")
    else:
        A(f"s_mul_i32 s40, s40, 1280\ns_add_u32 s41, s40, {16*81920}")
    A("s_mov_b64 s[56:57], -1")
    A(f"s_cmp_lt_u32 s{S_C}, 5\ns_cbranch_scc0 L_ld_H")
    A(f"s_cmp_ge_u32 s{S_J}, 2\ns_cbranch_scc0 L_ld_H")
    A(f"s_and_b32 s50, s{S_J}, 1\ns_add_u32 s50, s50, 1\ns_mov_b32 s30, {HID_BYTES}")
    A("v_mul_u32_u24 v8, 1280, v4\nv_add_u32 v9, v8, v5")
    A(f"v_add_u32 v10, v8, v7\nv_add_u32 v10, {8*1280}, v10")
    A(f"s_mul_i32 s42, s{S_C}, {32*1280}")
    A(f"s_mov_b32 s44, s42\ns_mov_b32 s45, s42\ns_add_u32 s46, s42, {16*1280}\ns_add_u32 s47, s42, {16*1280}")
    A("s_mov_b32 s43, 128")
    A(f"s_cmp_eq_u32 s{S_C}, 0\ns_cbranch_scc0 L_ld_go\ns_cmp_eq_u32 s{S_J}, 3\ns_cbranch_scc0 L_ld_go")
    A("s_mov_b32 s56, 0xffffff00")
    A("s_branch L_ld_go")
    A("L_ld_H:")
    A(f"s_mov_b32 s50, 0\ns_mov_b32 s30, {W1_BYTES}")
    A("v_mul_u32_u24 v8, 3456, v4")
    A("v_and_b32 v9, 7, v1\nv_bfe_u32 v10, v1, 4, 1\nv_lshlrev_b32 v10, 2, v10\nv_xor_b32 v9, v9, v10")
    A("v_lshlrev_b32 v9, 4, v9\nv_add_u32 v9, v8, v9\nv_mov_b32 v10, v9")
    A(f"s_and_b32 s42, s{S_J}, 1\ns_mul_i32 s42, s42, {32*3456}")
    A(f"s_lshr_b32 s43, s{S_J}, 1\ns_lshl_b32 s43, s43, 6\ns_add_u32 s43, s43, s{S_F0}\ns_lshl_b32 s43, s43, 1")
    A("s_add_u32 s42, s42, s43")
    for q in range(4):
        A(f"s_add_u32 s{44+q}, s42, {8*q*3456}")
    A(f"s_mov_b32 s43, {64*3456}")
    A("L_ld_go:")
    A(f"s_lshl_b32 s48, s{S_J}, 12\ns_mov_b32 s31, 0x20000")
    args_ready(A)
    srd(A, 24, X_, X_BYTES)
    A(f"s_cmp_eq_u32 s50, 1\ns_cselect_b32 s28, s{HRE}, s{W1}\ns_cselect_b32 s29, s{HRE+1}, s{W1+1}")
    A(f"s_cmp_eq_u32 s50, 2\ns_cselect_b32 s28, s{HIM}, s28\ns_cselect_b32 s29, s{HIM+1}, s29")
    def chunk(slot_reg):
        for q in range(4):
            A(f"s_add_u32 m0, s{slot_reg}, {q*1024}")
            A("s_nop 0")
            A(f"buffer_load_dwordx4 v{2+(q&1)}, s[24:27], s{40+(q>>1)} offen {'nt ' if opt('XNT') else ''}lds")
            A(f"s_add_u32 m0, s{slot_reg}, {16384+q*1024}")
            if q == 0: A("s_mov_b64 exec, s[56:57]")
            else: A("s_nop 0")
            A(f"buffer_load_dwordx4 v{9+(q&1)}, s[28:31], s{44+q} offen {'nt ' if opt('WNT') else ''}lds")
            if q == 0: A("s_mov_b64 exec, -1")
        A("s_add_u32 s40, s40, 128\ns_add_u32 s41, s41, 128")
        for q in range(4):
            A(f"s_add_u32 s{44+q}, s{44+q}, s43")
        A(f"s_add_u32 s{slot_reg}, s{slot_reg}, {RING}\ns_cmp_ge_u32 s{slot_reg}, {NS*RING}\ns_cselect_b32 s52, {NS*RING}, 0\ns_sub_u32 s{slot_reg}, s{slot_reg}, s52")
    A("s_mov_b32 s49, s48")
    chunk(49); chunk(49)
    stamp(A, 1)
    srd(A, 36, WS, WS_USED)
    srd(A, 32, WS, WS_USED)
    A("s_waitcnt lgkmcnt(0)")
    A(f"s_add_u32 s{S_E}, s{S_E}, 1\ns_xor_b32 s{S_EM}, s{S_E}, {MAGIC}")
    A(f"s_cmp_ge_u32 s{S_J}, 2\ns_cbranch_scc0 L_ld_su01")
    A(f"s_sub_u32 s58, s{S_J}, 2\ns_lshl_b32 s59, s{S_T0}, 1\ns_add_u32 s59, s59, s58")
    A("s_mov_b32 s50, 6554\ns_mov_b32 s53, 1280")
    for q in range(5):
        A(f"v_add_u32 v22, {64*q}, v1")
        A("v_mul_lo_u32 v23, s50, v22\nv_lshrrev_b32 v23, 16, v23")
        A("v_mul_u32_u24 v24, 10, v23\nv_sub_u32 v24, v22, v24\nv_lshlrev_b32 v24, 4, v24")
        A(f"v_mul_lo_u32 v23, s53, v23\nv_add_u32 v{52+q}, v23, v24")
    A("v_lshrrev_b32 v23, 4, v1\nv_lshrrev_b32 v24, 1, v23\nv_lshlrev_b32 v24, 4, v24")
    A("v_and_b32 v25, 1, v23\nv_lshlrev_b32 v25, 2, v25\nv_add_u32 v24, v24, v25\nv_bfe_u32 v25, v1, 2, 2\nv_add_u32 v24, v24, v25")
    A("v_mul_u32_u24 v24, 160, v24\nv_and_b32 v25, 3, v1\nv_lshlrev_b32 v25, 3, v25\nv_add_u32 v24, v24, v25")
    A(f"s_mul_i32 s50, s58, 5120\ns_add_u32 s50, s50, {LW}\nv_add_u32 v57, s50, v24")
    A(f"s_lshl_b32 s50, s{S_CT}, 1\ns_add_u32 s50, s50, s58\ns_lshr_b32 s53, s50, 2\ns_and_b32 s50, s50, 3")
    A(f"s_lshr_b32 s54, s53, 1\ns_lshl_b32 s54, s54, 5\ns_add_u32 s54, s54, s{S_T0}")
    A("s_and_b32 s55, s53, 1\ns_lshl_b32 s55, s55, 10\ns_add_u32 s54, s54, s55")
    A("v_and_b32 v22, 15, v1\nv_lshlrev_b32 v22, 6, v22\nv_add_u32 v22, s54, v22")
    A("s_lshl_b32 s55, s50, 3\nv_lshrrev_b32 v23, 4, v1\nv_lshlrev_b32 v23, 1, v23\nv_add_u32 v23, s55, v23")
    A("s_mov_b32 s55, 0x3a000000")
    for k, ds in enumerate([0, 1, 32, 33]):
        A(f"v_add_u32 v24, {ds}, v23\nv_mul_u32_u24 v24, v22, v24\nv_and_b32 v24, 0x7ff, v24\nv_cvt_f32_u32 v24, v24\nv_mul_f32 v24, s55, v24")
        A(f"v_cos_f32 v25, v24\nv_sin_f32 v26, v24\ns_nop 0\nv_cvt_pk_bf16_f32 v{60+k}, v25, -v26")
    A(f"s_lshl_b32 s63, s{S_T0}, 2\ns_add_u32 s63, s63, s53\ns_mul_i32 s63, s63, 58\ns_add_u32 s63, s63, s50\ns_add_u32 s63, s63, 54")
    A(f"s_lshl_b32 s63, s63, 10\ns_add_u32 s63, s63, {HF_OFF}")
    A(f"s_lshl_b32 s50, s{S_CT}, 6\ns_add_u32 s50, s50, s59\ns_lshl_b32 s50, s50, 3\ns_add_u32 s50, s50, {FW_OFF}\nv_mov_b32 v58, s50")
    A(f"s_lshl_b32 s50, s{S_T0}, 4\ns_lshl_b32 s53, s{S_CT}, 1\ns_add_u32 s50, s50, s53\ns_add_u32 s50, s50, s58\ns_lshl_b32 s50, s50, 3\ns_add_u32 s50, s50, {FF_OFF}\nv_mov_b32 v59, s50")
    A("v_cmp_eq_u32 vcc, 1, v1\ns_nop 1\nv_cndmask_b32 v58, v58, v59, vcc")
    A("s_branch L_ld_sud")
    A("L_ld_su01:")
    A("v_lshlrev_b32 v13, 3, v1\nv_and_b32 v16, 31, v1\nv_lshlrev_b32 v15, 3, v16")
    A(f"s_lshl_b32 s50, s{S_B}, 7\ns_add_u32 s50, s50, {FR1_OFF}\nv_add_u32 v12, s50, v15")
    A(f"s_lshl_b32 s50, s{S_C}, 7\ns_add_u32 s50, s50, {FC1_OFF-128}\nv_add_u32 v15, s50, v15")
    A("v_cmp_le_u32 vcc, 16, v16\ns_nop 1\nv_cndmask_b32 v12, v12, v15, vcc")
    A(f"s_lshl_b32 s50, s{S_CT}, 9\ns_add_u32 s50, s50, {FW_OFF}\nv_add_u32 v11, s50, v13")
    A(f"s_lshl_b32 s50, s{S_T0}, 7\ns_add_u32 s50, s50, {FF_OFF}\nv_and_b32 v14, 15, v1\nv_lshlrev_b32 v14, 3, v14\nv_add_u32 v59, s50, v14")
    A("L_ld_sud:")
    A("s_waitcnt vmcnt(8)")
    stamp(A, 2)
    A("s_barrier")
    chunk(49)
    A(f"s_cmp_ge_u32 s{S_J}, 2\ns_cbranch_scc1 L_ld_h1w\nL_ld_h1w_ret:")
    A(f"s_cmp_ge_u32 s{S_J}, 2\ns_cbranch_scc1 L_ld_b1w")
    A("s_waitcnt vmcnt(8)\ns_branch L_ld_b1d\nL_ld_b1w:")
    A("s_cmp_ge_u32 s59, 54\ns_cbranch_scc1 L_ld_b1n\ns_waitcnt vmcnt(13)\ns_branch L_ld_b1d\nL_ld_b1n:\ns_waitcnt vmcnt(8)\nL_ld_b1d:")
    A("s_barrier")
    stamp(A)
    pk = opt("POLLK", 5)
    assert pk in (5, 6)
    A(f"s_mov_b32 s53, 99\ns_mov_b32 s54, 99\ns_mov_b32 s55, 0\ns_mov_b32 s79, 99\ns_mov_b32 s81, 99\ns_mov_b32 s82, 99\ns_mov_b32 s83, 0")
    A(f"s_cmp_eq_u32 s{S_J}, 0\ns_cselect_b32 s53, {9-pk}, s53\ns_cselect_b32 s54, {9-pk-2}, s54\ns_cselect_b32 s55, {9-pk-1}, s55\ns_cselect_b32 s81, {9-pk-2}, s81")
    A(f"s_cmp_eq_u32 s{S_J}, 1\ns_cselect_b32 s53, {opt('FWPOLL', 1)}, s53")
    A(f"s_cmp_ge_u32 s{S_J}, 2\ns_cselect_b32 s82, 6, s82\ns_cselect_b32 s79, 3, s79\ns_cselect_b32 s83, 1, s83")
    A("s_mov_b32 s51, 7")
    A("L_ld_loop:")
    A("s_cmp_eq_u32 s51, s54\ns_cbranch_scc1 L_ld_h2\nL_ld_h2_ret:")
    chunk(49)
    A("s_cmp_eq_u32 s51, s79\ns_cbranch_scc1 L_ld_h3\nL_ld_h3_ret:")
    A("s_cmp_eq_u32 s51, s53\ns_cbranch_scc1 L_ld_h1\nL_ld_h1_ret:")
    A("s_cmp_eq_u32 s51, s81\ns_cbranch_scc1 L_ld_h4\nL_ld_h4_ret:")
    A("s_cmp_eq_u32 s51, s82\ns_cbranch_scc1 L_ld_h2w\nL_ld_h2w_ret:")
    A("s_cmp_lt_u32 s51, s55\ns_cbranch_scc1 L_ld_w25")
    A("s_cmp_eq_u32 s83, 0\ns_cbranch_scc1 L_ld_w8")
    A("s_cmp_eq_u32 s51, 6\ns_cbranch_scc1 L_ld_wW\ns_cmp_eq_u32 s51, 5\ns_cbranch_scc1 L_ld_wW")
    A("s_cmp_eq_u32 s51, 3\ns_cbranch_scc1 L_ld_w9\ns_cmp_eq_u32 s51, 2\ns_cbranch_scc1 L_ld_w9")
    A("L_ld_w8:\ns_waitcnt vmcnt(8)\ns_branch L_ld_wd")
    A("L_ld_wW:\ns_cmp_ge_u32 s59, 54\ns_cbranch_scc1 L_ld_w9\ns_waitcnt vmcnt(14)\ns_branch L_ld_wd\nL_ld_w9:\ns_waitcnt vmcnt(9)\ns_branch L_ld_wd")
    A("L_ld_w25:\ns_waitcnt vmcnt(17)\nL_ld_wd:")
    stamp(A)
    A("s_barrier")
    stamp(A)
    A("s_sub_u32 s51, s51, 1\ns_cmp_lg_u32 s51, 0\ns_cbranch_scc1 L_ld_loop")
    A("s_waitcnt vmcnt(0)")
    if not opt("WLATE", 1):
        A(f"s_cmp_eq_u32 s{S_J}, 1\ns_cbranch_scc0 L_ld_no1")
        spin(A, "L_ld_spw", 48, 11, 32, xcc=True)
        spin(A, "L_ld_spf", 50, 59, 32, xcc=True)
        A("L_ld_no1:")
    A(f"s_cmp_eq_u32 s{S_J}, 0\ns_cbranch_scc0 L_ld_nored")
    for b_ in range(1, 8):
        for k in range(4): A(f"v_add_f32 v{16+k}, v{16+k}, v{16+4*b_+k}")
    for k in range(4): A(f"v_mov_b32 v{20+k}, v{16+k}")
    A("s_nop 1")
    for k in range(4): A(f"v_permlane32_swap_b32 v{16+k}, v{20+k}")
    A("s_nop 0")
    for k in range(4): A(f"v_add_f32 v{16+k}, v{16+k}, v{20+k}")
    A(f"v_add_u32 v13, {LCS}, v13\nds_write_b128 v13, v[16:19]\ns_waitcnt lgkmcnt(0)")
    A("L_ld_nored:")
    A("s_barrier")
    stamp(A)
    A("s_barrier")
    A("s_branch L_ld_p2")
    A("L_ld_h1:")
    A(f"s_cmp_eq_u32 s{S_J}, 1\ns_cbranch_scc1 L_ld_h1f")
    A(f"buffer_load_dwordx2 v[14:15], v12, s[32:35], 0 offen {SC}")
    A("s_branch L_ld_h1_ret")
    A("L_ld_h1f:")
    A(f"buffer_load_dwordx2 v[48:49], v11, s[32:35], 0 offen {SC}")
    A(f"buffer_load_dwordx2 v[50:51], v59, s[32:35], 0 offen {SC}")
    A("s_branch L_ld_h1_ret")
    A("L_ld_h1w:")
    if opt("NOW"): A("s_branch L_ld_h1w_ret")
    A("s_cmp_ge_u32 s59, 54\ns_cbranch_scc1 L_ld_h1w_ret")
    srd(A, 84, W2, W2_BYTES)
    A(f"s_mul_i32 s50, s59, 40960\ns_mul_i32 s62, s{S_CT}, 160\ns_add_u32 s50, s50, s62")
    A(f"s_mul_i32 s62, s58, 5120\ns_add_u32 s62, s62, {LW}")
    for q in range(5):
        A(f"s_add_u32 m0, s62, {1024*q}\ns_nop 0")
        A(f"buffer_load_dwordx4 v{52+q}, s[84:87], s50 offen lds")
    A("s_branch L_ld_h1w_ret")
    A("L_ld_h2:")
    spin(A, "L_ld_sp", 14, 12, 32, xcc=True)
    A(f"v_and_b32 v50, 16, v1\nv_cmp_eq_u32 s[60:61], 0, v50\nv_cmp_ne_u32 vcc, s{S_XCC}, v15\ns_nop 3\ns_and_b64 vcc, vcc, s[60:61]")
    A(f"s_cmp_eq_u64 vcc, 0\ns_cselect_b32 s62, {1 if opt('LOCALH', 2) and opt('MAP1', 1) else 0}, 0")
    A(f"v_mov_b32 v50, {LCNT + 12}\nv_mov_b32 v51, s62\nds_write_b32 v50, v51")
    A("s_branch L_ld_h2_ret")
    A("L_ld_h4:")
    A(f"s_lshl_b32 s50, s{S_B}, 10\ns_add_u32 s50, s50, {ST_OFF}\ns_mov_b32 m0, {LST}\nv_lshlrev_b32 v13, 4, v1")
    A(f"buffer_load_dwordx4 v13, s[36:39], s50 offen {SC} lds")
    A(f"s_lshl_b32 s50, s{S_F0}, 2\ns_add_u32 s50, s50, {CS_OFF}")
    A("v_and_b32 v13, 31, v1\nv_lshlrev_b32 v13, 4, v13\nv_lshrrev_b32 v14, 5, v1\nv_lshlrev_b32 v14, 13, v14\nv_add_u32 v14, v13, v14")
    for b_ in range(8):
        A(f"buffer_load_dwordx4 v[{16+4*b_}:{19+4*b_}], v14, s[36:39], s50 offen {SC}")
        if b_ < 7: A("s_add_u32 s50, s50, 16384")
    A("s_branch L_ld_h4_ret")
    A("L_ld_h2w:")
    A(f"v_lshlrev_b32 v22, 4, v1\nbuffer_store_dwordx4 v[60:63], v22, s[32:35], s63 offen {SC}")
    if opt("NOW"): A("s_branch L_ld_h2w_ret")
    A("s_cmp_ge_u32 s59, 54\ns_cbranch_scc1 L_ld_h2w_ret")
    for n in range(5):
        A(f"ds_read_b64_tr_b16 v[{24+4*n}:{25+4*n}], v57 offset:{32*n}")
        A(f"ds_read_b64_tr_b16 v[{26+4*n}:{27+4*n}], v57 offset:{32*n+1280}")
    A(f"s_mul_i32 s50, s{S_CT}, 54\ns_add_u32 s50, s50, s59\ns_mul_i32 s50, s50, 5120\ns_add_u32 s50, s50, {W2F_OFF}")
    A("v_add_u32 v23, 4096, v22\ns_waitcnt lgkmcnt(0)")
    for n in range(4):
        A(f"buffer_store_dwordx4 v[{24+4*n}:{27+4*n}], v22, s[32:35], s50 offen offset:{1024*n} {SC}")
    A(f"buffer_store_dwordx4 v[40:43], v23, s[32:35], s50 offen {SC}")
    A("s_branch L_ld_h2w_ret")
    A("L_ld_h3:")
    store_flags(A, 58, 2, 32, 64, xcc=True)
    A("s_branch L_ld_h3_ret")
    A("L_ld_p2:")
    stamp(A, 3)
    if opt("P1ONLY"):
        stamp_flush(A, 0, WS, 9)
        A("s_endpgm")
    if opt("WLATE", 1):
        A(f"v_mov_b32 v16, {LCNT + 20}")
        A(f"s_cmp_eq_u32 s{S_J}, 1\ns_cbranch_scc0 L_ld_ww")
        spin(A, "L_ld_spw", 48, 11, 32, xcc=True)
        spin(A, "L_ld_spf", 50, 59, 32, xcc=True)
        A("v_mov_b32 v17, 1\nds_write_b32 v16, v17\ns_waitcnt lgkmcnt(0)\ns_branch L_ld_wgo")
        A("L_ld_ww:\nds_read_b32 v17, v16\ns_waitcnt lgkmcnt(0)\ns_nop 0\nv_readfirstlane_b32 s50, v17\ns_nop 3\ns_cmp_eq_u32 s50, 1\ns_cbranch_scc1 L_ld_wgo")
        A(f"s_sub_u32 s{S_SPIN}, s{S_SPIN}, 1\ns_cmp_eq_u32 s{S_SPIN}, 0\ns_cbranch_scc0 L_ld_ww")
        A("L_ld_wgo:")
    p2(A)

def p2(A):
    J = S_J
    HSC = "" if opt("HPLAIN") else SC
    WSC = "" if opt("WPLAIN") else SC
    if opt("W2NT"): WSC += " nt"
    ACC = 16
    SET = [96, 132, 168]
    XR = 204
    VP = 214
    acc = lambda nt, a: ACC + 4 * (4 * nt + a)
    srd(A, 24, WS, WS_USED)
    srd(A, 28, WS, 4 * HF_TILE)
    A(f"s_mul_i32 s50, s{S_T0}, {4*HF_TILE}")
    if HF_OFF: A(f"s_add_u32 s50, s50, {HF_OFF}")
    A("s_add_u32 s28, s28, s50\ns_addc_u32 s29, s29, 0")
    srd(A, 32, X_, X_BYTES)
    srd(A, 40, OUT, X_BYTES)
    A("v_lshlrev_b32 v2, 4, v1\nv_add_u32 v3, 4096, v2")
    for a_ in range(4):
        A(f"s_add_u32 s50, s{J}, {a_}\ns_and_b32 s50, s50, 3\ns_mul_i32 s50, s50, {HF_TILE}\nv_add_u32 v{4+a_}, s50, v2")
    RSTR = 336
    A(f"s_lshl_b32 s50, s{J}, 6\nv_add_u32 v8, s50, v1")
    A(f"s_mov_b32 s50, 3277\ns_mul_i32 s38, s{S_T0}, 1280\ns_mul_i32 s39, s{S_CT}, 160\ns_add_u32 s38, s38, s39")
    for n in range(5):
        A(f"v_add_u32 v9, {256*n}, v8\nv_mul_lo_u32 v10, s50, v9\nv_lshrrev_b32 v10, 16, v10")
        A("v_mul_u32_u24 v11, 20, v10\nv_sub_u32 v11, v9, v11")
        A(f"v_mul_u32_u24 v12, {RSTR}, v10\nv_lshlrev_b32 v13, 4, v11\nv_add_u32 v{220+n}, v12, v13")
        A("v_lshrrev_b32 v12, 5, v10\nv_mul_u32_u24 v12, 40960, v12\nv_and_b32 v10, 31, v10\nv_mul_u32_u24 v10, 81920, v10")
        A(f"v_lshlrev_b32 v11, 3, v11\nv_add3_u32 v{225+n}, v10, v12, v11")
    A(f"v_and_b32 v9, 15, v1\nv_mul_u32_u24 v9, {RSTR}, v9\nv_lshrrev_b32 v10, 4, v1\nv_lshlrev_b32 v10, 4, v10\nv_add_u32 v230, v9, v10")
    rotn = opt("ROT2", 2)
    A(f"s_and_b32 s50, s{S_T0}, {rotn - 1 if rotn else 0}\ns_mul_i32 s50, s50, {14 // rotn if rotn else 0}")
    A(f"s_lshl_b32 s50, s50, 2\ns_add_u32 s44, s50, s{J}\ns_mov_b32 s45, s44")
    A(f"s_mul_i32 s49, s{S_CT}, {54*5120}\ns_add_u32 s49, s49, {W2F_OFF}")
    def adv(r):
        A(f"s_add_u32 s{r}, s{r}, 4\ns_cmp_ge_u32 s{r}, 54\ns_cselect_b32 s{r}, s{J}, s{r}")
    def loadB(si):
        b = SET[si]
        A("s_mul_i32 s50, s44, 5120\ns_add_u32 s50, s50, s49")
        for n in range(4):
            A(f"buffer_load_dwordx4 v[{b+4*n}:{b+4*n+3}], v2, s[24:27], s50 offen offset:{1024*n} {WSC}")
        A(f"buffer_load_dwordx4 v[{b+16}:{b+19}], v3, s[24:27], s50 offen {WSC}")
        adv(44)
    def loadA(si, tstep=False):
        b = SET[si] + 20
        if tstep:
            A(f"s_add_u32 s50, s{J}, 2\ns_and_b32 s50, s50, 3\ns_add_u32 s50, s50, 54\ns_lshl_b32 s50, s50, 10")
        else:
            A("s_lshl_b32 s50, s45, 10")
        for a_ in range(4):
            A(f"buffer_load_dwordx4 v[{b+4*a_}:{b+4*a_+3}], v{4+a_}, s[28:31], s50 offen {HSC}")
        if not tstep: adv(45)
    def loadT(si):
        b = SET[si]
        A("s_mov_b32 s50, s46")
        for n in range(5):
            A(f"buffer_load_dwordx4 v[{b+4*n}:{b+4*n+3}], v10, s[24:27], s50 offen {SC}")
            if n < 4: A("s_add_u32 s50, s50, s47")
    def mfmas(si):
        b = SET[si]
        for a_ in range(4):
            for nt in range(5):
                c = acc(nt, a_)
                if not opt("NOCOMP2"):
                    A(f"{MFMA16} v[{c}:{c+3}], v[{b+4*nt}:{b+4*nt+3}], v[{b+20+4*a_}:{b+23+4*a_}], v[{c}:{c+3}]")
    def last_step(si):
        b = SET[si]
        def grp(a_):
            for nt in range(5):
                c = acc(nt, a_)
                if not opt("NOCOMP2"):
                    A(f"{MFMA16} v[{c}:{c+3}], v[{b+4*nt}:{b+4*nt+3}], v[{b+20+4*a_}:{b+23+4*a_}], v[{c}:{c+3}]")
        def addr(a_):
            A(f"s_add_u32 s50, s{J}, {a_}\ns_and_b32 s50, s50, 3\ns_mul_i32 s50, s50, {16*336}\ns_mul_i32 s51, s{J}, {64*336}\ns_add_u32 s50, s50, s51\nv_add_u32 v{232+a_}, s50, v230")
        def wr(a_):
            for nt in range(5):
                c = acc(nt, a_)
                A(f"ds_write_b128 v{232+a_}, v[{c}:{c+3}] offset:{nt*64}")
        grp(0); addr(0); addr(1); grp(1); addr(2); wr(0); grp(2); addr(3); wr(1); grp(3); A("s_nop 3"); wr(2); A("s_nop 3"); wr(3)
    def xorA(si):
        b = SET[si] + 20
        for k in range(16): A(f"v_xor_b32 v{b+k}, s48, v{b+k}")
        A("s_nop 0")
    NB0 = opt("NB0", 1)
    for si in range(NB0): loadB(si)
    for i in range(80): A(f"v_mov_b32 v{ACC+i}, 0")
    A(f"v_lshrrev_b32 v10, 4, v1\nv_mul_u32_u24 v10, {TF_ROW}, v10\nv_and_b32 v11, 15, v1")
    A(f"s_mul_i32 s50, s{S_CT}, 80\nv_add_u32 v12, s50, v11\nv_sub_u32 v13, 576, v12")
    A(f"s_cmp_lt_u32 s{S_CT}, 4\ns_cselect_b64 s[60:61], -1, 0\nv_cndmask_b32 v12, v13, v12, s[60:61]")
    A("v_lshlrev_b32 v12, 4, v12\nv_add_u32 v10, v10, v12")
    A(f"s_sub_u32 s46, 32, s{S_T0}\ns_and_b32 s46, s46, 31\ns_cmp_lt_u32 s{S_CT}, 4\ns_cselect_b32 s46, s{S_T0}, s46")
    A(f"s_mul_i32 s46, s46, {TF_T0}\ns_add_u32 s46, s46, {TF_OFF}")
    A(f"s_mov_b32 s47, 256\ns_mov_b32 s50, -256\ns_cmp_lt_u32 s{S_CT}, 4\ns_cselect_b32 s47, s47, s50\ns_cselect_b32 s50, 0, 1024\ns_cselect_b32 s48, 0x80000000, 0")
    A("s_add_u32 s46, s46, s50")
    A(f"s_add_u32 s50, s{J}, 2\ns_and_b32 s50, s50, 3\ns_mul_i32 s50, s50, {4*TF_ROW}\ns_add_u32 s46, s46, s50")
    A(f"s_lshl_b32 s50, s{S_CT}, 10\ns_add_u32 s50, s50, {FT_OFF}\nv_lshlrev_b32 v12, 3, v1\nv_add_u32 v12, s50, v12")
    A("v_and_b32 v13, 15, v1\nv_lshlrev_b32 v13, 3, v13\nv_add_u32 v13, s50, v13\nv_add_u32 v13, 512, v13")
    A(f"s_cmp_eq_u32 s{J}, 0\ns_cbranch_scc0 L_p2_lw")
    A(f"s_lshr_b32 s50, s{S_T0}, 1\ns_lshl_b32 s50, s50, 7\ns_add_u32 s50, s50, {FH_OFF}")
    A("v_and_b32 v14, 15, v1\nv_lshlrev_b32 v14, 3, v14\nv_add_u32 v11, s50, v14")
    A(f"buffer_load_dwordx2 v[{VP}:{VP+1}], v11, s[24:27], 0 offen {SC}\ns_waitcnt vmcnt(0)")
    if opt("SPINSTAMP") == "L_p2_sp1": stamp(A)
    spin(A, "L_p2_sp1", VP, 11, 24, xcc=True)
    A(f"v_mov_b32 v14, {LCNT + 16}\nv_mov_b32 v15, 1\nds_write_b32 v14, v15\ns_waitcnt lgkmcnt(0)")
    A("s_branch L_p2_go")
    A("L_p2_lw:")
    if opt("P2ONLY"): A("s_branch L_p2_go")
    A(f"v_mov_b32 v14, {LCNT + 16}")
    A("L_p2_lw1:\nds_read_b32 v15, v14\ns_waitcnt lgkmcnt(0)\ns_nop 0\nv_readfirstlane_b32 s50, v15\ns_nop 3\ns_cmp_eq_u32 s50, 1\ns_cbranch_scc1 L_p2_go")
    A(f"s_sleep 1\ns_sub_u32 s{S_SPIN}, s{S_SPIN}, 1\ns_cmp_eq_u32 s{S_SPIN}, 0\ns_cbranch_scc0 L_p2_lw1")
    A("L_p2_go:")
    stamp(A, 5)
    for si in range(NB0): loadA(si)
    for si in range(NB0, 3):
        loadB(si); loadA(si)
    def loadX():
        for n in range(5):
            A(f"buffer_load_dwordx2 v[{XR+2*n}:{XR+2*n+1}], v{225+n}, s[32:35], s38 offen")
    XLATE = opt("XLATE", 1)
    if not XLATE: loadX()
    def step(si, vm, pre):
        A(f"s_waitcnt vmcnt({vm})")
        mfmas(si)
        pre()
    reg = lambda si: (lambda: (loadB(si), loadA(si)))
    order = [(si, 4) for si in range(NB0)] + [(si, 9) for si in range(NB0, 3)] + ([] if XLATE else [(-1, 5)])
    for st_ in range(3):
        idx = max(i for i, (si, n) in enumerate(order) if si == st_)
        younger = sum(n for (si, n) in order[idx+1:]) + 9 * st_
        step(st_, younger, reg(st_))
        if opt("STEPSTAMP"): stamp(A)
    stamp(A)
    A("s_mov_b32 s51, 2")
    A("L_p2_loop:")
    for si in range(3):
        step(si, 18, reg(si))
        if opt("STEPSTAMP"): stamp(A)
    A("s_cmp_eq_u32 s51, 2\ns_cbranch_scc0 L_p2_nt")
    A(f"buffer_load_dwordx2 v[{VP}:{VP+1}], v12, s[24:27], 0 offen {SC}\nbuffer_load_dwordx2 v[{VP+2}:{VP+3}], v13, s[24:27], 0 offen {SC}")
    A("L_p2_nt:")
    A("s_sub_u32 s51, s51, 1\ns_cmp_lg_u32 s51, 0\ns_cbranch_scc1 L_p2_loop")
    stamp(A)
    step(0, 18, reg(0))
    spin(A, "L_p2_sp2", VP, 12, 24)
    spin(A, "L_p2_sp3", VP + 2, 13, 24)
    A(f"s_cmp_eq_u32 s2, 0\ns_cbranch_scc0 L_p2_noep\ns_cmp_eq_u32 s{J}, 0\ns_cbranch_scc0 L_p2_noep")
    A(f"v_mov_b32 v14, s{S_E}\nv_mov_b32 v15, {EP_OFF}\ns_mov_b64 exec, 1\nbuffer_store_dword v14, v15, s[24:27], 0 offen {SC}\ns_mov_b64 exec, -1")
    A("L_p2_noep:")
    stamp(A)
    A(f"s_cmp_lt_u32 s{J}, 2\ns_cbranch_scc0 L_p2_hi")
    step(1, 18, reg(1))
    step(2, 18, lambda: (loadT(2), loadA(2, True), loadX() if XLATE else None))
    xq = 5 if XLATE else 0
    step(0, 18 + xq, lambda: None)
    step(1, 9 + xq, lambda: None)
    A(f"s_waitcnt vmcnt({xq})"); xorA(2); last_step(2)
    A("s_branch L_p2_red")
    A("L_p2_hi:")
    step(1, 18, lambda: (loadT(1), loadA(1, True), loadX() if XLATE else None))
    step(2, 18 + xq, lambda: None)
    step(0, 9 + xq, lambda: None)
    A(f"s_waitcnt vmcnt({xq})"); xorA(1); last_step(1)
    A("L_p2_red:")
    stamp(A)
    A("s_waitcnt lgkmcnt(0)\ns_barrier")
    R0 = 96
    def rd(n):
        for w in range(4):
            r = R0 + 16 * n + 4 * w
            A(f"ds_read_b128 v[{r}:{r+3}], v{220+n} offset:{w*64*336}")
    rd(0); rd(1); rd(2)
    OSC = SC if opt("OUTSC") else ""
    for n in range(5):
        r = R0 + 16 * n; x = XR + 2 * n
        if n == 0: A("s_waitcnt vmcnt(0) lgkmcnt(8)")
        elif n == 1: A("s_waitcnt lgkmcnt(8)")
        elif n == 2: A("s_waitcnt lgkmcnt(8)")
        elif n == 3: A("s_waitcnt lgkmcnt(4)")
        else: A("s_waitcnt lgkmcnt(0)")
        A(f"v_pk_add_f32 v[{r}:{r+1}], v[{r}:{r+1}], v[{r+4}:{r+5}]\nv_pk_add_f32 v[{r+2}:{r+3}], v[{r+2}:{r+3}], v[{r+6}:{r+7}]")
        A(f"v_pk_add_f32 v[{r+8}:{r+9}], v[{r+8}:{r+9}], v[{r+12}:{r+13}]\nv_pk_add_f32 v[{r+10}:{r+11}], v[{r+10}:{r+11}], v[{r+14}:{r+15}]")
        if n + 3 < 5: pass
        A(f"v_lshlrev_b32 v{r+4}, 16, v{x}\nv_and_b32 v{r+5}, 0xffff0000, v{x}\nv_lshlrev_b32 v{r+6}, 16, v{x+1}\nv_and_b32 v{r+7}, 0xffff0000, v{x+1}")
        A(f"v_pk_add_f32 v[{r}:{r+1}], v[{r}:{r+1}], v[{r+8}:{r+9}]\nv_pk_add_f32 v[{r+2}:{r+3}], v[{r+2}:{r+3}], v[{r+10}:{r+11}]")
        A(f"v_pk_add_f32 v[{r}:{r+1}], v[{r}:{r+1}], v[{r+4}:{r+5}]\nv_pk_add_f32 v[{r+2}:{r+3}], v[{r+2}:{r+3}], v[{r+6}:{r+7}]")
        A(f"v_cvt_pk_bf16_f32 v{x}, v{r}, v{r+1}\nv_cvt_pk_bf16_f32 v{x+1}, v{r+2}, v{r+3}")
        A(f"buffer_store_dwordx2 v[{x}:{x+1}], v{225+n}, s[40:43], s38 offen {OSC}")
        if n == 0: rd(3)
        if n == 1: rd(4)
    stamp(A)
    if opt("CLK") and asmlib.PROFILE:
        A("s_memtime s[90:91]\ns_waitcnt lgkmcnt(0)\ns_sub_u32 s90, s90, s88\ns_mov_b32 m0, 62\nv_writelane_b32 v0, s90, m0")
    stamp_flush(A, 0, WS, 9)
    A("s_endpgm")

def gen(A, name):
    global KNAME
    KNAME = name
    kernel_head(A, name)
    entry(A)
    if opt("P2ONLY"):
        A(f"s_mov_b32 s{S_SPIN}, 1\ns_cmp_lt_u32 s3, 4\ns_cbranch_scc1 L_end\ns_sub_u32 s{S_J}, s3, 4\ns_waitcnt lgkmcnt(0)\ns_branch L_ld_p2")
    A("s_cmp_ge_u32 s3, 4\ns_cbranch_scc1 L_loader")
    jobs_issue(A)
    A(f"s_cmp_lt_u32 s{S_C}, 5\ns_cbranch_scc1 L_mx")
    p1_hh(A)
    p1_mx(A)
    loader(A)
    A("L_end:\ns_endpgm\nL_code_end:")
```

```python
from asmlib import *
import asmlib
from layout import *

MFMA32 = "v_mfma_f32_32x32x16_bf16"
MFMA16 = "v_mfma_f32_16x16x32_bf16"
RING = 32768; NS = 4
SLOT = 20480; NS2 = 6
LX = NS2 * SLOT
LW = 132 * 1024
LST = 152 * 1024
LCS = LST + 1024
LCNT = LST + 2048
LDS_TOTAL = LCNT + 64
X_, SRE, SIM, HRE, HIM, WS = 4, 6, 8, 10, 12, 16
W1, W2, OUT, DBG = 64, 66, 68, 70
S_B, S_C, S_F0, S_J = 18, 19, 20, 21
S_T0, S_CT = 72, 73
S_SPIN = 74
SC = "sc1"
SPIN_MAX = 200000
CPW = 3

MAGIC = 0x5A3C96E1
S_E, S_EM = 75, 76
S_XCC = 77
S_LOCAL = 78

def spin(A, name, vp, vaddr, srdp, xcc=False):
    A(f"{name}:")
    if xcc:
        A(f"v_xor_b32 v{vp+1}, s{S_EM}, v{vp+1}\nv_cmp_ne_u32 vcc, s{S_E}, v{vp}\nv_cmp_lt_u32 s[60:61], 15, v{vp+1}\ns_nop 3\ns_or_b64 vcc, vcc, s[60:61]")
    else:
        A(f"v_cmp_ne_u32 vcc, s{S_E}, v{vp}\nv_cmp_ne_u32 s[60:61], s{S_EM}, v{vp+1}\ns_nop 3\ns_or_b64 vcc, vcc, s[60:61]")
    A(f"s_cbranch_vccz {name}_ok")
    if opt("P2ONLY"): A(f"s_branch {name}_ok")
    A(f"s_sub_u32 s{S_SPIN}, s{S_SPIN}, 1\ns_cmp_eq_u32 s{S_SPIN}, 0\ns_cbranch_scc1 {name}_ok")
    A(f"s_sleep {opt('SLEEP', 4)}")
    A(f"buffer_load_dwordx2 v[{vp}:{vp+1}], v{vaddr}, s[{srdp}:{srdp+3}], 0 offen {SC}\ns_waitcnt vmcnt(0)")
    if opt("SPINSTAMP") == name: stamp(A)
    A(f"s_branch {name}\n{name}_ok:")

def store_flags(A, vaddr, nlanes, srdp, vt, xcc=False, local=None):
    if xcc:
        A(f"s_xor_b32 s62, s{S_EM}, s{S_XCC}\nv_mov_b32 v{vt}, s{S_E}\nv_mov_b32 v{vt+1}, s62\ns_mov_b64 exec, {(1 << nlanes) - 1}")
    else:
        A(f"v_mov_b32 v{vt}, s{S_E}\nv_mov_b32 v{vt+1}, s{S_EM}\ns_mov_b64 exec, {(1 << nlanes) - 1}")
    if local:
        A(f"s_cmp_eq_u32 s{S_LOCAL}, 1\ns_cbranch_scc1 {local}_fp")
    A(f"buffer_store_dwordx2 v[{vt}:{vt+1}], v{vaddr}, s[{srdp}:{srdp+3}], 0 offen {SC}")
    if local:
        A(f"s_branch {local}_fd\n{local}_fp:")
        A(f"buffer_store_dwordx2 v[{vt}:{vt+1}], v{vaddr}, s[{srdp}:{srdp+3}], 0 offen")
        A(f"{local}_fd:")
    A("s_mov_b64 exec, -1")

def flag_addr_h(A, v):
    A(f"s_lshl_b32 s62, s{S_B}, 4\ns_add_u32 s62, s62, s{S_C}\ns_lshl_b32 s62, s62, 3\ns_add_u32 s62, s62, {FH_OFF}\nv_mov_b32 v{v}, s62")
def flag_addr_t(A, v):
    A(f"s_lshl_b32 s62, s{S_C}, 4\ns_add_u32 s62, s62, s{S_B}\ns_lshl_b32 s62, s62, 3\ns_add_u32 s62, s62, {FT_OFF}")
    A(f"v_lshlrev_b32 v{v}, 10, v1\nv_add_u32 v{v}, s62, v{v}")
def flag_addr_early(A, v):
    A(f"s_lshl_b32 s62, s{S_B}, 4\ns_add_u32 s62, s62, s{S_C}\ns_lshl_b32 s62, s62, 3\ns_add_u32 s58, s62, {FR1_OFF}")
    A(f"s_lshl_b32 s62, s{S_C}, 4\ns_add_u32 s62, s62, s{S_B}\ns_lshl_b32 s62, s62, 3\ns_add_u32 s62, s62, {FC1_OFF}")
    A(f"s_cmp_eq_u32 s3, 1\ns_cselect_b32 s58, s62, s58\nv_mov_b32 v{v}, s58")

def epoch_ready(A):
    A("s_waitcnt lgkmcnt(0)")
    A(f"s_add_u32 s{S_E}, s{S_E}, 1\ns_xor_b32 s{S_EM}, s{S_E}, {MAGIC}")
    srd(A, 48, WS, WS_USED)

def lds_arrive(A, word, vt, sdst):
    A(f"v_mov_b32 v{vt}, {LCNT + 4*word}\nv_mov_b32 v{vt+1}, 1\ns_mov_b64 exec, 1")
    A(f"ds_add_rtn_u32 v{vt+1}, v{vt}, v{vt+1}\ns_waitcnt lgkmcnt(0)\ns_mov_b64 exec, -1\ns_nop 0")
    A(f"v_readfirstlane_b32 s{sdst}, v{vt+1}")
    A("s_nop 3")

def entry(A):
    A("s_cmp_ge_u32 s2, 256\ns_cbranch_scc1 L_end")
    A(f"s_load_dwordx4 s[4:7], s[0:1], {KA_X}")
    A(f"s_load_dwordx4 s[8:11], s[0:1], {KA_SIM}")
    A(f"s_load_dwordx2 s[12:13], s[0:1], {KA_HIM}")
    A(f"s_load_dwordx4 s[64:67], s[0:1], {KA_W1}")
    A(f"s_load_dwordx4 s[68:71], s[0:1], {KA_OUT}")
    A(f"s_load_dwordx2 s[16:17], s[0:1], {KA_WS}")
    A("v_lshrrev_b32 v2, 6, v0\nv_and_b32 v1, 63, v0\ns_nop 0\nv_readfirstlane_b32 s3, v2")
    if opt("CODEPF", 1):
        A(f"s_nop 3\ns_cmp_eq_u32 s3, {CPW}\ns_cbranch_scc0 L_nocp")
        A("s_getpc_b64 s[50:51]\nJ_pc:")
        A(f"s_sub_u32 s50, s50, J_pc-{KNAME}\ns_subb_u32 s51, s51, 0")
        mode = opt("CPMODE", 1)
        A(f"s_mov_b32 s52, ((L_code_end-{KNAME})>>7)-1")
        if mode == 0:
            A("s_lshr_b32 s53, s2, 3\ns_mul_i32 s53, s53, 6\nv_add_u32 v22, s53, v1\nv_min_u32 v22, s52, v22\nv_lshlrev_b32 v22, 7, v22")
            A("v_mov_b32 v23, s51\nv_add_co_u32 v22, vcc, s50, v22\ns_nop 1\nv_addc_co_u32 v23, vcc, 0, v23, vcc")
            A("s_mov_b64 exec, 63\nglobal_load_dword v127, v[22:23], off\ns_mov_b64 exec, -1")
        else:
            for n in range(3):
                A(f"v_add_u32 v22, {64*n}, v1\nv_min_u32 v22, s52, v22\nv_lshlrev_b32 v22, 7, v22")
                A("v_mov_b32 v23, s51\nv_add_co_u32 v22, vcc, s50, v22\ns_nop 1\nv_addc_co_u32 v23, vcc, 0, v23, vcc")
                A(f"global_load_dword v{125+n}, v[22:23], off")
        A("L_nocp:")
    A("s_and_b32 s24, s2, 7\ns_lshr_b32 s25, s2, 3\ns_lshr_b32 s27, s25, 3\ns_and_b32 s28, s25, 7")
    if opt("MAP1", 1):
        A(f"s_lshl_b32 s26, s24, 1\ns_lshr_b32 s29, s25, 4\ns_add_u32 s{S_B}, s26, s29\ns_and_b32 s{S_C}, s25, 15")
    else:
        A(f"s_lshr_b32 s26, s24, 1\ns_lshl_b32 s26, s26, 2\ns_add_u32 s{S_B}, s26, s27")
        A(f"s_and_b32 s26, s24, 1\ns_lshl_b32 s26, s26, 3\ns_add_u32 s{S_C}, s26, s28")
    A(f"s_lshl_b32 s26, s{S_C}, 6\ns_lshl_b32 s29, s{S_C}, 7\ns_sub_u32 s29, s29, 320")
    A(f"s_cmp_lt_u32 s{S_C}, 5\ns_cselect_b32 s{S_F0}, s26, s29")
    A(f"s_lshl_b32 s24, s24, 2\ns_add_u32 s{S_T0}, s24, s27\ns_mov_b32 s{S_CT}, s28")
    A(f"s_mov_b32 s{S_SPIN}, {SPIN_MAX}")
    A(f"s_getreg_b32 s{S_XCC}, hwreg(HW_REG_XCC_ID)\ns_and_b32 s{S_XCC}, s{S_XCC}, 15")
    stamp_init(A)
    if opt("T0STAMP"): stamp(A, force=True)
    if opt("P2ONLY"): args_ready(A)

def args_ready(A):
    A("s_waitcnt lgkmcnt(0)")
    if opt("CLK"): A("s_memtime s[88:89]\ns_waitcnt lgkmcnt(0)")
    A(f"s_mov_b32 s62, {EP_OFF}\ns_load_dword s{S_E}, s[{WS}:{WS+1}], s62")
    stamp(A, 0, force=True)

def jobs_issue(A):
    A("s_cmp_eq_u32 s3, 0\ns_cbranch_scc1 J_x_i\ns_cmp_eq_u32 s3, 1\ns_cbranch_scc1 J_c_i")
    args_ready(A)
    srd(A, 36, WS, WS_USED)
    if opt("TLBPF", 1):
        A("s_cmp_eq_u32 s3, 2\ns_cbranch_scc0 J_i_done")
        srd(A, 40, OUT, X_BYTES); srd(A, 44, W2, W2_BYTES)
        A("v_lshlrev_b32 v22, 20, v1")
        A(f"s_mov_b64 exec, {(1 << ((WS_USED >> 20) + 1)) - 1}\nbuffer_load_dword v125, v22, s[36:39], 0 offen {SC}")
        A(f"s_mov_b64 exec, 7\nbuffer_load_dword v126, v22, s[40:43], 0 offen {SC}\nbuffer_load_dword v127, v22, s[44:47], 0 offen\ns_mov_b64 exec, -1")
    A("s_branch J_i_done")
    A("J_x_i:")
    A(f"s_lshr_b32 s48, s{S_C}, 2\ns_and_b32 s49, s{S_C}, 3")
    A(f"s_lshl_b32 s50, s{S_B}, 1\ns_and_b32 s51, s48, 1\ns_add_u32 s50, s50, s51")
    A("s_lshr_b32 s51, s48, 1\ns_lshl_b32 s51, s51, 5\ns_add_u32 s50, s50, s51")
    A("s_lshl_b32 s51, s49, 9\ns_add_u32 s50, s50, s51\ns_mul_i32 s50, s50, 1280")
    A("v_lshrrev_b32 v22, 3, v1\ns_mov_b32 s51, 81920\nv_mul_lo_u32 v22, s51, v22")
    A("v_and_b32 v23, 7, v1\nv_lshlrev_b32 v23, 4, v23\nv_add_u32 v22, v22, v23")
    A(f"v_mov_b32 v20, {LCNT}\nv_mov_b32 v24, 0\nv_mov_b32 v25, 0\nv_mov_b32 v26, 0\nv_mov_b32 v27, 0\nds_write_b128 v20, v[24:27]\nds_write_b128 v20, v[24:27] offset:16")
    args_ready(A)
    srd(A, 24, X_, X_BYTES)
    for i in range(10):
        A(f"buffer_load_dwordx4 v[{32+4*i}:{35+4*i}], v22, s[24:27], s50 offen offset:{128*i}")
    srd(A, 36, WS, WS_USED)
    A("s_branch J_i_done")
    A("J_c_i:")
    A("v_lshrrev_b32 v22, 4, v1\nv_mul_u32_u24 v22, 3456, v22\nv_and_b32 v23, 15, v1\nv_lshlrev_b32 v23, 4, v23\nv_add_u32 v22, v22, v23")
    A(f"s_mul_i32 s50, s{S_B}, {40*3456}\ns_lshl_b32 s51, s{S_F0}, 1\ns_add_u32 s50, s50, s51")
    A(f"s_cmp_eq_u32 s{S_C}, 0\ns_cbranch_scc0 J_c_np")
    A("v_and_b32 v23, 7, v1\nv_lshlrev_b32 v23, 4, v23\nv_bfe_u32 v24, v1, 3, 2\nv_lshlrev_b32 v24, 15, v24\nv_add_u32 v23, v23, v24")
    A(f"v_add_u32 v23, {16384+8192+4096}, v23")
    A("v_mov_b32 v24, 0xbf803f80\nv_mov_b32 v25, 0x3f80bf80\nv_mov_b32 v26, 0xbf803f80\nv_mov_b32 v27, 0x3f80bf80")
    A("ds_write_b128 v23, v[24:27]")
    A("J_c_np:")
    args_ready(A)
    srd(A, 28, W1, W1_BYTES)
    for i in range(10):
        A(f"buffer_load_dwordx4 v[{32+4*i}:{35+4*i}], v22, s[28:31], s50 offen")
        if i < 9: A(f"s_add_u32 s50, s50, {4*3456}")
    srd(A, 36, WS, WS_USED)
    A("J_i_done:")

def dpp_add(A, r, ctrl):
    A(f"v_add_f32_dpp v{r}, v{r}, v{r} {ctrl} row_mask:0xf bank_mask:0xf")

def jobs_finish(A, nG_, tagx):
    nG = tagx
    class _N(str):
        pass
    A("s_cmp_eq_u32 s3, 0\ns_cbranch_scc1 %s\ns_cmp_eq_u32 s3, 1\ns_cbranch_scc1 %s\ns_branch %s" % (f"J_x_{nG}", f"J_c_{nG}", f"J_done_{nG}"))
    A(f"J_x_{nG}:")
    A("v_mov_b32 v22, 0\nv_mov_b32 v23, 0\nv_mov_b32 v24, 0\nv_mov_b32 v25, 0\ns_mov_b32 s52, 0x3f803f80")
    for i in range(10):
        A(f"s_waitcnt vmcnt({9-i+nG_})")
        for k in range(4):
            r = 32 + 4 * i + k
            A(f"v_dot2_f32_bf16 v{22+(k&1)}, v{r}, s52, v{22+(k&1)}")
            A(f"v_dot2_f32_bf16 v{24+(k&1)}, v{r}, v{r}, v{24+(k&1)}")
    A("s_nop 2\nv_add_f32 v22, v22, v23\nv_add_f32 v24, v24, v25\ns_nop 1")
    for ctrl in ["quad_perm:[1,0,3,2]", "quad_perm:[2,3,0,1]", "row_half_mirror"]:
        dpp_add(A, 22, ctrl); dpp_add(A, 24, ctrl); A("s_nop 0")
    A("s_mov_b32 s52, 0x3acccccd\nv_mul_f32 v22, s52, v22\nv_mul_f32 v24, s52, v24")
    A("v_fma_f32 v24, -v22, v22, v24\nv_max_f32 v24, 0, v24\nv_add_f32 v24, 0x3727c5ac, v24\nv_rsq_f32 v23, v24")
    A(f"s_lshl_b32 s52, s{S_B}, 10\ns_lshl_b32 s53, s{S_C}, 5\ns_add_u32 s52, s52, s53\ns_add_u32 s52, s52, {ST_OFF}")
    A("v_lshrrev_b32 v25, 3, v1\nv_lshlrev_b32 v25, 2, v25")
    A("v_and_b32 v26, 7, v1\nv_cmp_eq_u32 vcc, 0, v26\ns_and_saveexec_b64 s[54:55], vcc")
    A(f"buffer_store_dword v22, v25, s[36:39], s52 offen {SC}\nbuffer_store_dword v23, v25, s[36:39], s52 offen offset:512 {SC}")
    A("s_mov_b64 exec, s[54:55]")
    A(f"s_branch J_done_{nG}")
    A(f"J_c_{nG}:")
    for k in range(8): A(f"v_mov_b32 v{72+k}, 0")
    A("s_mov_b32 s52, 0x00003f80\ns_mov_b32 s53, 0x3f800000")
    for i in range(10):
        A(f"s_waitcnt vmcnt({9-i+nG_})")
        for k in range(4):
            r = 32 + 4 * i + k
            A(f"v_dot2_f32_bf16 v{72+2*k}, v{r}, s52, v{72+2*k}")
            A(f"v_dot2_f32_bf16 v{73+2*k}, v{r}, s53, v{73+2*k}")
    A("s_nop 2")
    for sw in ["v_permlane16_swap_b32", "v_permlane32_swap_b32"]:
        for k in range(8): A(f"v_mov_b32 v{80+k}, v{72+k}")
        A("s_nop 0")
        for k in range(8): A(f"{sw} v{72+k}, v{80+k}")
        A("s_nop 0")
        for k in range(8): A(f"v_add_f32 v{72+k}, v{72+k}, v{80+k}")
    A(f"s_lshl_b32 s52, s{S_B}, 13\ns_lshl_b32 s53, s{S_F0}, 2\ns_add_u32 s52, s52, s53\ns_add_u32 s52, s52, {CS_OFF}")
    A(f"v_lshlrev_b32 v22, 5, v1\ns_mov_b32 s53, 16\ns_cmp_lt_u32 s{S_C}, 5\ns_cselect_b32 s53, 8, s53")
    A("v_cmp_gt_u32 vcc, s53, v1\ns_and_saveexec_b64 s[54:55], vcc")
    A(f"buffer_store_dwordx4 v[72:75], v22, s[36:39], s52 offen {SC}\nbuffer_store_dwordx4 v[76:79], v22, s[36:39], s52 offen offset:16 {SC}")
    A("s_mov_b64 exec, s[54:55]")
    A(f"s_branch J_done_{nG}")
    A(f"J_done_{nG}:")
    A(f"s_cmp_ge_u32 s3, 2\ns_cbranch_scc0 J_dn2_{nG}\ns_waitcnt vmcnt(0)\nJ_dn2_{nG}:")

def x_addr(A, dst, rowbase_sgpr, tmp):
    A(f"v_and_b32 v{tmp}, 31, v1\nv_add_u32 v{tmp+1}, s{rowbase_sgpr}, v{tmp}\nv_lshlrev_b32 v{tmp+1}, 7, v{tmp+1}")
    A(f"v_bfe_u32 v{tmp}, v1, 1, 3\nv_lshrrev_b32 v{tmp+2}, 5, v1\nv_xor_b32 v{tmp}, v{tmp}, v{tmp+2}")
    A(f"v_lshlrev_b32 v{tmp}, 4, v{tmp}\nv_add_u32 v{dst}, v{tmp+1}, v{tmp}")
    for j in range(1, 4):
        A(f"v_xor_b32 v{dst+j}, {32*j}, v{dst}")
def h_tr_addr(A, dst, tmp):
    A(f"v_bfe_u32 v{tmp}, v1, 5, 1\nv_lshlrev_b32 v{tmp}, 3, v{tmp}\nv_bfe_u32 v{tmp+1}, v1, 2, 2\nv_add_u32 v{tmp}, v{tmp}, v{tmp+1}")
    A(f"v_lshlrev_b32 v{tmp}, 7, v{tmp}")
    A(f"v_bfe_u32 v{tmp+1}, v1, 4, 1\nv_lshlrev_b32 v{tmp+1}, 1, v{tmp+1}\nv_bfe_u32 v{tmp+2}, v1, 1, 1\nv_add_u32 v{tmp+1}, v{tmp+1}, v{tmp+2}")
    A(f"v_bfe_u32 v{tmp+2}, v1, 3, 1\nv_lshlrev_b32 v{tmp+2}, 2, v{tmp+2}\nv_xor_b32 v{tmp+1}, v{tmp+1}, v{tmp+2}")
    A(f"v_lshlrev_b32 v{tmp+1}, 4, v{tmp+1}\nv_add_u32 v{tmp}, v{tmp}, v{tmp+1}")
    A(f"v_and_b32 v{tmp+1}, 1, v1\nv_lshlrev_b32 v{tmp+1}, 3, v{tmp+1}\nv_add_u32 v{dst}, v{tmp}, v{tmp+1}")
def interleave(A, mfmas, fillers, per_gap):
    if opt("NOCOMP1"):
        for f in fillers:
            if not f.startswith("ds_read") and not f.startswith("v_perm"): A(f)
        return
    k = 0
    for i, m in enumerate(mfmas):
        A(m)
        for _ in range(per_gap[i]):
            if k < len(fillers):
                A(fillers[k]); k += 1
    while k < len(fillers):
        A(fillers[k]); k += 1
def h_epilogue_tile(A, acc, mr, cs, tmp, vaddr, soff):
    for i in range(0, 16, 2):
        A(f"v_pk_fma_f32 v[{acc+i}:{acc+i+1}], v[{cs+i}:{cs+i+1}], v[{mr}:{mr+1}], v[{acc+i}:{acc+i+1}] op_sel:[0,0,0] op_sel_hi:[1,0,1] neg_lo:[0,1,0] neg_hi:[0,1,0]")
    for i in range(0, 16, 2):
        A(f"v_pk_mul_f32 v[{acc+i}:{acc+i+1}], v[{acc+i}:{acc+i+1}], v[{mr}:{mr+1}] op_sel:[0,1] op_sel_hi:[1,1]")
    for i in range(0, 16, 2):
        A(f"v_cvt_pk_bf16_f32 v{tmp+i//2}, v{acc+i}, v{acc+i+1}")
    for i in range(8):
        A(f"v_pk_max_i16 v{tmp+i}, v{tmp+i}, 0")
    h_epilogue_tile.n += 1
    n = h_epilogue_tile.n
    A(f"s_cmp_eq_u32 s{S_LOCAL}, {1 if opt('LOCALH', 2) == 1 else 7}\ns_cbranch_scc1 L_hst{n}_p")
    A(f"buffer_store_dwordx4 v[{tmp}:{tmp+3}], v{vaddr}, s[36:39], s{soff} offen {SC}")
    A(f"buffer_store_dwordx4 v[{tmp+4}:{tmp+7}], v{vaddr}, s[36:39], s{soff} offen offset:512 {SC}")
    A(f"s_branch L_hst{n}_d\nL_hst{n}_p:")
    hst = {0: "", 1: "nt", 2: "sc0", 3: "sc0 nt"}[opt("HST", 0)]
    A(f"buffer_store_dwordx4 v[{tmp}:{tmp+3}], v{vaddr}, s[36:39], s{soff} offen {hst}")
    A(f"buffer_store_dwordx4 v[{tmp+4}:{tmp+7}], v{vaddr}, s[36:39], s{soff} offen offset:512 {hst}")
    A(f"L_hst{n}_d:")
h_epilogue_tile.n = 0
def h_store_voff(A, dst, tmp):
    A(f"v_bfe_u32 v{tmp}, v1, 4, 1\nv_mul_u32_u24 v{tmp}, {58*1024}, v{tmp}")
    A(f"v_lshrrev_b32 v{tmp+1}, 5, v1\nv_lshlrev_b32 v{tmp+1}, 8, v{tmp+1}\nv_add_u32 v{tmp}, v{tmp}, v{tmp+1}")
    A(f"v_and_b32 v{tmp+1}, 15, v1\nv_lshlrev_b32 v{tmp+1}, 4, v{tmp+1}\nv_add_u32 v{dst}, v{tmp}, v{tmp+1}")

def loop_hooks_top(A, tag):
    A(f"s_cmp_eq_u32 s29, s30\ns_cbranch_scc1 {tag}_flag1\n{tag}_flag1_ret:")
def loop_hooks_init(A):
    A(f"s_cmp_lt_u32 s3, 2\ns_cselect_b32 s30, {10 - opt('EARLY_IT', 1)}, 99")
def loop_hooks_ool(A, tag):
    A(f"{tag}_flag1:")
    flag_addr_early(A, 28)
    A("s_waitcnt vmcnt(0)")
    store_flags(A, 28, 1, 48, 30, xcc=True)
    A(f"s_branch {tag}_flag1_ret")

def publish(A, tag, word, kind, vt):
    A("s_waitcnt vmcnt(0)")
    lds_arrive(A, word, vt, 63)
    A(f"s_cmp_eq_u32 s63, 3\ns_cbranch_scc0 {tag}_np")
    if kind == "h":
        flag_addr_h(A, vt - 1); store_flags(A, vt - 1, 1, 48, vt, xcc=True, local=(tag if opt("LOCALF", 1) else None))
    else:
        flag_addr_t(A, vt - 1); store_flags(A, vt - 1, 8, 48, vt)
    A(f"{tag}_np:")

def p1_hh(A):
    A("L_hh:")
    ACC = 128; P, Q = 32, 64
    XB, WB = 2, 6; XC, WC = 8, 12
    A("s_lshr_b32 s24, s3, 1\ns_and_b32 s25, s3, 1")
    A("s_lshl_b32 s26, s24, 6")
    x_addr(A, XB, 26, 20)
    h_tr_addr(A, WB, 20)
    A("s_lshl_b32 s27, s25, 13\ns_add_u32 s27, s27, 16384")
    A(f"v_add_u32 v{WB}, s27, v{WB}\nv_xor_b32 v{WB+1}, 64, v{WB}")
    for i in range(64): A(f"v_mov_b32 v{ACC+i}, 0")
    for j in range(4): A(f"v_mov_b32 v{XC+j}, v{XB+j}")
    for j in range(2): A(f"v_mov_b32 v{WC+j}, v{WB+j}")
    jobs_finish(A, 0, 'h')
    epoch_ready(A)
    A("s_mov_b32 s28, 0")
    loop_hooks_init(A)
    def reads(buf, g):
        out = []
        for jj in range(2):
            j = 2 * g + jj; b = buf + 16 * jj
            out.append(f"ds_read_b128 v[{b}:{b+3}], v{XC+j}")
            out.append(f"ds_read_b64_tr_b16 v[{b+8}:{b+9}], v{WC} offset:{j*2048}")
            out.append(f"ds_read_b64_tr_b16 v[{b+10}:{b+11}], v{WC} offset:{j*2048+512}")
            out.append(f"ds_read_b128 v[{b+4}:{b+7}], v{XC+j} offset:4096")
            out.append(f"ds_read_b64_tr_b16 v[{b+12}:{b+13}], v{WC+1} offset:{j*2048}")
            out.append(f"ds_read_b64_tr_b16 v[{b+14}:{b+15}], v{WC+1} offset:{j*2048+512}")
        return out
    def mfmas(buf):
        out = []
        for jj in range(2):
            b = buf + 16 * jj
            for ft in range(2):
                for st in range(2):
                    a = ACC + 16 * (2 * ft + st)
                    out.append(f"{MFMA32} v[{a}:{a+15}], v[{b+8+4*ft}:{b+11+4*ft}], v[{b+4*st}:{b+3+4*st}], v[{a}:{a+15}]")
        return out
    stamp(A, 1)
    A("s_waitcnt lgkmcnt(0)\ns_barrier")
    stamp(A, 2)
    for r in reads(P, 0):
        if not opt("NOCOMP1"): A(r)
    A("s_mov_b32 s29, 10")
    A("L_hh_loop:")
    A.drop = (["v_mfma"] if opt("NOMF1") else []) + (["ds_read"] if opt("NODS1") else []) + (["v_perm"] if opt("NOPERM") else [])
    loop_hooks_top(A, "L_hh")
    A("s_waitcnt lgkmcnt(0)")
    upd = [f"v_add_u32 v{XC+j}, s28, v{XB+j}" for j in range(4)] + [f"v_add_u32 v{WC+j}, s28, v{WB+j}" for j in range(2)]
    ring = [f"s_add_u32 s28, s28, {RING}", f"s_and_b32 s28, s28, {NS*RING-1}"]
    pat = opt("HHPAT", 0)
    g1 = [[3, 3, 3, 3, 2, 3, 3, 0], [4, 4, 4, 2, 3, 3, 0, 0], [6, 6, 2, 3, 3, 0, 0, 0]][pat]
    g2 = [[3, 3, 3, 3, 0, 0, 0, 0], [4, 4, 4, 0, 0, 0, 0, 0], [6, 6, 0, 0, 0, 0, 0, 0]][pat]
    interleave(A, mfmas(P), reads(Q, 1) + ring + upd, g1)
    A("s_waitcnt lgkmcnt(0)")
    A("s_barrier")
    interleave(A, mfmas(Q), reads(P, 0), g2)
    A.drop = []
    A("s_sub_u32 s29, s29, 1\ns_cmp_lg_u32 s29, 0\ns_cbranch_scc1 L_hh_loop")
    A("s_waitcnt lgkmcnt(0)")
    stamp(A, 3)
    A(f"v_and_b32 v20, 31, v1\nv_add_u32 v20, s26, v20\nv_lshlrev_b32 v20, 2, v20\nv_add_u32 v20, {LST}, v20")
    A("ds_read_b32 v22, v20\nds_read_b32 v23, v20 offset:512\nds_read_b32 v24, v20 offset:128\nds_read_b32 v25, v20 offset:640")
    A(f"v_mov_b32 v27, {LCNT + 12}\nds_read_b32 v27, v27")
    A(f"v_lshrrev_b32 v21, 5, v1\nv_lshlrev_b32 v21, 4, v21\ns_lshl_b32 s30, s25, 8\ns_add_u32 s30, s30, {LCS}\nv_add_u32 v21, s30, v21")
    for ft in range(2):
        for q in range(4):
            b = 32 + 16 * ft + 4 * q
            A(f"ds_read_b128 v[{b}:{b+3}], v21 offset:{ft*128+q*32}")
    h_store_voff(A, 26, 28)
    A(f"s_lshl_b32 s31, s{S_B}, 3\ns_lshl_b32 s32, s24, 1\ns_add_u32 s31, s31, s32\ns_mul_i32 s31, s31, 58")
    A(f"s_lshr_b32 s32, s{S_F0}, 5\ns_lshl_b32 s33, s25, 1\ns_add_u32 s32, s32, s33\ns_add_u32 s31, s31, s32")
    A(f"s_lshl_b32 s31, s31, 10\ns_add_u32 s31, s31, {HF_OFF}")
    A("s_waitcnt lgkmcnt(0)")
    A(f"v_readfirstlane_b32 s{S_LOCAL}, v27")
    A("s_nop 7")
    for st in range(2):
        for ft in range(2):
            A(f"s_add_u32 s32, s31, {(st*4*58+ft)*1024}")
            h_epilogue_tile(A, ACC + 16 * (2 * ft + st), 22 + 2 * st, 32 + 16 * ft, 64 + 8 * ((2 * st + ft) & 3), 26, 32)
    stamp(A, 4)
    publish(A, "L_hh_pub", 0, "h", 30)
    stamp(A)
    stamp_flush(A, 0, WS, 9)
    A("s_endpgm")
    loop_hooks_ool(A, "L_hh")

def p1_mx(A):
    A("L_mx:")
    P, Q = 32, 72
    EV, OD = 112, 116
    CE, CO, SE, SO = 120, 124, 128, 132
    HA, HB = 136, 152
    EC, ES, OC, OS = 168, 184, 200, 216
    G = 232
    XAB, WHB = 2, 6
    XAC, XBC, DAC, WHC = 7, 11, 15, 19
    A("v_and_b32 v24, 31, v1\nv_cvt_f32_u32 v24, v24\nv_lshrrev_b32 v25, 5, v1\nv_cvt_f32_u32 v25, v25")
    A("v_mul_f32 v25, 0x3e000000, v25\nv_mul_f32 v25, v25, v24")
    for p in range(2):
        for uh in range(2):
            for u2 in range(2):
                for k in range(2):
                    c = 16 * p + 8 * uh + 2 * u2 + k
                    import struct
                    lit = struct.unpack("<I", struct.pack("<f", c / 32.0))[0]
                    A(f"v_fmamk_f32 v26, v24, {lit:#x}, v25\nv_fract_f32 v26, v26")
                    A(f"v_cos_f32 v{28+k}, v26\nv_sin_f32 v{30+k}, v26")
                A("s_nop 0")
                A(f"v_cvt_pk_bf16_f32 v{G+4*p+2*uh+u2}, v28, v29\nv_cvt_pk_bf16_f32 v{G+16+4*p+2*uh+u2}, v30, v31")
    for i in range(8):
        A(f"v_xor_b32 v{G+8+i}, 0x80008000, v{G+16+i}")
    A("s_lshr_b32 s24, s3, 1\ns_and_b32 s25, s3, 1")
    A("s_lshl_b32 s26, s3, 5\ns_xor_b32 s27, s26, 32")
    x_addr(A, XAB, 26, 24)
    h_tr_addr(A, WHB, 24)
    A(f"s_lshl_b32 s30, s25, 6\nv_xor_b32 v{WHB}, s30, v{WHB}\nv_add_u32 v{WHB}, 16384, v{WHB}")
    for i in range(96): A(f"v_mov_b32 v{HA+i}, 0")
    A("s_lshl_b32 s31, s3, 12\ns_sub_u32 s31, 24576, s31")
    def upd(js=(0, 1, 2, 3), wh=True):
        o = [f"v_add_u32 v{XAC+j}, s28, v{XAB+j}" for j in js] + ([f"v_add_u32 v{WHC}, s28, v{WHB}"] if wh else [])
        o += [f"v_xor_b32 v{XBC+j}, 0x1000, v{XAC+j}" for j in js]
        o += [f"v_add_u32 v{DAC+j}, s31, v{XAC+j}" for j in js]
        return o
    A("s_mov_b32 s28, 0")
    for t in upd(): A(t)
    jobs_finish(A, 0, 'm')
    epoch_ready(A)
    loop_hooks_init(A)
    A("s_mov_b32 s34, 0x05040100\ns_mov_b32 s35, 0x07060302")
    def reads(buf, m):
        out = []
        for jj in range(2):
            j = 2 * m + jj
            out.append(f"ds_read_b128 v[{buf+4*jj}:{buf+4*jj+3}], v{XAC+j}")
        for jj in range(2):
            j = 2 * m + jj
            out.append(f"ds_read_b64_tr_b16 v[{buf+16+4*jj}:{buf+17+4*jj}], v{WHC} offset:{j*2048}")
            out.append(f"ds_read_b64_tr_b16 v[{buf+18+4*jj}:{buf+19+4*jj}], v{WHC} offset:{j*2048+512}")
            out.append(f"ds_read_b128 v[{buf+8+4*jj}:{buf+11+4*jj}], v{XBC+j}")
        for jj in range(2):
            j = 2 * m + jj
            out.append(f"ds_read_b128 v[{buf+24+4*jj}:{buf+27+4*jj}], v{DAC+j}")
            out.append(f"ds_read_b128 v[{buf+32+4*jj}:{buf+35+4*jj}], v{DAC+j} offset:4096")
        return out
    def perms(src, e, o):
        ev = [f"v_perm_b32 v{e+k}, v{src+2*k+1}, v{src+2*k}, s34" for k in range(4)]
        od = [f"v_perm_b32 v{o+k}, v{src+2*k+1}, v{src+2*k}, s35" for k in range(4)]
        return ev, od
    def half(cur, nxt, m_next, extra):
        rd = reads(nxt, m_next)
        if opt("NOCOMP1"):
            for t in extra: A(t)
            return
        xe, xo = perms(cur, EV, OD); ce, co = perms(cur + 24, CE, CO); se, so = perms(cur + 32, SE, SO)
        H = []
        for jj in range(2):
            w = cur + 16 + 4 * jj
            H.append(f"{MFMA32} v[{HA}:{HA+15}], v[{w}:{w+3}], v[{cur+4*jj}:{cur+4*jj+3}], v[{HA}:{HA+15}]")
            H.append(f"{MFMA32} v[{HB}:{HB+15}], v[{w}:{w+3}], v[{cur+8+4*jj}:{cur+11+4*jj}], v[{HB}:{HB+15}]")
        Dm = [f"{MFMA32} v[{EC}:{EC+15}], v[{EV}:{EV+3}], v[{CE}:{CE+3}], v[{EC}:{EC+15}]",
              f"{MFMA32} v[{OC}:{OC+15}], v[{OD}:{OD+3}], v[{CO}:{CO+3}], v[{OC}:{OC+15}]",
              f"{MFMA32} v[{ES}:{ES+15}], v[{EV}:{EV+3}], v[{SE}:{SE+3}], v[{ES}:{ES+15}]",
              f"{MFMA32} v[{OS}:{OS+15}], v[{OD}:{OD+3}], v[{SO}:{SO+3}], v[{OS}:{OS+15}]"]
        if opt("MXSCHED", 1):
            ex = list(extra)
            def take(n):
                t = ex[:n]; del ex[:n]; return t
            pad = lambda n: (take(n) + ["s_nop 0"] * n)[:n]
            ms = H + [Dm[0], Dm[2], Dm[1], Dm[3]]
            gaps = [xe[0:2] + rd[0:3], xe[2:4] + rd[3:6], ce[0:2] + rd[6:9], ce[2:4] + rd[9:12],
                    se + xo[0:2], xo[2:4] + co + pad(2), so + pad(2), None]
            gaps[7] = ex
        else:
            gaps = [xe + rd[0:2], ce + rd[2:4], xo + rd[4:6], co + rd[6:8], se + rd[8:10], so + rd[10:12], extra[:8], extra[8:]]
            ms = H + Dm
        for i in range(8):
            A(ms[i])
            for t in gaps[i]: A(t)
    stamp(A, 1)
    A("s_waitcnt lgkmcnt(0)\ns_barrier")
    stamp(A, 2)
    for r in reads(P, 0):
        if not opt("NOCOMP1"): A(r)
    A("s_mov_b32 s29, 10")
    A("L_mx_loop:")
    A.drop = (["v_mfma"] if opt("NOMF1") else []) + (["ds_read"] if opt("NODS1") else []) + (["v_perm"] if opt("NOPERM") else [])
    loop_hooks_top(A, "L_mx")
    A("s_waitcnt lgkmcnt(0)")
    ring = [f"s_add_u32 s28, s28, {RING}", f"s_and_b32 s28, s28, {NS*RING-1}"]
    if opt("MXSCHED", 1):
        half(P, Q, 1, ring + upd((0, 1), True))
        A("s_waitcnt lgkmcnt(0)")
        A("s_barrier")
        half(Q, P, 0, upd((2, 3), False))
    else:
        half(P, Q, 1, ring + upd())
        A("s_waitcnt lgkmcnt(0)")
        A("s_barrier")
        half(Q, P, 0, [])
    A.drop = []
    A("s_sub_u32 s29, s29, 1\ns_cmp_lg_u32 s29, 0\ns_cbranch_scc1 L_mx_loop")
    A("s_waitcnt lgkmcnt(0)")
    stamp(A, 3)
    A(f"v_and_b32 v24, 31, v1\nv_add_u32 v25, s26, v24\nv_lshlrev_b32 v25, 2, v25\nv_add_u32 v25, {LST}, v25")
    A(f"v_add_u32 v26, s27, v24\nv_lshlrev_b32 v26, 2, v26\nv_add_u32 v26, {LST}, v26")
    A("ds_read_b32 v2, v25\nds_read_b32 v3, v25 offset:512\nds_read_b32 v4, v26\nds_read_b32 v5, v26 offset:512")
    A(f"v_mov_b32 v7, {LCNT + 12}\nds_read_b32 v7, v7")
    A(f"v_lshrrev_b32 v27, 5, v1\nv_lshlrev_b32 v27, 4, v27\ns_lshl_b32 s30, s25, 7\ns_add_u32 s30, s30, {LCS}\nv_add_u32 v28, s30, v27")
    for q in range(4):
        A(f"ds_read_b128 v[{32+4*q}:{35+4*q}], v28 offset:{q*32}")
    A(f"s_lshl_b32 s30, s26, 2\ns_add_u32 s30, s30, {LST+512}\nv_add_u32 v28, s30, v27")
    for q in range(4):
        A(f"ds_read_b128 v[{48+4*q}:{51+4*q}], v28 offset:{q*32}")
    h_store_voff(A, 6, 28)
    A(f"s_lshl_b32 s31, s{S_B}, 3\ns_lshl_b32 s30, s24, 1\ns_add_u32 s31, s31, s30\ns_mul_i32 s31, s31, 58")
    A(f"s_lshr_b32 s30, s{S_F0}, 5\ns_add_u32 s30, s30, s25\ns_add_u32 s31, s31, s30")
    A(f"s_lshl_b32 s31, s31, 10\ns_add_u32 s31, s31, {HF_OFF}")
    A(f"s_mul_i32 s30, s25, {4*58*1024}\ns_add_u32 s32, s31, s30")
    A(f"s_xor_b32 s30, s25, 1\ns_mul_i32 s30, s30, {4*58*1024}\ns_add_u32 s33, s31, s30")
    A("s_waitcnt lgkmcnt(0)")
    A(f"v_readfirstlane_b32 s{S_LOCAL}, v7")
    A("s_nop 7")
    h_epilogue_tile(A, HA, 2, 32, 64, 6, 32)
    h_epilogue_tile(A, HB, 4, 32, 72, 6, 33)
    stamp(A, 4)
    if opt("MXPUB", 1): publish(A, "L_mx_pubh", 0, "h", 30)
    stamp(A)
    R = 48
    for i in range(0, 16, 2):
        for a in (EC, OC, ES, OS):
            A(f"v_pk_mul_f32 v[{a+i}:{a+i+1}], v[{a+i}:{a+i+1}], v[{R+i}:{R+i+1}]")
    T0, T1 = 80, 96
    for i in range(0, 16, 2):
        A(f"v_pk_add_f32 v[{T0+i}:{T0+i+1}], v[{EC+i}:{EC+i+1}], v[{OC+i}:{OC+i+1}]")
        A(f"v_pk_add_f32 v[{EC+i}:{EC+i+1}], v[{EC+i}:{EC+i+1}], v[{OC+i}:{OC+i+1}] neg_lo:[0,1] neg_hi:[0,1]")
        A(f"v_pk_add_f32 v[{T1+i}:{T1+i+1}], v[{ES+i}:{ES+i+1}], v[{OS+i}:{OS+i+1}]")
        A(f"v_pk_add_f32 v[{OC+i}:{OC+i+1}], v[{OS+i}:{OS+i+1}], v[{ES+i}:{ES+i+1}] neg_lo:[0,1] neg_hi:[0,1]")
    A("v_and_b32 v24, 31, v1\nv_cmp_eq_u32 s[40:41], 0, v24\ns_nop 3")
    A(f"s_cmp_eq_u32 s{S_C}, 0\ns_cselect_b64 s[40:41], s[40:41], 0\ns_cbranch_scc0 L_mx_nofix")
    for i in range(16):
        A(f"v_cndmask_b32 v{T0+i}, v{T0+i}, v{ES+i}, s[40:41]")
        A(f"v_cndmask_b32 v{T1+i}, v{T1+i}, v{OS+i}, s[40:41]")
        A(f"v_cndmask_b32_e64 v{OC+i}, v{OC+i}, 0, s[40:41]")
    A("L_mx_nofix:")
    ZB = 32
    for k, a in enumerate([T0, T1, EC, OC]):
        for i in range(0, 16, 2):
            A(f"v_cvt_pk_bf16_f32 v{ZB+8*k+i//2}, v{a+i}, v{a+i+1}")
    Fr = lambda p: f"v[{G+4*p}:{G+4*p+3}]"
    Fi = lambda p: f"v[{G+8+4*p}:{G+8+4*p+3}]"
    nFi = lambda p: f"v[{G+16+4*p}:{G+16+4*p+3}]"
    Z = lambda k, p: f"v[{ZB+8*k+4*p}:{ZB+8*k+4*p+3}]"
    TR = [EC, OC]; TI = [ES, OS]
    A("s_nop 1")
    for st_ in range(2):
        zr, zi = 2 * st_, 2 * st_ + 1
        tr, ti = TR[st_], TI[st_]
        A(f"{MFMA32} v[{tr}:{tr+15}], {Fr(0)}, {Z(zr,0)}, 0")
        A(f"{MFMA32} v[{ti}:{ti+15}], {Fr(0)}, {Z(zi,0)}, 0")
        A(f"{MFMA32} v[{tr}:{tr+15}], {Fr(1)}, {Z(zr,1)}, v[{tr}:{tr+15}]")
        A(f"{MFMA32} v[{ti}:{ti+15}], {Fr(1)}, {Z(zi,1)}, v[{ti}:{ti+15}]")
        A(f"{MFMA32} v[{tr}:{tr+15}], {nFi(0)}, {Z(zi,0)}, v[{tr}:{tr+15}]")
        A(f"{MFMA32} v[{ti}:{ti+15}], {Fi(0)}, {Z(zr,0)}, v[{ti}:{ti+15}]")
        A(f"{MFMA32} v[{tr}:{tr+15}], {nFi(1)}, {Z(zi,1)}, v[{tr}:{tr+15}]")
        A(f"{MFMA32} v[{ti}:{ti+15}], {Fi(1)}, {Z(zr,1)}, v[{ti}:{ti+15}]")
    if not opt("MXPUB", 1): publish(A, "L_mx_pubh", 0, "h", 30)
    else: A("s_nop 7")
    stamp(A)
    A(f"v_and_b32 v24, 31, v1\nv_lshlrev_b32 v24, 2, v24\nv_lshrrev_b32 v25, 5, v1\nv_lshlrev_b32 v25, 9, v25\nv_add_u32 v24, v24, v25")
    A(f"s_lshl_b32 s30, s3, 13\ns_add_u32 s30, s30, {LX}\nv_add_u32 v24, s30, v24")
    A("s_nop 7")
    for st_ in range(2):
        for i in range(16):
            A(f"v_cvt_pk_bf16_f32 v{64+16*st_+i}, v{TR[st_]+i}, v{TI[st_]+i}")
    for st_ in range(2):
        for i in range(16):
            t0 = (i & 3) + 8 * (i >> 2)
            A(f"ds_write_b32 v24, v{64+16*st_+i} offset:{st_*4096+t0*128}")
    A("s_waitcnt lgkmcnt(0)")
    stamp(A)
    lds_arrive(A, 1, 30, 63)
    A(f"v_mov_b32 v30, {LCNT+4}")
    A("L_mx_rv:\nds_read_b32 v31, v30\ns_waitcnt lgkmcnt(0)\ns_nop 0\nv_readfirstlane_b32 s63, v31\ns_nop 3\ns_cmp_ge_u32 s63, 4\ns_cbranch_scc1 L_mx_rv_ok")
    A(f"s_sub_u32 s{S_SPIN}, s{S_SPIN}, 1\ns_cmp_eq_u32 s{S_SPIN}, 0\ns_cbranch_scc0 L_mx_rv\nL_mx_rv_ok:")
    A("v_and_b32 v24, 31, v1\nv_lshlrev_b32 v24, 2, v24\nv_lshrrev_b32 v25, 5, v1\nv_lshlrev_b32 v26, 7, v25\nv_add_u32 v24, v24, v26")
    A(f"s_lshl_b32 s30, s3, 10\ns_add_u32 s30, s30, {LX}\nv_add_u32 v24, s30, v24")
    for st_ in range(2):
        for n in range(4):
            b = 64 + 16 * st_ + 4 * n
            for w in range(4):
                A(f"ds_read_b32 v{b+w}, v24 offset:{w*8192+st_*4096+n*256}")
    A(f"v_and_b32 v26, 31, v1\ns_lshl_b32 s30, s{S_C}, 5\nv_add_u32 v27, s30, v26")
    A("v_mov_b32 v28, 160\nv_cndmask_b32 v29, v27, v28, s[40:41]")
    A("v_sub_u32 v27, 320, v27")
    A(f"s_mov_b32 s30, {TF_T0}\nv_mul_lo_u32 v25, s30, v25")
    A("v_lshlrev_b32 v29, 4, v29\nv_add_u32 v29, v29, v25")
    A("v_lshlrev_b32 v27, 4, v27\nv_add_u32 v27, v27, v25")
    A(f"s_mul_i32 s30, s3, {8*TF_T0}\ns_mul_i32 s31, s{S_B}, {TF_ROW}\ns_add_u32 s30, s30, s31\ns_add_u32 s30, s30, {TF_OFF}")
    A("s_waitcnt lgkmcnt(0)")
    for st_ in range(2):
        for n in range(4):
            b = 64 + 16 * st_ + 4 * n
            A(f"s_add_u32 s31, s30, {2*n*TF_T0}")
            if not opt("NOTST"): A(f"buffer_store_dwordx4 v[{b}:{b+3}], v{29 if st_ == 0 else 27}, s[36:39], s31 offen {'' if opt('TPLAIN') else SC}")
    stamp(A)
    A(f"s_cmp_eq_u32 s{S_C}, 0\ns_cbranch_scc0 L_mx_noz\ns_cmp_eq_u32 s3, 0\ns_cbranch_scc0 L_mx_noz")
    A(f"s_mov_b32 s30, {TF_T0}\nv_and_b32 v24, 31, v1\nv_mul_lo_u32 v24, s30, v24")
    A("v_mov_b32 v4, 0\nv_mov_b32 v5, 0\nv_mov_b32 v6, 0\nv_mov_b32 v7, 0")
    A(f"s_mul_i32 s31, s{S_B}, {TF_ROW}\ns_add_u32 s31, s31, {TF_OFF}")
    A(f"buffer_store_dwordx4 v[4:7], v24, s[36:39], s31 offen {SC}")
    A("L_mx_noz:")
    publish(A, "L_mx_pubt", 2, "t", 30)
    stamp(A)
    stamp_flush(A, 0, WS, 9)
    A("s_endpgm")
    loop_hooks_ool(A, "L_mx")

def loader(A):
    A("L_loader:")
    if opt("PRIOL"): A(f"s_setprio {opt('PRIOL')}")
    A(f"s_sub_u32 s{S_J}, s3, 4")
    for r in [11, 12, 13, 52, 53, 54, 55, 56, 57, 58, 59]: A(f"v_mov_b32 v{r}, 0")
    A("s_mov_b32 s58, 0\ns_mov_b32 s59, 99\ns_mov_b32 s63, 0")
    RS = 1280 if opt("XLIN") else 81920
    A(f"v_lshrrev_b32 v4, 3, v1\ns_mov_b32 s40, {RS}\nv_mul_lo_u32 v8, s40, v4")
    A("v_and_b32 v5, 7, v1\nv_lshrrev_b32 v6, 4, v1\nv_xor_b32 v5, v5, v6\nv_lshlrev_b32 v5, 4, v5")
    A("v_add_u32 v2, v8, v5\nv_xor_b32 v7, 64, v5")
    A(f"v_add_u32 v3, v8, v7\nv_add_u32 v3, {8*RS}, v3")
    A(f"s_lshl_b32 s40, s{S_B}, 1\ns_and_b32 s41, s{S_J}, 1\ns_add_u32 s40, s40, s41")
    A(f"s_lshr_b32 s41, s{S_J}, 1\ns_lshl_b32 s41, s41, 5\ns_add_u32 s40, s40, s41")
    if opt("XLIN"):
        A(f"s_lshl_b32 s40, s{S_B}, 2\ns_add_u32 s40, s40, s{S_J}\ns_mul_i32 s40, s40, {32*1280}\ns_add_u32 s41, s40, {16*1280}")
    else:
        A(f"s_mul_i32 s40, s40, 1280\ns_add_u32 s41, s40, {16*81920}")
    A("s_mov_b64 s[56:57], -1")
    A(f"s_cmp_lt_u32 s{S_C}, 5\ns_cbranch_scc0 L_ld_H")
    A(f"s_cmp_ge_u32 s{S_J}, 2\ns_cbranch_scc0 L_ld_H")
    A(f"s_and_b32 s50, s{S_J}, 1\ns_add_u32 s50, s50, 1\ns_mov_b32 s30, {HID_BYTES}")
    A("v_mul_u32_u24 v8, 1280, v4\nv_add_u32 v9, v8, v5")
    A(f"v_add_u32 v10, v8, v7\nv_add_u32 v10, {8*1280}, v10")
    A(f"s_mul_i32 s42, s{S_C}, {32*1280}")
    A(f"s_mov_b32 s44, s42\ns_mov_b32 s45, s42\ns_add_u32 s46, s42, {16*1280}\ns_add_u32 s47, s42, {16*1280}")
    A("s_mov_b32 s43, 128")
    A(f"s_cmp_eq_u32 s{S_C}, 0\ns_cbranch_scc0 L_ld_go\ns_cmp_eq_u32 s{S_J}, 3\ns_cbranch_scc0 L_ld_go")
    A("s_mov_b32 s56, 0xffffff00")
    A("s_branch L_ld_go")
    A("L_ld_H:")
    A(f"s_mov_b32 s50, 0\ns_mov_b32 s30, {W1_BYTES}")
    A("v_mul_u32_u24 v8, 3456, v4")
    A("v_and_b32 v9, 7, v1\nv_bfe_u32 v10, v1, 4, 1\nv_lshlrev_b32 v10, 2, v10\nv_xor_b32 v9, v9, v10")
    A("v_lshlrev_b32 v9, 4, v9\nv_add_u32 v9, v8, v9\nv_mov_b32 v10, v9")
    A(f"s_and_b32 s42, s{S_J}, 1\ns_mul_i32 s42, s42, {32*3456}")
    A(f"s_lshr_b32 s43, s{S_J}, 1\ns_lshl_b32 s43, s43, 6\ns_add_u32 s43, s43, s{S_F0}\ns_lshl_b32 s43, s43, 1")
    A("s_add_u32 s42, s42, s43")
    for q in range(4):
        A(f"s_add_u32 s{44+q}, s42, {8*q*3456}")
    A(f"s_mov_b32 s43, {64*3456}")
    A("L_ld_go:")
    A(f"s_lshl_b32 s48, s{S_J}, 12\ns_mov_b32 s31, 0x20000")
    args_ready(A)
    srd(A, 24, X_, X_BYTES)
    A(f"s_cmp_eq_u32 s50, 1\ns_cselect_b32 s28, s{HRE}, s{W1}\ns_cselect_b32 s29, s{HRE+1}, s{W1+1}")
    A(f"s_cmp_eq_u32 s50, 2\ns_cselect_b32 s28, s{HIM}, s28\ns_cselect_b32 s29, s{HIM+1}, s29")
    def chunk(slot_reg):
        for q in range(0 if opt("NOLOAD1") else 4):
            A(f"s_add_u32 m0, s{slot_reg}, {q*1024}")
            A("s_nop 0")
            A(f"buffer_load_dwordx4 v{2+(q&1)}, s[24:27], s{40+(q>>1)} offen {'nt ' if opt('XNT') else ''}lds")
            A(f"s_add_u32 m0, s{slot_reg}, {16384+q*1024}")
            if q == 0: A("s_mov_b64 exec, s[56:57]")
            else: A("s_nop 0")
            A(f"buffer_load_dwordx4 v{9+(q&1)}, s[28:31], s{44+q} offen {'nt ' if opt('WNT') else ''}lds")
            if q == 0: A("s_mov_b64 exec, -1")
        A("s_add_u32 s40, s40, 128\ns_add_u32 s41, s41, 128")
        for q in range(4):
            A(f"s_add_u32 s{44+q}, s{44+q}, s43")
        A(f"s_add_u32 s{slot_reg}, s{slot_reg}, {RING}\ns_cmp_ge_u32 s{slot_reg}, {NS*RING}\ns_cselect_b32 s52, {NS*RING}, 0\ns_sub_u32 s{slot_reg}, s{slot_reg}, s52")
    A("s_mov_b32 s49, s48")
    chunk(49); chunk(49)
    stamp(A, 1)
    srd(A, 36, WS, WS_USED)
    srd(A, 32, WS, WS_USED)
    A("s_waitcnt lgkmcnt(0)")
    A(f"s_add_u32 s{S_E}, s{S_E}, 1\ns_xor_b32 s{S_EM}, s{S_E}, {MAGIC}")
    A(f"s_cmp_ge_u32 s{S_J}, 2\ns_cbranch_scc0 L_ld_su01")
    A(f"s_sub_u32 s58, s{S_J}, 2\ns_lshl_b32 s59, s{S_T0}, 1\ns_add_u32 s59, s59, s58")
    A("s_mov_b32 s50, 6554\ns_mov_b32 s53, 1280")
    for q in range(5):
        A(f"v_add_u32 v22, {64*q}, v1")
        A("v_mul_lo_u32 v23, s50, v22\nv_lshrrev_b32 v23, 16, v23")
        A("v_mul_u32_u24 v24, 10, v23\nv_sub_u32 v24, v22, v24\nv_lshlrev_b32 v24, 4, v24")
        A(f"v_mul_lo_u32 v23, s53, v23\nv_add_u32 v{52+q}, v23, v24")
    A("v_lshrrev_b32 v23, 4, v1\nv_lshrrev_b32 v24, 1, v23\nv_lshlrev_b32 v24, 4, v24")
    A("v_and_b32 v25, 1, v23\nv_lshlrev_b32 v25, 2, v25\nv_add_u32 v24, v24, v25\nv_bfe_u32 v25, v1, 2, 2\nv_add_u32 v24, v24, v25")
    A("v_mul_u32_u24 v24, 160, v24\nv_and_b32 v25, 3, v1\nv_lshlrev_b32 v25, 3, v25\nv_add_u32 v24, v24, v25")
    A(f"s_mul_i32 s50, s58, 5120\ns_add_u32 s50, s50, {LW}\nv_add_u32 v57, s50, v24")
    A(f"s_lshl_b32 s50, s{S_CT}, 1\ns_add_u32 s50, s50, s58\ns_lshr_b32 s53, s50, 2\ns_and_b32 s50, s50, 3")
    A(f"s_lshr_b32 s54, s53, 1\ns_lshl_b32 s54, s54, 5\ns_add_u32 s54, s54, s{S_T0}")
    A("s_and_b32 s55, s53, 1\ns_lshl_b32 s55, s55, 10\ns_add_u32 s54, s54, s55")
    A("v_and_b32 v22, 15, v1\nv_lshlrev_b32 v22, 6, v22\nv_add_u32 v22, s54, v22")
    A("s_lshl_b32 s55, s50, 3\nv_lshrrev_b32 v23, 4, v1\nv_lshlrev_b32 v23, 1, v23\nv_add_u32 v23, s55, v23")
    A("s_mov_b32 s55, 0x3a000000")
    for k, ds in enumerate([0, 1, 32, 33]):
        A(f"v_add_u32 v24, {ds}, v23\nv_mul_u32_u24 v24, v22, v24\nv_and_b32 v24, 0x7ff, v24\nv_cvt_f32_u32 v24, v24\nv_mul_f32 v24, s55, v24")
        A(f"v_cos_f32 v25, v24\nv_sin_f32 v26, v24\ns_nop 0\nv_cvt_pk_bf16_f32 v{60+k}, v25, -v26")
    A(f"s_lshl_b32 s63, s{S_T0}, 2\ns_add_u32 s63, s63, s53\ns_mul_i32 s63, s63, 58\ns_add_u32 s63, s63, s50\ns_add_u32 s63, s63, 54")
    A(f"s_lshl_b32 s63, s63, 10\ns_add_u32 s63, s63, {HF_OFF}")
    A(f"s_lshl_b32 s50, s{S_CT}, 6\ns_add_u32 s50, s50, s59\ns_lshl_b32 s50, s50, 3\ns_add_u32 s50, s50, {FW_OFF}\nv_mov_b32 v58, s50")
    A(f"s_lshl_b32 s50, s{S_T0}, 4\ns_lshl_b32 s53, s{S_CT}, 1\ns_add_u32 s50, s50, s53\ns_add_u32 s50, s50, s58\ns_lshl_b32 s50, s50, 3\ns_add_u32 s50, s50, {FF_OFF}\nv_mov_b32 v59, s50")
    A("v_cmp_eq_u32 vcc, 1, v1\ns_nop 1\nv_cndmask_b32 v58, v58, v59, vcc")
    A("s_branch L_ld_sud")
    A("L_ld_su01:")
    A("v_lshlrev_b32 v13, 3, v1\nv_and_b32 v16, 31, v1\nv_lshlrev_b32 v15, 3, v16")
    A(f"s_lshl_b32 s50, s{S_B}, 7\ns_add_u32 s50, s50, {FR1_OFF}\nv_add_u32 v12, s50, v15")
    A(f"s_lshl_b32 s50, s{S_C}, 7\ns_add_u32 s50, s50, {FC1_OFF-128}\nv_add_u32 v15, s50, v15")
    A("v_cmp_le_u32 vcc, 16, v16\ns_nop 1\nv_cndmask_b32 v12, v12, v15, vcc")
    A(f"s_lshl_b32 s50, s{S_CT}, 9\ns_add_u32 s50, s50, {FW_OFF}\nv_add_u32 v11, s50, v13")
    A(f"s_lshl_b32 s50, s{S_T0}, 7\ns_add_u32 s50, s50, {FF_OFF}\nv_and_b32 v14, 15, v1\nv_lshlrev_b32 v14, 3, v14\nv_add_u32 v59, s50, v14")
    A("L_ld_sud:")
    A("s_waitcnt vmcnt(8)")
    stamp(A, 2)
    A("s_barrier")
    chunk(49)
    A(f"s_cmp_ge_u32 s{S_J}, 2\ns_cbranch_scc1 L_ld_h1w\nL_ld_h1w_ret:")
    A(f"s_cmp_ge_u32 s{S_J}, 2\ns_cbranch_scc1 L_ld_b1w")
    A("s_waitcnt vmcnt(8)\ns_branch L_ld_b1d\nL_ld_b1w:")
    A("s_cmp_ge_u32 s59, 54\ns_cbranch_scc1 L_ld_b1n\ns_waitcnt vmcnt(13)\ns_branch L_ld_b1d\nL_ld_b1n:\ns_waitcnt vmcnt(8)\nL_ld_b1d:")
    A("s_barrier")
    stamp(A)
    pk = opt("POLLK", 5)
    assert pk in (5, 6)
    A(f"s_mov_b32 s53, 99\ns_mov_b32 s54, 99\ns_mov_b32 s55, 0\ns_mov_b32 s79, 99\ns_mov_b32 s81, 99\ns_mov_b32 s82, 99\ns_mov_b32 s83, 0")
    A(f"s_cmp_eq_u32 s{S_J}, 0\ns_cselect_b32 s53, {9-pk}, s53\ns_cselect_b32 s54, {9-pk-2}, s54\ns_cselect_b32 s55, {9-pk-1}, s55\ns_cselect_b32 s81, {9-pk-2}, s81")
    A(f"s_cmp_eq_u32 s{S_J}, 1\ns_cselect_b32 s53, {opt('FWPOLL', 1)}, s53")
    A(f"s_cmp_ge_u32 s{S_J}, 2\ns_cselect_b32 s82, 6, s82\ns_cselect_b32 s79, 3, s79\ns_cselect_b32 s83, 1, s83")
    A("s_mov_b32 s51, 7")
    A("L_ld_loop:")
    A("s_cmp_eq_u32 s51, s54\ns_cbranch_scc1 L_ld_h2\nL_ld_h2_ret:")
    chunk(49)
    A("s_cmp_eq_u32 s51, s79\ns_cbranch_scc1 L_ld_h3\nL_ld_h3_ret:")
    A("s_cmp_eq_u32 s51, s53\ns_cbranch_scc1 L_ld_h1\nL_ld_h1_ret:")
    A("s_cmp_eq_u32 s51, s81\ns_cbranch_scc1 L_ld_h4\nL_ld_h4_ret:")
    A("s_cmp_eq_u32 s51, s82\ns_cbranch_scc1 L_ld_h2w\nL_ld_h2w_ret:")
    A("s_cmp_lt_u32 s51, s55\ns_cbranch_scc1 L_ld_w25")
    A("s_cmp_eq_u32 s83, 0\ns_cbranch_scc1 L_ld_w8")
    A("s_cmp_eq_u32 s51, 6\ns_cbranch_scc1 L_ld_wW\ns_cmp_eq_u32 s51, 5\ns_cbranch_scc1 L_ld_wW")
    A("s_cmp_eq_u32 s51, 3\ns_cbranch_scc1 L_ld_w9\ns_cmp_eq_u32 s51, 2\ns_cbranch_scc1 L_ld_w9")
    A("L_ld_w8:\ns_waitcnt vmcnt(8)\ns_branch L_ld_wd")
    A("L_ld_wW:\ns_cmp_ge_u32 s59, 54\ns_cbranch_scc1 L_ld_w9\ns_waitcnt vmcnt(14)\ns_branch L_ld_wd\nL_ld_w9:\ns_waitcnt vmcnt(9)\ns_branch L_ld_wd")
    A("L_ld_w25:\ns_waitcnt vmcnt(17)\nL_ld_wd:")
    stamp(A)
    A("s_barrier")
    stamp(A)
    A("s_sub_u32 s51, s51, 1\ns_cmp_lg_u32 s51, 0\ns_cbranch_scc1 L_ld_loop")
    A("s_waitcnt vmcnt(0)")
    if not opt("WLATE", 1):
        A(f"s_cmp_eq_u32 s{S_J}, 1\ns_cbranch_scc0 L_ld_no1")
        spin(A, "L_ld_spw", 48, 11, 32, xcc=True)
        spin(A, "L_ld_spf", 50, 59, 32, xcc=True)
        A("L_ld_no1:")
    A(f"s_cmp_eq_u32 s{S_J}, 0\ns_cbranch_scc0 L_ld_nored")
    for b_ in range(1, 8):
        for k in range(4): A(f"v_add_f32 v{16+k}, v{16+k}, v{16+4*b_+k}")
    for k in range(4): A(f"v_mov_b32 v{20+k}, v{16+k}")
    A("s_nop 1")
    for k in range(4): A(f"v_permlane32_swap_b32 v{16+k}, v{20+k}")
    A("s_nop 0")
    for k in range(4): A(f"v_add_f32 v{16+k}, v{16+k}, v{20+k}")
    A(f"v_add_u32 v13, {LCS}, v13\nds_write_b128 v13, v[16:19]\ns_waitcnt lgkmcnt(0)")
    A("L_ld_nored:")
    A("s_barrier")
    stamp(A)
    A("s_barrier")
    A("s_branch L_ld_p2")
    A("L_ld_h1:")
    A(f"s_cmp_eq_u32 s{S_J}, 1\ns_cbranch_scc1 L_ld_h1f")
    A(f"buffer_load_dwordx2 v[14:15], v12, s[32:35], 0 offen {SC}")
    A("s_branch L_ld_h1_ret")
    A("L_ld_h1f:")
    A(f"buffer_load_dwordx2 v[48:49], v11, s[32:35], 0 offen {SC}")
    A(f"buffer_load_dwordx2 v[50:51], v59, s[32:35], 0 offen {SC}")
    A("s_branch L_ld_h1_ret")
    A("L_ld_h1w:")
    if opt("NOW"): A("s_branch L_ld_h1w_ret")
    A("s_cmp_ge_u32 s59, 54\ns_cbranch_scc1 L_ld_h1w_ret")
    srd(A, 84, W2, W2_BYTES)
    A(f"s_mul_i32 s50, s59, 40960\ns_mul_i32 s62, s{S_CT}, 160\ns_add_u32 s50, s50, s62")
    A(f"s_mul_i32 s62, s58, 5120\ns_add_u32 s62, s62, {LW}")
    for q in range(5):
        A(f"s_add_u32 m0, s62, {1024*q}\ns_nop 0")
        A(f"buffer_load_dwordx4 v{52+q}, s[84:87], s50 offen lds")
    A("s_branch L_ld_h1w_ret")
    A("L_ld_h2:")
    spin(A, "L_ld_sp", 14, 12, 32, xcc=True)
    A(f"v_and_b32 v50, 16, v1\nv_cmp_eq_u32 s[60:61], 0, v50\nv_cmp_ne_u32 vcc, s{S_XCC}, v15\ns_nop 3\ns_and_b64 vcc, vcc, s[60:61]")
    A(f"s_cmp_eq_u64 vcc, 0\ns_cselect_b32 s62, {1 if opt('LOCALH', 2) and opt('MAP1', 1) else 0}, 0")
    A(f"v_mov_b32 v50, {LCNT + 12}\nv_mov_b32 v51, s62\nds_write_b32 v50, v51")
    A("s_branch L_ld_h2_ret")
    A("L_ld_h4:")
    A(f"s_lshl_b32 s50, s{S_B}, 10\ns_add_u32 s50, s50, {ST_OFF}\ns_mov_b32 m0, {LST}\nv_lshlrev_b32 v13, 4, v1")
    A(f"buffer_load_dwordx4 v13, s[36:39], s50 offen {SC} lds")
    A(f"s_lshl_b32 s50, s{S_F0}, 2\ns_add_u32 s50, s50, {CS_OFF}")
    A("v_and_b32 v13, 31, v1\nv_lshlrev_b32 v13, 4, v13\nv_lshrrev_b32 v14, 5, v1\nv_lshlrev_b32 v14, 13, v14\nv_add_u32 v14, v13, v14")
    for b_ in range(8):
        A(f"buffer_load_dwordx4 v[{16+4*b_}:{19+4*b_}], v14, s[36:39], s50 offen {SC}")
        if b_ < 7: A("s_add_u32 s50, s50, 16384")
    A("s_branch L_ld_h4_ret")
    A("L_ld_h2w:")
    A(f"v_lshlrev_b32 v22, 4, v1\nbuffer_store_dwordx4 v[60:63], v22, s[32:35], s63 offen {SC}")
    if opt("NOW"): A("s_branch L_ld_h2w_ret")
    A("s_cmp_ge_u32 s59, 54\ns_cbranch_scc1 L_ld_h2w_ret")
    for n in range(5):
        A(f"ds_read_b64_tr_b16 v[{24+4*n}:{25+4*n}], v57 offset:{32*n}")
        A(f"ds_read_b64_tr_b16 v[{26+4*n}:{27+4*n}], v57 offset:{32*n+1280}")
    A(f"s_mul_i32 s50, s{S_CT}, 54\ns_add_u32 s50, s50, s59\ns_mul_i32 s50, s50, 5120\ns_add_u32 s50, s50, {W2F_OFF}")
    A("v_add_u32 v23, 4096, v22\ns_waitcnt lgkmcnt(0)")
    for n in range(4):
        A(f"buffer_store_dwordx4 v[{24+4*n}:{27+4*n}], v22, s[32:35], s50 offen offset:{1024*n} {SC}")
    A(f"buffer_store_dwordx4 v[40:43], v23, s[32:35], s50 offen {SC}")
    A("s_branch L_ld_h2w_ret")
    A("L_ld_h3:")
    store_flags(A, 58, 2, 32, 64, xcc=True)
    A("s_branch L_ld_h3_ret")
    A("L_ld_p2:")
    stamp(A, 3)
    if opt("P1ONLY"):
        stamp_flush(A, 0, WS, 9)
        A("s_endpgm")
    if opt("WLATE", 1):
        A(f"v_mov_b32 v16, {LCNT + 20}")
        A(f"s_cmp_eq_u32 s{S_J}, 1\ns_cbranch_scc0 L_ld_ww")
        spin(A, "L_ld_spw", 48, 11, 32, xcc=True)
        spin(A, "L_ld_spf", 50, 59, 32, xcc=True)
        A("v_mov_b32 v17, 1\nds_write_b32 v16, v17\ns_waitcnt lgkmcnt(0)\ns_branch L_ld_wgo")
        A("L_ld_ww:\nds_read_b32 v17, v16\ns_waitcnt lgkmcnt(0)\ns_nop 0\nv_readfirstlane_b32 s50, v17\ns_nop 3\ns_cmp_eq_u32 s50, 1\ns_cbranch_scc1 L_ld_wgo")
        A(f"s_sub_u32 s{S_SPIN}, s{S_SPIN}, 1\ns_cmp_eq_u32 s{S_SPIN}, 0\ns_cbranch_scc0 L_ld_ww")
        A("L_ld_wgo:")
    p2(A)

def p2(A):
    J = S_J
    HSC = "" if opt("HPLAIN") else SC
    WSC = "" if opt("WPLAIN") else SC
    if opt("W2NT"): WSC += " nt"
    ACC = 16
    SET = [96, 132, 168]
    XR = 204
    VP = 214
    acc = lambda nt, a: ACC + 4 * (4 * nt + a)
    srd(A, 24, WS, WS_USED)
    srd(A, 28, WS, 4 * HF_TILE)
    A(f"s_mul_i32 s50, s{S_T0}, {4*HF_TILE}")
    if HF_OFF: A(f"s_add_u32 s50, s50, {HF_OFF}")
    A("s_add_u32 s28, s28, s50\ns_addc_u32 s29, s29, 0")
    srd(A, 32, X_, X_BYTES)
    srd(A, 40, OUT, X_BYTES)
    A("v_lshlrev_b32 v2, 4, v1\nv_add_u32 v3, 4096, v2")
    for a_ in range(4):
        A(f"s_add_u32 s50, s{J}, {a_}\ns_and_b32 s50, s50, 3\ns_mul_i32 s50, s50, {HF_TILE}\nv_add_u32 v{4+a_}, s50, v2")
    RSTR = 336
    A(f"s_lshl_b32 s50, s{J}, 6\nv_add_u32 v8, s50, v1")
    A(f"s_mov_b32 s50, 3277\ns_mul_i32 s38, s{S_T0}, 1280\ns_mul_i32 s39, s{S_CT}, 160\ns_add_u32 s38, s38, s39")
    for n in range(5):
        A(f"v_add_u32 v9, {256*n}, v8\nv_mul_lo_u32 v10, s50, v9\nv_lshrrev_b32 v10, 16, v10")
        A("v_mul_u32_u24 v11, 20, v10\nv_sub_u32 v11, v9, v11")
        A(f"v_mul_u32_u24 v12, {RSTR}, v10\nv_lshlrev_b32 v13, 4, v11\nv_add_u32 v{220+n}, v12, v13")
        A("v_lshrrev_b32 v12, 5, v10\nv_mul_u32_u24 v12, 40960, v12\nv_and_b32 v10, 31, v10\nv_mul_u32_u24 v10, 81920, v10")
        A(f"v_lshlrev_b32 v11, 3, v11\nv_add3_u32 v{225+n}, v10, v12, v11")
    A(f"v_and_b32 v9, 15, v1\nv_mul_u32_u24 v9, {RSTR}, v9\nv_lshrrev_b32 v10, 4, v1\nv_lshlrev_b32 v10, 4, v10\nv_add_u32 v230, v9, v10")
    MXLAST = opt("MXLAST", 1)
    if MXLAST:
        A(f"s_add_u32 s44, s{J}, 12\ns_mov_b32 s45, s44")
    else:
        A(f"s_mov_b32 s44, s{J}\ns_mov_b32 s45, s44")
    A(f"s_mul_i32 s49, s{S_CT}, {54*5120}\ns_add_u32 s49, s49, {W2F_OFF}")
    def adv(r):
        A(f"s_add_u32 s{r}, s{r}, 4\ns_cmp_ge_u32 s{r}, 54\ns_cselect_b32 s{r}, s{J}, s{r}")
    def loadB(si):
        b = SET[si]
        A("s_mul_i32 s50, s44, 5120\ns_add_u32 s50, s50, s49")
        for n in range(4):
            A(f"buffer_load_dwordx4 v[{b+4*n}:{b+4*n+3}], v2, s[24:27], s50 offen offset:{1024*n} {WSC}")
        A(f"buffer_load_dwordx4 v[{b+16}:{b+19}], v3, s[24:27], s50 offen {WSC}")
        adv(44)
    def loadA(si, tstep=False):
        b = SET[si] + 20
        if tstep:
            A(f"s_add_u32 s50, s{J}, 2\ns_and_b32 s50, s50, 3\ns_add_u32 s50, s50, 54\ns_lshl_b32 s50, s50, 10")
        else:
            A("s_lshl_b32 s50, s45, 10")
        for a_ in range(4):
            A(f"buffer_load_dwordx4 v[{b+4*a_}:{b+4*a_+3}], v{4+a_}, s[28:31], s50 offen {HSC}")
        if not tstep: adv(45)
    def loadT(si):
        b = SET[si]
        A("s_mov_b32 s50, s46")
        for n in range(5):
            A(f"buffer_load_dwordx4 v[{b+4*n}:{b+4*n+3}], v10, s[24:27], s50 offen {SC}")
            if n < 4: A("s_add_u32 s50, s50, s47")
    def mfmas(si):
        b = SET[si]
        for a_ in range(4):
            for nt in range(5):
                c = acc(nt, a_)
                if not opt("NOCOMP2"):
                    A(f"{MFMA16} v[{c}:{c+3}], v[{b+4*nt}:{b+4*nt+3}], v[{b+20+4*a_}:{b+23+4*a_}], v[{c}:{c+3}]")
    def last_step(si):
        b = SET[si]
        def grp(a_):
            for nt in range(5):
                c = acc(nt, a_)
                if not opt("NOCOMP2"):
                    A(f"{MFMA16} v[{c}:{c+3}], v[{b+4*nt}:{b+4*nt+3}], v[{b+20+4*a_}:{b+23+4*a_}], v[{c}:{c+3}]")
        def addr(a_):
            A(f"s_add_u32 s50, s{J}, {a_}\ns_and_b32 s50, s50, 3\ns_mul_i32 s50, s50, {16*336}\ns_mul_i32 s51, s{J}, {64*336}\ns_add_u32 s50, s50, s51\nv_add_u32 v{232+a_}, s50, v230")
        def wr(a_):
            for nt in range(5):
                c = acc(nt, a_)
                A(f"ds_write_b128 v{232+a_}, v[{c}:{c+3}] offset:{nt*64}")
        grp(0); addr(0); addr(1); grp(1); addr(2); wr(0); grp(2); addr(3); wr(1); grp(3); A("s_nop 3"); wr(2); A("s_nop 3"); wr(3)
    def xorA(si):
        b = SET[si] + 20
        for k in range(16): A(f"v_xor_b32 v{b+k}, s48, v{b+k}")
        A("s_nop 0")
    NB0 = opt("NB0", 1)
    for si in range(NB0): loadB(si)
    for i in range(80): A(f"v_mov_b32 v{ACC+i}, 0")
    A(f"v_lshrrev_b32 v10, 4, v1\nv_mul_u32_u24 v10, {TF_ROW}, v10\nv_and_b32 v11, 15, v1")
    A(f"s_mul_i32 s50, s{S_CT}, 80\nv_add_u32 v12, s50, v11\nv_sub_u32 v13, 576, v12")
    A(f"s_cmp_lt_u32 s{S_CT}, 4\ns_cselect_b64 s[60:61], -1, 0\nv_cndmask_b32 v12, v13, v12, s[60:61]")
    A("v_lshlrev_b32 v12, 4, v12\nv_add_u32 v10, v10, v12")
    A(f"s_sub_u32 s46, 32, s{S_T0}\ns_and_b32 s46, s46, 31\ns_cmp_lt_u32 s{S_CT}, 4\ns_cselect_b32 s46, s{S_T0}, s46")
    A(f"s_mul_i32 s46, s46, {TF_T0}\ns_add_u32 s46, s46, {TF_OFF}")
    A(f"s_mov_b32 s47, 256\ns_mov_b32 s50, -256\ns_cmp_lt_u32 s{S_CT}, 4\ns_cselect_b32 s47, s47, s50\ns_cselect_b32 s50, 0, 1024\ns_cselect_b32 s48, 0x80000000, 0")
    A("s_add_u32 s46, s46, s50")
    A(f"s_add_u32 s50, s{J}, 2\ns_and_b32 s50, s50, 3\ns_mul_i32 s50, s50, {4*TF_ROW}\ns_add_u32 s46, s46, s50")
    A(f"s_lshl_b32 s50, s{S_CT}, 10\ns_add_u32 s50, s50, {FT_OFF}\nv_lshlrev_b32 v12, 3, v1\nv_add_u32 v12, s50, v12")
    A("v_and_b32 v13, 15, v1\nv_lshlrev_b32 v13, 3, v13\nv_add_u32 v13, s50, v13\nv_add_u32 v13, 512, v13")
    A(f"s_lshr_b32 s50, s{S_T0}, 1\ns_lshl_b32 s50, s50, 7\ns_add_u32 s50, s50, {FH_OFF}\nv_min_u32 v9, 4, v1\nv_lshlrev_b32 v9, 3, v9\nv_add_u32 v9, s50, v9")
    A(f"s_cmp_eq_u32 s{J}, 0\ns_cbranch_scc0 L_p2_lw")
    A(f"s_lshr_b32 s50, s{S_T0}, 1\ns_lshl_b32 s50, s50, 7\ns_add_u32 s50, s50, {FH_OFF}")
    if MXLAST:
        A("v_min_u32 v14, 10, v1\nv_add_u32 v14, 5, v14\nv_lshlrev_b32 v14, 3, v14\nv_add_u32 v11, s50, v14")
    else:
        A("v_and_b32 v14, 15, v1\nv_lshlrev_b32 v14, 3, v14\nv_add_u32 v11, s50, v14")
    A(f"buffer_load_dwordx2 v[{VP}:{VP+1}], v11, s[24:27], 0 offen {SC}\ns_waitcnt vmcnt(0)")
    if opt("SPINSTAMP") == "L_p2_sp1": stamp(A)
    spin(A, "L_p2_sp1", VP, 11, 24, xcc=True)
    A(f"v_mov_b32 v14, {LCNT + 16}\nv_mov_b32 v15, 1\nds_write_b32 v14, v15\ns_waitcnt lgkmcnt(0)")
    A("s_branch L_p2_go")
    A("L_p2_lw:")
    if opt("P2ONLY"): A("s_branch L_p2_go")
    A(f"v_mov_b32 v14, {LCNT + 16}")
    A("L_p2_lw1:\nds_read_b32 v15, v14\ns_waitcnt lgkmcnt(0)\ns_nop 0\nv_readfirstlane_b32 s50, v15\ns_nop 3\ns_cmp_eq_u32 s50, 1\ns_cbranch_scc1 L_p2_go")
    A(f"s_sleep 1\ns_sub_u32 s{S_SPIN}, s{S_SPIN}, 1\ns_cmp_eq_u32 s{S_SPIN}, 0\ns_cbranch_scc0 L_p2_lw1")
    A("L_p2_go:")
    stamp(A, 5)
    for si in range(NB0): loadA(si)
    for si in range(NB0, 3):
        loadB(si); loadA(si)
    def loadX():
        for n in range(5):
            A(f"buffer_load_dwordx2 v[{XR+2*n}:{XR+2*n+1}], v{225+n}, s[32:35], s38 offen")
    XLATE = opt("XLATE", 1)
    if not XLATE: loadX()
    def step(si, vm, pre):
        A(f"s_waitcnt vmcnt({vm})")
        mfmas(si)
        pre()
    reg = lambda si: (lambda: (loadB(si), loadA(si)))
    order = [(si, 4) for si in range(NB0)] + [(si, 9) for si in range(NB0, 3)] + ([] if XLATE else [(-1, 5)])
    for st_ in range(3):
        idx = max(i for i, (si, n) in enumerate(order) if si == st_)
        younger = sum(n for (si, n) in order[idx+1:]) + 9 * st_
        step(st_, younger, reg(st_))
        if opt("STEPSTAMP"): stamp(A)
    stamp(A)
    if MXLAST: A(f"buffer_load_dwordx2 v[{VP+4}:{VP+5}], v9, s[24:27], 0 offen {SC}")
    A("s_mov_b32 s51, 2")
    A("L_p2_loop:")
    for si in range(3):
        step(si, 18, reg(si))
        if opt("STEPSTAMP"): stamp(A)
    A("s_cmp_eq_u32 s51, 2\ns_cbranch_scc0 L_p2_nt")
    if MXLAST: spin(A, "L_p2_spm", VP + 4, 9, 24, xcc=True)
    if not opt("TLATE", 1):
        A(f"buffer_load_dwordx2 v[{VP}:{VP+1}], v12, s[24:27], 0 offen {SC}\nbuffer_load_dwordx2 v[{VP+2}:{VP+3}], v13, s[24:27], 0 offen {SC}")
    A("L_p2_nt:")
    A("s_sub_u32 s51, s51, 1\ns_cmp_lg_u32 s51, 0\ns_cbranch_scc1 L_p2_loop")
    stamp(A)
    TLATE = opt("TLATE", 1)
    if TLATE:
        A(f"buffer_load_dwordx2 v[{VP}:{VP+1}], v12, s[24:27], 0 offen {SC}\nbuffer_load_dwordx2 v[{VP+2}:{VP+3}], v13, s[24:27], 0 offen {SC}")
    step(0, 18, reg(0))
    def tcheck(tag, epoch):
        spin(A, tag + "2", VP, 12, 24)
        spin(A, tag + "3", VP + 2, 13, 24)
        if epoch:
            A(f"s_cmp_eq_u32 s2, 0\ns_cbranch_scc0 {tag}_noep\ns_cmp_eq_u32 s{J}, 0\ns_cbranch_scc0 {tag}_noep")
            A(f"v_mov_b32 v14, s{S_E}\nv_mov_b32 v15, {EP_OFF}\ns_mov_b64 exec, 1\nbuffer_store_dword v14, v15, s[24:27], 0 offen {SC}\ns_mov_b64 exec, -1")
            A(f"{tag}_noep:")
    if not TLATE: tcheck("L_p2_sp", True)
    stamp(A)
    A(f"s_cmp_lt_u32 s{J}, 2\ns_cbranch_scc0 L_p2_hi")
    step(1, 18, reg(1))
    step(2, 18, lambda: (tcheck("L_p2_lo", True) if TLATE else None, loadT(2), loadA(2, True), loadX() if XLATE else None))
    xq = 5 if XLATE else 0
    step(0, 18 + xq, lambda: None)
    step(1, 9 + xq, lambda: None)
    A(f"s_waitcnt vmcnt({xq})"); xorA(2); last_step(2)
    A("s_branch L_p2_red")
    A("L_p2_hi:")
    step(1, 18, lambda: ((A("s_waitcnt vmcnt(9)"), tcheck("L_p2_hi", False)) if TLATE else None, loadT(1), loadA(1, True), loadX() if XLATE else None))
    step(2, 18 + xq, lambda: None)
    step(0, 9 + xq, lambda: None)
    A(f"s_waitcnt vmcnt({xq})"); xorA(1); last_step(1)
    A("L_p2_red:")
    stamp(A)
    A("s_waitcnt lgkmcnt(0)\ns_barrier")
    R0 = 96
    def rd(n):
        for w in range(4):
            r = R0 + 16 * n + 4 * w
            A(f"ds_read_b128 v[{r}:{r+3}], v{220+n} offset:{w*64*336}")
    rd(0); rd(1); rd(2)
    OSC = SC if opt("OUTSC") else ""
    for n in range(5):
        r = R0 + 16 * n; x = XR + 2 * n
        if n == 0: A("s_waitcnt vmcnt(0) lgkmcnt(8)")
        elif n == 1: A("s_waitcnt lgkmcnt(8)")
        elif n == 2: A("s_waitcnt lgkmcnt(8)")
        elif n == 3: A("s_waitcnt lgkmcnt(4)")
        else: A("s_waitcnt lgkmcnt(0)")
        A(f"v_pk_add_f32 v[{r}:{r+1}], v[{r}:{r+1}], v[{r+4}:{r+5}]\nv_pk_add_f32 v[{r+2}:{r+3}], v[{r+2}:{r+3}], v[{r+6}:{r+7}]")
        A(f"v_pk_add_f32 v[{r+8}:{r+9}], v[{r+8}:{r+9}], v[{r+12}:{r+13}]\nv_pk_add_f32 v[{r+10}:{r+11}], v[{r+10}:{r+11}], v[{r+14}:{r+15}]")
        if n + 3 < 5: pass
        A(f"v_lshlrev_b32 v{r+4}, 16, v{x}\nv_and_b32 v{r+5}, 0xffff0000, v{x}\nv_lshlrev_b32 v{r+6}, 16, v{x+1}\nv_and_b32 v{r+7}, 0xffff0000, v{x+1}")
        A(f"v_pk_add_f32 v[{r}:{r+1}], v[{r}:{r+1}], v[{r+8}:{r+9}]\nv_pk_add_f32 v[{r+2}:{r+3}], v[{r+2}:{r+3}], v[{r+10}:{r+11}]")
        A(f"v_pk_add_f32 v[{r}:{r+1}], v[{r}:{r+1}], v[{r+4}:{r+5}]\nv_pk_add_f32 v[{r+2}:{r+3}], v[{r+2}:{r+3}], v[{r+6}:{r+7}]")
        A(f"v_cvt_pk_bf16_f32 v{x}, v{r}, v{r+1}\nv_cvt_pk_bf16_f32 v{x+1}, v{r+2}, v{r+3}")
        A(f"buffer_store_dwordx2 v[{x}:{x+1}], v{225+n}, s[40:43], s38 offen {OSC}")
        if n == 0: rd(3)
        if n == 1: rd(4)
    stamp(A)
    if opt("CLK") and asmlib.PROFILE:
        A("s_memtime s[90:91]\ns_waitcnt lgkmcnt(0)\ns_sub_u32 s90, s90, s88\ns_mov_b32 m0, 62\nv_writelane_b32 v0, s90, m0")
    stamp_flush(A, 0, WS, 9)
    A("s_endpgm")

def gen(A, name):
    global KNAME
    KNAME = name
    kernel_head(A, name)
    entry(A)
    if opt("P2ONLY"):
        A(f"s_mov_b32 s{S_SPIN}, 1\ns_cmp_lt_u32 s3, 4\ns_cbranch_scc1 L_end\ns_sub_u32 s{S_J}, s3, 4\ns_waitcnt lgkmcnt(0)\ns_branch L_ld_p2")
    A("s_cmp_ge_u32 s3, 4\ns_cbranch_scc1 L_loader")
    if opt("PRIOC"): A(f"s_setprio {opt('PRIOC')}")
    jobs_issue(A)
    A(f"s_cmp_lt_u32 s{S_C}, 5\ns_cbranch_scc1 L_mx")
    p1_hh(A)
    p1_mx(A)
    loader(A)
    A("L_end:\ns_endpgm\nL_code_end:")
```

```python
from asmlib import *
import asmlib
from layout import *

MFMA32 = "v_mfma_f32_32x32x16_bf16"
MFMA16 = "v_mfma_f32_16x16x32_bf16"
RING = 32768; NS = 4
SLOT = 20480; NS2 = 6
LX = NS2 * SLOT
LW = 132 * 1024
LST = 152 * 1024
LCS = LST + 1024
LCNT = LST + 2048
LDS_TOTAL = LCNT + 64
X_, SRE, SIM, HRE, HIM, WS = 4, 6, 8, 10, 12, 16
W1, W2, OUT, DBG = 64, 66, 68, 70
S_B, S_C, S_F0, S_J = 18, 19, 20, 21
S_T0, S_CT = 72, 73
S_SPIN = 74
SC = "sc1"
SPIN_MAX = 200000
CPW = 3

MAGIC = 0x5A3C96E1
S_E, S_EM = 75, 76
S_XCC = 77
S_LOCAL = 78

def spin(A, name, vp, vaddr, srdp, xcc=False):
    A(f"{name}:")
    if xcc:
        A(f"v_xor_b32 v{vp+1}, s{S_EM}, v{vp+1}\nv_cmp_ne_u32 vcc, s{S_E}, v{vp}\nv_cmp_lt_u32 s[60:61], 15, v{vp+1}\ns_nop 3\ns_or_b64 vcc, vcc, s[60:61]")
    else:
        A(f"v_cmp_ne_u32 vcc, s{S_E}, v{vp}\nv_cmp_ne_u32 s[60:61], s{S_EM}, v{vp+1}\ns_nop 3\ns_or_b64 vcc, vcc, s[60:61]")
    A(f"s_cbranch_vccz {name}_ok")
    if opt("P2ONLY"): A(f"s_branch {name}_ok")
    A(f"s_sub_u32 s{S_SPIN}, s{S_SPIN}, 1\ns_cmp_eq_u32 s{S_SPIN}, 0\ns_cbranch_scc1 {name}_ok")
    A(f"s_sleep {opt('SLEEP', 4)}")
    A(f"buffer_load_dwordx2 v[{vp}:{vp+1}], v{vaddr}, s[{srdp}:{srdp+3}], 0 offen {SC}\ns_waitcnt vmcnt(0)")
    if opt("SPINSTAMP") == name: stamp(A)
    A(f"s_branch {name}\n{name}_ok:")

def store_flags(A, vaddr, nlanes, srdp, vt, xcc=False, local=None):
    if xcc:
        A(f"s_xor_b32 s62, s{S_EM}, s{S_XCC}\nv_mov_b32 v{vt}, s{S_E}\nv_mov_b32 v{vt+1}, s62\ns_mov_b64 exec, {(1 << nlanes) - 1}")
    else:
        A(f"v_mov_b32 v{vt}, s{S_E}\nv_mov_b32 v{vt+1}, s{S_EM}\ns_mov_b64 exec, {(1 << nlanes) - 1}")
    if local:
        A(f"s_cmp_eq_u32 s{S_LOCAL}, 1\ns_cbranch_scc1 {local}_fp")
    A(f"buffer_store_dwordx2 v[{vt}:{vt+1}], v{vaddr}, s[{srdp}:{srdp+3}], 0 offen {SC}")
    if local:
        A(f"s_branch {local}_fd\n{local}_fp:")
        A(f"buffer_store_dwordx2 v[{vt}:{vt+1}], v{vaddr}, s[{srdp}:{srdp+3}], 0 offen")
        A(f"{local}_fd:")
    A("s_mov_b64 exec, -1")

def flag_addr_h(A, v):
    A(f"s_lshl_b32 s62, s{S_B}, 4\ns_add_u32 s62, s62, s{S_C}\ns_lshl_b32 s62, s62, 3\ns_add_u32 s62, s62, {FH_OFF}\nv_mov_b32 v{v}, s62")
def flag_addr_t(A, v):
    A(f"s_lshl_b32 s62, s{S_C}, 4\ns_add_u32 s62, s62, s{S_B}\ns_lshl_b32 s62, s62, 3\ns_add_u32 s62, s62, {FT_OFF}")
    A(f"v_lshlrev_b32 v{v}, 10, v1\nv_add_u32 v{v}, s62, v{v}")
def flag_addr_early(A, v):
    A(f"s_lshl_b32 s62, s{S_B}, 4\ns_add_u32 s62, s62, s{S_C}\ns_lshl_b32 s62, s62, 3\ns_add_u32 s58, s62, {FR1_OFF}")
    A(f"s_lshl_b32 s62, s{S_C}, 4\ns_add_u32 s62, s62, s{S_B}\ns_lshl_b32 s62, s62, 3\ns_add_u32 s62, s62, {FC1_OFF}")
    A(f"s_cmp_eq_u32 s3, 1\ns_cselect_b32 s58, s62, s58\nv_mov_b32 v{v}, s58")

def epoch_ready(A):
    A("s_waitcnt lgkmcnt(0)")
    A(f"s_add_u32 s{S_E}, s{S_E}, 1\ns_xor_b32 s{S_EM}, s{S_E}, {MAGIC}")
    srd(A, 48, WS, WS_USED)

def lds_arrive(A, word, vt, sdst):
    A(f"v_mov_b32 v{vt}, {LCNT + 4*word}\nv_mov_b32 v{vt+1}, 1\ns_mov_b64 exec, 1")
    A(f"ds_add_rtn_u32 v{vt+1}, v{vt}, v{vt+1}\ns_waitcnt lgkmcnt(0)\ns_mov_b64 exec, -1\ns_nop 0")
    A(f"v_readfirstlane_b32 s{sdst}, v{vt+1}")
    A("s_nop 3")

def entry(A):
    A("s_cmp_ge_u32 s2, 256\ns_cbranch_scc1 L_end")
    A(f"s_load_dwordx4 s[4:7], s[0:1], {KA_X}")
    A(f"s_load_dwordx4 s[8:11], s[0:1], {KA_SIM}")
    A(f"s_load_dwordx2 s[12:13], s[0:1], {KA_HIM}")
    A(f"s_load_dwordx4 s[64:67], s[0:1], {KA_W1}")
    A(f"s_load_dwordx4 s[68:71], s[0:1], {KA_OUT}")
    A(f"s_load_dwordx2 s[16:17], s[0:1], {KA_WS}")
    A("v_lshrrev_b32 v2, 6, v0\nv_and_b32 v1, 63, v0\ns_nop 0\nv_readfirstlane_b32 s3, v2")
    if opt("CODEPF", 1):
        A(f"s_nop 3\ns_cmp_eq_u32 s3, {CPW}\ns_cbranch_scc0 L_nocp")
        A("s_getpc_b64 s[50:51]\nJ_pc:")
        A(f"s_sub_u32 s50, s50, J_pc-{KNAME}\ns_subb_u32 s51, s51, 0")
        mode = opt("CPMODE", 1)
        A(f"s_mov_b32 s52, ((L_code_end-{KNAME})>>7)-1")
        if mode == 0:
            A("s_lshr_b32 s53, s2, 3\ns_mul_i32 s53, s53, 6\nv_add_u32 v22, s53, v1\nv_min_u32 v22, s52, v22\nv_lshlrev_b32 v22, 7, v22")
            A("v_mov_b32 v23, s51\nv_add_co_u32 v22, vcc, s50, v22\ns_nop 1\nv_addc_co_u32 v23, vcc, 0, v23, vcc")
            A("s_mov_b64 exec, 63\nglobal_load_dword v127, v[22:23], off\ns_mov_b64 exec, -1")
        else:
            for n in range(3):
                A(f"v_add_u32 v22, {64*n}, v1\nv_min_u32 v22, s52, v22\nv_lshlrev_b32 v22, 7, v22")
                A("v_mov_b32 v23, s51\nv_add_co_u32 v22, vcc, s50, v22\ns_nop 1\nv_addc_co_u32 v23, vcc, 0, v23, vcc")
                A(f"global_load_dword v{125+n}, v[22:23], off")
        A("L_nocp:")
    A("s_and_b32 s24, s2, 7\ns_lshr_b32 s25, s2, 3\ns_lshr_b32 s27, s25, 3\ns_and_b32 s28, s25, 7")
    if opt("MAP1", 1):
        A(f"s_lshl_b32 s26, s24, 1\ns_lshr_b32 s29, s25, 4\ns_add_u32 s{S_B}, s26, s29\ns_and_b32 s{S_C}, s25, 15")
    else:
        A(f"s_lshr_b32 s26, s24, 1\ns_lshl_b32 s26, s26, 2\ns_add_u32 s{S_B}, s26, s27")
        A(f"s_and_b32 s26, s24, 1\ns_lshl_b32 s26, s26, 3\ns_add_u32 s{S_C}, s26, s28")
    A(f"s_lshl_b32 s26, s{S_C}, 6\ns_lshl_b32 s29, s{S_C}, 7\ns_sub_u32 s29, s29, 320")
    A(f"s_cmp_lt_u32 s{S_C}, 5\ns_cselect_b32 s{S_F0}, s26, s29")
    A(f"s_lshl_b32 s24, s24, 2\ns_add_u32 s{S_T0}, s24, s27\ns_mov_b32 s{S_CT}, s28")
    A(f"s_mov_b32 s{S_SPIN}, {SPIN_MAX}")
    A(f"s_getreg_b32 s{S_XCC}, hwreg(HW_REG_XCC_ID)\ns_and_b32 s{S_XCC}, s{S_XCC}, 15")
    stamp_init(A)
    if opt("T0STAMP"): stamp(A, force=True)
    if opt("P2ONLY"): args_ready(A)

def args_ready(A):
    A("s_waitcnt lgkmcnt(0)")
    if opt("CLK"): A("s_memtime s[88:89]\ns_waitcnt lgkmcnt(0)")
    A(f"s_mov_b32 s62, {EP_OFF}\ns_load_dword s{S_E}, s[{WS}:{WS+1}], s62")
    stamp(A, 0, force=True)

def jobs_issue(A):
    A("s_cmp_eq_u32 s3, 0\ns_cbranch_scc1 J_x_i\ns_cmp_eq_u32 s3, 1\ns_cbranch_scc1 J_c_i")
    args_ready(A)
    srd(A, 36, WS, WS_USED)
    if opt("TLBPF", 1):
        A("s_cmp_eq_u32 s3, 2\ns_cbranch_scc0 J_i_done")
        srd(A, 40, OUT, X_BYTES); srd(A, 44, W2, W2_BYTES)
        A("v_lshlrev_b32 v22, 20, v1")
        A(f"s_mov_b64 exec, {(1 << ((WS_USED >> 20) + 1)) - 1}\nbuffer_load_dword v125, v22, s[36:39], 0 offen {SC}")
        A(f"s_mov_b64 exec, 7\nbuffer_load_dword v126, v22, s[40:43], 0 offen {SC}\nbuffer_load_dword v127, v22, s[44:47], 0 offen\ns_mov_b64 exec, -1")
    A("s_branch J_i_done")
    A("J_x_i:")
    A(f"s_lshr_b32 s48, s{S_C}, 2\ns_and_b32 s49, s{S_C}, 3")
    A(f"s_lshl_b32 s50, s{S_B}, 1\ns_and_b32 s51, s48, 1\ns_add_u32 s50, s50, s51")
    A("s_lshr_b32 s51, s48, 1\ns_lshl_b32 s51, s51, 5\ns_add_u32 s50, s50, s51")
    A("s_lshl_b32 s51, s49, 9\ns_add_u32 s50, s50, s51\ns_mul_i32 s50, s50, 1280")
    A("v_lshrrev_b32 v22, 3, v1\ns_mov_b32 s51, 81920\nv_mul_lo_u32 v22, s51, v22")
    A("v_and_b32 v23, 7, v1\nv_lshlrev_b32 v23, 4, v23\nv_add_u32 v22, v22, v23")
    A(f"v_mov_b32 v20, {LCNT}\nv_mov_b32 v24, 0\nv_mov_b32 v25, 0\nv_mov_b32 v26, 0\nv_mov_b32 v27, 0\nds_write_b128 v20, v[24:27]\nds_write_b128 v20, v[24:27] offset:16")
    args_ready(A)
    srd(A, 24, X_, X_BYTES)
    for i in range(10):
        A(f"buffer_load_dwordx4 v[{32+4*i}:{35+4*i}], v22, s[24:27], s50 offen offset:{128*i}")
    srd(A, 36, WS, WS_USED)
    A("s_branch J_i_done")
    A("J_c_i:")
    A("v_lshrrev_b32 v22, 4, v1\nv_mul_u32_u24 v22, 3456, v22\nv_and_b32 v23, 15, v1\nv_lshlrev_b32 v23, 4, v23\nv_add_u32 v22, v22, v23")
    A(f"s_mul_i32 s50, s{S_B}, {40*3456}\ns_lshl_b32 s51, s{S_F0}, 1\ns_add_u32 s50, s50, s51")
    A(f"s_cmp_eq_u32 s{S_C}, 0\ns_cbranch_scc0 J_c_np")
    A("v_and_b32 v23, 7, v1\nv_lshlrev_b32 v23, 4, v23\nv_bfe_u32 v24, v1, 3, 2\nv_lshlrev_b32 v24, 15, v24\nv_add_u32 v23, v23, v24")
    A(f"v_add_u32 v23, {16384+8192+4096}, v23")
    A("v_mov_b32 v24, 0xbf803f80\nv_mov_b32 v25, 0x3f80bf80\nv_mov_b32 v26, 0xbf803f80\nv_mov_b32 v27, 0x3f80bf80")
    A("ds_write_b128 v23, v[24:27]")
    A("J_c_np:")
    args_ready(A)
    srd(A, 28, W1, W1_BYTES)
    for i in range(10):
        A(f"buffer_load_dwordx4 v[{32+4*i}:{35+4*i}], v22, s[28:31], s50 offen")
        if i < 9: A(f"s_add_u32 s50, s50, {4*3456}")
    srd(A, 36, WS, WS_USED)
    A("J_i_done:")

def dpp_add(A, r, ctrl):
    A(f"v_add_f32_dpp v{r}, v{r}, v{r} {ctrl} row_mask:0xf bank_mask:0xf")

def jobs_finish(A, nG_, tagx):
    nG = tagx
    class _N(str):
        pass
    A("s_cmp_eq_u32 s3, 0\ns_cbranch_scc1 %s\ns_cmp_eq_u32 s3, 1\ns_cbranch_scc1 %s\ns_branch %s" % (f"J_x_{nG}", f"J_c_{nG}", f"J_done_{nG}"))
    A(f"J_x_{nG}:")
    A("v_mov_b32 v22, 0\nv_mov_b32 v23, 0\nv_mov_b32 v24, 0\nv_mov_b32 v25, 0\ns_mov_b32 s52, 0x3f803f80")
    for i in range(10):
        A(f"s_waitcnt vmcnt({9-i+nG_})")
        for k in range(4):
            r = 32 + 4 * i + k
            A(f"v_dot2_f32_bf16 v{22+(k&1)}, v{r}, s52, v{22+(k&1)}")
            A(f"v_dot2_f32_bf16 v{24+(k&1)}, v{r}, v{r}, v{24+(k&1)}")
    A("s_nop 2\nv_add_f32 v22, v22, v23\nv_add_f32 v24, v24, v25\ns_nop 1")
    for ctrl in ["quad_perm:[1,0,3,2]", "quad_perm:[2,3,0,1]", "row_half_mirror"]:
        dpp_add(A, 22, ctrl); dpp_add(A, 24, ctrl); A("s_nop 0")
    A("s_mov_b32 s52, 0x3acccccd\nv_mul_f32 v22, s52, v22\nv_mul_f32 v24, s52, v24")
    A("v_fma_f32 v24, -v22, v22, v24\nv_max_f32 v24, 0, v24\nv_add_f32 v24, 0x3727c5ac, v24\nv_rsq_f32 v23, v24")
    A(f"s_lshl_b32 s52, s{S_B}, 10\ns_lshl_b32 s53, s{S_C}, 5\ns_add_u32 s52, s52, s53\ns_add_u32 s52, s52, {ST_OFF}")
    A("v_lshrrev_b32 v25, 3, v1\nv_lshlrev_b32 v25, 2, v25")
    A("v_and_b32 v26, 7, v1\nv_cmp_eq_u32 vcc, 0, v26\ns_and_saveexec_b64 s[54:55], vcc")
    A(f"buffer_store_dword v22, v25, s[36:39], s52 offen {SC}\nbuffer_store_dword v23, v25, s[36:39], s52 offen offset:512 {SC}")
    A("s_mov_b64 exec, s[54:55]")
    A(f"s_branch J_done_{nG}")
    A(f"J_c_{nG}:")
    for k in range(8): A(f"v_mov_b32 v{72+k}, 0")
    A("s_mov_b32 s52, 0x00003f80\ns_mov_b32 s53, 0x3f800000")
    for i in range(10):
        A(f"s_waitcnt vmcnt({9-i+nG_})")
        for k in range(4):
            r = 32 + 4 * i + k
            A(f"v_dot2_f32_bf16 v{72+2*k}, v{r}, s52, v{72+2*k}")
            A(f"v_dot2_f32_bf16 v{73+2*k}, v{r}, s53, v{73+2*k}")
    A("s_nop 2")
    for sw in ["v_permlane16_swap_b32", "v_permlane32_swap_b32"]:
        for k in range(8): A(f"v_mov_b32 v{80+k}, v{72+k}")
        A("s_nop 0")
        for k in range(8): A(f"{sw} v{72+k}, v{80+k}")
        A("s_nop 0")
        for k in range(8): A(f"v_add_f32 v{72+k}, v{72+k}, v{80+k}")
    A(f"s_lshl_b32 s52, s{S_B}, 13\ns_lshl_b32 s53, s{S_F0}, 2\ns_add_u32 s52, s52, s53\ns_add_u32 s52, s52, {CS_OFF}")
    A(f"v_lshlrev_b32 v22, 5, v1\ns_mov_b32 s53, 16\ns_cmp_lt_u32 s{S_C}, 5\ns_cselect_b32 s53, 8, s53")
    A("v_cmp_gt_u32 vcc, s53, v1\ns_and_saveexec_b64 s[54:55], vcc")
    A(f"buffer_store_dwordx4 v[72:75], v22, s[36:39], s52 offen {SC}\nbuffer_store_dwordx4 v[76:79], v22, s[36:39], s52 offen offset:16 {SC}")
    A("s_mov_b64 exec, s[54:55]")
    A(f"s_branch J_done_{nG}")
    A(f"J_done_{nG}:")
    A(f"s_cmp_ge_u32 s3, 2\ns_cbranch_scc0 J_dn2_{nG}\ns_waitcnt vmcnt(0)\nJ_dn2_{nG}:")

def x_addr(A, dst, rowbase_sgpr, tmp):
    A(f"v_and_b32 v{tmp}, 31, v1\nv_add_u32 v{tmp+1}, s{rowbase_sgpr}, v{tmp}\nv_lshlrev_b32 v{tmp+1}, 7, v{tmp+1}")
    A(f"v_bfe_u32 v{tmp}, v1, 1, 3\nv_lshrrev_b32 v{tmp+2}, 5, v1\nv_xor_b32 v{tmp}, v{tmp}, v{tmp+2}")
    A(f"v_lshlrev_b32 v{tmp}, 4, v{tmp}\nv_add_u32 v{dst}, v{tmp+1}, v{tmp}")
    for j in range(1, 4):
        A(f"v_xor_b32 v{dst+j}, {32*j}, v{dst}")
def h_tr_addr(A, dst, tmp):
    A(f"v_bfe_u32 v{tmp}, v1, 5, 1\nv_lshlrev_b32 v{tmp}, 3, v{tmp}\nv_bfe_u32 v{tmp+1}, v1, 2, 2\nv_add_u32 v{tmp}, v{tmp}, v{tmp+1}")
    A(f"v_lshlrev_b32 v{tmp}, 7, v{tmp}")
    A(f"v_bfe_u32 v{tmp+1}, v1, 4, 1\nv_lshlrev_b32 v{tmp+1}, 1, v{tmp+1}\nv_bfe_u32 v{tmp+2}, v1, 1, 1\nv_add_u32 v{tmp+1}, v{tmp+1}, v{tmp+2}")
    A(f"v_bfe_u32 v{tmp+2}, v1, 3, 1\nv_lshlrev_b32 v{tmp+2}, 2, v{tmp+2}\nv_xor_b32 v{tmp+1}, v{tmp+1}, v{tmp+2}")
    A(f"v_lshlrev_b32 v{tmp+1}, 4, v{tmp+1}\nv_add_u32 v{tmp}, v{tmp}, v{tmp+1}")
    A(f"v_and_b32 v{tmp+1}, 1, v1\nv_lshlrev_b32 v{tmp+1}, 3, v{tmp+1}\nv_add_u32 v{dst}, v{tmp}, v{tmp+1}")
def interleave(A, mfmas, fillers, per_gap):
    if opt("NOCOMP1"):
        for f in fillers:
            if not f.startswith("ds_read") and not f.startswith("v_perm"): A(f)
        return
    k = 0
    for i, m in enumerate(mfmas):
        A(m)
        for _ in range(per_gap[i]):
            if k < len(fillers):
                A(fillers[k]); k += 1
    while k < len(fillers):
        A(fillers[k]); k += 1
def h_epilogue_tile(A, acc, mr, cs, tmp, vaddr, soff):
    for i in range(0, 16, 2):
        A(f"v_pk_fma_f32 v[{acc+i}:{acc+i+1}], v[{cs+i}:{cs+i+1}], v[{mr}:{mr+1}], v[{acc+i}:{acc+i+1}] op_sel:[0,0,0] op_sel_hi:[1,0,1] neg_lo:[0,1,0] neg_hi:[0,1,0]")
    for i in range(0, 16, 2):
        A(f"v_pk_mul_f32 v[{acc+i}:{acc+i+1}], v[{acc+i}:{acc+i+1}], v[{mr}:{mr+1}] op_sel:[0,1] op_sel_hi:[1,1]")
    for i in range(0, 16, 2):
        A(f"v_cvt_pk_bf16_f32 v{tmp+i//2}, v{acc+i}, v{acc+i+1}")
    for i in range(8):
        A(f"v_pk_max_i16 v{tmp+i}, v{tmp+i}, 0")
    if opt("LOCALH", 2) != 1:
        A(f"buffer_store_dwordx4 v[{tmp}:{tmp+3}], v{vaddr}, s[36:39], s{soff} offen {SC}")
        A(f"buffer_store_dwordx4 v[{tmp+4}:{tmp+7}], v{vaddr}, s[36:39], s{soff} offen offset:512 {SC}")
        return
    h_epilogue_tile.n += 1
    n = h_epilogue_tile.n
    A(f"s_cmp_eq_u32 s{S_LOCAL}, 1\ns_cbranch_scc1 L_hst{n}_p")
    A(f"buffer_store_dwordx4 v[{tmp}:{tmp+3}], v{vaddr}, s[36:39], s{soff} offen {SC}")
    A(f"buffer_store_dwordx4 v[{tmp+4}:{tmp+7}], v{vaddr}, s[36:39], s{soff} offen offset:512 {SC}")
    A(f"s_branch L_hst{n}_d\nL_hst{n}_p:")
    hst = {0: "", 1: "nt", 2: "sc0", 3: "sc0 nt"}[opt("HST", 0)]
    A(f"buffer_store_dwordx4 v[{tmp}:{tmp+3}], v{vaddr}, s[36:39], s{soff} offen {hst}")
    A(f"buffer_store_dwordx4 v[{tmp+4}:{tmp+7}], v{vaddr}, s[36:39], s{soff} offen offset:512 {hst}")
    A(f"L_hst{n}_d:")
h_epilogue_tile.n = 0
def h_store_voff(A, dst, tmp):
    A(f"v_bfe_u32 v{tmp}, v1, 4, 1\nv_mul_u32_u24 v{tmp}, {58*1024}, v{tmp}")
    A(f"v_lshrrev_b32 v{tmp+1}, 5, v1\nv_lshlrev_b32 v{tmp+1}, 8, v{tmp+1}\nv_add_u32 v{tmp}, v{tmp}, v{tmp+1}")
    A(f"v_and_b32 v{tmp+1}, 15, v1\nv_lshlrev_b32 v{tmp+1}, 4, v{tmp+1}\nv_add_u32 v{dst}, v{tmp}, v{tmp+1}")

def loop_hooks_top(A, tag):
    A(f"s_cmp_eq_u32 s29, s30\ns_cbranch_scc1 {tag}_flag1\n{tag}_flag1_ret:")
def loop_hooks_init(A):
    A(f"s_cmp_lt_u32 s3, 2\ns_cselect_b32 s30, {10 - opt('EARLY_IT', 1)}, 99")
def loop_hooks_ool(A, tag):
    A(f"{tag}_flag1:")
    flag_addr_early(A, 28)
    A("s_waitcnt vmcnt(0)")
    store_flags(A, 28, 1, 48, 30, xcc=True)
    A(f"s_branch {tag}_flag1_ret")

def publish(A, tag, word, kind, vt):
    A("s_waitcnt vmcnt(0)")
    lds_arrive(A, word, vt, 63)
    A(f"s_cmp_eq_u32 s63, 3\ns_cbranch_scc0 {tag}_np")
    if kind == "h":
        flag_addr_h(A, vt - 1); store_flags(A, vt - 1, 1, 48, vt, xcc=True, local=(tag if opt("LOCALF", 1) else None))
    else:
        flag_addr_t(A, vt - 1); store_flags(A, vt - 1, 8, 48, vt)
    A(f"{tag}_np:")

def p1_hh(A):
    A("L_hh:")
    ACC = 128; P, Q = 32, 64
    XB, WB = 2, 6; XC, WC = 8, 12
    A("s_lshr_b32 s24, s3, 1\ns_and_b32 s25, s3, 1")
    A("s_lshl_b32 s26, s24, 6")
    x_addr(A, XB, 26, 20)
    h_tr_addr(A, WB, 20)
    A("s_lshl_b32 s27, s25, 13\ns_add_u32 s27, s27, 16384")
    A(f"v_add_u32 v{WB}, s27, v{WB}\nv_xor_b32 v{WB+1}, 64, v{WB}")
    for i in range(64): A(f"v_mov_b32 v{ACC+i}, 0")
    for j in range(4): A(f"v_mov_b32 v{XC+j}, v{XB+j}")
    for j in range(2): A(f"v_mov_b32 v{WC+j}, v{WB+j}")
    A(f"v_and_b32 v20, 31, v1\nv_add_u32 v20, s26, v20\nv_lshlrev_b32 v20, 2, v20\nv_add_u32 v20, {LST}, v20")
    A(f"v_lshrrev_b32 v21, 5, v1\nv_lshlrev_b32 v21, 4, v21\ns_lshl_b32 s33, s25, 8\ns_add_u32 s33, s33, {LCS}\nv_add_u32 v21, s33, v21")
    h_store_voff(A, 19, 26)
    A(f"s_lshl_b32 s31, s{S_B}, 3\ns_lshl_b32 s32, s24, 1\ns_add_u32 s31, s31, s32\ns_mul_i32 s31, s31, 58")
    A(f"s_lshr_b32 s32, s{S_F0}, 5\ns_lshl_b32 s33, s25, 1\ns_add_u32 s32, s32, s33\ns_add_u32 s31, s31, s32")
    A(f"s_lshl_b32 s31, s31, 10\ns_add_u32 s31, s31, {HF_OFF}")
    jobs_finish(A, 0, 'h')
    epoch_ready(A)
    A("s_mov_b32 s28, 0")
    loop_hooks_init(A)
    def reads(buf, g):
        out = []
        for jj in range(2):
            j = 2 * g + jj; b = buf + 16 * jj
            out.append(f"ds_read_b128 v[{b}:{b+3}], v{XC+j}")
            out.append(f"ds_read_b64_tr_b16 v[{b+8}:{b+9}], v{WC} offset:{j*2048}")
            out.append(f"ds_read_b64_tr_b16 v[{b+10}:{b+11}], v{WC} offset:{j*2048+512}")
            out.append(f"ds_read_b128 v[{b+4}:{b+7}], v{XC+j} offset:4096")
            out.append(f"ds_read_b64_tr_b16 v[{b+12}:{b+13}], v{WC+1} offset:{j*2048}")
            out.append(f"ds_read_b64_tr_b16 v[{b+14}:{b+15}], v{WC+1} offset:{j*2048+512}")
        return out
    def mfmas(buf):
        out = []
        for jj in range(2):
            b = buf + 16 * jj
            for ft in range(2):
                for st in range(2):
                    a = ACC + 16 * (2 * ft + st)
                    out.append(f"{MFMA32} v[{a}:{a+15}], v[{b+8+4*ft}:{b+11+4*ft}], v[{b+4*st}:{b+3+4*st}], v[{a}:{a+15}]")
        return out
    stamp(A, 1)
    A("s_waitcnt lgkmcnt(0)\ns_barrier")
    stamp(A, 2)
    for r in reads(P, 0):
        if not opt("NOCOMP1"): A(r)
    A("s_mov_b32 s29, 10")
    A("L_hh_loop:")
    A.drop = (["v_mfma"] if opt("NOMF1") else []) + (["ds_read"] if opt("NODS1") else []) + (["v_perm"] if opt("NOPERM") else [])
    loop_hooks_top(A, "L_hh")
    A("s_waitcnt lgkmcnt(0)")
    A("s_cmp_eq_u32 s29, 1\ns_cbranch_scc1 L_hh_pre\nL_hh_pre_ret:")
    if opt("HHSTAMP"): stamp(A)
    upd = [f"v_add_u32 v{XC+j}, s28, v{XB+j}" for j in range(4)] + [f"v_add_u32 v{WC+j}, s28, v{WB+j}" for j in range(2)]
    ring = [f"s_add_u32 s28, s28, {RING}", f"s_and_b32 s28, s28, {NS*RING-1}"]
    pat = opt("HHPAT", 0)
    g1 = [[3, 3, 3, 3, 2, 3, 3, 0], [4, 4, 4, 2, 3, 3, 0, 0], [6, 6, 2, 3, 3, 0, 0, 0]][pat]
    g2 = [[3, 3, 3, 3, 0, 0, 0, 0], [4, 4, 4, 0, 0, 0, 0, 0], [6, 6, 0, 0, 0, 0, 0, 0]][pat]
    interleave(A, mfmas(P), reads(Q, 1) + ring + upd, g1)
    if opt("HHSTAMP"): A("s_waitcnt lgkmcnt(0)"); stamp(A)
    A("s_waitcnt lgkmcnt(0)")
    A("s_barrier")
    if opt("HHSTAMP"): stamp(A)
    interleave(A, mfmas(Q), reads(P, 0), g2)
    A.drop = []
    A("s_sub_u32 s29, s29, 1\ns_cmp_lg_u32 s29, 0\ns_cbranch_scc1 L_hh_loop")
    A("s_waitcnt lgkmcnt(0)")
    stamp(A, 3)
    A(f"v_readfirstlane_b32 s{S_LOCAL}, v18")
    A("s_nop 7")
    for st in range(2):
        for ft in range(2):
            A(f"s_add_u32 s32, s31, {(st*4*58+ft)*1024}")
            h_epilogue_tile(A, ACC + 16 * (2 * ft + st), 14 + 2 * st, 96 + 16 * ft, 64 + 8 * ((2 * st + ft) & 3), 19, 32)
    stamp(A, 4)
    publish(A, "L_hh_pub", 0, "h", 30)
    stamp(A)
    stamp_flush(A, 0, WS, 9)
    A("s_endpgm")
    loop_hooks_ool(A, "L_hh")
    A("L_hh_pre:")
    A("ds_read_b32 v14, v20\nds_read_b32 v15, v20 offset:512\nds_read_b32 v16, v20 offset:128\nds_read_b32 v17, v20 offset:640")
    A(f"v_mov_b32 v18, {LCNT + 12}\nds_read_b32 v18, v18")
    for ft in range(2):
        for q in range(4):
            b = 96 + 16 * ft + 4 * q
            A(f"ds_read_b128 v[{b}:{b+3}], v21 offset:{ft*128+q*32}")
    A("s_branch L_hh_pre_ret")

def p1_mx(A):
    A("L_mx:")
    P, Q = 32, 72
    EV, OD = 112, 116
    CE, CO, SE, SO = 120, 124, 128, 132
    HA, HB = 136, 152
    EC, ES, OC, OS = 168, 184, 200, 216
    G = 232
    XAB, WHB = 2, 6
    XAC, XBC, DAC, WHC = 7, 11, 15, 19
    A("v_and_b32 v24, 31, v1\nv_cvt_f32_u32 v24, v24\nv_lshrrev_b32 v25, 5, v1\nv_cvt_f32_u32 v25, v25")
    A("v_mul_f32 v25, 0x3e000000, v25\nv_mul_f32 v25, v25, v24")
    for p in range(2):
        for uh in range(2):
            for u2 in range(2):
                for k in range(2):
                    c = 16 * p + 8 * uh + 2 * u2 + k
                    import struct
                    lit = struct.unpack("<I", struct.pack("<f", c / 32.0))[0]
                    A(f"v_fmamk_f32 v26, v24, {lit:#x}, v25\nv_fract_f32 v26, v26")
                    A(f"v_cos_f32 v{28+k}, v26\nv_sin_f32 v{30+k}, v26")
                A("s_nop 0")
                A(f"v_cvt_pk_bf16_f32 v{G+4*p+2*uh+u2}, v28, v29\nv_cvt_pk_bf16_f32 v{G+16+4*p+2*uh+u2}, v30, v31")
    for i in range(8):
        A(f"v_xor_b32 v{G+8+i}, 0x80008000, v{G+16+i}")
    A("s_lshr_b32 s24, s3, 1\ns_and_b32 s25, s3, 1")
    A("s_lshl_b32 s26, s3, 5\ns_xor_b32 s27, s26, 32")
    x_addr(A, XAB, 26, 24)
    h_tr_addr(A, WHB, 24)
    A(f"s_lshl_b32 s30, s25, 6\nv_xor_b32 v{WHB}, s30, v{WHB}\nv_add_u32 v{WHB}, 16384, v{WHB}")
    for i in range(96): A(f"v_mov_b32 v{HA+i}, 0")
    A("s_lshl_b32 s31, s3, 12\ns_sub_u32 s31, 24576, s31")
    def upd(js=(0, 1, 2, 3), wh=True):
        o = [f"v_add_u32 v{XAC+j}, s28, v{XAB+j}" for j in js] + ([f"v_add_u32 v{WHC}, s28, v{WHB}"] if wh else [])
        o += [f"v_xor_b32 v{XBC+j}, 0x1000, v{XAC+j}" for j in js]
        o += [f"v_add_u32 v{DAC+j}, s31, v{XAC+j}" for j in js]
        return o
    A("s_mov_b32 s28, 0")
    for t in upd(): A(t)
    jobs_finish(A, 0, 'm')
    epoch_ready(A)
    loop_hooks_init(A)
    A("s_mov_b32 s34, 0x05040100\ns_mov_b32 s35, 0x07060302")
    def reads(buf, m):
        out = []
        for jj in range(2):
            j = 2 * m + jj
            out.append(f"ds_read_b128 v[{buf+4*jj}:{buf+4*jj+3}], v{XAC+j}")
        for jj in range(2):
            j = 2 * m + jj
            out.append(f"ds_read_b64_tr_b16 v[{buf+16+4*jj}:{buf+17+4*jj}], v{WHC} offset:{j*2048}")
            out.append(f"ds_read_b64_tr_b16 v[{buf+18+4*jj}:{buf+19+4*jj}], v{WHC} offset:{j*2048+512}")
            out.append(f"ds_read_b128 v[{buf+8+4*jj}:{buf+11+4*jj}], v{XBC+j}")
        for jj in range(2):
            j = 2 * m + jj
            out.append(f"ds_read_b128 v[{buf+24+4*jj}:{buf+27+4*jj}], v{DAC+j}")
            out.append(f"ds_read_b128 v[{buf+32+4*jj}:{buf+35+4*jj}], v{DAC+j} offset:4096")
        return out
    def perms(src, e, o):
        ev = [f"v_perm_b32 v{e+k}, v{src+2*k+1}, v{src+2*k}, s34" for k in range(4)]
        od = [f"v_perm_b32 v{o+k}, v{src+2*k+1}, v{src+2*k}, s35" for k in range(4)]
        return ev, od
    def half(cur, nxt, m_next, extra):
        rd = reads(nxt, m_next)
        if opt("NOCOMP1"):
            for t in extra: A(t)
            return
        xe, xo = perms(cur, EV, OD); ce, co = perms(cur + 24, CE, CO); se, so = perms(cur + 32, SE, SO)
        H = []
        for jj in range(2):
            w = cur + 16 + 4 * jj
            H.append(f"{MFMA32} v[{HA}:{HA+15}], v[{w}:{w+3}], v[{cur+4*jj}:{cur+4*jj+3}], v[{HA}:{HA+15}]")
            H.append(f"{MFMA32} v[{HB}:{HB+15}], v[{w}:{w+3}], v[{cur+8+4*jj}:{cur+11+4*jj}], v[{HB}:{HB+15}]")
        Dm = [f"{MFMA32} v[{EC}:{EC+15}], v[{EV}:{EV+3}], v[{CE}:{CE+3}], v[{EC}:{EC+15}]",
              f"{MFMA32} v[{OC}:{OC+15}], v[{OD}:{OD+3}], v[{CO}:{CO+3}], v[{OC}:{OC+15}]",
              f"{MFMA32} v[{ES}:{ES+15}], v[{EV}:{EV+3}], v[{SE}:{SE+3}], v[{ES}:{ES+15}]",
              f"{MFMA32} v[{OS}:{OS+15}], v[{OD}:{OD+3}], v[{SO}:{SO+3}], v[{OS}:{OS+15}]"]
        if opt("MXSCHED", 1):
            ex = list(extra)
            def take(n):
                t = ex[:n]; del ex[:n]; return t
            pad = lambda n: (take(n) + ["s_nop 0"] * n)[:n]
            ms = H + [Dm[0], Dm[2], Dm[1], Dm[3]]
            gaps = [xe[0:2] + rd[0:3], xe[2:4] + rd[3:6], ce[0:2] + rd[6:9], ce[2:4] + rd[9:12],
                    se + xo[0:2], xo[2:4] + co + pad(2), so + pad(2), None]
            gaps[7] = ex
        else:
            gaps = [xe + rd[0:2], ce + rd[2:4], xo + rd[4:6], co + rd[6:8], se + rd[8:10], so + rd[10:12], extra[:8], extra[8:]]
            ms = H + Dm
        for i in range(8):
            A(ms[i])
            for t in gaps[i]: A(t)
    stamp(A, 1)
    A("s_waitcnt lgkmcnt(0)\ns_barrier")
    stamp(A, 2)
    for r in reads(P, 0):
        if not opt("NOCOMP1"): A(r)
    A("s_mov_b32 s29, 10")
    A("L_mx_loop:")
    A.drop = (["v_mfma"] if opt("NOMF1") else []) + (["ds_read"] if opt("NODS1") else []) + (["v_perm"] if opt("NOPERM") else [])
    loop_hooks_top(A, "L_mx")
    A("s_waitcnt lgkmcnt(0)")
    if opt("HHSTAMP"): stamp(A)
    ring = [f"s_add_u32 s28, s28, {RING}", f"s_and_b32 s28, s28, {NS*RING-1}"]
    if opt("MXSCHED", 1):
        half(P, Q, 1, ring + upd((0, 1), True))
        if opt("HHSTAMP"): A("s_waitcnt lgkmcnt(0)"); stamp(A)
        A("s_waitcnt lgkmcnt(0)")
        A("s_barrier")
        if opt("HHSTAMP"): stamp(A)
        half(Q, P, 0, upd((2, 3), False))
    else:
        half(P, Q, 1, ring + upd())
        A("s_waitcnt lgkmcnt(0)")
        A("s_barrier")
        half(Q, P, 0, [])
    A.drop = []
    A("s_sub_u32 s29, s29, 1\ns_cmp_lg_u32 s29, 0\ns_cbranch_scc1 L_mx_loop")
    A("s_waitcnt lgkmcnt(0)")
    stamp(A, 3)
    A(f"v_and_b32 v24, 31, v1\nv_add_u32 v25, s26, v24\nv_lshlrev_b32 v25, 2, v25\nv_add_u32 v25, {LST}, v25")
    A(f"v_add_u32 v26, s27, v24\nv_lshlrev_b32 v26, 2, v26\nv_add_u32 v26, {LST}, v26")
    A("ds_read_b32 v2, v25\nds_read_b32 v3, v25 offset:512\nds_read_b32 v4, v26\nds_read_b32 v5, v26 offset:512")
    A(f"v_mov_b32 v7, {LCNT + 12}\nds_read_b32 v7, v7")
    A(f"v_lshrrev_b32 v27, 5, v1\nv_lshlrev_b32 v27, 4, v27\ns_lshl_b32 s30, s25, 7\ns_add_u32 s30, s30, {LCS}\nv_add_u32 v28, s30, v27")
    for q in range(4):
        A(f"ds_read_b128 v[{32+4*q}:{35+4*q}], v28 offset:{q*32}")
    A(f"s_lshl_b32 s30, s26, 2\ns_add_u32 s30, s30, {LST+512}\nv_add_u32 v28, s30, v27")
    for q in range(4):
        A(f"ds_read_b128 v[{48+4*q}:{51+4*q}], v28 offset:{q*32}")
    h_store_voff(A, 6, 28)
    A(f"s_lshl_b32 s31, s{S_B}, 3\ns_lshl_b32 s30, s24, 1\ns_add_u32 s31, s31, s30\ns_mul_i32 s31, s31, 58")
    A(f"s_lshr_b32 s30, s{S_F0}, 5\ns_add_u32 s30, s30, s25\ns_add_u32 s31, s31, s30")
    A(f"s_lshl_b32 s31, s31, 10\ns_add_u32 s31, s31, {HF_OFF}")
    A(f"s_mul_i32 s30, s25, {4*58*1024}\ns_add_u32 s32, s31, s30")
    A(f"s_xor_b32 s30, s25, 1\ns_mul_i32 s30, s30, {4*58*1024}\ns_add_u32 s33, s31, s30")
    A("s_waitcnt lgkmcnt(0)")
    A(f"v_readfirstlane_b32 s{S_LOCAL}, v7")
    A("s_nop 7")
    h_epilogue_tile(A, HA, 2, 32, 64, 6, 32)
    h_epilogue_tile(A, HB, 4, 32, 72, 6, 33)
    stamp(A, 4)
    if opt("MXPUB", 0): publish(A, "L_mx_pubh", 0, "h", 30)
    stamp(A)
    R = 48
    for i in range(0, 16, 2):
        for a in (EC, OC, ES, OS):
            A(f"v_pk_mul_f32 v[{a+i}:{a+i+1}], v[{a+i}:{a+i+1}], v[{R+i}:{R+i+1}]")
    T0, T1 = 80, 96
    for i in range(0, 16, 2):
        A(f"v_pk_add_f32 v[{T0+i}:{T0+i+1}], v[{EC+i}:{EC+i+1}], v[{OC+i}:{OC+i+1}]")
        A(f"v_pk_add_f32 v[{EC+i}:{EC+i+1}], v[{EC+i}:{EC+i+1}], v[{OC+i}:{OC+i+1}] neg_lo:[0,1] neg_hi:[0,1]")
        A(f"v_pk_add_f32 v[{T1+i}:{T1+i+1}], v[{ES+i}:{ES+i+1}], v[{OS+i}:{OS+i+1}]")
        A(f"v_pk_add_f32 v[{OC+i}:{OC+i+1}], v[{OS+i}:{OS+i+1}], v[{ES+i}:{ES+i+1}] neg_lo:[0,1] neg_hi:[0,1]")
    A("v_and_b32 v24, 31, v1\nv_cmp_eq_u32 s[40:41], 0, v24\ns_nop 3")
    A(f"s_cmp_eq_u32 s{S_C}, 0\ns_cselect_b64 s[40:41], s[40:41], 0\ns_cbranch_scc0 L_mx_nofix")
    for i in range(16):
        A(f"v_cndmask_b32 v{T0+i}, v{T0+i}, v{ES+i}, s[40:41]")
        A(f"v_cndmask_b32 v{T1+i}, v{T1+i}, v{OS+i}, s[40:41]")
        A(f"v_cndmask_b32_e64 v{OC+i}, v{OC+i}, 0, s[40:41]")
    A("L_mx_nofix:")
    ZB = 32
    for k, a in enumerate([T0, T1, EC, OC]):
        for i in range(0, 16, 2):
            A(f"v_cvt_pk_bf16_f32 v{ZB+8*k+i//2}, v{a+i}, v{a+i+1}")
    Fr = lambda p: f"v[{G+4*p}:{G+4*p+3}]"
    Fi = lambda p: f"v[{G+8+4*p}:{G+8+4*p+3}]"
    nFi = lambda p: f"v[{G+16+4*p}:{G+16+4*p+3}]"
    Z = lambda k, p: f"v[{ZB+8*k+4*p}:{ZB+8*k+4*p+3}]"
    TR = [EC, OC]; TI = [ES, OS]
    A("s_nop 1")
    for st_ in range(2):
        zr, zi = 2 * st_, 2 * st_ + 1
        tr, ti = TR[st_], TI[st_]
        A(f"{MFMA32} v[{tr}:{tr+15}], {Fr(0)}, {Z(zr,0)}, 0")
        A(f"{MFMA32} v[{ti}:{ti+15}], {Fr(0)}, {Z(zi,0)}, 0")
        A(f"{MFMA32} v[{tr}:{tr+15}], {Fr(1)}, {Z(zr,1)}, v[{tr}:{tr+15}]")
        A(f"{MFMA32} v[{ti}:{ti+15}], {Fr(1)}, {Z(zi,1)}, v[{ti}:{ti+15}]")
        A(f"{MFMA32} v[{tr}:{tr+15}], {nFi(0)}, {Z(zi,0)}, v[{tr}:{tr+15}]")
        A(f"{MFMA32} v[{ti}:{ti+15}], {Fi(0)}, {Z(zr,0)}, v[{ti}:{ti+15}]")
        A(f"{MFMA32} v[{tr}:{tr+15}], {nFi(1)}, {Z(zi,1)}, v[{tr}:{tr+15}]")
        A(f"{MFMA32} v[{ti}:{ti+15}], {Fi(1)}, {Z(zr,1)}, v[{ti}:{ti+15}]")
    if not opt("MXPUB", 0): publish(A, "L_mx_pubh", 0, "h", 30)
    else: A("s_nop 7")
    stamp(A)
    A(f"v_and_b32 v24, 31, v1\nv_lshlrev_b32 v24, 2, v24\nv_lshrrev_b32 v25, 5, v1\nv_lshlrev_b32 v25, 9, v25\nv_add_u32 v24, v24, v25")
    A(f"s_lshl_b32 s30, s3, 13\ns_add_u32 s30, s30, {LX}\nv_add_u32 v24, s30, v24")
    A("s_nop 7")
    for st_ in range(2):
        for i in range(16):
            A(f"v_cvt_pk_bf16_f32 v{64+16*st_+i}, v{TR[st_]+i}, v{TI[st_]+i}")
    for st_ in range(2):
        for i in range(16):
            t0 = (i & 3) + 8 * (i >> 2)
            A(f"ds_write_b32 v24, v{64+16*st_+i} offset:{st_*4096+t0*128}")
    A("s_waitcnt lgkmcnt(0)")
    stamp(A)
    lds_arrive(A, 1, 30, 63)
    A(f"v_mov_b32 v30, {LCNT+4}")
    A("L_mx_rv:\nds_read_b32 v31, v30\ns_waitcnt lgkmcnt(0)\ns_nop 0\nv_readfirstlane_b32 s63, v31\ns_nop 3\ns_cmp_ge_u32 s63, 4\ns_cbranch_scc1 L_mx_rv_ok")
    A(f"s_sub_u32 s{S_SPIN}, s{S_SPIN}, 1\ns_cmp_eq_u32 s{S_SPIN}, 0\ns_cbranch_scc0 L_mx_rv\nL_mx_rv_ok:")
    A("v_and_b32 v24, 31, v1\nv_lshlrev_b32 v24, 2, v24\nv_lshrrev_b32 v25, 5, v1\nv_lshlrev_b32 v26, 7, v25\nv_add_u32 v24, v24, v26")
    A(f"s_lshl_b32 s30, s3, 10\ns_add_u32 s30, s30, {LX}\nv_add_u32 v24, s30, v24")
    for st_ in range(2):
        for n in range(4):
            b = 64 + 16 * st_ + 4 * n
            for w in range(4):
                A(f"ds_read_b32 v{b+w}, v24 offset:{w*8192+st_*4096+n*256}")
    A(f"v_and_b32 v26, 31, v1\ns_lshl_b32 s30, s{S_C}, 5\nv_add_u32 v27, s30, v26")
    A("v_mov_b32 v28, 160\nv_cndmask_b32 v29, v27, v28, s[40:41]")
    A("v_sub_u32 v27, 320, v27")
    A(f"s_mov_b32 s30, {TF_T0}\nv_mul_lo_u32 v25, s30, v25")
    A("v_lshlrev_b32 v29, 4, v29\nv_add_u32 v29, v29, v25")
    A("v_lshlrev_b32 v27, 4, v27\nv_add_u32 v27, v27, v25")
    A(f"s_mul_i32 s30, s3, {8*TF_T0}\ns_mul_i32 s31, s{S_B}, {TF_ROW}\ns_add_u32 s30, s30, s31\ns_add_u32 s30, s30, {TF_OFF}")
    A("s_waitcnt lgkmcnt(0)")
    for st_ in range(2):
        for n in range(4):
            b = 64 + 16 * st_ + 4 * n
            A(f"s_add_u32 s31, s30, {2*n*TF_T0}")
            if not opt("NOTST"): A(f"buffer_store_dwordx4 v[{b}:{b+3}], v{29 if st_ == 0 else 27}, s[36:39], s31 offen {'' if opt('TPLAIN') else SC}")
    stamp(A)
    A(f"s_cmp_eq_u32 s{S_C}, 0\ns_cbranch_scc0 L_mx_noz\ns_cmp_eq_u32 s3, 0\ns_cbranch_scc0 L_mx_noz")
    A(f"s_mov_b32 s30, {TF_T0}\nv_and_b32 v24, 31, v1\nv_mul_lo_u32 v24, s30, v24")
    A("v_mov_b32 v4, 0\nv_mov_b32 v5, 0\nv_mov_b32 v6, 0\nv_mov_b32 v7, 0")
    A(f"s_mul_i32 s31, s{S_B}, {TF_ROW}\ns_add_u32 s31, s31, {TF_OFF}")
    A(f"buffer_store_dwordx4 v[4:7], v24, s[36:39], s31 offen {SC}")
    A("L_mx_noz:")
    publish(A, "L_mx_pubt", 2, "t", 30)
    stamp(A)
    stamp_flush(A, 0, WS, 9)
    A("s_endpgm")
    loop_hooks_ool(A, "L_mx")

def loader(A):
    A("L_loader:")
    if opt("PRIOL"): A(f"s_setprio {opt('PRIOL')}")
    A(f"s_sub_u32 s{S_J}, s3, 4")
    for r in [11, 12, 13, 52, 53, 54, 55, 56, 57, 58, 59]: A(f"v_mov_b32 v{r}, 0")
    A("s_mov_b32 s58, 0\ns_mov_b32 s59, 99\ns_mov_b32 s63, 0")
    RS = 1280 if opt("XLIN") else 81920
    A(f"v_lshrrev_b32 v4, 3, v1\ns_mov_b32 s40, {RS}\nv_mul_lo_u32 v8, s40, v4")
    A("v_and_b32 v5, 7, v1\nv_lshrrev_b32 v6, 4, v1\nv_xor_b32 v5, v5, v6\nv_lshlrev_b32 v5, 4, v5")
    A("v_add_u32 v2, v8, v5\nv_xor_b32 v7, 64, v5")
    A(f"v_add_u32 v3, v8, v7\nv_add_u32 v3, {8*RS}, v3")
    A(f"s_lshl_b32 s40, s{S_B}, 1\ns_and_b32 s41, s{S_J}, 1\ns_add_u32 s40, s40, s41")
    A(f"s_lshr_b32 s41, s{S_J}, 1\ns_lshl_b32 s41, s41, 5\ns_add_u32 s40, s40, s41")
    if opt("XLIN"):
        A(f"s_lshl_b32 s40, s{S_B}, 2\ns_add_u32 s40, s40, s{S_J}\ns_mul_i32 s40, s40, {32*1280}\ns_add_u32 s41, s40, {16*1280}")
    else:
        A(f"s_mul_i32 s40, s40, 1280\ns_add_u32 s41, s40, {16*81920}")
    A("s_mov_b64 s[56:57], -1")
    A(f"s_cmp_lt_u32 s{S_C}, 5\ns_cbranch_scc0 L_ld_H")
    A(f"s_cmp_ge_u32 s{S_J}, 2\ns_cbranch_scc0 L_ld_H")
    A(f"s_and_b32 s50, s{S_J}, 1\ns_add_u32 s50, s50, 1\ns_mov_b32 s30, {HID_BYTES}")
    A("v_mul_u32_u24 v8, 1280, v4\nv_add_u32 v9, v8, v5")
    A(f"v_add_u32 v10, v8, v7\nv_add_u32 v10, {8*1280}, v10")
    A(f"s_mul_i32 s42, s{S_C}, {32*1280}")
    A(f"s_mov_b32 s44, s42\ns_mov_b32 s45, s42\ns_add_u32 s46, s42, {16*1280}\ns_add_u32 s47, s42, {16*1280}")
    A("s_mov_b32 s43, 128")
    A(f"s_cmp_eq_u32 s{S_C}, 0\ns_cbranch_scc0 L_ld_go\ns_cmp_eq_u32 s{S_J}, 3\ns_cbranch_scc0 L_ld_go")
    A("s_mov_b32 s56, 0xffffff00")
    A("s_branch L_ld_go")
    A("L_ld_H:")
    A(f"s_mov_b32 s50, 0\ns_mov_b32 s30, {W1_BYTES}")
    A("v_mul_u32_u24 v8, 3456, v4")
    A("v_and_b32 v9, 7, v1\nv_bfe_u32 v10, v1, 4, 1\nv_lshlrev_b32 v10, 2, v10\nv_xor_b32 v9, v9, v10")
    A("v_lshlrev_b32 v9, 4, v9\nv_add_u32 v9, v8, v9\nv_mov_b32 v10, v9")
    A(f"s_and_b32 s42, s{S_J}, 1\ns_mul_i32 s42, s42, {32*3456}")
    A(f"s_lshr_b32 s43, s{S_J}, 1\ns_lshl_b32 s43, s43, 6\ns_add_u32 s43, s43, s{S_F0}\ns_lshl_b32 s43, s43, 1")
    A("s_add_u32 s42, s42, s43")
    for q in range(4):
        A(f"s_add_u32 s{44+q}, s42, {8*q*3456}")
    A(f"s_mov_b32 s43, {64*3456}")
    A("L_ld_go:")
    A(f"s_lshl_b32 s48, s{S_J}, 12\ns_mov_b32 s31, 0x20000")
    args_ready(A)
    srd(A, 24, X_, X_BYTES)
    A(f"s_cmp_eq_u32 s50, 1\ns_cselect_b32 s28, s{HRE}, s{W1}\ns_cselect_b32 s29, s{HRE+1}, s{W1+1}")
    A(f"s_cmp_eq_u32 s50, 2\ns_cselect_b32 s28, s{HIM}, s28\ns_cselect_b32 s29, s{HIM+1}, s29")
    def chunk(slot_reg):
        for q in range(0 if opt("NOLOAD1") else 4):
            A(f"s_add_u32 m0, s{slot_reg}, {q*1024}")
            A("s_nop 0")
            A(f"buffer_load_dwordx4 v{2+(q&1)}, s[24:27], s{40+(q>>1)} offen {'nt ' if opt('XNT') else ''}lds")
            A(f"s_add_u32 m0, s{slot_reg}, {16384+q*1024}")
            if q == 0: A("s_mov_b64 exec, s[56:57]")
            else: A("s_nop 0")
            A(f"buffer_load_dwordx4 v{9+(q&1)}, s[28:31], s{44+q} offen {'nt ' if opt('WNT') else ''}lds")
            if q == 0: A("s_mov_b64 exec, -1")
        A("s_add_u32 s40, s40, 128\ns_add_u32 s41, s41, 128")
        for q in range(4):
            A(f"s_add_u32 s{44+q}, s{44+q}, s43")
        A(f"s_add_u32 s{slot_reg}, s{slot_reg}, {RING}\ns_cmp_ge_u32 s{slot_reg}, {NS*RING}\ns_cselect_b32 s52, {NS*RING}, 0\ns_sub_u32 s{slot_reg}, s{slot_reg}, s52")
    A("s_mov_b32 s49, s48")
    chunk(49); chunk(49)
    stamp(A, 1)
    srd(A, 36, WS, WS_USED)
    srd(A, 32, WS, WS_USED)
    A("s_waitcnt lgkmcnt(0)")
    A(f"s_add_u32 s{S_E}, s{S_E}, 1\ns_xor_b32 s{S_EM}, s{S_E}, {MAGIC}")
    A(f"s_cmp_ge_u32 s{S_J}, 2\ns_cbranch_scc0 L_ld_su01")
    A(f"s_sub_u32 s58, s{S_J}, 2\ns_lshl_b32 s59, s{S_T0}, 1\ns_add_u32 s59, s59, s58")
    A("s_mov_b32 s50, 6554\ns_mov_b32 s53, 1280")
    for q in range(5):
        A(f"v_add_u32 v22, {64*q}, v1")
        A("v_mul_lo_u32 v23, s50, v22\nv_lshrrev_b32 v23, 16, v23")
        A("v_mul_u32_u24 v24, 10, v23\nv_sub_u32 v24, v22, v24\nv_lshlrev_b32 v24, 4, v24")
        A(f"v_mul_lo_u32 v23, s53, v23\nv_add_u32 v{52+q}, v23, v24")
    A("v_lshrrev_b32 v23, 4, v1\nv_lshrrev_b32 v24, 1, v23\nv_lshlrev_b32 v24, 4, v24")
    A("v_and_b32 v25, 1, v23\nv_lshlrev_b32 v25, 2, v25\nv_add_u32 v24, v24, v25\nv_bfe_u32 v25, v1, 2, 2\nv_add_u32 v24, v24, v25")
    A("v_mul_u32_u24 v24, 160, v24\nv_and_b32 v25, 3, v1\nv_lshlrev_b32 v25, 3, v25\nv_add_u32 v24, v24, v25")
    A(f"s_mul_i32 s50, s58, 5120\ns_add_u32 s50, s50, {LW}\nv_add_u32 v57, s50, v24")
    A(f"s_lshl_b32 s50, s{S_CT}, 6\ns_add_u32 s50, s50, s59\ns_lshl_b32 s50, s50, 3\ns_add_u32 s50, s50, {FW_OFF}\nv_mov_b32 v58, s50")
    A("s_branch L_ld_sud")
    A("L_ld_su01:")
    A("v_lshlrev_b32 v13, 3, v1\nv_and_b32 v16, 31, v1\nv_lshlrev_b32 v15, 3, v16")
    A(f"s_lshl_b32 s50, s{S_B}, 7\ns_add_u32 s50, s50, {FR1_OFF}\nv_add_u32 v12, s50, v15")
    A(f"s_lshl_b32 s50, s{S_C}, 7\ns_add_u32 s50, s50, {FC1_OFF-128}\nv_add_u32 v15, s50, v15")
    A("v_cmp_le_u32 vcc, 16, v16\ns_nop 1\nv_cndmask_b32 v12, v12, v15, vcc")
    A(f"s_lshl_b32 s50, s{S_CT}, 9\ns_add_u32 s50, s50, {FW_OFF}\nv_add_u32 v11, s50, v13")
    A("L_ld_sud:")
    A("s_waitcnt vmcnt(8)")
    stamp(A, 2)
    A("s_barrier")
    chunk(49)
    A(f"s_cmp_ge_u32 s{S_J}, 2\ns_cbranch_scc1 L_ld_h1w\nL_ld_h1w_ret:")
    A(f"s_cmp_ge_u32 s{S_J}, 2\ns_cbranch_scc1 L_ld_b1w")
    A("s_waitcnt vmcnt(8)\ns_branch L_ld_b1d\nL_ld_b1w:")
    A("s_cmp_ge_u32 s59, 54\ns_cbranch_scc1 L_ld_b1n\ns_waitcnt vmcnt(13)\ns_branch L_ld_b1d\nL_ld_b1n:\ns_waitcnt vmcnt(8)\nL_ld_b1d:")
    A("s_barrier")
    stamp(A)
    pk = opt("POLLK", 5)
    assert pk in (5, 6)
    A(f"s_mov_b32 s53, 99\ns_mov_b32 s54, 99\ns_mov_b32 s55, 0\ns_mov_b32 s79, 99\ns_mov_b32 s81, 99\ns_mov_b32 s82, 99\ns_mov_b32 s83, 0")
    A(f"s_cmp_eq_u32 s{S_J}, 0\ns_cselect_b32 s53, {9-pk}, s53\ns_cselect_b32 s54, {9-pk-2}, s54\ns_cselect_b32 s55, {9-pk-1}, s55\ns_cselect_b32 s81, {9-pk-2}, s81")
    A(f"s_cmp_eq_u32 s{S_J}, 1\ns_cselect_b32 s53, {opt('FWPOLL', 1)}, s53")
    A(f"s_cmp_ge_u32 s{S_J}, 2\ns_cselect_b32 s82, 6, s82\ns_cselect_b32 s79, 3, s79\ns_cselect_b32 s83, 1, s83")
    A("s_mov_b32 s51, 7")
    A("L_ld_loop:")
    A("s_cmp_eq_u32 s51, s54\ns_cbranch_scc1 L_ld_h2\nL_ld_h2_ret:")
    chunk(49)
    A("s_cmp_eq_u32 s51, s79\ns_cbranch_scc1 L_ld_h3\nL_ld_h3_ret:")
    A("s_cmp_eq_u32 s51, s53\ns_cbranch_scc1 L_ld_h1\nL_ld_h1_ret:")
    A("s_cmp_eq_u32 s51, s81\ns_cbranch_scc1 L_ld_h4\nL_ld_h4_ret:")
    A("s_cmp_eq_u32 s51, s82\ns_cbranch_scc1 L_ld_h2w\nL_ld_h2w_ret:")
    A("s_cmp_lt_u32 s51, s55\ns_cbranch_scc1 L_ld_w25")
    A("s_cmp_eq_u32 s83, 0\ns_cbranch_scc1 L_ld_w8")
    A("s_cmp_eq_u32 s51, 6\ns_cbranch_scc1 L_ld_wW\ns_cmp_eq_u32 s51, 5\ns_cbranch_scc1 L_ld_wW")
    A("s_cmp_eq_u32 s51, 3\ns_cbranch_scc1 L_ld_w9\ns_cmp_eq_u32 s51, 2\ns_cbranch_scc1 L_ld_w9")
    A("L_ld_w8:\ns_waitcnt vmcnt(8)\ns_branch L_ld_wd")
    A("L_ld_wW:\ns_cmp_ge_u32 s59, 54\ns_cbranch_scc1 L_ld_w8\ns_waitcnt vmcnt(13)\ns_branch L_ld_wd\nL_ld_w9:\ns_waitcnt vmcnt(9)\ns_branch L_ld_wd")
    A("L_ld_w25:\ns_waitcnt vmcnt(17)\nL_ld_wd:")
    stamp(A)
    A("s_barrier")
    stamp(A)
    A("s_sub_u32 s51, s51, 1\ns_cmp_lg_u32 s51, 0\ns_cbranch_scc1 L_ld_loop")
    A("s_waitcnt vmcnt(0)")
    if not opt("WLATE", 1):
        A(f"s_cmp_eq_u32 s{S_J}, 1\ns_cbranch_scc0 L_ld_no1")
        spin(A, "L_ld_spw", 48, 11, 32, xcc=True)
        A("L_ld_no1:")
    A(f"s_cmp_eq_u32 s{S_J}, 0\ns_cbranch_scc0 L_ld_nored")
    for b_ in range(1, 8):
        for k in range(4): A(f"v_add_f32 v{16+k}, v{16+k}, v{16+4*b_+k}")
    for k in range(4): A(f"v_mov_b32 v{20+k}, v{16+k}")
    A("s_nop 1")
    for k in range(4): A(f"v_permlane32_swap_b32 v{16+k}, v{20+k}")
    A("s_nop 0")
    for k in range(4): A(f"v_add_f32 v{16+k}, v{16+k}, v{20+k}")
    A(f"v_add_u32 v13, {LCS}, v13\nds_write_b128 v13, v[16:19]\ns_waitcnt lgkmcnt(0)")
    A("L_ld_nored:")
    A("s_barrier")
    stamp(A)
    A("s_barrier")
    A("s_branch L_ld_p2")
    A("L_ld_h1:")
    A(f"s_cmp_eq_u32 s{S_J}, 1\ns_cbranch_scc1 L_ld_h1f")
    A(f"buffer_load_dwordx2 v[14:15], v12, s[32:35], 0 offen {SC}")
    A("s_branch L_ld_h1_ret")
    A("L_ld_h1f:")
    A(f"buffer_load_dwordx2 v[48:49], v11, s[32:35], 0 offen {SC}")
    A("s_branch L_ld_h1_ret")
    A("L_ld_h1w:")
    if opt("NOW"): A("s_branch L_ld_h1w_ret")
    A("s_cmp_ge_u32 s59, 54\ns_cbranch_scc1 L_ld_h1w_ret")
    srd(A, 84, W2, W2_BYTES)
    A(f"s_mul_i32 s50, s59, 40960\ns_mul_i32 s62, s{S_CT}, 160\ns_add_u32 s50, s50, s62")
    A(f"s_mul_i32 s62, s58, 5120\ns_add_u32 s62, s62, {LW}")
    for q in range(5):
        A(f"s_add_u32 m0, s62, {1024*q}\ns_nop 0")
        A(f"buffer_load_dwordx4 v{52+q}, s[84:87], s50 offen lds")
    A("s_branch L_ld_h1w_ret")
    A("L_ld_h2:")
    spin(A, "L_ld_sp", 14, 12, 32, xcc=True)
    A(f"v_and_b32 v50, 16, v1\nv_cmp_eq_u32 s[60:61], 0, v50\nv_cmp_ne_u32 vcc, s{S_XCC}, v15\ns_nop 3\ns_and_b64 vcc, vcc, s[60:61]")
    A(f"s_cmp_eq_u64 vcc, 0\ns_cselect_b32 s62, {1 if opt('LOCALH', 2) and opt('MAP1', 1) else 0}, 0")
    A(f"v_mov_b32 v50, {LCNT + 12}\nv_mov_b32 v51, s62\nds_write_b32 v50, v51")
    A("s_branch L_ld_h2_ret")
    A("L_ld_h4:")
    A(f"s_lshl_b32 s50, s{S_B}, 10\ns_add_u32 s50, s50, {ST_OFF}\ns_mov_b32 m0, {LST}\nv_lshlrev_b32 v13, 4, v1")
    A(f"buffer_load_dwordx4 v13, s[36:39], s50 offen {SC} lds")
    A(f"s_lshl_b32 s50, s{S_F0}, 2\ns_add_u32 s50, s50, {CS_OFF}")
    A("v_and_b32 v13, 31, v1\nv_lshlrev_b32 v13, 4, v13\nv_lshrrev_b32 v14, 5, v1\nv_lshlrev_b32 v14, 13, v14\nv_add_u32 v14, v13, v14")
    for b_ in range(8):
        A(f"buffer_load_dwordx4 v[{16+4*b_}:{19+4*b_}], v14, s[36:39], s50 offen {SC}")
        if b_ < 7: A("s_add_u32 s50, s50, 16384")
    A("s_branch L_ld_h4_ret")
    A("L_ld_h2w:")
    A("v_lshlrev_b32 v22, 4, v1")
    if opt("NOW"): A("s_branch L_ld_h2w_ret")
    A("s_cmp_ge_u32 s59, 54\ns_cbranch_scc1 L_ld_h2w_ret")
    for n in range(5):
        A(f"ds_read_b64_tr_b16 v[{24+4*n}:{25+4*n}], v57 offset:{32*n}")
        A(f"ds_read_b64_tr_b16 v[{26+4*n}:{27+4*n}], v57 offset:{32*n+1280}")
    A(f"s_mul_i32 s50, s{S_CT}, 54\ns_add_u32 s50, s50, s59\ns_mul_i32 s50, s50, 5120\ns_add_u32 s50, s50, {W2F_OFF}")
    A("v_add_u32 v23, 4096, v22\ns_waitcnt lgkmcnt(0)")
    for n in range(4):
        A(f"buffer_store_dwordx4 v[{24+4*n}:{27+4*n}], v22, s[32:35], s50 offen offset:{1024*n} {SC}")
    A(f"buffer_store_dwordx4 v[40:43], v23, s[32:35], s50 offen {SC}")
    A("s_branch L_ld_h2w_ret")
    A("L_ld_h3:")
    store_flags(A, 58, 1, 32, 64, xcc=True)
    A("s_branch L_ld_h3_ret")
    A("L_ld_p2:")
    stamp(A, 3)
    if opt("P1ONLY"):
        stamp_flush(A, 0, WS, 9)
        A("s_endpgm")
    if opt("WLATE", 1):
        A(f"v_mov_b32 v16, {LCNT + 20}")
        A(f"s_cmp_eq_u32 s{S_J}, 1\ns_cbranch_scc0 L_ld_ww")
        spin(A, "L_ld_spw", 48, 11, 32, xcc=True)
        A("v_mov_b32 v17, 1\nds_write_b32 v16, v17\ns_waitcnt lgkmcnt(0)\ns_branch L_ld_wgo")
        A("L_ld_ww:\nds_read_b32 v17, v16\ns_waitcnt lgkmcnt(0)\ns_nop 0\nv_readfirstlane_b32 s50, v17\ns_nop 3\ns_cmp_eq_u32 s50, 1\ns_cbranch_scc1 L_ld_wgo")
        A(f"s_sub_u32 s{S_SPIN}, s{S_SPIN}, 1\ns_cmp_eq_u32 s{S_SPIN}, 0\ns_cbranch_scc0 L_ld_ww")
        A("L_ld_wgo:")
    p2(A)

def p2(A):
    J = S_J
    HSC = "" if opt("HPLAIN") else SC
    WSC = "" if opt("WPLAIN") else SC
    if opt("W2NT"): WSC += " nt"
    ACC = 16
    SET = [96, 132, 168]
    XR = 204
    VP = 214
    acc = lambda nt, a: ACC + 4 * (4 * nt + a)
    srd(A, 24, WS, WS_USED)
    srd(A, 28, WS, 4 * HF_TILE)
    A(f"s_mul_i32 s50, s{S_T0}, {4*HF_TILE}")
    if HF_OFF: A(f"s_add_u32 s50, s50, {HF_OFF}")
    A("s_add_u32 s28, s28, s50\ns_addc_u32 s29, s29, 0")
    srd(A, 32, X_, X_BYTES)
    srd(A, 40, OUT, X_BYTES)
    A("v_lshlrev_b32 v2, 4, v1\nv_add_u32 v3, 4096, v2")
    for a_ in range(4):
        A(f"s_add_u32 s50, s{J}, {a_}\ns_and_b32 s50, s50, 3\ns_mul_i32 s50, s50, {HF_TILE}\nv_add_u32 v{4+a_}, s50, v2")
    RSTR = 336
    A(f"s_lshl_b32 s50, s{J}, 6\nv_add_u32 v8, s50, v1")
    A(f"s_mov_b32 s50, 3277\ns_mul_i32 s38, s{S_T0}, 1280\ns_mul_i32 s39, s{S_CT}, 160\ns_add_u32 s38, s38, s39")
    for n in range(5):
        A(f"v_add_u32 v9, {256*n}, v8\nv_mul_lo_u32 v10, s50, v9\nv_lshrrev_b32 v10, 16, v10")
        A("v_mul_u32_u24 v11, 20, v10\nv_sub_u32 v11, v9, v11")
        A(f"v_mul_u32_u24 v12, {RSTR}, v10\nv_lshlrev_b32 v13, 4, v11\nv_add_u32 v{220+n}, v12, v13")
        A("v_lshrrev_b32 v12, 5, v10\nv_mul_u32_u24 v12, 40960, v12\nv_and_b32 v10, 31, v10\nv_mul_u32_u24 v10, 81920, v10")
        A(f"v_lshlrev_b32 v11, 3, v11\nv_add3_u32 v{225+n}, v10, v12, v11")
    A(f"v_and_b32 v9, 15, v1\nv_mul_u32_u24 v9, {RSTR}, v9\nv_lshrrev_b32 v10, 4, v1\nv_lshlrev_b32 v10, 4, v10\nv_add_u32 v230, v9, v10")
    FFR = 236
    A(f"s_add_u32 s50, s{J}, 2\ns_and_b32 s50, s50, 3\ns_lshl_b32 s50, s50, 3\nv_lshrrev_b32 v9, 4, v1\nv_lshlrev_b32 v9, 1, v9\nv_add_u32 v9, s50, v9")
    A(f"s_mov_b32 s51, 0x3a000000\ns_mov_b32 s52, 0xba000000\ns_cmp_lt_u32 s{S_CT}, 4\ns_cselect_b32 s52, s51, s52")
    A("v_and_b32 v10, 15, v1\nv_lshlrev_b32 v10, 6, v10")
    for a_ in range(4):
        A(f"s_add_u32 s50, s{J}, {a_}\ns_and_b32 s50, s50, 3\ns_lshr_b32 s53, s50, 1\ns_lshl_b32 s53, s53, 5\ns_and_b32 s50, s50, 1\ns_lshl_b32 s50, s50, 10")
        A(f"s_add_u32 s50, s50, s53\ns_add_u32 s50, s50, s{S_T0}\nv_add_u32 v11, s50, v10")
        for k, ds in enumerate([0, 1, 32, 33]):
            A(f"v_add_u32 v12, {ds}, v9\nv_mul_u32_u24 v12, v11, v12\nv_and_b32 v12, 0x7ff, v12\nv_cvt_f32_u32 v12, v12")
            A(f"v_mul_f32 v13, s51, v12\nv_mul_f32 v12, s52, v12\nv_cos_f32 v13, v13\nv_sin_f32 v12, v12\ns_nop 0\nv_cvt_pk_bf16_f32 v{FFR+4*a_+k}, v13, v12")
    MXLAST = opt("MXLAST", 1)
    if MXLAST:
        A(f"s_add_u32 s44, s{J}, 12\ns_mov_b32 s45, s44")
    else:
        A(f"s_mov_b32 s44, s{J}\ns_mov_b32 s45, s44")
    A(f"s_mul_i32 s49, s{S_CT}, {54*5120}\ns_add_u32 s49, s49, {W2F_OFF}")
    def adv(r):
        A(f"s_add_u32 s{r}, s{r}, 4\ns_cmp_ge_u32 s{r}, 54\ns_cselect_b32 s{r}, s{J}, s{r}")
    def loadB(si):
        b = SET[si]
        A("s_mul_i32 s50, s44, 5120\ns_add_u32 s50, s50, s49")
        for n in range(4):
            A(f"buffer_load_dwordx4 v[{b+4*n}:{b+4*n+3}], v2, s[24:27], s50 offen offset:{1024*n} {WSC}")
        A(f"buffer_load_dwordx4 v[{b+16}:{b+19}], v3, s[24:27], s50 offen {WSC}")
        adv(44)
    def loadA(si):
        b = SET[si] + 20
        A("s_lshl_b32 s50, s45, 10")
        for a_ in range(4):
            A(f"buffer_load_dwordx4 v[{b+4*a_}:{b+4*a_+3}], v{4+a_}, s[28:31], s50 offen {HSC}")
        adv(45)
    def loadT(si):
        b = SET[si]
        A("s_mov_b32 s50, s46")
        for n in range(5):
            A(f"buffer_load_dwordx4 v[{b+4*n}:{b+4*n+3}], v10, s[24:27], s50 offen {SC}")
            if n < 4: A("s_add_u32 s50, s50, s47")
    def mfmas(si):
        b = SET[si]
        for a_ in range(4):
            for nt in range(5):
                c = acc(nt, a_)
                if not opt("NOCOMP2"):
                    A(f"{MFMA16} v[{c}:{c+3}], v[{b+4*nt}:{b+4*nt+3}], v[{b+20+4*a_}:{b+23+4*a_}], v[{c}:{c+3}]")
    def last_step(si):
        b = SET[si]
        def grp(a_):
            for nt in range(5):
                c = acc(nt, a_)
                if not opt("NOCOMP2"):
                    A(f"{MFMA16} v[{c}:{c+3}], v[{b+4*nt}:{b+4*nt+3}], v[{FFR+4*a_}:{FFR+4*a_+3}], v[{c}:{c+3}]")
        def addr(a_):
            A(f"s_add_u32 s50, s{J}, {a_}\ns_and_b32 s50, s50, 3\ns_mul_i32 s50, s50, {16*336}\ns_mul_i32 s51, s{J}, {64*336}\ns_add_u32 s50, s50, s51\nv_add_u32 v{232+a_}, s50, v230")
        def wr(a_):
            for nt in range(5):
                c = acc(nt, a_)
                A(f"ds_write_b128 v{232+a_}, v[{c}:{c+3}] offset:{nt*64}")
        grp(0); addr(0); addr(1); grp(1); addr(2); wr(0); grp(2); addr(3); wr(1); grp(3); A("s_nop 3"); wr(2); A("s_nop 3"); wr(3)
    def xorA(si):
        b = SET[si] + 20
        for k in range(16): A(f"v_xor_b32 v{b+k}, s48, v{b+k}")
        A("s_nop 0")
    NB0 = opt("NB0", 2)
    for si in range(NB0): loadB(si)
    for i in range(80): A(f"v_mov_b32 v{ACC+i}, 0")
    A(f"v_lshrrev_b32 v10, 4, v1\nv_mul_u32_u24 v10, {TF_ROW}, v10\nv_and_b32 v11, 15, v1")
    A(f"s_mul_i32 s50, s{S_CT}, 80\nv_add_u32 v12, s50, v11\nv_sub_u32 v13, 576, v12")
    A(f"s_cmp_lt_u32 s{S_CT}, 4\ns_cselect_b64 s[60:61], -1, 0\nv_cndmask_b32 v12, v13, v12, s[60:61]")
    A("v_lshlrev_b32 v12, 4, v12\nv_add_u32 v10, v10, v12")
    A(f"s_sub_u32 s46, 32, s{S_T0}\ns_and_b32 s46, s46, 31\ns_cmp_lt_u32 s{S_CT}, 4\ns_cselect_b32 s46, s{S_T0}, s46")
    A(f"s_mul_i32 s46, s46, {TF_T0}\ns_add_u32 s46, s46, {TF_OFF}")
    A(f"s_mov_b32 s47, 256\ns_mov_b32 s50, -256\ns_cmp_lt_u32 s{S_CT}, 4\ns_cselect_b32 s47, s47, s50\ns_cselect_b32 s50, 0, 1024\ns_cselect_b32 s48, 0x80000000, 0")
    A("s_add_u32 s46, s46, s50")
    A(f"s_add_u32 s50, s{J}, 2\ns_and_b32 s50, s50, 3\ns_mul_i32 s50, s50, {4*TF_ROW}\ns_add_u32 s46, s46, s50")
    A(f"s_lshl_b32 s50, s{S_CT}, 10\ns_add_u32 s50, s50, {FT_OFF}\nv_lshlrev_b32 v12, 3, v1\nv_add_u32 v12, s50, v12")
    A("v_and_b32 v13, 15, v1\nv_lshlrev_b32 v13, 3, v13\nv_add_u32 v13, s50, v13\nv_add_u32 v13, 512, v13")
    A(f"s_lshr_b32 s50, s{S_T0}, 1\ns_lshl_b32 s50, s50, 7\ns_add_u32 s50, s50, {FH_OFF}\nv_min_u32 v9, 4, v1\nv_lshlrev_b32 v9, 3, v9\nv_add_u32 v9, s50, v9")
    A(f"s_cmp_eq_u32 s{J}, 0\ns_cbranch_scc0 L_p2_lw")
    A(f"s_lshr_b32 s50, s{S_T0}, 1\ns_lshl_b32 s50, s50, 7\ns_add_u32 s50, s50, {FH_OFF}")
    if MXLAST:
        A("v_min_u32 v14, 10, v1\nv_add_u32 v14, 5, v14\nv_lshlrev_b32 v14, 3, v14\nv_add_u32 v11, s50, v14")
    else:
        A("v_and_b32 v14, 15, v1\nv_lshlrev_b32 v14, 3, v14\nv_add_u32 v11, s50, v14")
    A(f"buffer_load_dwordx2 v[{VP}:{VP+1}], v11, s[24:27], 0 offen {SC}\ns_waitcnt vmcnt(0)")
    if opt("SPINSTAMP") == "L_p2_sp1": stamp(A)
    spin(A, "L_p2_sp1", VP, 11, 24, xcc=True)
    A(f"v_mov_b32 v14, {LCNT + 16}\nv_mov_b32 v15, 1\nds_write_b32 v14, v15\ns_waitcnt lgkmcnt(0)")
    A("s_branch L_p2_go")
    A("L_p2_lw:")
    if opt("P2ONLY"): A("s_branch L_p2_go")
    A(f"v_mov_b32 v14, {LCNT + 16}")
    A("L_p2_lw1:\nds_read_b32 v15, v14\ns_waitcnt lgkmcnt(0)\ns_nop 0\nv_readfirstlane_b32 s50, v15\ns_nop 3\ns_cmp_eq_u32 s50, 1\ns_cbranch_scc1 L_p2_go")
    A(f"s_sleep 1\ns_sub_u32 s{S_SPIN}, s{S_SPIN}, 1\ns_cmp_eq_u32 s{S_SPIN}, 0\ns_cbranch_scc0 L_p2_lw1")
    A("L_p2_go:")
    stamp(A, 5)
    for si in range(NB0): loadA(si)
    for si in range(NB0, 3):
        loadB(si); loadA(si)
    def loadX():
        for n in range(5):
            A(f"buffer_load_dwordx2 v[{XR+2*n}:{XR+2*n+1}], v{225+n}, s[32:35], s38 offen")
    XLATE = opt("XLATE", 1)
    if not XLATE: loadX()
    def step(si, vm, pre):
        A(f"s_waitcnt vmcnt({vm})")
        mfmas(si)
        pre()
    reg = lambda si: (lambda: (loadB(si), loadA(si)))
    order = [(si, 4) for si in range(NB0)] + [(si, 9) for si in range(NB0, 3)] + ([] if XLATE else [(-1, 5)])
    for st_ in range(3):
        idx = max(i for i, (si, n) in enumerate(order) if si == st_)
        younger = sum(n for (si, n) in order[idx+1:]) + 9 * st_
        step(st_, younger, reg(st_))
        if opt("STEPSTAMP"): stamp(A)
    stamp(A)
    if MXLAST: A(f"buffer_load_dwordx2 v[{VP+4}:{VP+5}], v9, s[24:27], 0 offen {SC}")
    A("s_mov_b32 s51, 2")
    A("L_p2_loop:")
    for si in range(3):
        step(si, 18, reg(si))
        if opt("STEPSTAMP"): stamp(A)
    A("s_cmp_eq_u32 s51, 2\ns_cbranch_scc0 L_p2_nt")
    if MXLAST: spin(A, "L_p2_spm", VP + 4, 9, 24, xcc=True)
    if not opt("TLATE", 1):
        A(f"buffer_load_dwordx2 v[{VP}:{VP+1}], v12, s[24:27], 0 offen {SC}\nbuffer_load_dwordx2 v[{VP+2}:{VP+3}], v13, s[24:27], 0 offen {SC}")
    A("L_p2_nt:")
    A("s_sub_u32 s51, s51, 1\ns_cmp_lg_u32 s51, 0\ns_cbranch_scc1 L_p2_loop")
    stamp(A)
    TLATE = opt("TLATE", 1)
    if TLATE:
        A(f"buffer_load_dwordx2 v[{VP}:{VP+1}], v12, s[24:27], 0 offen {SC}\nbuffer_load_dwordx2 v[{VP+2}:{VP+3}], v13, s[24:27], 0 offen {SC}")
    step(0, 18, reg(0))
    def tcheck(tag, epoch):
        spin(A, tag + "2", VP, 12, 24)
        spin(A, tag + "3", VP + 2, 13, 24)
        if epoch:
            A(f"s_cmp_eq_u32 s2, 0\ns_cbranch_scc0 {tag}_noep\ns_cmp_eq_u32 s{J}, 0\ns_cbranch_scc0 {tag}_noep")
            A(f"v_mov_b32 v14, s{S_E}\nv_mov_b32 v15, {EP_OFF}\ns_mov_b64 exec, 1\nbuffer_store_dword v14, v15, s[24:27], 0 offen {SC}\ns_mov_b64 exec, -1")
            A(f"{tag}_noep:")
    if not TLATE: tcheck("L_p2_sp", True)
    stamp(A)
    A(f"s_cmp_lt_u32 s{J}, 2\ns_cbranch_scc0 L_p2_hi")
    step(1, 18, reg(1))
    step(2, 18, lambda: (tcheck("L_p2_lo", True) if TLATE else None, loadT(2), loadX() if XLATE else None))
    xq = 5 if XLATE else 0
    step(0, 14 + xq, lambda: None)
    step(1, 5 + xq, lambda: None)
    A(f"s_waitcnt vmcnt({xq})"); last_step(2)
    A("s_branch L_p2_red")
    A("L_p2_hi:")
    step(1, 18, lambda: ((A("s_waitcnt vmcnt(9)"), tcheck("L_p2_hi", False)) if TLATE else None, loadT(1), loadX() if XLATE else None))
    step(2, 14 + xq, lambda: None)
    step(0, 5 + xq, lambda: None)
    A(f"s_waitcnt vmcnt({xq})"); last_step(1)
    A("L_p2_red:")
    stamp(A)
    A("s_waitcnt lgkmcnt(0)\ns_barrier")
    R0 = 96
    def rd(n):
        for w in range(4):
            r = R0 + 16 * n + 4 * w
            A(f"ds_read_b128 v[{r}:{r+3}], v{220+n} offset:{w*64*336}")
    rd(0); rd(1); rd(2)
    OSC = SC if opt("OUTSC") else ""
    for n in range(5):
        r = R0 + 16 * n; x = XR + 2 * n
        if n == 0: A("s_waitcnt vmcnt(0) lgkmcnt(8)")
        elif n == 1: A("s_waitcnt lgkmcnt(8)")
        elif n == 2: A("s_waitcnt lgkmcnt(8)")
        elif n == 3: A("s_waitcnt lgkmcnt(4)")
        else: A("s_waitcnt lgkmcnt(0)")
        A(f"v_pk_add_f32 v[{r}:{r+1}], v[{r}:{r+1}], v[{r+4}:{r+5}]\nv_pk_add_f32 v[{r+2}:{r+3}], v[{r+2}:{r+3}], v[{r+6}:{r+7}]")
        A(f"v_pk_add_f32 v[{r+8}:{r+9}], v[{r+8}:{r+9}], v[{r+12}:{r+13}]\nv_pk_add_f32 v[{r+10}:{r+11}], v[{r+10}:{r+11}], v[{r+14}:{r+15}]")
        if n + 3 < 5: pass
        A(f"v_lshlrev_b32 v{r+4}, 16, v{x}\nv_and_b32 v{r+5}, 0xffff0000, v{x}\nv_lshlrev_b32 v{r+6}, 16, v{x+1}\nv_and_b32 v{r+7}, 0xffff0000, v{x+1}")
        A(f"v_pk_add_f32 v[{r}:{r+1}], v[{r}:{r+1}], v[{r+8}:{r+9}]\nv_pk_add_f32 v[{r+2}:{r+3}], v[{r+2}:{r+3}], v[{r+10}:{r+11}]")
        A(f"v_pk_add_f32 v[{r}:{r+1}], v[{r}:{r+1}], v[{r+4}:{r+5}]\nv_pk_add_f32 v[{r+2}:{r+3}], v[{r+2}:{r+3}], v[{r+6}:{r+7}]")
        A(f"v_cvt_pk_bf16_f32 v{x}, v{r}, v{r+1}\nv_cvt_pk_bf16_f32 v{x+1}, v{r+2}, v{r+3}")
        A(f"buffer_store_dwordx2 v[{x}:{x+1}], v{225+n}, s[40:43], s38 offen {OSC}")
        if n == 0: rd(3)
        if n == 1: rd(4)
    stamp(A)
    if opt("CLK") and asmlib.PROFILE:
        A("s_memtime s[90:91]\ns_waitcnt lgkmcnt(0)\ns_sub_u32 s90, s90, s88\ns_mov_b32 m0, 62\nv_writelane_b32 v0, s90, m0")
    stamp_flush(A, 0, WS, 9)
    A("s_endpgm")

def gen(A, name):
    global KNAME
    KNAME = name
    kernel_head(A, name)
    entry(A)
    if opt("P2ONLY"):
        A(f"s_mov_b32 s{S_SPIN}, 1\ns_cmp_lt_u32 s3, 4\ns_cbranch_scc1 L_end\ns_sub_u32 s{S_J}, s3, 4\ns_waitcnt lgkmcnt(0)\ns_branch L_ld_p2")
    A("s_cmp_ge_u32 s3, 4\ns_cbranch_scc1 L_loader")
    if opt("PRIOC"): A(f"s_setprio {opt('PRIOC')}")
    jobs_issue(A)
    A(f"s_cmp_lt_u32 s{S_C}, 5\ns_cbranch_scc1 L_mx")
    p1_hh(A)
    p1_mx(A)
    loader(A)
    A("L_end:\ns_endpgm\nL_code_end:")
```

```python
from asmlib import *
import asmlib
from layout import *

MFMA32 = "v_mfma_f32_32x32x16_bf16"
MFMA16 = "v_mfma_f32_16x16x32_bf16"
RING = 32768; NS = 4
SLOT = 20480; NS2 = 6
LX = NS2 * SLOT
LW = 132 * 1024
LST = 152 * 1024
LCS = LST + 1024
LCNT = LST + 2048
LDS_TOTAL = LCNT + 64
X_, SRE, SIM, HRE, HIM, WS = 4, 6, 8, 10, 12, 16
W1, W2, OUT, DBG = 64, 66, 68, 70
S_B, S_C, S_F0, S_J = 18, 19, 20, 21
S_T0, S_CT = 72, 73
S_SPIN = 74
SC = "sc1"
SPIN_MAX = 200000
CPW = 3

MAGIC = 0x5A3C96E1
S_E, S_EM = 75, 76
S_XCC = 77
S_LOCAL = 78

def spin(A, name, vp, vaddr, srdp, xcc=False):
    A(f"{name}:")
    if xcc:
        A(f"v_xor_b32 v{vp+1}, s{S_EM}, v{vp+1}\nv_cmp_ne_u32 vcc, s{S_E}, v{vp}\nv_cmp_lt_u32 s[60:61], 15, v{vp+1}\ns_nop 3\ns_or_b64 vcc, vcc, s[60:61]")
    else:
        A(f"v_cmp_ne_u32 vcc, s{S_E}, v{vp}\nv_cmp_ne_u32 s[60:61], s{S_EM}, v{vp+1}\ns_nop 3\ns_or_b64 vcc, vcc, s[60:61]")
    A(f"s_cbranch_vccz {name}_ok")
    if opt("P2ONLY"): A(f"s_branch {name}_ok")
    A(f"s_sub_u32 s{S_SPIN}, s{S_SPIN}, 1\ns_cmp_eq_u32 s{S_SPIN}, 0\ns_cbranch_scc1 {name}_ok")
    A(f"s_sleep {opt('SLEEP', 4)}")
    A(f"buffer_load_dwordx2 v[{vp}:{vp+1}], v{vaddr}, s[{srdp}:{srdp+3}], 0 offen {SC}\ns_waitcnt vmcnt(0)")
    if opt("SPINSTAMP") == name: stamp(A)
    A(f"s_branch {name}\n{name}_ok:")

def store_flags(A, vaddr, nlanes, srdp, vt, xcc=False, local=None):
    if xcc:
        A(f"s_xor_b32 s62, s{S_EM}, s{S_XCC}\nv_mov_b32 v{vt}, s{S_E}\nv_mov_b32 v{vt+1}, s62\ns_mov_b64 exec, {(1 << nlanes) - 1}")
    else:
        A(f"v_mov_b32 v{vt}, s{S_E}\nv_mov_b32 v{vt+1}, s{S_EM}\ns_mov_b64 exec, {(1 << nlanes) - 1}")
    if local:
        A(f"s_cmp_eq_u32 s{S_LOCAL}, 1\ns_cbranch_scc1 {local}_fp")
    A(f"buffer_store_dwordx2 v[{vt}:{vt+1}], v{vaddr}, s[{srdp}:{srdp+3}], 0 offen {SC}")
    if local:
        A(f"s_branch {local}_fd\n{local}_fp:")
        A(f"buffer_store_dwordx2 v[{vt}:{vt+1}], v{vaddr}, s[{srdp}:{srdp+3}], 0 offen")
        A(f"{local}_fd:")
    A("s_mov_b64 exec, -1")

def flag_addr_h(A, v):
    A(f"s_lshl_b32 s62, s{S_B}, 4\ns_add_u32 s62, s62, s{S_C}\ns_lshl_b32 s62, s62, 3\ns_add_u32 s62, s62, {FH_OFF}\nv_mov_b32 v{v}, s62")
def flag_addr_t(A, v):
    A(f"s_lshl_b32 s62, s{S_C}, 4\ns_add_u32 s62, s62, s{S_B}\ns_lshl_b32 s62, s62, 3\ns_add_u32 s62, s62, {FT_OFF}")
    A(f"v_lshlrev_b32 v{v}, 10, v1\nv_add_u32 v{v}, s62, v{v}")
def flag_addr_early(A, v):
    A(f"s_lshl_b32 s62, s{S_B}, 4\ns_add_u32 s62, s62, s{S_C}\ns_lshl_b32 s62, s62, 3\ns_add_u32 s58, s62, {FR1_OFF}")
    A(f"s_lshl_b32 s62, s{S_C}, 4\ns_add_u32 s62, s62, s{S_B}\ns_lshl_b32 s62, s62, 3\ns_add_u32 s62, s62, {FC1_OFF}")
    A(f"s_cmp_eq_u32 s3, 1\ns_cselect_b32 s58, s62, s58\nv_mov_b32 v{v}, s58")

def epoch_ready(A):
    A("s_waitcnt lgkmcnt(0)")
    A(f"s_add_u32 s{S_E}, s{S_E}, 1\ns_xor_b32 s{S_EM}, s{S_E}, {MAGIC}")
    srd(A, 48, WS, WS_USED)

def lds_arrive(A, word, vt, sdst):
    A(f"v_mov_b32 v{vt}, {LCNT + 4*word}\nv_mov_b32 v{vt+1}, 1\ns_mov_b64 exec, 1")
    A(f"ds_add_rtn_u32 v{vt+1}, v{vt}, v{vt+1}\ns_waitcnt lgkmcnt(0)\ns_mov_b64 exec, -1\ns_nop 0")
    A(f"v_readfirstlane_b32 s{sdst}, v{vt+1}")
    A("s_nop 3")

def entry(A):
    A("s_cmp_ge_u32 s2, 256\ns_cbranch_scc1 L_end")
    A(f"s_load_dwordx4 s[4:7], s[0:1], {KA_X}")
    A(f"s_load_dwordx4 s[8:11], s[0:1], {KA_SIM}")
    A(f"s_load_dwordx2 s[12:13], s[0:1], {KA_HIM}")
    A(f"s_load_dwordx4 s[64:67], s[0:1], {KA_W1}")
    A(f"s_load_dwordx4 s[68:71], s[0:1], {KA_OUT}")
    A(f"s_load_dwordx2 s[16:17], s[0:1], {KA_WS}")
    A("v_lshrrev_b32 v2, 6, v0\nv_and_b32 v1, 63, v0\ns_nop 0\nv_readfirstlane_b32 s3, v2")
    if opt("CODEPF", 1):
        A(f"s_nop 3\ns_cmp_eq_u32 s3, {CPW}\ns_cbranch_scc0 L_nocp")
        A("s_getpc_b64 s[50:51]\nJ_pc:")
        A(f"s_sub_u32 s50, s50, J_pc-{KNAME}\ns_subb_u32 s51, s51, 0")
        mode = opt("CPMODE", 1)
        A(f"s_mov_b32 s52, ((L_code_end-{KNAME})>>7)-1")
        if mode == 0:
            A("s_lshr_b32 s53, s2, 3\ns_mul_i32 s53, s53, 6\nv_add_u32 v22, s53, v1\nv_min_u32 v22, s52, v22\nv_lshlrev_b32 v22, 7, v22")
            A("v_mov_b32 v23, s51\nv_add_co_u32 v22, vcc, s50, v22\ns_nop 1\nv_addc_co_u32 v23, vcc, 0, v23, vcc")
            A("s_mov_b64 exec, 63\nglobal_load_dword v127, v[22:23], off\ns_mov_b64 exec, -1")
        else:
            for n in range(3):
                A(f"v_add_u32 v22, {64*n}, v1\nv_min_u32 v22, s52, v22\nv_lshlrev_b32 v22, 7, v22")
                A("v_mov_b32 v23, s51\nv_add_co_u32 v22, vcc, s50, v22\ns_nop 1\nv_addc_co_u32 v23, vcc, 0, v23, vcc")
                A(f"global_load_dword v{125+n}, v[22:23], off")
        A("L_nocp:")
    A("s_and_b32 s24, s2, 7\ns_lshr_b32 s25, s2, 3\ns_lshr_b32 s27, s25, 3\ns_and_b32 s28, s25, 7")
    if opt("MAP1", 1):
        A(f"s_lshl_b32 s26, s24, 1\ns_lshr_b32 s29, s25, 4\ns_add_u32 s{S_B}, s26, s29\ns_and_b32 s{S_C}, s25, 15")
    else:
        A(f"s_lshr_b32 s26, s24, 1\ns_lshl_b32 s26, s26, 2\ns_add_u32 s{S_B}, s26, s27")
        A(f"s_and_b32 s26, s24, 1\ns_lshl_b32 s26, s26, 3\ns_add_u32 s{S_C}, s26, s28")
    A(f"s_lshl_b32 s26, s{S_C}, 6\ns_lshl_b32 s29, s{S_C}, 7\ns_sub_u32 s29, s29, 320")
    A(f"s_cmp_lt_u32 s{S_C}, 5\ns_cselect_b32 s{S_F0}, s26, s29")
    A(f"s_lshl_b32 s24, s24, 2\ns_add_u32 s{S_T0}, s24, s27\ns_mov_b32 s{S_CT}, s28")
    A(f"s_mov_b32 s{S_SPIN}, {SPIN_MAX}")
    A(f"s_getreg_b32 s{S_XCC}, hwreg(HW_REG_XCC_ID)\ns_and_b32 s{S_XCC}, s{S_XCC}, 15")
    stamp_init(A)
    if opt("T0STAMP"): stamp(A, force=True)
    if opt("P2ONLY"): args_ready(A)

def args_ready(A):
    A("s_waitcnt lgkmcnt(0)")
    if opt("CLK"): A("s_memtime s[88:89]\ns_waitcnt lgkmcnt(0)")
    A(f"s_mov_b32 s62, {EP_OFF}\ns_load_dword s{S_E}, s[{WS}:{WS+1}], s62")
    stamp(A, 0, force=True)

def jobs_issue(A):
    A("s_cmp_eq_u32 s3, 0\ns_cbranch_scc1 J_x_i\ns_cmp_eq_u32 s3, 1\ns_cbranch_scc1 J_c_i")
    args_ready(A)
    srd(A, 36, WS, WS_USED)
    if opt("TLBPF", 1):
        A("s_cmp_eq_u32 s3, 2\ns_cbranch_scc0 J_i_done")
        srd(A, 40, OUT, X_BYTES); srd(A, 44, W2, W2_BYTES)
        A("v_lshlrev_b32 v22, 20, v1")
        A(f"s_mov_b64 exec, {(1 << ((WS_USED >> 20) + 1)) - 1}\nbuffer_load_dword v125, v22, s[36:39], 0 offen {SC}")
        A(f"s_mov_b64 exec, 7\nbuffer_load_dword v126, v22, s[40:43], 0 offen {SC}\nbuffer_load_dword v127, v22, s[44:47], 0 offen\ns_mov_b64 exec, -1")
        if opt("INPF"):
            srd(A, 40, X_, X_BYTES); srd(A, 44, W1, W1_BYTES)
            A("v_lshlrev_b32 v22, 7, v1\ns_mul_i32 s50, s2, 10240\ns_mul_i32 s51, s2, 8704")
            A("buffer_load_dword v124, v22, s[40:43], s50 offen\nbuffer_load_dword v123, v22, s[44:47], s51 offen")
            A("s_add_u32 s50, s50, 8192\ns_add_u32 s51, s51, 8192\ns_mov_b64 exec, 0xffff")
            A("buffer_load_dword v122, v22, s[40:43], s50 offen\ns_mov_b64 exec, 15\nbuffer_load_dword v121, v22, s[44:47], s51 offen\ns_mov_b64 exec, -1")
    A("s_branch J_i_done")
    A("J_x_i:")
    A(f"s_lshr_b32 s48, s{S_C}, 2\ns_and_b32 s49, s{S_C}, 3")
    A(f"s_lshl_b32 s50, s{S_B}, 1\ns_and_b32 s51, s48, 1\ns_add_u32 s50, s50, s51")
    A("s_lshr_b32 s51, s48, 1\ns_lshl_b32 s51, s51, 5\ns_add_u32 s50, s50, s51")
    A("s_lshl_b32 s51, s49, 9\ns_add_u32 s50, s50, s51\ns_mul_i32 s50, s50, 1280")
    A("v_lshrrev_b32 v22, 3, v1\ns_mov_b32 s51, 81920\nv_mul_lo_u32 v22, s51, v22")
    A("v_and_b32 v23, 7, v1\nv_lshlrev_b32 v23, 4, v23\nv_add_u32 v22, v22, v23")
    A(f"v_mov_b32 v20, {LCNT}\nv_mov_b32 v24, 0\nv_mov_b32 v25, 0\nv_mov_b32 v26, 0\nv_mov_b32 v27, 0\nds_write_b128 v20, v[24:27]\nds_write_b128 v20, v[24:27] offset:16")
    args_ready(A)
    srd(A, 24, X_, X_BYTES)
    for i in range(10):
        A(f"buffer_load_dwordx4 v[{32+4*i}:{35+4*i}], v22, s[24:27], s50 offen offset:{128*i}")
    srd(A, 36, WS, WS_USED)
    A("s_branch J_i_done")
    A("J_c_i:")
    A("v_lshrrev_b32 v22, 4, v1\nv_mul_u32_u24 v22, 3456, v22\nv_and_b32 v23, 15, v1\nv_lshlrev_b32 v23, 4, v23\nv_add_u32 v22, v22, v23")
    A(f"s_mul_i32 s50, s{S_B}, {40*3456}\ns_lshl_b32 s51, s{S_F0}, 1\ns_add_u32 s50, s50, s51")
    A(f"s_cmp_eq_u32 s{S_C}, 0\ns_cbranch_scc0 J_c_np")
    A("v_and_b32 v23, 7, v1\nv_lshlrev_b32 v23, 4, v23\nv_bfe_u32 v24, v1, 3, 2\nv_lshlrev_b32 v24, 15, v24\nv_add_u32 v23, v23, v24")
    A(f"v_add_u32 v23, {16384+8192+4096}, v23")
    A("v_mov_b32 v24, 0xbf803f80\nv_mov_b32 v25, 0x3f80bf80\nv_mov_b32 v26, 0xbf803f80\nv_mov_b32 v27, 0x3f80bf80")
    A("ds_write_b128 v23, v[24:27]")
    A("J_c_np:")
    args_ready(A)
    srd(A, 28, W1, W1_BYTES)
    for i in range(10):
        A(f"buffer_load_dwordx4 v[{32+4*i}:{35+4*i}], v22, s[28:31], s50 offen")
        if i < 9: A(f"s_add_u32 s50, s50, {4*3456}")
    srd(A, 36, WS, WS_USED)
    A("J_i_done:")

def dpp_add(A, r, ctrl):
    A(f"v_add_f32_dpp v{r}, v{r}, v{r} {ctrl} row_mask:0xf bank_mask:0xf")

def jobs_finish(A, nG_, tagx):
    nG = tagx
    class _N(str):
        pass
    A("s_cmp_eq_u32 s3, 0\ns_cbranch_scc1 %s\ns_cmp_eq_u32 s3, 1\ns_cbranch_scc1 %s\ns_branch %s" % (f"J_x_{nG}", f"J_c_{nG}", f"J_done_{nG}"))
    A(f"J_x_{nG}:")
    A("v_mov_b32 v22, 0\nv_mov_b32 v23, 0\nv_mov_b32 v24, 0\nv_mov_b32 v25, 0\ns_mov_b32 s52, 0x3f803f80")
    for i in range(10):
        A(f"s_waitcnt vmcnt({9-i+nG_})")
        for k in range(4):
            r = 32 + 4 * i + k
            A(f"v_dot2_f32_bf16 v{22+(k&1)}, v{r}, s52, v{22+(k&1)}")
            A(f"v_dot2_f32_bf16 v{24+(k&1)}, v{r}, v{r}, v{24+(k&1)}")
    A("s_nop 2\nv_add_f32 v22, v22, v23\nv_add_f32 v24, v24, v25\ns_nop 1")
    for ctrl in ["quad_perm:[1,0,3,2]", "quad_perm:[2,3,0,1]", "row_half_mirror"]:
        dpp_add(A, 22, ctrl); dpp_add(A, 24, ctrl); A("s_nop 0")
    A("s_mov_b32 s52, 0x3acccccd\nv_mul_f32 v22, s52, v22\nv_mul_f32 v24, s52, v24")
    A("v_fma_f32 v24, -v22, v22, v24\nv_max_f32 v24, 0, v24\nv_add_f32 v24, 0x3727c5ac, v24\nv_rsq_f32 v23, v24")
    A(f"s_lshl_b32 s52, s{S_B}, 10\ns_lshl_b32 s53, s{S_C}, 5\ns_add_u32 s52, s52, s53\ns_add_u32 s52, s52, {ST_OFF}")
    A("v_lshrrev_b32 v25, 3, v1\nv_lshlrev_b32 v25, 2, v25")
    A("v_and_b32 v26, 7, v1\nv_cmp_eq_u32 vcc, 0, v26\ns_and_saveexec_b64 s[54:55], vcc")
    A(f"buffer_store_dword v22, v25, s[36:39], s52 offen {SC}\nbuffer_store_dword v23, v25, s[36:39], s52 offen offset:512 {SC}")
    A("s_mov_b64 exec, s[54:55]")
    A(f"s_branch J_done_{nG}")
    A(f"J_c_{nG}:")
    for k in range(8): A(f"v_mov_b32 v{72+k}, 0")
    A("s_mov_b32 s52, 0x00003f80\ns_mov_b32 s53, 0x3f800000")
    for i in range(10):
        A(f"s_waitcnt vmcnt({9-i+nG_})")
        for k in range(4):
            r = 32 + 4 * i + k
            A(f"v_dot2_f32_bf16 v{72+2*k}, v{r}, s52, v{72+2*k}")
            A(f"v_dot2_f32_bf16 v{73+2*k}, v{r}, s53, v{73+2*k}")
    A("s_nop 2")
    for sw in ["v_permlane16_swap_b32", "v_permlane32_swap_b32"]:
        for k in range(8): A(f"v_mov_b32 v{80+k}, v{72+k}")
        A("s_nop 0")
        for k in range(8): A(f"{sw} v{72+k}, v{80+k}")
        A("s_nop 0")
        for k in range(8): A(f"v_add_f32 v{72+k}, v{72+k}, v{80+k}")
    A(f"s_lshl_b32 s52, s{S_B}, 13\ns_lshl_b32 s53, s{S_F0}, 2\ns_add_u32 s52, s52, s53\ns_add_u32 s52, s52, {CS_OFF}")
    A(f"v_lshlrev_b32 v22, 5, v1\ns_mov_b32 s53, 16\ns_cmp_lt_u32 s{S_C}, 5\ns_cselect_b32 s53, 8, s53")
    A("v_cmp_gt_u32 vcc, s53, v1\ns_and_saveexec_b64 s[54:55], vcc")
    A(f"buffer_store_dwordx4 v[72:75], v22, s[36:39], s52 offen {SC}\nbuffer_store_dwordx4 v[76:79], v22, s[36:39], s52 offen offset:16 {SC}")
    A("s_mov_b64 exec, s[54:55]")
    A(f"s_branch J_done_{nG}")
    A(f"J_done_{nG}:")
    A(f"s_cmp_ge_u32 s3, 2\ns_cbranch_scc0 J_dn2_{nG}\ns_waitcnt vmcnt(0)\nJ_dn2_{nG}:")

def x_addr(A, dst, rowbase_sgpr, tmp):
    A(f"v_and_b32 v{tmp}, 31, v1\nv_add_u32 v{tmp+1}, s{rowbase_sgpr}, v{tmp}\nv_lshlrev_b32 v{tmp+1}, 7, v{tmp+1}")
    A(f"v_bfe_u32 v{tmp}, v1, 1, 3\nv_lshrrev_b32 v{tmp+2}, 5, v1\nv_xor_b32 v{tmp}, v{tmp}, v{tmp+2}")
    A(f"v_lshlrev_b32 v{tmp}, 4, v{tmp}\nv_add_u32 v{dst}, v{tmp+1}, v{tmp}")
    for j in range(1, 4):
        A(f"v_xor_b32 v{dst+j}, {32*j}, v{dst}")
def h_tr_addr(A, dst, tmp):
    A(f"v_bfe_u32 v{tmp}, v1, 5, 1\nv_lshlrev_b32 v{tmp}, 3, v{tmp}\nv_bfe_u32 v{tmp+1}, v1, 2, 2\nv_add_u32 v{tmp}, v{tmp}, v{tmp+1}")
    A(f"v_lshlrev_b32 v{tmp}, 7, v{tmp}")
    A(f"v_bfe_u32 v{tmp+1}, v1, 4, 1\nv_lshlrev_b32 v{tmp+1}, 1, v{tmp+1}\nv_bfe_u32 v{tmp+2}, v1, 1, 1\nv_add_u32 v{tmp+1}, v{tmp+1}, v{tmp+2}")
    A(f"v_bfe_u32 v{tmp+2}, v1, 3, 1\nv_lshlrev_b32 v{tmp+2}, 2, v{tmp+2}\nv_xor_b32 v{tmp+1}, v{tmp+1}, v{tmp+2}")
    A(f"v_lshlrev_b32 v{tmp+1}, 4, v{tmp+1}\nv_add_u32 v{tmp}, v{tmp}, v{tmp+1}")
    A(f"v_and_b32 v{tmp+1}, 1, v1\nv_lshlrev_b32 v{tmp+1}, 3, v{tmp+1}\nv_add_u32 v{dst}, v{tmp}, v{tmp+1}")
def interleave(A, mfmas, fillers, per_gap):
    if opt("NOCOMP1"):
        for f in fillers:
            if not f.startswith("ds_read") and not f.startswith("v_perm"): A(f)
        return
    k = 0
    for i, m in enumerate(mfmas):
        A(m)
        for _ in range(per_gap[i]):
            if k < len(fillers):
                A(fillers[k]); k += 1
    while k < len(fillers):
        A(fillers[k]); k += 1
def h_epilogue_tile(A, acc, mr, cs, tmp, vaddr, soff):
    for i in range(0, 16, 2):
        A(f"v_pk_fma_f32 v[{acc+i}:{acc+i+1}], v[{cs+i}:{cs+i+1}], v[{mr}:{mr+1}], v[{acc+i}:{acc+i+1}] op_sel:[0,0,0] op_sel_hi:[1,0,1] neg_lo:[0,1,0] neg_hi:[0,1,0]")
    for i in range(0, 16, 2):
        A(f"v_pk_mul_f32 v[{acc+i}:{acc+i+1}], v[{acc+i}:{acc+i+1}], v[{mr}:{mr+1}] op_sel:[0,1] op_sel_hi:[1,1]")
    for i in range(0, 16, 2):
        A(f"v_cvt_pk_bf16_f32 v{tmp+i//2}, v{acc+i}, v{acc+i+1}")
    for i in range(8):
        A(f"v_pk_max_i16 v{tmp+i}, v{tmp+i}, 0")
    if opt("LOCALH", 2) != 1:
        A(f"buffer_store_dwordx4 v[{tmp}:{tmp+3}], v{vaddr}, s[36:39], s{soff} offen {SC}")
        A(f"buffer_store_dwordx4 v[{tmp+4}:{tmp+7}], v{vaddr}, s[36:39], s{soff} offen offset:512 {SC}")
        return
    h_epilogue_tile.n += 1
    n = h_epilogue_tile.n
    A(f"s_cmp_eq_u32 s{S_LOCAL}, 1\ns_cbranch_scc1 L_hst{n}_p")
    A(f"buffer_store_dwordx4 v[{tmp}:{tmp+3}], v{vaddr}, s[36:39], s{soff} offen {SC}")
    A(f"buffer_store_dwordx4 v[{tmp+4}:{tmp+7}], v{vaddr}, s[36:39], s{soff} offen offset:512 {SC}")
    A(f"s_branch L_hst{n}_d\nL_hst{n}_p:")
    hst = {0: "", 1: "nt", 2: "sc0", 3: "sc0 nt"}[opt("HST", 0)]
    A(f"buffer_store_dwordx4 v[{tmp}:{tmp+3}], v{vaddr}, s[36:39], s{soff} offen {hst}")
    A(f"buffer_store_dwordx4 v[{tmp+4}:{tmp+7}], v{vaddr}, s[36:39], s{soff} offen offset:512 {hst}")
    A(f"L_hst{n}_d:")
h_epilogue_tile.n = 0
def h_store_voff(A, dst, tmp):
    A(f"v_bfe_u32 v{tmp}, v1, 4, 1\nv_mul_u32_u24 v{tmp}, {58*1024}, v{tmp}")
    A(f"v_lshrrev_b32 v{tmp+1}, 5, v1\nv_lshlrev_b32 v{tmp+1}, 8, v{tmp+1}\nv_add_u32 v{tmp}, v{tmp}, v{tmp+1}")
    A(f"v_and_b32 v{tmp+1}, 15, v1\nv_lshlrev_b32 v{tmp+1}, 4, v{tmp+1}\nv_add_u32 v{dst}, v{tmp}, v{tmp+1}")

def loop_hooks_top(A, tag):
    A(f"s_cmp_eq_u32 s29, s30\ns_cbranch_scc1 {tag}_flag1\n{tag}_flag1_ret:")
def loop_hooks_init(A):
    A(f"s_cmp_lt_u32 s3, 2\ns_cselect_b32 s30, {10 - opt('EARLY_IT', 1)}, 99")
def loop_hooks_ool(A, tag):
    A(f"{tag}_flag1:")
    flag_addr_early(A, 28)
    A("s_waitcnt vmcnt(0)")
    store_flags(A, 28, 1, 48, 30, xcc=True)
    A(f"s_branch {tag}_flag1_ret")

def publish(A, tag, word, kind, vt):
    A("s_waitcnt vmcnt(0)")
    lds_arrive(A, word, vt, 63)
    A(f"s_cmp_eq_u32 s63, 3\ns_cbranch_scc0 {tag}_np")
    if kind == "h":
        flag_addr_h(A, vt - 1); store_flags(A, vt - 1, 1, 48, vt, xcc=True, local=(tag if opt("LOCALF", 1) else None))
    else:
        flag_addr_t(A, vt - 1); store_flags(A, vt - 1, 8, 48, vt)
    A(f"{tag}_np:")

def p1_hh(A):
    A("L_hh:")
    ACC = 128; P, Q = 32, 64
    XB, WB = 2, 6; XC, WC = 8, 12
    A("s_lshr_b32 s24, s3, 1\ns_and_b32 s25, s3, 1")
    A("s_lshl_b32 s26, s24, 6")
    x_addr(A, XB, 26, 20)
    h_tr_addr(A, WB, 20)
    A("s_lshl_b32 s27, s25, 13\ns_add_u32 s27, s27, 16384")
    A(f"v_add_u32 v{WB}, s27, v{WB}\nv_xor_b32 v{WB+1}, 64, v{WB}")
    for i in range(64): A(f"v_mov_b32 v{ACC+i}, 0")
    for j in range(4): A(f"v_mov_b32 v{XC+j}, v{XB+j}")
    for j in range(2): A(f"v_mov_b32 v{WC+j}, v{WB+j}")
    A(f"v_and_b32 v20, 31, v1\nv_add_u32 v20, s26, v20\nv_lshlrev_b32 v20, 2, v20\nv_add_u32 v20, {LST}, v20")
    A(f"v_lshrrev_b32 v21, 5, v1\nv_lshlrev_b32 v21, 4, v21\ns_lshl_b32 s33, s25, 8\ns_add_u32 s33, s33, {LCS}\nv_add_u32 v21, s33, v21")
    h_store_voff(A, 19, 26)
    A(f"s_lshl_b32 s31, s{S_B}, 3\ns_lshl_b32 s32, s24, 1\ns_add_u32 s31, s31, s32\ns_mul_i32 s31, s31, 58")
    A(f"s_lshr_b32 s32, s{S_F0}, 5\ns_lshl_b32 s33, s25, 1\ns_add_u32 s32, s32, s33\ns_add_u32 s31, s31, s32")
    A(f"s_lshl_b32 s31, s31, 10\ns_add_u32 s31, s31, {HF_OFF}")
    jobs_finish(A, 0, 'h')
    epoch_ready(A)
    A("s_mov_b32 s28, 0")
    loop_hooks_init(A)
    def reads(buf, g):
        out = []
        for jj in range(2):
            j = 2 * g + jj; b = buf + 16 * jj
            out.append(f"ds_read_b128 v[{b}:{b+3}], v{XC+j}")
            out.append(f"ds_read_b64_tr_b16 v[{b+8}:{b+9}], v{WC} offset:{j*2048}")
            out.append(f"ds_read_b64_tr_b16 v[{b+10}:{b+11}], v{WC} offset:{j*2048+512}")
            out.append(f"ds_read_b128 v[{b+4}:{b+7}], v{XC+j} offset:4096")
            out.append(f"ds_read_b64_tr_b16 v[{b+12}:{b+13}], v{WC+1} offset:{j*2048}")
            out.append(f"ds_read_b64_tr_b16 v[{b+14}:{b+15}], v{WC+1} offset:{j*2048+512}")
        return out
    def mfmas(buf):
        out = []
        for jj in range(2):
            b = buf + 16 * jj
            for ft in range(2):
                for st in range(2):
                    a = ACC + 16 * (2 * ft + st)
                    out.append(f"{MFMA32} v[{a}:{a+15}], v[{b+8+4*ft}:{b+11+4*ft}], v[{b+4*st}:{b+3+4*st}], v[{a}:{a+15}]")
        return out
    stamp(A, 1)
    A("s_waitcnt lgkmcnt(0)\ns_barrier")
    stamp(A, 2)
    for r in reads(P, 0):
        if not opt("NOCOMP1"): A(r)
    A("s_mov_b32 s29, 10")
    A("L_hh_loop:")
    A.drop = (["v_mfma"] if opt("NOMF1") else []) + (["ds_read"] if opt("NODS1") else []) + (["v_perm"] if opt("NOPERM") else [])
    loop_hooks_top(A, "L_hh")
    A("s_waitcnt lgkmcnt(0)")
    A("s_cmp_eq_u32 s29, 1\ns_cbranch_scc1 L_hh_pre\nL_hh_pre_ret:")
    if opt("HHSTAMP"): stamp(A)
    upd = [f"v_add_u32 v{XC+j}, s28, v{XB+j}" for j in range(4)] + [f"v_add_u32 v{WC+j}, s28, v{WB+j}" for j in range(2)]
    ring = [f"s_add_u32 s28, s28, {RING}", f"s_and_b32 s28, s28, {NS*RING-1}"]
    pat = opt("HHPAT", 0)
    g1 = [[3, 3, 3, 3, 2, 3, 3, 0], [4, 4, 4, 2, 3, 3, 0, 0], [6, 6, 2, 3, 3, 0, 0, 0]][pat]
    g2 = [[3, 3, 3, 3, 0, 0, 0, 0], [4, 4, 4, 0, 0, 0, 0, 0], [6, 6, 0, 0, 0, 0, 0, 0]][pat]
    interleave(A, mfmas(P), reads(Q, 1) + ring + upd, g1)
    if opt("HHSTAMP"): A("s_waitcnt lgkmcnt(0)"); stamp(A)
    A("s_waitcnt lgkmcnt(0)")
    A("s_barrier")
    if opt("HHSTAMP"): stamp(A)
    interleave(A, mfmas(Q), reads(P, 0), g2)
    A.drop = []
    A("s_sub_u32 s29, s29, 1\ns_cmp_lg_u32 s29, 0\ns_cbranch_scc1 L_hh_loop")
    A("s_waitcnt lgkmcnt(0)")
    stamp(A, 3)
    A(f"v_readfirstlane_b32 s{S_LOCAL}, v18")
    A("s_nop 7")
    for st in range(2):
        for ft in range(2):
            A(f"s_add_u32 s32, s31, {(st*4*58+ft)*1024}")
            h_epilogue_tile(A, ACC + 16 * (2 * ft + st), 14 + 2 * st, 96 + 16 * ft, 64 + 8 * ((2 * st + ft) & 3), 19, 32)
    stamp(A, 4)
    publish(A, "L_hh_pub", 0, "h", 30)
    stamp(A)
    stamp_flush(A, 0, WS, 9)
    A("s_endpgm")
    loop_hooks_ool(A, "L_hh")
    A("L_hh_pre:")
    A("ds_read_b32 v14, v20\nds_read_b32 v15, v20 offset:512\nds_read_b32 v16, v20 offset:128\nds_read_b32 v17, v20 offset:640")
    A(f"v_mov_b32 v18, {LCNT + 12}\nds_read_b32 v18, v18")
    for ft in range(2):
        for q in range(4):
            b = 96 + 16 * ft + 4 * q
            A(f"ds_read_b128 v[{b}:{b+3}], v21 offset:{ft*128+q*32}")
    A("s_branch L_hh_pre_ret")

def p1_mx(A):
    A("L_mx:")
    P, Q = 32, 72
    EV, OD = 112, 116
    CE, CO, SE, SO = 120, 124, 128, 132
    HA, HB = 136, 152
    EC, ES, OC, OS = 168, 184, 200, 216
    G = 232
    XAB, WHB = 2, 6
    XAC, XBC, DAC, WHC = 7, 11, 15, 19
    A("v_and_b32 v24, 31, v1\nv_cvt_f32_u32 v24, v24\nv_lshrrev_b32 v25, 5, v1\nv_cvt_f32_u32 v25, v25")
    A("v_mul_f32 v25, 0x3e000000, v25\nv_mul_f32 v25, v25, v24")
    for p in range(2):
        for uh in range(2):
            for u2 in range(2):
                for k in range(2):
                    c = 16 * p + 8 * uh + 2 * u2 + k
                    import struct
                    lit = struct.unpack("<I", struct.pack("<f", c / 32.0))[0]
                    A(f"v_fmamk_f32 v26, v24, {lit:#x}, v25\nv_fract_f32 v26, v26")
                    A(f"v_cos_f32 v{28+k}, v26\nv_sin_f32 v{30+k}, v26")
                A("s_nop 0")
                A(f"v_cvt_pk_bf16_f32 v{G+4*p+2*uh+u2}, v28, v29\nv_cvt_pk_bf16_f32 v{G+16+4*p+2*uh+u2}, v30, v31")
    for i in range(8):
        A(f"v_xor_b32 v{G+8+i}, 0x80008000, v{G+16+i}")
    A("s_lshr_b32 s24, s3, 1\ns_and_b32 s25, s3, 1")
    A("s_lshl_b32 s26, s3, 5\ns_xor_b32 s27, s26, 32")
    x_addr(A, XAB, 26, 24)
    h_tr_addr(A, WHB, 24)
    A(f"s_lshl_b32 s30, s25, 6\nv_xor_b32 v{WHB}, s30, v{WHB}\nv_add_u32 v{WHB}, 16384, v{WHB}")
    for i in range(96): A(f"v_mov_b32 v{HA+i}, 0")
    A("s_lshl_b32 s31, s3, 12\ns_sub_u32 s31, 24576, s31")
    def upd(js=(0, 1, 2, 3), wh=True):
        o = [f"v_add_u32 v{XAC+j}, s28, v{XAB+j}" for j in js] + ([f"v_add_u32 v{WHC}, s28, v{WHB}"] if wh else [])
        o += [f"v_xor_b32 v{XBC+j}, 0x1000, v{XAC+j}" for j in js]
        o += [f"v_add_u32 v{DAC+j}, s31, v{XAC+j}" for j in js]
        return o
    A("s_mov_b32 s28, 0")
    for t in upd(): A(t)
    jobs_finish(A, 0, 'm')
    epoch_ready(A)
    loop_hooks_init(A)
    A("s_mov_b32 s34, 0x05040100\ns_mov_b32 s35, 0x07060302")
    def reads(buf, m):
        out = []
        for jj in range(2):
            j = 2 * m + jj
            out.append(f"ds_read_b128 v[{buf+4*jj}:{buf+4*jj+3}], v{XAC+j}")
        for jj in range(2):
            j = 2 * m + jj
            out.append(f"ds_read_b64_tr_b16 v[{buf+16+4*jj}:{buf+17+4*jj}], v{WHC} offset:{j*2048}")
            out.append(f"ds_read_b64_tr_b16 v[{buf+18+4*jj}:{buf+19+4*jj}], v{WHC} offset:{j*2048+512}")
            out.append(f"ds_read_b128 v[{buf+8+4*jj}:{buf+11+4*jj}], v{XBC+j}")
        for jj in range(2):
            j = 2 * m + jj
            out.append(f"ds_read_b128 v[{buf+24+4*jj}:{buf+27+4*jj}], v{DAC+j}")
            out.append(f"ds_read_b128 v[{buf+32+4*jj}:{buf+35+4*jj}], v{DAC+j} offset:4096")
        return out
    def perms(src, e, o):
        ev = [f"v_perm_b32 v{e+k}, v{src+2*k+1}, v{src+2*k}, s34" for k in range(4)]
        od = [f"v_perm_b32 v{o+k}, v{src+2*k+1}, v{src+2*k}, s35" for k in range(4)]
        return ev, od
    def half(cur, nxt, m_next, extra):
        rd = reads(nxt, m_next)
        if opt("NOCOMP1"):
            for t in extra: A(t)
            return
        xe, xo = perms(cur, EV, OD); ce, co = perms(cur + 24, CE, CO); se, so = perms(cur + 32, SE, SO)
        H = []
        for jj in range(2):
            w = cur + 16 + 4 * jj
            H.append(f"{MFMA32} v[{HA}:{HA+15}], v[{w}:{w+3}], v[{cur+4*jj}:{cur+4*jj+3}], v[{HA}:{HA+15}]")
            H.append(f"{MFMA32} v[{HB}:{HB+15}], v[{w}:{w+3}], v[{cur+8+4*jj}:{cur+11+4*jj}], v[{HB}:{HB+15}]")
        Dm = [f"{MFMA32} v[{EC}:{EC+15}], v[{EV}:{EV+3}], v[{CE}:{CE+3}], v[{EC}:{EC+15}]",
              f"{MFMA32} v[{OC}:{OC+15}], v[{OD}:{OD+3}], v[{CO}:{CO+3}], v[{OC}:{OC+15}]",
              f"{MFMA32} v[{ES}:{ES+15}], v[{EV}:{EV+3}], v[{SE}:{SE+3}], v[{ES}:{ES+15}]",
              f"{MFMA32} v[{OS}:{OS+15}], v[{OD}:{OD+3}], v[{SO}:{SO+3}], v[{OS}:{OS+15}]"]
        if opt("MXSCHED", 1):
            ex = list(extra)
            def take(n):
                t = ex[:n]; del ex[:n]; return t
            pad = lambda n: (take(n) + ["s_nop 0"] * n)[:n]
            ms = H + [Dm[0], Dm[2], Dm[1], Dm[3]]
            gaps = [xe[0:2] + rd[0:3], xe[2:4] + rd[3:6], ce[0:2] + rd[6:9], ce[2:4] + rd[9:12],
                    se + xo[0:2], xo[2:4] + co + pad(2), so + pad(2), None]
            gaps[7] = ex
        else:
            gaps = [xe + rd[0:2], ce + rd[2:4], xo + rd[4:6], co + rd[6:8], se + rd[8:10], so + rd[10:12], extra[:8], extra[8:]]
            ms = H + Dm
        for i in range(8):
            A(ms[i])
            for t in gaps[i]: A(t)
    stamp(A, 1)
    A("s_waitcnt lgkmcnt(0)\ns_barrier")
    stamp(A, 2)
    for r in reads(P, 0):
        if not opt("NOCOMP1"): A(r)
    A("s_mov_b32 s29, 10")
    A("L_mx_loop:")
    A.drop = (["v_mfma"] if opt("NOMF1") else []) + (["ds_read"] if opt("NODS1") else []) + (["v_perm"] if opt("NOPERM") else [])
    loop_hooks_top(A, "L_mx")
    A("s_waitcnt lgkmcnt(0)")
    if opt("HHSTAMP"): stamp(A)
    ring = [f"s_add_u32 s28, s28, {RING}", f"s_and_b32 s28, s28, {NS*RING-1}"]
    if opt("MXSCHED", 1):
        half(P, Q, 1, ring + upd((0, 1), True))
        if opt("HHSTAMP"): A("s_waitcnt lgkmcnt(0)"); stamp(A)
        A("s_waitcnt lgkmcnt(0)")
        A("s_barrier")
        if opt("HHSTAMP"): stamp(A)
        half(Q, P, 0, upd((2, 3), False))
    else:
        half(P, Q, 1, ring + upd())
        A("s_waitcnt lgkmcnt(0)")
        A("s_barrier")
        half(Q, P, 0, [])
    A.drop = []
    A("s_sub_u32 s29, s29, 1\ns_cmp_lg_u32 s29, 0\ns_cbranch_scc1 L_mx_loop")
    A("s_waitcnt lgkmcnt(0)")
    stamp(A, 3)
    A(f"v_and_b32 v24, 31, v1\nv_add_u32 v25, s26, v24\nv_lshlrev_b32 v25, 2, v25\nv_add_u32 v25, {LST}, v25")
    A(f"v_add_u32 v26, s27, v24\nv_lshlrev_b32 v26, 2, v26\nv_add_u32 v26, {LST}, v26")
    A("ds_read_b32 v2, v25\nds_read_b32 v3, v25 offset:512\nds_read_b32 v4, v26\nds_read_b32 v5, v26 offset:512")
    A(f"v_mov_b32 v7, {LCNT + 12}\nds_read_b32 v7, v7")
    A(f"v_lshrrev_b32 v27, 5, v1\nv_lshlrev_b32 v27, 4, v27\ns_lshl_b32 s30, s25, 7\ns_add_u32 s30, s30, {LCS}\nv_add_u32 v28, s30, v27")
    for q in range(4):
        A(f"ds_read_b128 v[{32+4*q}:{35+4*q}], v28 offset:{q*32}")
    A(f"s_lshl_b32 s30, s26, 2\ns_add_u32 s30, s30, {LST+512}\nv_add_u32 v28, s30, v27")
    for q in range(4):
        A(f"ds_read_b128 v[{48+4*q}:{51+4*q}], v28 offset:{q*32}")
    h_store_voff(A, 6, 28)
    A(f"s_lshl_b32 s31, s{S_B}, 3\ns_lshl_b32 s30, s24, 1\ns_add_u32 s31, s31, s30\ns_mul_i32 s31, s31, 58")
    A(f"s_lshr_b32 s30, s{S_F0}, 5\ns_add_u32 s30, s30, s25\ns_add_u32 s31, s31, s30")
    A(f"s_lshl_b32 s31, s31, 10\ns_add_u32 s31, s31, {HF_OFF}")
    A(f"s_mul_i32 s30, s25, {4*58*1024}\ns_add_u32 s32, s31, s30")
    A(f"s_xor_b32 s30, s25, 1\ns_mul_i32 s30, s30, {4*58*1024}\ns_add_u32 s33, s31, s30")
    A("s_waitcnt lgkmcnt(0)")
    A(f"v_readfirstlane_b32 s{S_LOCAL}, v7")
    A("s_nop 7")
    h_epilogue_tile(A, HA, 2, 32, 64, 6, 32)
    h_epilogue_tile(A, HB, 4, 32, 72, 6, 33)
    stamp(A, 4)
    if opt("MXPUB", 0): publish(A, "L_mx_pubh", 0, "h", 30)
    stamp(A)
    R = 48
    for i in range(0, 16, 2):
        for a in (EC, OC, ES, OS):
            A(f"v_pk_mul_f32 v[{a+i}:{a+i+1}], v[{a+i}:{a+i+1}], v[{R+i}:{R+i+1}]")
    T0, T1 = 80, 96
    for i in range(0, 16, 2):
        A(f"v_pk_add_f32 v[{T0+i}:{T0+i+1}], v[{EC+i}:{EC+i+1}], v[{OC+i}:{OC+i+1}]")
        A(f"v_pk_add_f32 v[{EC+i}:{EC+i+1}], v[{EC+i}:{EC+i+1}], v[{OC+i}:{OC+i+1}] neg_lo:[0,1] neg_hi:[0,1]")
        A(f"v_pk_add_f32 v[{T1+i}:{T1+i+1}], v[{ES+i}:{ES+i+1}], v[{OS+i}:{OS+i+1}]")
        A(f"v_pk_add_f32 v[{OC+i}:{OC+i+1}], v[{OS+i}:{OS+i+1}], v[{ES+i}:{ES+i+1}] neg_lo:[0,1] neg_hi:[0,1]")
    A("v_and_b32 v24, 31, v1\nv_cmp_eq_u32 s[40:41], 0, v24\ns_nop 3")
    A(f"s_cmp_eq_u32 s{S_C}, 0\ns_cselect_b64 s[40:41], s[40:41], 0\ns_cbranch_scc0 L_mx_nofix")
    for i in range(16):
        A(f"v_cndmask_b32 v{T0+i}, v{T0+i}, v{ES+i}, s[40:41]")
        A(f"v_cndmask_b32 v{T1+i}, v{T1+i}, v{OS+i}, s[40:41]")
        A(f"v_cndmask_b32_e64 v{OC+i}, v{OC+i}, 0, s[40:41]")
    A("L_mx_nofix:")
    ZB = 32
    for k, a in enumerate([T0, T1, EC, OC]):
        for i in range(0, 16, 2):
            A(f"v_cvt_pk_bf16_f32 v{ZB+8*k+i//2}, v{a+i}, v{a+i+1}")
    Fr = lambda p: f"v[{G+4*p}:{G+4*p+3}]"
    Fi = lambda p: f"v[{G+8+4*p}:{G+8+4*p+3}]"
    nFi = lambda p: f"v[{G+16+4*p}:{G+16+4*p+3}]"
    Z = lambda k, p: f"v[{ZB+8*k+4*p}:{ZB+8*k+4*p+3}]"
    TR = [EC, OC]; TI = [ES, OS]
    A("s_nop 1")
    for st_ in range(2):
        zr, zi = 2 * st_, 2 * st_ + 1
        tr, ti = TR[st_], TI[st_]
        A(f"{MFMA32} v[{tr}:{tr+15}], {Fr(0)}, {Z(zr,0)}, 0")
        A(f"{MFMA32} v[{ti}:{ti+15}], {Fr(0)}, {Z(zi,0)}, 0")
        A(f"{MFMA32} v[{tr}:{tr+15}], {Fr(1)}, {Z(zr,1)}, v[{tr}:{tr+15}]")
        A(f"{MFMA32} v[{ti}:{ti+15}], {Fr(1)}, {Z(zi,1)}, v[{ti}:{ti+15}]")
        A(f"{MFMA32} v[{tr}:{tr+15}], {nFi(0)}, {Z(zi,0)}, v[{tr}:{tr+15}]")
        A(f"{MFMA32} v[{ti}:{ti+15}], {Fi(0)}, {Z(zr,0)}, v[{ti}:{ti+15}]")
        A(f"{MFMA32} v[{tr}:{tr+15}], {nFi(1)}, {Z(zi,1)}, v[{tr}:{tr+15}]")
        A(f"{MFMA32} v[{ti}:{ti+15}], {Fi(1)}, {Z(zr,1)}, v[{ti}:{ti+15}]")
    if not opt("MXPUB", 0): publish(A, "L_mx_pubh", 0, "h", 30)
    else: A("s_nop 7")
    stamp(A)
    A(f"v_and_b32 v24, 31, v1\nv_lshlrev_b32 v24, 2, v24\nv_lshrrev_b32 v25, 5, v1\nv_lshlrev_b32 v25, 9, v25\nv_add_u32 v24, v24, v25")
    A(f"s_lshl_b32 s30, s3, 13\ns_add_u32 s30, s30, {LX}\nv_add_u32 v24, s30, v24")
    A("s_nop 7")
    for st_ in range(2):
        for i in range(16):
            A(f"v_cvt_pk_bf16_f32 v{64+16*st_+i}, v{TR[st_]+i}, v{TI[st_]+i}")
    for st_ in range(2):
        for i in range(16):
            t0 = (i & 3) + 8 * (i >> 2)
            A(f"ds_write_b32 v24, v{64+16*st_+i} offset:{st_*4096+t0*128}")
    A("s_waitcnt lgkmcnt(0)")
    stamp(A)
    lds_arrive(A, 1, 30, 63)
    A(f"v_mov_b32 v30, {LCNT+4}")
    A("L_mx_rv:\nds_read_b32 v31, v30\ns_waitcnt lgkmcnt(0)\ns_nop 0\nv_readfirstlane_b32 s63, v31\ns_nop 3\ns_cmp_ge_u32 s63, 4\ns_cbranch_scc1 L_mx_rv_ok")
    A(f"s_sub_u32 s{S_SPIN}, s{S_SPIN}, 1\ns_cmp_eq_u32 s{S_SPIN}, 0\ns_cbranch_scc0 L_mx_rv\nL_mx_rv_ok:")
    A("v_and_b32 v24, 31, v1\nv_lshlrev_b32 v24, 2, v24\nv_lshrrev_b32 v25, 5, v1\nv_lshlrev_b32 v26, 7, v25\nv_add_u32 v24, v24, v26")
    A(f"s_lshl_b32 s30, s3, 10\ns_add_u32 s30, s30, {LX}\nv_add_u32 v24, s30, v24")
    for st_ in range(2):
        for n in range(4):
            b = 64 + 16 * st_ + 4 * n
            for w in range(4):
                A(f"ds_read_b32 v{b+w}, v24 offset:{w*8192+st_*4096+n*256}")
    A(f"v_and_b32 v26, 31, v1\ns_lshl_b32 s30, s{S_C}, 5\nv_add_u32 v27, s30, v26")
    A("v_mov_b32 v28, 160\nv_cndmask_b32 v29, v27, v28, s[40:41]")
    A("v_sub_u32 v27, 320, v27")
    A(f"s_mov_b32 s30, {TF_T0}\nv_mul_lo_u32 v25, s30, v25")
    A("v_lshlrev_b32 v29, 4, v29\nv_add_u32 v29, v29, v25")
    A("v_lshlrev_b32 v27, 4, v27\nv_add_u32 v27, v27, v25")
    A(f"s_mul_i32 s30, s3, {8*TF_T0}\ns_mul_i32 s31, s{S_B}, {TF_ROW}\ns_add_u32 s30, s30, s31\ns_add_u32 s30, s30, {TF_OFF}")
    A("s_waitcnt lgkmcnt(0)")
    for st_ in range(2):
        for n in range(4):
            b = 64 + 16 * st_ + 4 * n
            A(f"s_add_u32 s31, s30, {2*n*TF_T0}")
            if not opt("NOTST"): A(f"buffer_store_dwordx4 v[{b}:{b+3}], v{29 if st_ == 0 else 27}, s[36:39], s31 offen {'' if opt('TPLAIN') else SC}")
    stamp(A)
    A(f"s_cmp_eq_u32 s{S_C}, 0\ns_cbranch_scc0 L_mx_noz\ns_cmp_eq_u32 s3, 0\ns_cbranch_scc0 L_mx_noz")
    A(f"s_mov_b32 s30, {TF_T0}\nv_and_b32 v24, 31, v1\nv_mul_lo_u32 v24, s30, v24")
    A("v_mov_b32 v4, 0\nv_mov_b32 v5, 0\nv_mov_b32 v6, 0\nv_mov_b32 v7, 0")
    A(f"s_mul_i32 s31, s{S_B}, {TF_ROW}\ns_add_u32 s31, s31, {TF_OFF}")
    A(f"buffer_store_dwordx4 v[4:7], v24, s[36:39], s31 offen {SC}")
    A("L_mx_noz:")
    publish(A, "L_mx_pubt", 2, "t", 30)
    stamp(A)
    stamp_flush(A, 0, WS, 9)
    A("s_endpgm")
    loop_hooks_ool(A, "L_mx")

def loader(A):
    A("L_loader:")
    if opt("PRIOL"): A(f"s_setprio {opt('PRIOL')}")
    A(f"s_sub_u32 s{S_J}, s3, 4")
    for r in [11, 12, 13, 52, 53, 54, 55, 56, 57, 58, 59]: A(f"v_mov_b32 v{r}, 0")
    A("s_mov_b32 s58, 0\ns_mov_b32 s59, 99\ns_mov_b32 s63, 0")
    RS = 1280 if opt("XLIN") else 81920
    A(f"v_lshrrev_b32 v4, 3, v1\ns_mov_b32 s40, {RS}\nv_mul_lo_u32 v8, s40, v4")
    A("v_and_b32 v5, 7, v1\nv_lshrrev_b32 v6, 4, v1\nv_xor_b32 v5, v5, v6\nv_lshlrev_b32 v5, 4, v5")
    A("v_add_u32 v2, v8, v5\nv_xor_b32 v7, 64, v5")
    A(f"v_add_u32 v3, v8, v7\nv_add_u32 v3, {8*RS}, v3")
    A(f"s_lshl_b32 s40, s{S_B}, 1\ns_and_b32 s41, s{S_J}, 1\ns_add_u32 s40, s40, s41")
    A(f"s_lshr_b32 s41, s{S_J}, 1\ns_lshl_b32 s41, s41, 5\ns_add_u32 s40, s40, s41")
    if opt("XLIN"):
        A(f"s_lshl_b32 s40, s{S_B}, 2\ns_add_u32 s40, s40, s{S_J}\ns_mul_i32 s40, s40, {32*1280}\ns_add_u32 s41, s40, {16*1280}")
    else:
        A(f"s_mul_i32 s40, s40, 1280\ns_add_u32 s41, s40, {16*81920}")
    A("s_mov_b64 s[56:57], -1")
    A(f"s_cmp_lt_u32 s{S_C}, 5\ns_cbranch_scc0 L_ld_H")
    A(f"s_cmp_ge_u32 s{S_J}, 2\ns_cbranch_scc0 L_ld_H")
    A(f"s_and_b32 s50, s{S_J}, 1\ns_add_u32 s50, s50, 1\ns_mov_b32 s30, {HID_BYTES}")
    A("v_mul_u32_u24 v8, 1280, v4\nv_add_u32 v9, v8, v5")
    A(f"v_add_u32 v10, v8, v7\nv_add_u32 v10, {8*1280}, v10")
    A(f"s_mul_i32 s42, s{S_C}, {32*1280}")
    A(f"s_mov_b32 s44, s42\ns_mov_b32 s45, s42\ns_add_u32 s46, s42, {16*1280}\ns_add_u32 s47, s42, {16*1280}")
    A("s_mov_b32 s43, 128")
    A(f"s_cmp_eq_u32 s{S_C}, 0\ns_cbranch_scc0 L_ld_go\ns_cmp_eq_u32 s{S_J}, 3\ns_cbranch_scc0 L_ld_go")
    A("s_mov_b32 s56, 0xffffff00")
    A("s_branch L_ld_go")
    A("L_ld_H:")
    A(f"s_mov_b32 s50, 0\ns_mov_b32 s30, {W1_BYTES}")
    A("v_mul_u32_u24 v8, 3456, v4")
    A("v_and_b32 v9, 7, v1\nv_bfe_u32 v10, v1, 4, 1\nv_lshlrev_b32 v10, 2, v10\nv_xor_b32 v9, v9, v10")
    A("v_lshlrev_b32 v9, 4, v9\nv_add_u32 v9, v8, v9\nv_mov_b32 v10, v9")
    A(f"s_and_b32 s42, s{S_J}, 1\ns_mul_i32 s42, s42, {32*3456}")
    A(f"s_lshr_b32 s43, s{S_J}, 1\ns_lshl_b32 s43, s43, 6\ns_add_u32 s43, s43, s{S_F0}\ns_lshl_b32 s43, s43, 1")
    A("s_add_u32 s42, s42, s43")
    for q in range(4):
        A(f"s_add_u32 s{44+q}, s42, {8*q*3456}")
    A(f"s_mov_b32 s43, {64*3456}")
    A("L_ld_go:")
    A(f"s_lshl_b32 s48, s{S_J}, 12\ns_mov_b32 s31, 0x20000")
    args_ready(A)
    srd(A, 24, X_, X_BYTES)
    A(f"s_cmp_eq_u32 s50, 1\ns_cselect_b32 s28, s{HRE}, s{W1}\ns_cselect_b32 s29, s{HRE+1}, s{W1+1}")
    A(f"s_cmp_eq_u32 s50, 2\ns_cselect_b32 s28, s{HIM}, s28\ns_cselect_b32 s29, s{HIM+1}, s29")
    def chunk(slot_reg):
        for q in range(0 if opt("NOLOAD1") else 4):
            A(f"s_add_u32 m0, s{slot_reg}, {q*1024}")
            A("s_nop 0")
            A(f"buffer_load_dwordx4 v{2+(q&1)}, s[24:27], s{40+(q>>1)} offen {'nt ' if opt('XNT') else ''}lds")
            A(f"s_add_u32 m0, s{slot_reg}, {16384+q*1024}")
            if q == 0: A("s_mov_b64 exec, s[56:57]")
            else: A("s_nop 0")
            A(f"buffer_load_dwordx4 v{9+(q&1)}, s[28:31], s{44+q} offen {'nt ' if opt('WNT') else ''}lds")
            if q == 0: A("s_mov_b64 exec, -1")
        A("s_add_u32 s40, s40, 128\ns_add_u32 s41, s41, 128")
        for q in range(4):
            A(f"s_add_u32 s{44+q}, s{44+q}, s43")
        A(f"s_add_u32 s{slot_reg}, s{slot_reg}, {RING}\ns_cmp_ge_u32 s{slot_reg}, {NS*RING}\ns_cselect_b32 s52, {NS*RING}, 0\ns_sub_u32 s{slot_reg}, s{slot_reg}, s52")
    A("s_mov_b32 s49, s48")
    chunk(49); chunk(49)
    stamp(A, 1)
    srd(A, 36, WS, WS_USED)
    srd(A, 32, WS, WS_USED)
    A("s_waitcnt lgkmcnt(0)")
    A(f"s_add_u32 s{S_E}, s{S_E}, 1\ns_xor_b32 s{S_EM}, s{S_E}, {MAGIC}")
    A(f"s_cmp_ge_u32 s{S_J}, 2\ns_cbranch_scc0 L_ld_su01")
    A(f"s_sub_u32 s58, s{S_J}, 2\ns_lshl_b32 s59, s{S_T0}, 1\ns_add_u32 s59, s59, s58")
    A("s_mov_b32 s50, 6554\ns_mov_b32 s53, 1280")
    for q in range(5):
        A(f"v_add_u32 v22, {64*q}, v1")
        A("v_mul_lo_u32 v23, s50, v22\nv_lshrrev_b32 v23, 16, v23")
        A("v_mul_u32_u24 v24, 10, v23\nv_sub_u32 v24, v22, v24\nv_lshlrev_b32 v24, 4, v24")
        A(f"v_mul_lo_u32 v23, s53, v23\nv_add_u32 v{52+q}, v23, v24")
    A("v_lshrrev_b32 v23, 4, v1\nv_lshrrev_b32 v24, 1, v23\nv_lshlrev_b32 v24, 4, v24")
    A("v_and_b32 v25, 1, v23\nv_lshlrev_b32 v25, 2, v25\nv_add_u32 v24, v24, v25\nv_bfe_u32 v25, v1, 2, 2\nv_add_u32 v24, v24, v25")
    A("v_mul_u32_u24 v24, 160, v24\nv_and_b32 v25, 3, v1\nv_lshlrev_b32 v25, 3, v25\nv_add_u32 v24, v24, v25")
    A(f"s_mul_i32 s50, s58, 5120\ns_add_u32 s50, s50, {LW}\nv_add_u32 v57, s50, v24")
    A(f"s_lshl_b32 s50, s{S_CT}, 6\ns_add_u32 s50, s50, s59\ns_lshl_b32 s50, s50, 3\ns_add_u32 s50, s50, {FW_OFF}\nv_mov_b32 v58, s50")
    A("s_branch L_ld_sud")
    A("L_ld_su01:")
    A("v_lshlrev_b32 v13, 3, v1\nv_and_b32 v16, 31, v1\nv_lshlrev_b32 v15, 3, v16")
    A(f"s_lshl_b32 s50, s{S_B}, 7\ns_add_u32 s50, s50, {FR1_OFF}\nv_add_u32 v12, s50, v15")
    A(f"s_lshl_b32 s50, s{S_C}, 7\ns_add_u32 s50, s50, {FC1_OFF-128}\nv_add_u32 v15, s50, v15")
    A("v_cmp_le_u32 vcc, 16, v16\ns_nop 1\nv_cndmask_b32 v12, v12, v15, vcc")
    A(f"s_lshl_b32 s50, s{S_CT}, 9\ns_add_u32 s50, s50, {FW_OFF}\nv_add_u32 v11, s50, v13")
    A("L_ld_sud:")
    A("s_waitcnt vmcnt(8)")
    stamp(A, 2)
    A("s_barrier")
    chunk(49)
    A(f"s_cmp_ge_u32 s{S_J}, 2\ns_cbranch_scc1 L_ld_h1w\nL_ld_h1w_ret:")
    A(f"s_cmp_ge_u32 s{S_J}, 2\ns_cbranch_scc1 L_ld_b1w")
    A("s_waitcnt vmcnt(8)\ns_branch L_ld_b1d\nL_ld_b1w:")
    A("s_cmp_ge_u32 s59, 54\ns_cbranch_scc1 L_ld_b1n\ns_waitcnt vmcnt(13)\ns_branch L_ld_b1d\nL_ld_b1n:\ns_waitcnt vmcnt(8)\nL_ld_b1d:")
    A("s_barrier")
    stamp(A)
    pk = opt("POLLK", 5)
    assert pk in (5, 6)
    A(f"s_mov_b32 s53, 99\ns_mov_b32 s54, 99\ns_mov_b32 s55, 0\ns_mov_b32 s79, 99\ns_mov_b32 s81, 99\ns_mov_b32 s82, 99\ns_mov_b32 s83, 0")
    A(f"s_cmp_eq_u32 s{S_J}, 0\ns_cselect_b32 s53, {9-pk}, s53\ns_cselect_b32 s54, {9-pk-2}, s54\ns_cselect_b32 s55, {9-pk-1}, s55\ns_cselect_b32 s81, {9-pk-2}, s81")
    A(f"s_cmp_eq_u32 s{S_J}, 1\ns_cselect_b32 s53, {opt('FWPOLL', 1)}, s53")
    A(f"s_cmp_ge_u32 s{S_J}, 2\ns_cselect_b32 s82, 6, s82\ns_cselect_b32 s79, 3, s79\ns_cselect_b32 s83, 1, s83")
    A("s_mov_b32 s51, 7")
    A("L_ld_loop:")
    A("s_cmp_eq_u32 s51, s54\ns_cbranch_scc1 L_ld_h2\nL_ld_h2_ret:")
    chunk(49)
    A("s_cmp_eq_u32 s51, s79\ns_cbranch_scc1 L_ld_h3\nL_ld_h3_ret:")
    A("s_cmp_eq_u32 s51, s53\ns_cbranch_scc1 L_ld_h1\nL_ld_h1_ret:")
    A("s_cmp_eq_u32 s51, s81\ns_cbranch_scc1 L_ld_h4\nL_ld_h4_ret:")
    A("s_cmp_eq_u32 s51, s82\ns_cbranch_scc1 L_ld_h2w\nL_ld_h2w_ret:")
    A("s_cmp_lt_u32 s51, s55\ns_cbranch_scc1 L_ld_w25")
    A("s_cmp_eq_u32 s83, 0\ns_cbranch_scc1 L_ld_w8")
    A("s_cmp_eq_u32 s51, 6\ns_cbranch_scc1 L_ld_wW\ns_cmp_eq_u32 s51, 5\ns_cbranch_scc1 L_ld_wW")
    A("s_cmp_eq_u32 s51, 3\ns_cbranch_scc1 L_ld_w9\ns_cmp_eq_u32 s51, 2\ns_cbranch_scc1 L_ld_w9")
    A("L_ld_w8:\ns_waitcnt vmcnt(8)\ns_branch L_ld_wd")
    A("L_ld_wW:\ns_cmp_ge_u32 s59, 54\ns_cbranch_scc1 L_ld_w8\ns_waitcnt vmcnt(13)\ns_branch L_ld_wd\nL_ld_w9:\ns_waitcnt vmcnt(9)\ns_branch L_ld_wd")
    A("L_ld_w25:\ns_waitcnt vmcnt(17)\nL_ld_wd:")
    stamp(A)
    A("s_barrier")
    stamp(A)
    A("s_sub_u32 s51, s51, 1\ns_cmp_lg_u32 s51, 0\ns_cbranch_scc1 L_ld_loop")
    A("s_waitcnt vmcnt(0)")
    if not opt("WLATE", 1):
        A(f"s_cmp_eq_u32 s{S_J}, 1\ns_cbranch_scc0 L_ld_no1")
        spin(A, "L_ld_spw", 48, 11, 32, xcc=True)
        A("L_ld_no1:")
    A(f"s_cmp_eq_u32 s{S_J}, 0\ns_cbranch_scc0 L_ld_nored")
    for b_ in range(1, 8):
        for k in range(4): A(f"v_add_f32 v{16+k}, v{16+k}, v{16+4*b_+k}")
    for k in range(4): A(f"v_mov_b32 v{20+k}, v{16+k}")
    A("s_nop 1")
    for k in range(4): A(f"v_permlane32_swap_b32 v{16+k}, v{20+k}")
    A("s_nop 0")
    for k in range(4): A(f"v_add_f32 v{16+k}, v{16+k}, v{20+k}")
    A(f"v_add_u32 v13, {LCS}, v13\nds_write_b128 v13, v[16:19]\ns_waitcnt lgkmcnt(0)")
    A("L_ld_nored:")
    A("s_barrier")
    stamp(A)
    A("s_barrier")
    A("s_branch L_ld_p2")
    A("L_ld_h1:")
    A(f"s_cmp_eq_u32 s{S_J}, 1\ns_cbranch_scc1 L_ld_h1f")
    A(f"buffer_load_dwordx2 v[14:15], v12, s[32:35], 0 offen {SC}")
    A("s_branch L_ld_h1_ret")
    A("L_ld_h1f:")
    A(f"buffer_load_dwordx2 v[48:49], v11, s[32:35], 0 offen {SC}")
    A("s_branch L_ld_h1_ret")
    A("L_ld_h1w:")
    if opt("NOW"): A("s_branch L_ld_h1w_ret")
    A("s_cmp_ge_u32 s59, 54\ns_cbranch_scc1 L_ld_h1w_ret")
    srd(A, 84, W2, W2_BYTES)
    A(f"s_mul_i32 s50, s59, 40960\ns_mul_i32 s62, s{S_CT}, 160\ns_add_u32 s50, s50, s62")
    A(f"s_mul_i32 s62, s58, 5120\ns_add_u32 s62, s62, {LW}")
    for q in range(5):
        A(f"s_add_u32 m0, s62, {1024*q}\ns_nop 0")
        A(f"buffer_load_dwordx4 v{52+q}, s[84:87], s50 offen lds")
    A("s_branch L_ld_h1w_ret")
    A("L_ld_h2:")
    spin(A, "L_ld_sp", 14, 12, 32, xcc=True)
    A(f"v_and_b32 v50, 16, v1\nv_cmp_eq_u32 s[60:61], 0, v50\nv_cmp_ne_u32 vcc, s{S_XCC}, v15\ns_nop 3\ns_and_b64 vcc, vcc, s[60:61]")
    A(f"s_cmp_eq_u64 vcc, 0\ns_cselect_b32 s62, {1 if opt('LOCALH', 2) and opt('MAP1', 1) else 0}, 0")
    A(f"v_mov_b32 v50, {LCNT + 12}\nv_mov_b32 v51, s62\nds_write_b32 v50, v51")
    A("s_branch L_ld_h2_ret")
    A("L_ld_h4:")
    A(f"s_lshl_b32 s50, s{S_B}, 10\ns_add_u32 s50, s50, {ST_OFF}\ns_mov_b32 m0, {LST}\nv_lshlrev_b32 v13, 4, v1")
    A(f"buffer_load_dwordx4 v13, s[36:39], s50 offen {SC} lds")
    A(f"s_lshl_b32 s50, s{S_F0}, 2\ns_add_u32 s50, s50, {CS_OFF}")
    A("v_and_b32 v13, 31, v1\nv_lshlrev_b32 v13, 4, v13\nv_lshrrev_b32 v14, 5, v1\nv_lshlrev_b32 v14, 13, v14\nv_add_u32 v14, v13, v14")
    for b_ in range(8):
        A(f"buffer_load_dwordx4 v[{16+4*b_}:{19+4*b_}], v14, s[36:39], s50 offen {SC}")
        if b_ < 7: A("s_add_u32 s50, s50, 16384")
    A("s_branch L_ld_h4_ret")
    A("L_ld_h2w:")
    A("v_lshlrev_b32 v22, 4, v1")
    if opt("NOW"): A("s_branch L_ld_h2w_ret")
    A("s_cmp_ge_u32 s59, 54\ns_cbranch_scc1 L_ld_h2w_ret")
    for n in range(5):
        A(f"ds_read_b64_tr_b16 v[{24+4*n}:{25+4*n}], v57 offset:{32*n}")
        A(f"ds_read_b64_tr_b16 v[{26+4*n}:{27+4*n}], v57 offset:{32*n+1280}")
    A(f"s_mul_i32 s50, s{S_CT}, 54\ns_add_u32 s50, s50, s59\ns_mul_i32 s50, s50, 5120\ns_add_u32 s50, s50, {W2F_OFF}")
    A("v_add_u32 v23, 4096, v22\ns_waitcnt lgkmcnt(0)")
    for n in range(4):
        A(f"buffer_store_dwordx4 v[{24+4*n}:{27+4*n}], v22, s[32:35], s50 offen offset:{1024*n} {SC}")
    A(f"buffer_store_dwordx4 v[40:43], v23, s[32:35], s50 offen {SC}")
    A("s_branch L_ld_h2w_ret")
    A("L_ld_h3:")
    store_flags(A, 58, 1, 32, 64, xcc=True)
    A("s_branch L_ld_h3_ret")
    A("L_ld_p2:")
    stamp(A, 3)
    if opt("P1ONLY"):
        stamp_flush(A, 0, WS, 9)
        A("s_endpgm")
    if opt("WLATE", 1):
        A(f"v_mov_b32 v16, {LCNT + 20}")
        A(f"s_cmp_eq_u32 s{S_J}, 1\ns_cbranch_scc0 L_ld_ww")
        spin(A, "L_ld_spw", 48, 11, 32, xcc=True)
        A("v_mov_b32 v17, 1\nds_write_b32 v16, v17\ns_waitcnt lgkmcnt(0)\ns_branch L_ld_wgo")
        A("L_ld_ww:\nds_read_b32 v17, v16\ns_waitcnt lgkmcnt(0)\ns_nop 0\nv_readfirstlane_b32 s50, v17\ns_nop 3\ns_cmp_eq_u32 s50, 1\ns_cbranch_scc1 L_ld_wgo")
        A(f"s_sub_u32 s{S_SPIN}, s{S_SPIN}, 1\ns_cmp_eq_u32 s{S_SPIN}, 0\ns_cbranch_scc0 L_ld_ww")
        A("L_ld_wgo:")
    p2(A)

def p2(A):
    J = S_J
    HSC = "" if opt("HPLAIN") else SC
    WSC = "" if opt("WPLAIN") else SC
    if opt("W2NT"): WSC += " nt"
    ACC = 16
    SET = [96, 132, 168]
    XR = 204
    VP = 214
    acc = lambda nt, a: ACC + 4 * (4 * nt + a)
    srd(A, 24, WS, WS_USED)
    srd(A, 28, WS, 4 * HF_TILE)
    A(f"s_mul_i32 s50, s{S_T0}, {4*HF_TILE}")
    if HF_OFF: A(f"s_add_u32 s50, s50, {HF_OFF}")
    A("s_add_u32 s28, s28, s50\ns_addc_u32 s29, s29, 0")
    srd(A, 32, X_, X_BYTES)
    srd(A, 40, OUT, X_BYTES)
    A("v_lshlrev_b32 v2, 4, v1\nv_add_u32 v3, 4096, v2")
    for a_ in range(4):
        A(f"s_add_u32 s50, s{J}, {a_}\ns_and_b32 s50, s50, 3\ns_mul_i32 s50, s50, {HF_TILE}\nv_add_u32 v{4+a_}, s50, v2")
    RSTR = 336
    A(f"s_lshl_b32 s50, s{J}, 6\nv_add_u32 v8, s50, v1")
    A(f"s_mov_b32 s50, 3277\ns_mul_i32 s38, s{S_T0}, 1280\ns_mul_i32 s39, s{S_CT}, 160\ns_add_u32 s38, s38, s39")
    for n in range(5):
        A(f"v_add_u32 v9, {256*n}, v8\nv_mul_lo_u32 v10, s50, v9\nv_lshrrev_b32 v10, 16, v10")
        A("v_mul_u32_u24 v11, 20, v10\nv_sub_u32 v11, v9, v11")
        A(f"v_mul_u32_u24 v12, {RSTR}, v10\nv_lshlrev_b32 v13, 4, v11\nv_add_u32 v{220+n}, v12, v13")
        A("v_lshrrev_b32 v12, 5, v10\nv_mul_u32_u24 v12, 40960, v12\nv_and_b32 v10, 31, v10\nv_mul_u32_u24 v10, 81920, v10")
        A(f"v_lshlrev_b32 v11, 3, v11\nv_add3_u32 v{225+n}, v10, v12, v11")
    A(f"v_and_b32 v9, 15, v1\nv_mul_u32_u24 v9, {RSTR}, v9\nv_lshrrev_b32 v10, 4, v1\nv_lshlrev_b32 v10, 4, v10\nv_add_u32 v230, v9, v10")
    FFR = 236
    A(f"s_add_u32 s50, s{J}, 2\ns_and_b32 s50, s50, 3\ns_lshl_b32 s50, s50, 3\nv_lshrrev_b32 v9, 4, v1\nv_lshlrev_b32 v9, 1, v9\nv_add_u32 v9, s50, v9")
    A(f"s_mov_b32 s51, 0x3a000000\ns_mov_b32 s52, 0xba000000\ns_cmp_lt_u32 s{S_CT}, 4\ns_cselect_b32 s52, s51, s52")
    A("v_and_b32 v10, 15, v1\nv_lshlrev_b32 v10, 6, v10")
    for a_ in range(4):
        A(f"s_add_u32 s50, s{J}, {a_}\ns_and_b32 s50, s50, 3\ns_lshr_b32 s53, s50, 1\ns_lshl_b32 s53, s53, 5\ns_and_b32 s50, s50, 1\ns_lshl_b32 s50, s50, 10")
        A(f"s_add_u32 s50, s50, s53\ns_add_u32 s50, s50, s{S_T0}\nv_add_u32 v11, s50, v10")
        for k, ds in enumerate([0, 1, 32, 33]):
            A(f"v_add_u32 v12, {ds}, v9\nv_mul_u32_u24 v12, v11, v12\nv_and_b32 v12, 0x7ff, v12\nv_cvt_f32_u32 v12, v12")
            A(f"v_mul_f32 v13, s51, v12\nv_mul_f32 v12, s52, v12\nv_cos_f32 v13, v13\nv_sin_f32 v12, v12\ns_nop 0\nv_cvt_pk_bf16_f32 v{FFR+4*a_+k}, v13, v12")
    MXLAST = opt("MXLAST", 1)
    if MXLAST:
        A(f"s_add_u32 s44, s{J}, 12\ns_mov_b32 s45, s44")
    else:
        A(f"s_mov_b32 s44, s{J}\ns_mov_b32 s45, s44")
    A(f"s_mul_i32 s49, s{S_CT}, {54*5120}\ns_add_u32 s49, s49, {W2F_OFF}")
    def adv(r):
        A(f"s_add_u32 s{r}, s{r}, 4\ns_cmp_ge_u32 s{r}, 54\ns_cselect_b32 s{r}, s{J}, s{r}")
    def loadB(si):
        b = SET[si]
        A("s_mul_i32 s50, s44, 5120\ns_add_u32 s50, s50, s49")
        for n in range(4):
            A(f"buffer_load_dwordx4 v[{b+4*n}:{b+4*n+3}], v2, s[24:27], s50 offen offset:{1024*n} {WSC}")
        A(f"buffer_load_dwordx4 v[{b+16}:{b+19}], v3, s[24:27], s50 offen {WSC}")
        adv(44)
    def loadA(si):
        b = SET[si] + 20
        A("s_lshl_b32 s50, s45, 10")
        for a_ in range(4):
            A(f"buffer_load_dwordx4 v[{b+4*a_}:{b+4*a_+3}], v{4+a_}, s[28:31], s50 offen {HSC}")
        adv(45)
    def loadT(si):
        b = SET[si]
        A("s_mov_b32 s50, s46")
        for n in range(5):
            A(f"buffer_load_dwordx4 v[{b+4*n}:{b+4*n+3}], v10, s[24:27], s50 offen {SC}")
            if n < 4: A("s_add_u32 s50, s50, s47")
    def mfmas(si):
        b = SET[si]
        for a_ in range(4):
            for nt in range(5):
                c = acc(nt, a_)
                if not opt("NOCOMP2"):
                    A(f"{MFMA16} v[{c}:{c+3}], v[{b+4*nt}:{b+4*nt+3}], v[{b+20+4*a_}:{b+23+4*a_}], v[{c}:{c+3}]")
    def last_step(si):
        b = SET[si]
        def grp(a_):
            for nt in range(5):
                c = acc(nt, a_)
                if not opt("NOCOMP2"):
                    A(f"{MFMA16} v[{c}:{c+3}], v[{b+4*nt}:{b+4*nt+3}], v[{FFR+4*a_}:{FFR+4*a_+3}], v[{c}:{c+3}]")
        def addr(a_):
            A(f"s_add_u32 s50, s{J}, {a_}\ns_and_b32 s50, s50, 3\ns_mul_i32 s50, s50, {16*336}\ns_mul_i32 s51, s{J}, {64*336}\ns_add_u32 s50, s50, s51\nv_add_u32 v{232+a_}, s50, v230")
        def wr(a_):
            for nt in range(5):
                c = acc(nt, a_)
                A(f"ds_write_b128 v{232+a_}, v[{c}:{c+3}] offset:{nt*64}")
        grp(0); addr(0); addr(1); grp(1); addr(2); wr(0); grp(2); addr(3); wr(1); grp(3); A("s_nop 3"); wr(2); A("s_nop 3"); wr(3)
    def xorA(si):
        b = SET[si] + 20
        for k in range(16): A(f"v_xor_b32 v{b+k}, s48, v{b+k}")
        A("s_nop 0")
    NB0 = opt("NB0", 2)
    for si in range(NB0): loadB(si)
    for i in range(80): A(f"v_mov_b32 v{ACC+i}, 0")
    A(f"v_lshrrev_b32 v10, 4, v1\nv_mul_u32_u24 v10, {TF_ROW}, v10\nv_and_b32 v11, 15, v1")
    A(f"s_mul_i32 s50, s{S_CT}, 80\nv_add_u32 v12, s50, v11\nv_sub_u32 v13, 576, v12")
    A(f"s_cmp_lt_u32 s{S_CT}, 4\ns_cselect_b64 s[60:61], -1, 0\nv_cndmask_b32 v12, v13, v12, s[60:61]")
    A("v_lshlrev_b32 v12, 4, v12\nv_add_u32 v10, v10, v12")
    A(f"s_sub_u32 s46, 32, s{S_T0}\ns_and_b32 s46, s46, 31\ns_cmp_lt_u32 s{S_CT}, 4\ns_cselect_b32 s46, s{S_T0}, s46")
    A(f"s_mul_i32 s46, s46, {TF_T0}\ns_add_u32 s46, s46, {TF_OFF}")
    A(f"s_mov_b32 s47, 256\ns_mov_b32 s50, -256\ns_cmp_lt_u32 s{S_CT}, 4\ns_cselect_b32 s47, s47, s50\ns_cselect_b32 s50, 0, 1024\ns_cselect_b32 s48, 0x80000000, 0")
    A("s_add_u32 s46, s46, s50")
    A(f"s_add_u32 s50, s{J}, 2\ns_and_b32 s50, s50, 3\ns_mul_i32 s50, s50, {4*TF_ROW}\ns_add_u32 s46, s46, s50")
    A(f"s_lshl_b32 s50, s{S_CT}, 10\ns_add_u32 s50, s50, {FT_OFF}\nv_lshlrev_b32 v12, 3, v1\nv_add_u32 v12, s50, v12")
    A("v_and_b32 v13, 15, v1\nv_lshlrev_b32 v13, 3, v13\nv_add_u32 v13, s50, v13\nv_add_u32 v13, 512, v13")
    A(f"s_lshr_b32 s50, s{S_T0}, 1\ns_lshl_b32 s50, s50, 7\ns_add_u32 s50, s50, {FH_OFF}\nv_min_u32 v9, 4, v1\nv_lshlrev_b32 v9, 3, v9\nv_add_u32 v9, s50, v9")
    A(f"s_cmp_eq_u32 s{J}, 0\ns_cbranch_scc0 L_p2_lw")
    A(f"s_lshr_b32 s50, s{S_T0}, 1\ns_lshl_b32 s50, s50, 7\ns_add_u32 s50, s50, {FH_OFF}")
    if MXLAST:
        A("v_min_u32 v14, 10, v1\nv_add_u32 v14, 5, v14\nv_lshlrev_b32 v14, 3, v14\nv_add_u32 v11, s50, v14")
    else:
        A("v_and_b32 v14, 15, v1\nv_lshlrev_b32 v14, 3, v14\nv_add_u32 v11, s50, v14")
    A(f"buffer_load_dwordx2 v[{VP}:{VP+1}], v11, s[24:27], 0 offen {SC}\ns_waitcnt vmcnt(0)")
    if opt("SPINSTAMP") == "L_p2_sp1": stamp(A)
    spin(A, "L_p2_sp1", VP, 11, 24, xcc=True)
    A(f"v_mov_b32 v14, {LCNT + 16}\nv_mov_b32 v15, 1\nds_write_b32 v14, v15\ns_waitcnt lgkmcnt(0)")
    A("s_branch L_p2_go")
    A("L_p2_lw:")
    if opt("P2ONLY"): A("s_branch L_p2_go")
    A(f"v_mov_b32 v14, {LCNT + 16}")
    A("L_p2_lw1:\nds_read_b32 v15, v14\ns_waitcnt lgkmcnt(0)\ns_nop 0\nv_readfirstlane_b32 s50, v15\ns_nop 3\ns_cmp_eq_u32 s50, 1\ns_cbranch_scc1 L_p2_go")
    A(f"s_sleep 1\ns_sub_u32 s{S_SPIN}, s{S_SPIN}, 1\ns_cmp_eq_u32 s{S_SPIN}, 0\ns_cbranch_scc0 L_p2_lw1")
    A("L_p2_go:")
    stamp(A, 5)
    for si in range(NB0): loadA(si)
    for si in range(NB0, 3):
        loadB(si); loadA(si)
    def loadX():
        for n in range(5):
            A(f"buffer_load_dwordx2 v[{XR+2*n}:{XR+2*n+1}], v{225+n}, s[32:35], s38 offen")
    XLATE = opt("XLATE", 1)
    if not XLATE: loadX()
    def step(si, vm, pre):
        A(f"s_waitcnt vmcnt({vm})")
        mfmas(si)
        pre()
    reg = lambda si: (lambda: (loadB(si), loadA(si)))
    order = [(si, 4) for si in range(NB0)] + [(si, 9) for si in range(NB0, 3)] + ([] if XLATE else [(-1, 5)])
    for st_ in range(3):
        idx = max(i for i, (si, n) in enumerate(order) if si == st_)
        younger = sum(n for (si, n) in order[idx+1:]) + 9 * st_
        step(st_, younger, reg(st_))
        if opt("STEPSTAMP"): stamp(A)
    stamp(A)
    if MXLAST: A(f"buffer_load_dwordx2 v[{VP+4}:{VP+5}], v9, s[24:27], 0 offen {SC}")
    A("s_mov_b32 s51, 2")
    A("L_p2_loop:")
    for si in range(3):
        step(si, 18, reg(si))
        if opt("STEPSTAMP"): stamp(A)
    A("s_cmp_eq_u32 s51, 2\ns_cbranch_scc0 L_p2_nt")
    if MXLAST: spin(A, "L_p2_spm", VP + 4, 9, 24, xcc=True)
    if not opt("TLATE", 1):
        A(f"buffer_load_dwordx2 v[{VP}:{VP+1}], v12, s[24:27], 0 offen {SC}\nbuffer_load_dwordx2 v[{VP+2}:{VP+3}], v13, s[24:27], 0 offen {SC}")
    A("L_p2_nt:")
    A("s_sub_u32 s51, s51, 1\ns_cmp_lg_u32 s51, 0\ns_cbranch_scc1 L_p2_loop")
    stamp(A)
    TLATE = opt("TLATE", 1)
    if TLATE:
        A(f"buffer_load_dwordx2 v[{VP}:{VP+1}], v12, s[24:27], 0 offen {SC}\nbuffer_load_dwordx2 v[{VP+2}:{VP+3}], v13, s[24:27], 0 offen {SC}")
    step(0, 18, reg(0))
    def tcheck(tag, epoch):
        spin(A, tag + "2", VP, 12, 24)
        spin(A, tag + "3", VP + 2, 13, 24)
        if epoch:
            A(f"s_cmp_eq_u32 s2, 0\ns_cbranch_scc0 {tag}_noep\ns_cmp_eq_u32 s{J}, 0\ns_cbranch_scc0 {tag}_noep")
            A(f"v_mov_b32 v14, s{S_E}\nv_mov_b32 v15, {EP_OFF}\ns_mov_b64 exec, 1\nbuffer_store_dword v14, v15, s[24:27], 0 offen {SC}\ns_mov_b64 exec, -1")
            A(f"{tag}_noep:")
    if not TLATE: tcheck("L_p2_sp", True)
    stamp(A)
    A(f"s_cmp_lt_u32 s{J}, 2\ns_cbranch_scc0 L_p2_hi")
    step(1, 18, reg(1))
    step(2, 18, lambda: (tcheck("L_p2_lo", True) if TLATE else None, loadT(2), loadX() if XLATE else None))
    xq = 5 if XLATE else 0
    step(0, 14 + xq, lambda: None)
    step(1, 5 + xq, lambda: None)
    A(f"s_waitcnt vmcnt({xq})"); last_step(2)
    A("s_branch L_p2_red")
    A("L_p2_hi:")
    step(1, 18, lambda: ((A("s_waitcnt vmcnt(9)"), tcheck("L_p2_hi", False)) if TLATE else None, loadT(1), loadX() if XLATE else None))
    step(2, 14 + xq, lambda: None)
    step(0, 5 + xq, lambda: None)
    A(f"s_waitcnt vmcnt({xq})"); last_step(1)
    A("L_p2_red:")
    stamp(A)
    A("s_waitcnt lgkmcnt(0)\ns_barrier")
    R0 = 96
    def rd(n):
        for w in range(4):
            r = R0 + 16 * n + 4 * w
            A(f"ds_read_b128 v[{r}:{r+3}], v{220+n} offset:{w*64*336}")
    rd(0); rd(1); rd(2)
    OSC = SC if opt("OUTSC") else ""
    for n in range(5):
        r = R0 + 16 * n; x = XR + 2 * n
        if n == 0: A("s_waitcnt vmcnt(0) lgkmcnt(8)")
        elif n == 1: A("s_waitcnt lgkmcnt(8)")
        elif n == 2: A("s_waitcnt lgkmcnt(8)")
        elif n == 3: A("s_waitcnt lgkmcnt(4)")
        else: A("s_waitcnt lgkmcnt(0)")
        A(f"v_pk_add_f32 v[{r}:{r+1}], v[{r}:{r+1}], v[{r+4}:{r+5}]\nv_pk_add_f32 v[{r+2}:{r+3}], v[{r+2}:{r+3}], v[{r+6}:{r+7}]")
        A(f"v_pk_add_f32 v[{r+8}:{r+9}], v[{r+8}:{r+9}], v[{r+12}:{r+13}]\nv_pk_add_f32 v[{r+10}:{r+11}], v[{r+10}:{r+11}], v[{r+14}:{r+15}]")
        if n + 3 < 5: pass
        A(f"v_lshlrev_b32 v{r+4}, 16, v{x}\nv_and_b32 v{r+5}, 0xffff0000, v{x}\nv_lshlrev_b32 v{r+6}, 16, v{x+1}\nv_and_b32 v{r+7}, 0xffff0000, v{x+1}")
        A(f"v_pk_add_f32 v[{r}:{r+1}], v[{r}:{r+1}], v[{r+8}:{r+9}]\nv_pk_add_f32 v[{r+2}:{r+3}], v[{r+2}:{r+3}], v[{r+10}:{r+11}]")
        A(f"v_pk_add_f32 v[{r}:{r+1}], v[{r}:{r+1}], v[{r+4}:{r+5}]\nv_pk_add_f32 v[{r+2}:{r+3}], v[{r+2}:{r+3}], v[{r+6}:{r+7}]")
        A(f"v_cvt_pk_bf16_f32 v{x}, v{r}, v{r+1}\nv_cvt_pk_bf16_f32 v{x+1}, v{r+2}, v{r+3}")
        A(f"buffer_store_dwordx2 v[{x}:{x+1}], v{225+n}, s[40:43], s38 offen {OSC}")
        if n == 0: rd(3)
        if n == 1: rd(4)
    stamp(A)
    if opt("CLK") and asmlib.PROFILE:
        A("s_memtime s[90:91]\ns_waitcnt lgkmcnt(0)\ns_sub_u32 s90, s90, s88\ns_mov_b32 m0, 62\nv_writelane_b32 v0, s90, m0")
    stamp_flush(A, 0, WS, 9)
    A("s_endpgm")

def gen(A, name):
    global KNAME
    KNAME = name
    kernel_head(A, name)
    entry(A)
    if opt("P2ONLY"):
        A(f"s_mov_b32 s{S_SPIN}, 1\ns_cmp_lt_u32 s3, 4\ns_cbranch_scc1 L_end\ns_sub_u32 s{S_J}, s3, 4\ns_waitcnt lgkmcnt(0)\ns_branch L_ld_p2")
    A("s_cmp_ge_u32 s3, 4\ns_cbranch_scc1 L_loader")
    if opt("PRIOC"): A(f"s_setprio {opt('PRIOC')}")
    jobs_issue(A)
    A(f"s_cmp_lt_u32 s{S_C}, 5\ns_cbranch_scc1 L_mx")
    p1_hh(A)
    p1_mx(A)
    loader(A)
    A("L_end:\ns_endpgm\nL_code_end:")
```

```python
from asmlib import *
import asmlib
from layout import *

MFMA32 = "v_mfma_f32_32x32x16_bf16"
MFMA16 = "v_mfma_f32_16x16x32_bf16"
RING = 32768; NS = 4
SLOT = 20480; NS2 = 6
LX = NS2 * SLOT
LW = 132 * 1024
LST = 152 * 1024
LCS = LST + 1024
LCNT = LST + 2048
LDS_TOTAL = LCNT + 64
X_, SRE, SIM, HRE, HIM, WS = 4, 6, 8, 10, 12, 16
W1, W2, OUT, DBG = 64, 66, 68, 70
S_B, S_C, S_F0, S_J = 18, 19, 20, 21
S_T0, S_CT = 72, 73
S_SPIN = 74
SC = "sc1"
SPIN_MAX = 200000
CPW = 3

MAGIC = 0x5A3C96E1
S_E, S_EM = 75, 76
S_XCC = 77
S_LOCAL = 78

def spin(A, name, vp, vaddr, srdp, xcc=False):
    A(f"{name}:")
    if xcc:
        A(f"v_xor_b32 v{vp+1}, s{S_EM}, v{vp+1}\nv_cmp_ne_u32 vcc, s{S_E}, v{vp}\nv_cmp_lt_u32 s[60:61], 15, v{vp+1}\ns_nop 3\ns_or_b64 vcc, vcc, s[60:61]")
    else:
        A(f"v_cmp_ne_u32 vcc, s{S_E}, v{vp}\nv_cmp_ne_u32 s[60:61], s{S_EM}, v{vp+1}\ns_nop 3\ns_or_b64 vcc, vcc, s[60:61]")
    A(f"s_cbranch_vccz {name}_ok")
    if opt("P2ONLY"): A(f"s_branch {name}_ok")
    A(f"s_sub_u32 s{S_SPIN}, s{S_SPIN}, 1\ns_cmp_eq_u32 s{S_SPIN}, 0\ns_cbranch_scc1 {name}_ok")
    A(f"s_sleep {opt('SLEEP', 4)}")
    A(f"buffer_load_dwordx2 v[{vp}:{vp+1}], v{vaddr}, s[{srdp}:{srdp+3}], 0 offen {SC}\ns_waitcnt vmcnt(0)")
    if opt("SPINSTAMP") == name: stamp(A)
    A(f"s_branch {name}\n{name}_ok:")

def store_flags(A, vaddr, nlanes, srdp, vt, xcc=False, local=None):
    if xcc:
        A(f"s_xor_b32 s62, s{S_EM}, s{S_XCC}\nv_mov_b32 v{vt}, s{S_E}\nv_mov_b32 v{vt+1}, s62\ns_mov_b64 exec, {(1 << nlanes) - 1}")
    else:
        A(f"v_mov_b32 v{vt}, s{S_E}\nv_mov_b32 v{vt+1}, s{S_EM}\ns_mov_b64 exec, {(1 << nlanes) - 1}")
    if local:
        A(f"s_cmp_eq_u32 s{S_LOCAL}, 1\ns_cbranch_scc1 {local}_fp")
    A(f"buffer_store_dwordx2 v[{vt}:{vt+1}], v{vaddr}, s[{srdp}:{srdp+3}], 0 offen {SC}")
    if local:
        A(f"s_branch {local}_fd\n{local}_fp:")
        A(f"buffer_store_dwordx2 v[{vt}:{vt+1}], v{vaddr}, s[{srdp}:{srdp+3}], 0 offen")
        A(f"{local}_fd:")
    A("s_mov_b64 exec, -1")

def flag_addr_h(A, v):
    A(f"s_lshl_b32 s62, s{S_B}, 4\ns_add_u32 s62, s62, s{S_C}\ns_lshl_b32 s62, s62, 3\ns_add_u32 s62, s62, {FH_OFF}\nv_mov_b32 v{v}, s62")
def flag_addr_t(A, v):
    A(f"s_lshl_b32 s62, s{S_C}, 4\ns_add_u32 s62, s62, s{S_B}\ns_lshl_b32 s62, s62, 3\ns_add_u32 s62, s62, {FT_OFF}")
    A(f"v_lshlrev_b32 v{v}, 10, v1\nv_add_u32 v{v}, s62, v{v}")
def flag_addr_early(A, v):
    A(f"s_lshl_b32 s62, s{S_B}, 4\ns_add_u32 s62, s62, s{S_C}\ns_lshl_b32 s62, s62, 3\ns_add_u32 s58, s62, {FR1_OFF}")
    A(f"s_lshl_b32 s62, s{S_C}, 4\ns_add_u32 s62, s62, s{S_B}\ns_lshl_b32 s62, s62, 3\ns_add_u32 s62, s62, {FC1_OFF}")
    A(f"s_cmp_eq_u32 s3, 1\ns_cselect_b32 s58, s62, s58\nv_mov_b32 v{v}, s58")

def epoch_ready(A):
    A("s_waitcnt lgkmcnt(0)")
    A(f"s_add_u32 s{S_E}, s{S_E}, 1\ns_xor_b32 s{S_EM}, s{S_E}, {MAGIC}")
    srd(A, 48, WS, WS_USED)

def lds_arrive(A, word, vt, sdst):
    A(f"v_mov_b32 v{vt}, {LCNT + 4*word}\nv_mov_b32 v{vt+1}, 1\ns_mov_b64 exec, 1")
    A(f"ds_add_rtn_u32 v{vt+1}, v{vt}, v{vt+1}\ns_waitcnt lgkmcnt(0)\ns_mov_b64 exec, -1\ns_nop 0")
    A(f"v_readfirstlane_b32 s{sdst}, v{vt+1}")
    A("s_nop 3")

def code_prefetch(A, tag, mode):
    A(f"s_getpc_b64 s[50:51]\nJ_pc{tag}:")
    A(f"s_sub_u32 s50, s50, J_pc{tag}-{KNAME}\ns_subb_u32 s51, s51, 0")
    A(f"s_mov_b32 s52, ((L_code_end-{KNAME})>>7)-1")
    def lines(first_expr, n, dst):
        A(f"v_add_u32 v22, {first_expr}, v1\nv_min_u32 v22, s52, v22\nv_lshlrev_b32 v22, 7, v22")
        A("v_mov_b32 v23, s51\nv_add_co_u32 v22, vcc, s50, v22\ns_nop 1\nv_addc_co_u32 v23, vcc, 0, v23, vcc")
        A(f"global_load_dword v{dst}, v[22:23], off")
    if mode == 0:
        A("s_lshr_b32 s53, s2, 3\ns_mul_i32 s53, s53, 6\ns_mov_b64 exec, 63")
        lines("s53", 1, 127)
        A("s_mov_b64 exec, -1")
    elif mode in (1, 2):
        for n in range(3): lines(64 * n, 1, (125 if mode == 1 else 24) + n)
    elif mode == 3 and tag == "a":
        lines(0, 1, 125)
        A(f"s_mov_b32 s53, (L_loader-{KNAME})>>7\ns_mov_b64 exec, 0xffffff")
        lines("s53", 1, 126)
        A("s_mov_b64 exec, -1")
    else:
        lines(64, 1, 24); lines(128, 1, 25)

def entry(A):
    A("s_cmp_ge_u32 s2, 256\ns_cbranch_scc1 L_end")
    A(f"s_load_dwordx4 s[4:7], s[0:1], {KA_X}")
    A(f"s_load_dwordx4 s[8:11], s[0:1], {KA_SIM}")
    A(f"s_load_dwordx2 s[12:13], s[0:1], {KA_HIM}")
    A(f"s_load_dwordx4 s[64:67], s[0:1], {KA_W1}")
    A(f"s_load_dwordx4 s[68:71], s[0:1], {KA_OUT}")
    A(f"s_load_dwordx2 s[16:17], s[0:1], {KA_WS}")
    A("v_lshrrev_b32 v2, 6, v0\nv_and_b32 v1, 63, v0\ns_nop 0\nv_readfirstlane_b32 s3, v2")
    if opt("CODEPF", 1) and opt("CPMODE", 1) in (0, 1, 3):
        A(f"s_nop 3\ns_cmp_eq_u32 s3, {CPW}\ns_cbranch_scc0 L_nocp")
        code_prefetch(A, "a", opt("CPMODE", 1))
        A("L_nocp:")
    A("s_and_b32 s24, s2, 7\ns_lshr_b32 s25, s2, 3\ns_lshr_b32 s27, s25, 3\ns_and_b32 s28, s25, 7")
    if opt("MAP1", 1):
        A(f"s_lshl_b32 s26, s24, 1\ns_lshr_b32 s29, s25, 4\ns_add_u32 s{S_B}, s26, s29\ns_and_b32 s{S_C}, s25, 15")
    else:
        A(f"s_lshr_b32 s26, s24, 1\ns_lshl_b32 s26, s26, 2\ns_add_u32 s{S_B}, s26, s27")
        A(f"s_and_b32 s26, s24, 1\ns_lshl_b32 s26, s26, 3\ns_add_u32 s{S_C}, s26, s28")
    A(f"s_lshl_b32 s26, s{S_C}, 6\ns_lshl_b32 s29, s{S_C}, 7\ns_sub_u32 s29, s29, 320")
    A(f"s_cmp_lt_u32 s{S_C}, 5\ns_cselect_b32 s{S_F0}, s26, s29")
    A(f"s_lshl_b32 s24, s24, 2\ns_add_u32 s{S_T0}, s24, s27\ns_mov_b32 s{S_CT}, s28")
    A(f"s_mov_b32 s{S_SPIN}, {SPIN_MAX}")
    A(f"s_getreg_b32 s{S_XCC}, hwreg(HW_REG_XCC_ID)\ns_and_b32 s{S_XCC}, s{S_XCC}, 15")
    stamp_init(A)
    if opt("T0STAMP"): stamp(A, force=True)
    if opt("P2ONLY"): args_ready(A)

def args_ready(A):
    A("s_waitcnt lgkmcnt(0)")
    if opt("CLK"): A("s_memtime s[88:89]\ns_waitcnt lgkmcnt(0)")
    A(f"s_mov_b32 s62, {EP_OFF}\ns_load_dword s{S_E}, s[{WS}:{WS+1}], s62")
    stamp(A, 0, force=True)

def jobs_issue(A):
    A("s_cmp_eq_u32 s3, 0\ns_cbranch_scc1 J_x_i\ns_cmp_eq_u32 s3, 1\ns_cbranch_scc1 J_c_i")
    args_ready(A)
    srd(A, 36, WS, WS_USED)
    if opt("TLBPF", 1):
        A("s_cmp_eq_u32 s3, 2\ns_cbranch_scc0 J_i_done")
        srd(A, 40, OUT, X_BYTES); srd(A, 44, W2, W2_BYTES)
        A("v_lshlrev_b32 v22, 20, v1")
        A(f"s_mov_b64 exec, {(1 << ((WS_USED >> 20) + 1)) - 1}\nbuffer_load_dword v125, v22, s[36:39], 0 offen {SC}")
        A(f"s_mov_b64 exec, 7\nbuffer_load_dword v126, v22, s[40:43], 0 offen {SC}\nbuffer_load_dword v127, v22, s[44:47], 0 offen\ns_mov_b64 exec, -1")
        if opt("INPF"):
            srd(A, 40, X_, X_BYTES); srd(A, 44, W1, W1_BYTES)
            A("v_lshlrev_b32 v22, 7, v1\ns_mul_i32 s50, s2, 10240\ns_mul_i32 s51, s2, 8704")
            A("buffer_load_dword v124, v22, s[40:43], s50 offen\nbuffer_load_dword v123, v22, s[44:47], s51 offen")
            A("s_add_u32 s50, s50, 8192\ns_add_u32 s51, s51, 8192\ns_mov_b64 exec, 0xffff")
            A("buffer_load_dword v122, v22, s[40:43], s50 offen\ns_mov_b64 exec, 15\nbuffer_load_dword v121, v22, s[44:47], s51 offen\ns_mov_b64 exec, -1")
    A("s_branch J_i_done")
    A("J_x_i:")
    A(f"s_lshr_b32 s48, s{S_C}, 2\ns_and_b32 s49, s{S_C}, 3")
    A(f"s_lshl_b32 s50, s{S_B}, 1\ns_and_b32 s51, s48, 1\ns_add_u32 s50, s50, s51")
    A("s_lshr_b32 s51, s48, 1\ns_lshl_b32 s51, s51, 5\ns_add_u32 s50, s50, s51")
    A("s_lshl_b32 s51, s49, 9\ns_add_u32 s50, s50, s51\ns_mul_i32 s50, s50, 1280")
    A("v_lshrrev_b32 v22, 3, v1\ns_mov_b32 s51, 81920\nv_mul_lo_u32 v22, s51, v22")
    A("v_and_b32 v23, 7, v1\nv_lshlrev_b32 v23, 4, v23\nv_add_u32 v22, v22, v23")
    A(f"v_mov_b32 v20, {LCNT}\nv_mov_b32 v24, 0\nv_mov_b32 v25, 0\nv_mov_b32 v26, 0\nv_mov_b32 v27, 0\nds_write_b128 v20, v[24:27]\nds_write_b128 v20, v[24:27] offset:16")
    args_ready(A)
    srd(A, 24, X_, X_BYTES)
    for i in range(10):
        A(f"buffer_load_dwordx4 v[{32+4*i}:{35+4*i}], v22, s[24:27], s50 offen offset:{128*i}")
    srd(A, 36, WS, WS_USED)
    A("s_branch J_i_done")
    A("J_c_i:")
    A("v_lshrrev_b32 v22, 4, v1\nv_mul_u32_u24 v22, 3456, v22\nv_and_b32 v23, 15, v1\nv_lshlrev_b32 v23, 4, v23\nv_add_u32 v22, v22, v23")
    A(f"s_mul_i32 s50, s{S_B}, {40*3456}\ns_lshl_b32 s51, s{S_F0}, 1\ns_add_u32 s50, s50, s51")
    A(f"s_cmp_eq_u32 s{S_C}, 0\ns_cbranch_scc0 J_c_np")
    A("v_and_b32 v23, 7, v1\nv_lshlrev_b32 v23, 4, v23\nv_bfe_u32 v24, v1, 3, 2\nv_lshlrev_b32 v24, 15, v24\nv_add_u32 v23, v23, v24")
    A(f"v_add_u32 v23, {16384+8192+4096}, v23")
    A("v_mov_b32 v24, 0xbf803f80\nv_mov_b32 v25, 0x3f80bf80\nv_mov_b32 v26, 0xbf803f80\nv_mov_b32 v27, 0x3f80bf80")
    A("ds_write_b128 v23, v[24:27]")
    A("J_c_np:")
    args_ready(A)
    srd(A, 28, W1, W1_BYTES)
    for i in range(10):
        A(f"buffer_load_dwordx4 v[{32+4*i}:{35+4*i}], v22, s[28:31], s50 offen")
        if i < 9: A(f"s_add_u32 s50, s50, {4*3456}")
    srd(A, 36, WS, WS_USED)
    A("J_i_done:")

def dpp_add(A, r, ctrl):
    A(f"v_add_f32_dpp v{r}, v{r}, v{r} {ctrl} row_mask:0xf bank_mask:0xf")

def jobs_finish(A, nG_, tagx):
    nG = tagx
    class _N(str):
        pass
    A("s_cmp_eq_u32 s3, 0\ns_cbranch_scc1 %s\ns_cmp_eq_u32 s3, 1\ns_cbranch_scc1 %s\ns_branch %s" % (f"J_x_{nG}", f"J_c_{nG}", f"J_done_{nG}"))
    A(f"J_x_{nG}:")
    A("v_mov_b32 v22, 0\nv_mov_b32 v23, 0\nv_mov_b32 v24, 0\nv_mov_b32 v25, 0\ns_mov_b32 s52, 0x3f803f80")
    for i in range(10):
        A(f"s_waitcnt vmcnt({9-i+nG_})")
        for k in range(4):
            r = 32 + 4 * i + k
            A(f"v_dot2_f32_bf16 v{22+(k&1)}, v{r}, s52, v{22+(k&1)}")
            A(f"v_dot2_f32_bf16 v{24+(k&1)}, v{r}, v{r}, v{24+(k&1)}")
    A("s_nop 2\nv_add_f32 v22, v22, v23\nv_add_f32 v24, v24, v25\ns_nop 1")
    for ctrl in ["quad_perm:[1,0,3,2]", "quad_perm:[2,3,0,1]", "row_half_mirror"]:
        dpp_add(A, 22, ctrl); dpp_add(A, 24, ctrl); A("s_nop 0")
    A("s_mov_b32 s52, 0x3acccccd\nv_mul_f32 v22, s52, v22\nv_mul_f32 v24, s52, v24")
    A("v_fma_f32 v24, -v22, v22, v24\nv_max_f32 v24, 0, v24\nv_add_f32 v24, 0x3727c5ac, v24\nv_rsq_f32 v23, v24")
    A(f"s_lshl_b32 s52, s{S_B}, 10\ns_lshl_b32 s53, s{S_C}, 5\ns_add_u32 s52, s52, s53\ns_add_u32 s52, s52, {ST_OFF}")
    A("v_lshrrev_b32 v25, 3, v1\nv_lshlrev_b32 v25, 2, v25")
    A("v_and_b32 v26, 7, v1\nv_cmp_eq_u32 vcc, 0, v26\ns_and_saveexec_b64 s[54:55], vcc")
    A(f"buffer_store_dword v22, v25, s[36:39], s52 offen {SC}\nbuffer_store_dword v23, v25, s[36:39], s52 offen offset:512 {SC}")
    A("s_mov_b64 exec, s[54:55]")
    A(f"s_branch J_done_{nG}")
    A(f"J_c_{nG}:")
    for k in range(8): A(f"v_mov_b32 v{72+k}, 0")
    A("s_mov_b32 s52, 0x00003f80\ns_mov_b32 s53, 0x3f800000")
    for i in range(10):
        A(f"s_waitcnt vmcnt({9-i+nG_})")
        for k in range(4):
            r = 32 + 4 * i + k
            A(f"v_dot2_f32_bf16 v{72+2*k}, v{r}, s52, v{72+2*k}")
            A(f"v_dot2_f32_bf16 v{73+2*k}, v{r}, s53, v{73+2*k}")
    A("s_nop 2")
    for sw in ["v_permlane16_swap_b32", "v_permlane32_swap_b32"]:
        for k in range(8): A(f"v_mov_b32 v{80+k}, v{72+k}")
        A("s_nop 0")
        for k in range(8): A(f"{sw} v{72+k}, v{80+k}")
        A("s_nop 0")
        for k in range(8): A(f"v_add_f32 v{72+k}, v{72+k}, v{80+k}")
    A(f"s_lshl_b32 s52, s{S_B}, 13\ns_lshl_b32 s53, s{S_F0}, 2\ns_add_u32 s52, s52, s53\ns_add_u32 s52, s52, {CS_OFF}")
    A(f"v_lshlrev_b32 v22, 5, v1\ns_mov_b32 s53, 16\ns_cmp_lt_u32 s{S_C}, 5\ns_cselect_b32 s53, 8, s53")
    A("v_cmp_gt_u32 vcc, s53, v1\ns_and_saveexec_b64 s[54:55], vcc")
    A(f"buffer_store_dwordx4 v[72:75], v22, s[36:39], s52 offen {SC}\nbuffer_store_dwordx4 v[76:79], v22, s[36:39], s52 offen offset:16 {SC}")
    A("s_mov_b64 exec, s[54:55]")
    A(f"s_branch J_done_{nG}")
    A(f"J_done_{nG}:")
    A(f"s_cmp_ge_u32 s3, 2\ns_cbranch_scc0 J_dn2_{nG}\ns_waitcnt vmcnt(0)")
    if opt("CODEPF", 1) and opt("CPMODE", 1) in (2, 3):
        A(f"s_cmp_eq_u32 s3, {CPW}\ns_cbranch_scc0 J_dn2_{nG}")
        code_prefetch(A, "b" + nG, opt("CPMODE", 1))
    A(f"J_dn2_{nG}:")

def x_addr(A, dst, rowbase_sgpr, tmp):
    A(f"v_and_b32 v{tmp}, 31, v1\nv_add_u32 v{tmp+1}, s{rowbase_sgpr}, v{tmp}\nv_lshlrev_b32 v{tmp+1}, 7, v{tmp+1}")
    A(f"v_bfe_u32 v{tmp}, v1, 1, 3\nv_lshrrev_b32 v{tmp+2}, 5, v1\nv_xor_b32 v{tmp}, v{tmp}, v{tmp+2}")
    A(f"v_lshlrev_b32 v{tmp}, 4, v{tmp}\nv_add_u32 v{dst}, v{tmp+1}, v{tmp}")
    for j in range(1, 4):
        A(f"v_xor_b32 v{dst+j}, {32*j}, v{dst}")
def h_tr_addr(A, dst, tmp):
    A(f"v_bfe_u32 v{tmp}, v1, 5, 1\nv_lshlrev_b32 v{tmp}, 3, v{tmp}\nv_bfe_u32 v{tmp+1}, v1, 2, 2\nv_add_u32 v{tmp}, v{tmp}, v{tmp+1}")
    A(f"v_lshlrev_b32 v{tmp}, 7, v{tmp}")
    A(f"v_bfe_u32 v{tmp+1}, v1, 4, 1\nv_lshlrev_b32 v{tmp+1}, 1, v{tmp+1}\nv_bfe_u32 v{tmp+2}, v1, 1, 1\nv_add_u32 v{tmp+1}, v{tmp+1}, v{tmp+2}")
    A(f"v_bfe_u32 v{tmp+2}, v1, 3, 1\nv_lshlrev_b32 v{tmp+2}, 2, v{tmp+2}\nv_xor_b32 v{tmp+1}, v{tmp+1}, v{tmp+2}")
    A(f"v_lshlrev_b32 v{tmp+1}, 4, v{tmp+1}\nv_add_u32 v{tmp}, v{tmp}, v{tmp+1}")
    A(f"v_and_b32 v{tmp+1}, 1, v1\nv_lshlrev_b32 v{tmp+1}, 3, v{tmp+1}\nv_add_u32 v{dst}, v{tmp}, v{tmp+1}")
def interleave(A, mfmas, fillers, per_gap):
    if opt("NOCOMP1"):
        for f in fillers:
            if not f.startswith("ds_read") and not f.startswith("v_perm"): A(f)
        return
    k = 0
    for i, m in enumerate(mfmas):
        A(m)
        for _ in range(per_gap[i]):
            if k < len(fillers):
                A(fillers[k]); k += 1
    while k < len(fillers):
        A(fillers[k]); k += 1
def h_epilogue_tile(A, acc, mr, cs, tmp, vaddr, soff):
    for i in range(0, 16, 2):
        A(f"v_pk_fma_f32 v[{acc+i}:{acc+i+1}], v[{cs+i}:{cs+i+1}], v[{mr}:{mr+1}], v[{acc+i}:{acc+i+1}] op_sel:[0,0,0] op_sel_hi:[1,0,1] neg_lo:[0,1,0] neg_hi:[0,1,0]")
    for i in range(0, 16, 2):
        A(f"v_pk_mul_f32 v[{acc+i}:{acc+i+1}], v[{acc+i}:{acc+i+1}], v[{mr}:{mr+1}] op_sel:[0,1] op_sel_hi:[1,1]")
    for i in range(0, 16, 2):
        A(f"v_cvt_pk_bf16_f32 v{tmp+i//2}, v{acc+i}, v{acc+i+1}")
    for i in range(8):
        A(f"v_pk_max_i16 v{tmp+i}, v{tmp+i}, 0")
    if opt("LOCALH", 2) != 1:
        A(f"buffer_store_dwordx4 v[{tmp}:{tmp+3}], v{vaddr}, s[36:39], s{soff} offen {SC}")
        A(f"buffer_store_dwordx4 v[{tmp+4}:{tmp+7}], v{vaddr}, s[36:39], s{soff} offen offset:512 {SC}")
        return
    h_epilogue_tile.n += 1
    n = h_epilogue_tile.n
    A(f"s_cmp_eq_u32 s{S_LOCAL}, 1\ns_cbranch_scc1 L_hst{n}_p")
    A(f"buffer_store_dwordx4 v[{tmp}:{tmp+3}], v{vaddr}, s[36:39], s{soff} offen {SC}")
    A(f"buffer_store_dwordx4 v[{tmp+4}:{tmp+7}], v{vaddr}, s[36:39], s{soff} offen offset:512 {SC}")
    A(f"s_branch L_hst{n}_d\nL_hst{n}_p:")
    hst = {0: "", 1: "nt", 2: "sc0", 3: "sc0 nt"}[opt("HST", 0)]
    A(f"buffer_store_dwordx4 v[{tmp}:{tmp+3}], v{vaddr}, s[36:39], s{soff} offen {hst}")
    A(f"buffer_store_dwordx4 v[{tmp+4}:{tmp+7}], v{vaddr}, s[36:39], s{soff} offen offset:512 {hst}")
    A(f"L_hst{n}_d:")
h_epilogue_tile.n = 0
def h_store_voff(A, dst, tmp):
    A(f"v_bfe_u32 v{tmp}, v1, 4, 1\nv_mul_u32_u24 v{tmp}, {58*1024}, v{tmp}")
    A(f"v_lshrrev_b32 v{tmp+1}, 5, v1\nv_lshlrev_b32 v{tmp+1}, 8, v{tmp+1}\nv_add_u32 v{tmp}, v{tmp}, v{tmp+1}")
    A(f"v_and_b32 v{tmp+1}, 15, v1\nv_lshlrev_b32 v{tmp+1}, 4, v{tmp+1}\nv_add_u32 v{dst}, v{tmp}, v{tmp+1}")

def loop_hooks_top(A, tag):
    A(f"s_cmp_eq_u32 s29, s30\ns_cbranch_scc1 {tag}_flag1\n{tag}_flag1_ret:")
def loop_hooks_init(A):
    A(f"s_cmp_lt_u32 s3, 2\ns_cselect_b32 s30, {10 - opt('EARLY_IT', 1)}, 99")
def loop_hooks_ool(A, tag):
    A(f"{tag}_flag1:")
    flag_addr_early(A, 28)
    A("s_waitcnt vmcnt(0)")
    store_flags(A, 28, 1, 48, 30, xcc=True)
    A(f"s_branch {tag}_flag1_ret")

def publish(A, tag, word, kind, vt):
    A("s_waitcnt vmcnt(0)")
    lds_arrive(A, word, vt, 63)
    A(f"s_cmp_eq_u32 s63, 3\ns_cbranch_scc0 {tag}_np")
    if kind == "h":
        flag_addr_h(A, vt - 1); store_flags(A, vt - 1, 1, 48, vt, xcc=True, local=(tag if opt("LOCALF", 1) else None))
    else:
        flag_addr_t(A, vt - 1); store_flags(A, vt - 1, 8, 48, vt)
    A(f"{tag}_np:")

def p1_hh(A):
    A("L_hh:")
    ACC = 128; P, Q = 32, 64
    XB, WB = 2, 6; XC, WC = 8, 12
    A("s_lshr_b32 s24, s3, 1\ns_and_b32 s25, s3, 1")
    A("s_lshl_b32 s26, s24, 6")
    x_addr(A, XB, 26, 20)
    h_tr_addr(A, WB, 20)
    A("s_lshl_b32 s27, s25, 13\ns_add_u32 s27, s27, 16384")
    A(f"v_add_u32 v{WB}, s27, v{WB}\nv_xor_b32 v{WB+1}, 64, v{WB}")
    for i in range(64): A(f"v_mov_b32 v{ACC+i}, 0")
    for j in range(4): A(f"v_mov_b32 v{XC+j}, v{XB+j}")
    for j in range(2): A(f"v_mov_b32 v{WC+j}, v{WB+j}")
    A(f"v_and_b32 v20, 31, v1\nv_add_u32 v20, s26, v20\nv_lshlrev_b32 v20, 2, v20\nv_add_u32 v20, {LST}, v20")
    A(f"v_lshrrev_b32 v21, 5, v1\nv_lshlrev_b32 v21, 4, v21\ns_lshl_b32 s33, s25, 8\ns_add_u32 s33, s33, {LCS}\nv_add_u32 v21, s33, v21")
    h_store_voff(A, 19, 26)
    A(f"s_lshl_b32 s31, s{S_B}, 3\ns_lshl_b32 s32, s24, 1\ns_add_u32 s31, s31, s32\ns_mul_i32 s31, s31, 58")
    A(f"s_lshr_b32 s32, s{S_F0}, 5\ns_lshl_b32 s33, s25, 1\ns_add_u32 s32, s32, s33\ns_add_u32 s31, s31, s32")
    A(f"s_lshl_b32 s31, s31, 10\ns_add_u32 s31, s31, {HF_OFF}")
    jobs_finish(A, 0, 'h')
    epoch_ready(A)
    A("s_mov_b32 s28, 0")
    loop_hooks_init(A)
    def reads(buf, g):
        out = []
        for jj in range(2):
            j = 2 * g + jj; b = buf + 16 * jj
            out.append(f"ds_read_b128 v[{b}:{b+3}], v{XC+j}")
            out.append(f"ds_read_b64_tr_b16 v[{b+8}:{b+9}], v{WC} offset:{j*2048}")
            out.append(f"ds_read_b64_tr_b16 v[{b+10}:{b+11}], v{WC} offset:{j*2048+512}")
            out.append(f"ds_read_b128 v[{b+4}:{b+7}], v{XC+j} offset:4096")
            out.append(f"ds_read_b64_tr_b16 v[{b+12}:{b+13}], v{WC+1} offset:{j*2048}")
            out.append(f"ds_read_b64_tr_b16 v[{b+14}:{b+15}], v{WC+1} offset:{j*2048+512}")
        return out
    def mfmas(buf):
        out = []
        for jj in range(2):
            b = buf + 16 * jj
            for ft in range(2):
                for st in range(2):
                    a = ACC + 16 * (2 * ft + st)
                    out.append(f"{MFMA32} v[{a}:{a+15}], v[{b+8+4*ft}:{b+11+4*ft}], v[{b+4*st}:{b+3+4*st}], v[{a}:{a+15}]")
        return out
    stamp(A, 1)
    A("s_waitcnt lgkmcnt(0)\ns_barrier")
    stamp(A, 2)
    for r in reads(P, 0):
        if not opt("NOCOMP1"): A(r)
    A("s_mov_b32 s29, 10")
    A("L_hh_loop:")
    A.drop = (["v_mfma"] if opt("NOMF1") else []) + (["ds_read"] if opt("NODS1") else []) + (["v_perm"] if opt("NOPERM") else [])
    loop_hooks_top(A, "L_hh")
    A("s_waitcnt lgkmcnt(0)")
    A("s_cmp_eq_u32 s29, 1\ns_cbranch_scc1 L_hh_pre\nL_hh_pre_ret:")
    if opt("HHSTAMP"): stamp(A)
    upd = [f"v_add_u32 v{XC+j}, s28, v{XB+j}" for j in range(4)] + [f"v_add_u32 v{WC+j}, s28, v{WB+j}" for j in range(2)]
    ring = [f"s_add_u32 s28, s28, {RING}", f"s_and_b32 s28, s28, {NS*RING-1}"]
    pat = opt("HHPAT", 0)
    g1 = [[3, 3, 3, 3, 2, 3, 3, 0], [4, 4, 4, 2, 3, 3, 0, 0], [6, 6, 2, 3, 3, 0, 0, 0]][pat]
    g2 = [[3, 3, 3, 3, 0, 0, 0, 0], [4, 4, 4, 0, 0, 0, 0, 0], [6, 6, 0, 0, 0, 0, 0, 0]][pat]
    interleave(A, mfmas(P), reads(Q, 1) + ring + upd, g1)
    if opt("HHSTAMP"): A("s_waitcnt lgkmcnt(0)"); stamp(A)
    A("s_waitcnt lgkmcnt(0)")
    A("s_barrier")
    if opt("HHSTAMP"): stamp(A)
    interleave(A, mfmas(Q), reads(P, 0), g2)
    A.drop = []
    A("s_sub_u32 s29, s29, 1\ns_cmp_lg_u32 s29, 0\ns_cbranch_scc1 L_hh_loop")
    A("s_waitcnt vmcnt(0) lgkmcnt(0)")
    stamp(A, 3)
    A(f"v_readfirstlane_b32 s{S_LOCAL}, v18")
    A("s_nop 7")
    for st in range(2):
        for ft in range(2):
            A(f"s_add_u32 s32, s31, {(st*4*58+ft)*1024}")
            h_epilogue_tile(A, ACC + 16 * (2 * ft + st), 14 + 2 * st, 96 + 16 * ft, 64 + 8 * ((2 * st + ft) & 3), 19, 32)
    stamp(A, 4)
    publish(A, "L_hh_pub", 0, "h", 30)
    stamp(A)
    stamp_flush(A, 0, WS, 9)
    A("s_endpgm")
    loop_hooks_ool(A, "L_hh")
    A("L_hh_pre:")
    A("ds_read_b32 v14, v20\nds_read_b32 v15, v20 offset:512\nds_read_b32 v16, v20 offset:128\nds_read_b32 v17, v20 offset:640")
    A(f"v_mov_b32 v18, {LCNT + 12}\nds_read_b32 v18, v18")
    for ft in range(2):
        for q in range(4):
            b = 96 + 16 * ft + 4 * q
            A(f"ds_read_b128 v[{b}:{b+3}], v21 offset:{ft*128+q*32}")
    A("s_branch L_hh_pre_ret")

def p1_mx(A):
    A("L_mx:")
    P, Q = 32, 72
    EV, OD = 112, 116
    CE, CO, SE, SO = 120, 124, 128, 132
    HA, HB = 136, 152
    EC, ES, OC, OS = 168, 184, 200, 216
    G = 232
    XAB, WHB = 2, 6
    XAC, XBC, DAC, WHC = 7, 11, 15, 19
    A("v_and_b32 v24, 31, v1\nv_cvt_f32_u32 v24, v24\nv_lshrrev_b32 v25, 5, v1\nv_cvt_f32_u32 v25, v25")
    A("v_mul_f32 v25, 0x3e000000, v25\nv_mul_f32 v25, v25, v24")
    for p in range(2):
        for uh in range(2):
            for u2 in range(2):
                for k in range(2):
                    c = 16 * p + 8 * uh + 2 * u2 + k
                    import struct
                    lit = struct.unpack("<I", struct.pack("<f", c / 32.0))[0]
                    A(f"v_fmamk_f32 v26, v24, {lit:#x}, v25\nv_fract_f32 v26, v26")
                    A(f"v_cos_f32 v{28+k}, v26\nv_sin_f32 v{30+k}, v26")
                A("s_nop 0")
                A(f"v_cvt_pk_bf16_f32 v{G+4*p+2*uh+u2}, v28, v29\nv_cvt_pk_bf16_f32 v{G+16+4*p+2*uh+u2}, v30, v31")
    for i in range(8):
        A(f"v_xor_b32 v{G+8+i}, 0x80008000, v{G+16+i}")
    A("s_lshr_b32 s24, s3, 1\ns_and_b32 s25, s3, 1")
    A("s_lshl_b32 s26, s3, 5\ns_xor_b32 s27, s26, 32")
    x_addr(A, XAB, 26, 24)
    h_tr_addr(A, WHB, 24)
    A(f"s_lshl_b32 s30, s25, 6\nv_xor_b32 v{WHB}, s30, v{WHB}\nv_add_u32 v{WHB}, 16384, v{WHB}")
    for i in range(96): A(f"v_mov_b32 v{HA+i}, 0")
    A("s_lshl_b32 s31, s3, 12\ns_sub_u32 s31, 24576, s31")
    def upd(js=(0, 1, 2, 3), wh=True):
        o = [f"v_add_u32 v{XAC+j}, s28, v{XAB+j}" for j in js] + ([f"v_add_u32 v{WHC}, s28, v{WHB}"] if wh else [])
        o += [f"v_xor_b32 v{XBC+j}, 0x1000, v{XAC+j}" for j in js]
        o += [f"v_add_u32 v{DAC+j}, s31, v{XAC+j}" for j in js]
        return o
    A("s_mov_b32 s28, 0")
    for t in upd(): A(t)
    jobs_finish(A, 0, 'm')
    epoch_ready(A)
    loop_hooks_init(A)
    A("s_mov_b32 s34, 0x05040100\ns_mov_b32 s35, 0x07060302")
    def reads(buf, m):
        out = []
        for jj in range(2):
            j = 2 * m + jj
            out.append(f"ds_read_b128 v[{buf+4*jj}:{buf+4*jj+3}], v{XAC+j}")
        for jj in range(2):
            j = 2 * m + jj
            out.append(f"ds_read_b64_tr_b16 v[{buf+16+4*jj}:{buf+17+4*jj}], v{WHC} offset:{j*2048}")
            out.append(f"ds_read_b64_tr_b16 v[{buf+18+4*jj}:{buf+19+4*jj}], v{WHC} offset:{j*2048+512}")
            out.append(f"ds_read_b128 v[{buf+8+4*jj}:{buf+11+4*jj}], v{XBC+j}")
        for jj in range(2):
            j = 2 * m + jj
            out.append(f"ds_read_b128 v[{buf+24+4*jj}:{buf+27+4*jj}], v{DAC+j}")
            out.append(f"ds_read_b128 v[{buf+32+4*jj}:{buf+35+4*jj}], v{DAC+j} offset:4096")
        return out
    def perms(src, e, o):
        ev = [f"v_perm_b32 v{e+k}, v{src+2*k+1}, v{src+2*k}, s34" for k in range(4)]
        od = [f"v_perm_b32 v{o+k}, v{src+2*k+1}, v{src+2*k}, s35" for k in range(4)]
        return ev, od
    def half(cur, nxt, m_next, extra):
        rd = reads(nxt, m_next)
        if opt("NOCOMP1"):
            for t in extra: A(t)
            return
        xe, xo = perms(cur, EV, OD); ce, co = perms(cur + 24, CE, CO); se, so = perms(cur + 32, SE, SO)
        H = []
        for jj in range(2):
            w = cur + 16 + 4 * jj
            H.append(f"{MFMA32} v[{HA}:{HA+15}], v[{w}:{w+3}], v[{cur+4*jj}:{cur+4*jj+3}], v[{HA}:{HA+15}]")
            H.append(f"{MFMA32} v[{HB}:{HB+15}], v[{w}:{w+3}], v[{cur+8+4*jj}:{cur+11+4*jj}], v[{HB}:{HB+15}]")
        Dm = [f"{MFMA32} v[{EC}:{EC+15}], v[{EV}:{EV+3}], v[{CE}:{CE+3}], v[{EC}:{EC+15}]",
              f"{MFMA32} v[{OC}:{OC+15}], v[{OD}:{OD+3}], v[{CO}:{CO+3}], v[{OC}:{OC+15}]",
              f"{MFMA32} v[{ES}:{ES+15}], v[{EV}:{EV+3}], v[{SE}:{SE+3}], v[{ES}:{ES+15}]",
              f"{MFMA32} v[{OS}:{OS+15}], v[{OD}:{OD+3}], v[{SO}:{SO+3}], v[{OS}:{OS+15}]"]
        if opt("MXSCHED", 1):
            ex = list(extra)
            def take(n):
                t = ex[:n]; del ex[:n]; return t
            pad = lambda n: (take(n) + ["s_nop 0"] * n)[:n]
            ms = H + [Dm[0], Dm[2], Dm[1], Dm[3]]
            gaps = [xe[0:2] + rd[0:3], xe[2:4] + rd[3:6], ce[0:2] + rd[6:9], ce[2:4] + rd[9:12],
                    se + xo[0:2], xo[2:4] + co + pad(2), so + pad(2), None]
            gaps[7] = ex
        else:
            gaps = [xe + rd[0:2], ce + rd[2:4], xo + rd[4:6], co + rd[6:8], se + rd[8:10], so + rd[10:12], extra[:8], extra[8:]]
            ms = H + Dm
        for i in range(8):
            A(ms[i])
            for t in gaps[i]: A(t)
    stamp(A, 1)
    A("s_waitcnt lgkmcnt(0)\ns_barrier")
    stamp(A, 2)
    for r in reads(P, 0):
        if not opt("NOCOMP1"): A(r)
    A("s_mov_b32 s29, 10")
    A("L_mx_loop:")
    A.drop = (["v_mfma"] if opt("NOMF1") else []) + (["ds_read"] if opt("NODS1") else []) + (["v_perm"] if opt("NOPERM") else [])
    loop_hooks_top(A, "L_mx")
    A("s_waitcnt lgkmcnt(0)")
    if opt("HHSTAMP"): stamp(A)
    ring = [f"s_add_u32 s28, s28, {RING}", f"s_and_b32 s28, s28, {NS*RING-1}"]
    if opt("MXSCHED", 1):
        half(P, Q, 1, ring + upd((0, 1), True))
        if opt("HHSTAMP"): A("s_waitcnt lgkmcnt(0)"); stamp(A)
        A("s_waitcnt lgkmcnt(0)")
        A("s_barrier")
        if opt("HHSTAMP"): stamp(A)
        half(Q, P, 0, upd((2, 3), False))
    else:
        half(P, Q, 1, ring + upd())
        A("s_waitcnt lgkmcnt(0)")
        A("s_barrier")
        half(Q, P, 0, [])
    A.drop = []
    A("s_sub_u32 s29, s29, 1\ns_cmp_lg_u32 s29, 0\ns_cbranch_scc1 L_mx_loop")
    A("s_waitcnt vmcnt(0) lgkmcnt(0)")
    stamp(A, 3)
    A(f"v_and_b32 v24, 31, v1\nv_add_u32 v25, s26, v24\nv_lshlrev_b32 v25, 2, v25\nv_add_u32 v25, {LST}, v25")
    A(f"v_add_u32 v26, s27, v24\nv_lshlrev_b32 v26, 2, v26\nv_add_u32 v26, {LST}, v26")
    A("ds_read_b32 v2, v25\nds_read_b32 v3, v25 offset:512\nds_read_b32 v4, v26\nds_read_b32 v5, v26 offset:512")
    A(f"v_mov_b32 v7, {LCNT + 12}\nds_read_b32 v7, v7")
    A(f"v_lshrrev_b32 v27, 5, v1\nv_lshlrev_b32 v27, 4, v27\ns_lshl_b32 s30, s25, 7\ns_add_u32 s30, s30, {LCS}\nv_add_u32 v28, s30, v27")
    for q in range(4):
        A(f"ds_read_b128 v[{32+4*q}:{35+4*q}], v28 offset:{q*32}")
    A(f"s_lshl_b32 s30, s26, 2\ns_add_u32 s30, s30, {LST+512}\nv_add_u32 v28, s30, v27")
    for q in range(4):
        A(f"ds_read_b128 v[{48+4*q}:{51+4*q}], v28 offset:{q*32}")
    h_store_voff(A, 6, 28)
    A(f"s_lshl_b32 s31, s{S_B}, 3\ns_lshl_b32 s30, s24, 1\ns_add_u32 s31, s31, s30\ns_mul_i32 s31, s31, 58")
    A(f"s_lshr_b32 s30, s{S_F0}, 5\ns_add_u32 s30, s30, s25\ns_add_u32 s31, s31, s30")
    A(f"s_lshl_b32 s31, s31, 10\ns_add_u32 s31, s31, {HF_OFF}")
    A(f"s_mul_i32 s30, s25, {4*58*1024}\ns_add_u32 s32, s31, s30")
    A(f"s_xor_b32 s30, s25, 1\ns_mul_i32 s30, s30, {4*58*1024}\ns_add_u32 s33, s31, s30")
    A("s_waitcnt lgkmcnt(0)")
    A(f"v_readfirstlane_b32 s{S_LOCAL}, v7")
    A("s_nop 7")
    h_epilogue_tile(A, HA, 2, 32, 64, 6, 32)
    h_epilogue_tile(A, HB, 4, 32, 72, 6, 33)
    stamp(A, 4)
    if opt("MXPUB", 0): publish(A, "L_mx_pubh", 0, "h", 30)
    stamp(A)
    R = 48
    for i in range(0, 16, 2):
        for a in (EC, OC, ES, OS):
            A(f"v_pk_mul_f32 v[{a+i}:{a+i+1}], v[{a+i}:{a+i+1}], v[{R+i}:{R+i+1}]")
    T0, T1 = 80, 96
    for i in range(0, 16, 2):
        A(f"v_pk_add_f32 v[{T0+i}:{T0+i+1}], v[{EC+i}:{EC+i+1}], v[{OC+i}:{OC+i+1}]")
        A(f"v_pk_add_f32 v[{EC+i}:{EC+i+1}], v[{EC+i}:{EC+i+1}], v[{OC+i}:{OC+i+1}] neg_lo:[0,1] neg_hi:[0,1]")
        A(f"v_pk_add_f32 v[{T1+i}:{T1+i+1}], v[{ES+i}:{ES+i+1}], v[{OS+i}:{OS+i+1}]")
        A(f"v_pk_add_f32 v[{OC+i}:{OC+i+1}], v[{OS+i}:{OS+i+1}], v[{ES+i}:{ES+i+1}] neg_lo:[0,1] neg_hi:[0,1]")
    A("v_and_b32 v24, 31, v1\nv_cmp_eq_u32 s[40:41], 0, v24\ns_nop 3")
    A(f"s_cmp_eq_u32 s{S_C}, 0\ns_cselect_b64 s[40:41], s[40:41], 0\ns_cbranch_scc0 L_mx_nofix")
    for i in range(16):
        A(f"v_cndmask_b32 v{T0+i}, v{T0+i}, v{ES+i}, s[40:41]")
        A(f"v_cndmask_b32 v{T1+i}, v{T1+i}, v{OS+i}, s[40:41]")
        A(f"v_cndmask_b32_e64 v{OC+i}, v{OC+i}, 0, s[40:41]")
    A("L_mx_nofix:")
    ZB = 32
    for k, a in enumerate([T0, T1, EC, OC]):
        for i in range(0, 16, 2):
            A(f"v_cvt_pk_bf16_f32 v{ZB+8*k+i//2}, v{a+i}, v{a+i+1}")
    Fr = lambda p: f"v[{G+4*p}:{G+4*p+3}]"
    Fi = lambda p: f"v[{G+8+4*p}:{G+8+4*p+3}]"
    nFi = lambda p: f"v[{G+16+4*p}:{G+16+4*p+3}]"
    Z = lambda k, p: f"v[{ZB+8*k+4*p}:{ZB+8*k+4*p+3}]"
    TR = [EC, OC]; TI = [ES, OS]
    A("s_nop 1")
    for st_ in range(2):
        zr, zi = 2 * st_, 2 * st_ + 1
        tr, ti = TR[st_], TI[st_]
        A(f"{MFMA32} v[{tr}:{tr+15}], {Fr(0)}, {Z(zr,0)}, 0")
        A(f"{MFMA32} v[{ti}:{ti+15}], {Fr(0)}, {Z(zi,0)}, 0")
        A(f"{MFMA32} v[{tr}:{tr+15}], {Fr(1)}, {Z(zr,1)}, v[{tr}:{tr+15}]")
        A(f"{MFMA32} v[{ti}:{ti+15}], {Fr(1)}, {Z(zi,1)}, v[{ti}:{ti+15}]")
        A(f"{MFMA32} v[{tr}:{tr+15}], {nFi(0)}, {Z(zi,0)}, v[{tr}:{tr+15}]")
        A(f"{MFMA32} v[{ti}:{ti+15}], {Fi(0)}, {Z(zr,0)}, v[{ti}:{ti+15}]")
        A(f"{MFMA32} v[{tr}:{tr+15}], {nFi(1)}, {Z(zi,1)}, v[{tr}:{tr+15}]")
        A(f"{MFMA32} v[{ti}:{ti+15}], {Fi(1)}, {Z(zr,1)}, v[{ti}:{ti+15}]")
    if not opt("MXPUB", 0): publish(A, "L_mx_pubh", 0, "h", 30)
    else: A("s_nop 7")
    stamp(A)
    A(f"v_and_b32 v24, 31, v1\nv_lshlrev_b32 v24, 2, v24\nv_lshrrev_b32 v25, 5, v1\nv_lshlrev_b32 v25, 9, v25\nv_add_u32 v24, v24, v25")
    A(f"s_lshl_b32 s30, s3, 13\ns_add_u32 s30, s30, {LX}\nv_add_u32 v24, s30, v24")
    A("s_nop 7")
    for st_ in range(2):
        for i in range(16):
            A(f"v_cvt_pk_bf16_f32 v{64+16*st_+i}, v{TR[st_]+i}, v{TI[st_]+i}")
    for st_ in range(2):
        for i in range(16):
            t0 = (i & 3) + 8 * (i >> 2)
            A(f"ds_write_b32 v24, v{64+16*st_+i} offset:{st_*4096+t0*128}")
    A("s_waitcnt lgkmcnt(0)")
    stamp(A)
    lds_arrive(A, 1, 30, 63)
    A(f"v_mov_b32 v30, {LCNT+4}")
    A("L_mx_rv:\nds_read_b32 v31, v30\ns_waitcnt lgkmcnt(0)\ns_nop 0\nv_readfirstlane_b32 s63, v31\ns_nop 3\ns_cmp_ge_u32 s63, 4\ns_cbranch_scc1 L_mx_rv_ok")
    A(f"s_sub_u32 s{S_SPIN}, s{S_SPIN}, 1\ns_cmp_eq_u32 s{S_SPIN}, 0\ns_cbranch_scc0 L_mx_rv\nL_mx_rv_ok:")
    A("v_and_b32 v24, 31, v1\nv_lshlrev_b32 v24, 2, v24\nv_lshrrev_b32 v25, 5, v1\nv_lshlrev_b32 v26, 7, v25\nv_add_u32 v24, v24, v26")
    A(f"s_lshl_b32 s30, s3, 10\ns_add_u32 s30, s30, {LX}\nv_add_u32 v24, s30, v24")
    for st_ in range(2):
        for n in range(4):
            b = 64 + 16 * st_ + 4 * n
            for w in range(4):
                A(f"ds_read_b32 v{b+w}, v24 offset:{w*8192+st_*4096+n*256}")
    A(f"v_and_b32 v26, 31, v1\ns_lshl_b32 s30, s{S_C}, 5\nv_add_u32 v27, s30, v26")
    A("v_mov_b32 v28, 160\nv_cndmask_b32 v29, v27, v28, s[40:41]")
    A("v_sub_u32 v27, 320, v27")
    A(f"s_mov_b32 s30, {TF_T0}\nv_mul_lo_u32 v25, s30, v25")
    A("v_lshlrev_b32 v29, 4, v29\nv_add_u32 v29, v29, v25")
    A("v_lshlrev_b32 v27, 4, v27\nv_add_u32 v27, v27, v25")
    A(f"s_mul_i32 s30, s3, {8*TF_T0}\ns_mul_i32 s31, s{S_B}, {TF_ROW}\ns_add_u32 s30, s30, s31\ns_add_u32 s30, s30, {TF_OFF}")
    A("s_waitcnt lgkmcnt(0)")
    for st_ in range(2):
        for n in range(4):
            b = 64 + 16 * st_ + 4 * n
            A(f"s_add_u32 s31, s30, {2*n*TF_T0}")
            if not opt("NOTST"): A(f"buffer_store_dwordx4 v[{b}:{b+3}], v{29 if st_ == 0 else 27}, s[36:39], s31 offen {'' if opt('TPLAIN') else SC}")
    stamp(A)
    A(f"s_cmp_eq_u32 s{S_C}, 0\ns_cbranch_scc0 L_mx_noz\ns_cmp_eq_u32 s3, 0\ns_cbranch_scc0 L_mx_noz")
    A(f"s_mov_b32 s30, {TF_T0}\nv_and_b32 v24, 31, v1\nv_mul_lo_u32 v24, s30, v24")
    A("v_mov_b32 v4, 0\nv_mov_b32 v5, 0\nv_mov_b32 v6, 0\nv_mov_b32 v7, 0")
    A(f"s_mul_i32 s31, s{S_B}, {TF_ROW}\ns_add_u32 s31, s31, {TF_OFF}")
    A(f"buffer_store_dwordx4 v[4:7], v24, s[36:39], s31 offen {SC}")
    A("L_mx_noz:")
    publish(A, "L_mx_pubt", 2, "t", 30)
    stamp(A)
    stamp_flush(A, 0, WS, 9)
    A("s_endpgm")
    loop_hooks_ool(A, "L_mx")

def loader(A):
    A("L_loader:")
    if opt("PRIOL"): A(f"s_setprio {opt('PRIOL')}")
    if opt("PRIOL1"): A(f"s_setprio {opt('PRIOL1')}")
    A(f"s_sub_u32 s{S_J}, s3, 4")
    for r in [11, 12, 13, 52, 53, 54, 55, 56, 57, 58, 59]: A(f"v_mov_b32 v{r}, 0")
    A("s_mov_b32 s58, 0\ns_mov_b32 s59, 99\ns_mov_b32 s63, 0")
    RS = 1280 if opt("XLIN") else 81920
    A(f"v_lshrrev_b32 v4, 3, v1\ns_mov_b32 s40, {RS}\nv_mul_lo_u32 v8, s40, v4")
    A("v_and_b32 v5, 7, v1\nv_lshrrev_b32 v6, 4, v1\nv_xor_b32 v5, v5, v6\nv_lshlrev_b32 v5, 4, v5")
    A("v_add_u32 v2, v8, v5\nv_xor_b32 v7, 64, v5")
    A(f"v_add_u32 v3, v8, v7\nv_add_u32 v3, {8*RS}, v3")
    A(f"s_lshl_b32 s40, s{S_B}, 1\ns_and_b32 s41, s{S_J}, 1\ns_add_u32 s40, s40, s41")
    A(f"s_lshr_b32 s41, s{S_J}, 1\ns_lshl_b32 s41, s41, 5\ns_add_u32 s40, s40, s41")
    if opt("XLIN"):
        A(f"s_lshl_b32 s40, s{S_B}, 2\ns_add_u32 s40, s40, s{S_J}\ns_mul_i32 s40, s40, {32*1280}\ns_add_u32 s41, s40, {16*1280}")
    else:
        A(f"s_mul_i32 s40, s40, 1280\ns_add_u32 s41, s40, {16*81920}")
    A("s_mov_b64 s[56:57], -1")
    A(f"s_cmp_lt_u32 s{S_C}, 5\ns_cbranch_scc0 L_ld_H")
    A(f"s_cmp_ge_u32 s{S_J}, 2\ns_cbranch_scc0 L_ld_H")
    A(f"s_and_b32 s50, s{S_J}, 1\ns_add_u32 s50, s50, 1\ns_mov_b32 s30, {HID_BYTES}")
    A("v_mul_u32_u24 v8, 1280, v4\nv_add_u32 v9, v8, v5")
    A(f"v_add_u32 v10, v8, v7\nv_add_u32 v10, {8*1280}, v10")
    A(f"s_mul_i32 s42, s{S_C}, {32*1280}")
    A(f"s_mov_b32 s44, s42\ns_mov_b32 s45, s42\ns_add_u32 s46, s42, {16*1280}\ns_add_u32 s47, s42, {16*1280}")
    A("s_mov_b32 s43, 128")
    A(f"s_cmp_eq_u32 s{S_C}, 0\ns_cbranch_scc0 L_ld_go\ns_cmp_eq_u32 s{S_J}, 3\ns_cbranch_scc0 L_ld_go")
    A("s_mov_b32 s56, 0xffffff00")
    A("s_branch L_ld_go")
    A("L_ld_H:")
    A(f"s_mov_b32 s50, 0\ns_mov_b32 s30, {W1_BYTES}")
    A("v_mul_u32_u24 v8, 3456, v4")
    A("v_and_b32 v9, 7, v1\nv_bfe_u32 v10, v1, 4, 1\nv_lshlrev_b32 v10, 2, v10\nv_xor_b32 v9, v9, v10")
    A("v_lshlrev_b32 v9, 4, v9\nv_add_u32 v9, v8, v9\nv_mov_b32 v10, v9")
    A(f"s_and_b32 s42, s{S_J}, 1\ns_mul_i32 s42, s42, {32*3456}")
    A(f"s_lshr_b32 s43, s{S_J}, 1\ns_lshl_b32 s43, s43, 6\ns_add_u32 s43, s43, s{S_F0}\ns_lshl_b32 s43, s43, 1")
    A("s_add_u32 s42, s42, s43")
    for q in range(4):
        A(f"s_add_u32 s{44+q}, s42, {8*q*3456}")
    A(f"s_mov_b32 s43, {64*3456}")
    A("L_ld_go:")
    A(f"s_lshl_b32 s48, s{S_J}, 12\ns_mov_b32 s31, 0x20000")
    args_ready(A)
    srd(A, 24, X_, X_BYTES)
    A(f"s_cmp_eq_u32 s50, 1\ns_cselect_b32 s28, s{HRE}, s{W1}\ns_cselect_b32 s29, s{HRE+1}, s{W1+1}")
    A(f"s_cmp_eq_u32 s50, 2\ns_cselect_b32 s28, s{HIM}, s28\ns_cselect_b32 s29, s{HIM+1}, s29")
    def chunk(slot_reg):
        for q in range(0 if opt("NOLOAD1") else 4):
            A(f"s_add_u32 m0, s{slot_reg}, {q*1024}")
            A("s_nop 0")
            A(f"buffer_load_dwordx4 v{2+(q&1)}, s[24:27], s{40+(q>>1)} offen {'nt ' if opt('XNT') else ''}lds")
            A(f"s_add_u32 m0, s{slot_reg}, {16384+q*1024}")
            if q == 0: A("s_mov_b64 exec, s[56:57]")
            else: A("s_nop 0")
            A(f"buffer_load_dwordx4 v{9+(q&1)}, s[28:31], s{44+q} offen {'nt ' if opt('WNT') else ''}lds")
            if q == 0: A("s_mov_b64 exec, -1")
        A("s_add_u32 s40, s40, 128\ns_add_u32 s41, s41, 128")
        for q in range(4):
            A(f"s_add_u32 s{44+q}, s{44+q}, s43")
        A(f"s_add_u32 s{slot_reg}, s{slot_reg}, {RING}\ns_cmp_ge_u32 s{slot_reg}, {NS*RING}\ns_cselect_b32 s52, {NS*RING}, 0\ns_sub_u32 s{slot_reg}, s{slot_reg}, s52")
    A("s_mov_b32 s49, s48")
    chunk(49); chunk(49)
    stamp(A, 1)
    srd(A, 36, WS, WS_USED)
    srd(A, 32, WS, WS_USED)
    A("s_waitcnt lgkmcnt(0)")
    A(f"s_add_u32 s{S_E}, s{S_E}, 1\ns_xor_b32 s{S_EM}, s{S_E}, {MAGIC}")
    A(f"s_cmp_ge_u32 s{S_J}, 2\ns_cbranch_scc0 L_ld_su01")
    A(f"s_sub_u32 s58, s{S_J}, 2\ns_lshl_b32 s59, s{S_T0}, 1\ns_add_u32 s59, s59, s58")
    A("s_mov_b32 s50, 6554\ns_mov_b32 s53, 1280")
    for q in range(5):
        A(f"v_add_u32 v22, {64*q}, v1")
        A("v_mul_lo_u32 v23, s50, v22\nv_lshrrev_b32 v23, 16, v23")
        A("v_mul_u32_u24 v24, 10, v23\nv_sub_u32 v24, v22, v24\nv_lshlrev_b32 v24, 4, v24")
        A(f"v_mul_lo_u32 v23, s53, v23\nv_add_u32 v{52+q}, v23, v24")
    A("v_lshrrev_b32 v23, 4, v1\nv_lshrrev_b32 v24, 1, v23\nv_lshlrev_b32 v24, 4, v24")
    A("v_and_b32 v25, 1, v23\nv_lshlrev_b32 v25, 2, v25\nv_add_u32 v24, v24, v25\nv_bfe_u32 v25, v1, 2, 2\nv_add_u32 v24, v24, v25")
    A("v_mul_u32_u24 v24, 160, v24\nv_and_b32 v25, 3, v1\nv_lshlrev_b32 v25, 3, v25\nv_add_u32 v24, v24, v25")
    A(f"s_mul_i32 s50, s58, 5120\ns_add_u32 s50, s50, {LW}\nv_add_u32 v57, s50, v24")
    A(f"s_lshl_b32 s50, s{S_CT}, 6\ns_add_u32 s50, s50, s59\ns_lshl_b32 s50, s50, 3\ns_add_u32 s50, s50, {FW_OFF}\nv_mov_b32 v58, s50")
    A("s_branch L_ld_sud")
    A("L_ld_su01:")
    A("v_lshlrev_b32 v13, 3, v1\nv_and_b32 v16, 31, v1\nv_lshlrev_b32 v15, 3, v16")
    A(f"s_lshl_b32 s50, s{S_B}, 7\ns_add_u32 s50, s50, {FR1_OFF}\nv_add_u32 v12, s50, v15")
    A(f"s_lshl_b32 s50, s{S_C}, 7\ns_add_u32 s50, s50, {FC1_OFF-128}\nv_add_u32 v15, s50, v15")
    A("v_cmp_le_u32 vcc, 16, v16\ns_nop 1\nv_cndmask_b32 v12, v12, v15, vcc")
    A(f"s_lshl_b32 s50, s{S_CT}, 9\ns_add_u32 s50, s50, {FW_OFF}\nv_add_u32 v11, s50, v13")
    A("L_ld_sud:")
    A("s_waitcnt vmcnt(8)")
    stamp(A, 2)
    A("s_barrier")
    chunk(49)
    A(f"s_cmp_ge_u32 s{S_J}, 2\ns_cbranch_scc1 L_ld_h1w\nL_ld_h1w_ret:")
    A(f"s_cmp_ge_u32 s{S_J}, 2\ns_cbranch_scc1 L_ld_b1w")
    A("s_waitcnt vmcnt(8)\ns_branch L_ld_b1d\nL_ld_b1w:")
    A("s_cmp_ge_u32 s59, 54\ns_cbranch_scc1 L_ld_b1n\ns_waitcnt vmcnt(13)\ns_branch L_ld_b1d\nL_ld_b1n:\ns_waitcnt vmcnt(8)\nL_ld_b1d:")
    A("s_barrier")
    stamp(A)
    pk = opt("POLLK", 5)
    assert pk in (5, 6)
    A(f"s_mov_b32 s53, 99\ns_mov_b32 s54, 99\ns_mov_b32 s55, 0\ns_mov_b32 s79, 99\ns_mov_b32 s81, 99\ns_mov_b32 s82, 99\ns_mov_b32 s83, 0")
    A(f"s_cmp_eq_u32 s{S_J}, 0\ns_cselect_b32 s53, {9-pk}, s53\ns_cselect_b32 s54, {9-pk-2}, s54\ns_cselect_b32 s55, {9-pk-1}, s55\ns_cselect_b32 s81, {9-pk-2}, s81")
    A(f"s_cmp_eq_u32 s{S_J}, 1\ns_cselect_b32 s53, {opt('FWPOLL', 1)}, s53")
    A(f"s_cmp_ge_u32 s{S_J}, 2\ns_cselect_b32 s82, 6, s82\ns_cselect_b32 s79, 3, s79\ns_cselect_b32 s83, 1, s83")
    A("s_mov_b32 s51, 7")
    A("L_ld_loop:")
    A("s_cmp_eq_u32 s51, s54\ns_cbranch_scc1 L_ld_h2\nL_ld_h2_ret:")
    chunk(49)
    A("s_cmp_eq_u32 s51, s79\ns_cbranch_scc1 L_ld_h3\nL_ld_h3_ret:")
    A("s_cmp_eq_u32 s51, s53\ns_cbranch_scc1 L_ld_h1\nL_ld_h1_ret:")
    A("s_cmp_eq_u32 s51, s81\ns_cbranch_scc1 L_ld_h4\nL_ld_h4_ret:")
    A("s_cmp_eq_u32 s51, s82\ns_cbranch_scc1 L_ld_h2w\nL_ld_h2w_ret:")
    A("s_cmp_lt_u32 s51, s55\ns_cbranch_scc1 L_ld_w25")
    A("s_cmp_eq_u32 s83, 0\ns_cbranch_scc1 L_ld_w8")
    A("s_cmp_eq_u32 s51, 6\ns_cbranch_scc1 L_ld_wW\ns_cmp_eq_u32 s51, 5\ns_cbranch_scc1 L_ld_wW")
    A("s_cmp_eq_u32 s51, 3\ns_cbranch_scc1 L_ld_w9\ns_cmp_eq_u32 s51, 2\ns_cbranch_scc1 L_ld_w9")
    A("L_ld_w8:\ns_waitcnt vmcnt(8)\ns_branch L_ld_wd")
    A("L_ld_wW:\ns_cmp_ge_u32 s59, 54\ns_cbranch_scc1 L_ld_w8\ns_waitcnt vmcnt(13)\ns_branch L_ld_wd\nL_ld_w9:\ns_waitcnt vmcnt(9)\ns_branch L_ld_wd")
    A("L_ld_w25:\ns_waitcnt vmcnt(17)\nL_ld_wd:")
    stamp(A)
    A("s_barrier")
    stamp(A)
    A("s_sub_u32 s51, s51, 1\ns_cmp_lg_u32 s51, 0\ns_cbranch_scc1 L_ld_loop")
    A("s_waitcnt vmcnt(0)")
    if not opt("WLATE", 1):
        A(f"s_cmp_eq_u32 s{S_J}, 1\ns_cbranch_scc0 L_ld_no1")
        spin(A, "L_ld_spw", 48, 11, 32, xcc=True)
        A("L_ld_no1:")
    A(f"s_cmp_eq_u32 s{S_J}, 0\ns_cbranch_scc0 L_ld_nored")
    if opt("REDPRIO", 1): A("s_setprio 2")
    for b_ in range(1, 8):
        for k in range(4): A(f"v_add_f32 v{16+k}, v{16+k}, v{16+4*b_+k}")
    for k in range(4): A(f"v_mov_b32 v{20+k}, v{16+k}")
    A("s_nop 1")
    for k in range(4): A(f"v_permlane32_swap_b32 v{16+k}, v{20+k}")
    A("s_nop 0")
    for k in range(4): A(f"v_add_f32 v{16+k}, v{16+k}, v{20+k}")
    A(f"v_add_u32 v13, {LCS}, v13\nds_write_b128 v13, v[16:19]")
    if opt("REDPRIO", 1): A("s_setprio 0")
    A("s_waitcnt lgkmcnt(0)")
    A("L_ld_nored:")
    A("s_barrier")
    stamp(A)
    A("s_barrier")
    A("s_branch L_ld_p2")
    A("L_ld_h1:")
    A(f"s_cmp_eq_u32 s{S_J}, 1\ns_cbranch_scc1 L_ld_h1f")
    A(f"buffer_load_dwordx2 v[14:15], v12, s[32:35], 0 offen {SC}")
    A("s_branch L_ld_h1_ret")
    A("L_ld_h1f:")
    A(f"buffer_load_dwordx2 v[48:49], v11, s[32:35], 0 offen {SC}")
    A("s_branch L_ld_h1_ret")
    A("L_ld_h1w:")
    if opt("NOW"): A("s_branch L_ld_h1w_ret")
    A("s_cmp_ge_u32 s59, 54\ns_cbranch_scc1 L_ld_h1w_ret")
    srd(A, 84, W2, W2_BYTES)
    A(f"s_mul_i32 s50, s59, 40960\ns_mul_i32 s62, s{S_CT}, 160\ns_add_u32 s50, s50, s62")
    A(f"s_mul_i32 s62, s58, 5120\ns_add_u32 s62, s62, {LW}")
    for q in range(5):
        A(f"s_add_u32 m0, s62, {1024*q}\ns_nop 0")
        A(f"buffer_load_dwordx4 v{52+q}, s[84:87], s50 offen lds")
    A("s_branch L_ld_h1w_ret")
    A("L_ld_h2:")
    spin(A, "L_ld_sp", 14, 12, 32, xcc=True)
    A(f"v_and_b32 v50, 16, v1\nv_cmp_eq_u32 s[60:61], 0, v50\nv_cmp_ne_u32 vcc, s{S_XCC}, v15\ns_nop 3\ns_and_b64 vcc, vcc, s[60:61]")
    A(f"s_cmp_eq_u64 vcc, 0\ns_cselect_b32 s62, {1 if opt('LOCALH', 2) and opt('MAP1', 1) else 0}, 0")
    A(f"v_mov_b32 v50, {LCNT + 12}\nv_mov_b32 v51, s62\nds_write_b32 v50, v51")
    A("s_branch L_ld_h2_ret")
    A("L_ld_h4:")
    A(f"s_lshl_b32 s50, s{S_B}, 10\ns_add_u32 s50, s50, {ST_OFF}\ns_mov_b32 m0, {LST}\nv_lshlrev_b32 v13, 4, v1")
    A(f"buffer_load_dwordx4 v13, s[36:39], s50 offen {SC} lds")
    A(f"s_lshl_b32 s50, s{S_F0}, 2\ns_add_u32 s50, s50, {CS_OFF}")
    A("v_and_b32 v13, 31, v1\nv_lshlrev_b32 v13, 4, v13\nv_lshrrev_b32 v14, 5, v1\nv_lshlrev_b32 v14, 13, v14\nv_add_u32 v14, v13, v14")
    for b_ in range(8):
        A(f"buffer_load_dwordx4 v[{16+4*b_}:{19+4*b_}], v14, s[36:39], s50 offen {SC}")
        if b_ < 7: A("s_add_u32 s50, s50, 16384")
    A("s_branch L_ld_h4_ret")
    A("L_ld_h2w:")
    A("v_lshlrev_b32 v22, 4, v1")
    if opt("NOW"): A("s_branch L_ld_h2w_ret")
    A("s_cmp_ge_u32 s59, 54\ns_cbranch_scc1 L_ld_h2w_ret")
    for n in range(5):
        A(f"ds_read_b64_tr_b16 v[{24+4*n}:{25+4*n}], v57 offset:{32*n}")
        A(f"ds_read_b64_tr_b16 v[{26+4*n}:{27+4*n}], v57 offset:{32*n+1280}")
    A(f"s_mul_i32 s50, s{S_CT}, 54\ns_add_u32 s50, s50, s59\ns_mul_i32 s50, s50, 5120\ns_add_u32 s50, s50, {W2F_OFF}")
    A("v_add_u32 v23, 4096, v22\ns_waitcnt lgkmcnt(0)")
    for n in range(4):
        A(f"buffer_store_dwordx4 v[{24+4*n}:{27+4*n}], v22, s[32:35], s50 offen offset:{1024*n} {SC}")
    A(f"buffer_store_dwordx4 v[40:43], v23, s[32:35], s50 offen {SC}")
    A("s_branch L_ld_h2w_ret")
    A("L_ld_h3:")
    store_flags(A, 58, 1, 32, 64, xcc=True)
    A("s_branch L_ld_h3_ret")
    A("L_ld_p2:")
    if opt("PRIOL1"): A("s_setprio 0")
    stamp(A, 3)
    if opt("P1ONLY"):
        stamp_flush(A, 0, WS, 9)
        A("s_endpgm")
    if opt("WLATE", 1):
        A(f"v_mov_b32 v16, {LCNT + 20}")
        A(f"s_cmp_eq_u32 s{S_J}, 1\ns_cbranch_scc0 L_ld_ww")
        spin(A, "L_ld_spw", 48, 11, 32, xcc=True)
        A("v_mov_b32 v17, 1\nds_write_b32 v16, v17\ns_waitcnt lgkmcnt(0)\ns_branch L_ld_wgo")
        A("L_ld_ww:\nds_read_b32 v17, v16\ns_waitcnt lgkmcnt(0)\ns_nop 0\nv_readfirstlane_b32 s50, v17\ns_nop 3\ns_cmp_eq_u32 s50, 1\ns_cbranch_scc1 L_ld_wgo")
        A(f"s_sub_u32 s{S_SPIN}, s{S_SPIN}, 1\ns_cmp_eq_u32 s{S_SPIN}, 0\ns_cbranch_scc0 L_ld_ww")
        A("L_ld_wgo:")
    p2(A)

def p2(A):
    J = S_J
    HSC = "" if opt("HPLAIN") else SC
    WSC = "" if opt("WPLAIN") else SC
    if opt("W2NT"): WSC += " nt"
    ACC = 16
    SET = [96, 132, 168]
    XR = 204
    VP = 214
    acc = lambda nt, a: ACC + 4 * (4 * nt + a)
    srd(A, 24, WS, WS_USED)
    A("v_lshlrev_b32 v2, 4, v1\nv_add_u32 v3, 4096, v2")
    MXLAST = opt("MXLAST", 1)
    if MXLAST:
        A(f"s_add_u32 s44, s{J}, 12\ns_mov_b32 s45, s44")
    else:
        A(f"s_mov_b32 s44, s{J}\ns_mov_b32 s45, s44")
    A(f"s_mul_i32 s49, s{S_CT}, {54*5120}\ns_add_u32 s49, s49, {W2F_OFF}")
    def adv(r):
        A(f"s_add_u32 s{r}, s{r}, 4\ns_cmp_ge_u32 s{r}, 54\ns_cselect_b32 s{r}, s{J}, s{r}")
    def loadB(si):
        b = SET[si]
        A("s_mul_i32 s50, s44, 5120\ns_add_u32 s50, s50, s49")
        for n in range(4):
            A(f"buffer_load_dwordx4 v[{b+4*n}:{b+4*n+3}], v2, s[24:27], s50 offen offset:{1024*n} {WSC}")
        A(f"buffer_load_dwordx4 v[{b+16}:{b+19}], v3, s[24:27], s50 offen {WSC}")
        adv(44)
    NB0 = opt("NB0", 3)
    for si in range(NB0): loadB(si)
    A(f"s_lshr_b32 s50, s{S_T0}, 1\ns_lshl_b32 s50, s50, 7\ns_add_u32 s50, s50, {FH_OFF}")
    if MXLAST:
        A("v_min_u32 v14, 10, v1\nv_add_u32 v14, 5, v14\nv_lshlrev_b32 v14, 3, v14\nv_add_u32 v15, s50, v14")
    else:
        A("v_and_b32 v14, 15, v1\nv_lshlrev_b32 v14, 3, v14\nv_add_u32 v15, s50, v14")
    A(f"s_cmp_eq_u32 s{J}, 0\ns_cbranch_scc0 L_p2_np0")
    A(f"buffer_load_dwordx2 v[{VP}:{VP+1}], v15, s[24:27], 0 offen {SC}")
    A("L_p2_np0:")
    srd(A, 28, WS, 4 * HF_TILE)
    A(f"s_mul_i32 s50, s{S_T0}, {4*HF_TILE}")
    if HF_OFF: A(f"s_add_u32 s50, s50, {HF_OFF}")
    A("s_add_u32 s28, s28, s50\ns_addc_u32 s29, s29, 0")
    srd(A, 32, X_, X_BYTES)
    srd(A, 40, OUT, X_BYTES)
    for a_ in range(4):
        A(f"s_add_u32 s50, s{J}, {a_}\ns_and_b32 s50, s50, 3\ns_mul_i32 s50, s50, {HF_TILE}\nv_add_u32 v{4+a_}, s50, v2")
    RSTR = 336
    A(f"s_lshl_b32 s50, s{J}, 6\nv_add_u32 v8, s50, v1")
    A(f"s_mov_b32 s50, 3277\ns_mul_i32 s38, s{S_T0}, 1280\ns_mul_i32 s39, s{S_CT}, 160\ns_add_u32 s38, s38, s39")
    for n in range(5):
        A(f"v_add_u32 v9, {256*n}, v8\nv_mul_lo_u32 v10, s50, v9\nv_lshrrev_b32 v10, 16, v10")
        A("v_mul_u32_u24 v11, 20, v10\nv_sub_u32 v11, v9, v11")
        A(f"v_mul_u32_u24 v12, {RSTR}, v10\nv_lshlrev_b32 v13, 4, v11\nv_add_u32 v{220+n}, v12, v13")
        A("v_lshrrev_b32 v12, 5, v10\nv_mul_u32_u24 v12, 40960, v12\nv_and_b32 v10, 31, v10\nv_mul_u32_u24 v10, 81920, v10")
        A(f"v_lshlrev_b32 v11, 3, v11\nv_add3_u32 v{225+n}, v10, v12, v11")
    A(f"v_and_b32 v9, 15, v1\nv_mul_u32_u24 v9, {RSTR}, v9\nv_lshrrev_b32 v10, 4, v1\nv_lshlrev_b32 v10, 4, v10\nv_add_u32 v230, v9, v10")
    FFR = 236
    A(f"s_add_u32 s50, s{J}, 2\ns_and_b32 s50, s50, 3\ns_lshl_b32 s50, s50, 3\nv_lshrrev_b32 v9, 4, v1\nv_lshlrev_b32 v9, 1, v9\nv_add_u32 v9, s50, v9")
    A(f"s_mov_b32 s51, 0x3a000000\ns_mov_b32 s52, 0xba000000\ns_cmp_lt_u32 s{S_CT}, 4\ns_cselect_b32 s52, s51, s52")
    A("v_and_b32 v10, 15, v1\nv_lshlrev_b32 v10, 6, v10")
    for a_ in range(4):
        A(f"s_add_u32 s50, s{J}, {a_}\ns_and_b32 s50, s50, 3\ns_lshr_b32 s53, s50, 1\ns_lshl_b32 s53, s53, 5\ns_and_b32 s50, s50, 1\ns_lshl_b32 s50, s50, 10")
        A(f"s_add_u32 s50, s50, s53\ns_add_u32 s50, s50, s{S_T0}\nv_add_u32 v11, s50, v10")
        for k, ds in enumerate([0, 1, 32, 33]):
            A(f"v_add_u32 v12, {ds}, v9\nv_mul_u32_u24 v12, v11, v12\nv_and_b32 v12, 0x7ff, v12\nv_cvt_f32_u32 v12, v12")
            A(f"v_mul_f32 v13, s51, v12\nv_mul_f32 v12, s52, v12\nv_cos_f32 v13, v13\nv_sin_f32 v12, v12\ns_nop 0\nv_cvt_pk_bf16_f32 v{FFR+4*a_+k}, v13, v12")
    def loadA(si):
        b = SET[si] + 20
        A("s_lshl_b32 s50, s45, 10")
        for a_ in range(4):
            A(f"buffer_load_dwordx4 v[{b+4*a_}:{b+4*a_+3}], v{4+a_}, s[28:31], s50 offen {HSC}")
        adv(45)
    def loadT(si):
        b = SET[si]
        A("s_mov_b32 s50, s46")
        for n in range(5):
            A(f"buffer_load_dwordx4 v[{b+4*n}:{b+4*n+3}], v10, s[24:27], s50 offen {SC}")
            if n < 4: A("s_add_u32 s50, s50, s47")
    def mfmas(si):
        b = SET[si]
        for a_ in range(4):
            for nt in range(5):
                c = acc(nt, a_)
                if not opt("NOCOMP2"):
                    A(f"{MFMA16} v[{c}:{c+3}], v[{b+4*nt}:{b+4*nt+3}], v[{b+20+4*a_}:{b+23+4*a_}], v[{c}:{c+3}]")
    def last_step(si):
        b = SET[si]
        def grp(a_):
            for nt in range(5):
                c = acc(nt, a_)
                if not opt("NOCOMP2"):
                    A(f"{MFMA16} v[{c}:{c+3}], v[{b+4*nt}:{b+4*nt+3}], v[{FFR+4*a_}:{FFR+4*a_+3}], v[{c}:{c+3}]")
        def addr(a_):
            A(f"s_add_u32 s50, s{J}, {a_}\ns_and_b32 s50, s50, 3\ns_mul_i32 s50, s50, {16*336}\ns_mul_i32 s51, s{J}, {64*336}\ns_add_u32 s50, s50, s51\nv_add_u32 v{232+a_}, s50, v230")
        def wr(a_):
            for nt in range(5):
                c = acc(nt, a_)
                A(f"ds_write_b128 v{232+a_}, v[{c}:{c+3}] offset:{nt*64}")
        grp(0); addr(0); addr(1); grp(1); addr(2); wr(0); grp(2); addr(3); wr(1); grp(3); A("s_nop 3"); wr(2); A("s_nop 3"); wr(3)
    def xorA(si):
        b = SET[si] + 20
        for k in range(16): A(f"v_xor_b32 v{b+k}, s48, v{b+k}")
        A("s_nop 0")
    for i in range(80): A(f"v_mov_b32 v{ACC+i}, 0")
    A(f"v_lshrrev_b32 v10, 4, v1\nv_mul_u32_u24 v10, {TF_ROW}, v10\nv_and_b32 v11, 15, v1")
    A(f"s_mul_i32 s50, s{S_CT}, 80\nv_add_u32 v12, s50, v11\nv_sub_u32 v13, 576, v12")
    A(f"s_cmp_lt_u32 s{S_CT}, 4\ns_cselect_b64 s[60:61], -1, 0\nv_cndmask_b32 v12, v13, v12, s[60:61]")
    A("v_lshlrev_b32 v12, 4, v12\nv_add_u32 v10, v10, v12")
    A(f"s_sub_u32 s46, 32, s{S_T0}\ns_and_b32 s46, s46, 31\ns_cmp_lt_u32 s{S_CT}, 4\ns_cselect_b32 s46, s{S_T0}, s46")
    A(f"s_mul_i32 s46, s46, {TF_T0}\ns_add_u32 s46, s46, {TF_OFF}")
    A(f"s_mov_b32 s47, 256\ns_mov_b32 s50, -256\ns_cmp_lt_u32 s{S_CT}, 4\ns_cselect_b32 s47, s47, s50\ns_cselect_b32 s50, 0, 1024\ns_cselect_b32 s48, 0x80000000, 0")
    A("s_add_u32 s46, s46, s50")
    A(f"s_add_u32 s50, s{J}, 2\ns_and_b32 s50, s50, 3\ns_mul_i32 s50, s50, {4*TF_ROW}\ns_add_u32 s46, s46, s50")
    A(f"s_lshl_b32 s50, s{S_CT}, 10\ns_add_u32 s50, s50, {FT_OFF}\nv_lshlrev_b32 v12, 3, v1\nv_add_u32 v12, s50, v12")
    A("v_and_b32 v13, 15, v1\nv_lshlrev_b32 v13, 3, v13\nv_add_u32 v13, s50, v13\nv_add_u32 v13, 512, v13")
    A(f"s_lshr_b32 s50, s{S_T0}, 1\ns_lshl_b32 s50, s50, 7\ns_add_u32 s50, s50, {FH_OFF}\nv_min_u32 v9, 4, v1\nv_lshlrev_b32 v9, 3, v9\nv_add_u32 v9, s50, v9")
    A(f"s_cmp_eq_u32 s{J}, 0\ns_cbranch_scc0 L_p2_lw")
    A("s_waitcnt vmcnt(0)")
    if opt("SPINSTAMP") == "L_p2_sp1": stamp(A)
    spin(A, "L_p2_sp1", VP, 15, 24, xcc=True)
    A(f"v_mov_b32 v14, {LCNT + 16}\nv_mov_b32 v15, 1\nds_write_b32 v14, v15\ns_waitcnt lgkmcnt(0)")
    A("s_branch L_p2_go")
    A("L_p2_lw:")
    if opt("P2ONLY"): A("s_branch L_p2_go")
    A(f"v_mov_b32 v14, {LCNT + 16}")
    A("L_p2_lw1:\nds_read_b32 v15, v14\ns_waitcnt lgkmcnt(0)\ns_nop 0\nv_readfirstlane_b32 s50, v15\ns_nop 3\ns_cmp_eq_u32 s50, 1\ns_cbranch_scc1 L_p2_go")
    A(f"s_sleep 1\ns_sub_u32 s{S_SPIN}, s{S_SPIN}, 1\ns_cmp_eq_u32 s{S_SPIN}, 0\ns_cbranch_scc0 L_p2_lw1")
    A("L_p2_go:")
    stamp(A, 5)
    for si in range(NB0): loadA(si)
    for si in range(NB0, 3):
        loadB(si); loadA(si)
    def loadX():
        for n in range(5):
            A(f"buffer_load_dwordx2 v[{XR+2*n}:{XR+2*n+1}], v{225+n}, s[32:35], s38 offen")
    XLATE = opt("XLATE", 1)
    if not XLATE: loadX()
    def step(si, vm, pre):
        A(f"s_waitcnt vmcnt({vm})")
        mfmas(si)
        pre()
    reg = lambda si: (lambda: (loadB(si), loadA(si)))
    order = [(si, 4) for si in range(NB0)] + [(si, 9) for si in range(NB0, 3)] + ([] if XLATE else [(-1, 5)])
    for st_ in range(3):
        idx = max(i for i, (si, n) in enumerate(order) if si == st_)
        younger = sum(n for (si, n) in order[idx+1:]) + 9 * st_
        step(st_, younger, reg(st_))
        if opt("STEPSTAMP"): stamp(A)
    stamp(A)
    if MXLAST: A(f"buffer_load_dwordx2 v[{VP+4}:{VP+5}], v9, s[24:27], 0 offen {SC}")
    A("s_mov_b32 s51, 2")
    A("L_p2_loop:")
    for si in range(3):
        step(si, 18, reg(si))
        if opt("STEPSTAMP"): stamp(A)
    A("s_cmp_eq_u32 s51, 2\ns_cbranch_scc0 L_p2_nt")
    if MXLAST: spin(A, "L_p2_spm", VP + 4, 9, 24, xcc=True)
    if not opt("TLATE", 1):
        A(f"buffer_load_dwordx2 v[{VP}:{VP+1}], v12, s[24:27], 0 offen {SC}\nbuffer_load_dwordx2 v[{VP+2}:{VP+3}], v13, s[24:27], 0 offen {SC}")
    A("L_p2_nt:")
    A("s_sub_u32 s51, s51, 1\ns_cmp_lg_u32 s51, 0\ns_cbranch_scc1 L_p2_loop")
    stamp(A)
    TLATE = opt("TLATE", 1)
    if TLATE:
        A(f"buffer_load_dwordx2 v[{VP}:{VP+1}], v12, s[24:27], 0 offen {SC}\nbuffer_load_dwordx2 v[{VP+2}:{VP+3}], v13, s[24:27], 0 offen {SC}")
    step(0, 18, reg(0))
    def tcheck(tag, epoch):
        spin(A, tag + "2", VP, 12, 24)
        spin(A, tag + "3", VP + 2, 13, 24)
        if epoch:
            A(f"s_cmp_eq_u32 s2, 0\ns_cbranch_scc0 {tag}_noep\ns_cmp_eq_u32 s{J}, 0\ns_cbranch_scc0 {tag}_noep")
            A(f"v_mov_b32 v14, s{S_E}\nv_mov_b32 v15, {EP_OFF}\ns_mov_b64 exec, 1\nbuffer_store_dword v14, v15, s[24:27], 0 offen {SC}\ns_mov_b64 exec, -1")
            A(f"{tag}_noep:")
    if not TLATE: tcheck("L_p2_sp", True)
    stamp(A)
    A(f"s_cmp_lt_u32 s{J}, 2\ns_cbranch_scc0 L_p2_hi")
    step(1, 18, reg(1))
    step(2, 18, lambda: (tcheck("L_p2_lo", True) if TLATE else None, loadT(2), loadX() if XLATE else None))
    xq = 5 if XLATE else 0
    step(0, 14 + xq, lambda: None)
    step(1, 5 + xq, lambda: None)
    A(f"s_waitcnt vmcnt({xq})"); last_step(2)
    A("s_branch L_p2_red")
    A("L_p2_hi:")
    step(1, 18, lambda: ((A("s_waitcnt vmcnt(9)"), tcheck("L_p2_hi", False)) if TLATE else None, loadT(1), loadX() if XLATE else None))
    step(2, 14 + xq, lambda: None)
    step(0, 5 + xq, lambda: None)
    A(f"s_waitcnt vmcnt({xq})"); last_step(1)
    A("L_p2_red:")
    stamp(A)
    A("s_waitcnt lgkmcnt(0)\ns_barrier")
    R0 = 96
    def rd(n):
        for w in range(4):
            r = R0 + 16 * n + 4 * w
            A(f"ds_read_b128 v[{r}:{r+3}], v{220+n} offset:{w*64*336}")
    rd(0); rd(1); rd(2)
    OSC = SC if opt("OUTSC") else ""
    for n in range(5):
        r = R0 + 16 * n; x = XR + 2 * n
        if n == 0: A("s_waitcnt vmcnt(0) lgkmcnt(8)")
        elif n == 1: A("s_waitcnt lgkmcnt(8)")
        elif n == 2: A("s_waitcnt lgkmcnt(8)")
        elif n == 3: A("s_waitcnt lgkmcnt(4)")
        else: A("s_waitcnt lgkmcnt(0)")
        A(f"v_pk_add_f32 v[{r}:{r+1}], v[{r}:{r+1}], v[{r+4}:{r+5}]\nv_pk_add_f32 v[{r+2}:{r+3}], v[{r+2}:{r+3}], v[{r+6}:{r+7}]")
        A(f"v_pk_add_f32 v[{r+8}:{r+9}], v[{r+8}:{r+9}], v[{r+12}:{r+13}]\nv_pk_add_f32 v[{r+10}:{r+11}], v[{r+10}:{r+11}], v[{r+14}:{r+15}]")
        if n + 3 < 5: pass
        A(f"v_lshlrev_b32 v{r+4}, 16, v{x}\nv_and_b32 v{r+5}, 0xffff0000, v{x}\nv_lshlrev_b32 v{r+6}, 16, v{x+1}\nv_and_b32 v{r+7}, 0xffff0000, v{x+1}")
        A(f"v_pk_add_f32 v[{r}:{r+1}], v[{r}:{r+1}], v[{r+8}:{r+9}]\nv_pk_add_f32 v[{r+2}:{r+3}], v[{r+2}:{r+3}], v[{r+10}:{r+11}]")
        A(f"v_pk_add_f32 v[{r}:{r+1}], v[{r}:{r+1}], v[{r+4}:{r+5}]\nv_pk_add_f32 v[{r+2}:{r+3}], v[{r+2}:{r+3}], v[{r+6}:{r+7}]")
        A(f"v_cvt_pk_bf16_f32 v{x}, v{r}, v{r+1}\nv_cvt_pk_bf16_f32 v{x+1}, v{r+2}, v{r+3}")
        A(f"buffer_store_dwordx2 v[{x}:{x+1}], v{225+n}, s[40:43], s38 offen {OSC}")
        if n == 0: rd(3)
        if n == 1: rd(4)
    stamp(A)
    if opt("CLK") and asmlib.PROFILE:
        A("s_memtime s[90:91]\ns_waitcnt lgkmcnt(0)\ns_sub_u32 s90, s90, s88\ns_mov_b32 m0, 62\nv_writelane_b32 v0, s90, m0")
    stamp_flush(A, 0, WS, 9)
    A("s_endpgm")

def gen(A, name):
    global KNAME
    KNAME = name
    kernel_head(A, name)
    entry(A)
    if opt("P2ONLY"):
        A(f"s_mov_b32 s{S_SPIN}, 1\ns_cmp_lt_u32 s3, 4\ns_cbranch_scc1 L_end\ns_sub_u32 s{S_J}, s3, 4\ns_waitcnt lgkmcnt(0)\ns_branch L_ld_p2")
    A("s_cmp_ge_u32 s3, 4\ns_cbranch_scc1 L_loader")
    if opt("PRIOC"): A(f"s_setprio {opt('PRIOC')}")
    jobs_issue(A)
    A(f"s_cmp_lt_u32 s{S_C}, 5\ns_cbranch_scc1 L_mx")
    p1_hh(A)
    p1_mx(A)
    loader(A)
    A("L_end:\ns_endpgm\nL_code_end:")
```

```python
from asmlib import *
import asmlib
from layout import *

MFMA32 = "v_mfma_f32_32x32x16_bf16"
MFMA16 = "v_mfma_f32_16x16x32_bf16"
RING = 32768; NS = 4
SLOT = 20480; NS2 = 6
LX = NS2 * SLOT
LW = 132 * 1024
LST = 152 * 1024
LCS = LST + 1024
LCNT = LST + 2048
LDS_TOTAL = LCNT + 64
X_, SRE, SIM, HRE, HIM, WS = 4, 6, 8, 10, 12, 16
W1, W2, OUT, DBG = 64, 66, 68, 70
S_B, S_C, S_F0, S_J = 18, 19, 20, 21
S_T0, S_CT = 72, 73
S_SPIN = 74
SC = "sc1"
SPIN_MAX = 200000
CPW = 3

MAGIC = 0x5A3C96E1
S_E, S_EM = 75, 76
S_XCC = 77
S_LOCAL = 78

def spin(A, name, vp, vaddr, srdp, xcc=False):
    A(f"{name}:")
    if xcc:
        A(f"v_xor_b32 v{vp+1}, s{S_EM}, v{vp+1}\nv_cmp_ne_u32 vcc, s{S_E}, v{vp}\nv_cmp_lt_u32 s[60:61], 15, v{vp+1}\ns_nop 3\ns_or_b64 vcc, vcc, s[60:61]")
    else:
        A(f"v_cmp_ne_u32 vcc, s{S_E}, v{vp}\nv_cmp_ne_u32 s[60:61], s{S_EM}, v{vp+1}\ns_nop 3\ns_or_b64 vcc, vcc, s[60:61]")
    A(f"s_cbranch_vccz {name}_ok")
    if opt("P2ONLY"): A(f"s_branch {name}_ok")
    A(f"s_sub_u32 s{S_SPIN}, s{S_SPIN}, 1\ns_cmp_eq_u32 s{S_SPIN}, 0\ns_cbranch_scc1 {name}_ok")
    A(f"s_sleep {opt('SLEEP', 4)}")
    A(f"buffer_load_dwordx2 v[{vp}:{vp+1}], v{vaddr}, s[{srdp}:{srdp+3}], 0 offen {SC}\ns_waitcnt vmcnt(0)")
    if opt("SPINSTAMP") == name: stamp(A)
    A(f"s_branch {name}\n{name}_ok:")

def store_flags(A, vaddr, nlanes, srdp, vt, xcc=False, local=None):
    if xcc:
        A(f"s_xor_b32 s62, s{S_EM}, s{S_XCC}\nv_mov_b32 v{vt}, s{S_E}\nv_mov_b32 v{vt+1}, s62\ns_mov_b64 exec, {(1 << nlanes) - 1}")
    else:
        A(f"v_mov_b32 v{vt}, s{S_E}\nv_mov_b32 v{vt+1}, s{S_EM}\ns_mov_b64 exec, {(1 << nlanes) - 1}")
    if local:
        A(f"s_cmp_eq_u32 s{S_LOCAL}, 1\ns_cbranch_scc1 {local}_fp")
    A(f"buffer_store_dwordx2 v[{vt}:{vt+1}], v{vaddr}, s[{srdp}:{srdp+3}], 0 offen {SC}")
    if local:
        A(f"s_branch {local}_fd\n{local}_fp:")
        A(f"buffer_store_dwordx2 v[{vt}:{vt+1}], v{vaddr}, s[{srdp}:{srdp+3}], 0 offen")
        A(f"{local}_fd:")
    A("s_mov_b64 exec, -1")

def flag_addr_h(A, v):
    A(f"s_lshl_b32 s62, s{S_B}, 4\ns_add_u32 s62, s62, s{S_C}\ns_lshl_b32 s62, s62, 3\ns_add_u32 s62, s62, {FH_OFF}\nv_mov_b32 v{v}, s62")
def flag_addr_t(A, v):
    A(f"s_lshl_b32 s62, s{S_C}, 4\ns_add_u32 s62, s62, s{S_B}\ns_lshl_b32 s62, s62, 3\ns_add_u32 s62, s62, {FT_OFF}")
    A(f"v_lshlrev_b32 v{v}, 10, v1\nv_add_u32 v{v}, s62, v{v}")
def flag_addr_early(A, v):
    A(f"s_lshl_b32 s62, s{S_B}, 4\ns_add_u32 s62, s62, s{S_C}\ns_lshl_b32 s62, s62, 3\ns_add_u32 s58, s62, {FR1_OFF}")
    A(f"s_lshl_b32 s62, s{S_C}, 4\ns_add_u32 s62, s62, s{S_B}\ns_lshl_b32 s62, s62, 3\ns_add_u32 s62, s62, {FC1_OFF}")
    A(f"s_cmp_eq_u32 s3, 1\ns_cselect_b32 s58, s62, s58\nv_mov_b32 v{v}, s58")

def epoch_ready(A):
    A("s_waitcnt lgkmcnt(0)")
    A(f"s_add_u32 s{S_E}, s{S_E}, 1\ns_xor_b32 s{S_EM}, s{S_E}, {MAGIC}")
    srd(A, 48, WS, WS_USED)

def lds_arrive(A, word, vt, sdst):
    A(f"v_mov_b32 v{vt}, {LCNT + 4*word}\nv_mov_b32 v{vt+1}, 1\ns_mov_b64 exec, 1")
    A(f"ds_add_rtn_u32 v{vt+1}, v{vt}, v{vt+1}\ns_waitcnt lgkmcnt(0)\ns_mov_b64 exec, -1\ns_nop 0")
    A(f"v_readfirstlane_b32 s{sdst}, v{vt+1}")
    A("s_nop 3")

def code_prefetch(A, tag, mode):
    A(f"s_getpc_b64 s[50:51]\nJ_pc{tag}:")
    A(f"s_sub_u32 s50, s50, J_pc{tag}-{KNAME}\ns_subb_u32 s51, s51, 0")
    A(f"s_mov_b32 s52, ((L_code_end-{KNAME})>>7)-1")
    def lines(first_expr, n, dst):
        A(f"v_add_u32 v22, {first_expr}, v1\nv_min_u32 v22, s52, v22\nv_lshlrev_b32 v22, 7, v22")
        A("v_mov_b32 v23, s51\nv_add_co_u32 v22, vcc, s50, v22\ns_nop 1\nv_addc_co_u32 v23, vcc, 0, v23, vcc")
        A(f"global_load_dword v{dst}, v[22:23], off")
    if mode == 0:
        A("s_lshr_b32 s53, s2, 3\ns_mul_i32 s53, s53, 6\ns_mov_b64 exec, 63")
        lines("s53", 1, 127)
        A("s_mov_b64 exec, -1")
    elif mode in (1, 2):
        for n in range(3): lines(64 * n, 1, (125 if mode == 1 else 24) + n)
    elif mode == 3 and tag == "a":
        lines(0, 1, 125)
        A(f"s_mov_b32 s53, (L_loader-{KNAME})>>7\ns_mov_b64 exec, 0xffffff")
        lines("s53", 1, 126)
        A("s_mov_b64 exec, -1")
    else:
        lines(64, 1, 24); lines(128, 1, 25)

def entry(A):
    A("s_cmp_ge_u32 s2, 256\ns_cbranch_scc1 L_end")
    A(f"s_load_dwordx4 s[4:7], s[0:1], {KA_X}")
    A(f"s_load_dwordx4 s[8:11], s[0:1], {KA_SIM}")
    A(f"s_load_dwordx2 s[12:13], s[0:1], {KA_HIM}")
    A(f"s_load_dwordx4 s[64:67], s[0:1], {KA_W1}")
    A(f"s_load_dwordx4 s[68:71], s[0:1], {KA_OUT}")
    A(f"s_load_dwordx2 s[16:17], s[0:1], {KA_WS}")
    A("v_lshrrev_b32 v2, 6, v0\nv_and_b32 v1, 63, v0\ns_nop 0\nv_readfirstlane_b32 s3, v2")
    if opt("CODEPF", 1) and opt("CPMODE", 1) in (0, 1, 3):
        A(f"s_nop 3\ns_cmp_eq_u32 s3, {CPW}\ns_cbranch_scc0 L_nocp")
        code_prefetch(A, "a", opt("CPMODE", 1))
        A("L_nocp:")
    A("s_and_b32 s24, s2, 7\ns_lshr_b32 s25, s2, 3\ns_lshr_b32 s27, s25, 3\ns_and_b32 s28, s25, 7")
    if opt("MAP1", 1):
        A(f"s_lshl_b32 s26, s24, 1\ns_lshr_b32 s29, s25, 4\ns_add_u32 s{S_B}, s26, s29\ns_and_b32 s{S_C}, s25, 15")
    else:
        A(f"s_lshr_b32 s26, s24, 1\ns_lshl_b32 s26, s26, 2\ns_add_u32 s{S_B}, s26, s27")
        A(f"s_and_b32 s26, s24, 1\ns_lshl_b32 s26, s26, 3\ns_add_u32 s{S_C}, s26, s28")
    A(f"s_lshl_b32 s26, s{S_C}, 6\ns_lshl_b32 s29, s{S_C}, 7\ns_sub_u32 s29, s29, 320")
    A(f"s_cmp_lt_u32 s{S_C}, 5\ns_cselect_b32 s{S_F0}, s26, s29")
    A(f"s_lshl_b32 s24, s24, 2\ns_add_u32 s{S_T0}, s24, s27\ns_mov_b32 s{S_CT}, s28")
    A(f"s_mov_b32 s{S_SPIN}, {SPIN_MAX}")
    A(f"s_getreg_b32 s{S_XCC}, hwreg(HW_REG_XCC_ID)\ns_and_b32 s{S_XCC}, s{S_XCC}, 15")
    if opt("DBGT"): A("s_memrealtime s[88:89]")
    stamp_init(A)
    if opt("T0STAMP"): stamp(A, force=True)
    if opt("P2ONLY"): args_ready(A)

def args_ready(A):
    A("s_waitcnt lgkmcnt(0)")
    if opt("CLK"): A("s_memtime s[88:89]\ns_waitcnt lgkmcnt(0)")
    A(f"s_mov_b32 s62, {EP_OFF}\ns_load_dword s{S_E}, s[{WS}:{WS+1}], s62")
    stamp(A, 0, force=True)

def jobs_issue(A):
    A("s_cmp_eq_u32 s3, 0\ns_cbranch_scc1 J_x_i\ns_cmp_eq_u32 s3, 1\ns_cbranch_scc1 J_c_i")
    args_ready(A)
    srd(A, 36, WS, WS_USED)
    if opt("TLBPF", 1):
        A("s_cmp_eq_u32 s3, 2\ns_cbranch_scc0 J_i_done")
        srd(A, 40, OUT, X_BYTES); srd(A, 44, W2, W2_BYTES)
        A("v_lshlrev_b32 v22, 20, v1")
        A(f"s_mov_b64 exec, {(1 << ((WS_USED >> 20) + 1)) - 1}\nbuffer_load_dword v125, v22, s[36:39], 0 offen {SC}")
        A(f"s_mov_b64 exec, 7\nbuffer_load_dword v126, v22, s[40:43], 0 offen {SC}\nbuffer_load_dword v127, v22, s[44:47], 0 offen\ns_mov_b64 exec, -1")
        if opt("INPF"):
            srd(A, 40, X_, X_BYTES); srd(A, 44, W1, W1_BYTES)
            A("v_lshlrev_b32 v22, 7, v1\ns_mul_i32 s50, s2, 10240\ns_mul_i32 s51, s2, 8704")
            A("buffer_load_dword v124, v22, s[40:43], s50 offen\nbuffer_load_dword v123, v22, s[44:47], s51 offen")
            A("s_add_u32 s50, s50, 8192\ns_add_u32 s51, s51, 8192\ns_mov_b64 exec, 0xffff")
            A("buffer_load_dword v122, v22, s[40:43], s50 offen\ns_mov_b64 exec, 15\nbuffer_load_dword v121, v22, s[44:47], s51 offen\ns_mov_b64 exec, -1")
    A("s_branch J_i_done")
    A("J_x_i:")
    A(f"s_lshr_b32 s48, s{S_C}, 2\ns_and_b32 s49, s{S_C}, 3")
    A(f"s_lshl_b32 s50, s{S_B}, 1\ns_and_b32 s51, s48, 1\ns_add_u32 s50, s50, s51")
    A("s_lshr_b32 s51, s48, 1\ns_lshl_b32 s51, s51, 5\ns_add_u32 s50, s50, s51")
    A("s_lshl_b32 s51, s49, 9\ns_add_u32 s50, s50, s51\ns_mul_i32 s50, s50, 1280")
    A("v_lshrrev_b32 v22, 3, v1\ns_mov_b32 s51, 81920\nv_mul_lo_u32 v22, s51, v22")
    A("v_and_b32 v23, 7, v1\nv_lshlrev_b32 v23, 4, v23\nv_add_u32 v22, v22, v23")
    A(f"v_mov_b32 v20, {LCNT}\nv_mov_b32 v24, 0\nv_mov_b32 v25, 0\nv_mov_b32 v26, 0\nv_mov_b32 v27, 0\nds_write_b128 v20, v[24:27]\nds_write_b128 v20, v[24:27] offset:16")
    args_ready(A)
    srd(A, 24, X_, X_BYTES)
    for i in range(10):
        A(f"buffer_load_dwordx4 v[{32+4*i}:{35+4*i}], v22, s[24:27], s50 offen offset:{128*i}")
    srd(A, 36, WS, WS_USED)
    A("s_branch J_i_done")
    A("J_c_i:")
    A("v_lshrrev_b32 v22, 4, v1\nv_mul_u32_u24 v22, 3456, v22\nv_and_b32 v23, 15, v1\nv_lshlrev_b32 v23, 4, v23\nv_add_u32 v22, v22, v23")
    A(f"s_mul_i32 s50, s{S_B}, {40*3456}\ns_lshl_b32 s51, s{S_F0}, 1\ns_add_u32 s50, s50, s51")
    A(f"s_cmp_eq_u32 s{S_C}, 0\ns_cbranch_scc0 J_c_np")
    A("v_and_b32 v23, 7, v1\nv_lshlrev_b32 v23, 4, v23\nv_bfe_u32 v24, v1, 3, 2\nv_lshlrev_b32 v24, 15, v24\nv_add_u32 v23, v23, v24")
    A(f"v_add_u32 v23, {16384+8192+4096}, v23")
    A("v_mov_b32 v24, 0xbf803f80\nv_mov_b32 v25, 0x3f80bf80\nv_mov_b32 v26, 0xbf803f80\nv_mov_b32 v27, 0x3f80bf80")
    A("ds_write_b128 v23, v[24:27]")
    A("J_c_np:")
    args_ready(A)
    srd(A, 28, W1, W1_BYTES)
    for i in range(10):
        A(f"buffer_load_dwordx4 v[{32+4*i}:{35+4*i}], v22, s[28:31], s50 offen")
        if i < 9: A(f"s_add_u32 s50, s50, {4*3456}")
    srd(A, 36, WS, WS_USED)
    A("J_i_done:")

def dpp_add(A, r, ctrl):
    A(f"v_add_f32_dpp v{r}, v{r}, v{r} {ctrl} row_mask:0xf bank_mask:0xf")

def jobs_finish(A, nG_, tagx):
    nG = tagx
    class _N(str):
        pass
    A("s_cmp_eq_u32 s3, 0\ns_cbranch_scc1 %s\ns_cmp_eq_u32 s3, 1\ns_cbranch_scc1 %s\ns_branch %s" % (f"J_x_{nG}", f"J_c_{nG}", f"J_done_{nG}"))
    A(f"J_x_{nG}:")
    A("v_mov_b32 v22, 0\nv_mov_b32 v23, 0\nv_mov_b32 v24, 0\nv_mov_b32 v25, 0\ns_mov_b32 s52, 0x3f803f80")
    for i in range(10):
        A(f"s_waitcnt vmcnt({9-i+nG_})")
        for k in range(4):
            r = 32 + 4 * i + k
            A(f"v_dot2_f32_bf16 v{22+(k&1)}, v{r}, s52, v{22+(k&1)}")
            A(f"v_dot2_f32_bf16 v{24+(k&1)}, v{r}, v{r}, v{24+(k&1)}")
    A("s_nop 2\nv_add_f32 v22, v22, v23\nv_add_f32 v24, v24, v25\ns_nop 1")
    for ctrl in ["quad_perm:[1,0,3,2]", "quad_perm:[2,3,0,1]", "row_half_mirror"]:
        dpp_add(A, 22, ctrl); dpp_add(A, 24, ctrl); A("s_nop 0")
    A("s_mov_b32 s52, 0x3acccccd\nv_mul_f32 v22, s52, v22\nv_mul_f32 v24, s52, v24")
    A("v_fma_f32 v24, -v22, v22, v24\nv_max_f32 v24, 0, v24\nv_add_f32 v24, 0x3727c5ac, v24\nv_rsq_f32 v23, v24")
    A(f"s_lshl_b32 s52, s{S_B}, 10\ns_lshl_b32 s53, s{S_C}, 5\ns_add_u32 s52, s52, s53\ns_add_u32 s52, s52, {ST_OFF}")
    A("v_lshrrev_b32 v25, 3, v1\nv_lshlrev_b32 v25, 2, v25")
    A("v_and_b32 v26, 7, v1\nv_cmp_eq_u32 vcc, 0, v26\ns_and_saveexec_b64 s[54:55], vcc")
    A(f"buffer_store_dword v22, v25, s[36:39], s52 offen {SC}\nbuffer_store_dword v23, v25, s[36:39], s52 offen offset:512 {SC}")
    A("s_mov_b64 exec, s[54:55]")
    A(f"s_branch J_done_{nG}")
    A(f"J_c_{nG}:")
    for k in range(8): A(f"v_mov_b32 v{72+k}, 0")
    A("s_mov_b32 s52, 0x00003f80\ns_mov_b32 s53, 0x3f800000")
    for i in range(10):
        A(f"s_waitcnt vmcnt({9-i+nG_})")
        for k in range(4):
            r = 32 + 4 * i + k
            A(f"v_dot2_f32_bf16 v{72+2*k}, v{r}, s52, v{72+2*k}")
            A(f"v_dot2_f32_bf16 v{73+2*k}, v{r}, s53, v{73+2*k}")
    A("s_nop 2")
    for sw in ["v_permlane16_swap_b32", "v_permlane32_swap_b32"]:
        for k in range(8): A(f"v_mov_b32 v{80+k}, v{72+k}")
        A("s_nop 0")
        for k in range(8): A(f"{sw} v{72+k}, v{80+k}")
        A("s_nop 0")
        for k in range(8): A(f"v_add_f32 v{72+k}, v{72+k}, v{80+k}")
    A(f"s_lshl_b32 s52, s{S_B}, 13\ns_lshl_b32 s53, s{S_F0}, 2\ns_add_u32 s52, s52, s53\ns_add_u32 s52, s52, {CS_OFF}")
    A(f"v_lshlrev_b32 v22, 5, v1\ns_mov_b32 s53, 16\ns_cmp_lt_u32 s{S_C}, 5\ns_cselect_b32 s53, 8, s53")
    A("v_cmp_gt_u32 vcc, s53, v1\ns_and_saveexec_b64 s[54:55], vcc")
    A(f"buffer_store_dwordx4 v[72:75], v22, s[36:39], s52 offen {SC}\nbuffer_store_dwordx4 v[76:79], v22, s[36:39], s52 offen offset:16 {SC}")
    A("s_mov_b64 exec, s[54:55]")
    A(f"s_branch J_done_{nG}")
    A(f"J_done_{nG}:")
    A(f"s_cmp_ge_u32 s3, 2\ns_cbranch_scc0 J_dn2_{nG}\ns_waitcnt vmcnt(0)")
    if opt("CODEPF", 1) and opt("CPMODE", 1) in (2, 3):
        A(f"s_cmp_eq_u32 s3, {CPW}\ns_cbranch_scc0 J_dn2_{nG}")
        code_prefetch(A, "b" + nG, opt("CPMODE", 1))
    A(f"J_dn2_{nG}:")

def x_addr(A, dst, rowbase_sgpr, tmp):
    A(f"v_and_b32 v{tmp}, 31, v1\nv_add_u32 v{tmp+1}, s{rowbase_sgpr}, v{tmp}\nv_lshlrev_b32 v{tmp+1}, 7, v{tmp+1}")
    A(f"v_bfe_u32 v{tmp}, v1, 1, 3\nv_lshrrev_b32 v{tmp+2}, 5, v1\nv_xor_b32 v{tmp}, v{tmp}, v{tmp+2}")
    A(f"v_lshlrev_b32 v{tmp}, 4, v{tmp}\nv_add_u32 v{dst}, v{tmp+1}, v{tmp}")
    for j in range(1, 4):
        A(f"v_xor_b32 v{dst+j}, {32*j}, v{dst}")
def h_tr_addr(A, dst, tmp):
    A(f"v_bfe_u32 v{tmp}, v1, 5, 1\nv_lshlrev_b32 v{tmp}, 3, v{tmp}\nv_bfe_u32 v{tmp+1}, v1, 2, 2\nv_add_u32 v{tmp}, v{tmp}, v{tmp+1}")
    A(f"v_lshlrev_b32 v{tmp}, 7, v{tmp}")
    A(f"v_bfe_u32 v{tmp+1}, v1, 4, 1\nv_lshlrev_b32 v{tmp+1}, 1, v{tmp+1}\nv_bfe_u32 v{tmp+2}, v1, 1, 1\nv_add_u32 v{tmp+1}, v{tmp+1}, v{tmp+2}")
    A(f"v_bfe_u32 v{tmp+2}, v1, 3, 1\nv_lshlrev_b32 v{tmp+2}, 2, v{tmp+2}\nv_xor_b32 v{tmp+1}, v{tmp+1}, v{tmp+2}")
    A(f"v_lshlrev_b32 v{tmp+1}, 4, v{tmp+1}\nv_add_u32 v{tmp}, v{tmp}, v{tmp+1}")
    A(f"v_and_b32 v{tmp+1}, 1, v1\nv_lshlrev_b32 v{tmp+1}, 3, v{tmp+1}\nv_add_u32 v{dst}, v{tmp}, v{tmp+1}")
def interleave(A, mfmas, fillers, per_gap):
    if opt("NOCOMP1"):
        for f in fillers:
            if not f.startswith("ds_read") and not f.startswith("v_perm"): A(f)
        return
    k = 0
    for i, m in enumerate(mfmas):
        A(m)
        for _ in range(per_gap[i]):
            if k < len(fillers):
                A(fillers[k]); k += 1
    while k < len(fillers):
        A(fillers[k]); k += 1
def h_epilogue_tile(A, acc, mr, cs, tmp, vaddr, soff):
    for i in range(0, 16, 2):
        A(f"v_pk_fma_f32 v[{acc+i}:{acc+i+1}], v[{cs+i}:{cs+i+1}], v[{mr}:{mr+1}], v[{acc+i}:{acc+i+1}] op_sel:[0,0,0] op_sel_hi:[1,0,1] neg_lo:[0,1,0] neg_hi:[0,1,0]")
    for i in range(0, 16, 2):
        A(f"v_pk_mul_f32 v[{acc+i}:{acc+i+1}], v[{acc+i}:{acc+i+1}], v[{mr}:{mr+1}] op_sel:[0,1] op_sel_hi:[1,1]")
    for i in range(0, 16, 2):
        A(f"v_cvt_pk_bf16_f32 v{tmp+i//2}, v{acc+i}, v{acc+i+1}")
    for i in range(8):
        A(f"v_pk_max_i16 v{tmp+i}, v{tmp+i}, 0")
    if opt("LOCALH", 2) != 1:
        A(f"buffer_store_dwordx4 v[{tmp}:{tmp+3}], v{vaddr}, s[36:39], s{soff} offen {SC}")
        A(f"buffer_store_dwordx4 v[{tmp+4}:{tmp+7}], v{vaddr}, s[36:39], s{soff} offen offset:512 {SC}")
        return
    h_epilogue_tile.n += 1
    n = h_epilogue_tile.n
    A(f"s_cmp_eq_u32 s{S_LOCAL}, 1\ns_cbranch_scc1 L_hst{n}_p")
    A(f"buffer_store_dwordx4 v[{tmp}:{tmp+3}], v{vaddr}, s[36:39], s{soff} offen {SC}")
    A(f"buffer_store_dwordx4 v[{tmp+4}:{tmp+7}], v{vaddr}, s[36:39], s{soff} offen offset:512 {SC}")
    A(f"s_branch L_hst{n}_d\nL_hst{n}_p:")
    hst = {0: "", 1: "nt", 2: "sc0", 3: "sc0 nt"}[opt("HST", 0)]
    A(f"buffer_store_dwordx4 v[{tmp}:{tmp+3}], v{vaddr}, s[36:39], s{soff} offen {hst}")
    A(f"buffer_store_dwordx4 v[{tmp+4}:{tmp+7}], v{vaddr}, s[36:39], s{soff} offen offset:512 {hst}")
    A(f"L_hst{n}_d:")
h_epilogue_tile.n = 0
def h_store_voff(A, dst, tmp):
    A(f"v_bfe_u32 v{tmp}, v1, 4, 1\nv_mul_u32_u24 v{tmp}, {58*1024}, v{tmp}")
    A(f"v_lshrrev_b32 v{tmp+1}, 5, v1\nv_lshlrev_b32 v{tmp+1}, 8, v{tmp+1}\nv_add_u32 v{tmp}, v{tmp}, v{tmp+1}")
    A(f"v_and_b32 v{tmp+1}, 15, v1\nv_lshlrev_b32 v{tmp+1}, 4, v{tmp+1}\nv_add_u32 v{dst}, v{tmp}, v{tmp+1}")

def loop_hooks_top(A, tag):
    A(f"s_cmp_eq_u32 s29, s30\ns_cbranch_scc1 {tag}_flag1\n{tag}_flag1_ret:")
def loop_hooks_init(A):
    A(f"s_cmp_lt_u32 s3, 2\ns_cselect_b32 s30, {10 - opt('EARLY_IT', 1)}, 99")
def loop_hooks_ool(A, tag):
    A(f"{tag}_flag1:")
    flag_addr_early(A, 28)
    A("s_waitcnt vmcnt(0)")
    store_flags(A, 28, 1, 48, 30, xcc=True)
    A(f"s_branch {tag}_flag1_ret")

def publish(A, tag, word, kind, vt):
    A("s_waitcnt vmcnt(0)")
    lds_arrive(A, word, vt, 63)
    A(f"s_cmp_eq_u32 s63, 3\ns_cbranch_scc0 {tag}_np")
    if kind == "h":
        flag_addr_h(A, vt - 1); store_flags(A, vt - 1, 1, 48, vt, xcc=True, local=(tag if opt("LOCALF", 1) else None))
    else:
        flag_addr_t(A, vt - 1); store_flags(A, vt - 1, 8, 48, vt)
    A(f"{tag}_np:")

def p1_hh(A):
    A("L_hh:")
    ACC = 128; P, Q = 32, 64
    XB, WB = 2, 6; XC, WC = 8, 12
    A("s_lshr_b32 s24, s3, 1\ns_and_b32 s25, s3, 1")
    A("s_lshl_b32 s26, s24, 6")
    x_addr(A, XB, 26, 20)
    h_tr_addr(A, WB, 20)
    A("s_lshl_b32 s27, s25, 13\ns_add_u32 s27, s27, 16384")
    A(f"v_add_u32 v{WB}, s27, v{WB}\nv_xor_b32 v{WB+1}, 64, v{WB}")
    for i in range(64): A(f"v_mov_b32 v{ACC+i}, 0")
    for j in range(4): A(f"v_mov_b32 v{XC+j}, v{XB+j}")
    for j in range(2): A(f"v_mov_b32 v{WC+j}, v{WB+j}")
    A(f"v_and_b32 v20, 31, v1\nv_add_u32 v20, s26, v20\nv_lshlrev_b32 v20, 2, v20\nv_add_u32 v20, {LST}, v20")
    A(f"v_lshrrev_b32 v21, 5, v1\nv_lshlrev_b32 v21, 4, v21\ns_lshl_b32 s33, s25, 8\ns_add_u32 s33, s33, {LCS}\nv_add_u32 v21, s33, v21")
    h_store_voff(A, 19, 26)
    A(f"s_lshl_b32 s31, s{S_B}, 3\ns_lshl_b32 s32, s24, 1\ns_add_u32 s31, s31, s32\ns_mul_i32 s31, s31, 58")
    A(f"s_lshr_b32 s32, s{S_F0}, 5\ns_lshl_b32 s33, s25, 1\ns_add_u32 s32, s32, s33\ns_add_u32 s31, s31, s32")
    A(f"s_lshl_b32 s31, s31, 10\ns_add_u32 s31, s31, {HF_OFF}")
    jobs_finish(A, 0, 'h')
    epoch_ready(A)
    A("s_mov_b32 s28, 0")
    loop_hooks_init(A)
    def reads(buf, g):
        out = []
        for jj in range(2):
            j = 2 * g + jj; b = buf + 16 * jj
            out.append(f"ds_read_b128 v[{b}:{b+3}], v{XC+j}")
            out.append(f"ds_read_b64_tr_b16 v[{b+8}:{b+9}], v{WC} offset:{j*2048}")
            out.append(f"ds_read_b64_tr_b16 v[{b+10}:{b+11}], v{WC} offset:{j*2048+512}")
            out.append(f"ds_read_b128 v[{b+4}:{b+7}], v{XC+j} offset:4096")
            out.append(f"ds_read_b64_tr_b16 v[{b+12}:{b+13}], v{WC+1} offset:{j*2048}")
            out.append(f"ds_read_b64_tr_b16 v[{b+14}:{b+15}], v{WC+1} offset:{j*2048+512}")
        return out
    def mfmas(buf):
        out = []
        for jj in range(2):
            b = buf + 16 * jj
            for ft in range(2):
                for st in range(2):
                    a = ACC + 16 * (2 * ft + st)
                    out.append(f"{MFMA32} v[{a}:{a+15}], v[{b+8+4*ft}:{b+11+4*ft}], v[{b+4*st}:{b+3+4*st}], v[{a}:{a+15}]")
        return out
    stamp(A, 1)
    A("s_waitcnt lgkmcnt(0)\ns_barrier")
    stamp(A, 2)
    for r in reads(P, 0):
        if not opt("NOCOMP1"): A(r)
    A("s_mov_b32 s29, 10")
    A("L_hh_loop:")
    A.drop = (["v_mfma"] if opt("NOMF1") else []) + (["ds_read"] if opt("NODS1") else []) + (["v_perm"] if opt("NOPERM") else [])
    loop_hooks_top(A, "L_hh")
    A("s_waitcnt lgkmcnt(0)")
    A("s_cmp_eq_u32 s29, 1\ns_cbranch_scc1 L_hh_pre\nL_hh_pre_ret:")
    if opt("HHSTAMP"): stamp(A)
    upd = [f"v_add_u32 v{XC+j}, s28, v{XB+j}" for j in range(4)] + [f"v_add_u32 v{WC+j}, s28, v{WB+j}" for j in range(2)]
    ring = [f"s_add_u32 s28, s28, {RING}", f"s_and_b32 s28, s28, {NS*RING-1}"]
    pat = opt("HHPAT", 0)
    g1 = [[3, 3, 3, 3, 2, 3, 3, 0], [4, 4, 4, 2, 3, 3, 0, 0], [6, 6, 2, 3, 3, 0, 0, 0]][pat]
    g2 = [[3, 3, 3, 3, 0, 0, 0, 0], [4, 4, 4, 0, 0, 0, 0, 0], [6, 6, 0, 0, 0, 0, 0, 0]][pat]
    interleave(A, mfmas(P), reads(Q, 1) + ring + upd, g1)
    if opt("HHSTAMP"): A("s_waitcnt lgkmcnt(0)"); stamp(A)
    A("s_waitcnt lgkmcnt(0)")
    A("s_barrier")
    if opt("HHSTAMP"): stamp(A)
    interleave(A, mfmas(Q), reads(P, 0), g2)
    A.drop = []
    A("s_sub_u32 s29, s29, 1\ns_cmp_lg_u32 s29, 0\ns_cbranch_scc1 L_hh_loop")
    A("s_waitcnt vmcnt(0) lgkmcnt(0)")
    stamp(A, 3)
    A(f"v_readfirstlane_b32 s{S_LOCAL}, v18")
    A("s_nop 7")
    for st in range(2):
        for ft in range(2):
            A(f"s_add_u32 s32, s31, {(st*4*58+ft)*1024}")
            h_epilogue_tile(A, ACC + 16 * (2 * ft + st), 14 + 2 * st, 96 + 16 * ft, 64 + 8 * ((2 * st + ft) & 3), 19, 32)
    stamp(A, 4)
    publish(A, "L_hh_pub", 0, "h", 30)
    stamp(A)
    stamp_flush(A, 0, WS, 9)
    A("s_endpgm")
    loop_hooks_ool(A, "L_hh")
    A("L_hh_pre:")
    A("ds_read_b32 v14, v20\nds_read_b32 v15, v20 offset:512\nds_read_b32 v16, v20 offset:128\nds_read_b32 v17, v20 offset:640")
    A(f"v_mov_b32 v18, {LCNT + 12}\nds_read_b32 v18, v18")
    for ft in range(2):
        for q in range(4):
            b = 96 + 16 * ft + 4 * q
            A(f"ds_read_b128 v[{b}:{b+3}], v21 offset:{ft*128+q*32}")
    A("s_branch L_hh_pre_ret")

def p1_mx(A):
    A("L_mx:")
    P, Q = 32, 72
    EV, OD = 112, 116
    CE, CO, SE, SO = 120, 124, 128, 132
    HA, HB = 136, 152
    EC, ES, OC, OS = 168, 184, 200, 216
    G = 232
    XAB, WHB = 2, 6
    XAC, XBC, DAC, WHC = 7, 11, 15, 19
    A("v_and_b32 v24, 31, v1\nv_cvt_f32_u32 v24, v24\nv_lshrrev_b32 v25, 5, v1\nv_cvt_f32_u32 v25, v25")
    A("v_mul_f32 v25, 0x3e000000, v25\nv_mul_f32 v25, v25, v24")
    for p in range(2):
        for uh in range(2):
            for u2 in range(2):
                for k in range(2):
                    c = 16 * p + 8 * uh + 2 * u2 + k
                    import struct
                    lit = struct.unpack("<I", struct.pack("<f", c / 32.0))[0]
                    A(f"v_fmamk_f32 v26, v24, {lit:#x}, v25\nv_fract_f32 v26, v26")
                    A(f"v_cos_f32 v{28+k}, v26\nv_sin_f32 v{30+k}, v26")
                A("s_nop 0")
                A(f"v_cvt_pk_bf16_f32 v{G+4*p+2*uh+u2}, v28, v29\nv_cvt_pk_bf16_f32 v{G+16+4*p+2*uh+u2}, v30, v31")
    for i in range(8):
        A(f"v_xor_b32 v{G+8+i}, 0x80008000, v{G+16+i}")
    A("s_lshr_b32 s24, s3, 1\ns_and_b32 s25, s3, 1")
    A("s_lshl_b32 s26, s3, 5\ns_xor_b32 s27, s26, 32")
    x_addr(A, XAB, 26, 24)
    h_tr_addr(A, WHB, 24)
    A(f"s_lshl_b32 s30, s25, 6\nv_xor_b32 v{WHB}, s30, v{WHB}\nv_add_u32 v{WHB}, 16384, v{WHB}")
    for i in range(96): A(f"v_mov_b32 v{HA+i}, 0")
    A("s_lshl_b32 s31, s3, 12\ns_sub_u32 s31, 24576, s31")
    def upd(js=(0, 1, 2, 3), wh=True):
        o = [f"v_add_u32 v{XAC+j}, s28, v{XAB+j}" for j in js] + ([f"v_add_u32 v{WHC}, s28, v{WHB}"] if wh else [])
        o += [f"v_xor_b32 v{XBC+j}, 0x1000, v{XAC+j}" for j in js]
        o += [f"v_add_u32 v{DAC+j}, s31, v{XAC+j}" for j in js]
        return o
    A("s_mov_b32 s28, 0")
    for t in upd(): A(t)
    jobs_finish(A, 0, 'm')
    epoch_ready(A)
    loop_hooks_init(A)
    A("s_mov_b32 s34, 0x05040100\ns_mov_b32 s35, 0x07060302")
    def reads(buf, m):
        out = []
        for jj in range(2):
            j = 2 * m + jj
            out.append(f"ds_read_b128 v[{buf+4*jj}:{buf+4*jj+3}], v{XAC+j}")
        for jj in range(2):
            j = 2 * m + jj
            out.append(f"ds_read_b64_tr_b16 v[{buf+16+4*jj}:{buf+17+4*jj}], v{WHC} offset:{j*2048}")
            out.append(f"ds_read_b64_tr_b16 v[{buf+18+4*jj}:{buf+19+4*jj}], v{WHC} offset:{j*2048+512}")
            out.append(f"ds_read_b128 v[{buf+8+4*jj}:{buf+11+4*jj}], v{XBC+j}")
        for jj in range(2):
            j = 2 * m + jj
            out.append(f"ds_read_b128 v[{buf+24+4*jj}:{buf+27+4*jj}], v{DAC+j}")
            out.append(f"ds_read_b128 v[{buf+32+4*jj}:{buf+35+4*jj}], v{DAC+j} offset:4096")
        return out
    def perms(src, e, o):
        ev = [f"v_perm_b32 v{e+k}, v{src+2*k+1}, v{src+2*k}, s34" for k in range(4)]
        od = [f"v_perm_b32 v{o+k}, v{src+2*k+1}, v{src+2*k}, s35" for k in range(4)]
        return ev, od
    def half(cur, nxt, m_next, extra):
        rd = reads(nxt, m_next)
        if opt("NOCOMP1"):
            for t in extra: A(t)
            return
        xe, xo = perms(cur, EV, OD); ce, co = perms(cur + 24, CE, CO); se, so = perms(cur + 32, SE, SO)
        H = []
        for jj in range(2):
            w = cur + 16 + 4 * jj
            H.append(f"{MFMA32} v[{HA}:{HA+15}], v[{w}:{w+3}], v[{cur+4*jj}:{cur+4*jj+3}], v[{HA}:{HA+15}]")
            H.append(f"{MFMA32} v[{HB}:{HB+15}], v[{w}:{w+3}], v[{cur+8+4*jj}:{cur+11+4*jj}], v[{HB}:{HB+15}]")
        Dm = [f"{MFMA32} v[{EC}:{EC+15}], v[{EV}:{EV+3}], v[{CE}:{CE+3}], v[{EC}:{EC+15}]",
              f"{MFMA32} v[{OC}:{OC+15}], v[{OD}:{OD+3}], v[{CO}:{CO+3}], v[{OC}:{OC+15}]",
              f"{MFMA32} v[{ES}:{ES+15}], v[{EV}:{EV+3}], v[{SE}:{SE+3}], v[{ES}:{ES+15}]",
              f"{MFMA32} v[{OS}:{OS+15}], v[{OD}:{OD+3}], v[{SO}:{SO+3}], v[{OS}:{OS+15}]"]
        if opt("MXSCHED", 1):
            ex = list(extra)
            def take(n):
                t = ex[:n]; del ex[:n]; return t
            pad = lambda n: (take(n) + ["s_nop 0"] * n)[:n]
            ms = H + [Dm[0], Dm[2], Dm[1], Dm[3]]
            gaps = [xe[0:2] + rd[0:3], xe[2:4] + rd[3:6], ce[0:2] + rd[6:9], ce[2:4] + rd[9:12],
                    se + xo[0:2], xo[2:4] + co + pad(2), so + pad(2), None]
            gaps[7] = ex
        else:
            gaps = [xe + rd[0:2], ce + rd[2:4], xo + rd[4:6], co + rd[6:8], se + rd[8:10], so + rd[10:12], extra[:8], extra[8:]]
            ms = H + Dm
        for i in range(8):
            A(ms[i])
            for t in gaps[i]: A(t)
    stamp(A, 1)
    A("s_waitcnt lgkmcnt(0)\ns_barrier")
    stamp(A, 2)
    for r in reads(P, 0):
        if not opt("NOCOMP1"): A(r)
    A("s_mov_b32 s29, 10")
    A("L_mx_loop:")
    A.drop = (["v_mfma"] if opt("NOMF1") else []) + (["ds_read"] if opt("NODS1") else []) + (["v_perm"] if opt("NOPERM") else [])
    loop_hooks_top(A, "L_mx")
    A("s_waitcnt lgkmcnt(0)")
    if opt("HHSTAMP"): stamp(A)
    ring = [f"s_add_u32 s28, s28, {RING}", f"s_and_b32 s28, s28, {NS*RING-1}"]
    if opt("MXSCHED", 1):
        half(P, Q, 1, ring + upd((0, 1), True))
        if opt("HHSTAMP"): A("s_waitcnt lgkmcnt(0)"); stamp(A)
        A("s_waitcnt lgkmcnt(0)")
        A("s_barrier")
        if opt("HHSTAMP"): stamp(A)
        half(Q, P, 0, upd((2, 3), False))
    else:
        half(P, Q, 1, ring + upd())
        A("s_waitcnt lgkmcnt(0)")
        A("s_barrier")
        half(Q, P, 0, [])
    A.drop = []
    A("s_sub_u32 s29, s29, 1\ns_cmp_lg_u32 s29, 0\ns_cbranch_scc1 L_mx_loop")
    A("s_waitcnt vmcnt(0) lgkmcnt(0)")
    stamp(A, 3)
    A(f"v_and_b32 v24, 31, v1\nv_add_u32 v25, s26, v24\nv_lshlrev_b32 v25, 2, v25\nv_add_u32 v25, {LST}, v25")
    A(f"v_add_u32 v26, s27, v24\nv_lshlrev_b32 v26, 2, v26\nv_add_u32 v26, {LST}, v26")
    A("ds_read_b32 v2, v25\nds_read_b32 v3, v25 offset:512\nds_read_b32 v4, v26\nds_read_b32 v5, v26 offset:512")
    A(f"v_mov_b32 v7, {LCNT + 12}\nds_read_b32 v7, v7")
    A(f"v_lshrrev_b32 v27, 5, v1\nv_lshlrev_b32 v27, 4, v27\ns_lshl_b32 s30, s25, 7\ns_add_u32 s30, s30, {LCS}\nv_add_u32 v28, s30, v27")
    for q in range(4):
        A(f"ds_read_b128 v[{32+4*q}:{35+4*q}], v28 offset:{q*32}")
    A(f"s_lshl_b32 s30, s26, 2\ns_add_u32 s30, s30, {LST+512}\nv_add_u32 v28, s30, v27")
    for q in range(4):
        A(f"ds_read_b128 v[{48+4*q}:{51+4*q}], v28 offset:{q*32}")
    h_store_voff(A, 6, 28)
    A(f"s_lshl_b32 s31, s{S_B}, 3\ns_lshl_b32 s30, s24, 1\ns_add_u32 s31, s31, s30\ns_mul_i32 s31, s31, 58")
    A(f"s_lshr_b32 s30, s{S_F0}, 5\ns_add_u32 s30, s30, s25\ns_add_u32 s31, s31, s30")
    A(f"s_lshl_b32 s31, s31, 10\ns_add_u32 s31, s31, {HF_OFF}")
    A(f"s_mul_i32 s30, s25, {4*58*1024}\ns_add_u32 s32, s31, s30")
    A(f"s_xor_b32 s30, s25, 1\ns_mul_i32 s30, s30, {4*58*1024}\ns_add_u32 s33, s31, s30")
    A("s_waitcnt lgkmcnt(0)")
    A(f"v_readfirstlane_b32 s{S_LOCAL}, v7")
    A("s_nop 7")
    h_epilogue_tile(A, HA, 2, 32, 64, 6, 32)
    h_epilogue_tile(A, HB, 4, 32, 72, 6, 33)
    stamp(A, 4)
    if opt("MXPUB", 0): publish(A, "L_mx_pubh", 0, "h", 30)
    stamp(A)
    R = 48
    for i in range(0, 16, 2):
        for a in (EC, OC, ES, OS):
            A(f"v_pk_mul_f32 v[{a+i}:{a+i+1}], v[{a+i}:{a+i+1}], v[{R+i}:{R+i+1}]")
    T0, T1 = 80, 96
    for i in range(0, 16, 2):
        A(f"v_pk_add_f32 v[{T0+i}:{T0+i+1}], v[{EC+i}:{EC+i+1}], v[{OC+i}:{OC+i+1}]")
        A(f"v_pk_add_f32 v[{EC+i}:{EC+i+1}], v[{EC+i}:{EC+i+1}], v[{OC+i}:{OC+i+1}] neg_lo:[0,1] neg_hi:[0,1]")
        A(f"v_pk_add_f32 v[{T1+i}:{T1+i+1}], v[{ES+i}:{ES+i+1}], v[{OS+i}:{OS+i+1}]")
        A(f"v_pk_add_f32 v[{OC+i}:{OC+i+1}], v[{OS+i}:{OS+i+1}], v[{ES+i}:{ES+i+1}] neg_lo:[0,1] neg_hi:[0,1]")
    A("v_and_b32 v24, 31, v1\nv_cmp_eq_u32 s[40:41], 0, v24\ns_nop 3")
    A(f"s_cmp_eq_u32 s{S_C}, 0\ns_cselect_b64 s[40:41], s[40:41], 0\ns_cbranch_scc0 L_mx_nofix")
    for i in range(16):
        A(f"v_cndmask_b32 v{T0+i}, v{T0+i}, v{ES+i}, s[40:41]")
        A(f"v_cndmask_b32 v{T1+i}, v{T1+i}, v{OS+i}, s[40:41]")
        A(f"v_cndmask_b32_e64 v{OC+i}, v{OC+i}, 0, s[40:41]")
    A("L_mx_nofix:")
    ZB = 32
    for k, a in enumerate([T0, T1, EC, OC]):
        for i in range(0, 16, 2):
            A(f"v_cvt_pk_bf16_f32 v{ZB+8*k+i//2}, v{a+i}, v{a+i+1}")
    Fr = lambda p: f"v[{G+4*p}:{G+4*p+3}]"
    Fi = lambda p: f"v[{G+8+4*p}:{G+8+4*p+3}]"
    nFi = lambda p: f"v[{G+16+4*p}:{G+16+4*p+3}]"
    Z = lambda k, p: f"v[{ZB+8*k+4*p}:{ZB+8*k+4*p+3}]"
    TR = [EC, OC]; TI = [ES, OS]
    A("s_nop 1")
    for st_ in range(2):
        zr, zi = 2 * st_, 2 * st_ + 1
        tr, ti = TR[st_], TI[st_]
        A(f"{MFMA32} v[{tr}:{tr+15}], {Fr(0)}, {Z(zr,0)}, 0")
        A(f"{MFMA32} v[{ti}:{ti+15}], {Fr(0)}, {Z(zi,0)}, 0")
        A(f"{MFMA32} v[{tr}:{tr+15}], {Fr(1)}, {Z(zr,1)}, v[{tr}:{tr+15}]")
        A(f"{MFMA32} v[{ti}:{ti+15}], {Fr(1)}, {Z(zi,1)}, v[{ti}:{ti+15}]")
        A(f"{MFMA32} v[{tr}:{tr+15}], {nFi(0)}, {Z(zi,0)}, v[{tr}:{tr+15}]")
        A(f"{MFMA32} v[{ti}:{ti+15}], {Fi(0)}, {Z(zr,0)}, v[{ti}:{ti+15}]")
        A(f"{MFMA32} v[{tr}:{tr+15}], {nFi(1)}, {Z(zi,1)}, v[{tr}:{tr+15}]")
        A(f"{MFMA32} v[{ti}:{ti+15}], {Fi(1)}, {Z(zr,1)}, v[{ti}:{ti+15}]")
    if not opt("MXPUB", 0): publish(A, "L_mx_pubh", 0, "h", 30)
    else: A("s_nop 7")
    stamp(A)
    A(f"v_and_b32 v24, 31, v1\nv_lshlrev_b32 v24, 2, v24\nv_lshrrev_b32 v25, 5, v1\nv_lshlrev_b32 v25, 9, v25\nv_add_u32 v24, v24, v25")
    A(f"s_lshl_b32 s30, s3, 13\ns_add_u32 s30, s30, {LX}\nv_add_u32 v24, s30, v24")
    A("s_nop 7")
    for st_ in range(2):
        for i in range(16):
            A(f"v_cvt_pk_bf16_f32 v{64+16*st_+i}, v{TR[st_]+i}, v{TI[st_]+i}")
    for st_ in range(2):
        for i in range(16):
            t0 = (i & 3) + 8 * (i >> 2)
            A(f"ds_write_b32 v24, v{64+16*st_+i} offset:{st_*4096+t0*128}")
    A("s_waitcnt lgkmcnt(0)")
    stamp(A)
    lds_arrive(A, 1, 30, 63)
    A(f"v_mov_b32 v30, {LCNT+4}")
    A("L_mx_rv:\nds_read_b32 v31, v30\ns_waitcnt lgkmcnt(0)\ns_nop 0\nv_readfirstlane_b32 s63, v31\ns_nop 3\ns_cmp_ge_u32 s63, 4\ns_cbranch_scc1 L_mx_rv_ok")
    A(f"s_sub_u32 s{S_SPIN}, s{S_SPIN}, 1\ns_cmp_eq_u32 s{S_SPIN}, 0\ns_cbranch_scc0 L_mx_rv\nL_mx_rv_ok:")
    A("v_and_b32 v24, 31, v1\nv_lshlrev_b32 v24, 2, v24\nv_lshrrev_b32 v25, 5, v1\nv_lshlrev_b32 v26, 7, v25\nv_add_u32 v24, v24, v26")
    A(f"s_lshl_b32 s30, s3, 10\ns_add_u32 s30, s30, {LX}\nv_add_u32 v24, s30, v24")
    for st_ in range(2):
        for n in range(4):
            b = 64 + 16 * st_ + 4 * n
            for w in range(4):
                A(f"ds_read_b32 v{b+w}, v24 offset:{w*8192+st_*4096+n*256}")
    A(f"v_and_b32 v26, 31, v1\ns_lshl_b32 s30, s{S_C}, 5\nv_add_u32 v27, s30, v26")
    A("v_mov_b32 v28, 160\nv_cndmask_b32 v29, v27, v28, s[40:41]")
    A("v_sub_u32 v27, 320, v27")
    A(f"s_mov_b32 s30, {TF_T0}\nv_mul_lo_u32 v25, s30, v25")
    A("v_lshlrev_b32 v29, 4, v29\nv_add_u32 v29, v29, v25")
    A("v_lshlrev_b32 v27, 4, v27\nv_add_u32 v27, v27, v25")
    A(f"s_mul_i32 s30, s3, {8*TF_T0}\ns_mul_i32 s31, s{S_B}, {TF_ROW}\ns_add_u32 s30, s30, s31\ns_add_u32 s30, s30, {TF_OFF}")
    A("s_waitcnt lgkmcnt(0)")
    for st_ in range(2):
        for n in range(4):
            b = 64 + 16 * st_ + 4 * n
            A(f"s_add_u32 s31, s30, {2*n*TF_T0}")
            if not opt("NOTST"): A(f"buffer_store_dwordx4 v[{b}:{b+3}], v{29 if st_ == 0 else 27}, s[36:39], s31 offen {'' if opt('TPLAIN') else SC}")
    stamp(A)
    A(f"s_cmp_eq_u32 s{S_C}, 0\ns_cbranch_scc0 L_mx_noz\ns_cmp_eq_u32 s3, 0\ns_cbranch_scc0 L_mx_noz")
    A(f"s_mov_b32 s30, {TF_T0}\nv_and_b32 v24, 31, v1\nv_mul_lo_u32 v24, s30, v24")
    A("v_mov_b32 v4, 0\nv_mov_b32 v5, 0\nv_mov_b32 v6, 0\nv_mov_b32 v7, 0")
    A(f"s_mul_i32 s31, s{S_B}, {TF_ROW}\ns_add_u32 s31, s31, {TF_OFF}")
    A(f"buffer_store_dwordx4 v[4:7], v24, s[36:39], s31 offen {SC}")
    A("L_mx_noz:")
    publish(A, "L_mx_pubt", 2, "t", 30)
    stamp(A)
    stamp_flush(A, 0, WS, 9)
    A("s_endpgm")
    loop_hooks_ool(A, "L_mx")

def loader(A):
    A("L_loader:")
    if opt("PRIOL"): A(f"s_setprio {opt('PRIOL')}")
    if opt("PRIOL1"): A(f"s_setprio {opt('PRIOL1')}")
    A(f"s_sub_u32 s{S_J}, s3, 4")
    for r in [11, 12, 13, 52, 53, 54, 55, 56, 57, 58, 59]: A(f"v_mov_b32 v{r}, 0")
    A("s_mov_b32 s58, 0\ns_mov_b32 s59, 99\ns_mov_b32 s63, 0")
    RS = 1280 if opt("XLIN") else 81920
    A(f"v_lshrrev_b32 v4, 3, v1\ns_mov_b32 s40, {RS}\nv_mul_lo_u32 v8, s40, v4")
    A("v_and_b32 v5, 7, v1\nv_lshrrev_b32 v6, 4, v1\nv_xor_b32 v5, v5, v6\nv_lshlrev_b32 v5, 4, v5")
    A("v_add_u32 v2, v8, v5\nv_xor_b32 v7, 64, v5")
    A(f"v_add_u32 v3, v8, v7\nv_add_u32 v3, {8*RS}, v3")
    A(f"s_lshl_b32 s40, s{S_B}, 1\ns_and_b32 s41, s{S_J}, 1\ns_add_u32 s40, s40, s41")
    A(f"s_lshr_b32 s41, s{S_J}, 1\ns_lshl_b32 s41, s41, 5\ns_add_u32 s40, s40, s41")
    if opt("XLIN"):
        A(f"s_lshl_b32 s40, s{S_B}, 2\ns_add_u32 s40, s40, s{S_J}\ns_mul_i32 s40, s40, {32*1280}\ns_add_u32 s41, s40, {16*1280}")
    else:
        A(f"s_mul_i32 s40, s40, 1280\ns_add_u32 s41, s40, {16*81920}")
    A("s_mov_b64 s[56:57], -1")
    A(f"s_cmp_lt_u32 s{S_C}, 5\ns_cbranch_scc0 L_ld_H")
    A(f"s_cmp_ge_u32 s{S_J}, 2\ns_cbranch_scc0 L_ld_H")
    A(f"s_and_b32 s50, s{S_J}, 1\ns_add_u32 s50, s50, 1\ns_mov_b32 s30, {HID_BYTES}")
    A("v_mul_u32_u24 v8, 1280, v4\nv_add_u32 v9, v8, v5")
    A(f"v_add_u32 v10, v8, v7\nv_add_u32 v10, {8*1280}, v10")
    A(f"s_mul_i32 s42, s{S_C}, {32*1280}")
    A(f"s_mov_b32 s44, s42\ns_mov_b32 s45, s42\ns_add_u32 s46, s42, {16*1280}\ns_add_u32 s47, s42, {16*1280}")
    A("s_mov_b32 s43, 128")
    A(f"s_cmp_eq_u32 s{S_C}, 0\ns_cbranch_scc0 L_ld_go\ns_cmp_eq_u32 s{S_J}, 3\ns_cbranch_scc0 L_ld_go")
    A("s_mov_b32 s56, 0xffffff00")
    A("s_branch L_ld_go")
    A("L_ld_H:")
    A(f"s_mov_b32 s50, 0\ns_mov_b32 s30, {W1_BYTES}")
    A("v_mul_u32_u24 v8, 3456, v4")
    A("v_and_b32 v9, 7, v1\nv_bfe_u32 v10, v1, 4, 1\nv_lshlrev_b32 v10, 2, v10\nv_xor_b32 v9, v9, v10")
    A("v_lshlrev_b32 v9, 4, v9\nv_add_u32 v9, v8, v9\nv_mov_b32 v10, v9")
    A(f"s_and_b32 s42, s{S_J}, 1\ns_mul_i32 s42, s42, {32*3456}")
    A(f"s_lshr_b32 s43, s{S_J}, 1\ns_lshl_b32 s43, s43, 6\ns_add_u32 s43, s43, s{S_F0}\ns_lshl_b32 s43, s43, 1")
    A("s_add_u32 s42, s42, s43")
    for q in range(4):
        A(f"s_add_u32 s{44+q}, s42, {8*q*3456}")
    A(f"s_mov_b32 s43, {64*3456}")
    A("L_ld_go:")
    A(f"s_lshl_b32 s48, s{S_J}, 12\ns_mov_b32 s31, 0x20000")
    args_ready(A)
    srd(A, 24, X_, X_BYTES)
    A(f"s_cmp_eq_u32 s50, 1\ns_cselect_b32 s28, s{HRE}, s{W1}\ns_cselect_b32 s29, s{HRE+1}, s{W1+1}")
    A(f"s_cmp_eq_u32 s50, 2\ns_cselect_b32 s28, s{HIM}, s28\ns_cselect_b32 s29, s{HIM+1}, s29")
    def chunk(slot_reg):
        for q in range(0 if opt("NOLOAD1") else 4):
            A(f"s_add_u32 m0, s{slot_reg}, {q*1024}")
            A("s_nop 0")
            A(f"buffer_load_dwordx4 v{2+(q&1)}, s[24:27], s{40+(q>>1)} offen {'nt ' if opt('XNT') else ''}lds")
            A(f"s_add_u32 m0, s{slot_reg}, {16384+q*1024}")
            if q == 0: A("s_mov_b64 exec, s[56:57]")
            else: A("s_nop 0")
            A(f"buffer_load_dwordx4 v{9+(q&1)}, s[28:31], s{44+q} offen {'nt ' if opt('WNT') else ''}lds")
            if q == 0: A("s_mov_b64 exec, -1")
        A("s_add_u32 s40, s40, 128\ns_add_u32 s41, s41, 128")
        for q in range(4):
            A(f"s_add_u32 s{44+q}, s{44+q}, s43")
        A(f"s_add_u32 s{slot_reg}, s{slot_reg}, {RING}\ns_cmp_ge_u32 s{slot_reg}, {NS*RING}\ns_cselect_b32 s52, {NS*RING}, 0\ns_sub_u32 s{slot_reg}, s{slot_reg}, s52")
    A("s_mov_b32 s49, s48")
    chunk(49); chunk(49)
    stamp(A, 1)
    srd(A, 36, WS, WS_USED)
    srd(A, 32, WS, WS_USED)
    A("s_waitcnt lgkmcnt(0)")
    A(f"s_add_u32 s{S_E}, s{S_E}, 1\ns_xor_b32 s{S_EM}, s{S_E}, {MAGIC}")
    A(f"s_cmp_ge_u32 s{S_J}, 2\ns_cbranch_scc0 L_ld_su01")
    A(f"s_sub_u32 s58, s{S_J}, 2\ns_lshl_b32 s59, s{S_T0}, 1\ns_add_u32 s59, s59, s58")
    A("s_mov_b32 s50, 6554\ns_mov_b32 s53, 1280")
    for q in range(5):
        A(f"v_add_u32 v22, {64*q}, v1")
        A("v_mul_lo_u32 v23, s50, v22\nv_lshrrev_b32 v23, 16, v23")
        A("v_mul_u32_u24 v24, 10, v23\nv_sub_u32 v24, v22, v24\nv_lshlrev_b32 v24, 4, v24")
        A(f"v_mul_lo_u32 v23, s53, v23\nv_add_u32 v{52+q}, v23, v24")
    A("v_lshrrev_b32 v23, 4, v1\nv_lshrrev_b32 v24, 1, v23\nv_lshlrev_b32 v24, 4, v24")
    A("v_and_b32 v25, 1, v23\nv_lshlrev_b32 v25, 2, v25\nv_add_u32 v24, v24, v25\nv_bfe_u32 v25, v1, 2, 2\nv_add_u32 v24, v24, v25")
    A("v_mul_u32_u24 v24, 160, v24\nv_and_b32 v25, 3, v1\nv_lshlrev_b32 v25, 3, v25\nv_add_u32 v24, v24, v25")
    A(f"s_mul_i32 s50, s58, 5120\ns_add_u32 s50, s50, {LW}\nv_add_u32 v57, s50, v24")
    A(f"s_lshl_b32 s50, s{S_CT}, 6\ns_add_u32 s50, s50, s59\ns_lshl_b32 s50, s50, 3\ns_add_u32 s50, s50, {FW_OFF}\nv_mov_b32 v58, s50")
    A("s_branch L_ld_sud")
    A("L_ld_su01:")
    A("v_lshlrev_b32 v13, 3, v1\nv_and_b32 v16, 31, v1\nv_lshlrev_b32 v15, 3, v16")
    A(f"s_lshl_b32 s50, s{S_B}, 7\ns_add_u32 s50, s50, {FR1_OFF}\nv_add_u32 v12, s50, v15")
    A(f"s_lshl_b32 s50, s{S_C}, 7\ns_add_u32 s50, s50, {FC1_OFF-128}\nv_add_u32 v15, s50, v15")
    A("v_cmp_le_u32 vcc, 16, v16\ns_nop 1\nv_cndmask_b32 v12, v12, v15, vcc")
    A(f"s_lshl_b32 s50, s{S_CT}, 9\ns_add_u32 s50, s50, {FW_OFF}\nv_add_u32 v11, s50, v13")
    A("L_ld_sud:")
    A("s_waitcnt vmcnt(8)")
    stamp(A, 2)
    A("s_barrier")
    chunk(49)
    A(f"s_cmp_ge_u32 s{S_J}, 2\ns_cbranch_scc1 L_ld_h1w\nL_ld_h1w_ret:")
    A(f"s_cmp_ge_u32 s{S_J}, 2\ns_cbranch_scc1 L_ld_b1w")
    A("s_waitcnt vmcnt(8)\ns_branch L_ld_b1d\nL_ld_b1w:")
    A("s_cmp_ge_u32 s59, 54\ns_cbranch_scc1 L_ld_b1n\ns_waitcnt vmcnt(13)\ns_branch L_ld_b1d\nL_ld_b1n:\ns_waitcnt vmcnt(8)\nL_ld_b1d:")
    A("s_barrier")
    stamp(A)
    pk = opt("POLLK", 5)
    assert pk in (5, 6)
    A(f"s_mov_b32 s53, 99\ns_mov_b32 s54, 99\ns_mov_b32 s55, 0\ns_mov_b32 s79, 99\ns_mov_b32 s81, 99\ns_mov_b32 s82, 99\ns_mov_b32 s83, 0")
    A(f"s_cmp_eq_u32 s{S_J}, 0\ns_cselect_b32 s53, {9-pk}, s53\ns_cselect_b32 s54, {9-pk-2}, s54\ns_cselect_b32 s55, {9-pk-1}, s55\ns_cselect_b32 s81, {9-pk-2}, s81")
    A(f"s_cmp_eq_u32 s{S_J}, 1\ns_cselect_b32 s53, {opt('FWPOLL', 1)}, s53")
    A(f"s_cmp_ge_u32 s{S_J}, 2\ns_cselect_b32 s82, 6, s82\ns_cselect_b32 s79, 3, s79\ns_cselect_b32 s83, 1, s83")
    A("s_mov_b32 s51, 7")
    A("L_ld_loop:")
    A("s_cmp_eq_u32 s51, s54\ns_cbranch_scc1 L_ld_h2\nL_ld_h2_ret:")
    chunk(49)
    A("s_cmp_eq_u32 s51, s79\ns_cbranch_scc1 L_ld_h3\nL_ld_h3_ret:")
    A("s_cmp_eq_u32 s51, s53\ns_cbranch_scc1 L_ld_h1\nL_ld_h1_ret:")
    A("s_cmp_eq_u32 s51, s81\ns_cbranch_scc1 L_ld_h4\nL_ld_h4_ret:")
    A("s_cmp_eq_u32 s51, s82\ns_cbranch_scc1 L_ld_h2w\nL_ld_h2w_ret:")
    A("s_cmp_lt_u32 s51, s55\ns_cbranch_scc1 L_ld_w25")
    A("s_cmp_eq_u32 s83, 0\ns_cbranch_scc1 L_ld_w8")
    A("s_cmp_eq_u32 s51, 6\ns_cbranch_scc1 L_ld_wW\ns_cmp_eq_u32 s51, 5\ns_cbranch_scc1 L_ld_wW")
    A("s_cmp_eq_u32 s51, 3\ns_cbranch_scc1 L_ld_w9\ns_cmp_eq_u32 s51, 2\ns_cbranch_scc1 L_ld_w9")
    A("L_ld_w8:\ns_waitcnt vmcnt(8)\ns_branch L_ld_wd")
    A("L_ld_wW:\ns_cmp_ge_u32 s59, 54\ns_cbranch_scc1 L_ld_w8\ns_waitcnt vmcnt(13)\ns_branch L_ld_wd\nL_ld_w9:\ns_waitcnt vmcnt(9)\ns_branch L_ld_wd")
    A("L_ld_w25:\ns_waitcnt vmcnt(17)\nL_ld_wd:")
    stamp(A)
    A("s_barrier")
    stamp(A)
    A("s_sub_u32 s51, s51, 1\ns_cmp_lg_u32 s51, 0\ns_cbranch_scc1 L_ld_loop")
    A("s_waitcnt vmcnt(0)")
    if not opt("WLATE", 1):
        A(f"s_cmp_eq_u32 s{S_J}, 1\ns_cbranch_scc0 L_ld_no1")
        spin(A, "L_ld_spw", 48, 11, 32, xcc=True)
        A("L_ld_no1:")
    A(f"s_cmp_eq_u32 s{S_J}, 0\ns_cbranch_scc0 L_ld_nored")
    if opt("REDPRIO", 1): A("s_setprio 2")
    for b_ in range(1, 8):
        for k in range(4): A(f"v_add_f32 v{16+k}, v{16+k}, v{16+4*b_+k}")
    for k in range(4): A(f"v_mov_b32 v{20+k}, v{16+k}")
    A("s_nop 1")
    for k in range(4): A(f"v_permlane32_swap_b32 v{16+k}, v{20+k}")
    A("s_nop 0")
    for k in range(4): A(f"v_add_f32 v{16+k}, v{16+k}, v{20+k}")
    A(f"v_add_u32 v13, {LCS}, v13\nds_write_b128 v13, v[16:19]")
    if opt("REDPRIO", 1): A("s_setprio 0")
    A("s_waitcnt lgkmcnt(0)")
    A("L_ld_nored:")
    A("s_barrier")
    stamp(A)
    A("s_barrier")
    A("s_branch L_ld_p2")
    A("L_ld_h1:")
    A(f"s_cmp_eq_u32 s{S_J}, 1\ns_cbranch_scc1 L_ld_h1f")
    A(f"buffer_load_dwordx2 v[14:15], v12, s[32:35], 0 offen {SC}")
    A("s_branch L_ld_h1_ret")
    A("L_ld_h1f:")
    A(f"buffer_load_dwordx2 v[48:49], v11, s[32:35], 0 offen {SC}")
    A("s_branch L_ld_h1_ret")
    A("L_ld_h1w:")
    if opt("NOW"): A("s_branch L_ld_h1w_ret")
    A("s_cmp_ge_u32 s59, 54\ns_cbranch_scc1 L_ld_h1w_ret")
    srd(A, 84, W2, W2_BYTES)
    A(f"s_mul_i32 s50, s59, 40960\ns_mul_i32 s62, s{S_CT}, 160\ns_add_u32 s50, s50, s62")
    A(f"s_mul_i32 s62, s58, 5120\ns_add_u32 s62, s62, {LW}")
    for q in range(5):
        A(f"s_add_u32 m0, s62, {1024*q}\ns_nop 0")
        A(f"buffer_load_dwordx4 v{52+q}, s[84:87], s50 offen lds")
    A("s_branch L_ld_h1w_ret")
    A("L_ld_h2:")
    spin(A, "L_ld_sp", 14, 12, 32, xcc=True)
    A(f"v_and_b32 v50, 16, v1\nv_cmp_eq_u32 s[60:61], 0, v50\nv_cmp_ne_u32 vcc, s{S_XCC}, v15\ns_nop 3\ns_and_b64 vcc, vcc, s[60:61]")
    A(f"s_cmp_eq_u64 vcc, 0\ns_cselect_b32 s62, {1 if opt('LOCALH', 2) and opt('MAP1', 1) else 0}, 0")
    A(f"v_mov_b32 v50, {LCNT + 12}\nv_mov_b32 v51, s62\nds_write_b32 v50, v51")
    A("s_branch L_ld_h2_ret")
    A("L_ld_h4:")
    A(f"s_lshl_b32 s50, s{S_B}, 10\ns_add_u32 s50, s50, {ST_OFF}\ns_mov_b32 m0, {LST}\nv_lshlrev_b32 v13, 4, v1")
    A(f"buffer_load_dwordx4 v13, s[36:39], s50 offen {SC} lds")
    A(f"s_lshl_b32 s50, s{S_F0}, 2\ns_add_u32 s50, s50, {CS_OFF}")
    A("v_and_b32 v13, 31, v1\nv_lshlrev_b32 v13, 4, v13\nv_lshrrev_b32 v14, 5, v1\nv_lshlrev_b32 v14, 13, v14\nv_add_u32 v14, v13, v14")
    for b_ in range(8):
        A(f"buffer_load_dwordx4 v[{16+4*b_}:{19+4*b_}], v14, s[36:39], s50 offen {SC}")
        if b_ < 7: A("s_add_u32 s50, s50, 16384")
    A("s_branch L_ld_h4_ret")
    A("L_ld_h2w:")
    A("v_lshlrev_b32 v22, 4, v1")
    if opt("NOW"): A("s_branch L_ld_h2w_ret")
    A("s_cmp_ge_u32 s59, 54\ns_cbranch_scc1 L_ld_h2w_ret")
    for n in range(5):
        A(f"ds_read_b64_tr_b16 v[{24+4*n}:{25+4*n}], v57 offset:{32*n}")
        A(f"ds_read_b64_tr_b16 v[{26+4*n}:{27+4*n}], v57 offset:{32*n+1280}")
    A(f"s_mul_i32 s50, s{S_CT}, 54\ns_add_u32 s50, s50, s59\ns_mul_i32 s50, s50, 5120\ns_add_u32 s50, s50, {W2F_OFF}")
    A("v_add_u32 v23, 4096, v22\ns_waitcnt lgkmcnt(0)")
    for n in range(4):
        A(f"buffer_store_dwordx4 v[{24+4*n}:{27+4*n}], v22, s[32:35], s50 offen offset:{1024*n} {SC}")
    A(f"buffer_store_dwordx4 v[40:43], v23, s[32:35], s50 offen {SC}")
    A("s_branch L_ld_h2w_ret")
    A("L_ld_h3:")
    store_flags(A, 58, 1, 32, 64, xcc=True)
    A("s_branch L_ld_h3_ret")
    A("L_ld_p2:")
    if opt("PRIOL1"): A("s_setprio 0")
    stamp(A, 3)
    if opt("P1ONLY"):
        stamp_flush(A, 0, WS, 9)
        A("s_endpgm")
    if opt("WLATE", 1):
        A(f"v_mov_b32 v16, {LCNT + 20}")
        A(f"s_cmp_eq_u32 s{S_J}, 1\ns_cbranch_scc0 L_ld_ww")
        spin(A, "L_ld_spw", 48, 11, 32, xcc=True)
        A("v_mov_b32 v17, 1\nds_write_b32 v16, v17\ns_waitcnt lgkmcnt(0)\ns_branch L_ld_wgo")
        A("L_ld_ww:\nds_read_b32 v17, v16\ns_waitcnt lgkmcnt(0)\ns_nop 0\nv_readfirstlane_b32 s50, v17\ns_nop 3\ns_cmp_eq_u32 s50, 1\ns_cbranch_scc1 L_ld_wgo")
        A(f"s_sub_u32 s{S_SPIN}, s{S_SPIN}, 1\ns_cmp_eq_u32 s{S_SPIN}, 0\ns_cbranch_scc0 L_ld_ww")
        A("L_ld_wgo:")
    p2(A)

def p2(A):
    J = S_J
    HSC = "" if opt("HPLAIN") else SC
    WSC = "" if opt("WPLAIN") else SC
    if opt("W2NT"): WSC += " nt"
    ACC = 16
    SET = [96, 132, 168]
    XR = 204
    VP = 214
    acc = lambda nt, a: ACC + 4 * (4 * nt + a)
    srd(A, 24, WS, WS_USED)
    A("v_lshlrev_b32 v2, 4, v1\nv_add_u32 v3, 4096, v2")
    MXLAST = opt("MXLAST", 1)
    if MXLAST:
        A(f"s_add_u32 s44, s{J}, 12\ns_mov_b32 s45, s44")
    else:
        A(f"s_mov_b32 s44, s{J}\ns_mov_b32 s45, s44")
    A(f"s_mul_i32 s49, s{S_CT}, {54*5120}\ns_add_u32 s49, s49, {W2F_OFF}")
    def adv(r):
        A(f"s_add_u32 s{r}, s{r}, 4\ns_cmp_ge_u32 s{r}, 54\ns_cselect_b32 s{r}, s{J}, s{r}")
    def loadB(si):
        b = SET[si]
        A("s_mul_i32 s50, s44, 5120\ns_add_u32 s50, s50, s49")
        for n in range(4):
            A(f"buffer_load_dwordx4 v[{b+4*n}:{b+4*n+3}], v2, s[24:27], s50 offen offset:{1024*n} {WSC}")
        A(f"buffer_load_dwordx4 v[{b+16}:{b+19}], v3, s[24:27], s50 offen {WSC}")
        adv(44)
    NB0 = opt("NB0", 3)
    for si in range(NB0): loadB(si)
    A(f"s_lshr_b32 s50, s{S_T0}, 1\ns_lshl_b32 s50, s50, 7\ns_add_u32 s50, s50, {FH_OFF}")
    if MXLAST:
        A("v_min_u32 v14, 10, v1\nv_add_u32 v14, 5, v14\nv_lshlrev_b32 v14, 3, v14\nv_add_u32 v15, s50, v14")
    else:
        A("v_and_b32 v14, 15, v1\nv_lshlrev_b32 v14, 3, v14\nv_add_u32 v15, s50, v14")
    A(f"s_cmp_eq_u32 s{J}, 0\ns_cbranch_scc0 L_p2_np0")
    A(f"buffer_load_dwordx2 v[{VP}:{VP+1}], v15, s[24:27], 0 offen {SC}")
    A("L_p2_np0:")
    srd(A, 28, WS, 4 * HF_TILE)
    A(f"s_mul_i32 s50, s{S_T0}, {4*HF_TILE}")
    if HF_OFF: A(f"s_add_u32 s50, s50, {HF_OFF}")
    A("s_add_u32 s28, s28, s50\ns_addc_u32 s29, s29, 0")
    srd(A, 32, X_, X_BYTES)
    srd(A, 40, OUT, X_BYTES)
    for a_ in range(4):
        A(f"s_add_u32 s50, s{J}, {a_}\ns_and_b32 s50, s50, 3\ns_mul_i32 s50, s50, {HF_TILE}\nv_add_u32 v{4+a_}, s50, v2")
    RSTR = 336
    A(f"s_lshl_b32 s50, s{J}, 6\nv_add_u32 v8, s50, v1")
    A(f"s_mov_b32 s50, 3277\ns_mul_i32 s38, s{S_T0}, 1280\ns_mul_i32 s39, s{S_CT}, 160\ns_add_u32 s38, s38, s39")
    for n in range(5):
        A(f"v_add_u32 v9, {256*n}, v8\nv_mul_lo_u32 v10, s50, v9\nv_lshrrev_b32 v10, 16, v10")
        A("v_mul_u32_u24 v11, 20, v10\nv_sub_u32 v11, v9, v11")
        A(f"v_mul_u32_u24 v12, {RSTR}, v10\nv_lshlrev_b32 v13, 4, v11\nv_add_u32 v{220+n}, v12, v13")
        A("v_lshrrev_b32 v12, 5, v10\nv_mul_u32_u24 v12, 40960, v12\nv_and_b32 v10, 31, v10\nv_mul_u32_u24 v10, 81920, v10")
        A(f"v_lshlrev_b32 v11, 3, v11\nv_add3_u32 v{225+n}, v10, v12, v11")
    A(f"v_and_b32 v9, 15, v1\nv_mul_u32_u24 v9, {RSTR}, v9\nv_lshrrev_b32 v10, 4, v1\nv_lshlrev_b32 v10, 4, v10\nv_add_u32 v230, v9, v10")
    FFR = 236
    A(f"s_add_u32 s50, s{J}, 2\ns_and_b32 s50, s50, 3\ns_lshl_b32 s50, s50, 3\nv_lshrrev_b32 v9, 4, v1\nv_lshlrev_b32 v9, 1, v9\nv_add_u32 v9, s50, v9")
    A(f"s_mov_b32 s51, 0x3a000000\ns_mov_b32 s52, 0xba000000\ns_cmp_lt_u32 s{S_CT}, 4\ns_cselect_b32 s52, s51, s52")
    A("v_and_b32 v10, 15, v1\nv_lshlrev_b32 v10, 6, v10")
    for a_ in range(4):
        A(f"s_add_u32 s50, s{J}, {a_}\ns_and_b32 s50, s50, 3\ns_lshr_b32 s53, s50, 1\ns_lshl_b32 s53, s53, 5\ns_and_b32 s50, s50, 1\ns_lshl_b32 s50, s50, 10")
        A(f"s_add_u32 s50, s50, s53\ns_add_u32 s50, s50, s{S_T0}\nv_add_u32 v11, s50, v10")
        for k, ds in enumerate([0, 1, 32, 33]):
            A(f"v_add_u32 v12, {ds}, v9\nv_mul_u32_u24 v12, v11, v12\nv_and_b32 v12, 0x7ff, v12\nv_cvt_f32_u32 v12, v12")
            A(f"v_mul_f32 v13, s51, v12\nv_mul_f32 v12, s52, v12\nv_cos_f32 v13, v13\nv_sin_f32 v12, v12\ns_nop 0\nv_cvt_pk_bf16_f32 v{FFR+4*a_+k}, v13, v12")
    def loadA(si):
        b = SET[si] + 20
        A("s_lshl_b32 s50, s45, 10")
        for a_ in range(4):
            A(f"buffer_load_dwordx4 v[{b+4*a_}:{b+4*a_+3}], v{4+a_}, s[28:31], s50 offen {HSC}")
        adv(45)
    def loadT(si):
        b = SET[si]
        A("s_mov_b32 s50, s46")
        for n in range(5):
            A(f"buffer_load_dwordx4 v[{b+4*n}:{b+4*n+3}], v10, s[24:27], s50 offen {SC}")
            if n < 4: A("s_add_u32 s50, s50, s47")
    def mfmas(si):
        b = SET[si]
        for a_ in range(4):
            for nt in range(5):
                c = acc(nt, a_)
                if not opt("NOCOMP2"):
                    A(f"{MFMA16} v[{c}:{c+3}], v[{b+4*nt}:{b+4*nt+3}], v[{b+20+4*a_}:{b+23+4*a_}], v[{c}:{c+3}]")
    def last_step(si):
        b = SET[si]
        def grp(a_):
            for nt in range(5):
                c = acc(nt, a_)
                if not opt("NOCOMP2"):
                    A(f"{MFMA16} v[{c}:{c+3}], v[{b+4*nt}:{b+4*nt+3}], v[{FFR+4*a_}:{FFR+4*a_+3}], v[{c}:{c+3}]")
        def addr(a_):
            A(f"s_add_u32 s50, s{J}, {a_}\ns_and_b32 s50, s50, 3\ns_mul_i32 s50, s50, {16*336}\ns_mul_i32 s51, s{J}, {64*336}\ns_add_u32 s50, s50, s51\nv_add_u32 v{232+a_}, s50, v230")
        def wr(a_):
            for nt in range(5):
                c = acc(nt, a_)
                A(f"ds_write_b128 v{232+a_}, v[{c}:{c+3}] offset:{nt*64}")
        grp(0); addr(0); addr(1); grp(1); addr(2); wr(0); grp(2); addr(3); wr(1); grp(3); A("s_nop 3"); wr(2); A("s_nop 3"); wr(3)
    def xorA(si):
        b = SET[si] + 20
        for k in range(16): A(f"v_xor_b32 v{b+k}, s48, v{b+k}")
        A("s_nop 0")
    for i in range(80): A(f"v_mov_b32 v{ACC+i}, 0")
    A(f"v_lshrrev_b32 v10, 4, v1\nv_mul_u32_u24 v10, {TF_ROW}, v10\nv_and_b32 v11, 15, v1")
    A(f"s_mul_i32 s50, s{S_CT}, 80\nv_add_u32 v12, s50, v11\nv_sub_u32 v13, 576, v12")
    A(f"s_cmp_lt_u32 s{S_CT}, 4\ns_cselect_b64 s[60:61], -1, 0\nv_cndmask_b32 v12, v13, v12, s[60:61]")
    A("v_lshlrev_b32 v12, 4, v12\nv_add_u32 v10, v10, v12")
    A(f"s_sub_u32 s46, 32, s{S_T0}\ns_and_b32 s46, s46, 31\ns_cmp_lt_u32 s{S_CT}, 4\ns_cselect_b32 s46, s{S_T0}, s46")
    A(f"s_mul_i32 s46, s46, {TF_T0}\ns_add_u32 s46, s46, {TF_OFF}")
    A(f"s_mov_b32 s47, 256\ns_mov_b32 s50, -256\ns_cmp_lt_u32 s{S_CT}, 4\ns_cselect_b32 s47, s47, s50\ns_cselect_b32 s50, 0, 1024\ns_cselect_b32 s48, 0x80000000, 0")
    A("s_add_u32 s46, s46, s50")
    A(f"s_add_u32 s50, s{J}, 2\ns_and_b32 s50, s50, 3\ns_mul_i32 s50, s50, {4*TF_ROW}\ns_add_u32 s46, s46, s50")
    A(f"s_lshl_b32 s50, s{S_CT}, 10\ns_add_u32 s50, s50, {FT_OFF}\nv_lshlrev_b32 v12, 3, v1\nv_add_u32 v12, s50, v12")
    A("v_and_b32 v13, 15, v1\nv_lshlrev_b32 v13, 3, v13\nv_add_u32 v13, s50, v13\nv_add_u32 v13, 512, v13")
    A(f"s_lshr_b32 s50, s{S_T0}, 1\ns_lshl_b32 s50, s50, 7\ns_add_u32 s50, s50, {FH_OFF}\nv_min_u32 v9, 4, v1\nv_lshlrev_b32 v9, 3, v9\nv_add_u32 v9, s50, v9")
    A(f"s_cmp_eq_u32 s{J}, 0\ns_cbranch_scc0 L_p2_lw")
    A("s_waitcnt vmcnt(0)")
    if opt("SPINSTAMP") == "L_p2_sp1": stamp(A)
    spin(A, "L_p2_sp1", VP, 15, 24, xcc=True)
    A(f"v_mov_b32 v14, {LCNT + 16}\nv_mov_b32 v15, 1\nds_write_b32 v14, v15\ns_waitcnt lgkmcnt(0)")
    A("s_branch L_p2_go")
    A("L_p2_lw:")
    if opt("P2ONLY"): A("s_branch L_p2_go")
    A(f"v_mov_b32 v14, {LCNT + 16}")
    A("L_p2_lw1:\nds_read_b32 v15, v14\ns_waitcnt lgkmcnt(0)\ns_nop 0\nv_readfirstlane_b32 s50, v15\ns_nop 3\ns_cmp_eq_u32 s50, 1\ns_cbranch_scc1 L_p2_go")
    A(f"s_sleep 1\ns_sub_u32 s{S_SPIN}, s{S_SPIN}, 1\ns_cmp_eq_u32 s{S_SPIN}, 0\ns_cbranch_scc0 L_p2_lw1")
    A("L_p2_go:")
    stamp(A, 5)
    for si in range(NB0): loadA(si)
    for si in range(NB0, 3):
        loadB(si); loadA(si)
    def loadX():
        for n in range(5):
            A(f"buffer_load_dwordx2 v[{XR+2*n}:{XR+2*n+1}], v{225+n}, s[32:35], s38 offen")
    XLATE = opt("XLATE", 1)
    if not XLATE: loadX()
    def step(si, vm, pre):
        A(f"s_waitcnt vmcnt({vm})")
        mfmas(si)
        pre()
    reg = lambda si: (lambda: (loadB(si), loadA(si)))
    order = [(si, 4) for si in range(NB0)] + [(si, 9) for si in range(NB0, 3)] + ([] if XLATE else [(-1, 5)])
    for st_ in range(3):
        idx = max(i for i, (si, n) in enumerate(order) if si == st_)
        younger = sum(n for (si, n) in order[idx+1:]) + 9 * st_
        step(st_, younger, reg(st_))
        if opt("STEPSTAMP"): stamp(A)
    stamp(A)
    if MXLAST: A(f"buffer_load_dwordx2 v[{VP+4}:{VP+5}], v9, s[24:27], 0 offen {SC}")
    A("s_mov_b32 s51, 2")
    A("L_p2_loop:")
    for si in range(3):
        step(si, 18, reg(si))
        if opt("STEPSTAMP"): stamp(A)
    A("s_cmp_eq_u32 s51, 2\ns_cbranch_scc0 L_p2_nt")
    if MXLAST: spin(A, "L_p2_spm", VP + 4, 9, 24, xcc=True)
    if not opt("TLATE", 1):
        A(f"buffer_load_dwordx2 v[{VP}:{VP+1}], v12, s[24:27], 0 offen {SC}\nbuffer_load_dwordx2 v[{VP+2}:{VP+3}], v13, s[24:27], 0 offen {SC}")
    A("L_p2_nt:")
    A("s_sub_u32 s51, s51, 1\ns_cmp_lg_u32 s51, 0\ns_cbranch_scc1 L_p2_loop")
    stamp(A)
    TLATE = opt("TLATE", 1)
    if TLATE:
        A(f"buffer_load_dwordx2 v[{VP}:{VP+1}], v12, s[24:27], 0 offen {SC}\nbuffer_load_dwordx2 v[{VP+2}:{VP+3}], v13, s[24:27], 0 offen {SC}")
    step(0, 18, reg(0))
    def tcheck(tag, epoch):
        spin(A, tag + "2", VP, 12, 24)
        spin(A, tag + "3", VP + 2, 13, 24)
        if epoch:
            A(f"s_cmp_eq_u32 s2, 0\ns_cbranch_scc0 {tag}_noep\ns_cmp_eq_u32 s{J}, 0\ns_cbranch_scc0 {tag}_noep")
            A(f"v_mov_b32 v14, s{S_E}\nv_mov_b32 v15, {EP_OFF}\ns_mov_b64 exec, 1\nbuffer_store_dword v14, v15, s[24:27], 0 offen {SC}\ns_mov_b64 exec, -1")
            A(f"{tag}_noep:")
    if not TLATE: tcheck("L_p2_sp", True)
    stamp(A)
    A(f"s_cmp_lt_u32 s{J}, 2\ns_cbranch_scc0 L_p2_hi")
    step(1, 18, reg(1))
    step(2, 18, lambda: (tcheck("L_p2_lo", True) if TLATE else None, loadT(2), loadX() if XLATE else None))
    xq = 5 if XLATE else 0
    step(0, 14 + xq, lambda: None)
    step(1, 5 + xq, lambda: None)
    A(f"s_waitcnt vmcnt({xq})"); last_step(2)
    A("s_branch L_p2_red")
    A("L_p2_hi:")
    step(1, 18, lambda: ((A("s_waitcnt vmcnt(9)"), tcheck("L_p2_hi", False)) if TLATE else None, loadT(1), loadX() if XLATE else None))
    step(2, 14 + xq, lambda: None)
    step(0, 5 + xq, lambda: None)
    A(f"s_waitcnt vmcnt({xq})"); last_step(1)
    A("L_p2_red:")
    stamp(A)
    A("s_waitcnt lgkmcnt(0)\ns_barrier")
    R0 = 96
    def rd(n):
        for w in range(4):
            r = R0 + 16 * n + 4 * w
            A(f"ds_read_b128 v[{r}:{r+3}], v{220+n} offset:{w*64*336}")
    rd(0); rd(1); rd(2)
    OSC = SC if opt("OUTSC") else ""
    for n in range(5):
        r = R0 + 16 * n; x = XR + 2 * n
        if n == 0: A("s_waitcnt vmcnt(0) lgkmcnt(8)")
        elif n == 1: A("s_waitcnt lgkmcnt(8)")
        elif n == 2: A("s_waitcnt lgkmcnt(8)")
        elif n == 3: A("s_waitcnt lgkmcnt(4)")
        else: A("s_waitcnt lgkmcnt(0)")
        A(f"v_pk_add_f32 v[{r}:{r+1}], v[{r}:{r+1}], v[{r+4}:{r+5}]\nv_pk_add_f32 v[{r+2}:{r+3}], v[{r+2}:{r+3}], v[{r+6}:{r+7}]")
        A(f"v_pk_add_f32 v[{r+8}:{r+9}], v[{r+8}:{r+9}], v[{r+12}:{r+13}]\nv_pk_add_f32 v[{r+10}:{r+11}], v[{r+10}:{r+11}], v[{r+14}:{r+15}]")
        if n + 3 < 5: pass
        A(f"v_lshlrev_b32 v{r+4}, 16, v{x}\nv_and_b32 v{r+5}, 0xffff0000, v{x}\nv_lshlrev_b32 v{r+6}, 16, v{x+1}\nv_and_b32 v{r+7}, 0xffff0000, v{x+1}")
        A(f"v_pk_add_f32 v[{r}:{r+1}], v[{r}:{r+1}], v[{r+8}:{r+9}]\nv_pk_add_f32 v[{r+2}:{r+3}], v[{r+2}:{r+3}], v[{r+10}:{r+11}]")
        A(f"v_pk_add_f32 v[{r}:{r+1}], v[{r}:{r+1}], v[{r+4}:{r+5}]\nv_pk_add_f32 v[{r+2}:{r+3}], v[{r+2}:{r+3}], v[{r+6}:{r+7}]")
        A(f"v_cvt_pk_bf16_f32 v{x}, v{r}, v{r+1}\nv_cvt_pk_bf16_f32 v{x+1}, v{r+2}, v{r+3}")
        A(f"buffer_store_dwordx2 v[{x}:{x+1}], v{225+n}, s[40:43], s38 offen {OSC}")
        if n == 0: rd(3)
        if n == 1: rd(4)
    stamp(A)
    if opt("DBGT"):
        A(f"s_waitcnt vmcnt(0)\ns_memrealtime s[90:91]\ns_waitcnt lgkmcnt(0)")
        A(f"s_cmp_eq_u32 s{S_J}, 1\ns_cbranch_scc0 L_dbg_d\ns_cmp_lt_u32 s2, 8\ns_cbranch_scc0 L_dbg_d")
        srd(A, 92, DBG, 256)
        A("s_lshl_b32 s96, s2, 3\nv_mov_b32 v4, s88\nv_mov_b32 v5, s90\nv_mov_b32 v6, 0\ns_mov_b64 exec, 1\nbuffer_store_dwordx2 v[4:5], v6, s[92:95], s96 offen\ns_waitcnt vmcnt(0)")
        A("L_dbg_d:")
    if opt("CLK") and asmlib.PROFILE:
        A("s_memtime s[90:91]\ns_waitcnt lgkmcnt(0)\ns_sub_u32 s90, s90, s88\ns_mov_b32 m0, 62\nv_writelane_b32 v0, s90, m0")
    stamp_flush(A, 0, WS, 9)
    A("s_endpgm")

def gen(A, name):
    global KNAME
    KNAME = name
    kernel_head(A, name)
    entry(A)
    if opt("P2ONLY"):
        A(f"s_mov_b32 s{S_SPIN}, 1\ns_cmp_lt_u32 s3, 4\ns_cbranch_scc1 L_end\ns_sub_u32 s{S_J}, s3, 4\ns_waitcnt lgkmcnt(0)\ns_branch L_ld_p2")
    A("s_cmp_ge_u32 s3, 4\ns_cbranch_scc1 L_loader")
    if opt("PRIOC"): A(f"s_setprio {opt('PRIOC')}")
    jobs_issue(A)
    A(f"s_cmp_lt_u32 s{S_C}, 5\ns_cbranch_scc1 L_mx")
    p1_hh(A)
    p1_mx(A)
    loader(A)
    A("L_end:\ns_endpgm\nL_code_end:")
```

```python
from asmlib import *
import asmlib
from layout import *

MFMA32 = "v_mfma_f32_32x32x16_bf16"
MFMA16 = "v_mfma_f32_16x16x32_bf16"
RING = 32768; NS = 4
SLOT = 20480; NS2 = 6
LX = NS2 * SLOT
LW = 132 * 1024
LST = 152 * 1024
LCS = LST + 1024
LCNT = LST + 2048
LDS_TOTAL = LCNT + 64
X_, SRE, SIM, HRE, HIM, WS = 4, 6, 8, 10, 12, 16
W1, W2, OUT, DBG = 64, 66, 68, 70
S_B, S_C, S_F0, S_J = 18, 19, 20, 21
S_T0, S_CT = 72, 73
S_SPIN = 74
SC = "sc1"
SPIN_MAX = 200000
CPW = 3

MAGIC = 0x5A3C96E1
S_E, S_EM = 75, 76
S_XCC = 77
S_LOCAL = 78

def spin(A, name, vp, vaddr, srdp, xcc=False):
    A(f"{name}:")
    if xcc:
        A(f"v_xor_b32 v{vp+1}, s{S_EM}, v{vp+1}\nv_cmp_ne_u32 vcc, s{S_E}, v{vp}\nv_cmp_lt_u32 s[60:61], 15, v{vp+1}\ns_nop 3\ns_or_b64 vcc, vcc, s[60:61]")
    else:
        A(f"v_cmp_ne_u32 vcc, s{S_E}, v{vp}\nv_cmp_ne_u32 s[60:61], s{S_EM}, v{vp+1}\ns_nop 3\ns_or_b64 vcc, vcc, s[60:61]")
    A(f"s_cbranch_vccz {name}_ok")
    if opt("P2ONLY"): A(f"s_branch {name}_ok")
    A(f"s_sub_u32 s{S_SPIN}, s{S_SPIN}, 1\ns_cmp_eq_u32 s{S_SPIN}, 0\ns_cbranch_scc1 {name}_ok")
    A(f"s_sleep {opt('SLEEP', 4)}")
    A(f"buffer_load_dwordx2 v[{vp}:{vp+1}], v{vaddr}, s[{srdp}:{srdp+3}], 0 offen {SC}\ns_waitcnt vmcnt(0)")
    if opt("SPINSTAMP") == name: stamp(A)
    A(f"s_branch {name}\n{name}_ok:")

def store_flags(A, vaddr, nlanes, srdp, vt, xcc=False, local=None):
    if xcc:
        A(f"s_xor_b32 s62, s{S_EM}, s{S_XCC}\nv_mov_b32 v{vt}, s{S_E}\nv_mov_b32 v{vt+1}, s62\ns_mov_b64 exec, {(1 << nlanes) - 1}")
    else:
        A(f"v_mov_b32 v{vt}, s{S_E}\nv_mov_b32 v{vt+1}, s{S_EM}\ns_mov_b64 exec, {(1 << nlanes) - 1}")
    if local:
        A(f"s_cmp_eq_u32 s{S_LOCAL}, 1\ns_cbranch_scc1 {local}_fp")
    A(f"buffer_store_dwordx2 v[{vt}:{vt+1}], v{vaddr}, s[{srdp}:{srdp+3}], 0 offen {SC}")
    if local:
        A(f"s_branch {local}_fd\n{local}_fp:")
        A(f"buffer_store_dwordx2 v[{vt}:{vt+1}], v{vaddr}, s[{srdp}:{srdp+3}], 0 offen")
        A(f"{local}_fd:")
    A("s_mov_b64 exec, -1")

def flag_addr_h(A, v):
    A(f"s_lshl_b32 s62, s{S_B}, 4\ns_add_u32 s62, s62, s{S_C}\ns_lshl_b32 s62, s62, 3\ns_add_u32 s62, s62, {FH_OFF}\nv_mov_b32 v{v}, s62")
def flag_addr_t(A, v):
    A(f"s_lshl_b32 s62, s{S_C}, 4\ns_add_u32 s62, s62, s{S_B}\ns_lshl_b32 s62, s62, 3\ns_add_u32 s62, s62, {FT_OFF}")
    A(f"v_lshlrev_b32 v{v}, 10, v1\nv_add_u32 v{v}, s62, v{v}")
def flag_addr_early(A, v):
    A(f"s_lshl_b32 s62, s{S_B}, 4\ns_add_u32 s62, s62, s{S_C}\ns_lshl_b32 s62, s62, 3\ns_add_u32 s58, s62, {FR1_OFF}")
    A(f"s_lshl_b32 s62, s{S_C}, 4\ns_add_u32 s62, s62, s{S_B}\ns_lshl_b32 s62, s62, 3\ns_add_u32 s62, s62, {FC1_OFF}")
    A(f"s_cmp_eq_u32 s3, 1\ns_cselect_b32 s58, s62, s58\nv_mov_b32 v{v}, s58")

def epoch_ready(A):
    A("s_waitcnt lgkmcnt(0)")
    A(f"s_add_u32 s{S_E}, s{S_E}, 1\ns_xor_b32 s{S_EM}, s{S_E}, {MAGIC}")
    srd(A, 48, WS, WS_USED)

def lds_arrive(A, word, vt, sdst):
    A(f"v_mov_b32 v{vt}, {LCNT + 4*word}\nv_mov_b32 v{vt+1}, 1\ns_mov_b64 exec, 1")
    A(f"ds_add_rtn_u32 v{vt+1}, v{vt}, v{vt+1}\ns_waitcnt lgkmcnt(0)\ns_mov_b64 exec, -1\ns_nop 0")
    A(f"v_readfirstlane_b32 s{sdst}, v{vt+1}")
    A("s_nop 3")

def code_prefetch(A, tag, mode):
    A(f"s_getpc_b64 s[50:51]\nJ_pc{tag}:")
    A(f"s_sub_u32 s50, s50, J_pc{tag}-{KNAME}\ns_subb_u32 s51, s51, 0")
    A(f"s_mov_b32 s52, ((L_code_end-{KNAME})>>7)-1")
    def lines(first_expr, n, dst):
        A(f"v_add_u32 v22, {first_expr}, v1\nv_min_u32 v22, s52, v22\nv_lshlrev_b32 v22, 7, v22")
        A("v_mov_b32 v23, s51\nv_add_co_u32 v22, vcc, s50, v22\ns_nop 1\nv_addc_co_u32 v23, vcc, 0, v23, vcc")
        A(f"global_load_dword v{dst}, v[22:23], off")
    if mode == 0:
        A("s_lshr_b32 s53, s2, 3\ns_mul_i32 s53, s53, 6\ns_mov_b64 exec, 63")
        lines("s53", 1, 127)
        A("s_mov_b64 exec, -1")
    elif mode == 4:
        A("s_lshr_b32 s53, s2, 3\ns_and_b32 s53, s53, 3\ns_mul_i32 s53, s53, 48\ns_mov_b64 exec, 0xffffffffffff")
        lines("s53", 1, 127)
        A("s_mov_b64 exec, -1")
    elif mode == 5:
        A("s_lshr_b32 s53, s2, 3\ns_and_b32 s53, s53, 1\ns_mul_i32 s53, s53, 96")
        lines("s53", 1, 126)
        A("s_add_u32 s53, s53, 64\ns_mov_b64 exec, 0xffffffff")
        lines("s53", 1, 127)
        A("s_mov_b64 exec, -1")
    elif mode in (1, 2):
        for n in range(4): lines(64 * n, 1, (124 if mode == 1 else 24) + n)
    elif mode == 3 and tag == "a":
        lines(0, 1, 125)
        A(f"s_mov_b32 s53, (L_loader-{KNAME})>>7\ns_mov_b64 exec, 0xffffff")
        lines("s53", 1, 126)
        A("s_mov_b64 exec, -1")
    else:
        lines(64, 1, 24); lines(128, 1, 25)

def entry(A):
    A("s_cmp_ge_u32 s2, 256\ns_cbranch_scc1 L_end")
    A(f"s_load_dwordx4 s[4:7], s[0:1], {KA_X}")
    A(f"s_load_dwordx4 s[8:11], s[0:1], {KA_SIM}")
    A(f"s_load_dwordx2 s[12:13], s[0:1], {KA_HIM}")
    A(f"s_load_dwordx4 s[64:67], s[0:1], {KA_W1}")
    A(f"s_load_dwordx4 s[68:71], s[0:1], {KA_OUT}")
    A(f"s_load_dwordx2 s[16:17], s[0:1], {KA_WS}")
    A("v_lshrrev_b32 v2, 6, v0\nv_and_b32 v1, 63, v0\ns_nop 0\nv_readfirstlane_b32 s3, v2")
    if opt("CODEPF", 1) and opt("CPMODE", 1) in (0, 1, 3, 4, 5):
        A(f"s_nop 3\ns_cmp_eq_u32 s3, {CPW}\ns_cbranch_scc0 L_nocp")
        code_prefetch(A, "a", opt("CPMODE", 1))
        A("L_nocp:")
    A("s_and_b32 s24, s2, 7\ns_lshr_b32 s25, s2, 3\ns_lshr_b32 s27, s25, 3\ns_and_b32 s28, s25, 7")
    if opt("MAP1", 1):
        A(f"s_lshl_b32 s26, s24, 1\ns_lshr_b32 s29, s25, 4\ns_add_u32 s{S_B}, s26, s29\ns_and_b32 s{S_C}, s25, 15")
    else:
        A(f"s_lshr_b32 s26, s24, 1\ns_lshl_b32 s26, s26, 2\ns_add_u32 s{S_B}, s26, s27")
        A(f"s_and_b32 s26, s24, 1\ns_lshl_b32 s26, s26, 3\ns_add_u32 s{S_C}, s26, s28")
    A(f"s_lshl_b32 s26, s{S_C}, 6\ns_lshl_b32 s29, s{S_C}, 7\ns_sub_u32 s29, s29, 320")
    A(f"s_cmp_lt_u32 s{S_C}, 5\ns_cselect_b32 s{S_F0}, s26, s29")
    A(f"s_lshl_b32 s24, s24, 2\ns_add_u32 s{S_T0}, s24, s27\ns_mov_b32 s{S_CT}, s28")
    A(f"s_mov_b32 s{S_SPIN}, {SPIN_MAX}")
    A(f"s_getreg_b32 s{S_XCC}, hwreg(HW_REG_XCC_ID)\ns_and_b32 s{S_XCC}, s{S_XCC}, 15")
    if opt("DBGT"): A("s_memrealtime s[88:89]")
    stamp_init(A)
    if opt("T0STAMP"): stamp(A, force=True)
    if opt("P2ONLY"): args_ready(A)

def args_ready(A):
    A("s_waitcnt lgkmcnt(0)")
    if opt("CLK"): A("s_memtime s[88:89]\ns_waitcnt lgkmcnt(0)")
    A(f"s_mov_b32 s62, {EP_OFF}\ns_load_dword s{S_E}, s[{WS}:{WS+1}], s62")
    stamp(A, 0, force=True)

def jobs_issue(A):
    A("s_cmp_eq_u32 s3, 0\ns_cbranch_scc1 J_x_i\ns_cmp_eq_u32 s3, 1\ns_cbranch_scc1 J_c_i")
    args_ready(A)
    srd(A, 36, WS, WS_USED)
    if opt("TLBPF", 1):
        A("s_cmp_eq_u32 s3, 2\ns_cbranch_scc0 J_i_done")
        srd(A, 40, OUT, X_BYTES); srd(A, 44, W2, W2_BYTES)
        A("v_lshlrev_b32 v22, 20, v1")
        A(f"s_mov_b64 exec, {(1 << ((WS_USED >> 20) + 1)) - 1}\nbuffer_load_dword v125, v22, s[36:39], 0 offen {SC}")
        A(f"s_mov_b64 exec, 7\nbuffer_load_dword v126, v22, s[40:43], 0 offen {SC}\nbuffer_load_dword v127, v22, s[44:47], 0 offen\ns_mov_b64 exec, -1")
        if opt("INPF"):
            srd(A, 40, X_, X_BYTES); srd(A, 44, W1, W1_BYTES)
            A("v_lshlrev_b32 v22, 7, v1\ns_mul_i32 s50, s2, 10240\ns_mul_i32 s51, s2, 8704")
            A("buffer_load_dword v124, v22, s[40:43], s50 offen\nbuffer_load_dword v123, v22, s[44:47], s51 offen")
            A("s_add_u32 s50, s50, 8192\ns_add_u32 s51, s51, 8192\ns_mov_b64 exec, 0xffff")
            A("buffer_load_dword v122, v22, s[40:43], s50 offen\ns_mov_b64 exec, 15\nbuffer_load_dword v121, v22, s[44:47], s51 offen\ns_mov_b64 exec, -1")
    A("s_branch J_i_done")
    A("J_x_i:")
    A(f"s_lshr_b32 s48, s{S_C}, 2\ns_and_b32 s49, s{S_C}, 3")
    A(f"s_lshl_b32 s50, s{S_B}, 1\ns_and_b32 s51, s48, 1\ns_add_u32 s50, s50, s51")
    A("s_lshr_b32 s51, s48, 1\ns_lshl_b32 s51, s51, 5\ns_add_u32 s50, s50, s51")
    A("s_lshl_b32 s51, s49, 9\ns_add_u32 s50, s50, s51\ns_mul_i32 s50, s50, 1280")
    A("v_lshrrev_b32 v22, 3, v1\ns_mov_b32 s51, 81920\nv_mul_lo_u32 v22, s51, v22")
    A("v_and_b32 v23, 7, v1\nv_lshlrev_b32 v23, 4, v23\nv_add_u32 v22, v22, v23")
    A(f"v_mov_b32 v20, {LCNT}\nv_mov_b32 v24, 0\nv_mov_b32 v25, 0\nv_mov_b32 v26, 0\nv_mov_b32 v27, 0\nds_write_b128 v20, v[24:27]\nds_write_b128 v20, v[24:27] offset:16")
    args_ready(A)
    srd(A, 24, X_, X_BYTES)
    for i in range(10):
        A(f"buffer_load_dwordx4 v[{32+4*i}:{35+4*i}], v22, s[24:27], s50 offen offset:{128*i}")
    srd(A, 36, WS, WS_USED)
    A("s_branch J_i_done")
    A("J_c_i:")
    A("v_lshrrev_b32 v22, 4, v1\nv_mul_u32_u24 v22, 3456, v22\nv_and_b32 v23, 15, v1\nv_lshlrev_b32 v23, 4, v23\nv_add_u32 v22, v22, v23")
    A(f"s_mul_i32 s50, s{S_B}, {40*3456}\ns_lshl_b32 s51, s{S_F0}, 1\ns_add_u32 s50, s50, s51")
    A(f"s_cmp_eq_u32 s{S_C}, 0\ns_cbranch_scc0 J_c_np")
    A("v_and_b32 v23, 7, v1\nv_lshlrev_b32 v23, 4, v23\nv_bfe_u32 v24, v1, 3, 2\nv_lshlrev_b32 v24, 15, v24\nv_add_u32 v23, v23, v24")
    A(f"v_add_u32 v23, {16384+8192+4096}, v23")
    A("v_mov_b32 v24, 0xbf803f80\nv_mov_b32 v25, 0x3f80bf80\nv_mov_b32 v26, 0xbf803f80\nv_mov_b32 v27, 0x3f80bf80")
    A("ds_write_b128 v23, v[24:27]")
    A("J_c_np:")
    args_ready(A)
    srd(A, 28, W1, W1_BYTES)
    for i in range(10):
        A(f"buffer_load_dwordx4 v[{32+4*i}:{35+4*i}], v22, s[28:31], s50 offen")
        if i < 9: A(f"s_add_u32 s50, s50, {4*3456}")
    srd(A, 36, WS, WS_USED)
    A("J_i_done:")

def dpp_add(A, r, ctrl):
    A(f"v_add_f32_dpp v{r}, v{r}, v{r} {ctrl} row_mask:0xf bank_mask:0xf")

def jobs_finish(A, nG_, tagx):
    nG = tagx
    class _N(str):
        pass
    A("s_cmp_eq_u32 s3, 0\ns_cbranch_scc1 %s\ns_cmp_eq_u32 s3, 1\ns_cbranch_scc1 %s\ns_branch %s" % (f"J_x_{nG}", f"J_c_{nG}", f"J_done_{nG}"))
    A(f"J_x_{nG}:")
    A("v_mov_b32 v22, 0\nv_mov_b32 v23, 0\nv_mov_b32 v24, 0\nv_mov_b32 v25, 0\ns_mov_b32 s52, 0x3f803f80")
    for i in range(10):
        A(f"s_waitcnt vmcnt({9-i+nG_})")
        for k in range(4):
            r = 32 + 4 * i + k
            A(f"v_dot2_f32_bf16 v{22+(k&1)}, v{r}, s52, v{22+(k&1)}")
            A(f"v_dot2_f32_bf16 v{24+(k&1)}, v{r}, v{r}, v{24+(k&1)}")
    A("s_nop 2\nv_add_f32 v22, v22, v23\nv_add_f32 v24, v24, v25\ns_nop 1")
    for ctrl in ["quad_perm:[1,0,3,2]", "quad_perm:[2,3,0,1]", "row_half_mirror"]:
        dpp_add(A, 22, ctrl); dpp_add(A, 24, ctrl); A("s_nop 0")
    A("s_mov_b32 s52, 0x3acccccd\nv_mul_f32 v22, s52, v22\nv_mul_f32 v24, s52, v24")
    A("v_fma_f32 v24, -v22, v22, v24\nv_max_f32 v24, 0, v24\nv_add_f32 v24, 0x3727c5ac, v24\nv_rsq_f32 v23, v24")
    A(f"s_lshl_b32 s52, s{S_B}, 10\ns_lshl_b32 s53, s{S_C}, 5\ns_add_u32 s52, s52, s53\ns_add_u32 s52, s52, {ST_OFF}")
    A("v_lshrrev_b32 v25, 3, v1\nv_lshlrev_b32 v25, 2, v25")
    A("v_and_b32 v26, 7, v1\nv_cmp_eq_u32 vcc, 0, v26\ns_and_saveexec_b64 s[54:55], vcc")
    A(f"buffer_store_dword v22, v25, s[36:39], s52 offen {SC}\nbuffer_store_dword v23, v25, s[36:39], s52 offen offset:512 {SC}")
    A("s_mov_b64 exec, s[54:55]")
    A(f"s_branch J_done_{nG}")
    A(f"J_c_{nG}:")
    for k in range(8): A(f"v_mov_b32 v{72+k}, 0")
    A("s_mov_b32 s52, 0x00003f80\ns_mov_b32 s53, 0x3f800000")
    for i in range(10):
        A(f"s_waitcnt vmcnt({9-i+nG_})")
        for k in range(4):
            r = 32 + 4 * i + k
            A(f"v_dot2_f32_bf16 v{72+2*k}, v{r}, s52, v{72+2*k}")
            A(f"v_dot2_f32_bf16 v{73+2*k}, v{r}, s53, v{73+2*k}")
    A("s_nop 2")
    for sw in ["v_permlane16_swap_b32", "v_permlane32_swap_b32"]:
        for k in range(8): A(f"v_mov_b32 v{80+k}, v{72+k}")
        A("s_nop 0")
        for k in range(8): A(f"{sw} v{72+k}, v{80+k}")
        A("s_nop 0")
        for k in range(8): A(f"v_add_f32 v{72+k}, v{72+k}, v{80+k}")
    A(f"s_lshl_b32 s52, s{S_B}, 13\ns_lshl_b32 s53, s{S_F0}, 2\ns_add_u32 s52, s52, s53\ns_add_u32 s52, s52, {CS_OFF}")
    A(f"v_lshlrev_b32 v22, 5, v1\ns_mov_b32 s53, 16\ns_cmp_lt_u32 s{S_C}, 5\ns_cselect_b32 s53, 8, s53")
    A("v_cmp_gt_u32 vcc, s53, v1\ns_and_saveexec_b64 s[54:55], vcc")
    A(f"buffer_store_dwordx4 v[72:75], v22, s[36:39], s52 offen {SC}\nbuffer_store_dwordx4 v[76:79], v22, s[36:39], s52 offen offset:16 {SC}")
    A("s_mov_b64 exec, s[54:55]")
    A(f"s_branch J_done_{nG}")
    A(f"J_done_{nG}:")
    A(f"s_cmp_ge_u32 s3, 2\ns_cbranch_scc0 J_dn2_{nG}\ns_waitcnt vmcnt(0)")
    if opt("CODEPF", 1) and opt("CPMODE", 1) in (2, 3):
        A(f"s_cmp_eq_u32 s3, {CPW}\ns_cbranch_scc0 J_dn2_{nG}")
        code_prefetch(A, "b" + nG, opt("CPMODE", 1))
    A(f"J_dn2_{nG}:")

def x_addr(A, dst, rowbase_sgpr, tmp):
    A(f"v_and_b32 v{tmp}, 31, v1\nv_add_u32 v{tmp+1}, s{rowbase_sgpr}, v{tmp}\nv_lshlrev_b32 v{tmp+1}, 7, v{tmp+1}")
    A(f"v_bfe_u32 v{tmp}, v1, 1, 3\nv_lshrrev_b32 v{tmp+2}, 5, v1\nv_xor_b32 v{tmp}, v{tmp}, v{tmp+2}")
    A(f"v_lshlrev_b32 v{tmp}, 4, v{tmp}\nv_add_u32 v{dst}, v{tmp+1}, v{tmp}")
    for j in range(1, 4):
        A(f"v_xor_b32 v{dst+j}, {32*j}, v{dst}")
def h_tr_addr(A, dst, tmp):
    A(f"v_bfe_u32 v{tmp}, v1, 5, 1\nv_lshlrev_b32 v{tmp}, 3, v{tmp}\nv_bfe_u32 v{tmp+1}, v1, 2, 2\nv_add_u32 v{tmp}, v{tmp}, v{tmp+1}")
    A(f"v_lshlrev_b32 v{tmp}, 7, v{tmp}")
    A(f"v_bfe_u32 v{tmp+1}, v1, 4, 1\nv_lshlrev_b32 v{tmp+1}, 1, v{tmp+1}\nv_bfe_u32 v{tmp+2}, v1, 1, 1\nv_add_u32 v{tmp+1}, v{tmp+1}, v{tmp+2}")
    A(f"v_bfe_u32 v{tmp+2}, v1, 3, 1\nv_lshlrev_b32 v{tmp+2}, 2, v{tmp+2}\nv_xor_b32 v{tmp+1}, v{tmp+1}, v{tmp+2}")
    A(f"v_lshlrev_b32 v{tmp+1}, 4, v{tmp+1}\nv_add_u32 v{tmp}, v{tmp}, v{tmp+1}")
    A(f"v_and_b32 v{tmp+1}, 1, v1\nv_lshlrev_b32 v{tmp+1}, 3, v{tmp+1}\nv_add_u32 v{dst}, v{tmp}, v{tmp+1}")
def interleave(A, mfmas, fillers, per_gap):
    if opt("NOCOMP1"):
        for f in fillers:
            if not f.startswith("ds_read") and not f.startswith("v_perm"): A(f)
        return
    k = 0
    for i, m in enumerate(mfmas):
        A(m)
        for _ in range(per_gap[i]):
            if k < len(fillers):
                A(fillers[k]); k += 1
    while k < len(fillers):
        A(fillers[k]); k += 1
def h_epilogue_tile(A, acc, mr, cs, tmp, vaddr, soff):
    for i in range(0, 16, 2):
        A(f"v_pk_fma_f32 v[{acc+i}:{acc+i+1}], v[{cs+i}:{cs+i+1}], v[{mr}:{mr+1}], v[{acc+i}:{acc+i+1}] op_sel:[0,0,0] op_sel_hi:[1,0,1] neg_lo:[0,1,0] neg_hi:[0,1,0]")
    for i in range(0, 16, 2):
        A(f"v_pk_mul_f32 v[{acc+i}:{acc+i+1}], v[{acc+i}:{acc+i+1}], v[{mr}:{mr+1}] op_sel:[0,1] op_sel_hi:[1,1]")
    for i in range(0, 16, 2):
        A(f"v_cvt_pk_bf16_f32 v{tmp+i//2}, v{acc+i}, v{acc+i+1}")
    for i in range(8):
        A(f"v_pk_max_i16 v{tmp+i}, v{tmp+i}, 0")
    if opt("LOCALH", 2) != 1:
        A(f"buffer_store_dwordx4 v[{tmp}:{tmp+3}], v{vaddr}, s[36:39], s{soff} offen {SC}")
        A(f"buffer_store_dwordx4 v[{tmp+4}:{tmp+7}], v{vaddr}, s[36:39], s{soff} offen offset:512 {SC}")
        return
    h_epilogue_tile.n += 1
    n = h_epilogue_tile.n
    A(f"s_cmp_eq_u32 s{S_LOCAL}, 1\ns_cbranch_scc1 L_hst{n}_p")
    A(f"buffer_store_dwordx4 v[{tmp}:{tmp+3}], v{vaddr}, s[36:39], s{soff} offen {SC}")
    A(f"buffer_store_dwordx4 v[{tmp+4}:{tmp+7}], v{vaddr}, s[36:39], s{soff} offen offset:512 {SC}")
    A(f"s_branch L_hst{n}_d\nL_hst{n}_p:")
    hst = {0: "", 1: "nt", 2: "sc0", 3: "sc0 nt"}[opt("HST", 0)]
    A(f"buffer_store_dwordx4 v[{tmp}:{tmp+3}], v{vaddr}, s[36:39], s{soff} offen {hst}")
    A(f"buffer_store_dwordx4 v[{tmp+4}:{tmp+7}], v{vaddr}, s[36:39], s{soff} offen offset:512 {hst}")
    A(f"L_hst{n}_d:")
h_epilogue_tile.n = 0
def h_store_voff(A, dst, tmp):
    A(f"v_bfe_u32 v{tmp}, v1, 4, 1\nv_mul_u32_u24 v{tmp}, {58*1024}, v{tmp}")
    A(f"v_lshrrev_b32 v{tmp+1}, 5, v1\nv_lshlrev_b32 v{tmp+1}, 8, v{tmp+1}\nv_add_u32 v{tmp}, v{tmp}, v{tmp+1}")
    A(f"v_and_b32 v{tmp+1}, 15, v1\nv_lshlrev_b32 v{tmp+1}, 4, v{tmp+1}\nv_add_u32 v{dst}, v{tmp}, v{tmp+1}")

def loop_hooks_top(A, tag):
    A(f"s_cmp_eq_u32 s29, s30\ns_cbranch_scc1 {tag}_flag1\n{tag}_flag1_ret:")
def loop_hooks_init(A):
    A(f"s_cmp_lt_u32 s3, 2\ns_cselect_b32 s30, {10 - opt('EARLY_IT', 1)}, 99")
def loop_hooks_ool(A, tag):
    A(f"{tag}_flag1:")
    flag_addr_early(A, 28)
    A("s_waitcnt vmcnt(0)")
    store_flags(A, 28, 1, 48, 30, xcc=True)
    A(f"s_branch {tag}_flag1_ret")

def publish(A, tag, word, kind, vt):
    A("s_waitcnt vmcnt(0)")
    lds_arrive(A, word, vt, 63)
    A(f"s_cmp_eq_u32 s63, 3\ns_cbranch_scc0 {tag}_np")
    if kind == "h":
        flag_addr_h(A, vt - 1); store_flags(A, vt - 1, 1, 48, vt, xcc=True, local=(tag if opt("LOCALF", 1) else None))
    else:
        flag_addr_t(A, vt - 1); store_flags(A, vt - 1, 8, 48, vt)
    A(f"{tag}_np:")

def p1_hh(A):
    A("L_hh:")
    ACC = 128; P, Q = 32, 64
    XB, WB = 2, 6; XC, WC = 8, 12
    A("s_lshr_b32 s24, s3, 1\ns_and_b32 s25, s3, 1")
    A("s_lshl_b32 s26, s24, 6")
    x_addr(A, XB, 26, 20)
    h_tr_addr(A, WB, 20)
    A("s_lshl_b32 s27, s25, 13\ns_add_u32 s27, s27, 16384")
    A(f"v_add_u32 v{WB}, s27, v{WB}\nv_xor_b32 v{WB+1}, 64, v{WB}")
    for i in range(64): A(f"v_mov_b32 v{ACC+i}, 0")
    for j in range(4): A(f"v_mov_b32 v{XC+j}, v{XB+j}")
    for j in range(2): A(f"v_mov_b32 v{WC+j}, v{WB+j}")
    A(f"v_and_b32 v20, 31, v1\nv_add_u32 v20, s26, v20\nv_lshlrev_b32 v20, 2, v20\nv_add_u32 v20, {LST}, v20")
    A(f"v_lshrrev_b32 v21, 5, v1\nv_lshlrev_b32 v21, 4, v21\ns_lshl_b32 s33, s25, 8\ns_add_u32 s33, s33, {LCS}\nv_add_u32 v21, s33, v21")
    h_store_voff(A, 19, 26)
    A(f"s_lshl_b32 s31, s{S_B}, 3\ns_lshl_b32 s32, s24, 1\ns_add_u32 s31, s31, s32\ns_mul_i32 s31, s31, 58")
    A(f"s_lshr_b32 s32, s{S_F0}, 5\ns_lshl_b32 s33, s25, 1\ns_add_u32 s32, s32, s33\ns_add_u32 s31, s31, s32")
    A(f"s_lshl_b32 s31, s31, 10\ns_add_u32 s31, s31, {HF_OFF}")
    jobs_finish(A, 0, 'h')
    epoch_ready(A)
    A("s_mov_b32 s28, 0")
    loop_hooks_init(A)
    def reads(buf, g):
        out = []
        for jj in range(2):
            j = 2 * g + jj; b = buf + 16 * jj
            out.append(f"ds_read_b128 v[{b}:{b+3}], v{XC+j}")
            out.append(f"ds_read_b64_tr_b16 v[{b+8}:{b+9}], v{WC} offset:{j*2048}")
            out.append(f"ds_read_b64_tr_b16 v[{b+10}:{b+11}], v{WC} offset:{j*2048+512}")
            out.append(f"ds_read_b128 v[{b+4}:{b+7}], v{XC+j} offset:4096")
            out.append(f"ds_read_b64_tr_b16 v[{b+12}:{b+13}], v{WC+1} offset:{j*2048}")
            out.append(f"ds_read_b64_tr_b16 v[{b+14}:{b+15}], v{WC+1} offset:{j*2048+512}")
        return out
    def mfmas(buf):
        out = []
        for jj in range(2):
            b = buf + 16 * jj
            for ft in range(2):
                for st in range(2):
                    a = ACC + 16 * (2 * ft + st)
                    out.append(f"{MFMA32} v[{a}:{a+15}], v[{b+8+4*ft}:{b+11+4*ft}], v[{b+4*st}:{b+3+4*st}], v[{a}:{a+15}]")
        return out
    stamp(A, 1)
    A("s_waitcnt lgkmcnt(0)\ns_barrier")
    stamp(A, 2)
    for r in reads(P, 0):
        if not opt("NOCOMP1"): A(r)
    A("s_mov_b32 s29, 10")
    A("L_hh_loop:")
    A.drop = (["v_mfma"] if opt("NOMF1") else []) + (["ds_read"] if opt("NODS1") else []) + (["v_perm"] if opt("NOPERM") else [])
    loop_hooks_top(A, "L_hh")
    A("s_waitcnt lgkmcnt(0)")
    A("s_cmp_eq_u32 s29, 1\ns_cbranch_scc1 L_hh_pre\nL_hh_pre_ret:")
    if opt("HHSTAMP"): stamp(A)
    upd = [f"v_add_u32 v{XC+j}, s28, v{XB+j}" for j in range(4)] + [f"v_add_u32 v{WC+j}, s28, v{WB+j}" for j in range(2)]
    ring = [f"s_add_u32 s28, s28, {RING}", f"s_and_b32 s28, s28, {NS*RING-1}"]
    pat = opt("HHPAT", 0)
    g1 = [[3, 3, 3, 3, 2, 3, 3, 0], [4, 4, 4, 2, 3, 3, 0, 0], [6, 6, 2, 3, 3, 0, 0, 0]][pat]
    g2 = [[3, 3, 3, 3, 0, 0, 0, 0], [4, 4, 4, 0, 0, 0, 0, 0], [6, 6, 0, 0, 0, 0, 0, 0]][pat]
    interleave(A, mfmas(P), reads(Q, 1) + ring + upd, g1)
    if opt("HHSTAMP"): A("s_waitcnt lgkmcnt(0)"); stamp(A)
    A("s_waitcnt lgkmcnt(0)")
    A("s_barrier")
    if opt("HHSTAMP"): stamp(A)
    interleave(A, mfmas(Q), reads(P, 0), g2)
    A.drop = []
    A("s_sub_u32 s29, s29, 1\ns_cmp_lg_u32 s29, 0\ns_cbranch_scc1 L_hh_loop")
    A("s_waitcnt vmcnt(0) lgkmcnt(0)")
    stamp(A, 3)
    A(f"v_readfirstlane_b32 s{S_LOCAL}, v18")
    A("s_nop 7")
    for st in range(2):
        for ft in range(2):
            A(f"s_add_u32 s32, s31, {(st*4*58+ft)*1024}")
            h_epilogue_tile(A, ACC + 16 * (2 * ft + st), 14 + 2 * st, 96 + 16 * ft, 64 + 8 * ((2 * st + ft) & 3), 19, 32)
    stamp(A, 4)
    publish(A, "L_hh_pub", 0, "h", 30)
    stamp(A)
    stamp_flush(A, 0, WS, 9)
    A("s_endpgm")
    loop_hooks_ool(A, "L_hh")
    A("L_hh_pre:")
    A("ds_read_b32 v14, v20\nds_read_b32 v15, v20 offset:512\nds_read_b32 v16, v20 offset:128\nds_read_b32 v17, v20 offset:640")
    A(f"v_mov_b32 v18, {LCNT + 12}\nds_read_b32 v18, v18")
    for ft in range(2):
        for q in range(4):
            b = 96 + 16 * ft + 4 * q
            A(f"ds_read_b128 v[{b}:{b+3}], v21 offset:{ft*128+q*32}")
    A("s_branch L_hh_pre_ret")

def p1_mx(A):
    A("L_mx:")
    P, Q = 32, 72
    EV, OD = 112, 116
    CE, CO, SE, SO = 120, 124, 128, 132
    HA, HB = 136, 152
    EC, ES, OC, OS = 168, 184, 200, 216
    G = 232
    XAB, WHB = 2, 6
    XAC, XBC, DAC, WHC = 7, 11, 15, 19
    A("v_and_b32 v24, 31, v1\nv_cvt_f32_u32 v24, v24\nv_lshrrev_b32 v25, 5, v1\nv_cvt_f32_u32 v25, v25")
    A("v_mul_f32 v25, 0x3e000000, v25\nv_mul_f32 v25, v25, v24")
    for p in range(2):
        for uh in range(2):
            for u2 in range(2):
                for k in range(2):
                    c = 16 * p + 8 * uh + 2 * u2 + k
                    import struct
                    lit = struct.unpack("<I", struct.pack("<f", c / 32.0))[0]
                    A(f"v_fmamk_f32 v26, v24, {lit:#x}, v25\nv_fract_f32 v26, v26")
                    A(f"v_cos_f32 v{28+k}, v26\nv_sin_f32 v{30+k}, v26")
                A("s_nop 0")
                A(f"v_cvt_pk_bf16_f32 v{G+4*p+2*uh+u2}, v28, v29\nv_cvt_pk_bf16_f32 v{G+16+4*p+2*uh+u2}, v30, v31")
    for i in range(8):
        A(f"v_xor_b32 v{G+8+i}, 0x80008000, v{G+16+i}")
    A("s_lshr_b32 s24, s3, 1\ns_and_b32 s25, s3, 1")
    A("s_lshl_b32 s26, s3, 5\ns_xor_b32 s27, s26, 32")
    x_addr(A, XAB, 26, 24)
    h_tr_addr(A, WHB, 24)
    A(f"s_lshl_b32 s30, s25, 6\nv_xor_b32 v{WHB}, s30, v{WHB}\nv_add_u32 v{WHB}, 16384, v{WHB}")
    for i in range(96): A(f"v_mov_b32 v{HA+i}, 0")
    A("s_lshl_b32 s31, s3, 12\ns_sub_u32 s31, 24576, s31")
    def upd(js=(0, 1, 2, 3), wh=True):
        o = [f"v_add_u32 v{XAC+j}, s28, v{XAB+j}" for j in js] + ([f"v_add_u32 v{WHC}, s28, v{WHB}"] if wh else [])
        o += [f"v_xor_b32 v{XBC+j}, 0x1000, v{XAC+j}" for j in js]
        o += [f"v_add_u32 v{DAC+j}, s31, v{XAC+j}" for j in js]
        return o
    A("s_mov_b32 s28, 0")
    for t in upd(): A(t)
    jobs_finish(A, 0, 'm')
    epoch_ready(A)
    loop_hooks_init(A)
    A("s_mov_b32 s34, 0x05040100\ns_mov_b32 s35, 0x07060302")
    def reads(buf, m):
        out = []
        for jj in range(2):
            j = 2 * m + jj
            out.append(f"ds_read_b128 v[{buf+4*jj}:{buf+4*jj+3}], v{XAC+j}")
        for jj in range(2):
            j = 2 * m + jj
            out.append(f"ds_read_b64_tr_b16 v[{buf+16+4*jj}:{buf+17+4*jj}], v{WHC} offset:{j*2048}")
            out.append(f"ds_read_b64_tr_b16 v[{buf+18+4*jj}:{buf+19+4*jj}], v{WHC} offset:{j*2048+512}")
            out.append(f"ds_read_b128 v[{buf+8+4*jj}:{buf+11+4*jj}], v{XBC+j}")
        for jj in range(2):
            j = 2 * m + jj
            out.append(f"ds_read_b128 v[{buf+24+4*jj}:{buf+27+4*jj}], v{DAC+j}")
            out.append(f"ds_read_b128 v[{buf+32+4*jj}:{buf+35+4*jj}], v{DAC+j} offset:4096")
        return out
    def perms(src, e, o):
        ev = [f"v_perm_b32 v{e+k}, v{src+2*k+1}, v{src+2*k}, s34" for k in range(4)]
        od = [f"v_perm_b32 v{o+k}, v{src+2*k+1}, v{src+2*k}, s35" for k in range(4)]
        return ev, od
    def half(cur, nxt, m_next, extra):
        rd = reads(nxt, m_next)
        if opt("NOCOMP1"):
            for t in extra: A(t)
            return
        xe, xo = perms(cur, EV, OD); ce, co = perms(cur + 24, CE, CO); se, so = perms(cur + 32, SE, SO)
        H = []
        for jj in range(2):
            w = cur + 16 + 4 * jj
            H.append(f"{MFMA32} v[{HA}:{HA+15}], v[{w}:{w+3}], v[{cur+4*jj}:{cur+4*jj+3}], v[{HA}:{HA+15}]")
            H.append(f"{MFMA32} v[{HB}:{HB+15}], v[{w}:{w+3}], v[{cur+8+4*jj}:{cur+11+4*jj}], v[{HB}:{HB+15}]")
        Dm = [f"{MFMA32} v[{EC}:{EC+15}], v[{EV}:{EV+3}], v[{CE}:{CE+3}], v[{EC}:{EC+15}]",
              f"{MFMA32} v[{OC}:{OC+15}], v[{OD}:{OD+3}], v[{CO}:{CO+3}], v[{OC}:{OC+15}]",
              f"{MFMA32} v[{ES}:{ES+15}], v[{EV}:{EV+3}], v[{SE}:{SE+3}], v[{ES}:{ES+15}]",
              f"{MFMA32} v[{OS}:{OS+15}], v[{OD}:{OD+3}], v[{SO}:{SO+3}], v[{OS}:{OS+15}]"]
        if opt("MXSCHED", 1):
            ex = list(extra)
            def take(n):
                t = ex[:n]; del ex[:n]; return t
            pad = lambda n: (take(n) + ["s_nop 0"] * n)[:n]
            ms = H + [Dm[0], Dm[2], Dm[1], Dm[3]]
            gaps = [xe[0:2] + rd[0:3], xe[2:4] + rd[3:6], ce[0:2] + rd[6:9], ce[2:4] + rd[9:12],
                    se + xo[0:2], xo[2:4] + co + pad(2), so + pad(2), None]
            gaps[7] = ex
        else:
            gaps = [xe + rd[0:2], ce + rd[2:4], xo + rd[4:6], co + rd[6:8], se + rd[8:10], so + rd[10:12], extra[:8], extra[8:]]
            ms = H + Dm
        for i in range(8):
            A(ms[i])
            for t in gaps[i]: A(t)
    stamp(A, 1)
    A("s_waitcnt lgkmcnt(0)\ns_barrier")
    stamp(A, 2)
    for r in reads(P, 0):
        if not opt("NOCOMP1"): A(r)
    A("s_mov_b32 s29, 10")
    A("L_mx_loop:")
    A.drop = (["v_mfma"] if opt("NOMF1") else []) + (["ds_read"] if opt("NODS1") else []) + (["v_perm"] if opt("NOPERM") else [])
    loop_hooks_top(A, "L_mx")
    A("s_waitcnt lgkmcnt(0)")
    if opt("HHSTAMP"): stamp(A)
    ring = [f"s_add_u32 s28, s28, {RING}", f"s_and_b32 s28, s28, {NS*RING-1}"]
    if opt("MXSCHED", 1):
        half(P, Q, 1, ring + upd((0, 1), True))
        if opt("HHSTAMP"): A("s_waitcnt lgkmcnt(0)"); stamp(A)
        A("s_waitcnt lgkmcnt(0)")
        A("s_barrier")
        if opt("HHSTAMP"): stamp(A)
        half(Q, P, 0, upd((2, 3), False))
    else:
        half(P, Q, 1, ring + upd())
        A("s_waitcnt lgkmcnt(0)")
        A("s_barrier")
        half(Q, P, 0, [])
    A.drop = []
    A("s_sub_u32 s29, s29, 1\ns_cmp_lg_u32 s29, 0\ns_cbranch_scc1 L_mx_loop")
    A("s_waitcnt vmcnt(0) lgkmcnt(0)")
    stamp(A, 3)
    A(f"v_and_b32 v24, 31, v1\nv_add_u32 v25, s26, v24\nv_lshlrev_b32 v25, 2, v25\nv_add_u32 v25, {LST}, v25")
    A(f"v_add_u32 v26, s27, v24\nv_lshlrev_b32 v26, 2, v26\nv_add_u32 v26, {LST}, v26")
    A("ds_read_b32 v2, v25\nds_read_b32 v3, v25 offset:512\nds_read_b32 v4, v26\nds_read_b32 v5, v26 offset:512")
    A(f"v_mov_b32 v7, {LCNT + 12}\nds_read_b32 v7, v7")
    A(f"v_lshrrev_b32 v27, 5, v1\nv_lshlrev_b32 v27, 4, v27\ns_lshl_b32 s30, s25, 7\ns_add_u32 s30, s30, {LCS}\nv_add_u32 v28, s30, v27")
    for q in range(4):
        A(f"ds_read_b128 v[{32+4*q}:{35+4*q}], v28 offset:{q*32}")
    A(f"s_lshl_b32 s30, s26, 2\ns_add_u32 s30, s30, {LST+512}\nv_add_u32 v28, s30, v27")
    for q in range(4):
        A(f"ds_read_b128 v[{48+4*q}:{51+4*q}], v28 offset:{q*32}")
    h_store_voff(A, 6, 28)
    A(f"s_lshl_b32 s31, s{S_B}, 3\ns_lshl_b32 s30, s24, 1\ns_add_u32 s31, s31, s30\ns_mul_i32 s31, s31, 58")
    A(f"s_lshr_b32 s30, s{S_F0}, 5\ns_add_u32 s30, s30, s25\ns_add_u32 s31, s31, s30")
    A(f"s_lshl_b32 s31, s31, 10\ns_add_u32 s31, s31, {HF_OFF}")
    A(f"s_mul_i32 s30, s25, {4*58*1024}\ns_add_u32 s32, s31, s30")
    A(f"s_xor_b32 s30, s25, 1\ns_mul_i32 s30, s30, {4*58*1024}\ns_add_u32 s33, s31, s30")
    A("s_waitcnt lgkmcnt(0)")
    A(f"v_readfirstlane_b32 s{S_LOCAL}, v7")
    A("s_nop 7")
    h_epilogue_tile(A, HA, 2, 32, 64, 6, 32)
    h_epilogue_tile(A, HB, 4, 32, 72, 6, 33)
    stamp(A, 4)
    if opt("MXPUB", 0): publish(A, "L_mx_pubh", 0, "h", 30)
    stamp(A)
    R = 48
    for i in range(0, 16, 2):
        for a in (EC, OC, ES, OS):
            A(f"v_pk_mul_f32 v[{a+i}:{a+i+1}], v[{a+i}:{a+i+1}], v[{R+i}:{R+i+1}]")
    T0, T1 = 80, 96
    for i in range(0, 16, 2):
        A(f"v_pk_add_f32 v[{T0+i}:{T0+i+1}], v[{EC+i}:{EC+i+1}], v[{OC+i}:{OC+i+1}]")
        A(f"v_pk_add_f32 v[{EC+i}:{EC+i+1}], v[{EC+i}:{EC+i+1}], v[{OC+i}:{OC+i+1}] neg_lo:[0,1] neg_hi:[0,1]")
        A(f"v_pk_add_f32 v[{T1+i}:{T1+i+1}], v[{ES+i}:{ES+i+1}], v[{OS+i}:{OS+i+1}]")
        A(f"v_pk_add_f32 v[{OC+i}:{OC+i+1}], v[{OS+i}:{OS+i+1}], v[{ES+i}:{ES+i+1}] neg_lo:[0,1] neg_hi:[0,1]")
    A("v_and_b32 v24, 31, v1\nv_cmp_eq_u32 s[40:41], 0, v24\ns_nop 3")
    A(f"s_cmp_eq_u32 s{S_C}, 0\ns_cselect_b64 s[40:41], s[40:41], 0\ns_cbranch_scc0 L_mx_nofix")
    for i in range(16):
        A(f"v_cndmask_b32 v{T0+i}, v{T0+i}, v{ES+i}, s[40:41]")
        A(f"v_cndmask_b32 v{T1+i}, v{T1+i}, v{OS+i}, s[40:41]")
        A(f"v_cndmask_b32_e64 v{OC+i}, v{OC+i}, 0, s[40:41]")
    A("L_mx_nofix:")
    ZB = 32
    for k, a in enumerate([T0, T1, EC, OC]):
        for i in range(0, 16, 2):
            A(f"v_cvt_pk_bf16_f32 v{ZB+8*k+i//2}, v{a+i}, v{a+i+1}")
    Fr = lambda p: f"v[{G+4*p}:{G+4*p+3}]"
    Fi = lambda p: f"v[{G+8+4*p}:{G+8+4*p+3}]"
    nFi = lambda p: f"v[{G+16+4*p}:{G+16+4*p+3}]"
    Z = lambda k, p: f"v[{ZB+8*k+4*p}:{ZB+8*k+4*p+3}]"
    TR = [EC, OC]; TI = [ES, OS]
    A("s_nop 1")
    for st_ in range(2):
        zr, zi = 2 * st_, 2 * st_ + 1
        tr, ti = TR[st_], TI[st_]
        A(f"{MFMA32} v[{tr}:{tr+15}], {Fr(0)}, {Z(zr,0)}, 0")
        A(f"{MFMA32} v[{ti}:{ti+15}], {Fr(0)}, {Z(zi,0)}, 0")
        A(f"{MFMA32} v[{tr}:{tr+15}], {Fr(1)}, {Z(zr,1)}, v[{tr}:{tr+15}]")
        A(f"{MFMA32} v[{ti}:{ti+15}], {Fr(1)}, {Z(zi,1)}, v[{ti}:{ti+15}]")
        A(f"{MFMA32} v[{tr}:{tr+15}], {nFi(0)}, {Z(zi,0)}, v[{tr}:{tr+15}]")
        A(f"{MFMA32} v[{ti}:{ti+15}], {Fi(0)}, {Z(zr,0)}, v[{ti}:{ti+15}]")
        A(f"{MFMA32} v[{tr}:{tr+15}], {nFi(1)}, {Z(zi,1)}, v[{tr}:{tr+15}]")
        A(f"{MFMA32} v[{ti}:{ti+15}], {Fi(1)}, {Z(zr,1)}, v[{ti}:{ti+15}]")
    if not opt("MXPUB", 0): publish(A, "L_mx_pubh", 0, "h", 30)
    else: A("s_nop 7")
    stamp(A)
    A(f"v_and_b32 v24, 31, v1\nv_lshlrev_b32 v24, 2, v24\nv_lshrrev_b32 v25, 5, v1\nv_lshlrev_b32 v25, 9, v25\nv_add_u32 v24, v24, v25")
    A(f"s_lshl_b32 s30, s3, 13\ns_add_u32 s30, s30, {LX}\nv_add_u32 v24, s30, v24")
    A("s_nop 7")
    for st_ in range(2):
        for i in range(16):
            A(f"v_cvt_pk_bf16_f32 v{64+16*st_+i}, v{TR[st_]+i}, v{TI[st_]+i}")
    for st_ in range(2):
        for i in range(16):
            t0 = (i & 3) + 8 * (i >> 2)
            A(f"ds_write_b32 v24, v{64+16*st_+i} offset:{st_*4096+t0*128}")
    A("s_waitcnt lgkmcnt(0)")
    stamp(A)
    lds_arrive(A, 1, 30, 63)
    A(f"v_mov_b32 v30, {LCNT+4}")
    A("L_mx_rv:\nds_read_b32 v31, v30\ns_waitcnt lgkmcnt(0)\ns_nop 0\nv_readfirstlane_b32 s63, v31\ns_nop 3\ns_cmp_ge_u32 s63, 4\ns_cbranch_scc1 L_mx_rv_ok")
    A(f"s_sub_u32 s{S_SPIN}, s{S_SPIN}, 1\ns_cmp_eq_u32 s{S_SPIN}, 0\ns_cbranch_scc0 L_mx_rv\nL_mx_rv_ok:")
    A("v_and_b32 v24, 31, v1\nv_lshlrev_b32 v24, 2, v24\nv_lshrrev_b32 v25, 5, v1\nv_lshlrev_b32 v26, 7, v25\nv_add_u32 v24, v24, v26")
    A(f"s_lshl_b32 s30, s3, 10\ns_add_u32 s30, s30, {LX}\nv_add_u32 v24, s30, v24")
    for st_ in range(2):
        for n in range(4):
            b = 64 + 16 * st_ + 4 * n
            for w in range(4):
                A(f"ds_read_b32 v{b+w}, v24 offset:{w*8192+st_*4096+n*256}")
    A(f"v_and_b32 v26, 31, v1\ns_lshl_b32 s30, s{S_C}, 5\nv_add_u32 v27, s30, v26")
    A("v_mov_b32 v28, 160\nv_cndmask_b32 v29, v27, v28, s[40:41]")
    A("v_sub_u32 v27, 320, v27")
    A(f"s_mov_b32 s30, {TF_T0}\nv_mul_lo_u32 v25, s30, v25")
    A("v_lshlrev_b32 v29, 4, v29\nv_add_u32 v29, v29, v25")
    A("v_lshlrev_b32 v27, 4, v27\nv_add_u32 v27, v27, v25")
    A(f"s_mul_i32 s30, s3, {8*TF_T0}\ns_mul_i32 s31, s{S_B}, {TF_ROW}\ns_add_u32 s30, s30, s31\ns_add_u32 s30, s30, {TF_OFF}")
    A("s_waitcnt lgkmcnt(0)")
    for st_ in range(2):
        for n in range(4):
            b = 64 + 16 * st_ + 4 * n
            A(f"s_add_u32 s31, s30, {2*n*TF_T0}")
            if not opt("NOTST"): A(f"buffer_store_dwordx4 v[{b}:{b+3}], v{29 if st_ == 0 else 27}, s[36:39], s31 offen {'' if opt('TPLAIN') else SC}")
    stamp(A)
    A(f"s_cmp_eq_u32 s{S_C}, 0\ns_cbranch_scc0 L_mx_noz\ns_cmp_eq_u32 s3, 0\ns_cbranch_scc0 L_mx_noz")
    A(f"s_mov_b32 s30, {TF_T0}\nv_and_b32 v24, 31, v1\nv_mul_lo_u32 v24, s30, v24")
    A("v_mov_b32 v4, 0\nv_mov_b32 v5, 0\nv_mov_b32 v6, 0\nv_mov_b32 v7, 0")
    A(f"s_mul_i32 s31, s{S_B}, {TF_ROW}\ns_add_u32 s31, s31, {TF_OFF}")
    A(f"buffer_store_dwordx4 v[4:7], v24, s[36:39], s31 offen {SC}")
    A("L_mx_noz:")
    publish(A, "L_mx_pubt", 2, "t", 30)
    stamp(A)
    stamp_flush(A, 0, WS, 9)
    A("s_endpgm")
    loop_hooks_ool(A, "L_mx")

def loader(A):
    A("L_loader:")
    if opt("PRIOL"): A(f"s_setprio {opt('PRIOL')}")
    if opt("PRIOL1"): A(f"s_setprio {opt('PRIOL1')}")
    A(f"s_sub_u32 s{S_J}, s3, 4")
    for r in [11, 12, 13, 52, 53, 54, 55, 56, 57, 58, 59]: A(f"v_mov_b32 v{r}, 0")
    A("s_mov_b32 s58, 0\ns_mov_b32 s59, 99\ns_mov_b32 s63, 0")
    RS = 1280 if opt("XLIN") else 81920
    A(f"v_lshrrev_b32 v4, 3, v1\ns_mov_b32 s40, {RS}\nv_mul_lo_u32 v8, s40, v4")
    A("v_and_b32 v5, 7, v1\nv_lshrrev_b32 v6, 4, v1\nv_xor_b32 v5, v5, v6\nv_lshlrev_b32 v5, 4, v5")
    A("v_add_u32 v2, v8, v5\nv_xor_b32 v7, 64, v5")
    A(f"v_add_u32 v3, v8, v7\nv_add_u32 v3, {8*RS}, v3")
    A(f"s_lshl_b32 s40, s{S_B}, 1\ns_and_b32 s41, s{S_J}, 1\ns_add_u32 s40, s40, s41")
    A(f"s_lshr_b32 s41, s{S_J}, 1\ns_lshl_b32 s41, s41, 5\ns_add_u32 s40, s40, s41")
    if opt("XLIN"):
        A(f"s_lshl_b32 s40, s{S_B}, 2\ns_add_u32 s40, s40, s{S_J}\ns_mul_i32 s40, s40, {32*1280}\ns_add_u32 s41, s40, {16*1280}")
    else:
        A(f"s_mul_i32 s40, s40, 1280\ns_add_u32 s41, s40, {16*81920}")
    A("s_mov_b64 s[56:57], -1")
    A(f"s_cmp_lt_u32 s{S_C}, 5\ns_cbranch_scc0 L_ld_H")
    A(f"s_cmp_ge_u32 s{S_J}, 2\ns_cbranch_scc0 L_ld_H")
    A(f"s_and_b32 s50, s{S_J}, 1\ns_add_u32 s50, s50, 1\ns_mov_b32 s30, {HID_BYTES}")
    A("v_mul_u32_u24 v8, 1280, v4\nv_add_u32 v9, v8, v5")
    A(f"v_add_u32 v10, v8, v7\nv_add_u32 v10, {8*1280}, v10")
    A(f"s_mul_i32 s42, s{S_C}, {32*1280}")
    A(f"s_mov_b32 s44, s42\ns_mov_b32 s45, s42\ns_add_u32 s46, s42, {16*1280}\ns_add_u32 s47, s42, {16*1280}")
    A("s_mov_b32 s43, 128")
    A(f"s_cmp_eq_u32 s{S_C}, 0\ns_cbranch_scc0 L_ld_go\ns_cmp_eq_u32 s{S_J}, 3\ns_cbranch_scc0 L_ld_go")
    A("s_mov_b32 s56, 0xffffff00")
    A("s_branch L_ld_go")
    A("L_ld_H:")
    A(f"s_mov_b32 s50, 0\ns_mov_b32 s30, {W1_BYTES}")
    A("v_mul_u32_u24 v8, 3456, v4")
    A("v_and_b32 v9, 7, v1\nv_bfe_u32 v10, v1, 4, 1\nv_lshlrev_b32 v10, 2, v10\nv_xor_b32 v9, v9, v10")
    A("v_lshlrev_b32 v9, 4, v9\nv_add_u32 v9, v8, v9\nv_mov_b32 v10, v9")
    A(f"s_and_b32 s42, s{S_J}, 1\ns_mul_i32 s42, s42, {32*3456}")
    A(f"s_lshr_b32 s43, s{S_J}, 1\ns_lshl_b32 s43, s43, 6\ns_add_u32 s43, s43, s{S_F0}\ns_lshl_b32 s43, s43, 1")
    A("s_add_u32 s42, s42, s43")
    for q in range(4):
        A(f"s_add_u32 s{44+q}, s42, {8*q*3456}")
    A(f"s_mov_b32 s43, {64*3456}")
    A("L_ld_go:")
    A(f"s_lshl_b32 s48, s{S_J}, 12\ns_mov_b32 s31, 0x20000")
    args_ready(A)
    srd(A, 24, X_, X_BYTES)
    A(f"s_cmp_eq_u32 s50, 1\ns_cselect_b32 s28, s{HRE}, s{W1}\ns_cselect_b32 s29, s{HRE+1}, s{W1+1}")
    A(f"s_cmp_eq_u32 s50, 2\ns_cselect_b32 s28, s{HIM}, s28\ns_cselect_b32 s29, s{HIM+1}, s29")
    def chunk(slot_reg):
        for q in range(0 if opt("NOLOAD1") else 4):
            A(f"s_add_u32 m0, s{slot_reg}, {q*1024}")
            A("s_nop 0")
            A(f"buffer_load_dwordx4 v{2+(q&1)}, s[24:27], s{40+(q>>1)} offen {'nt ' if opt('XNT') else ''}lds")
            A(f"s_add_u32 m0, s{slot_reg}, {16384+q*1024}")
            if q == 0: A("s_mov_b64 exec, s[56:57]")
            else: A("s_nop 0")
            A(f"buffer_load_dwordx4 v{9+(q&1)}, s[28:31], s{44+q} offen {'nt ' if opt('WNT') else ''}lds")
            if q == 0: A("s_mov_b64 exec, -1")
        A("s_add_u32 s40, s40, 128\ns_add_u32 s41, s41, 128")
        for q in range(4):
            A(f"s_add_u32 s{44+q}, s{44+q}, s43")
        A(f"s_add_u32 s{slot_reg}, s{slot_reg}, {RING}\ns_cmp_ge_u32 s{slot_reg}, {NS*RING}\ns_cselect_b32 s52, {NS*RING}, 0\ns_sub_u32 s{slot_reg}, s{slot_reg}, s52")
    A("s_mov_b32 s49, s48")
    chunk(49); chunk(49)
    stamp(A, 1)
    srd(A, 36, WS, WS_USED)
    srd(A, 32, WS, WS_USED)
    A("s_waitcnt lgkmcnt(0)")
    A(f"s_add_u32 s{S_E}, s{S_E}, 1\ns_xor_b32 s{S_EM}, s{S_E}, {MAGIC}")
    A(f"s_cmp_ge_u32 s{S_J}, 2\ns_cbranch_scc0 L_ld_su01")
    A(f"s_sub_u32 s58, s{S_J}, 2\ns_lshl_b32 s59, s{S_T0}, 1\ns_add_u32 s59, s59, s58")
    A("s_mov_b32 s50, 6554\ns_mov_b32 s53, 1280")
    for q in range(5):
        A(f"v_add_u32 v22, {64*q}, v1")
        A("v_mul_lo_u32 v23, s50, v22\nv_lshrrev_b32 v23, 16, v23")
        A("v_mul_u32_u24 v24, 10, v23\nv_sub_u32 v24, v22, v24\nv_lshlrev_b32 v24, 4, v24")
        A(f"v_mul_lo_u32 v23, s53, v23\nv_add_u32 v{52+q}, v23, v24")
    A("v_lshrrev_b32 v23, 4, v1\nv_lshrrev_b32 v24, 1, v23\nv_lshlrev_b32 v24, 4, v24")
    A("v_and_b32 v25, 1, v23\nv_lshlrev_b32 v25, 2, v25\nv_add_u32 v24, v24, v25\nv_bfe_u32 v25, v1, 2, 2\nv_add_u32 v24, v24, v25")
    A("v_mul_u32_u24 v24, 160, v24\nv_and_b32 v25, 3, v1\nv_lshlrev_b32 v25, 3, v25\nv_add_u32 v24, v24, v25")
    A(f"s_mul_i32 s50, s58, 5120\ns_add_u32 s50, s50, {LW}\nv_add_u32 v57, s50, v24")
    A(f"s_lshl_b32 s50, s{S_CT}, 6\ns_add_u32 s50, s50, s59\ns_lshl_b32 s50, s50, 3\ns_add_u32 s50, s50, {FW_OFF}\nv_mov_b32 v58, s50")
    A("s_branch L_ld_sud")
    A("L_ld_su01:")
    A("v_lshlrev_b32 v13, 3, v1\nv_and_b32 v16, 31, v1\nv_lshlrev_b32 v15, 3, v16")
    A(f"s_lshl_b32 s50, s{S_B}, 7\ns_add_u32 s50, s50, {FR1_OFF}\nv_add_u32 v12, s50, v15")
    A(f"s_lshl_b32 s50, s{S_C}, 7\ns_add_u32 s50, s50, {FC1_OFF-128}\nv_add_u32 v15, s50, v15")
    A("v_cmp_le_u32 vcc, 16, v16\ns_nop 1\nv_cndmask_b32 v12, v12, v15, vcc")
    A(f"s_lshl_b32 s50, s{S_CT}, 9\ns_add_u32 s50, s50, {FW_OFF}\nv_add_u32 v11, s50, v13")
    A("L_ld_sud:")
    A("s_waitcnt vmcnt(8)")
    stamp(A, 2)
    A("s_barrier")
    chunk(49)
    A(f"s_cmp_ge_u32 s{S_J}, 2\ns_cbranch_scc1 L_ld_h1w\nL_ld_h1w_ret:")
    A(f"s_cmp_ge_u32 s{S_J}, 2\ns_cbranch_scc1 L_ld_b1w")
    A("s_waitcnt vmcnt(8)\ns_branch L_ld_b1d\nL_ld_b1w:")
    A("s_cmp_ge_u32 s59, 54\ns_cbranch_scc1 L_ld_b1n\ns_waitcnt vmcnt(13)\ns_branch L_ld_b1d\nL_ld_b1n:\ns_waitcnt vmcnt(8)\nL_ld_b1d:")
    A("s_barrier")
    stamp(A)
    pk = opt("POLLK", 5)
    assert pk in (5, 6)
    A(f"s_mov_b32 s53, 99\ns_mov_b32 s54, 99\ns_mov_b32 s55, 0\ns_mov_b32 s79, 99\ns_mov_b32 s81, 99\ns_mov_b32 s82, 99\ns_mov_b32 s83, 0")
    A(f"s_cmp_eq_u32 s{S_J}, 0\ns_cselect_b32 s53, {9-pk}, s53\ns_cselect_b32 s54, {9-pk-2}, s54\ns_cselect_b32 s55, {9-pk-1}, s55\ns_cselect_b32 s81, {9-pk-2}, s81")
    A(f"s_cmp_eq_u32 s{S_J}, 1\ns_cselect_b32 s53, {opt('FWPOLL', 1)}, s53")
    A(f"s_cmp_ge_u32 s{S_J}, 2\ns_cselect_b32 s82, 6, s82\ns_cselect_b32 s79, 3, s79\ns_cselect_b32 s83, 1, s83")
    A("s_mov_b32 s51, 7")
    A("L_ld_loop:")
    A("s_cmp_eq_u32 s51, s54\ns_cbranch_scc1 L_ld_h2\nL_ld_h2_ret:")
    chunk(49)
    A("s_cmp_eq_u32 s51, s79\ns_cbranch_scc1 L_ld_h3\nL_ld_h3_ret:")
    A("s_cmp_eq_u32 s51, s53\ns_cbranch_scc1 L_ld_h1\nL_ld_h1_ret:")
    A("s_cmp_eq_u32 s51, s81\ns_cbranch_scc1 L_ld_h4\nL_ld_h4_ret:")
    A("s_cmp_eq_u32 s51, s82\ns_cbranch_scc1 L_ld_h2w\nL_ld_h2w_ret:")
    A("s_cmp_lt_u32 s51, s55\ns_cbranch_scc1 L_ld_w25")
    A("s_cmp_eq_u32 s83, 0\ns_cbranch_scc1 L_ld_w8")
    A("s_cmp_eq_u32 s51, 6\ns_cbranch_scc1 L_ld_wW\ns_cmp_eq_u32 s51, 5\ns_cbranch_scc1 L_ld_wW")
    A("s_cmp_eq_u32 s51, 3\ns_cbranch_scc1 L_ld_w9\ns_cmp_eq_u32 s51, 2\ns_cbranch_scc1 L_ld_w9")
    A("L_ld_w8:\ns_waitcnt vmcnt(8)\ns_branch L_ld_wd")
    A("L_ld_wW:\ns_cmp_ge_u32 s59, 54\ns_cbranch_scc1 L_ld_w8\ns_waitcnt vmcnt(13)\ns_branch L_ld_wd\nL_ld_w9:\ns_waitcnt vmcnt(9)\ns_branch L_ld_wd")
    A("L_ld_w25:\ns_waitcnt vmcnt(17)\nL_ld_wd:")
    stamp(A)
    A("s_barrier")
    stamp(A)
    A("s_sub_u32 s51, s51, 1\ns_cmp_lg_u32 s51, 0\ns_cbranch_scc1 L_ld_loop")
    A("s_waitcnt vmcnt(0)")
    if not opt("WLATE", 1):
        A(f"s_cmp_eq_u32 s{S_J}, 1\ns_cbranch_scc0 L_ld_no1")
        spin(A, "L_ld_spw", 48, 11, 32, xcc=True)
        A("L_ld_no1:")
    A(f"s_cmp_eq_u32 s{S_J}, 0\ns_cbranch_scc0 L_ld_nored")
    if opt("REDPRIO", 1): A("s_setprio 2")
    for b_ in range(1, 8):
        for k in range(4): A(f"v_add_f32 v{16+k}, v{16+k}, v{16+4*b_+k}")
    for k in range(4): A(f"v_mov_b32 v{20+k}, v{16+k}")
    A("s_nop 1")
    for k in range(4): A(f"v_permlane32_swap_b32 v{16+k}, v{20+k}")
    A("s_nop 0")
    for k in range(4): A(f"v_add_f32 v{16+k}, v{16+k}, v{20+k}")
    A(f"v_add_u32 v13, {LCS}, v13\nds_write_b128 v13, v[16:19]")
    if opt("REDPRIO", 1): A("s_setprio 0")
    A("s_waitcnt lgkmcnt(0)")
    A("L_ld_nored:")
    A("s_barrier")
    stamp(A)
    A("s_barrier")
    A("s_branch L_ld_p2")
    A("L_ld_h1:")
    A(f"s_cmp_eq_u32 s{S_J}, 1\ns_cbranch_scc1 L_ld_h1f")
    A(f"buffer_load_dwordx2 v[14:15], v12, s[32:35], 0 offen {SC}")
    A("s_branch L_ld_h1_ret")
    A("L_ld_h1f:")
    A(f"buffer_load_dwordx2 v[48:49], v11, s[32:35], 0 offen {SC}")
    A("s_branch L_ld_h1_ret")
    A("L_ld_h1w:")
    if opt("NOW"): A("s_branch L_ld_h1w_ret")
    A("s_cmp_ge_u32 s59, 54\ns_cbranch_scc1 L_ld_h1w_ret")
    srd(A, 84, W2, W2_BYTES)
    A(f"s_mul_i32 s50, s59, 40960\ns_mul_i32 s62, s{S_CT}, 160\ns_add_u32 s50, s50, s62")
    A(f"s_mul_i32 s62, s58, 5120\ns_add_u32 s62, s62, {LW}")
    for q in range(5):
        A(f"s_add_u32 m0, s62, {1024*q}\ns_nop 0")
        A(f"buffer_load_dwordx4 v{52+q}, s[84:87], s50 offen lds")
    A("s_branch L_ld_h1w_ret")
    A("L_ld_h2:")
    spin(A, "L_ld_sp", 14, 12, 32, xcc=True)
    A(f"v_and_b32 v50, 16, v1\nv_cmp_eq_u32 s[60:61], 0, v50\nv_cmp_ne_u32 vcc, s{S_XCC}, v15\ns_nop 3\ns_and_b64 vcc, vcc, s[60:61]")
    A(f"s_cmp_eq_u64 vcc, 0\ns_cselect_b32 s62, {1 if opt('LOCALH', 2) and opt('MAP1', 1) else 0}, 0")
    A(f"v_mov_b32 v50, {LCNT + 12}\nv_mov_b32 v51, s62\nds_write_b32 v50, v51")
    A("s_branch L_ld_h2_ret")
    A("L_ld_h4:")
    A(f"s_lshl_b32 s50, s{S_B}, 10\ns_add_u32 s50, s50, {ST_OFF}\ns_mov_b32 m0, {LST}\nv_lshlrev_b32 v13, 4, v1")
    A(f"buffer_load_dwordx4 v13, s[36:39], s50 offen {SC} lds")
    A(f"s_lshl_b32 s50, s{S_F0}, 2\ns_add_u32 s50, s50, {CS_OFF}")
    A("v_and_b32 v13, 31, v1\nv_lshlrev_b32 v13, 4, v13\nv_lshrrev_b32 v14, 5, v1\nv_lshlrev_b32 v14, 13, v14\nv_add_u32 v14, v13, v14")
    for b_ in range(8):
        A(f"buffer_load_dwordx4 v[{16+4*b_}:{19+4*b_}], v14, s[36:39], s50 offen {SC}")
        if b_ < 7: A("s_add_u32 s50, s50, 16384")
    A("s_branch L_ld_h4_ret")
    A("L_ld_h2w:")
    A("v_lshlrev_b32 v22, 4, v1")
    if opt("NOW"): A("s_branch L_ld_h2w_ret")
    A("s_cmp_ge_u32 s59, 54\ns_cbranch_scc1 L_ld_h2w_ret")
    for n in range(5):
        A(f"ds_read_b64_tr_b16 v[{24+4*n}:{25+4*n}], v57 offset:{32*n}")
        A(f"ds_read_b64_tr_b16 v[{26+4*n}:{27+4*n}], v57 offset:{32*n+1280}")
    A(f"s_mul_i32 s50, s{S_CT}, 54\ns_add_u32 s50, s50, s59\ns_mul_i32 s50, s50, 5120\ns_add_u32 s50, s50, {W2F_OFF}")
    A("v_add_u32 v23, 4096, v22\ns_waitcnt lgkmcnt(0)")
    for n in range(4):
        A(f"buffer_store_dwordx4 v[{24+4*n}:{27+4*n}], v22, s[32:35], s50 offen offset:{1024*n} {SC}")
    A(f"buffer_store_dwordx4 v[40:43], v23, s[32:35], s50 offen {SC}")
    A("s_branch L_ld_h2w_ret")
    A("L_ld_h3:")
    store_flags(A, 58, 1, 32, 64, xcc=True)
    A("s_branch L_ld_h3_ret")
    A("L_ld_p2:")
    if opt("PRIOL1"): A("s_setprio 0")
    stamp(A, 3)
    if opt("P1ONLY"):
        stamp_flush(A, 0, WS, 9)
        A("s_endpgm")
    if opt("WLATE", 1):
        A(f"v_mov_b32 v16, {LCNT + 20}")
        A(f"s_cmp_eq_u32 s{S_J}, 1\ns_cbranch_scc0 L_ld_ww")
        spin(A, "L_ld_spw", 48, 11, 32, xcc=True)
        A("v_mov_b32 v17, 1\nds_write_b32 v16, v17\ns_waitcnt lgkmcnt(0)\ns_branch L_ld_wgo")
        A("L_ld_ww:\nds_read_b32 v17, v16\ns_waitcnt lgkmcnt(0)\ns_nop 0\nv_readfirstlane_b32 s50, v17\ns_nop 3\ns_cmp_eq_u32 s50, 1\ns_cbranch_scc1 L_ld_wgo")
        A(f"s_sub_u32 s{S_SPIN}, s{S_SPIN}, 1\ns_cmp_eq_u32 s{S_SPIN}, 0\ns_cbranch_scc0 L_ld_ww")
        A("L_ld_wgo:")
    p2(A)

def p2(A):
    J = S_J
    HSC = "" if opt("HPLAIN") else SC
    WSC = "" if opt("WPLAIN") else SC
    if opt("W2NT"): WSC += " nt"
    ACC = 16
    SET = [96, 132, 168]
    XR = 204
    VP = 214
    acc = lambda nt, a: ACC + 4 * (4 * nt + a)
    srd(A, 24, WS, WS_USED)
    A("v_lshlrev_b32 v2, 4, v1\nv_add_u32 v3, 4096, v2")
    MXLAST = opt("MXLAST", 1)
    if MXLAST:
        A(f"s_add_u32 s44, s{J}, 12\ns_mov_b32 s45, s44")
    else:
        A(f"s_mov_b32 s44, s{J}\ns_mov_b32 s45, s44")
    A(f"s_mul_i32 s49, s{S_CT}, {54*5120}\ns_add_u32 s49, s49, {W2F_OFF}")
    def adv(r):
        A(f"s_add_u32 s{r}, s{r}, 4\ns_cmp_ge_u32 s{r}, 54\ns_cselect_b32 s{r}, s{J}, s{r}")
    def loadB(si):
        b = SET[si]
        A("s_mul_i32 s50, s44, 5120\ns_add_u32 s50, s50, s49")
        for n in range(4):
            A(f"buffer_load_dwordx4 v[{b+4*n}:{b+4*n+3}], v2, s[24:27], s50 offen offset:{1024*n} {WSC}")
        A(f"buffer_load_dwordx4 v[{b+16}:{b+19}], v3, s[24:27], s50 offen {WSC}")
        adv(44)
    NB0 = opt("NB0", 3)
    for si in range(NB0): loadB(si)
    A(f"s_lshr_b32 s50, s{S_T0}, 1\ns_lshl_b32 s50, s50, 7\ns_add_u32 s50, s50, {FH_OFF}")
    if MXLAST:
        A("v_min_u32 v14, 10, v1\nv_add_u32 v14, 5, v14\nv_lshlrev_b32 v14, 3, v14\nv_add_u32 v15, s50, v14")
    else:
        A("v_and_b32 v14, 15, v1\nv_lshlrev_b32 v14, 3, v14\nv_add_u32 v15, s50, v14")
    A(f"s_cmp_eq_u32 s{J}, 0\ns_cbranch_scc0 L_p2_np0")
    A(f"buffer_load_dwordx2 v[{VP}:{VP+1}], v15, s[24:27], 0 offen {SC}")
    A("L_p2_np0:")
    srd(A, 28, WS, 4 * HF_TILE)
    A(f"s_mul_i32 s50, s{S_T0}, {4*HF_TILE}")
    if HF_OFF: A(f"s_add_u32 s50, s50, {HF_OFF}")
    A("s_add_u32 s28, s28, s50\ns_addc_u32 s29, s29, 0")
    srd(A, 32, X_, X_BYTES)
    srd(A, 40, OUT, X_BYTES)
    for a_ in range(4):
        A(f"s_add_u32 s50, s{J}, {a_}\ns_and_b32 s50, s50, 3\ns_mul_i32 s50, s50, {HF_TILE}\nv_add_u32 v{4+a_}, s50, v2")
    RSTR = 336
    A(f"s_lshl_b32 s50, s{J}, 6\nv_add_u32 v8, s50, v1")
    A(f"s_mov_b32 s50, 3277\ns_mul_i32 s38, s{S_T0}, 1280\ns_mul_i32 s39, s{S_CT}, 160\ns_add_u32 s38, s38, s39")
    for n in range(5):
        A(f"v_add_u32 v9, {256*n}, v8\nv_mul_lo_u32 v10, s50, v9\nv_lshrrev_b32 v10, 16, v10")
        A("v_mul_u32_u24 v11, 20, v10\nv_sub_u32 v11, v9, v11")
        A(f"v_mul_u32_u24 v12, {RSTR}, v10\nv_lshlrev_b32 v13, 4, v11\nv_add_u32 v{220+n}, v12, v13")
        A("v_lshrrev_b32 v12, 5, v10\nv_mul_u32_u24 v12, 40960, v12\nv_and_b32 v10, 31, v10\nv_mul_u32_u24 v10, 81920, v10")
        A(f"v_lshlrev_b32 v11, 3, v11\nv_add3_u32 v{225+n}, v10, v12, v11")
    A(f"v_and_b32 v9, 15, v1\nv_mul_u32_u24 v9, {RSTR}, v9\nv_lshrrev_b32 v10, 4, v1\nv_lshlrev_b32 v10, 4, v10\nv_add_u32 v230, v9, v10")
    FFR = 236
    A(f"s_add_u32 s50, s{J}, 2\ns_and_b32 s50, s50, 3\ns_lshl_b32 s50, s50, 3\nv_lshrrev_b32 v9, 4, v1\nv_lshlrev_b32 v9, 1, v9\nv_add_u32 v9, s50, v9")
    A(f"s_mov_b32 s51, 0x3a000000\ns_mov_b32 s52, 0xba000000\ns_cmp_lt_u32 s{S_CT}, 4\ns_cselect_b32 s52, s51, s52")
    A("v_and_b32 v10, 15, v1\nv_lshlrev_b32 v10, 6, v10")
    for a_ in range(4):
        A(f"s_add_u32 s50, s{J}, {a_}\ns_and_b32 s50, s50, 3\ns_lshr_b32 s53, s50, 1\ns_lshl_b32 s53, s53, 5\ns_and_b32 s50, s50, 1\ns_lshl_b32 s50, s50, 10")
        A(f"s_add_u32 s50, s50, s53\ns_add_u32 s50, s50, s{S_T0}\nv_add_u32 v11, s50, v10")
        for k, ds in enumerate([0, 1, 32, 33]):
            A(f"v_add_u32 v12, {ds}, v9\nv_mul_u32_u24 v12, v11, v12\nv_and_b32 v12, 0x7ff, v12\nv_cvt_f32_u32 v12, v12")
            A(f"v_mul_f32 v13, s51, v12\nv_mul_f32 v12, s52, v12\nv_cos_f32 v13, v13\nv_sin_f32 v12, v12\ns_nop 0\nv_cvt_pk_bf16_f32 v{FFR+4*a_+k}, v13, v12")
    def loadA(si):
        b = SET[si] + 20
        A("s_lshl_b32 s50, s45, 10")
        for a_ in range(4):
            A(f"buffer_load_dwordx4 v[{b+4*a_}:{b+4*a_+3}], v{4+a_}, s[28:31], s50 offen {HSC}")
        adv(45)
    def loadT(si):
        b = SET[si]
        A("s_mov_b32 s50, s46")
        for n in range(5):
            A(f"buffer_load_dwordx4 v[{b+4*n}:{b+4*n+3}], v10, s[24:27], s50 offen {SC}")
            if n < 4: A("s_add_u32 s50, s50, s47")
    def mfmas(si):
        b = SET[si]
        for a_ in range(4):
            for nt in range(5):
                c = acc(nt, a_)
                if not opt("NOCOMP2"):
                    A(f"{MFMA16} v[{c}:{c+3}], v[{b+4*nt}:{b+4*nt+3}], v[{b+20+4*a_}:{b+23+4*a_}], v[{c}:{c+3}]")
    def last_step(si):
        b = SET[si]
        def grp(a_):
            for nt in range(5):
                c = acc(nt, a_)
                if not opt("NOCOMP2"):
                    A(f"{MFMA16} v[{c}:{c+3}], v[{b+4*nt}:{b+4*nt+3}], v[{FFR+4*a_}:{FFR+4*a_+3}], v[{c}:{c+3}]")
        def addr(a_):
            A(f"s_add_u32 s50, s{J}, {a_}\ns_and_b32 s50, s50, 3\ns_mul_i32 s50, s50, {16*336}\ns_mul_i32 s51, s{J}, {64*336}\ns_add_u32 s50, s50, s51\nv_add_u32 v{232+a_}, s50, v230")
        def wr(a_):
            for nt in range(5):
                c = acc(nt, a_)
                A(f"ds_write_b128 v{232+a_}, v[{c}:{c+3}] offset:{nt*64}")
        grp(0); addr(0); addr(1); grp(1); addr(2); wr(0); grp(2); addr(3); wr(1); grp(3); A("s_nop 3"); wr(2); A("s_nop 3"); wr(3)
    def xorA(si):
        b = SET[si] + 20
        for k in range(16): A(f"v_xor_b32 v{b+k}, s48, v{b+k}")
        A("s_nop 0")
    for i in range(80): A(f"v_mov_b32 v{ACC+i}, 0")
    A(f"v_lshrrev_b32 v10, 4, v1\nv_mul_u32_u24 v10, {TF_ROW}, v10\nv_and_b32 v11, 15, v1")
    A(f"s_mul_i32 s50, s{S_CT}, 80\nv_add_u32 v12, s50, v11\nv_sub_u32 v13, 576, v12")
    A(f"s_cmp_lt_u32 s{S_CT}, 4\ns_cselect_b64 s[60:61], -1, 0\nv_cndmask_b32 v12, v13, v12, s[60:61]")
    A("v_lshlrev_b32 v12, 4, v12\nv_add_u32 v10, v10, v12")
    A(f"s_sub_u32 s46, 32, s{S_T0}\ns_and_b32 s46, s46, 31\ns_cmp_lt_u32 s{S_CT}, 4\ns_cselect_b32 s46, s{S_T0}, s46")
    A(f"s_mul_i32 s46, s46, {TF_T0}\ns_add_u32 s46, s46, {TF_OFF}")
    A(f"s_mov_b32 s47, 256\ns_mov_b32 s50, -256\ns_cmp_lt_u32 s{S_CT}, 4\ns_cselect_b32 s47, s47, s50\ns_cselect_b32 s50, 0, 1024\ns_cselect_b32 s48, 0x80000000, 0")
    A("s_add_u32 s46, s46, s50")
    A(f"s_add_u32 s50, s{J}, 2\ns_and_b32 s50, s50, 3\ns_mul_i32 s50, s50, {4*TF_ROW}\ns_add_u32 s46, s46, s50")
    A(f"s_lshl_b32 s50, s{S_CT}, 10\ns_add_u32 s50, s50, {FT_OFF}\nv_lshlrev_b32 v12, 3, v1\nv_add_u32 v12, s50, v12")
    A("v_and_b32 v13, 15, v1\nv_lshlrev_b32 v13, 3, v13\nv_add_u32 v13, s50, v13\nv_add_u32 v13, 512, v13")
    A(f"s_lshr_b32 s50, s{S_T0}, 1\ns_lshl_b32 s50, s50, 7\ns_add_u32 s50, s50, {FH_OFF}\nv_min_u32 v9, 4, v1\nv_lshlrev_b32 v9, 3, v9\nv_add_u32 v9, s50, v9")
    A(f"s_cmp_eq_u32 s{J}, 0\ns_cbranch_scc0 L_p2_lw")
    A("s_waitcnt vmcnt(0)")
    if opt("SPINSTAMP") == "L_p2_sp1": stamp(A)
    spin(A, "L_p2_sp1", VP, 15, 24, xcc=True)
    A(f"v_mov_b32 v14, {LCNT + 16}\nv_mov_b32 v15, 1\nds_write_b32 v14, v15\ns_waitcnt lgkmcnt(0)")
    A("s_branch L_p2_go")
    A("L_p2_lw:")
    if opt("P2ONLY"): A("s_branch L_p2_go")
    A(f"v_mov_b32 v14, {LCNT + 16}")
    A("L_p2_lw1:\nds_read_b32 v15, v14\ns_waitcnt lgkmcnt(0)\ns_nop 0\nv_readfirstlane_b32 s50, v15\ns_nop 3\ns_cmp_eq_u32 s50, 1\ns_cbranch_scc1 L_p2_go")
    A(f"s_sleep 1\ns_sub_u32 s{S_SPIN}, s{S_SPIN}, 1\ns_cmp_eq_u32 s{S_SPIN}, 0\ns_cbranch_scc0 L_p2_lw1")
    A("L_p2_go:")
    stamp(A, 5)
    for si in range(NB0): loadA(si)
    for si in range(NB0, 3):
        loadB(si); loadA(si)
    def loadX():
        for n in range(5):
            A(f"buffer_load_dwordx2 v[{XR+2*n}:{XR+2*n+1}], v{225+n}, s[32:35], s38 offen")
    XLATE = opt("XLATE", 1)
    if not XLATE: loadX()
    def step(si, vm, pre):
        A(f"s_waitcnt vmcnt({vm})")
        mfmas(si)
        pre()
    reg = lambda si: (lambda: (loadB(si), loadA(si)))
    order = [(si, 4) for si in range(NB0)] + [(si, 9) for si in range(NB0, 3)] + ([] if XLATE else [(-1, 5)])
    for st_ in range(3):
        idx = max(i for i, (si, n) in enumerate(order) if si == st_)
        younger = sum(n for (si, n) in order[idx+1:]) + 9 * st_
        step(st_, younger, reg(st_))
        if opt("STEPSTAMP"): stamp(A)
    stamp(A)
    if MXLAST: A(f"buffer_load_dwordx2 v[{VP+4}:{VP+5}], v9, s[24:27], 0 offen {SC}")
    A("s_mov_b32 s51, 2")
    A("L_p2_loop:")
    for si in range(3):
        step(si, 18, reg(si))
        if opt("STEPSTAMP"): stamp(A)
    A("s_cmp_eq_u32 s51, 2\ns_cbranch_scc0 L_p2_nt")
    if MXLAST and not opt("NOMCHK"): spin(A, "L_p2_spm", VP + 4, 9, 24, xcc=True)
    if not opt("TLATE", 1):
        A(f"buffer_load_dwordx2 v[{VP}:{VP+1}], v12, s[24:27], 0 offen {SC}\nbuffer_load_dwordx2 v[{VP+2}:{VP+3}], v13, s[24:27], 0 offen {SC}")
    A("L_p2_nt:")
    A("s_sub_u32 s51, s51, 1\ns_cmp_lg_u32 s51, 0\ns_cbranch_scc1 L_p2_loop")
    stamp(A)
    TLATE = opt("TLATE", 1)
    if TLATE:
        A(f"buffer_load_dwordx2 v[{VP}:{VP+1}], v12, s[24:27], 0 offen {SC}\nbuffer_load_dwordx2 v[{VP+2}:{VP+3}], v13, s[24:27], 0 offen {SC}")
    step(0, 18, reg(0))
    def tcheck(tag, epoch):
        if not opt("NOTCHK"):
            spin(A, tag + "2", VP, 12, 24)
            spin(A, tag + "3", VP + 2, 13, 24)
        if epoch:
            A(f"s_cmp_eq_u32 s2, 0\ns_cbranch_scc0 {tag}_noep\ns_cmp_eq_u32 s{J}, 0\ns_cbranch_scc0 {tag}_noep")
            A(f"v_mov_b32 v14, s{S_E}\nv_mov_b32 v15, {EP_OFF}\ns_mov_b64 exec, 1\nbuffer_store_dword v14, v15, s[24:27], 0 offen {SC}\ns_mov_b64 exec, -1")
            A(f"{tag}_noep:")
    if not TLATE: tcheck("L_p2_sp", True)
    stamp(A)
    A(f"s_cmp_lt_u32 s{J}, 2\ns_cbranch_scc0 L_p2_hi")
    step(1, 18, reg(1))
    step(2, 18, lambda: (tcheck("L_p2_lo", True) if TLATE else None, loadT(2), loadX() if XLATE else None))
    xq = 5 if XLATE else 0
    step(0, 14 + xq, lambda: None)
    step(1, 5 + xq, lambda: None)
    A(f"s_waitcnt vmcnt({xq})"); last_step(2)
    A("s_branch L_p2_red")
    A("L_p2_hi:")
    step(1, 18, lambda: ((A("s_waitcnt vmcnt(9)"), tcheck("L_p2_hi", False)) if TLATE else None, loadT(1), loadX() if XLATE else None))
    step(2, 14 + xq, lambda: None)
    step(0, 5 + xq, lambda: None)
    A(f"s_waitcnt vmcnt({xq})"); last_step(1)
    A("L_p2_red:")
    stamp(A)
    A("s_waitcnt lgkmcnt(0)\ns_barrier")
    R0 = 96
    def rd(n):
        for w in range(4):
            r = R0 + 16 * n + 4 * w
            A(f"ds_read_b128 v[{r}:{r+3}], v{220+n} offset:{w*64*336}")
    rd(0); rd(1); rd(2)
    OSC = SC if opt("OUTSC") else ""
    for n in range(5):
        r = R0 + 16 * n; x = XR + 2 * n
        if n == 0: A("s_waitcnt vmcnt(0) lgkmcnt(8)")
        elif n == 1: A("s_waitcnt lgkmcnt(8)")
        elif n == 2: A("s_waitcnt lgkmcnt(8)")
        elif n == 3: A("s_waitcnt lgkmcnt(4)")
        else: A("s_waitcnt lgkmcnt(0)")
        A(f"v_pk_add_f32 v[{r}:{r+1}], v[{r}:{r+1}], v[{r+4}:{r+5}]\nv_pk_add_f32 v[{r+2}:{r+3}], v[{r+2}:{r+3}], v[{r+6}:{r+7}]")
        A(f"v_pk_add_f32 v[{r+8}:{r+9}], v[{r+8}:{r+9}], v[{r+12}:{r+13}]\nv_pk_add_f32 v[{r+10}:{r+11}], v[{r+10}:{r+11}], v[{r+14}:{r+15}]")
        if n + 3 < 5: pass
        A(f"v_lshlrev_b32 v{r+4}, 16, v{x}\nv_and_b32 v{r+5}, 0xffff0000, v{x}\nv_lshlrev_b32 v{r+6}, 16, v{x+1}\nv_and_b32 v{r+7}, 0xffff0000, v{x+1}")
        A(f"v_pk_add_f32 v[{r}:{r+1}], v[{r}:{r+1}], v[{r+8}:{r+9}]\nv_pk_add_f32 v[{r+2}:{r+3}], v[{r+2}:{r+3}], v[{r+10}:{r+11}]")
        A(f"v_pk_add_f32 v[{r}:{r+1}], v[{r}:{r+1}], v[{r+4}:{r+5}]\nv_pk_add_f32 v[{r+2}:{r+3}], v[{r+2}:{r+3}], v[{r+6}:{r+7}]")
        A(f"v_cvt_pk_bf16_f32 v{x}, v{r}, v{r+1}\nv_cvt_pk_bf16_f32 v{x+1}, v{r+2}, v{r+3}")
        A(f"buffer_store_dwordx2 v[{x}:{x+1}], v{225+n}, s[40:43], s38 offen {OSC}")
        if n == 0: rd(3)
        if n == 1: rd(4)
    stamp(A)
    if opt("DBGT"):
        A(f"s_waitcnt vmcnt(0)\ns_memrealtime s[90:91]\ns_waitcnt lgkmcnt(0)")
        A(f"s_cmp_eq_u32 s{S_J}, 1\ns_cbranch_scc0 L_dbg_d\ns_cmp_lt_u32 s2, 8\ns_cbranch_scc0 L_dbg_d")
        srd(A, 92, DBG, 256)
        A("s_lshl_b32 s96, s2, 3\nv_mov_b32 v4, s88\nv_mov_b32 v5, s90\nv_mov_b32 v6, 0\ns_mov_b64 exec, 1\nbuffer_store_dwordx2 v[4:5], v6, s[92:95], s96 offen\ns_waitcnt vmcnt(0)")
        A("L_dbg_d:")
    if opt("CLK") and asmlib.PROFILE:
        A("s_memtime s[90:91]\ns_waitcnt lgkmcnt(0)\ns_sub_u32 s90, s90, s88\ns_mov_b32 m0, 62\nv_writelane_b32 v0, s90, m0")
    stamp_flush(A, 0, WS, 9)
    A("s_endpgm")

def gen(A, name):
    global KNAME
    KNAME = name
    kernel_head(A, name)
    entry(A)
    if opt("P2ONLY"):
        A(f"s_mov_b32 s{S_SPIN}, 1\ns_cmp_lt_u32 s3, 4\ns_cbranch_scc1 L_end\ns_sub_u32 s{S_J}, s3, 4\ns_waitcnt lgkmcnt(0)\ns_branch L_ld_p2")
    A("s_cmp_ge_u32 s3, 4\ns_cbranch_scc1 L_loader")
    if opt("PRIOC"): A(f"s_setprio {opt('PRIOC')}")
    jobs_issue(A)
    A(f"s_cmp_lt_u32 s{S_C}, 5\ns_cbranch_scc1 L_mx")
    p1_hh(A)
    p1_mx(A)
    loader(A)
    A("L_end:\ns_endpgm\nL_code_end:")
```

```python
from asmlib import *
import asmlib
from layout import *

MFMA32 = "v_mfma_f32_32x32x16_bf16"
MFMA16 = "v_mfma_f32_16x16x32_bf16"
RING = 32768; NS = 4
SLOT = 20480; NS2 = 6
LX = NS2 * SLOT
LW = 132 * 1024
LST = 152 * 1024
LCS = LST + 1024
LCNT = LST + 2048
LDS_TOTAL = LCNT + 64
X_, SRE, SIM, HRE, HIM, WS = 4, 6, 8, 10, 12, 16
W1, W2, OUT, DBG = 64, 66, 68, 70
S_B, S_C, S_F0, S_J = 18, 19, 20, 21
S_T0, S_CT = 72, 73
S_SPIN = 74
SC = "sc1"
SPIN_MAX = 200000
CPW = 3

MAGIC = 0x5A3C96E1
S_E, S_EM = 75, 76
S_XCC = 77
S_LOCAL = 78

def spin(A, name, vp, vaddr, srdp, xcc=False):
    A(f"{name}:")
    if xcc:
        A(f"v_xor_b32 v{vp+1}, s{S_EM}, v{vp+1}\nv_cmp_ne_u32 vcc, s{S_E}, v{vp}\nv_cmp_lt_u32 s[60:61], 15, v{vp+1}\ns_nop 3\ns_or_b64 vcc, vcc, s[60:61]")
    else:
        A(f"v_cmp_ne_u32 vcc, s{S_E}, v{vp}\nv_cmp_ne_u32 s[60:61], s{S_EM}, v{vp+1}\ns_nop 3\ns_or_b64 vcc, vcc, s[60:61]")
    A(f"s_cbranch_vccz {name}_ok")
    if opt("P2ONLY"): A(f"s_branch {name}_ok")
    A(f"s_sub_u32 s{S_SPIN}, s{S_SPIN}, 1\ns_cmp_eq_u32 s{S_SPIN}, 0\ns_cbranch_scc1 {name}_ok")
    A(f"s_sleep {opt('SLEEP', 4)}")
    A(f"buffer_load_dwordx2 v[{vp}:{vp+1}], v{vaddr}, s[{srdp}:{srdp+3}], 0 offen {SC}\ns_waitcnt vmcnt(0)")
    if opt("SPINSTAMP") == name: stamp(A)
    A(f"s_branch {name}\n{name}_ok:")

def store_flags(A, vaddr, nlanes, srdp, vt, xcc=False, local=None):
    if xcc:
        A(f"s_xor_b32 s62, s{S_EM}, s{S_XCC}\nv_mov_b32 v{vt}, s{S_E}\nv_mov_b32 v{vt+1}, s62\ns_mov_b64 exec, {(1 << nlanes) - 1}")
    else:
        A(f"v_mov_b32 v{vt}, s{S_E}\nv_mov_b32 v{vt+1}, s{S_EM}\ns_mov_b64 exec, {(1 << nlanes) - 1}")
    if local:
        A(f"s_cmp_eq_u32 s{S_LOCAL}, 1\ns_cbranch_scc1 {local}_fp")
    A(f"buffer_store_dwordx2 v[{vt}:{vt+1}], v{vaddr}, s[{srdp}:{srdp+3}], 0 offen {SC}")
    if local:
        A(f"s_branch {local}_fd\n{local}_fp:")
        A(f"buffer_store_dwordx2 v[{vt}:{vt+1}], v{vaddr}, s[{srdp}:{srdp+3}], 0 offen")
        A(f"{local}_fd:")
    A("s_mov_b64 exec, -1")

def flag_addr_h(A, v):
    A(f"s_lshl_b32 s62, s{S_B}, 4\ns_add_u32 s62, s62, s{S_C}\ns_lshl_b32 s62, s62, 3\ns_add_u32 s62, s62, {FH_OFF}\nv_mov_b32 v{v}, s62")
def flag_addr_t(A, v):
    A(f"s_lshl_b32 s62, s{S_C}, 4\ns_add_u32 s62, s62, s{S_B}\ns_lshl_b32 s62, s62, 3\ns_add_u32 s62, s62, {FT_OFF}")
    A(f"v_lshlrev_b32 v{v}, 10, v1\nv_add_u32 v{v}, s62, v{v}")
def flag_addr_early(A, v):
    A(f"s_lshl_b32 s62, s{S_B}, 4\ns_add_u32 s62, s62, s{S_C}\ns_lshl_b32 s62, s62, 3\ns_add_u32 s58, s62, {FR1_OFF}")
    A(f"s_lshl_b32 s62, s{S_C}, 4\ns_add_u32 s62, s62, s{S_B}\ns_lshl_b32 s62, s62, 3\ns_add_u32 s62, s62, {FC1_OFF}")
    A(f"s_cmp_eq_u32 s3, 1\ns_cselect_b32 s58, s62, s58\nv_mov_b32 v{v}, s58")

def epoch_ready(A):
    A("s_waitcnt lgkmcnt(0)")
    A(f"s_add_u32 s{S_E}, s{S_E}, 1\ns_xor_b32 s{S_EM}, s{S_E}, {MAGIC}")
    srd(A, 48, WS, WS_USED)

def lds_arrive(A, word, vt, sdst):
    A(f"v_mov_b32 v{vt}, {LCNT + 4*word}\nv_mov_b32 v{vt+1}, 1\ns_mov_b64 exec, 1")
    A(f"ds_add_rtn_u32 v{vt+1}, v{vt}, v{vt+1}\ns_waitcnt lgkmcnt(0)\ns_mov_b64 exec, -1\ns_nop 0")
    A(f"v_readfirstlane_b32 s{sdst}, v{vt+1}")
    A("s_nop 3")

def code_prefetch(A, tag, mode):
    A(f"s_getpc_b64 s[50:51]\nJ_pc{tag}:")
    A(f"s_sub_u32 s50, s50, J_pc{tag}-{KNAME}\ns_subb_u32 s51, s51, 0")
    A(f"s_mov_b32 s52, ((L_code_end-{KNAME})>>7)-1")
    def lines(first_expr, n, dst):
        A(f"v_add_u32 v22, {first_expr}, v1\nv_min_u32 v22, s52, v22\nv_lshlrev_b32 v22, 7, v22")
        A("v_mov_b32 v23, s51\nv_add_co_u32 v22, vcc, s50, v22\ns_nop 1\nv_addc_co_u32 v23, vcc, 0, v23, vcc")
        A(f"global_load_dword v{dst}, v[22:23], off")
    if mode == 0:
        A("s_lshr_b32 s53, s2, 3\ns_mul_i32 s53, s53, 6\ns_mov_b64 exec, 63")
        lines("s53", 1, 127)
        A("s_mov_b64 exec, -1")
    elif mode == 4:
        A("s_lshr_b32 s53, s2, 3\ns_and_b32 s53, s53, 3\ns_mul_i32 s53, s53, 48\ns_mov_b64 exec, 0xffffffffffff")
        lines("s53", 1, 127)
        A("s_mov_b64 exec, -1")
    elif mode == 5:
        A("s_lshr_b32 s53, s2, 3\ns_and_b32 s53, s53, 1\ns_mul_i32 s53, s53, 96")
        lines("s53", 1, 126)
        A("s_add_u32 s53, s53, 64\ns_mov_b64 exec, 0xffffffff")
        lines("s53", 1, 127)
        A("s_mov_b64 exec, -1")
    elif mode in (1, 2):
        for n in range(4): lines(64 * n, 1, (124 if mode == 1 else 24) + n)
    elif mode == 3 and tag == "a":
        lines(0, 1, 125)
        A(f"s_mov_b32 s53, (L_loader-{KNAME})>>7\ns_mov_b64 exec, 0xffffff")
        lines("s53", 1, 126)
        A("s_mov_b64 exec, -1")
    else:
        lines(64, 1, 24); lines(128, 1, 25)

def entry(A):
    A("s_cmp_ge_u32 s2, 256\ns_cbranch_scc1 L_end")
    A(f"s_load_dwordx4 s[4:7], s[0:1], {KA_X}")
    A(f"s_load_dwordx4 s[8:11], s[0:1], {KA_SIM}")
    A(f"s_load_dwordx2 s[12:13], s[0:1], {KA_HIM}")
    A(f"s_load_dwordx4 s[64:67], s[0:1], {KA_W1}")
    A(f"s_load_dwordx4 s[68:71], s[0:1], {KA_OUT}")
    A(f"s_load_dwordx2 s[16:17], s[0:1], {KA_WS}")
    A("v_lshrrev_b32 v2, 6, v0\nv_and_b32 v1, 63, v0\ns_nop 0\nv_readfirstlane_b32 s3, v2")
    if opt("CODEPF", 1) and opt("CPMODE", 1) in (0, 1, 3, 4, 5):
        A(f"s_nop 3\ns_cmp_eq_u32 s3, {CPW}\ns_cbranch_scc0 L_nocp")
        code_prefetch(A, "a", opt("CPMODE", 1))
        A("L_nocp:")
    A("s_and_b32 s24, s2, 7\ns_lshr_b32 s25, s2, 3\ns_lshr_b32 s27, s25, 3\ns_and_b32 s28, s25, 7")
    if opt("MAP1", 1):
        A(f"s_lshl_b32 s26, s24, 1\ns_lshr_b32 s29, s25, 4\ns_add_u32 s{S_B}, s26, s29\ns_and_b32 s{S_C}, s25, 15")
    else:
        A(f"s_lshr_b32 s26, s24, 1\ns_lshl_b32 s26, s26, 2\ns_add_u32 s{S_B}, s26, s27")
        A(f"s_and_b32 s26, s24, 1\ns_lshl_b32 s26, s26, 3\ns_add_u32 s{S_C}, s26, s28")
    A(f"s_lshl_b32 s26, s{S_C}, 6\ns_lshl_b32 s29, s{S_C}, 7\ns_sub_u32 s29, s29, 320")
    A(f"s_cmp_lt_u32 s{S_C}, 5\ns_cselect_b32 s{S_F0}, s26, s29")
    A(f"s_lshl_b32 s24, s24, 2\ns_add_u32 s{S_T0}, s24, s27\ns_mov_b32 s{S_CT}, s28")
    A(f"s_mov_b32 s{S_SPIN}, {SPIN_MAX}")
    A(f"s_getreg_b32 s{S_XCC}, hwreg(HW_REG_XCC_ID)\ns_and_b32 s{S_XCC}, s{S_XCC}, 15")
    if opt("DBGT"): A("s_memrealtime s[88:89]")
    stamp_init(A)
    if opt("T0STAMP"): stamp(A, force=True)
    if opt("P2ONLY"): args_ready(A)

def args_ready(A):
    A("s_waitcnt lgkmcnt(0)")
    if opt("CLK"): A("s_memtime s[88:89]\ns_waitcnt lgkmcnt(0)")
    A(f"s_mov_b32 s62, {EP_OFF}\ns_load_dword s{S_E}, s[{WS}:{WS+1}], s62")
    stamp(A, 0, force=True)

def jobs_issue(A):
    A("s_cmp_eq_u32 s3, 0\ns_cbranch_scc1 J_x_i\ns_cmp_eq_u32 s3, 1\ns_cbranch_scc1 J_c_i")
    args_ready(A)
    srd(A, 36, WS, WS_USED)
    if opt("TLBPF", 1):
        A("s_cmp_eq_u32 s3, 2\ns_cbranch_scc0 J_i_done")
        srd(A, 40, OUT, X_BYTES); srd(A, 44, W2, W2_BYTES)
        A("v_lshlrev_b32 v22, 20, v1")
        A(f"s_mov_b64 exec, {(1 << ((WS_USED >> 20) + 1)) - 1}\nbuffer_load_dword v125, v22, s[36:39], 0 offen {SC}")
        A(f"s_mov_b64 exec, 7\nbuffer_load_dword v126, v22, s[40:43], 0 offen {SC}\nbuffer_load_dword v127, v22, s[44:47], 0 offen\ns_mov_b64 exec, -1")
        if opt("INPF"):
            srd(A, 40, X_, X_BYTES); srd(A, 44, W1, W1_BYTES)
            A("v_lshlrev_b32 v22, 7, v1\ns_mul_i32 s50, s2, 10240\ns_mul_i32 s51, s2, 8704")
            A("buffer_load_dword v124, v22, s[40:43], s50 offen\nbuffer_load_dword v123, v22, s[44:47], s51 offen")
            A("s_add_u32 s50, s50, 8192\ns_add_u32 s51, s51, 8192\ns_mov_b64 exec, 0xffff")
            A("buffer_load_dword v122, v22, s[40:43], s50 offen\ns_mov_b64 exec, 15\nbuffer_load_dword v121, v22, s[44:47], s51 offen\ns_mov_b64 exec, -1")
    A("s_branch J_i_done")
    A("J_x_i:")
    A(f"s_lshr_b32 s48, s{S_C}, 2\ns_and_b32 s49, s{S_C}, 3")
    A(f"s_lshl_b32 s50, s{S_B}, 1\ns_and_b32 s51, s48, 1\ns_add_u32 s50, s50, s51")
    A("s_lshr_b32 s51, s48, 1\ns_lshl_b32 s51, s51, 5\ns_add_u32 s50, s50, s51")
    A("s_lshl_b32 s51, s49, 9\ns_add_u32 s50, s50, s51\ns_mul_i32 s50, s50, 1280")
    A("v_lshrrev_b32 v22, 3, v1\ns_mov_b32 s51, 81920\nv_mul_lo_u32 v22, s51, v22")
    A("v_and_b32 v23, 7, v1\nv_lshlrev_b32 v23, 4, v23\nv_add_u32 v22, v22, v23")
    A(f"v_mov_b32 v20, {LCNT}\nv_mov_b32 v24, 0\nv_mov_b32 v25, 0\nv_mov_b32 v26, 0\nv_mov_b32 v27, 0\nds_write_b128 v20, v[24:27]\nds_write_b128 v20, v[24:27] offset:16")
    args_ready(A)
    srd(A, 24, X_, X_BYTES)
    for i in range(10):
        A(f"buffer_load_dwordx4 v[{32+4*i}:{35+4*i}], v22, s[24:27], s50 offen offset:{128*i}")
    srd(A, 36, WS, WS_USED)
    A("s_branch J_i_done")
    A("J_c_i:")
    A("v_lshrrev_b32 v22, 4, v1\nv_mul_u32_u24 v22, 3456, v22\nv_and_b32 v23, 15, v1\nv_lshlrev_b32 v23, 4, v23\nv_add_u32 v22, v22, v23")
    A(f"s_mul_i32 s50, s{S_B}, {40*3456}\ns_lshl_b32 s51, s{S_F0}, 1\ns_add_u32 s50, s50, s51")
    A(f"s_cmp_eq_u32 s{S_C}, 0\ns_cbranch_scc0 J_c_np")
    A("v_and_b32 v23, 7, v1\nv_lshlrev_b32 v23, 4, v23\nv_bfe_u32 v24, v1, 3, 2\nv_lshlrev_b32 v24, 15, v24\nv_add_u32 v23, v23, v24")
    A(f"v_add_u32 v23, {16384+8192+4096}, v23")
    A("v_mov_b32 v24, 0xbf803f80\nv_mov_b32 v25, 0x3f80bf80\nv_mov_b32 v26, 0xbf803f80\nv_mov_b32 v27, 0x3f80bf80")
    A("ds_write_b128 v23, v[24:27]")
    A("J_c_np:")
    args_ready(A)
    srd(A, 28, W1, W1_BYTES)
    for i in range(10):
        A(f"buffer_load_dwordx4 v[{32+4*i}:{35+4*i}], v22, s[28:31], s50 offen")
        if i < 9: A(f"s_add_u32 s50, s50, {4*3456}")
    srd(A, 36, WS, WS_USED)
    A("J_i_done:")

def dpp_add(A, r, ctrl):
    A(f"v_add_f32_dpp v{r}, v{r}, v{r} {ctrl} row_mask:0xf bank_mask:0xf")

def jobs_finish(A, nG_, tagx):
    nG = tagx
    class _N(str):
        pass
    A("s_cmp_eq_u32 s3, 0\ns_cbranch_scc1 %s\ns_cmp_eq_u32 s3, 1\ns_cbranch_scc1 %s\ns_branch %s" % (f"J_x_{nG}", f"J_c_{nG}", f"J_done_{nG}"))
    A(f"J_x_{nG}:")
    A("v_mov_b32 v22, 0\nv_mov_b32 v23, 0\nv_mov_b32 v24, 0\nv_mov_b32 v25, 0\ns_mov_b32 s52, 0x3f803f80")
    for i in range(10):
        A(f"s_waitcnt vmcnt({9-i+nG_})")
        for k in range(4):
            r = 32 + 4 * i + k
            A(f"v_dot2_f32_bf16 v{22+(k&1)}, v{r}, s52, v{22+(k&1)}")
            A(f"v_dot2_f32_bf16 v{24+(k&1)}, v{r}, v{r}, v{24+(k&1)}")
    A("s_nop 2\nv_add_f32 v22, v22, v23\nv_add_f32 v24, v24, v25\ns_nop 1")
    for ctrl in ["quad_perm:[1,0,3,2]", "quad_perm:[2,3,0,1]", "row_half_mirror"]:
        dpp_add(A, 22, ctrl); dpp_add(A, 24, ctrl); A("s_nop 0")
    A("s_mov_b32 s52, 0x3acccccd\nv_mul_f32 v22, s52, v22\nv_mul_f32 v24, s52, v24")
    A("v_fma_f32 v24, -v22, v22, v24\nv_max_f32 v24, 0, v24\nv_add_f32 v24, 0x3727c5ac, v24\nv_rsq_f32 v23, v24")
    A(f"s_lshl_b32 s52, s{S_B}, 10\ns_lshl_b32 s53, s{S_C}, 5\ns_add_u32 s52, s52, s53\ns_add_u32 s52, s52, {ST_OFF}")
    A("v_lshrrev_b32 v25, 3, v1\nv_lshlrev_b32 v25, 2, v25")
    A("v_and_b32 v26, 7, v1\nv_cmp_eq_u32 vcc, 0, v26\ns_and_saveexec_b64 s[54:55], vcc")
    A(f"buffer_store_dword v22, v25, s[36:39], s52 offen {SC}\nbuffer_store_dword v23, v25, s[36:39], s52 offen offset:512 {SC}")
    A("s_mov_b64 exec, s[54:55]")
    A(f"s_branch J_done_{nG}")
    A(f"J_c_{nG}:")
    for k in range(8): A(f"v_mov_b32 v{72+k}, 0")
    A("s_mov_b32 s52, 0x00003f80\ns_mov_b32 s53, 0x3f800000")
    for i in range(10):
        A(f"s_waitcnt vmcnt({9-i+nG_})")
        for k in range(4):
            r = 32 + 4 * i + k
            A(f"v_dot2_f32_bf16 v{72+2*k}, v{r}, s52, v{72+2*k}")
            A(f"v_dot2_f32_bf16 v{73+2*k}, v{r}, s53, v{73+2*k}")
    A("s_nop 2")
    for sw in ["v_permlane16_swap_b32", "v_permlane32_swap_b32"]:
        for k in range(8): A(f"v_mov_b32 v{80+k}, v{72+k}")
        A("s_nop 0")
        for k in range(8): A(f"{sw} v{72+k}, v{80+k}")
        A("s_nop 0")
        for k in range(8): A(f"v_add_f32 v{72+k}, v{72+k}, v{80+k}")
    A(f"s_lshl_b32 s52, s{S_B}, 13\ns_lshl_b32 s53, s{S_F0}, 2\ns_add_u32 s52, s52, s53\ns_add_u32 s52, s52, {CS_OFF}")
    A(f"v_lshlrev_b32 v22, 5, v1\ns_mov_b32 s53, 16\ns_cmp_lt_u32 s{S_C}, 5\ns_cselect_b32 s53, 8, s53")
    A("v_cmp_gt_u32 vcc, s53, v1\ns_and_saveexec_b64 s[54:55], vcc")
    A(f"buffer_store_dwordx4 v[72:75], v22, s[36:39], s52 offen {SC}\nbuffer_store_dwordx4 v[76:79], v22, s[36:39], s52 offen offset:16 {SC}")
    A("s_mov_b64 exec, s[54:55]")
    A(f"s_branch J_done_{nG}")
    A(f"J_done_{nG}:")
    A(f"s_cmp_ge_u32 s3, 2\ns_cbranch_scc0 J_dn2_{nG}\ns_waitcnt vmcnt(0)")
    if opt("CODEPF", 1) and opt("CPMODE", 1) in (2, 3):
        A(f"s_cmp_eq_u32 s3, {CPW}\ns_cbranch_scc0 J_dn2_{nG}")
        code_prefetch(A, "b" + nG, opt("CPMODE", 1))
    A(f"J_dn2_{nG}:")

def x_addr(A, dst, rowbase_sgpr, tmp):
    A(f"v_and_b32 v{tmp}, 31, v1\nv_add_u32 v{tmp+1}, s{rowbase_sgpr}, v{tmp}\nv_lshlrev_b32 v{tmp+1}, 7, v{tmp+1}")
    A(f"v_bfe_u32 v{tmp}, v1, 1, 3\nv_lshrrev_b32 v{tmp+2}, 5, v1\nv_xor_b32 v{tmp}, v{tmp}, v{tmp+2}")
    A(f"v_lshlrev_b32 v{tmp}, 4, v{tmp}\nv_add_u32 v{dst}, v{tmp+1}, v{tmp}")
    for j in range(1, 4):
        A(f"v_xor_b32 v{dst+j}, {32*j}, v{dst}")
def h_tr_addr(A, dst, tmp):
    A(f"v_bfe_u32 v{tmp}, v1, 5, 1\nv_lshlrev_b32 v{tmp}, 3, v{tmp}\nv_bfe_u32 v{tmp+1}, v1, 2, 2\nv_add_u32 v{tmp}, v{tmp}, v{tmp+1}")
    A(f"v_lshlrev_b32 v{tmp}, 7, v{tmp}")
    A(f"v_bfe_u32 v{tmp+1}, v1, 4, 1\nv_lshlrev_b32 v{tmp+1}, 1, v{tmp+1}\nv_bfe_u32 v{tmp+2}, v1, 1, 1\nv_add_u32 v{tmp+1}, v{tmp+1}, v{tmp+2}")
    A(f"v_bfe_u32 v{tmp+2}, v1, 3, 1\nv_lshlrev_b32 v{tmp+2}, 2, v{tmp+2}\nv_xor_b32 v{tmp+1}, v{tmp+1}, v{tmp+2}")
    A(f"v_lshlrev_b32 v{tmp+1}, 4, v{tmp+1}\nv_add_u32 v{tmp}, v{tmp}, v{tmp+1}")
    A(f"v_and_b32 v{tmp+1}, 1, v1\nv_lshlrev_b32 v{tmp+1}, 3, v{tmp+1}\nv_add_u32 v{dst}, v{tmp}, v{tmp+1}")
def interleave(A, mfmas, fillers, per_gap):
    if opt("NOCOMP1"):
        for f in fillers:
            if not f.startswith("ds_read") and not f.startswith("v_perm"): A(f)
        return
    k = 0
    for i, m in enumerate(mfmas):
        A(m)
        for _ in range(per_gap[i]):
            if k < len(fillers):
                A(fillers[k]); k += 1
    while k < len(fillers):
        A(fillers[k]); k += 1
def h_epilogue_tile(A, acc, mr, cs, tmp, vaddr, soff):
    for i in range(0, 16, 2):
        A(f"v_pk_fma_f32 v[{acc+i}:{acc+i+1}], v[{cs+i}:{cs+i+1}], v[{mr}:{mr+1}], v[{acc+i}:{acc+i+1}] op_sel:[0,0,0] op_sel_hi:[1,0,1] neg_lo:[0,1,0] neg_hi:[0,1,0]")
    for i in range(0, 16, 2):
        A(f"v_pk_mul_f32 v[{acc+i}:{acc+i+1}], v[{acc+i}:{acc+i+1}], v[{mr}:{mr+1}] op_sel:[0,1] op_sel_hi:[1,1]")
    for i in range(0, 16, 2):
        A(f"v_cvt_pk_bf16_f32 v{tmp+i//2}, v{acc+i}, v{acc+i+1}")
    for i in range(8):
        A(f"v_pk_max_i16 v{tmp+i}, v{tmp+i}, 0")
    if opt("LOCALH", 2) != 1:
        A(f"buffer_store_dwordx4 v[{tmp}:{tmp+3}], v{vaddr}, s[36:39], s{soff} offen {SC}")
        A(f"buffer_store_dwordx4 v[{tmp+4}:{tmp+7}], v{vaddr}, s[36:39], s{soff} offen offset:512 {SC}")
        return
    h_epilogue_tile.n += 1
    n = h_epilogue_tile.n
    A(f"s_cmp_eq_u32 s{S_LOCAL}, 1\ns_cbranch_scc1 L_hst{n}_p")
    A(f"buffer_store_dwordx4 v[{tmp}:{tmp+3}], v{vaddr}, s[36:39], s{soff} offen {SC}")
    A(f"buffer_store_dwordx4 v[{tmp+4}:{tmp+7}], v{vaddr}, s[36:39], s{soff} offen offset:512 {SC}")
    A(f"s_branch L_hst{n}_d\nL_hst{n}_p:")
    hst = {0: "", 1: "nt", 2: "sc0", 3: "sc0 nt"}[opt("HST", 0)]
    A(f"buffer_store_dwordx4 v[{tmp}:{tmp+3}], v{vaddr}, s[36:39], s{soff} offen {hst}")
    A(f"buffer_store_dwordx4 v[{tmp+4}:{tmp+7}], v{vaddr}, s[36:39], s{soff} offen offset:512 {hst}")
    A(f"L_hst{n}_d:")
h_epilogue_tile.n = 0
def h_store_voff(A, dst, tmp):
    A(f"v_bfe_u32 v{tmp}, v1, 4, 1\nv_mul_u32_u24 v{tmp}, {58*1024}, v{tmp}")
    A(f"v_lshrrev_b32 v{tmp+1}, 5, v1\nv_lshlrev_b32 v{tmp+1}, 8, v{tmp+1}\nv_add_u32 v{tmp}, v{tmp}, v{tmp+1}")
    A(f"v_and_b32 v{tmp+1}, 15, v1\nv_lshlrev_b32 v{tmp+1}, 4, v{tmp+1}\nv_add_u32 v{dst}, v{tmp}, v{tmp+1}")

def loop_hooks_top(A, tag):
    A(f"s_cmp_eq_u32 s29, s30\ns_cbranch_scc1 {tag}_flag1\n{tag}_flag1_ret:")
def loop_hooks_init(A):
    A(f"s_cmp_lt_u32 s3, 2\ns_cselect_b32 s30, {10 - opt('EARLY_IT', 1)}, 99")
def loop_hooks_ool(A, tag):
    A(f"{tag}_flag1:")
    flag_addr_early(A, 28)
    A("s_waitcnt vmcnt(0)")
    store_flags(A, 28, 1, 48, 30, xcc=True)
    A(f"s_branch {tag}_flag1_ret")

def publish(A, tag, word, kind, vt):
    A("s_waitcnt vmcnt(0)")
    lds_arrive(A, word, vt, 63)
    A(f"s_cmp_eq_u32 s63, 3\ns_cbranch_scc0 {tag}_np")
    if kind == "h":
        flag_addr_h(A, vt - 1); store_flags(A, vt - 1, 1, 48, vt, xcc=True, local=(tag if opt("LOCALF", 1) else None))
    else:
        flag_addr_t(A, vt - 1); store_flags(A, vt - 1, 8, 48, vt)
    A(f"{tag}_np:")

def p1_hh(A):
    A("L_hh:")
    ACC = 128; P, Q = 32, 64
    XB, WB = 2, 6; XC, WC = 8, 12
    A("s_lshr_b32 s24, s3, 1\ns_and_b32 s25, s3, 1")
    A("s_lshl_b32 s26, s24, 6")
    x_addr(A, XB, 26, 20)
    h_tr_addr(A, WB, 20)
    A("s_lshl_b32 s27, s25, 13\ns_add_u32 s27, s27, 16384")
    A(f"v_add_u32 v{WB}, s27, v{WB}\nv_xor_b32 v{WB+1}, 64, v{WB}")
    for i in range(64): A(f"v_mov_b32 v{ACC+i}, 0")
    for j in range(4): A(f"v_mov_b32 v{XC+j}, v{XB+j}")
    for j in range(2): A(f"v_mov_b32 v{WC+j}, v{WB+j}")
    A(f"v_and_b32 v20, 31, v1\nv_add_u32 v20, s26, v20\nv_lshlrev_b32 v20, 2, v20\nv_add_u32 v20, {LST}, v20")
    A(f"v_lshrrev_b32 v21, 5, v1\nv_lshlrev_b32 v21, 4, v21\ns_lshl_b32 s33, s25, 8\ns_add_u32 s33, s33, {LCS}\nv_add_u32 v21, s33, v21")
    h_store_voff(A, 19, 26)
    A(f"s_lshl_b32 s31, s{S_B}, 3\ns_lshl_b32 s32, s24, 1\ns_add_u32 s31, s31, s32\ns_mul_i32 s31, s31, 58")
    A(f"s_lshr_b32 s32, s{S_F0}, 5\ns_lshl_b32 s33, s25, 1\ns_add_u32 s32, s32, s33\ns_add_u32 s31, s31, s32")
    A(f"s_lshl_b32 s31, s31, 10\ns_add_u32 s31, s31, {HF_OFF}")
    jobs_finish(A, 0, 'h')
    epoch_ready(A)
    A("s_mov_b32 s28, 0")
    loop_hooks_init(A)
    def reads(buf, g):
        out = []
        for jj in range(2):
            j = 2 * g + jj; b = buf + 16 * jj
            out.append(f"ds_read_b128 v[{b}:{b+3}], v{XC+j}")
            out.append(f"ds_read_b64_tr_b16 v[{b+8}:{b+9}], v{WC} offset:{j*2048}")
            out.append(f"ds_read_b64_tr_b16 v[{b+10}:{b+11}], v{WC} offset:{j*2048+512}")
            out.append(f"ds_read_b128 v[{b+4}:{b+7}], v{XC+j} offset:4096")
            out.append(f"ds_read_b64_tr_b16 v[{b+12}:{b+13}], v{WC+1} offset:{j*2048}")
            out.append(f"ds_read_b64_tr_b16 v[{b+14}:{b+15}], v{WC+1} offset:{j*2048+512}")
        return out
    def mfmas(buf):
        out = []
        for jj in range(2):
            b = buf + 16 * jj
            for ft in range(2):
                for st in range(2):
                    a = ACC + 16 * (2 * ft + st)
                    out.append(f"{MFMA32} v[{a}:{a+15}], v[{b+8+4*ft}:{b+11+4*ft}], v[{b+4*st}:{b+3+4*st}], v[{a}:{a+15}]")
        return out
    stamp(A, 1)
    A("s_waitcnt lgkmcnt(0)\ns_barrier")
    stamp(A, 2)
    for r in reads(P, 0):
        if not opt("NOCOMP1"): A(r)
    A("s_mov_b32 s29, 10")
    A("L_hh_loop:")
    A.drop = (["v_mfma"] if opt("NOMF1") else []) + (["ds_read"] if opt("NODS1") else []) + (["v_perm"] if opt("NOPERM") else [])
    loop_hooks_top(A, "L_hh")
    A("s_waitcnt lgkmcnt(0)")
    A("s_cmp_eq_u32 s29, 1\ns_cbranch_scc1 L_hh_pre\nL_hh_pre_ret:")
    if opt("HHSTAMP"): stamp(A)
    upd = [f"v_add_u32 v{XC+j}, s28, v{XB+j}" for j in range(4)] + [f"v_add_u32 v{WC+j}, s28, v{WB+j}" for j in range(2)]
    ring = [f"s_add_u32 s28, s28, {RING}", f"s_and_b32 s28, s28, {NS*RING-1}"]
    pat = opt("HHPAT", 0)
    g1 = [[3, 3, 3, 3, 2, 3, 3, 0], [4, 4, 4, 2, 3, 3, 0, 0], [6, 6, 2, 3, 3, 0, 0, 0]][pat]
    g2 = [[3, 3, 3, 3, 0, 0, 0, 0], [4, 4, 4, 0, 0, 0, 0, 0], [6, 6, 0, 0, 0, 0, 0, 0]][pat]
    interleave(A, mfmas(P), reads(Q, 1) + ring + upd, g1)
    if opt("HHSTAMP"): A("s_waitcnt lgkmcnt(0)"); stamp(A)
    A("s_waitcnt lgkmcnt(0)")
    A("s_barrier")
    if opt("HHSTAMP"): stamp(A)
    interleave(A, mfmas(Q), reads(P, 0), g2)
    A.drop = []
    A("s_sub_u32 s29, s29, 1\ns_cmp_lg_u32 s29, 0\ns_cbranch_scc1 L_hh_loop")
    A("s_waitcnt vmcnt(0) lgkmcnt(0)")
    stamp(A, 3)
    A(f"v_readfirstlane_b32 s{S_LOCAL}, v18")
    A("s_nop 7")
    for st in range(2):
        for ft in range(2):
            A(f"s_add_u32 s32, s31, {(st*4*58+ft)*1024}")
            h_epilogue_tile(A, ACC + 16 * (2 * ft + st), 14 + 2 * st, 96 + 16 * ft, 64 + 8 * ((2 * st + ft) & 3), 19, 32)
    stamp(A, 4)
    publish(A, "L_hh_pub", 0, "h", 30)
    stamp(A)
    stamp_flush(A, 0, WS, 9)
    A("s_endpgm")
    loop_hooks_ool(A, "L_hh")
    A("L_hh_pre:")
    A("ds_read_b32 v14, v20\nds_read_b32 v15, v20 offset:512\nds_read_b32 v16, v20 offset:128\nds_read_b32 v17, v20 offset:640")
    A(f"v_mov_b32 v18, {LCNT + 12}\nds_read_b32 v18, v18")
    for ft in range(2):
        for q in range(4):
            b = 96 + 16 * ft + 4 * q
            A(f"ds_read_b128 v[{b}:{b+3}], v21 offset:{ft*128+q*32}")
    A("s_branch L_hh_pre_ret")

def p1_mx(A):
    A("L_mx:")
    P, Q = 32, 72
    EV, OD = 112, 116
    CE, CO, SE, SO = 120, 124, 128, 132
    HA, HB = 136, 152
    EC, ES, OC, OS = 168, 184, 200, 216
    G = 232
    XAB, WHB = 2, 6
    XAC, XBC, DAC, WHC = 7, 11, 15, 19
    A("v_and_b32 v24, 31, v1\nv_cvt_f32_u32 v24, v24\nv_lshrrev_b32 v25, 5, v1\nv_cvt_f32_u32 v25, v25")
    A("v_mul_f32 v25, 0x3e000000, v25\nv_mul_f32 v25, v25, v24")
    for p in range(2):
        for uh in range(2):
            for u2 in range(2):
                for k in range(2):
                    c = 16 * p + 8 * uh + 2 * u2 + k
                    import struct
                    lit = struct.unpack("<I", struct.pack("<f", c / 32.0))[0]
                    A(f"v_fmamk_f32 v26, v24, {lit:#x}, v25\nv_fract_f32 v26, v26")
                    A(f"v_cos_f32 v{28+k}, v26\nv_sin_f32 v{30+k}, v26")
                A("s_nop 0")
                A(f"v_cvt_pk_bf16_f32 v{G+4*p+2*uh+u2}, v28, v29\nv_cvt_pk_bf16_f32 v{G+16+4*p+2*uh+u2}, v30, v31")
    for i in range(8):
        A(f"v_xor_b32 v{G+8+i}, 0x80008000, v{G+16+i}")
    A("s_lshr_b32 s24, s3, 1\ns_and_b32 s25, s3, 1")
    A("s_lshl_b32 s26, s3, 5\ns_xor_b32 s27, s26, 32")
    x_addr(A, XAB, 26, 24)
    h_tr_addr(A, WHB, 24)
    A(f"s_lshl_b32 s30, s25, 6\nv_xor_b32 v{WHB}, s30, v{WHB}\nv_add_u32 v{WHB}, 16384, v{WHB}")
    for i in range(96): A(f"v_mov_b32 v{HA+i}, 0")
    A("s_lshl_b32 s31, s3, 12\ns_sub_u32 s31, 24576, s31")
    def upd(js=(0, 1, 2, 3), wh=True):
        o = [f"v_add_u32 v{XAC+j}, s28, v{XAB+j}" for j in js] + ([f"v_add_u32 v{WHC}, s28, v{WHB}"] if wh else [])
        o += [f"v_xor_b32 v{XBC+j}, 0x1000, v{XAC+j}" for j in js]
        o += [f"v_add_u32 v{DAC+j}, s31, v{XAC+j}" for j in js]
        return o
    A("s_mov_b32 s28, 0")
    for t in upd(): A(t)
    jobs_finish(A, 0, 'm')
    epoch_ready(A)
    loop_hooks_init(A)
    A("s_mov_b32 s34, 0x05040100\ns_mov_b32 s35, 0x07060302")
    def reads(buf, m):
        out = []
        for jj in range(2):
            j = 2 * m + jj
            out.append(f"ds_read_b128 v[{buf+4*jj}:{buf+4*jj+3}], v{XAC+j}")
        for jj in range(2):
            j = 2 * m + jj
            out.append(f"ds_read_b64_tr_b16 v[{buf+16+4*jj}:{buf+17+4*jj}], v{WHC} offset:{j*2048}")
            out.append(f"ds_read_b64_tr_b16 v[{buf+18+4*jj}:{buf+19+4*jj}], v{WHC} offset:{j*2048+512}")
            out.append(f"ds_read_b128 v[{buf+8+4*jj}:{buf+11+4*jj}], v{XBC+j}")
        for jj in range(2):
            j = 2 * m + jj
            out.append(f"ds_read_b128 v[{buf+24+4*jj}:{buf+27+4*jj}], v{DAC+j}")
            out.append(f"ds_read_b128 v[{buf+32+4*jj}:{buf+35+4*jj}], v{DAC+j} offset:4096")
        return out
    def perms(src, e, o):
        ev = [f"v_perm_b32 v{e+k}, v{src+2*k+1}, v{src+2*k}, s34" for k in range(4)]
        od = [f"v_perm_b32 v{o+k}, v{src+2*k+1}, v{src+2*k}, s35" for k in range(4)]
        return ev, od
    def half(cur, nxt, m_next, extra):
        rd = reads(nxt, m_next)
        if opt("NOCOMP1"):
            for t in extra: A(t)
            return
        xe, xo = perms(cur, EV, OD); ce, co = perms(cur + 24, CE, CO); se, so = perms(cur + 32, SE, SO)
        H = []
        for jj in range(2):
            w = cur + 16 + 4 * jj
            H.append(f"{MFMA32} v[{HA}:{HA+15}], v[{w}:{w+3}], v[{cur+4*jj}:{cur+4*jj+3}], v[{HA}:{HA+15}]")
            H.append(f"{MFMA32} v[{HB}:{HB+15}], v[{w}:{w+3}], v[{cur+8+4*jj}:{cur+11+4*jj}], v[{HB}:{HB+15}]")
        Dm = [f"{MFMA32} v[{EC}:{EC+15}], v[{EV}:{EV+3}], v[{CE}:{CE+3}], v[{EC}:{EC+15}]",
              f"{MFMA32} v[{OC}:{OC+15}], v[{OD}:{OD+3}], v[{CO}:{CO+3}], v[{OC}:{OC+15}]",
              f"{MFMA32} v[{ES}:{ES+15}], v[{EV}:{EV+3}], v[{SE}:{SE+3}], v[{ES}:{ES+15}]",
              f"{MFMA32} v[{OS}:{OS+15}], v[{OD}:{OD+3}], v[{SO}:{SO+3}], v[{OS}:{OS+15}]"]
        if opt("MXSCHED", 1):
            ex = list(extra)
            def take(n):
                t = ex[:n]; del ex[:n]; return t
            pad = lambda n: (take(n) + ["s_nop 0"] * n)[:n]
            ms = H + [Dm[0], Dm[2], Dm[1], Dm[3]]
            gaps = [xe[0:2] + rd[0:3], xe[2:4] + rd[3:6], ce[0:2] + rd[6:9], ce[2:4] + rd[9:12],
                    se + xo[0:2], xo[2:4] + co + pad(2), so + pad(2), None]
            gaps[7] = ex
        else:
            gaps = [xe + rd[0:2], ce + rd[2:4], xo + rd[4:6], co + rd[6:8], se + rd[8:10], so + rd[10:12], extra[:8], extra[8:]]
            ms = H + Dm
        for i in range(8):
            A(ms[i])
            for t in gaps[i]: A(t)
    stamp(A, 1)
    A("s_waitcnt lgkmcnt(0)\ns_barrier")
    stamp(A, 2)
    for r in reads(P, 0):
        if not opt("NOCOMP1"): A(r)
    A("s_mov_b32 s29, 10")
    A("L_mx_loop:")
    A.drop = (["v_mfma"] if opt("NOMF1") else []) + (["ds_read"] if opt("NODS1") else []) + (["v_perm"] if opt("NOPERM") else [])
    loop_hooks_top(A, "L_mx")
    A("s_waitcnt lgkmcnt(0)")
    if opt("HHSTAMP"): stamp(A)
    ring = [f"s_add_u32 s28, s28, {RING}", f"s_and_b32 s28, s28, {NS*RING-1}"]
    if opt("MXSCHED", 1):
        half(P, Q, 1, ring + upd((0, 1), True))
        if opt("HHSTAMP"): A("s_waitcnt lgkmcnt(0)"); stamp(A)
        A("s_waitcnt lgkmcnt(0)")
        A("s_barrier")
        if opt("HHSTAMP"): stamp(A)
        half(Q, P, 0, upd((2, 3), False))
    else:
        half(P, Q, 1, ring + upd())
        A("s_waitcnt lgkmcnt(0)")
        A("s_barrier")
        half(Q, P, 0, [])
    A.drop = []
    A("s_sub_u32 s29, s29, 1\ns_cmp_lg_u32 s29, 0\ns_cbranch_scc1 L_mx_loop")
    A("s_waitcnt vmcnt(0) lgkmcnt(0)")
    stamp(A, 3)
    A(f"v_and_b32 v24, 31, v1\nv_add_u32 v25, s26, v24\nv_lshlrev_b32 v25, 2, v25\nv_add_u32 v25, {LST}, v25")
    A(f"v_add_u32 v26, s27, v24\nv_lshlrev_b32 v26, 2, v26\nv_add_u32 v26, {LST}, v26")
    A("ds_read_b32 v2, v25\nds_read_b32 v3, v25 offset:512\nds_read_b32 v4, v26\nds_read_b32 v5, v26 offset:512")
    A(f"v_mov_b32 v7, {LCNT + 12}\nds_read_b32 v7, v7")
    A(f"v_lshrrev_b32 v27, 5, v1\nv_lshlrev_b32 v27, 4, v27\ns_lshl_b32 s30, s25, 7\ns_add_u32 s30, s30, {LCS}\nv_add_u32 v28, s30, v27")
    for q in range(4):
        A(f"ds_read_b128 v[{32+4*q}:{35+4*q}], v28 offset:{q*32}")
    A(f"s_lshl_b32 s30, s26, 2\ns_add_u32 s30, s30, {LST+512}\nv_add_u32 v28, s30, v27")
    for q in range(4):
        A(f"ds_read_b128 v[{48+4*q}:{51+4*q}], v28 offset:{q*32}")
    h_store_voff(A, 6, 28)
    A(f"s_lshl_b32 s31, s{S_B}, 3\ns_lshl_b32 s30, s24, 1\ns_add_u32 s31, s31, s30\ns_mul_i32 s31, s31, 58")
    A(f"s_lshr_b32 s30, s{S_F0}, 5\ns_add_u32 s30, s30, s25\ns_add_u32 s31, s31, s30")
    A(f"s_lshl_b32 s31, s31, 10\ns_add_u32 s31, s31, {HF_OFF}")
    A(f"s_mul_i32 s30, s25, {4*58*1024}\ns_add_u32 s32, s31, s30")
    A(f"s_xor_b32 s30, s25, 1\ns_mul_i32 s30, s30, {4*58*1024}\ns_add_u32 s33, s31, s30")
    A("s_waitcnt lgkmcnt(0)")
    A(f"v_readfirstlane_b32 s{S_LOCAL}, v7")
    A("s_nop 7")
    h_epilogue_tile(A, HA, 2, 32, 64, 6, 32)
    h_epilogue_tile(A, HB, 4, 32, 72, 6, 33)
    stamp(A, 4)
    if opt("MXPUB", 0): publish(A, "L_mx_pubh", 0, "h", 30)
    stamp(A)
    R = 48
    for i in range(0, 16, 2):
        for a in (EC, OC, ES, OS):
            A(f"v_pk_mul_f32 v[{a+i}:{a+i+1}], v[{a+i}:{a+i+1}], v[{R+i}:{R+i+1}]")
    T0, T1 = 80, 96
    for i in range(0, 16, 2):
        A(f"v_pk_add_f32 v[{T0+i}:{T0+i+1}], v[{EC+i}:{EC+i+1}], v[{OC+i}:{OC+i+1}]")
        A(f"v_pk_add_f32 v[{EC+i}:{EC+i+1}], v[{EC+i}:{EC+i+1}], v[{OC+i}:{OC+i+1}] neg_lo:[0,1] neg_hi:[0,1]")
        A(f"v_pk_add_f32 v[{T1+i}:{T1+i+1}], v[{ES+i}:{ES+i+1}], v[{OS+i}:{OS+i+1}]")
        A(f"v_pk_add_f32 v[{OC+i}:{OC+i+1}], v[{OS+i}:{OS+i+1}], v[{ES+i}:{ES+i+1}] neg_lo:[0,1] neg_hi:[0,1]")
    A("v_and_b32 v24, 31, v1\nv_cmp_eq_u32 s[40:41], 0, v24\ns_nop 3")
    A(f"s_cmp_eq_u32 s{S_C}, 0\ns_cselect_b64 s[40:41], s[40:41], 0\ns_cbranch_scc0 L_mx_nofix")
    for i in range(16):
        A(f"v_cndmask_b32 v{T0+i}, v{T0+i}, v{ES+i}, s[40:41]")
        A(f"v_cndmask_b32 v{T1+i}, v{T1+i}, v{OS+i}, s[40:41]")
        A(f"v_cndmask_b32_e64 v{OC+i}, v{OC+i}, 0, s[40:41]")
    A("L_mx_nofix:")
    ZB = 32
    for k, a in enumerate([T0, T1, EC, OC]):
        for i in range(0, 16, 2):
            A(f"v_cvt_pk_bf16_f32 v{ZB+8*k+i//2}, v{a+i}, v{a+i+1}")
    Fr = lambda p: f"v[{G+4*p}:{G+4*p+3}]"
    Fi = lambda p: f"v[{G+8+4*p}:{G+8+4*p+3}]"
    nFi = lambda p: f"v[{G+16+4*p}:{G+16+4*p+3}]"
    Z = lambda k, p: f"v[{ZB+8*k+4*p}:{ZB+8*k+4*p+3}]"
    TR = [EC, OC]; TI = [ES, OS]
    A("s_nop 1")
    for st_ in range(2):
        zr, zi = 2 * st_, 2 * st_ + 1
        tr, ti = TR[st_], TI[st_]
        A(f"{MFMA32} v[{tr}:{tr+15}], {Fr(0)}, {Z(zr,0)}, 0")
        A(f"{MFMA32} v[{ti}:{ti+15}], {Fr(0)}, {Z(zi,0)}, 0")
        A(f"{MFMA32} v[{tr}:{tr+15}], {Fr(1)}, {Z(zr,1)}, v[{tr}:{tr+15}]")
        A(f"{MFMA32} v[{ti}:{ti+15}], {Fr(1)}, {Z(zi,1)}, v[{ti}:{ti+15}]")
        A(f"{MFMA32} v[{tr}:{tr+15}], {nFi(0)}, {Z(zi,0)}, v[{tr}:{tr+15}]")
        A(f"{MFMA32} v[{ti}:{ti+15}], {Fi(0)}, {Z(zr,0)}, v[{ti}:{ti+15}]")
        A(f"{MFMA32} v[{tr}:{tr+15}], {nFi(1)}, {Z(zi,1)}, v[{tr}:{tr+15}]")
        A(f"{MFMA32} v[{ti}:{ti+15}], {Fi(1)}, {Z(zr,1)}, v[{ti}:{ti+15}]")
    if not opt("MXPUB", 0): publish(A, "L_mx_pubh", 0, "h", 30)
    else: A("s_nop 7")
    stamp(A)
    A(f"v_and_b32 v24, 31, v1\nv_lshlrev_b32 v24, 2, v24\nv_lshrrev_b32 v25, 5, v1\nv_lshlrev_b32 v25, 9, v25\nv_add_u32 v24, v24, v25")
    A(f"s_lshl_b32 s30, s3, 13\ns_add_u32 s30, s30, {LX}\nv_add_u32 v24, s30, v24")
    A("s_nop 7")
    for st_ in range(2):
        for i in range(16):
            A(f"v_cvt_pk_bf16_f32 v{64+16*st_+i}, v{TR[st_]+i}, v{TI[st_]+i}")
    for st_ in range(2):
        for i in range(16):
            t0 = (i & 3) + 8 * (i >> 2)
            A(f"ds_write_b32 v24, v{64+16*st_+i} offset:{st_*4096+t0*128}")
    A("s_waitcnt lgkmcnt(0)")
    stamp(A)
    lds_arrive(A, 1, 30, 63)
    A(f"v_mov_b32 v30, {LCNT+4}")
    A("L_mx_rv:\nds_read_b32 v31, v30\ns_waitcnt lgkmcnt(0)\ns_nop 0\nv_readfirstlane_b32 s63, v31\ns_nop 3\ns_cmp_ge_u32 s63, 4\ns_cbranch_scc1 L_mx_rv_ok")
    A(f"s_sub_u32 s{S_SPIN}, s{S_SPIN}, 1\ns_cmp_eq_u32 s{S_SPIN}, 0\ns_cbranch_scc0 L_mx_rv\nL_mx_rv_ok:")
    A("v_and_b32 v24, 31, v1\nv_lshlrev_b32 v24, 2, v24\nv_lshrrev_b32 v25, 5, v1\nv_lshlrev_b32 v26, 7, v25\nv_add_u32 v24, v24, v26")
    A(f"s_lshl_b32 s30, s3, 10\ns_add_u32 s30, s30, {LX}\nv_add_u32 v24, s30, v24")
    for st_ in range(2):
        for n in range(4):
            b = 64 + 16 * st_ + 4 * n
            for w in range(4):
                A(f"ds_read_b32 v{b+w}, v24 offset:{w*8192+st_*4096+n*256}")
    A(f"v_and_b32 v26, 31, v1\ns_lshl_b32 s30, s{S_C}, 5\nv_add_u32 v27, s30, v26")
    A("v_mov_b32 v28, 160\nv_cndmask_b32 v29, v27, v28, s[40:41]")
    A("v_sub_u32 v27, 320, v27")
    A(f"s_mov_b32 s30, {TF_T0}\nv_mul_lo_u32 v25, s30, v25")
    A("v_lshlrev_b32 v29, 4, v29\nv_add_u32 v29, v29, v25")
    A("v_lshlrev_b32 v27, 4, v27\nv_add_u32 v27, v27, v25")
    A(f"s_mul_i32 s30, s3, {8*TF_T0}\ns_mul_i32 s31, s{S_B}, {TF_ROW}\ns_add_u32 s30, s30, s31\ns_add_u32 s30, s30, {TF_OFF}")
    A("s_waitcnt lgkmcnt(0)")
    for st_ in range(2):
        for n in range(4):
            b = 64 + 16 * st_ + 4 * n
            A(f"s_add_u32 s31, s30, {2*n*TF_T0}")
            if not opt("NOTST"): A(f"buffer_store_dwordx4 v[{b}:{b+3}], v{29 if st_ == 0 else 27}, s[36:39], s31 offen {'' if opt('TPLAIN') else SC}")
    stamp(A)
    A(f"s_cmp_eq_u32 s{S_C}, 0\ns_cbranch_scc0 L_mx_noz\ns_cmp_eq_u32 s3, 0\ns_cbranch_scc0 L_mx_noz")
    A(f"s_mov_b32 s30, {TF_T0}\nv_and_b32 v24, 31, v1\nv_mul_lo_u32 v24, s30, v24")
    A("v_mov_b32 v4, 0\nv_mov_b32 v5, 0\nv_mov_b32 v6, 0\nv_mov_b32 v7, 0")
    A(f"s_mul_i32 s31, s{S_B}, {TF_ROW}\ns_add_u32 s31, s31, {TF_OFF}")
    A(f"buffer_store_dwordx4 v[4:7], v24, s[36:39], s31 offen {SC}")
    A("L_mx_noz:")
    publish(A, "L_mx_pubt", 2, "t", 30)
    stamp(A)
    stamp_flush(A, 0, WS, 9)
    A("s_endpgm")
    loop_hooks_ool(A, "L_mx")

def loader(A):
    A("L_loader:")
    if opt("PRIOL"): A(f"s_setprio {opt('PRIOL')}")
    if opt("PRIOL1"): A(f"s_setprio {opt('PRIOL1')}")
    A(f"s_sub_u32 s{S_J}, s3, 4")
    for r in [11, 12, 13, 52, 53, 54, 55, 56, 57, 58, 59]: A(f"v_mov_b32 v{r}, 0")
    A("s_mov_b32 s58, 0\ns_mov_b32 s59, 99\ns_mov_b32 s63, 0")
    RS = 1280 if opt("XLIN") else 81920
    A(f"v_lshrrev_b32 v4, 3, v1\ns_mov_b32 s40, {RS}\nv_mul_lo_u32 v8, s40, v4")
    A("v_and_b32 v5, 7, v1\nv_lshrrev_b32 v6, 4, v1\nv_xor_b32 v5, v5, v6\nv_lshlrev_b32 v5, 4, v5")
    A("v_add_u32 v2, v8, v5\nv_xor_b32 v7, 64, v5")
    A(f"v_add_u32 v3, v8, v7\nv_add_u32 v3, {8*RS}, v3")
    A(f"s_lshl_b32 s40, s{S_B}, 1\ns_and_b32 s41, s{S_J}, 1\ns_add_u32 s40, s40, s41")
    A(f"s_lshr_b32 s41, s{S_J}, 1\ns_lshl_b32 s41, s41, 5\ns_add_u32 s40, s40, s41")
    if opt("XLIN"):
        A(f"s_lshl_b32 s40, s{S_B}, 2\ns_add_u32 s40, s40, s{S_J}\ns_mul_i32 s40, s40, {32*1280}\ns_add_u32 s41, s40, {16*1280}")
    else:
        A(f"s_mul_i32 s40, s40, 1280\ns_add_u32 s41, s40, {16*81920}")
    A("s_mov_b64 s[56:57], -1")
    A(f"s_cmp_lt_u32 s{S_C}, 5\ns_cbranch_scc0 L_ld_H")
    A(f"s_cmp_ge_u32 s{S_J}, 2\ns_cbranch_scc0 L_ld_H")
    A(f"s_and_b32 s50, s{S_J}, 1\ns_add_u32 s50, s50, 1\ns_mov_b32 s30, {HID_BYTES}")
    A("v_mul_u32_u24 v8, 1280, v4\nv_add_u32 v9, v8, v5")
    A(f"v_add_u32 v10, v8, v7\nv_add_u32 v10, {8*1280}, v10")
    A(f"s_mul_i32 s42, s{S_C}, {32*1280}")
    A(f"s_mov_b32 s44, s42\ns_mov_b32 s45, s42\ns_add_u32 s46, s42, {16*1280}\ns_add_u32 s47, s42, {16*1280}")
    A("s_mov_b32 s43, 128")
    A(f"s_cmp_eq_u32 s{S_C}, 0\ns_cbranch_scc0 L_ld_go\ns_cmp_eq_u32 s{S_J}, 3\ns_cbranch_scc0 L_ld_go")
    A("s_mov_b32 s56, 0xffffff00")
    A("s_branch L_ld_go")
    A("L_ld_H:")
    A(f"s_mov_b32 s50, 0\ns_mov_b32 s30, {W1_BYTES}")
    A("v_mul_u32_u24 v8, 3456, v4")
    A("v_and_b32 v9, 7, v1\nv_bfe_u32 v10, v1, 4, 1\nv_lshlrev_b32 v10, 2, v10\nv_xor_b32 v9, v9, v10")
    A("v_lshlrev_b32 v9, 4, v9\nv_add_u32 v9, v8, v9\nv_mov_b32 v10, v9")
    A(f"s_and_b32 s42, s{S_J}, 1\ns_mul_i32 s42, s42, {32*3456}")
    A(f"s_lshr_b32 s43, s{S_J}, 1\ns_lshl_b32 s43, s43, 6\ns_add_u32 s43, s43, s{S_F0}\ns_lshl_b32 s43, s43, 1")
    A("s_add_u32 s42, s42, s43")
    for q in range(4):
        A(f"s_add_u32 s{44+q}, s42, {8*q*3456}")
    A(f"s_mov_b32 s43, {64*3456}")
    A("L_ld_go:")
    A(f"s_lshl_b32 s48, s{S_J}, 12\ns_mov_b32 s31, 0x20000")
    args_ready(A)
    srd(A, 24, X_, X_BYTES)
    A(f"s_cmp_eq_u32 s50, 1\ns_cselect_b32 s28, s{HRE}, s{W1}\ns_cselect_b32 s29, s{HRE+1}, s{W1+1}")
    A(f"s_cmp_eq_u32 s50, 2\ns_cselect_b32 s28, s{HIM}, s28\ns_cselect_b32 s29, s{HIM+1}, s29")
    def chunk(slot_reg):
        for q in range(0 if opt("NOLOAD1") else 4):
            A(f"s_add_u32 m0, s{slot_reg}, {q*1024}")
            A("s_nop 0")
            A(f"buffer_load_dwordx4 v{2+(q&1)}, s[24:27], s{40+(q>>1)} offen {'nt ' if opt('XNT') else ''}lds")
            A(f"s_add_u32 m0, s{slot_reg}, {16384+q*1024}")
            if q == 0: A("s_mov_b64 exec, s[56:57]")
            else: A("s_nop 0")
            A(f"buffer_load_dwordx4 v{9+(q&1)}, s[28:31], s{44+q} offen {'nt ' if opt('WNT') else ''}lds")
            if q == 0: A("s_mov_b64 exec, -1")
        A("s_add_u32 s40, s40, 128\ns_add_u32 s41, s41, 128")
        for q in range(4):
            A(f"s_add_u32 s{44+q}, s{44+q}, s43")
        A(f"s_add_u32 s{slot_reg}, s{slot_reg}, {RING}\ns_cmp_ge_u32 s{slot_reg}, {NS*RING}\ns_cselect_b32 s52, {NS*RING}, 0\ns_sub_u32 s{slot_reg}, s{slot_reg}, s52")
    A("s_mov_b32 s49, s48")
    chunk(49); chunk(49)
    stamp(A, 1)
    srd(A, 36, WS, WS_USED)
    srd(A, 32, WS, WS_USED)
    A("s_waitcnt lgkmcnt(0)")
    A(f"s_add_u32 s{S_E}, s{S_E}, 1\ns_xor_b32 s{S_EM}, s{S_E}, {MAGIC}")
    A(f"s_cmp_ge_u32 s{S_J}, 2\ns_cbranch_scc0 L_ld_su01")
    A(f"s_sub_u32 s58, s{S_J}, 2\ns_lshl_b32 s59, s{S_T0}, 1\ns_add_u32 s59, s59, s58")
    A("s_mov_b32 s50, 6554\ns_mov_b32 s53, 1280")
    for q in range(5):
        A(f"v_add_u32 v22, {64*q}, v1")
        A("v_mul_lo_u32 v23, s50, v22\nv_lshrrev_b32 v23, 16, v23")
        A("v_mul_u32_u24 v24, 10, v23\nv_sub_u32 v24, v22, v24\nv_lshlrev_b32 v24, 4, v24")
        A(f"v_mul_lo_u32 v23, s53, v23\nv_add_u32 v{52+q}, v23, v24")
    A("v_lshrrev_b32 v23, 4, v1\nv_lshrrev_b32 v24, 1, v23\nv_lshlrev_b32 v24, 4, v24")
    A("v_and_b32 v25, 1, v23\nv_lshlrev_b32 v25, 2, v25\nv_add_u32 v24, v24, v25\nv_bfe_u32 v25, v1, 2, 2\nv_add_u32 v24, v24, v25")
    A("v_mul_u32_u24 v24, 160, v24\nv_and_b32 v25, 3, v1\nv_lshlrev_b32 v25, 3, v25\nv_add_u32 v24, v24, v25")
    A(f"s_mul_i32 s50, s58, 5120\ns_add_u32 s50, s50, {LW}\nv_add_u32 v57, s50, v24")
    A(f"s_lshl_b32 s50, s{S_CT}, 6\ns_add_u32 s50, s50, s59\ns_lshl_b32 s50, s50, 3\ns_add_u32 s50, s50, {FW_OFF}\nv_mov_b32 v58, s50")
    A("s_branch L_ld_sud")
    A("L_ld_su01:")
    A("v_lshlrev_b32 v13, 3, v1\nv_and_b32 v16, 31, v1\nv_lshlrev_b32 v15, 3, v16")
    A(f"s_lshl_b32 s50, s{S_B}, 7\ns_add_u32 s50, s50, {FR1_OFF}\nv_add_u32 v12, s50, v15")
    A(f"s_lshl_b32 s50, s{S_C}, 7\ns_add_u32 s50, s50, {FC1_OFF-128}\nv_add_u32 v15, s50, v15")
    A("v_cmp_le_u32 vcc, 16, v16\ns_nop 1\nv_cndmask_b32 v12, v12, v15, vcc")
    A(f"s_lshl_b32 s50, s{S_CT}, 9\ns_add_u32 s50, s50, {FW_OFF}\nv_add_u32 v11, s50, v13")
    A("L_ld_sud:")
    A("s_waitcnt vmcnt(8)")
    stamp(A, 2)
    A("s_barrier")
    chunk(49)
    A(f"s_cmp_ge_u32 s{S_J}, 2\ns_cbranch_scc1 L_ld_h1w\nL_ld_h1w_ret:")
    A(f"s_cmp_ge_u32 s{S_J}, 2\ns_cbranch_scc1 L_ld_b1w")
    A("s_waitcnt vmcnt(8)\ns_branch L_ld_b1d\nL_ld_b1w:")
    A("s_cmp_ge_u32 s59, 54\ns_cbranch_scc1 L_ld_b1n\ns_waitcnt vmcnt(13)\ns_branch L_ld_b1d\nL_ld_b1n:\ns_waitcnt vmcnt(8)\nL_ld_b1d:")
    A("s_barrier")
    stamp(A)
    pk = opt("POLLK", 5)
    assert pk in (5, 6)
    A(f"s_mov_b32 s53, 99\ns_mov_b32 s54, 99\ns_mov_b32 s55, 0\ns_mov_b32 s79, 99\ns_mov_b32 s81, 99\ns_mov_b32 s82, 99\ns_mov_b32 s83, 0")
    A(f"s_cmp_eq_u32 s{S_J}, 0\ns_cselect_b32 s53, {9-pk}, s53\ns_cselect_b32 s54, {9-pk-2}, s54\ns_cselect_b32 s55, {9-pk-1}, s55\ns_cselect_b32 s81, {9-pk-2}, s81")
    A(f"s_cmp_eq_u32 s{S_J}, 1\ns_cselect_b32 s53, {opt('FWPOLL', 1)}, s53")
    A(f"s_cmp_ge_u32 s{S_J}, 2\ns_cselect_b32 s82, 6, s82\ns_cselect_b32 s79, 3, s79\ns_cselect_b32 s83, 1, s83")
    A("s_mov_b32 s51, 7")
    A("L_ld_loop:")
    A("s_cmp_eq_u32 s51, s54\ns_cbranch_scc1 L_ld_h2\nL_ld_h2_ret:")
    chunk(49)
    A("s_cmp_eq_u32 s51, s79\ns_cbranch_scc1 L_ld_h3\nL_ld_h3_ret:")
    A("s_cmp_eq_u32 s51, s53\ns_cbranch_scc1 L_ld_h1\nL_ld_h1_ret:")
    A("s_cmp_eq_u32 s51, s81\ns_cbranch_scc1 L_ld_h4\nL_ld_h4_ret:")
    A("s_cmp_eq_u32 s51, s82\ns_cbranch_scc1 L_ld_h2w\nL_ld_h2w_ret:")
    A("s_cmp_lt_u32 s51, s55\ns_cbranch_scc1 L_ld_w25")
    A("s_cmp_eq_u32 s83, 0\ns_cbranch_scc1 L_ld_w8")
    A("s_cmp_eq_u32 s51, 6\ns_cbranch_scc1 L_ld_wW\ns_cmp_eq_u32 s51, 5\ns_cbranch_scc1 L_ld_wW")
    A("s_cmp_eq_u32 s51, 3\ns_cbranch_scc1 L_ld_w9\ns_cmp_eq_u32 s51, 2\ns_cbranch_scc1 L_ld_w9")
    A("L_ld_w8:\ns_waitcnt vmcnt(8)\ns_branch L_ld_wd")
    A("L_ld_wW:\ns_cmp_ge_u32 s59, 54\ns_cbranch_scc1 L_ld_w8\ns_waitcnt vmcnt(13)\ns_branch L_ld_wd\nL_ld_w9:\ns_waitcnt vmcnt(9)\ns_branch L_ld_wd")
    A("L_ld_w25:\ns_waitcnt vmcnt(17)\nL_ld_wd:")
    stamp(A)
    A("s_barrier")
    stamp(A)
    A("s_sub_u32 s51, s51, 1\ns_cmp_lg_u32 s51, 0\ns_cbranch_scc1 L_ld_loop")
    A("s_waitcnt vmcnt(0)")
    if not opt("WLATE", 1):
        A(f"s_cmp_eq_u32 s{S_J}, 1\ns_cbranch_scc0 L_ld_no1")
        spin(A, "L_ld_spw", 48, 11, 32, xcc=True)
        A("L_ld_no1:")
    A(f"s_cmp_eq_u32 s{S_J}, 0\ns_cbranch_scc0 L_ld_nored")
    if opt("REDPRIO", 1): A("s_setprio 2")
    for b_ in range(1, 8):
        for k in range(4): A(f"v_add_f32 v{16+k}, v{16+k}, v{16+4*b_+k}")
    for k in range(4): A(f"v_mov_b32 v{20+k}, v{16+k}")
    A("s_nop 1")
    for k in range(4): A(f"v_permlane32_swap_b32 v{16+k}, v{20+k}")
    A("s_nop 0")
    for k in range(4): A(f"v_add_f32 v{16+k}, v{16+k}, v{20+k}")
    A(f"v_add_u32 v13, {LCS}, v13\nds_write_b128 v13, v[16:19]")
    if opt("REDPRIO", 1): A("s_setprio 0")
    A("s_waitcnt lgkmcnt(0)")
    A("L_ld_nored:")
    A("s_barrier")
    stamp(A)
    A("s_barrier")
    A("s_branch L_ld_p2")
    A("L_ld_h1:")
    A(f"s_cmp_eq_u32 s{S_J}, 1\ns_cbranch_scc1 L_ld_h1f")
    A(f"buffer_load_dwordx2 v[14:15], v12, s[32:35], 0 offen {SC}")
    A("s_branch L_ld_h1_ret")
    A("L_ld_h1f:")
    A(f"buffer_load_dwordx2 v[48:49], v11, s[32:35], 0 offen {SC}")
    A("s_branch L_ld_h1_ret")
    A("L_ld_h1w:")
    if opt("NOW"): A("s_branch L_ld_h1w_ret")
    A("s_cmp_ge_u32 s59, 54\ns_cbranch_scc1 L_ld_h1w_ret")
    srd(A, 84, W2, W2_BYTES)
    A(f"s_mul_i32 s50, s59, 40960\ns_mul_i32 s62, s{S_CT}, 160\ns_add_u32 s50, s50, s62")
    A(f"s_mul_i32 s62, s58, 5120\ns_add_u32 s62, s62, {LW}")
    for q in range(5):
        A(f"s_add_u32 m0, s62, {1024*q}\ns_nop 0")
        A(f"buffer_load_dwordx4 v{52+q}, s[84:87], s50 offen lds")
    A("s_branch L_ld_h1w_ret")
    A("L_ld_h2:")
    spin(A, "L_ld_sp", 14, 12, 32, xcc=True)
    A(f"v_and_b32 v50, 16, v1\nv_cmp_eq_u32 s[60:61], 0, v50\nv_cmp_ne_u32 vcc, s{S_XCC}, v15\ns_nop 3\ns_and_b64 vcc, vcc, s[60:61]")
    A(f"s_cmp_eq_u64 vcc, 0\ns_cselect_b32 s62, {1 if opt('LOCALH', 2) and opt('MAP1', 1) else 0}, 0")
    A(f"v_mov_b32 v50, {LCNT + 12}\nv_mov_b32 v51, s62\nds_write_b32 v50, v51")
    A("s_branch L_ld_h2_ret")
    A("L_ld_h4:")
    A(f"s_lshl_b32 s50, s{S_B}, 10\ns_add_u32 s50, s50, {ST_OFF}\ns_mov_b32 m0, {LST}\nv_lshlrev_b32 v13, 4, v1")
    A(f"buffer_load_dwordx4 v13, s[36:39], s50 offen {SC} lds")
    A(f"s_lshl_b32 s50, s{S_F0}, 2\ns_add_u32 s50, s50, {CS_OFF}")
    A("v_and_b32 v13, 31, v1\nv_lshlrev_b32 v13, 4, v13\nv_lshrrev_b32 v14, 5, v1\nv_lshlrev_b32 v14, 13, v14\nv_add_u32 v14, v13, v14")
    for b_ in range(8):
        A(f"buffer_load_dwordx4 v[{16+4*b_}:{19+4*b_}], v14, s[36:39], s50 offen {SC}")
        if b_ < 7: A("s_add_u32 s50, s50, 16384")
    A("s_branch L_ld_h4_ret")
    A("L_ld_h2w:")
    A("v_lshlrev_b32 v22, 4, v1")
    if opt("NOW"): A("s_branch L_ld_h2w_ret")
    A("s_cmp_ge_u32 s59, 54\ns_cbranch_scc1 L_ld_h2w_ret")
    for n in range(5):
        A(f"ds_read_b64_tr_b16 v[{24+4*n}:{25+4*n}], v57 offset:{32*n}")
        A(f"ds_read_b64_tr_b16 v[{26+4*n}:{27+4*n}], v57 offset:{32*n+1280}")
    A(f"s_mul_i32 s50, s{S_CT}, 54\ns_add_u32 s50, s50, s59\ns_mul_i32 s50, s50, 5120\ns_add_u32 s50, s50, {W2F_OFF}")
    A("v_add_u32 v23, 4096, v22\ns_waitcnt lgkmcnt(0)")
    for n in range(4):
        A(f"buffer_store_dwordx4 v[{24+4*n}:{27+4*n}], v22, s[32:35], s50 offen offset:{1024*n} {SC}")
    A(f"buffer_store_dwordx4 v[40:43], v23, s[32:35], s50 offen {SC}")
    A("s_branch L_ld_h2w_ret")
    A("L_ld_h3:")
    store_flags(A, 58, 1, 32, 64, xcc=True)
    A("s_branch L_ld_h3_ret")
def loader_p2(A):
    A("L_ld_p2:")
    if opt("PRIOL1"): A("s_setprio 0")
    stamp(A, 3)
    if opt("P1ONLY"):
        stamp_flush(A, 0, WS, 9)
        A("s_endpgm")
    if opt("WLATE", 1):
        A(f"v_mov_b32 v16, {LCNT + 20}")
        A(f"s_cmp_eq_u32 s{S_J}, 1\ns_cbranch_scc0 L_ld_ww")
        spin(A, "L_ld_spw", 48, 11, 32, xcc=True)
        A("v_mov_b32 v17, 1\nds_write_b32 v16, v17\ns_waitcnt lgkmcnt(0)\ns_branch L_ld_wgo")
        A("L_ld_ww:\nds_read_b32 v17, v16\ns_waitcnt lgkmcnt(0)\ns_nop 0\nv_readfirstlane_b32 s50, v17\ns_nop 3\ns_cmp_eq_u32 s50, 1\ns_cbranch_scc1 L_ld_wgo")
        A(f"s_sub_u32 s{S_SPIN}, s{S_SPIN}, 1\ns_cmp_eq_u32 s{S_SPIN}, 0\ns_cbranch_scc0 L_ld_ww")
        A("L_ld_wgo:")
    p2(A)

def p2(A):
    J = S_J
    HSC = "" if opt("HPLAIN") else SC
    WSC = "" if opt("WPLAIN") else SC
    if opt("W2NT"): WSC += " nt"
    ACC = 16
    SET = [96, 132, 168]
    XR = 204
    VP = 214
    acc = lambda nt, a: ACC + 4 * (4 * nt + a)
    srd(A, 24, WS, WS_USED)
    A("v_lshlrev_b32 v2, 4, v1\nv_add_u32 v3, 4096, v2")
    MXLAST = opt("MXLAST", 1)
    if MXLAST:
        A(f"s_add_u32 s44, s{J}, 12\ns_mov_b32 s45, s44")
    else:
        A(f"s_mov_b32 s44, s{J}\ns_mov_b32 s45, s44")
    A(f"s_mul_i32 s49, s{S_CT}, {54*5120}\ns_add_u32 s49, s49, {W2F_OFF}")
    def adv(r):
        A(f"s_add_u32 s{r}, s{r}, 4\ns_cmp_ge_u32 s{r}, 54\ns_cselect_b32 s{r}, s{J}, s{r}")
    def loadB(si):
        b = SET[si]
        A("s_mul_i32 s50, s44, 5120\ns_add_u32 s50, s50, s49")
        for n in range(4):
            A(f"buffer_load_dwordx4 v[{b+4*n}:{b+4*n+3}], v2, s[24:27], s50 offen offset:{1024*n} {WSC}")
        A(f"buffer_load_dwordx4 v[{b+16}:{b+19}], v3, s[24:27], s50 offen {WSC}")
        adv(44)
    NB0 = opt("NB0", 3)
    for si in range(NB0): loadB(si)
    A(f"s_lshr_b32 s50, s{S_T0}, 1\ns_lshl_b32 s50, s50, 7\ns_add_u32 s50, s50, {FH_OFF}")
    if MXLAST:
        A("v_min_u32 v14, 10, v1\nv_add_u32 v14, 5, v14\nv_lshlrev_b32 v14, 3, v14\nv_add_u32 v15, s50, v14")
    else:
        A("v_and_b32 v14, 15, v1\nv_lshlrev_b32 v14, 3, v14\nv_add_u32 v15, s50, v14")
    A(f"s_cmp_eq_u32 s{J}, 0\ns_cbranch_scc0 L_p2_np0")
    A(f"buffer_load_dwordx2 v[{VP}:{VP+1}], v15, s[24:27], 0 offen {SC}")
    A("L_p2_np0:")
    srd(A, 28, WS, 4 * HF_TILE)
    A(f"s_mul_i32 s50, s{S_T0}, {4*HF_TILE}")
    if HF_OFF: A(f"s_add_u32 s50, s50, {HF_OFF}")
    A("s_add_u32 s28, s28, s50\ns_addc_u32 s29, s29, 0")
    srd(A, 32, X_, X_BYTES)
    srd(A, 40, OUT, X_BYTES)
    for a_ in range(4):
        A(f"s_add_u32 s50, s{J}, {a_}\ns_and_b32 s50, s50, 3\ns_mul_i32 s50, s50, {HF_TILE}\nv_add_u32 v{4+a_}, s50, v2")
    RSTR = 336
    A(f"s_lshl_b32 s50, s{J}, 6\nv_add_u32 v8, s50, v1")
    A(f"s_mov_b32 s50, 3277\ns_mul_i32 s38, s{S_T0}, 1280\ns_mul_i32 s39, s{S_CT}, 160\ns_add_u32 s38, s38, s39")
    for n in range(5):
        A(f"v_add_u32 v9, {256*n}, v8\nv_mul_lo_u32 v10, s50, v9\nv_lshrrev_b32 v10, 16, v10")
        A("v_mul_u32_u24 v11, 20, v10\nv_sub_u32 v11, v9, v11")
        A(f"v_mul_u32_u24 v12, {RSTR}, v10\nv_lshlrev_b32 v13, 4, v11\nv_add_u32 v{220+n}, v12, v13")
        A("v_lshrrev_b32 v12, 5, v10\nv_mul_u32_u24 v12, 40960, v12\nv_and_b32 v10, 31, v10\nv_mul_u32_u24 v10, 81920, v10")
        A(f"v_lshlrev_b32 v11, 3, v11\nv_add3_u32 v{225+n}, v10, v12, v11")
    A(f"v_and_b32 v9, 15, v1\nv_mul_u32_u24 v9, {RSTR}, v9\nv_lshrrev_b32 v10, 4, v1\nv_lshlrev_b32 v10, 4, v10\nv_add_u32 v230, v9, v10")
    FFR = 236
    A(f"s_add_u32 s50, s{J}, 2\ns_and_b32 s50, s50, 3\ns_lshl_b32 s50, s50, 3\nv_lshrrev_b32 v9, 4, v1\nv_lshlrev_b32 v9, 1, v9\nv_add_u32 v9, s50, v9")
    A(f"s_mov_b32 s51, 0x3a000000\ns_mov_b32 s52, 0xba000000\ns_cmp_lt_u32 s{S_CT}, 4\ns_cselect_b32 s52, s51, s52")
    A("v_and_b32 v10, 15, v1\nv_lshlrev_b32 v10, 6, v10")
    for a_ in range(4):
        A(f"s_add_u32 s50, s{J}, {a_}\ns_and_b32 s50, s50, 3\ns_lshr_b32 s53, s50, 1\ns_lshl_b32 s53, s53, 5\ns_and_b32 s50, s50, 1\ns_lshl_b32 s50, s50, 10")
        A(f"s_add_u32 s50, s50, s53\ns_add_u32 s50, s50, s{S_T0}\nv_add_u32 v11, s50, v10")
        for k, ds in enumerate([0, 1, 32, 33]):
            A(f"v_add_u32 v12, {ds}, v9\nv_mul_u32_u24 v12, v11, v12\nv_and_b32 v12, 0x7ff, v12\nv_cvt_f32_u32 v12, v12")
            A(f"v_mul_f32 v13, s51, v12\nv_mul_f32 v12, s52, v12\nv_cos_f32 v13, v13\nv_sin_f32 v12, v12\ns_nop 0\nv_cvt_pk_bf16_f32 v{FFR+4*a_+k}, v13, v12")
    def loadA(si):
        b = SET[si] + 20
        A("s_lshl_b32 s50, s45, 10")
        for a_ in range(4):
            A(f"buffer_load_dwordx4 v[{b+4*a_}:{b+4*a_+3}], v{4+a_}, s[28:31], s50 offen {HSC}")
        adv(45)
    def loadT(si):
        b = SET[si]
        A("s_mov_b32 s50, s46")
        for n in range(5):
            A(f"buffer_load_dwordx4 v[{b+4*n}:{b+4*n+3}], v10, s[24:27], s50 offen {SC}")
            if n < 4: A("s_add_u32 s50, s50, s47")
    def mfmas(si):
        b = SET[si]
        for a_ in range(4):
            for nt in range(5):
                c = acc(nt, a_)
                if not opt("NOCOMP2"):
                    A(f"{MFMA16} v[{c}:{c+3}], v[{b+4*nt}:{b+4*nt+3}], v[{b+20+4*a_}:{b+23+4*a_}], v[{c}:{c+3}]")
    def last_step(si):
        b = SET[si]
        def grp(a_):
            for nt in range(5):
                c = acc(nt, a_)
                if not opt("NOCOMP2"):
                    A(f"{MFMA16} v[{c}:{c+3}], v[{b+4*nt}:{b+4*nt+3}], v[{FFR+4*a_}:{FFR+4*a_+3}], v[{c}:{c+3}]")
        def addr(a_):
            A(f"s_add_u32 s50, s{J}, {a_}\ns_and_b32 s50, s50, 3\ns_mul_i32 s50, s50, {16*336}\ns_mul_i32 s51, s{J}, {64*336}\ns_add_u32 s50, s50, s51\nv_add_u32 v{232+a_}, s50, v230")
        def wr(a_):
            for nt in range(5):
                c = acc(nt, a_)
                A(f"ds_write_b128 v{232+a_}, v[{c}:{c+3}] offset:{nt*64}")
        grp(0); addr(0); addr(1); grp(1); addr(2); wr(0); grp(2); addr(3); wr(1); grp(3); A("s_nop 3"); wr(2); A("s_nop 3"); wr(3)
    def xorA(si):
        b = SET[si] + 20
        for k in range(16): A(f"v_xor_b32 v{b+k}, s48, v{b+k}")
        A("s_nop 0")
    for i in range(80): A(f"v_mov_b32 v{ACC+i}, 0")
    A(f"v_lshrrev_b32 v10, 4, v1\nv_mul_u32_u24 v10, {TF_ROW}, v10\nv_and_b32 v11, 15, v1")
    A(f"s_mul_i32 s50, s{S_CT}, 80\nv_add_u32 v12, s50, v11\nv_sub_u32 v13, 576, v12")
    A(f"s_cmp_lt_u32 s{S_CT}, 4\ns_cselect_b64 s[60:61], -1, 0\nv_cndmask_b32 v12, v13, v12, s[60:61]")
    A("v_lshlrev_b32 v12, 4, v12\nv_add_u32 v10, v10, v12")
    A(f"s_sub_u32 s46, 32, s{S_T0}\ns_and_b32 s46, s46, 31\ns_cmp_lt_u32 s{S_CT}, 4\ns_cselect_b32 s46, s{S_T0}, s46")
    A(f"s_mul_i32 s46, s46, {TF_T0}\ns_add_u32 s46, s46, {TF_OFF}")
    A(f"s_mov_b32 s47, 256\ns_mov_b32 s50, -256\ns_cmp_lt_u32 s{S_CT}, 4\ns_cselect_b32 s47, s47, s50\ns_cselect_b32 s50, 0, 1024\ns_cselect_b32 s48, 0x80000000, 0")
    A("s_add_u32 s46, s46, s50")
    A(f"s_add_u32 s50, s{J}, 2\ns_and_b32 s50, s50, 3\ns_mul_i32 s50, s50, {4*TF_ROW}\ns_add_u32 s46, s46, s50")
    A(f"s_lshl_b32 s50, s{S_CT}, 10\ns_add_u32 s50, s50, {FT_OFF}\nv_lshlrev_b32 v12, 3, v1\nv_add_u32 v12, s50, v12")
    A("v_and_b32 v13, 15, v1\nv_lshlrev_b32 v13, 3, v13\nv_add_u32 v13, s50, v13\nv_add_u32 v13, 512, v13")
    A(f"s_lshr_b32 s50, s{S_T0}, 1\ns_lshl_b32 s50, s50, 7\ns_add_u32 s50, s50, {FH_OFF}\nv_min_u32 v9, 4, v1\nv_lshlrev_b32 v9, 3, v9\nv_add_u32 v9, s50, v9")
    A(f"s_cmp_eq_u32 s{J}, 0\ns_cbranch_scc0 L_p2_lw")
    A("s_waitcnt vmcnt(0)")
    if opt("SPINSTAMP") == "L_p2_sp1": stamp(A)
    spin(A, "L_p2_sp1", VP, 15, 24, xcc=True)
    A(f"v_mov_b32 v14, {LCNT + 16}\nv_mov_b32 v15, 1\nds_write_b32 v14, v15\ns_waitcnt lgkmcnt(0)")
    A("s_branch L_p2_go")
    A("L_p2_lw:")
    if opt("P2ONLY"): A("s_branch L_p2_go")
    A(f"v_mov_b32 v14, {LCNT + 16}")
    A("L_p2_lw1:\nds_read_b32 v15, v14\ns_waitcnt lgkmcnt(0)\ns_nop 0\nv_readfirstlane_b32 s50, v15\ns_nop 3\ns_cmp_eq_u32 s50, 1\ns_cbranch_scc1 L_p2_go")
    A(f"s_sleep 1\ns_sub_u32 s{S_SPIN}, s{S_SPIN}, 1\ns_cmp_eq_u32 s{S_SPIN}, 0\ns_cbranch_scc0 L_p2_lw1")
    A("L_p2_go:")
    stamp(A, 5)
    for si in range(NB0): loadA(si)
    for si in range(NB0, 3):
        loadB(si); loadA(si)
    def loadX():
        for n in range(5):
            A(f"buffer_load_dwordx2 v[{XR+2*n}:{XR+2*n+1}], v{225+n}, s[32:35], s38 offen")
    XLATE = opt("XLATE", 1)
    if not XLATE: loadX()
    def step(si, vm, pre):
        A(f"s_waitcnt vmcnt({vm})")
        mfmas(si)
        pre()
    reg = lambda si: (lambda: (loadB(si), loadA(si)))
    order = [(si, 4) for si in range(NB0)] + [(si, 9) for si in range(NB0, 3)] + ([] if XLATE else [(-1, 5)])
    for st_ in range(3):
        idx = max(i for i, (si, n) in enumerate(order) if si == st_)
        younger = sum(n for (si, n) in order[idx+1:]) + 9 * st_
        step(st_, younger, reg(st_))
        if opt("STEPSTAMP"): stamp(A)
    stamp(A)
    if MXLAST: A(f"buffer_load_dwordx2 v[{VP+4}:{VP+5}], v9, s[24:27], 0 offen {SC}")
    A("s_mov_b32 s51, 2")
    A("L_p2_loop:")
    for si in range(3):
        step(si, 18, reg(si))
        if opt("STEPSTAMP"): stamp(A)
    A("s_cmp_eq_u32 s51, 2\ns_cbranch_scc0 L_p2_nt")
    if MXLAST and not opt("NOMCHK"): spin(A, "L_p2_spm", VP + 4, 9, 24, xcc=True)
    if not opt("TLATE", 1):
        A(f"buffer_load_dwordx2 v[{VP}:{VP+1}], v12, s[24:27], 0 offen {SC}\nbuffer_load_dwordx2 v[{VP+2}:{VP+3}], v13, s[24:27], 0 offen {SC}")
    A("L_p2_nt:")
    A("s_sub_u32 s51, s51, 1\ns_cmp_lg_u32 s51, 0\ns_cbranch_scc1 L_p2_loop")
    stamp(A)
    TLATE = opt("TLATE", 1)
    if TLATE:
        A(f"buffer_load_dwordx2 v[{VP}:{VP+1}], v12, s[24:27], 0 offen {SC}\nbuffer_load_dwordx2 v[{VP+2}:{VP+3}], v13, s[24:27], 0 offen {SC}")
    step(0, 18, reg(0))
    def tcheck(tag, epoch):
        if not opt("NOTCHK"):
            spin(A, tag + "2", VP, 12, 24)
            spin(A, tag + "3", VP + 2, 13, 24)
        if epoch:
            A(f"s_cmp_eq_u32 s2, 0\ns_cbranch_scc0 {tag}_noep\ns_cmp_eq_u32 s{J}, 0\ns_cbranch_scc0 {tag}_noep")
            A(f"v_mov_b32 v14, s{S_E}\nv_mov_b32 v15, {EP_OFF}\ns_mov_b64 exec, 1\nbuffer_store_dword v14, v15, s[24:27], 0 offen {SC}\ns_mov_b64 exec, -1")
            A(f"{tag}_noep:")
    if not TLATE: tcheck("L_p2_sp", True)
    stamp(A)
    A(f"s_cmp_lt_u32 s{J}, 2\ns_cbranch_scc0 L_p2_hi")
    step(1, 18, reg(1))
    step(2, 18, lambda: (tcheck("L_p2_lo", True) if TLATE else None, loadT(2), loadX() if XLATE else None))
    xq = 5 if XLATE else 0
    step(0, 14 + xq, lambda: None)
    step(1, 5 + xq, lambda: None)
    A(f"s_waitcnt vmcnt({xq})"); last_step(2)
    A("s_branch L_p2_red")
    A("L_p2_hi:")
    step(1, 18, lambda: ((A("s_waitcnt vmcnt(9)"), tcheck("L_p2_hi", False)) if TLATE else None, loadT(1), loadX() if XLATE else None))
    step(2, 14 + xq, lambda: None)
    step(0, 5 + xq, lambda: None)
    A(f"s_waitcnt vmcnt({xq})"); last_step(1)
    A("L_p2_red:")
    stamp(A)
    A("s_waitcnt lgkmcnt(0)\ns_barrier")
    R0 = 96
    def rd(n):
        for w in range(4):
            r = R0 + 16 * n + 4 * w
            A(f"ds_read_b128 v[{r}:{r+3}], v{220+n} offset:{w*64*336}")
    rd(0); rd(1); rd(2)
    OSC = SC if opt("OUTSC") else ""
    for n in range(5):
        r = R0 + 16 * n; x = XR + 2 * n
        if n == 0: A("s_waitcnt vmcnt(0) lgkmcnt(8)")
        elif n == 1: A("s_waitcnt lgkmcnt(8)")
        elif n == 2: A("s_waitcnt lgkmcnt(8)")
        elif n == 3: A("s_waitcnt lgkmcnt(4)")
        else: A("s_waitcnt lgkmcnt(0)")
        A(f"v_pk_add_f32 v[{r}:{r+1}], v[{r}:{r+1}], v[{r+4}:{r+5}]\nv_pk_add_f32 v[{r+2}:{r+3}], v[{r+2}:{r+3}], v[{r+6}:{r+7}]")
        A(f"v_pk_add_f32 v[{r+8}:{r+9}], v[{r+8}:{r+9}], v[{r+12}:{r+13}]\nv_pk_add_f32 v[{r+10}:{r+11}], v[{r+10}:{r+11}], v[{r+14}:{r+15}]")
        if n + 3 < 5: pass
        A(f"v_lshlrev_b32 v{r+4}, 16, v{x}\nv_and_b32 v{r+5}, 0xffff0000, v{x}\nv_lshlrev_b32 v{r+6}, 16, v{x+1}\nv_and_b32 v{r+7}, 0xffff0000, v{x+1}")
        A(f"v_pk_add_f32 v[{r}:{r+1}], v[{r}:{r+1}], v[{r+8}:{r+9}]\nv_pk_add_f32 v[{r+2}:{r+3}], v[{r+2}:{r+3}], v[{r+10}:{r+11}]")
        A(f"v_pk_add_f32 v[{r}:{r+1}], v[{r}:{r+1}], v[{r+4}:{r+5}]\nv_pk_add_f32 v[{r+2}:{r+3}], v[{r+2}:{r+3}], v[{r+6}:{r+7}]")
        A(f"v_cvt_pk_bf16_f32 v{x}, v{r}, v{r+1}\nv_cvt_pk_bf16_f32 v{x+1}, v{r+2}, v{r+3}")
        A(f"buffer_store_dwordx2 v[{x}:{x+1}], v{225+n}, s[40:43], s38 offen {OSC}")
        if n == 0: rd(3)
        if n == 1: rd(4)
    stamp(A)
    if opt("DBGT"):
        A(f"s_waitcnt vmcnt(0)\ns_memrealtime s[90:91]\ns_waitcnt lgkmcnt(0)")
        A(f"s_cmp_eq_u32 s{S_J}, 1\ns_cbranch_scc0 L_dbg_d\ns_cmp_lt_u32 s2, 8\ns_cbranch_scc0 L_dbg_d")
        srd(A, 92, DBG, 256)
        A("s_lshl_b32 s96, s2, 3\nv_mov_b32 v4, s88\nv_mov_b32 v5, s90\nv_mov_b32 v6, 0\ns_mov_b64 exec, 1\nbuffer_store_dwordx2 v[4:5], v6, s[92:95], s96 offen\ns_waitcnt vmcnt(0)")
        A("L_dbg_d:")
    if opt("CLK") and asmlib.PROFILE:
        A("s_memtime s[90:91]\ns_waitcnt lgkmcnt(0)\ns_sub_u32 s90, s90, s88\ns_mov_b32 m0, 62\nv_writelane_b32 v0, s90, m0")
    stamp_flush(A, 0, WS, 9)
    A("s_endpgm")

def gen(A, name):
    global KNAME
    KNAME = name
    kernel_head(A, name)
    entry(A)
    if opt("P2ONLY"):
        A(f"s_mov_b32 s{S_SPIN}, 1\ns_cmp_lt_u32 s3, 4\ns_cbranch_scc1 L_end\ns_sub_u32 s{S_J}, s3, 4\ns_waitcnt lgkmcnt(0)\ns_branch L_ld_p2")
    lay = opt("LAYOUT", 0)
    if lay == 0:
        A("s_cmp_ge_u32 s3, 4\ns_cbranch_scc1 L_loader")
        jobs_issue(A)
        A(f"s_cmp_lt_u32 s{S_C}, 5\ns_cbranch_scc1 L_mx")
        p1_hh(A); p1_mx(A); loader(A); loader_p2(A)
    elif lay == 1:
        A("s_cmp_lt_u32 s3, 4\ns_cbranch_scc1 L_comp")
        loader(A)
        A("L_comp:")
        jobs_issue(A)
        A(f"s_cmp_lt_u32 s{S_C}, 5\ns_cbranch_scc1 L_mx")
        p1_hh(A); p1_mx(A); loader_p2(A)
    elif lay == 2:
        A("s_cmp_ge_u32 s3, 4\ns_cbranch_scc1 L_loader")
        jobs_issue(A)
        A(f"s_cmp_lt_u32 s{S_C}, 5\ns_cbranch_scc1 L_mx\ns_branch L_hh")
        loader(A)
        p1_hh(A); p1_mx(A); loader_p2(A)
    A("L_end:\ns_endpgm\nL_code_end:")
```

```python
from asmlib import *
import asmlib
from layout import *

MFMA32 = "v_mfma_f32_32x32x16_bf16"
MFMA16 = "v_mfma_f32_16x16x32_bf16"
RING = 32768; NS = 4
SLOT = 20480; NS2 = 6
LX = NS2 * SLOT
LW = 132 * 1024
LST = 152 * 1024
LCS = LST + 1024
LCNT = LST + 2048
LDS_TOTAL = LCNT + 64
X_, SRE, SIM, HRE, HIM, WS = 4, 6, 8, 10, 12, 16
W1, W2, OUT, DBG = 64, 66, 68, 70
S_B, S_C, S_F0, S_J = 18, 19, 20, 21
S_T0, S_CT = 72, 73
S_SPIN = 74
SC = "sc1"
SPIN_MAX = 200000
CPW = 3

MAGIC = 0x5A3C96E1
S_E, S_EM = 75, 76
S_XCC = 77
S_LOCAL = 78

def spin(A, name, vp, vaddr, srdp, xcc=False):
    A(f"{name}:")
    if xcc:
        A(f"v_xor_b32 v{vp+1}, s{S_EM}, v{vp+1}\nv_cmp_ne_u32 vcc, s{S_E}, v{vp}\nv_cmp_lt_u32 s[60:61], 15, v{vp+1}\ns_nop 3\ns_or_b64 vcc, vcc, s[60:61]")
    else:
        A(f"v_cmp_ne_u32 vcc, s{S_E}, v{vp}\nv_cmp_ne_u32 s[60:61], s{S_EM}, v{vp+1}\ns_nop 3\ns_or_b64 vcc, vcc, s[60:61]")
    A(f"s_cbranch_vccz {name}_ok")
    if opt("P2ONLY"): A(f"s_branch {name}_ok")
    A(f"s_sub_u32 s{S_SPIN}, s{S_SPIN}, 1\ns_cmp_eq_u32 s{S_SPIN}, 0\ns_cbranch_scc1 {name}_ok")
    A(f"s_sleep {opt('SLEEP', 4)}")
    A(f"buffer_load_dwordx2 v[{vp}:{vp+1}], v{vaddr}, s[{srdp}:{srdp+3}], 0 offen {SC}\ns_waitcnt vmcnt(0)")
    if opt("SPINSTAMP") == name: stamp(A)
    A(f"s_branch {name}\n{name}_ok:")

def store_flags(A, vaddr, nlanes, srdp, vt, xcc=False, local=None):
    if xcc:
        A(f"s_xor_b32 s62, s{S_EM}, s{S_XCC}\nv_mov_b32 v{vt}, s{S_E}\nv_mov_b32 v{vt+1}, s62\ns_mov_b64 exec, {(1 << nlanes) - 1}")
    else:
        A(f"v_mov_b32 v{vt}, s{S_E}\nv_mov_b32 v{vt+1}, s{S_EM}\ns_mov_b64 exec, {(1 << nlanes) - 1}")
    if local:
        A(f"s_cmp_eq_u32 s{S_LOCAL}, 1\ns_cbranch_scc1 {local}_fp")
    A(f"buffer_store_dwordx2 v[{vt}:{vt+1}], v{vaddr}, s[{srdp}:{srdp+3}], 0 offen {SC}")
    if local:
        A(f"s_branch {local}_fd\n{local}_fp:")
        A(f"buffer_store_dwordx2 v[{vt}:{vt+1}], v{vaddr}, s[{srdp}:{srdp+3}], 0 offen")
        A(f"{local}_fd:")
    A("s_mov_b64 exec, -1")

def flag_addr_h(A, v):
    A(f"s_lshl_b32 s62, s{S_B}, 4\ns_add_u32 s62, s62, s{S_C}\ns_lshl_b32 s62, s62, 3\ns_add_u32 s62, s62, {FH_OFF}\nv_mov_b32 v{v}, s62")
def flag_addr_t(A, v):
    A(f"s_lshl_b32 s62, s{S_C}, 4\ns_add_u32 s62, s62, s{S_B}\ns_lshl_b32 s62, s62, 3\ns_add_u32 s62, s62, {FT_OFF}")
    A(f"v_lshlrev_b32 v{v}, 10, v1\nv_add_u32 v{v}, s62, v{v}")
def flag_addr_early(A, v):
    A(f"s_lshl_b32 s62, s{S_B}, 4\ns_add_u32 s62, s62, s{S_C}\ns_lshl_b32 s62, s62, 3\ns_add_u32 s58, s62, {FR1_OFF}")
    A(f"s_lshl_b32 s62, s{S_C}, 4\ns_add_u32 s62, s62, s{S_B}\ns_lshl_b32 s62, s62, 3\ns_add_u32 s62, s62, {FC1_OFF}")
    A(f"s_cmp_eq_u32 s3, 1\ns_cselect_b32 s58, s62, s58\nv_mov_b32 v{v}, s58")

def epoch_ready(A):
    A("s_waitcnt lgkmcnt(0)")
    A(f"s_add_u32 s{S_E}, s{S_E}, 1\ns_xor_b32 s{S_EM}, s{S_E}, {MAGIC}")
    srd(A, 48, WS, WS_USED)

def lds_arrive(A, word, vt, sdst):
    A(f"v_mov_b32 v{vt}, {LCNT + 4*word}\nv_mov_b32 v{vt+1}, 1\ns_mov_b64 exec, 1")
    A(f"ds_add_rtn_u32 v{vt+1}, v{vt}, v{vt+1}\ns_waitcnt lgkmcnt(0)\ns_mov_b64 exec, -1\ns_nop 0")
    A(f"v_readfirstlane_b32 s{sdst}, v{vt+1}")
    A("s_nop 3")

def code_prefetch(A, tag, mode):
    A(f"s_getpc_b64 s[50:51]\nJ_pc{tag}:")
    A(f"s_sub_u32 s50, s50, J_pc{tag}-{KNAME}\ns_subb_u32 s51, s51, 0")
    A(f"s_mov_b32 s52, ((L_code_end-{KNAME})>>7)-1")
    def lines(first_expr, n, dst):
        A(f"v_add_u32 v22, {first_expr}, v1\nv_min_u32 v22, s52, v22\nv_lshlrev_b32 v22, 7, v22")
        A("v_mov_b32 v23, s51\nv_add_co_u32 v22, vcc, s50, v22\ns_nop 1\nv_addc_co_u32 v23, vcc, 0, v23, vcc")
        A(f"global_load_dword v{dst}, v[22:23], off")
    if mode == 0:
        A("s_lshr_b32 s53, s2, 3\ns_mul_i32 s53, s53, 6\ns_mov_b64 exec, 63")
        lines("s53", 1, 127)
        A("s_mov_b64 exec, -1")
    elif mode == 4:
        A("s_lshr_b32 s53, s2, 3\ns_and_b32 s53, s53, 3\ns_mul_i32 s53, s53, 48\ns_mov_b64 exec, 0xffffffffffff")
        lines("s53", 1, 127)
        A("s_mov_b64 exec, -1")
    elif mode == 5:
        A("s_lshr_b32 s53, s2, 3\ns_and_b32 s53, s53, 1\ns_mul_i32 s53, s53, 96")
        lines("s53", 1, 126)
        A("s_add_u32 s53, s53, 64\ns_mov_b64 exec, 0xffffffff")
        lines("s53", 1, 127)
        A("s_mov_b64 exec, -1")
    elif mode in (1, 2):
        for n in range(4): lines(64 * n, 1, (124 if mode == 1 else 24) + n)
    elif mode == 3 and tag == "a":
        lines(0, 1, 125)
        A(f"s_mov_b32 s53, (L_loader-{KNAME})>>7\ns_mov_b64 exec, 0xffffff")
        lines("s53", 1, 126)
        A("s_mov_b64 exec, -1")
    else:
        lines(64, 1, 24); lines(128, 1, 25)

def entry(A):
    A("s_cmp_ge_u32 s2, 256\ns_cbranch_scc1 L_end")
    A(f"s_load_dwordx4 s[4:7], s[0:1], {KA_X}")
    A(f"s_load_dwordx4 s[8:11], s[0:1], {KA_SIM}")
    A(f"s_load_dwordx2 s[12:13], s[0:1], {KA_HIM}")
    A(f"s_load_dwordx4 s[64:67], s[0:1], {KA_W1}")
    A(f"s_load_dwordx4 s[68:71], s[0:1], {KA_OUT}")
    A(f"s_load_dwordx2 s[16:17], s[0:1], {KA_WS}")
    A("v_lshrrev_b32 v2, 6, v0\nv_and_b32 v1, 63, v0\ns_nop 0\nv_readfirstlane_b32 s3, v2")
    if opt("CODEPF", 1) and opt("CPMODE", 1) in (0, 1, 3, 4, 5):
        A(f"s_nop 3\ns_cmp_eq_u32 s3, {CPW}\ns_cbranch_scc0 L_nocp")
        code_prefetch(A, "a", opt("CPMODE", 1))
        A("L_nocp:")
    A("s_and_b32 s24, s2, 7\ns_lshr_b32 s25, s2, 3\ns_lshr_b32 s27, s25, 3\ns_and_b32 s28, s25, 7")
    if opt("MAP1", 1):
        A(f"s_lshl_b32 s26, s24, 1\ns_lshr_b32 s29, s25, 4\ns_add_u32 s{S_B}, s26, s29\ns_and_b32 s{S_C}, s25, 15")
    else:
        A(f"s_lshr_b32 s26, s24, 1\ns_lshl_b32 s26, s26, 2\ns_add_u32 s{S_B}, s26, s27")
        A(f"s_and_b32 s26, s24, 1\ns_lshl_b32 s26, s26, 3\ns_add_u32 s{S_C}, s26, s28")
    A(f"s_lshl_b32 s26, s{S_C}, 6\ns_lshl_b32 s29, s{S_C}, 7\ns_sub_u32 s29, s29, 320")
    A(f"s_cmp_lt_u32 s{S_C}, 5\ns_cselect_b32 s{S_F0}, s26, s29")
    A(f"s_lshl_b32 s24, s24, 2\ns_add_u32 s{S_T0}, s24, s27\ns_mov_b32 s{S_CT}, s28")
    A(f"s_mov_b32 s{S_SPIN}, {SPIN_MAX}")
    A(f"s_getreg_b32 s{S_XCC}, hwreg(HW_REG_XCC_ID)\ns_and_b32 s{S_XCC}, s{S_XCC}, 15")
    if opt("DBGT"): A("s_memrealtime s[88:89]")
    stamp_init(A)
    if opt("T0STAMP"): stamp(A, force=True)
    if opt("P2ONLY"): args_ready(A)

def args_ready(A):
    A("s_waitcnt lgkmcnt(0)")
    if opt("CLK"): A("s_memtime s[88:89]\ns_waitcnt lgkmcnt(0)")
    A(f"s_mov_b32 s62, {EP_OFF}\ns_load_dword s{S_E}, s[{WS}:{WS+1}], s62")
    stamp(A, 0, force=True)

def jobs_issue(A):
    A("s_cmp_eq_u32 s3, 0\ns_cbranch_scc1 J_x_i\ns_cmp_eq_u32 s3, 1\ns_cbranch_scc1 J_c_i")
    args_ready(A)
    srd(A, 36, WS, WS_USED)
    if opt("TLBPF", 1):
        A("s_cmp_eq_u32 s3, 2\ns_cbranch_scc0 J_i_done")
        srd(A, 40, OUT, X_BYTES); srd(A, 44, W2, W2_BYTES)
        A("v_lshlrev_b32 v22, 20, v1")
        A(f"s_mov_b64 exec, {(1 << ((WS_USED >> 20) + 1)) - 1}\nbuffer_load_dword v125, v22, s[36:39], 0 offen {SC}")
        A(f"s_mov_b64 exec, 7\nbuffer_load_dword v126, v22, s[40:43], 0 offen {SC}\nbuffer_load_dword v127, v22, s[44:47], 0 offen\ns_mov_b64 exec, -1")
        if opt("INPF"):
            srd(A, 40, X_, X_BYTES); srd(A, 44, W1, W1_BYTES)
            A("v_lshlrev_b32 v22, 7, v1\ns_mul_i32 s50, s2, 10240\ns_mul_i32 s51, s2, 8704")
            A("buffer_load_dword v124, v22, s[40:43], s50 offen\nbuffer_load_dword v123, v22, s[44:47], s51 offen")
            A("s_add_u32 s50, s50, 8192\ns_add_u32 s51, s51, 8192\ns_mov_b64 exec, 0xffff")
            A("buffer_load_dword v122, v22, s[40:43], s50 offen\ns_mov_b64 exec, 15\nbuffer_load_dword v121, v22, s[44:47], s51 offen\ns_mov_b64 exec, -1")
    A("s_branch J_i_done")
    A("J_x_i:")
    A(f"s_lshr_b32 s48, s{S_C}, 2\ns_and_b32 s49, s{S_C}, 3")
    A(f"s_lshl_b32 s50, s{S_B}, 1\ns_and_b32 s51, s48, 1\ns_add_u32 s50, s50, s51")
    A("s_lshr_b32 s51, s48, 1\ns_lshl_b32 s51, s51, 5\ns_add_u32 s50, s50, s51")
    A("s_lshl_b32 s51, s49, 9\ns_add_u32 s50, s50, s51\ns_mul_i32 s50, s50, 1280")
    A("v_lshrrev_b32 v22, 3, v1\ns_mov_b32 s51, 81920\nv_mul_lo_u32 v22, s51, v22")
    A("v_and_b32 v23, 7, v1\nv_lshlrev_b32 v23, 4, v23\nv_add_u32 v22, v22, v23")
    A(f"v_mov_b32 v20, {LCNT}\nv_mov_b32 v24, 0\nv_mov_b32 v25, 0\nv_mov_b32 v26, 0\nv_mov_b32 v27, 0\nds_write_b128 v20, v[24:27]\nds_write_b128 v20, v[24:27] offset:16")
    args_ready(A)
    srd(A, 24, X_, X_BYTES)
    for i in range(10):
        A(f"buffer_load_dwordx4 v[{32+4*i}:{35+4*i}], v22, s[24:27], s50 offen offset:{128*i}")
    srd(A, 36, WS, WS_USED)
    A("s_branch J_i_done")
    A("J_c_i:")
    A("v_lshrrev_b32 v22, 4, v1\nv_mul_u32_u24 v22, 3456, v22\nv_and_b32 v23, 15, v1\nv_lshlrev_b32 v23, 4, v23\nv_add_u32 v22, v22, v23")
    A(f"s_mul_i32 s50, s{S_B}, {40*3456}\ns_lshl_b32 s51, s{S_F0}, 1\ns_add_u32 s50, s50, s51")
    A(f"s_cmp_eq_u32 s{S_C}, 0\ns_cbranch_scc0 J_c_np")
    A("v_and_b32 v23, 7, v1\nv_lshlrev_b32 v23, 4, v23\nv_bfe_u32 v24, v1, 3, 2\nv_lshlrev_b32 v24, 15, v24\nv_add_u32 v23, v23, v24")
    A(f"v_add_u32 v23, {16384+8192+4096}, v23")
    A("v_mov_b32 v24, 0xbf803f80\nv_mov_b32 v25, 0x3f80bf80\nv_mov_b32 v26, 0xbf803f80\nv_mov_b32 v27, 0x3f80bf80")
    A("ds_write_b128 v23, v[24:27]")
    A("J_c_np:")
    args_ready(A)
    srd(A, 28, W1, W1_BYTES)
    for i in range(10):
        A(f"buffer_load_dwordx4 v[{32+4*i}:{35+4*i}], v22, s[28:31], s50 offen")
        if i < 9: A(f"s_add_u32 s50, s50, {4*3456}")
    srd(A, 36, WS, WS_USED)
    A("J_i_done:")

def dpp_add(A, r, ctrl):
    A(f"v_add_f32_dpp v{r}, v{r}, v{r} {ctrl} row_mask:0xf bank_mask:0xf")

def jobs_finish(A, nG_, tagx):
    nG = tagx
    class _N(str):
        pass
    A("s_cmp_eq_u32 s3, 0\ns_cbranch_scc1 %s\ns_cmp_eq_u32 s3, 1\ns_cbranch_scc1 %s\ns_branch %s" % (f"J_x_{nG}", f"J_c_{nG}", f"J_done_{nG}"))
    A(f"J_x_{nG}:")
    A("v_mov_b32 v22, 0\nv_mov_b32 v23, 0\nv_mov_b32 v24, 0\nv_mov_b32 v25, 0\ns_mov_b32 s52, 0x3f803f80")
    for i in range(10):
        A(f"s_waitcnt vmcnt({9-i+nG_})")
        for k in range(4):
            r = 32 + 4 * i + k
            A(f"v_dot2_f32_bf16 v{22+(k&1)}, v{r}, s52, v{22+(k&1)}")
            A(f"v_dot2_f32_bf16 v{24+(k&1)}, v{r}, v{r}, v{24+(k&1)}")
    A("s_nop 2\nv_add_f32 v22, v22, v23\nv_add_f32 v24, v24, v25\ns_nop 1")
    for ctrl in ["quad_perm:[1,0,3,2]", "quad_perm:[2,3,0,1]", "row_half_mirror"]:
        dpp_add(A, 22, ctrl); dpp_add(A, 24, ctrl); A("s_nop 0")
    A("s_mov_b32 s52, 0x3acccccd\nv_mul_f32 v22, s52, v22\nv_mul_f32 v24, s52, v24")
    A("v_fma_f32 v24, -v22, v22, v24\nv_max_f32 v24, 0, v24\nv_add_f32 v24, 0x3727c5ac, v24\nv_rsq_f32 v23, v24")
    A(f"s_lshl_b32 s52, s{S_B}, 10\ns_lshl_b32 s53, s{S_C}, 5\ns_add_u32 s52, s52, s53\ns_add_u32 s52, s52, {ST_OFF}")
    A("v_lshrrev_b32 v25, 3, v1\nv_lshlrev_b32 v25, 2, v25")
    A("v_and_b32 v26, 7, v1\nv_cmp_eq_u32 vcc, 0, v26\ns_and_saveexec_b64 s[54:55], vcc")
    A(f"buffer_store_dword v22, v25, s[36:39], s52 offen {SC}\nbuffer_store_dword v23, v25, s[36:39], s52 offen offset:512 {SC}")
    A("s_mov_b64 exec, s[54:55]")
    A(f"s_branch J_done_{nG}")
    A(f"J_c_{nG}:")
    for k in range(8): A(f"v_mov_b32 v{72+k}, 0")
    A("s_mov_b32 s52, 0x00003f80\ns_mov_b32 s53, 0x3f800000")
    for i in range(10):
        A(f"s_waitcnt vmcnt({9-i+nG_})")
        for k in range(4):
            r = 32 + 4 * i + k
            A(f"v_dot2_f32_bf16 v{72+2*k}, v{r}, s52, v{72+2*k}")
            A(f"v_dot2_f32_bf16 v{73+2*k}, v{r}, s53, v{73+2*k}")
    A("s_nop 2")
    for sw in ["v_permlane16_swap_b32", "v_permlane32_swap_b32"]:
        for k in range(8): A(f"v_mov_b32 v{80+k}, v{72+k}")
        A("s_nop 0")
        for k in range(8): A(f"{sw} v{72+k}, v{80+k}")
        A("s_nop 0")
        for k in range(8): A(f"v_add_f32 v{72+k}, v{72+k}, v{80+k}")
    A(f"s_lshl_b32 s52, s{S_B}, 13\ns_lshl_b32 s53, s{S_F0}, 2\ns_add_u32 s52, s52, s53\ns_add_u32 s52, s52, {CS_OFF}")
    A(f"v_lshlrev_b32 v22, 5, v1\ns_mov_b32 s53, 16\ns_cmp_lt_u32 s{S_C}, 5\ns_cselect_b32 s53, 8, s53")
    A("v_cmp_gt_u32 vcc, s53, v1\ns_and_saveexec_b64 s[54:55], vcc")
    A(f"buffer_store_dwordx4 v[72:75], v22, s[36:39], s52 offen {SC}\nbuffer_store_dwordx4 v[76:79], v22, s[36:39], s52 offen offset:16 {SC}")
    A("s_mov_b64 exec, s[54:55]")
    A(f"s_branch J_done_{nG}")
    A(f"J_done_{nG}:")
    A(f"s_cmp_ge_u32 s3, 2\ns_cbranch_scc0 J_dn2_{nG}\ns_waitcnt vmcnt(0)")
    if opt("CODEPF", 1) and opt("CPMODE", 1) in (2, 3):
        A(f"s_cmp_eq_u32 s3, {CPW}\ns_cbranch_scc0 J_dn2_{nG}")
        code_prefetch(A, "b" + nG, opt("CPMODE", 1))
    A(f"J_dn2_{nG}:")

def x_addr(A, dst, rowbase_sgpr, tmp):
    A(f"v_and_b32 v{tmp}, 31, v1\nv_add_u32 v{tmp+1}, s{rowbase_sgpr}, v{tmp}\nv_lshlrev_b32 v{tmp+1}, 7, v{tmp+1}")
    A(f"v_bfe_u32 v{tmp}, v1, 1, 3\nv_lshrrev_b32 v{tmp+2}, 5, v1\nv_xor_b32 v{tmp}, v{tmp}, v{tmp+2}")
    A(f"v_lshlrev_b32 v{tmp}, 4, v{tmp}\nv_add_u32 v{dst}, v{tmp+1}, v{tmp}")
    for j in range(1, 4):
        A(f"v_xor_b32 v{dst+j}, {32*j}, v{dst}")
def h_tr_addr(A, dst, tmp):
    A(f"v_bfe_u32 v{tmp}, v1, 5, 1\nv_lshlrev_b32 v{tmp}, 3, v{tmp}\nv_bfe_u32 v{tmp+1}, v1, 2, 2\nv_add_u32 v{tmp}, v{tmp}, v{tmp+1}")
    A(f"v_lshlrev_b32 v{tmp}, 7, v{tmp}")
    A(f"v_bfe_u32 v{tmp+1}, v1, 4, 1\nv_lshlrev_b32 v{tmp+1}, 1, v{tmp+1}\nv_bfe_u32 v{tmp+2}, v1, 1, 1\nv_add_u32 v{tmp+1}, v{tmp+1}, v{tmp+2}")
    A(f"v_bfe_u32 v{tmp+2}, v1, 3, 1\nv_lshlrev_b32 v{tmp+2}, 2, v{tmp+2}\nv_xor_b32 v{tmp+1}, v{tmp+1}, v{tmp+2}")
    A(f"v_lshlrev_b32 v{tmp+1}, 4, v{tmp+1}\nv_add_u32 v{tmp}, v{tmp}, v{tmp+1}")
    A(f"v_and_b32 v{tmp+1}, 1, v1\nv_lshlrev_b32 v{tmp+1}, 3, v{tmp+1}\nv_add_u32 v{dst}, v{tmp}, v{tmp+1}")
def interleave(A, mfmas, fillers, per_gap):
    if opt("NOCOMP1"):
        for f in fillers:
            if not f.startswith("ds_read") and not f.startswith("v_perm"): A(f)
        return
    k = 0
    for i, m in enumerate(mfmas):
        A(m)
        for _ in range(per_gap[i]):
            if k < len(fillers):
                A(fillers[k]); k += 1
    while k < len(fillers):
        A(fillers[k]); k += 1
def h_epilogue_tile(A, acc, mr, cs, tmp, vaddr, soff):
    for i in range(0, 16, 2):
        A(f"v_pk_fma_f32 v[{acc+i}:{acc+i+1}], v[{cs+i}:{cs+i+1}], v[{mr}:{mr+1}], v[{acc+i}:{acc+i+1}] op_sel:[0,0,0] op_sel_hi:[1,0,1] neg_lo:[0,1,0] neg_hi:[0,1,0]")
    for i in range(0, 16, 2):
        A(f"v_pk_mul_f32 v[{acc+i}:{acc+i+1}], v[{acc+i}:{acc+i+1}], v[{mr}:{mr+1}] op_sel:[0,1] op_sel_hi:[1,1]")
    for i in range(0, 16, 2):
        A(f"v_cvt_pk_bf16_f32 v{tmp+i//2}, v{acc+i}, v{acc+i+1}")
    for i in range(8):
        A(f"v_pk_max_i16 v{tmp+i}, v{tmp+i}, 0")
    if opt("LOCALH", 2) != 1:
        A(f"buffer_store_dwordx4 v[{tmp}:{tmp+3}], v{vaddr}, s[36:39], s{soff} offen {SC}")
        A(f"buffer_store_dwordx4 v[{tmp+4}:{tmp+7}], v{vaddr}, s[36:39], s{soff} offen offset:512 {SC}")
        return
    h_epilogue_tile.n += 1
    n = h_epilogue_tile.n
    A(f"s_cmp_eq_u32 s{S_LOCAL}, 1\ns_cbranch_scc1 L_hst{n}_p")
    A(f"buffer_store_dwordx4 v[{tmp}:{tmp+3}], v{vaddr}, s[36:39], s{soff} offen {SC}")
    A(f"buffer_store_dwordx4 v[{tmp+4}:{tmp+7}], v{vaddr}, s[36:39], s{soff} offen offset:512 {SC}")
    A(f"s_branch L_hst{n}_d\nL_hst{n}_p:")
    hst = {0: "", 1: "nt", 2: "sc0", 3: "sc0 nt"}[opt("HST", 0)]
    A(f"buffer_store_dwordx4 v[{tmp}:{tmp+3}], v{vaddr}, s[36:39], s{soff} offen {hst}")
    A(f"buffer_store_dwordx4 v[{tmp+4}:{tmp+7}], v{vaddr}, s[36:39], s{soff} offen offset:512 {hst}")
    A(f"L_hst{n}_d:")
h_epilogue_tile.n = 0
def h_store_voff(A, dst, tmp):
    A(f"v_bfe_u32 v{tmp}, v1, 4, 1\nv_mul_u32_u24 v{tmp}, {58*1024}, v{tmp}")
    A(f"v_lshrrev_b32 v{tmp+1}, 5, v1\nv_lshlrev_b32 v{tmp+1}, 8, v{tmp+1}\nv_add_u32 v{tmp}, v{tmp}, v{tmp+1}")
    A(f"v_and_b32 v{tmp+1}, 15, v1\nv_lshlrev_b32 v{tmp+1}, 4, v{tmp+1}\nv_add_u32 v{dst}, v{tmp}, v{tmp+1}")

def loop_hooks_top(A, tag):
    A(f"s_cmp_eq_u32 s29, s30\ns_cbranch_scc1 {tag}_flag1\n{tag}_flag1_ret:")
def loop_hooks_init(A):
    A(f"s_cmp_lt_u32 s3, 2\ns_cselect_b32 s30, {10 - opt('EARLY_IT', 1)}, 99")
def loop_hooks_ool(A, tag):
    A(f"{tag}_flag1:")
    flag_addr_early(A, 28)
    A("s_waitcnt vmcnt(0)")
    store_flags(A, 28, 1, 48, 30, xcc=True)
    A(f"s_branch {tag}_flag1_ret")

def publish(A, tag, word, kind, vt):
    A("s_waitcnt vmcnt(0)")
    lds_arrive(A, word, vt, 63)
    A(f"s_cmp_eq_u32 s63, 3\ns_cbranch_scc0 {tag}_np")
    if kind == "h":
        flag_addr_h(A, vt - 1); store_flags(A, vt - 1, 1, 48, vt, xcc=True, local=(tag if opt("LOCALF", 1) else None))
    else:
        flag_addr_t(A, vt - 1); store_flags(A, vt - 1, 8, 48, vt)
    A(f"{tag}_np:")

def p1_hh(A):
    A("L_hh:")
    ACC = 128; P, Q = 32, 64
    XB, WB = 2, 6; XC, WC = 8, 12
    A("s_lshr_b32 s24, s3, 1\ns_and_b32 s25, s3, 1")
    A("s_lshl_b32 s26, s24, 6")
    x_addr(A, XB, 26, 20)
    h_tr_addr(A, WB, 20)
    A("s_lshl_b32 s27, s25, 13\ns_add_u32 s27, s27, 16384")
    A(f"v_add_u32 v{WB}, s27, v{WB}\nv_xor_b32 v{WB+1}, 64, v{WB}")
    for i in range(64): A(f"v_mov_b32 v{ACC+i}, 0")
    for j in range(4): A(f"v_mov_b32 v{XC+j}, v{XB+j}")
    for j in range(2): A(f"v_mov_b32 v{WC+j}, v{WB+j}")
    A(f"v_and_b32 v20, 31, v1\nv_add_u32 v20, s26, v20\nv_lshlrev_b32 v20, 2, v20\nv_add_u32 v20, {LST}, v20")
    A(f"v_lshrrev_b32 v21, 5, v1\nv_lshlrev_b32 v21, 4, v21\ns_lshl_b32 s33, s25, 8\ns_add_u32 s33, s33, {LCS}\nv_add_u32 v21, s33, v21")
    h_store_voff(A, 19, 26)
    A(f"s_lshl_b32 s31, s{S_B}, 3\ns_lshl_b32 s32, s24, 1\ns_add_u32 s31, s31, s32\ns_mul_i32 s31, s31, 58")
    A(f"s_lshr_b32 s32, s{S_F0}, 5\ns_lshl_b32 s33, s25, 1\ns_add_u32 s32, s32, s33\ns_add_u32 s31, s31, s32")
    A(f"s_lshl_b32 s31, s31, 10\ns_add_u32 s31, s31, {HF_OFF}")
    jobs_finish(A, 0, 'h')
    epoch_ready(A)
    A("s_mov_b32 s28, 0")
    loop_hooks_init(A)
    def reads(buf, g):
        out = []
        for jj in range(2):
            j = 2 * g + jj; b = buf + 16 * jj
            out.append(f"ds_read_b128 v[{b}:{b+3}], v{XC+j}")
            out.append(f"ds_read_b64_tr_b16 v[{b+8}:{b+9}], v{WC} offset:{j*2048}")
            out.append(f"ds_read_b64_tr_b16 v[{b+10}:{b+11}], v{WC} offset:{j*2048+512}")
            out.append(f"ds_read_b128 v[{b+4}:{b+7}], v{XC+j} offset:4096")
            out.append(f"ds_read_b64_tr_b16 v[{b+12}:{b+13}], v{WC+1} offset:{j*2048}")
            out.append(f"ds_read_b64_tr_b16 v[{b+14}:{b+15}], v{WC+1} offset:{j*2048+512}")
        return out
    def mfmas(buf):
        out = []
        for jj in range(2):
            b = buf + 16 * jj
            for ft in range(2):
                for st in range(2):
                    a = ACC + 16 * (2 * ft + st)
                    out.append(f"{MFMA32} v[{a}:{a+15}], v[{b+8+4*ft}:{b+11+4*ft}], v[{b+4*st}:{b+3+4*st}], v[{a}:{a+15}]")
        return out
    stamp(A, 1)
    A("s_waitcnt lgkmcnt(0)\ns_barrier")
    stamp(A, 2)
    for r in reads(P, 0):
        if not opt("NOCOMP1"): A(r)
    A("s_mov_b32 s29, 10")
    A("L_hh_loop:")
    A.drop = (["v_mfma"] if opt("NOMF1") else []) + (["ds_read"] if opt("NODS1") else []) + (["v_perm"] if opt("NOPERM") else [])
    loop_hooks_top(A, "L_hh")
    A("s_waitcnt lgkmcnt(0)")
    A("s_cmp_eq_u32 s29, 1\ns_cbranch_scc1 L_hh_pre\nL_hh_pre_ret:")
    if opt("HHSTAMP"): stamp(A)
    upd = [f"v_add_u32 v{XC+j}, s28, v{XB+j}" for j in range(4)] + [f"v_add_u32 v{WC+j}, s28, v{WB+j}" for j in range(2)]
    ring = [f"s_add_u32 s28, s28, {RING}", f"s_and_b32 s28, s28, {NS*RING-1}"]
    pat = opt("HHPAT", 0)
    g1 = [[3, 3, 3, 3, 2, 3, 3, 0], [4, 4, 4, 2, 3, 3, 0, 0], [6, 6, 2, 3, 3, 0, 0, 0]][pat]
    g2 = [[3, 3, 3, 3, 0, 0, 0, 0], [4, 4, 4, 0, 0, 0, 0, 0], [6, 6, 0, 0, 0, 0, 0, 0]][pat]
    interleave(A, mfmas(P), reads(Q, 1) + ring + upd, g1)
    if opt("HHSTAMP"): A("s_waitcnt lgkmcnt(0)"); stamp(A)
    A("s_waitcnt lgkmcnt(0)")
    A("s_barrier")
    if opt("HHSTAMP"): stamp(A)
    interleave(A, mfmas(Q), reads(P, 0), g2)
    A.drop = []
    A("s_sub_u32 s29, s29, 1\ns_cmp_lg_u32 s29, 0\ns_cbranch_scc1 L_hh_loop")
    A("s_waitcnt vmcnt(0) lgkmcnt(0)")
    stamp(A, 3)
    A(f"v_readfirstlane_b32 s{S_LOCAL}, v18")
    A("s_nop 7")
    for st in range(2):
        for ft in range(2):
            A(f"s_add_u32 s32, s31, {(st*4*58+ft)*1024}")
            h_epilogue_tile(A, ACC + 16 * (2 * ft + st), 14 + 2 * st, 96 + 16 * ft, 64 + 8 * ((2 * st + ft) & 3), 19, 32)
    stamp(A, 4)
    publish(A, "L_hh_pub", 0, "h", 30)
    stamp(A)
    stamp_flush(A, 0, WS, 9)
    A("s_endpgm")
    loop_hooks_ool(A, "L_hh")
    A("L_hh_pre:")
    A("ds_read_b32 v14, v20\nds_read_b32 v15, v20 offset:512\nds_read_b32 v16, v20 offset:128\nds_read_b32 v17, v20 offset:640")
    A(f"v_mov_b32 v18, {LCNT + 12}\nds_read_b32 v18, v18")
    for ft in range(2):
        for q in range(4):
            b = 96 + 16 * ft + 4 * q
            A(f"ds_read_b128 v[{b}:{b+3}], v21 offset:{ft*128+q*32}")
    A("s_branch L_hh_pre_ret")

def p1_mx(A):
    A("L_mx:")
    P, Q = 32, 72
    EV, OD = 112, 116
    CE, CO, SE, SO = 120, 124, 128, 132
    HA, HB = 136, 152
    EC, ES, OC, OS = 168, 184, 200, 216
    G = 232
    XAB, WHB = 2, 6
    XAC, XBC, DAC, WHC = 7, 11, 15, 19
    def gmat():
        A("v_and_b32 v24, 31, v1\nv_cvt_f32_u32 v24, v24\nv_lshrrev_b32 v25, 5, v1\nv_cvt_f32_u32 v25, v25")
        A("v_mul_f32 v25, 0x3e000000, v25\nv_mul_f32 v25, v25, v24")
        for p in range(2):
            for uh in range(2):
                for u2 in range(2):
                    for k in range(2):
                        c = 16 * p + 8 * uh + 2 * u2 + k
                        import struct
                        lit = struct.unpack("<I", struct.pack("<f", c / 32.0))[0]
                        A(f"v_fmamk_f32 v26, v24, {lit:#x}, v25\nv_fract_f32 v26, v26")
                        A(f"v_cos_f32 v{28+k}, v26\nv_sin_f32 v{30+k}, v26")
                    A("s_nop 0")
                    A(f"v_cvt_pk_bf16_f32 v{G+4*p+2*uh+u2}, v28, v29\nv_cvt_pk_bf16_f32 v{G+16+4*p+2*uh+u2}, v30, v31")
        for i in range(8):
            A(f"v_xor_b32 v{G+8+i}, 0x80008000, v{G+16+i}")
    if not opt("GLATE", 1): gmat()
    A("s_lshr_b32 s24, s3, 1\ns_and_b32 s25, s3, 1")
    A("s_lshl_b32 s26, s3, 5\ns_xor_b32 s27, s26, 32")
    x_addr(A, XAB, 26, 24)
    h_tr_addr(A, WHB, 24)
    A(f"s_lshl_b32 s30, s25, 6\nv_xor_b32 v{WHB}, s30, v{WHB}\nv_add_u32 v{WHB}, 16384, v{WHB}")
    for i in range(96): A(f"v_mov_b32 v{HA+i}, 0")
    A("s_lshl_b32 s31, s3, 12\ns_sub_u32 s31, 24576, s31")
    def upd(js=(0, 1, 2, 3), wh=True):
        o = [f"v_add_u32 v{XAC+j}, s28, v{XAB+j}" for j in js] + ([f"v_add_u32 v{WHC}, s28, v{WHB}"] if wh else [])
        o += [f"v_xor_b32 v{XBC+j}, 0x1000, v{XAC+j}" for j in js]
        o += [f"v_add_u32 v{DAC+j}, s31, v{XAC+j}" for j in js]
        return o
    A("s_mov_b32 s28, 0")
    for t in upd(): A(t)
    jobs_finish(A, 0, 'm')
    epoch_ready(A)
    loop_hooks_init(A)
    A("s_mov_b32 s34, 0x05040100\ns_mov_b32 s35, 0x07060302")
    def reads(buf, m):
        out = []
        for jj in range(2):
            j = 2 * m + jj
            out.append(f"ds_read_b128 v[{buf+4*jj}:{buf+4*jj+3}], v{XAC+j}")
        for jj in range(2):
            j = 2 * m + jj
            out.append(f"ds_read_b64_tr_b16 v[{buf+16+4*jj}:{buf+17+4*jj}], v{WHC} offset:{j*2048}")
            out.append(f"ds_read_b64_tr_b16 v[{buf+18+4*jj}:{buf+19+4*jj}], v{WHC} offset:{j*2048+512}")
            out.append(f"ds_read_b128 v[{buf+8+4*jj}:{buf+11+4*jj}], v{XBC+j}")
        for jj in range(2):
            j = 2 * m + jj
            out.append(f"ds_read_b128 v[{buf+24+4*jj}:{buf+27+4*jj}], v{DAC+j}")
            out.append(f"ds_read_b128 v[{buf+32+4*jj}:{buf+35+4*jj}], v{DAC+j} offset:4096")
        return out
    def perms(src, e, o):
        ev = [f"v_perm_b32 v{e+k}, v{src+2*k+1}, v{src+2*k}, s34" for k in range(4)]
        od = [f"v_perm_b32 v{o+k}, v{src+2*k+1}, v{src+2*k}, s35" for k in range(4)]
        return ev, od
    def half(cur, nxt, m_next, extra):
        rd = reads(nxt, m_next)
        if opt("NOCOMP1"):
            for t in extra: A(t)
            return
        xe, xo = perms(cur, EV, OD); ce, co = perms(cur + 24, CE, CO); se, so = perms(cur + 32, SE, SO)
        H = []
        for jj in range(2):
            w = cur + 16 + 4 * jj
            H.append(f"{MFMA32} v[{HA}:{HA+15}], v[{w}:{w+3}], v[{cur+4*jj}:{cur+4*jj+3}], v[{HA}:{HA+15}]")
            H.append(f"{MFMA32} v[{HB}:{HB+15}], v[{w}:{w+3}], v[{cur+8+4*jj}:{cur+11+4*jj}], v[{HB}:{HB+15}]")
        Dm = [f"{MFMA32} v[{EC}:{EC+15}], v[{EV}:{EV+3}], v[{CE}:{CE+3}], v[{EC}:{EC+15}]",
              f"{MFMA32} v[{OC}:{OC+15}], v[{OD}:{OD+3}], v[{CO}:{CO+3}], v[{OC}:{OC+15}]",
              f"{MFMA32} v[{ES}:{ES+15}], v[{EV}:{EV+3}], v[{SE}:{SE+3}], v[{ES}:{ES+15}]",
              f"{MFMA32} v[{OS}:{OS+15}], v[{OD}:{OD+3}], v[{SO}:{SO+3}], v[{OS}:{OS+15}]"]
        if opt("MXSCHED", 1):
            ex = list(extra)
            def take(n):
                t = ex[:n]; del ex[:n]; return t
            pad = lambda n: (take(n) + ["s_nop 0"] * n)[:n]
            ms = H + [Dm[0], Dm[2], Dm[1], Dm[3]]
            gaps = [xe[0:2] + rd[0:3], xe[2:4] + rd[3:6], ce[0:2] + rd[6:9], ce[2:4] + rd[9:12],
                    se + xo[0:2], xo[2:4] + co + pad(2), so + pad(2), None]
            gaps[7] = ex
        else:
            gaps = [xe + rd[0:2], ce + rd[2:4], xo + rd[4:6], co + rd[6:8], se + rd[8:10], so + rd[10:12], extra[:8], extra[8:]]
            ms = H + Dm
        for i in range(8):
            A(ms[i])
            for t in gaps[i]: A(t)
    stamp(A, 1)
    A("s_waitcnt lgkmcnt(0)\ns_barrier")
    stamp(A, 2)
    for r in reads(P, 0):
        if not opt("NOCOMP1"): A(r)
    A("s_mov_b32 s29, 10")
    A("L_mx_loop:")
    A.drop = (["v_mfma"] if opt("NOMF1") else []) + (["ds_read"] if opt("NODS1") else []) + (["v_perm"] if opt("NOPERM") else [])
    loop_hooks_top(A, "L_mx")
    A("s_waitcnt lgkmcnt(0)")
    if opt("HHSTAMP"): stamp(A)
    ring = [f"s_add_u32 s28, s28, {RING}", f"s_and_b32 s28, s28, {NS*RING-1}"]
    if opt("MXSCHED", 1):
        half(P, Q, 1, ring + upd((0, 1), True))
        if opt("HHSTAMP"): A("s_waitcnt lgkmcnt(0)"); stamp(A)
        A("s_waitcnt lgkmcnt(0)")
        A("s_barrier")
        if opt("HHSTAMP"): stamp(A)
        half(Q, P, 0, upd((2, 3), False))
    else:
        half(P, Q, 1, ring + upd())
        A("s_waitcnt lgkmcnt(0)")
        A("s_barrier")
        half(Q, P, 0, [])
    A.drop = []
    A("s_sub_u32 s29, s29, 1\ns_cmp_lg_u32 s29, 0\ns_cbranch_scc1 L_mx_loop")
    A("s_waitcnt vmcnt(0) lgkmcnt(0)")
    stamp(A, 3)
    A(f"v_and_b32 v24, 31, v1\nv_add_u32 v25, s26, v24\nv_lshlrev_b32 v25, 2, v25\nv_add_u32 v25, {LST}, v25")
    A(f"v_add_u32 v26, s27, v24\nv_lshlrev_b32 v26, 2, v26\nv_add_u32 v26, {LST}, v26")
    A("ds_read_b32 v2, v25\nds_read_b32 v3, v25 offset:512\nds_read_b32 v4, v26\nds_read_b32 v5, v26 offset:512")
    A(f"v_mov_b32 v7, {LCNT + 12}\nds_read_b32 v7, v7")
    A(f"v_lshrrev_b32 v27, 5, v1\nv_lshlrev_b32 v27, 4, v27\ns_lshl_b32 s30, s25, 7\ns_add_u32 s30, s30, {LCS}\nv_add_u32 v28, s30, v27")
    for q in range(4):
        A(f"ds_read_b128 v[{32+4*q}:{35+4*q}], v28 offset:{q*32}")
    A(f"s_lshl_b32 s30, s26, 2\ns_add_u32 s30, s30, {LST+512}\nv_add_u32 v28, s30, v27")
    for q in range(4):
        A(f"ds_read_b128 v[{48+4*q}:{51+4*q}], v28 offset:{q*32}")
    h_store_voff(A, 6, 28)
    A(f"s_lshl_b32 s31, s{S_B}, 3\ns_lshl_b32 s30, s24, 1\ns_add_u32 s31, s31, s30\ns_mul_i32 s31, s31, 58")
    A(f"s_lshr_b32 s30, s{S_F0}, 5\ns_add_u32 s30, s30, s25\ns_add_u32 s31, s31, s30")
    A(f"s_lshl_b32 s31, s31, 10\ns_add_u32 s31, s31, {HF_OFF}")
    A(f"s_mul_i32 s30, s25, {4*58*1024}\ns_add_u32 s32, s31, s30")
    A(f"s_xor_b32 s30, s25, 1\ns_mul_i32 s30, s30, {4*58*1024}\ns_add_u32 s33, s31, s30")
    A("s_waitcnt lgkmcnt(0)")
    A(f"v_readfirstlane_b32 s{S_LOCAL}, v7")
    A("s_nop 7")
    h_epilogue_tile(A, HA, 2, 32, 64, 6, 32)
    h_epilogue_tile(A, HB, 4, 32, 72, 6, 33)
    stamp(A, 4)
    if opt("MXPUB", 0): publish(A, "L_mx_pubh", 0, "h", 30)
    stamp(A)
    if opt("GLATE", 1): gmat()
    R = 48
    for i in range(0, 16, 2):
        for a in (EC, OC, ES, OS):
            A(f"v_pk_mul_f32 v[{a+i}:{a+i+1}], v[{a+i}:{a+i+1}], v[{R+i}:{R+i+1}]")
    T0, T1 = 80, 96
    for i in range(0, 16, 2):
        A(f"v_pk_add_f32 v[{T0+i}:{T0+i+1}], v[{EC+i}:{EC+i+1}], v[{OC+i}:{OC+i+1}]")
        A(f"v_pk_add_f32 v[{EC+i}:{EC+i+1}], v[{EC+i}:{EC+i+1}], v[{OC+i}:{OC+i+1}] neg_lo:[0,1] neg_hi:[0,1]")
        A(f"v_pk_add_f32 v[{T1+i}:{T1+i+1}], v[{ES+i}:{ES+i+1}], v[{OS+i}:{OS+i+1}]")
        A(f"v_pk_add_f32 v[{OC+i}:{OC+i+1}], v[{OS+i}:{OS+i+1}], v[{ES+i}:{ES+i+1}] neg_lo:[0,1] neg_hi:[0,1]")
    A("v_and_b32 v24, 31, v1\nv_cmp_eq_u32 s[40:41], 0, v24\ns_nop 3")
    A(f"s_cmp_eq_u32 s{S_C}, 0\ns_cselect_b64 s[40:41], s[40:41], 0\ns_cbranch_scc0 L_mx_nofix")
    for i in range(16):
        A(f"v_cndmask_b32 v{T0+i}, v{T0+i}, v{ES+i}, s[40:41]")
        A(f"v_cndmask_b32 v{T1+i}, v{T1+i}, v{OS+i}, s[40:41]")
        A(f"v_cndmask_b32_e64 v{OC+i}, v{OC+i}, 0, s[40:41]")
    A("L_mx_nofix:")
    ZB = 32
    for k, a in enumerate([T0, T1, EC, OC]):
        for i in range(0, 16, 2):
            A(f"v_cvt_pk_bf16_f32 v{ZB+8*k+i//2}, v{a+i}, v{a+i+1}")
    Fr = lambda p: f"v[{G+4*p}:{G+4*p+3}]"
    Fi = lambda p: f"v[{G+8+4*p}:{G+8+4*p+3}]"
    nFi = lambda p: f"v[{G+16+4*p}:{G+16+4*p+3}]"
    Z = lambda k, p: f"v[{ZB+8*k+4*p}:{ZB+8*k+4*p+3}]"
    TR = [EC, OC]; TI = [ES, OS]
    A("s_nop 1")
    for st_ in range(2):
        zr, zi = 2 * st_, 2 * st_ + 1
        tr, ti = TR[st_], TI[st_]
        A(f"{MFMA32} v[{tr}:{tr+15}], {Fr(0)}, {Z(zr,0)}, 0")
        A(f"{MFMA32} v[{ti}:{ti+15}], {Fr(0)}, {Z(zi,0)}, 0")
        A(f"{MFMA32} v[{tr}:{tr+15}], {Fr(1)}, {Z(zr,1)}, v[{tr}:{tr+15}]")
        A(f"{MFMA32} v[{ti}:{ti+15}], {Fr(1)}, {Z(zi,1)}, v[{ti}:{ti+15}]")
        A(f"{MFMA32} v[{tr}:{tr+15}], {nFi(0)}, {Z(zi,0)}, v[{tr}:{tr+15}]")
        A(f"{MFMA32} v[{ti}:{ti+15}], {Fi(0)}, {Z(zr,0)}, v[{ti}:{ti+15}]")
        A(f"{MFMA32} v[{tr}:{tr+15}], {nFi(1)}, {Z(zi,1)}, v[{tr}:{tr+15}]")
        A(f"{MFMA32} v[{ti}:{ti+15}], {Fi(1)}, {Z(zr,1)}, v[{ti}:{ti+15}]")
    if not opt("MXPUB", 0): publish(A, "L_mx_pubh", 0, "h", 30)
    else: A("s_nop 7")
    stamp(A)
    A(f"v_and_b32 v24, 31, v1\nv_lshlrev_b32 v24, 2, v24\nv_lshrrev_b32 v25, 5, v1\nv_lshlrev_b32 v25, 9, v25\nv_add_u32 v24, v24, v25")
    A(f"s_lshl_b32 s30, s3, 13\ns_add_u32 s30, s30, {LX}\nv_add_u32 v24, s30, v24")
    A("s_nop 7")
    for st_ in range(2):
        for i in range(16):
            A(f"v_cvt_pk_bf16_f32 v{64+16*st_+i}, v{TR[st_]+i}, v{TI[st_]+i}")
    for st_ in range(2):
        for i in range(16):
            t0 = (i & 3) + 8 * (i >> 2)
            A(f"ds_write_b32 v24, v{64+16*st_+i} offset:{st_*4096+t0*128}")
    A("s_waitcnt lgkmcnt(0)")
    stamp(A)
    lds_arrive(A, 1, 30, 63)
    A(f"v_mov_b32 v30, {LCNT+4}")
    A("L_mx_rv:\nds_read_b32 v31, v30\ns_waitcnt lgkmcnt(0)\ns_nop 0\nv_readfirstlane_b32 s63, v31\ns_nop 3\ns_cmp_ge_u32 s63, 4\ns_cbranch_scc1 L_mx_rv_ok")
    A(f"s_sub_u32 s{S_SPIN}, s{S_SPIN}, 1\ns_cmp_eq_u32 s{S_SPIN}, 0\ns_cbranch_scc0 L_mx_rv\nL_mx_rv_ok:")
    A("v_and_b32 v24, 31, v1\nv_lshlrev_b32 v24, 2, v24\nv_lshrrev_b32 v25, 5, v1\nv_lshlrev_b32 v26, 7, v25\nv_add_u32 v24, v24, v26")
    A(f"s_lshl_b32 s30, s3, 10\ns_add_u32 s30, s30, {LX}\nv_add_u32 v24, s30, v24")
    for st_ in range(2):
        for n in range(4):
            b = 64 + 16 * st_ + 4 * n
            for w in range(4):
                A(f"ds_read_b32 v{b+w}, v24 offset:{w*8192+st_*4096+n*256}")
    A(f"v_and_b32 v26, 31, v1\ns_lshl_b32 s30, s{S_C}, 5\nv_add_u32 v27, s30, v26")
    A("v_mov_b32 v28, 160\nv_cndmask_b32 v29, v27, v28, s[40:41]")
    A("v_sub_u32 v27, 320, v27")
    A(f"s_mov_b32 s30, {TF_T0}\nv_mul_lo_u32 v25, s30, v25")
    A("v_lshlrev_b32 v29, 4, v29\nv_add_u32 v29, v29, v25")
    A("v_lshlrev_b32 v27, 4, v27\nv_add_u32 v27, v27, v25")
    A(f"s_mul_i32 s30, s3, {8*TF_T0}\ns_mul_i32 s31, s{S_B}, {TF_ROW}\ns_add_u32 s30, s30, s31\ns_add_u32 s30, s30, {TF_OFF}")
    A("s_waitcnt lgkmcnt(0)")
    for st_ in range(2):
        for n in range(4):
            b = 64 + 16 * st_ + 4 * n
            A(f"s_add_u32 s31, s30, {2*n*TF_T0}")
            if not opt("NOTST"): A(f"buffer_store_dwordx4 v[{b}:{b+3}], v{29 if st_ == 0 else 27}, s[36:39], s31 offen {'' if opt('TPLAIN') else SC}")
    stamp(A)
    A(f"s_cmp_eq_u32 s{S_C}, 0\ns_cbranch_scc0 L_mx_noz\ns_cmp_eq_u32 s3, 0\ns_cbranch_scc0 L_mx_noz")
    A(f"s_mov_b32 s30, {TF_T0}\nv_and_b32 v24, 31, v1\nv_mul_lo_u32 v24, s30, v24")
    A("v_mov_b32 v4, 0\nv_mov_b32 v5, 0\nv_mov_b32 v6, 0\nv_mov_b32 v7, 0")
    A(f"s_mul_i32 s31, s{S_B}, {TF_ROW}\ns_add_u32 s31, s31, {TF_OFF}")
    A(f"buffer_store_dwordx4 v[4:7], v24, s[36:39], s31 offen {SC}")
    A("L_mx_noz:")
    publish(A, "L_mx_pubt", 2, "t", 30)
    stamp(A)
    stamp_flush(A, 0, WS, 9)
    A("s_endpgm")
    loop_hooks_ool(A, "L_mx")

def loader(A):
    A("L_loader:")
    if opt("PRIOL"): A(f"s_setprio {opt('PRIOL')}")
    if opt("PRIOL1"): A(f"s_setprio {opt('PRIOL1')}")
    A(f"s_sub_u32 s{S_J}, s3, 4")
    for r in [11, 12, 13, 52, 53, 54, 55, 56, 57, 58, 59]: A(f"v_mov_b32 v{r}, 0")
    A("s_mov_b32 s58, 0\ns_mov_b32 s59, 99\ns_mov_b32 s63, 0")
    RS = 1280 if opt("XLIN") else 81920
    A(f"v_lshrrev_b32 v4, 3, v1\ns_mov_b32 s40, {RS}\nv_mul_lo_u32 v8, s40, v4")
    A("v_and_b32 v5, 7, v1\nv_lshrrev_b32 v6, 4, v1\nv_xor_b32 v5, v5, v6\nv_lshlrev_b32 v5, 4, v5")
    A("v_add_u32 v2, v8, v5\nv_xor_b32 v7, 64, v5")
    A(f"v_add_u32 v3, v8, v7\nv_add_u32 v3, {8*RS}, v3")
    A(f"s_lshl_b32 s40, s{S_B}, 1\ns_and_b32 s41, s{S_J}, 1\ns_add_u32 s40, s40, s41")
    A(f"s_lshr_b32 s41, s{S_J}, 1\ns_lshl_b32 s41, s41, 5\ns_add_u32 s40, s40, s41")
    if opt("XLIN"):
        A(f"s_lshl_b32 s40, s{S_B}, 2\ns_add_u32 s40, s40, s{S_J}\ns_mul_i32 s40, s40, {32*1280}\ns_add_u32 s41, s40, {16*1280}")
    else:
        A(f"s_mul_i32 s40, s40, 1280\ns_add_u32 s41, s40, {16*81920}")
    A("s_mov_b64 s[56:57], -1")
    A(f"s_cmp_lt_u32 s{S_C}, 5\ns_cbranch_scc0 L_ld_H")
    A(f"s_cmp_ge_u32 s{S_J}, 2\ns_cbranch_scc0 L_ld_H")
    A(f"s_and_b32 s50, s{S_J}, 1\ns_add_u32 s50, s50, 1\ns_mov_b32 s30, {HID_BYTES}")
    A("v_mul_u32_u24 v8, 1280, v4\nv_add_u32 v9, v8, v5")
    A(f"v_add_u32 v10, v8, v7\nv_add_u32 v10, {8*1280}, v10")
    A(f"s_mul_i32 s42, s{S_C}, {32*1280}")
    A(f"s_mov_b32 s44, s42\ns_mov_b32 s45, s42\ns_add_u32 s46, s42, {16*1280}\ns_add_u32 s47, s42, {16*1280}")
    A("s_mov_b32 s43, 128")
    A(f"s_cmp_eq_u32 s{S_C}, 0\ns_cbranch_scc0 L_ld_go\ns_cmp_eq_u32 s{S_J}, 3\ns_cbranch_scc0 L_ld_go")
    A("s_mov_b32 s56, 0xffffff00")
    A("s_branch L_ld_go")
    A("L_ld_H:")
    A(f"s_mov_b32 s50, 0\ns_mov_b32 s30, {W1_BYTES}")
    A("v_mul_u32_u24 v8, 3456, v4")
    A("v_and_b32 v9, 7, v1\nv_bfe_u32 v10, v1, 4, 1\nv_lshlrev_b32 v10, 2, v10\nv_xor_b32 v9, v9, v10")
    A("v_lshlrev_b32 v9, 4, v9\nv_add_u32 v9, v8, v9\nv_mov_b32 v10, v9")
    A(f"s_and_b32 s42, s{S_J}, 1\ns_mul_i32 s42, s42, {32*3456}")
    A(f"s_lshr_b32 s43, s{S_J}, 1\ns_lshl_b32 s43, s43, 6\ns_add_u32 s43, s43, s{S_F0}\ns_lshl_b32 s43, s43, 1")
    A("s_add_u32 s42, s42, s43")
    for q in range(4):
        A(f"s_add_u32 s{44+q}, s42, {8*q*3456}")
    A(f"s_mov_b32 s43, {64*3456}")
    A("L_ld_go:")
    A(f"s_lshl_b32 s48, s{S_J}, 12\ns_mov_b32 s31, 0x20000")
    args_ready(A)
    srd(A, 24, X_, X_BYTES)
    A(f"s_cmp_eq_u32 s50, 1\ns_cselect_b32 s28, s{HRE}, s{W1}\ns_cselect_b32 s29, s{HRE+1}, s{W1+1}")
    A(f"s_cmp_eq_u32 s50, 2\ns_cselect_b32 s28, s{HIM}, s28\ns_cselect_b32 s29, s{HIM+1}, s29")
    def chunk(slot_reg):
        for q in range(0 if opt("NOLOAD1") else 4):
            A(f"s_add_u32 m0, s{slot_reg}, {q*1024}")
            A("s_nop 0")
            A(f"buffer_load_dwordx4 v{2+(q&1)}, s[24:27], s{40+(q>>1)} offen {'nt ' if opt('XNT') else ''}lds")
            A(f"s_add_u32 m0, s{slot_reg}, {16384+q*1024}")
            if q == 0: A("s_mov_b64 exec, s[56:57]")
            else: A("s_nop 0")
            A(f"buffer_load_dwordx4 v{9+(q&1)}, s[28:31], s{44+q} offen {'nt ' if opt('WNT') else ''}lds")
            if q == 0: A("s_mov_b64 exec, -1")
        A("s_add_u32 s40, s40, 128\ns_add_u32 s41, s41, 128")
        for q in range(4):
            A(f"s_add_u32 s{44+q}, s{44+q}, s43")
        A(f"s_add_u32 s{slot_reg}, s{slot_reg}, {RING}\ns_cmp_ge_u32 s{slot_reg}, {NS*RING}\ns_cselect_b32 s52, {NS*RING}, 0\ns_sub_u32 s{slot_reg}, s{slot_reg}, s52")
    A("s_mov_b32 s49, s48")
    chunk(49); chunk(49)
    stamp(A, 1)
    srd(A, 36, WS, WS_USED)
    srd(A, 32, WS, WS_USED)
    A("s_waitcnt lgkmcnt(0)")
    A(f"s_add_u32 s{S_E}, s{S_E}, 1\ns_xor_b32 s{S_EM}, s{S_E}, {MAGIC}")
    A(f"s_cmp_ge_u32 s{S_J}, 2\ns_cbranch_scc0 L_ld_su01")
    A(f"s_sub_u32 s58, s{S_J}, 2\ns_lshl_b32 s59, s{S_T0}, 1\ns_add_u32 s59, s59, s58")
    A("s_mov_b32 s50, 6554\ns_mov_b32 s53, 1280")
    for q in range(5):
        A(f"v_add_u32 v22, {64*q}, v1")
        A("v_mul_lo_u32 v23, s50, v22\nv_lshrrev_b32 v23, 16, v23")
        A("v_mul_u32_u24 v24, 10, v23\nv_sub_u32 v24, v22, v24\nv_lshlrev_b32 v24, 4, v24")
        A(f"v_mul_lo_u32 v23, s53, v23\nv_add_u32 v{52+q}, v23, v24")
    A("v_lshrrev_b32 v23, 4, v1\nv_lshrrev_b32 v24, 1, v23\nv_lshlrev_b32 v24, 4, v24")
    A("v_and_b32 v25, 1, v23\nv_lshlrev_b32 v25, 2, v25\nv_add_u32 v24, v24, v25\nv_bfe_u32 v25, v1, 2, 2\nv_add_u32 v24, v24, v25")
    A("v_mul_u32_u24 v24, 160, v24\nv_and_b32 v25, 3, v1\nv_lshlrev_b32 v25, 3, v25\nv_add_u32 v24, v24, v25")
    A(f"s_mul_i32 s50, s58, 5120\ns_add_u32 s50, s50, {LW}\nv_add_u32 v57, s50, v24")
    A(f"s_lshl_b32 s50, s{S_CT}, 6\ns_add_u32 s50, s50, s59\ns_lshl_b32 s50, s50, 3\ns_add_u32 s50, s50, {FW_OFF}\nv_mov_b32 v58, s50")
    if opt("WSKIP"): A("s_mov_b32 s59, 99")
    A("s_branch L_ld_sud")
    A("L_ld_su01:")
    A("v_lshlrev_b32 v13, 3, v1\nv_and_b32 v16, 31, v1\nv_lshlrev_b32 v15, 3, v16")
    A(f"s_lshl_b32 s50, s{S_B}, 7\ns_add_u32 s50, s50, {FR1_OFF}\nv_add_u32 v12, s50, v15")
    A(f"s_lshl_b32 s50, s{S_C}, 7\ns_add_u32 s50, s50, {FC1_OFF-128}\nv_add_u32 v15, s50, v15")
    A("v_cmp_le_u32 vcc, 16, v16\ns_nop 1\nv_cndmask_b32 v12, v12, v15, vcc")
    A(f"s_lshl_b32 s50, s{S_CT}, 9\ns_add_u32 s50, s50, {FW_OFF}\nv_add_u32 v11, s50, v13")
    A("L_ld_sud:")
    A("s_waitcnt vmcnt(8)")
    stamp(A, 2)
    A("s_barrier")
    chunk(49)
    A(f"s_cmp_ge_u32 s{S_J}, 2\ns_cbranch_scc1 L_ld_h1w\nL_ld_h1w_ret:")
    A(f"s_cmp_ge_u32 s{S_J}, 2\ns_cbranch_scc1 L_ld_b1w")
    A("s_waitcnt vmcnt(8)\ns_branch L_ld_b1d\nL_ld_b1w:")
    A("s_cmp_ge_u32 s59, 54\ns_cbranch_scc1 L_ld_b1n\ns_waitcnt vmcnt(13)\ns_branch L_ld_b1d\nL_ld_b1n:\ns_waitcnt vmcnt(8)\nL_ld_b1d:")
    A("s_barrier")
    stamp(A)
    pk = opt("POLLK", 5)
    assert pk in (5, 6)
    A(f"s_mov_b32 s53, 99\ns_mov_b32 s54, 99\ns_mov_b32 s55, 0\ns_mov_b32 s79, 99\ns_mov_b32 s81, 99\ns_mov_b32 s82, 99\ns_mov_b32 s83, 0")
    A(f"s_cmp_eq_u32 s{S_J}, 0\ns_cselect_b32 s53, {9-pk}, s53\ns_cselect_b32 s54, {9-pk-2}, s54\ns_cselect_b32 s55, {9-pk-1}, s55\ns_cselect_b32 s81, {9-pk-2}, s81")
    A(f"s_cmp_eq_u32 s{S_J}, 1\ns_cselect_b32 s53, {opt('FWPOLL', 1)}, s53")
    A(f"s_cmp_ge_u32 s{S_J}, 2\ns_cselect_b32 s82, 6, s82\ns_cselect_b32 s79, 3, s79\ns_cselect_b32 s83, 1, s83")
    A("s_mov_b32 s51, 7")
    A("L_ld_loop:")
    A("s_cmp_eq_u32 s51, s54\ns_cbranch_scc1 L_ld_h2\nL_ld_h2_ret:")
    chunk(49)
    A("s_cmp_eq_u32 s51, s79\ns_cbranch_scc1 L_ld_h3\nL_ld_h3_ret:")
    A("s_cmp_eq_u32 s51, s53\ns_cbranch_scc1 L_ld_h1\nL_ld_h1_ret:")
    A("s_cmp_eq_u32 s51, s81\ns_cbranch_scc1 L_ld_h4\nL_ld_h4_ret:")
    A("s_cmp_eq_u32 s51, s82\ns_cbranch_scc1 L_ld_h2w\nL_ld_h2w_ret:")
    A("s_cmp_lt_u32 s51, s55\ns_cbranch_scc1 L_ld_w25")
    A("s_cmp_eq_u32 s83, 0\ns_cbranch_scc1 L_ld_w8")
    A("s_cmp_eq_u32 s51, 6\ns_cbranch_scc1 L_ld_wW\ns_cmp_eq_u32 s51, 5\ns_cbranch_scc1 L_ld_wW")
    A("s_cmp_eq_u32 s51, 3\ns_cbranch_scc1 L_ld_w9\ns_cmp_eq_u32 s51, 2\ns_cbranch_scc1 L_ld_w9")
    A("L_ld_w8:\ns_waitcnt vmcnt(8)\ns_branch L_ld_wd")
    A("L_ld_wW:\ns_cmp_ge_u32 s59, 54\ns_cbranch_scc1 L_ld_w8\ns_waitcnt vmcnt(13)\ns_branch L_ld_wd\nL_ld_w9:\ns_waitcnt vmcnt(9)\ns_branch L_ld_wd")
    A("L_ld_w25:\ns_waitcnt vmcnt(17)\nL_ld_wd:")
    stamp(A)
    A("s_barrier")
    stamp(A)
    A("s_sub_u32 s51, s51, 1\ns_cmp_lg_u32 s51, 0\ns_cbranch_scc1 L_ld_loop")
    A("s_waitcnt vmcnt(0)")
    if not opt("WLATE", 1):
        A(f"s_cmp_eq_u32 s{S_J}, 1\ns_cbranch_scc0 L_ld_no1")
        spin(A, "L_ld_spw", 48, 11, 32, xcc=True)
        A("L_ld_no1:")
    A(f"s_cmp_eq_u32 s{S_J}, 0\ns_cbranch_scc0 L_ld_nored")
    if opt("REDPRIO", 1): A("s_setprio 2")
    for b_ in range(1, 8):
        for k in range(4): A(f"v_add_f32 v{16+k}, v{16+k}, v{16+4*b_+k}")
    for k in range(4): A(f"v_mov_b32 v{20+k}, v{16+k}")
    A("s_nop 1")
    for k in range(4): A(f"v_permlane32_swap_b32 v{16+k}, v{20+k}")
    A("s_nop 0")
    for k in range(4): A(f"v_add_f32 v{16+k}, v{16+k}, v{20+k}")
    A(f"v_add_u32 v13, {LCS}, v13\nds_write_b128 v13, v[16:19]")
    if opt("REDPRIO", 1): A("s_setprio 0")
    A("s_waitcnt lgkmcnt(0)")
    A("L_ld_nored:")
    A("s_barrier")
    stamp(A)
    A("s_barrier")
    A("s_branch L_ld_p2")
    A("L_ld_h1:")
    A(f"s_cmp_eq_u32 s{S_J}, 1\ns_cbranch_scc1 L_ld_h1f")
    A(f"buffer_load_dwordx2 v[14:15], v12, s[32:35], 0 offen {SC}")
    A("s_branch L_ld_h1_ret")
    A("L_ld_h1f:")
    A(f"buffer_load_dwordx2 v[48:49], v11, s[32:35], 0 offen {SC}")
    A("s_branch L_ld_h1_ret")
    A("L_ld_h1w:")
    if opt("NOW"): A("s_branch L_ld_h1w_ret")
    A("s_cmp_ge_u32 s59, 54\ns_cbranch_scc1 L_ld_h1w_ret")
    srd(A, 84, W2, W2_BYTES)
    A(f"s_mul_i32 s50, s59, 40960\ns_mul_i32 s62, s{S_CT}, 160\ns_add_u32 s50, s50, s62")
    A(f"s_mul_i32 s62, s58, 5120\ns_add_u32 s62, s62, {LW}")
    for q in range(5):
        A(f"s_add_u32 m0, s62, {1024*q}\ns_nop 0")
        A(f"buffer_load_dwordx4 v{52+q}, s[84:87], s50 offen lds")
    A("s_branch L_ld_h1w_ret")
    A("L_ld_h2:")
    spin(A, "L_ld_sp", 14, 12, 32, xcc=True)
    A(f"v_and_b32 v50, 16, v1\nv_cmp_eq_u32 s[60:61], 0, v50\nv_cmp_ne_u32 vcc, s{S_XCC}, v15\ns_nop 3\ns_and_b64 vcc, vcc, s[60:61]")
    A(f"s_cmp_eq_u64 vcc, 0\ns_cselect_b32 s62, {1 if opt('LOCALH', 2) and opt('MAP1', 1) else 0}, 0")
    A(f"v_mov_b32 v50, {LCNT + 12}\nv_mov_b32 v51, s62\nds_write_b32 v50, v51")
    A("s_branch L_ld_h2_ret")
    A("L_ld_h4:")
    A(f"s_lshl_b32 s50, s{S_B}, 10\ns_add_u32 s50, s50, {ST_OFF}\ns_mov_b32 m0, {LST}\nv_lshlrev_b32 v13, 4, v1")
    A(f"buffer_load_dwordx4 v13, s[36:39], s50 offen {SC} lds")
    A(f"s_lshl_b32 s50, s{S_F0}, 2\ns_add_u32 s50, s50, {CS_OFF}")
    A("v_and_b32 v13, 31, v1\nv_lshlrev_b32 v13, 4, v13\nv_lshrrev_b32 v14, 5, v1\nv_lshlrev_b32 v14, 13, v14\nv_add_u32 v14, v13, v14")
    for b_ in range(8):
        A(f"buffer_load_dwordx4 v[{16+4*b_}:{19+4*b_}], v14, s[36:39], s50 offen {SC}")
        if b_ < 7: A("s_add_u32 s50, s50, 16384")
    A("s_branch L_ld_h4_ret")
    A("L_ld_h2w:")
    A("v_lshlrev_b32 v22, 4, v1")
    if opt("NOW"): A("s_branch L_ld_h2w_ret")
    A("s_cmp_ge_u32 s59, 54\ns_cbranch_scc1 L_ld_h2w_ret")
    for n in range(5):
        A(f"ds_read_b64_tr_b16 v[{24+4*n}:{25+4*n}], v57 offset:{32*n}")
        A(f"ds_read_b64_tr_b16 v[{26+4*n}:{27+4*n}], v57 offset:{32*n+1280}")
    A(f"s_mul_i32 s50, s{S_CT}, 54\ns_add_u32 s50, s50, s59\ns_mul_i32 s50, s50, 5120\ns_add_u32 s50, s50, {W2F_OFF}")
    A("v_add_u32 v23, 4096, v22\ns_waitcnt lgkmcnt(0)")
    for n in range(4):
        A(f"buffer_store_dwordx4 v[{24+4*n}:{27+4*n}], v22, s[32:35], s50 offen offset:{1024*n} {SC}")
    A(f"buffer_store_dwordx4 v[40:43], v23, s[32:35], s50 offen {SC}")
    A("s_branch L_ld_h2w_ret")
    A("L_ld_h3:")
    store_flags(A, 58, 1, 32, 64, xcc=True)
    A("s_branch L_ld_h3_ret")
def loader_p2(A):
    A("L_ld_p2:")
    if opt("PRIOL1"): A("s_setprio 0")
    stamp(A, 3)
    if opt("P1ONLY"):
        stamp_flush(A, 0, WS, 9)
        A("s_endpgm")
    if opt("WLATE", 1):
        A(f"v_mov_b32 v16, {LCNT + 20}")
        A(f"s_cmp_eq_u32 s{S_J}, 1\ns_cbranch_scc0 L_ld_ww")
        spin(A, "L_ld_spw", 48, 11, 32, xcc=True)
        A("v_mov_b32 v17, 1\nds_write_b32 v16, v17\ns_waitcnt lgkmcnt(0)\ns_branch L_ld_wgo")
        A("L_ld_ww:\nds_read_b32 v17, v16\ns_waitcnt lgkmcnt(0)\ns_nop 0\nv_readfirstlane_b32 s50, v17\ns_nop 3\ns_cmp_eq_u32 s50, 1\ns_cbranch_scc1 L_ld_wgo")
        A(f"s_sub_u32 s{S_SPIN}, s{S_SPIN}, 1\ns_cmp_eq_u32 s{S_SPIN}, 0\ns_cbranch_scc0 L_ld_ww")
        A("L_ld_wgo:")
    p2(A)

def p2(A):
    J = S_J
    HSC = "" if opt("HPLAIN") else SC
    WSC = "" if opt("WPLAIN") else SC
    if opt("W2NT"): WSC += " nt"
    ACC = 16
    SET = [96, 132, 168]
    XR = 204
    VP = 214
    acc = lambda nt, a: ACC + 4 * (4 * nt + a)
    srd(A, 24, WS, WS_USED)
    A("v_lshlrev_b32 v2, 4, v1\nv_add_u32 v3, 4096, v2")
    MXLAST = opt("MXLAST", 1)
    if MXLAST:
        A(f"s_add_u32 s44, s{J}, 12\ns_mov_b32 s45, s44")
    else:
        A(f"s_mov_b32 s44, s{J}\ns_mov_b32 s45, s44")
    A(f"s_mul_i32 s49, s{S_CT}, {54*5120}\ns_add_u32 s49, s49, {W2F_OFF}")
    def adv(r):
        A(f"s_add_u32 s{r}, s{r}, 4\ns_cmp_ge_u32 s{r}, 54\ns_cselect_b32 s{r}, s{J}, s{r}")
    def loadB(si):
        b = SET[si]
        A("s_mul_i32 s50, s44, 5120\ns_add_u32 s50, s50, s49")
        for n in range(4):
            A(f"buffer_load_dwordx4 v[{b+4*n}:{b+4*n+3}], v2, s[24:27], s50 offen offset:{1024*n} {WSC}")
        A(f"buffer_load_dwordx4 v[{b+16}:{b+19}], v3, s[24:27], s50 offen {WSC}")
        adv(44)
    NB0 = opt("NB0", 3)
    for si in range(NB0): loadB(si)
    A(f"s_lshr_b32 s50, s{S_T0}, 1\ns_lshl_b32 s50, s50, 7\ns_add_u32 s50, s50, {FH_OFF}")
    if MXLAST:
        A("v_min_u32 v14, 10, v1\nv_add_u32 v14, 5, v14\nv_lshlrev_b32 v14, 3, v14\nv_add_u32 v15, s50, v14")
    else:
        A("v_and_b32 v14, 15, v1\nv_lshlrev_b32 v14, 3, v14\nv_add_u32 v15, s50, v14")
    A(f"s_cmp_eq_u32 s{J}, 0\ns_cbranch_scc0 L_p2_np0")
    A(f"buffer_load_dwordx2 v[{VP}:{VP+1}], v15, s[24:27], 0 offen {SC}")
    A("L_p2_np0:")
    srd(A, 28, WS, 4 * HF_TILE)
    A(f"s_mul_i32 s50, s{S_T0}, {4*HF_TILE}")
    if HF_OFF: A(f"s_add_u32 s50, s50, {HF_OFF}")
    A("s_add_u32 s28, s28, s50\ns_addc_u32 s29, s29, 0")
    srd(A, 32, X_, X_BYTES)
    srd(A, 40, OUT, X_BYTES)
    for a_ in range(4):
        A(f"s_add_u32 s50, s{J}, {a_}\ns_and_b32 s50, s50, 3\ns_mul_i32 s50, s50, {HF_TILE}\nv_add_u32 v{4+a_}, s50, v2")
    RSTR = 336
    A(f"s_lshl_b32 s50, s{J}, 6\nv_add_u32 v8, s50, v1")
    A(f"s_mov_b32 s50, 3277\ns_mul_i32 s38, s{S_T0}, 1280\ns_mul_i32 s39, s{S_CT}, 160\ns_add_u32 s38, s38, s39")
    for n in range(5):
        A(f"v_add_u32 v9, {256*n}, v8\nv_mul_lo_u32 v10, s50, v9\nv_lshrrev_b32 v10, 16, v10")
        A("v_mul_u32_u24 v11, 20, v10\nv_sub_u32 v11, v9, v11")
        A(f"v_mul_u32_u24 v12, {RSTR}, v10\nv_lshlrev_b32 v13, 4, v11\nv_add_u32 v{220+n}, v12, v13")
        A("v_lshrrev_b32 v12, 5, v10\nv_mul_u32_u24 v12, 40960, v12\nv_and_b32 v10, 31, v10\nv_mul_u32_u24 v10, 81920, v10")
        A(f"v_lshlrev_b32 v11, 3, v11\nv_add3_u32 v{225+n}, v10, v12, v11")
    A(f"v_and_b32 v9, 15, v1\nv_mul_u32_u24 v9, {RSTR}, v9\nv_lshrrev_b32 v10, 4, v1\nv_lshlrev_b32 v10, 4, v10\nv_add_u32 v230, v9, v10")
    FFR = 236
    A(f"s_add_u32 s50, s{J}, 2\ns_and_b32 s50, s50, 3\ns_lshl_b32 s50, s50, 3\nv_lshrrev_b32 v9, 4, v1\nv_lshlrev_b32 v9, 1, v9\nv_add_u32 v9, s50, v9")
    A(f"s_mov_b32 s51, 0x3a000000\ns_mov_b32 s52, 0xba000000\ns_cmp_lt_u32 s{S_CT}, 4\ns_cselect_b32 s52, s51, s52")
    A("v_and_b32 v10, 15, v1\nv_lshlrev_b32 v10, 6, v10")
    for a_ in range(4):
        A(f"s_add_u32 s50, s{J}, {a_}\ns_and_b32 s50, s50, 3\ns_lshr_b32 s53, s50, 1\ns_lshl_b32 s53, s53, 5\ns_and_b32 s50, s50, 1\ns_lshl_b32 s50, s50, 10")
        A(f"s_add_u32 s50, s50, s53\ns_add_u32 s50, s50, s{S_T0}\nv_add_u32 v11, s50, v10")
        for k, ds in enumerate([0, 1, 32, 33]):
            A(f"v_add_u32 v12, {ds}, v9\nv_mul_u32_u24 v12, v11, v12\nv_and_b32 v12, 0x7ff, v12\nv_cvt_f32_u32 v12, v12")
            A(f"v_mul_f32 v13, s51, v12\nv_mul_f32 v12, s52, v12\nv_cos_f32 v13, v13\nv_sin_f32 v12, v12\ns_nop 0\nv_cvt_pk_bf16_f32 v{FFR+4*a_+k}, v13, v12")
    def loadA(si):
        b = SET[si] + 20
        A("s_lshl_b32 s50, s45, 10")
        for a_ in range(4):
            A(f"buffer_load_dwordx4 v[{b+4*a_}:{b+4*a_+3}], v{4+a_}, s[28:31], s50 offen {HSC}")
        adv(45)
    def loadT(si):
        b = SET[si]
        A("s_mov_b32 s50, s46")
        for n in range(5):
            A(f"buffer_load_dwordx4 v[{b+4*n}:{b+4*n+3}], v10, s[24:27], s50 offen {SC}")
            if n < 4: A("s_add_u32 s50, s50, s47")
    def mfmas(si):
        b = SET[si]
        for a_ in range(4):
            for nt in range(5):
                c = acc(nt, a_)
                if not opt("NOCOMP2"):
                    A(f"{MFMA16} v[{c}:{c+3}], v[{b+4*nt}:{b+4*nt+3}], v[{b+20+4*a_}:{b+23+4*a_}], v[{c}:{c+3}]")
    def last_step(si):
        b = SET[si]
        def grp(a_):
            for nt in range(5):
                c = acc(nt, a_)
                if not opt("NOCOMP2"):
                    A(f"{MFMA16} v[{c}:{c+3}], v[{b+4*nt}:{b+4*nt+3}], v[{FFR+4*a_}:{FFR+4*a_+3}], v[{c}:{c+3}]")
        def addr(a_):
            A(f"s_add_u32 s50, s{J}, {a_}\ns_and_b32 s50, s50, 3\ns_mul_i32 s50, s50, {16*336}\ns_mul_i32 s51, s{J}, {64*336}\ns_add_u32 s50, s50, s51\nv_add_u32 v{232+a_}, s50, v230")
        def wr(a_):
            for nt in range(5):
                c = acc(nt, a_)
                A(f"ds_write_b128 v{232+a_}, v[{c}:{c+3}] offset:{nt*64}")
        grp(0); addr(0); addr(1); grp(1); addr(2); wr(0); grp(2); addr(3); wr(1); grp(3); A("s_nop 3"); wr(2); A("s_nop 3"); wr(3)
    def xorA(si):
        b = SET[si] + 20
        for k in range(16): A(f"v_xor_b32 v{b+k}, s48, v{b+k}")
        A("s_nop 0")
    for i in range(80): A(f"v_mov_b32 v{ACC+i}, 0")
    A(f"v_lshrrev_b32 v10, 4, v1\nv_mul_u32_u24 v10, {TF_ROW}, v10\nv_and_b32 v11, 15, v1")
    A(f"s_mul_i32 s50, s{S_CT}, 80\nv_add_u32 v12, s50, v11\nv_sub_u32 v13, 576, v12")
    A(f"s_cmp_lt_u32 s{S_CT}, 4\ns_cselect_b64 s[60:61], -1, 0\nv_cndmask_b32 v12, v13, v12, s[60:61]")
    A("v_lshlrev_b32 v12, 4, v12\nv_add_u32 v10, v10, v12")
    A(f"s_sub_u32 s46, 32, s{S_T0}\ns_and_b32 s46, s46, 31\ns_cmp_lt_u32 s{S_CT}, 4\ns_cselect_b32 s46, s{S_T0}, s46")
    A(f"s_mul_i32 s46, s46, {TF_T0}\ns_add_u32 s46, s46, {TF_OFF}")
    A(f"s_mov_b32 s47, 256\ns_mov_b32 s50, -256\ns_cmp_lt_u32 s{S_CT}, 4\ns_cselect_b32 s47, s47, s50\ns_cselect_b32 s50, 0, 1024\ns_cselect_b32 s48, 0x80000000, 0")
    A("s_add_u32 s46, s46, s50")
    A(f"s_add_u32 s50, s{J}, 2\ns_and_b32 s50, s50, 3\ns_mul_i32 s50, s50, {4*TF_ROW}\ns_add_u32 s46, s46, s50")
    A(f"s_lshl_b32 s50, s{S_CT}, 10\ns_add_u32 s50, s50, {FT_OFF}\nv_lshlrev_b32 v12, 3, v1\nv_add_u32 v12, s50, v12")
    A("v_and_b32 v13, 15, v1\nv_lshlrev_b32 v13, 3, v13\nv_add_u32 v13, s50, v13\nv_add_u32 v13, 512, v13")
    A(f"s_lshr_b32 s50, s{S_T0}, 1\ns_lshl_b32 s50, s50, 7\ns_add_u32 s50, s50, {FH_OFF}\nv_min_u32 v9, 4, v1\nv_lshlrev_b32 v9, 3, v9\nv_add_u32 v9, s50, v9")
    A(f"s_cmp_eq_u32 s{J}, 0\ns_cbranch_scc0 L_p2_lw")
    A("s_waitcnt vmcnt(0)")
    if opt("SPINSTAMP") == "L_p2_sp1": stamp(A)
    spin(A, "L_p2_sp1", VP, 15, 24, xcc=True)
    A(f"v_mov_b32 v14, {LCNT + 16}\nv_mov_b32 v15, 1\nds_write_b32 v14, v15\ns_waitcnt lgkmcnt(0)")
    A("s_branch L_p2_go")
    A("L_p2_lw:")
    if opt("P2ONLY"): A("s_branch L_p2_go")
    A(f"v_mov_b32 v14, {LCNT + 16}")
    A("L_p2_lw1:\nds_read_b32 v15, v14\ns_waitcnt lgkmcnt(0)\ns_nop 0\nv_readfirstlane_b32 s50, v15\ns_nop 3\ns_cmp_eq_u32 s50, 1\ns_cbranch_scc1 L_p2_go")
    A(f"s_sleep 1\ns_sub_u32 s{S_SPIN}, s{S_SPIN}, 1\ns_cmp_eq_u32 s{S_SPIN}, 0\ns_cbranch_scc0 L_p2_lw1")
    A("L_p2_go:")
    stamp(A, 5)
    for si in range(NB0): loadA(si)
    for si in range(NB0, 3):
        loadB(si); loadA(si)
    def loadX():
        for n in range(5):
            A(f"buffer_load_dwordx2 v[{XR+2*n}:{XR+2*n+1}], v{225+n}, s[32:35], s38 offen")
    XLATE = opt("XLATE", 1)
    if not XLATE: loadX()
    def step(si, vm, pre):
        A(f"s_waitcnt vmcnt({vm})")
        mfmas(si)
        pre()
    reg = lambda si: (lambda: (loadB(si), loadA(si)))
    order = [(si, 4) for si in range(NB0)] + [(si, 9) for si in range(NB0, 3)] + ([] if XLATE else [(-1, 5)])
    for st_ in range(3):
        idx = max(i for i, (si, n) in enumerate(order) if si == st_)
        younger = sum(n for (si, n) in order[idx+1:]) + 9 * st_
        step(st_, younger, reg(st_))
        if opt("STEPSTAMP"): stamp(A)
    stamp(A)
    if MXLAST: A(f"buffer_load_dwordx2 v[{VP+4}:{VP+5}], v9, s[24:27], 0 offen {SC}")
    A("s_mov_b32 s51, 2")
    A("L_p2_loop:")
    for si in range(3):
        step(si, 18, reg(si))
        if opt("STEPSTAMP"): stamp(A)
    A("s_cmp_eq_u32 s51, 2\ns_cbranch_scc0 L_p2_nt")
    if MXLAST and not opt("NOMCHK"): spin(A, "L_p2_spm", VP + 4, 9, 24, xcc=True)
    if not opt("TLATE", 1):
        A(f"buffer_load_dwordx2 v[{VP}:{VP+1}], v12, s[24:27], 0 offen {SC}\nbuffer_load_dwordx2 v[{VP+2}:{VP+3}], v13, s[24:27], 0 offen {SC}")
    A("L_p2_nt:")
    A("s_sub_u32 s51, s51, 1\ns_cmp_lg_u32 s51, 0\ns_cbranch_scc1 L_p2_loop")
    stamp(A)
    TLATE = opt("TLATE", 1)
    if TLATE:
        A(f"buffer_load_dwordx2 v[{VP}:{VP+1}], v12, s[24:27], 0 offen {SC}\nbuffer_load_dwordx2 v[{VP+2}:{VP+3}], v13, s[24:27], 0 offen {SC}")
    step(0, 18, reg(0))
    def tcheck(tag, epoch):
        if not opt("NOTCHK"):
            spin(A, tag + "2", VP, 12, 24)
            spin(A, tag + "3", VP + 2, 13, 24)
        if epoch:
            A(f"s_cmp_eq_u32 s2, 0\ns_cbranch_scc0 {tag}_noep\ns_cmp_eq_u32 s{J}, 0\ns_cbranch_scc0 {tag}_noep")
            A(f"v_mov_b32 v14, s{S_E}\nv_mov_b32 v15, {EP_OFF}\ns_mov_b64 exec, 1\nbuffer_store_dword v14, v15, s[24:27], 0 offen {SC}\ns_mov_b64 exec, -1")
            A(f"{tag}_noep:")
    if not TLATE: tcheck("L_p2_sp", True)
    stamp(A)
    A(f"s_cmp_lt_u32 s{J}, 2\ns_cbranch_scc0 L_p2_hi")
    step(1, 18, reg(1))
    step(2, 18, lambda: (tcheck("L_p2_lo", True) if TLATE else None, loadT(2), loadX() if XLATE else None))
    xq = 5 if XLATE else 0
    step(0, 14 + xq, lambda: None)
    step(1, 5 + xq, lambda: None)
    A(f"s_waitcnt vmcnt({xq})"); last_step(2)
    A("s_branch L_p2_red")
    A("L_p2_hi:")
    step(1, 18, lambda: ((A("s_waitcnt vmcnt(9)"), tcheck("L_p2_hi", False)) if TLATE else None, loadT(1), loadX() if XLATE else None))
    step(2, 14 + xq, lambda: None)
    step(0, 5 + xq, lambda: None)
    A(f"s_waitcnt vmcnt({xq})"); last_step(1)
    A("L_p2_red:")
    stamp(A)
    A("s_waitcnt lgkmcnt(0)\ns_barrier")
    R0 = 96
    def rd(n):
        for w in range(4):
            r = R0 + 16 * n + 4 * w
            A(f"ds_read_b128 v[{r}:{r+3}], v{220+n} offset:{w*64*336}")
    rd(0); rd(1); rd(2)
    OSC = SC if opt("OUTSC") else ""
    for n in range(5):
        r = R0 + 16 * n; x = XR + 2 * n
        if n == 0: A("s_waitcnt vmcnt(0) lgkmcnt(8)")
        elif n == 1: A("s_waitcnt lgkmcnt(8)")
        elif n == 2: A("s_waitcnt lgkmcnt(8)")
        elif n == 3: A("s_waitcnt lgkmcnt(4)")
        else: A("s_waitcnt lgkmcnt(0)")
        A(f"v_pk_add_f32 v[{r}:{r+1}], v[{r}:{r+1}], v[{r+4}:{r+5}]\nv_pk_add_f32 v[{r+2}:{r+3}], v[{r+2}:{r+3}], v[{r+6}:{r+7}]")
        A(f"v_pk_add_f32 v[{r+8}:{r+9}], v[{r+8}:{r+9}], v[{r+12}:{r+13}]\nv_pk_add_f32 v[{r+10}:{r+11}], v[{r+10}:{r+11}], v[{r+14}:{r+15}]")
        if n + 3 < 5: pass
        A(f"v_lshlrev_b32 v{r+4}, 16, v{x}\nv_and_b32 v{r+5}, 0xffff0000, v{x}\nv_lshlrev_b32 v{r+6}, 16, v{x+1}\nv_and_b32 v{r+7}, 0xffff0000, v{x+1}")
        A(f"v_pk_add_f32 v[{r}:{r+1}], v[{r}:{r+1}], v[{r+8}:{r+9}]\nv_pk_add_f32 v[{r+2}:{r+3}], v[{r+2}:{r+3}], v[{r+10}:{r+11}]")
        A(f"v_pk_add_f32 v[{r}:{r+1}], v[{r}:{r+1}], v[{r+4}:{r+5}]\nv_pk_add_f32 v[{r+2}:{r+3}], v[{r+2}:{r+3}], v[{r+6}:{r+7}]")
        A(f"v_cvt_pk_bf16_f32 v{x}, v{r}, v{r+1}\nv_cvt_pk_bf16_f32 v{x+1}, v{r+2}, v{r+3}")
        A(f"buffer_store_dwordx2 v[{x}:{x+1}], v{225+n}, s[40:43], s38 offen {OSC}")
        if n == 0: rd(3)
        if n == 1: rd(4)
    stamp(A)
    if opt("DBGT"):
        A(f"s_waitcnt vmcnt(0)\ns_memrealtime s[90:91]\ns_waitcnt lgkmcnt(0)")
        A(f"s_cmp_eq_u32 s{S_J}, 1\ns_cbranch_scc0 L_dbg_d\ns_cmp_lt_u32 s2, 8\ns_cbranch_scc0 L_dbg_d")
        srd(A, 92, DBG, 256)
        A("s_lshl_b32 s96, s2, 3\nv_mov_b32 v4, s88\nv_mov_b32 v5, s90\nv_mov_b32 v6, 0\ns_mov_b64 exec, 1\nbuffer_store_dwordx2 v[4:5], v6, s[92:95], s96 offen\ns_waitcnt vmcnt(0)")
        A("L_dbg_d:")
    if opt("CLK") and asmlib.PROFILE:
        A("s_memtime s[90:91]\ns_waitcnt lgkmcnt(0)\ns_sub_u32 s90, s90, s88\ns_mov_b32 m0, 62\nv_writelane_b32 v0, s90, m0")
    stamp_flush(A, 0, WS, 9)
    A("s_endpgm")

def gen(A, name):
    global KNAME
    KNAME = name
    kernel_head(A, name)
    entry(A)
    if opt("P2ONLY"):
        A(f"s_mov_b32 s{S_SPIN}, 1\ns_cmp_lt_u32 s3, 4\ns_cbranch_scc1 L_end\ns_sub_u32 s{S_J}, s3, 4\ns_waitcnt lgkmcnt(0)\ns_branch L_ld_p2")
    lay = opt("LAYOUT", 0)
    if lay == 0:
        A("s_cmp_ge_u32 s3, 4\ns_cbranch_scc1 L_loader")
        jobs_issue(A)
        A(f"s_cmp_lt_u32 s{S_C}, 5\ns_cbranch_scc1 L_mx")
        p1_hh(A); p1_mx(A); loader(A); loader_p2(A)
    elif lay == 1:
        A("s_cmp_lt_u32 s3, 4\ns_cbranch_scc1 L_comp")
        loader(A)
        A("L_comp:")
        jobs_issue(A)
        A(f"s_cmp_lt_u32 s{S_C}, 5\ns_cbranch_scc1 L_mx")
        p1_hh(A); p1_mx(A); loader_p2(A)
    elif lay == 2:
        A("s_cmp_ge_u32 s3, 4\ns_cbranch_scc1 L_loader")
        jobs_issue(A)
        A(f"s_cmp_lt_u32 s{S_C}, 5\ns_cbranch_scc1 L_mx\ns_branch L_hh")
        loader(A)
        p1_hh(A); p1_mx(A); loader_p2(A)
    A("L_end:\ns_endpgm\nL_code_end:")
```

```python
import sys
from asmlib import *
import asmlib
from layout import *
KN = "parallel_sum__spectral_fnet__dense_activation_relu__prompt"
HEADER = open(f"cdna_kernels/{KN}.s.ref").read().split("; Override launch")[0]
DESC = """;
;  * Phase 1 (waves 0-3 MFMA, waves 4-7 LDS-DMA loaders): h = relu(LN(x) w1) and T = DFT32(hidden DFT), 128 x 128 tiles.
"""
def build():
    import fused
    A = Asm()
    name = KN + "_kernel"
    hdr = HEADER + DESC + f"; @launch grid=(256,1,1) block=(512,1,1) lds={fused.LDS_TOTAL}\n"
    A('.amdgcn_target "amdgcn-amd-amdhsa--gfx950"\n.text')
    fused.gen(A, name)
    A('.section .rodata,"a"\n.p2align 6')
    A(kernel_desc(name, 256))
    return hdr + A.text()
if __name__ == "__main__":
    if "--prof" in sys.argv:
        sys.argv.remove("--prof"); asmlib.PROFILE = True
    if "--light" in sys.argv:
        sys.argv.remove("--light"); asmlib.PROFILE = True; asmlib.LIGHT = True
    for a in list(sys.argv):
        if a.startswith("-D"):
            sys.argv.remove(a); k, _, val = a[2:].partition("="); asmlib.OPT[k] = (int(val) if val.lstrip("-").isdigit() else val) if val else 1
    out = sys.argv[1] if len(sys.argv) > 1 else f"cdna_kernels/{KN}.s"
    open(out, "w").write(build())
    print("wrote", out)
```

```python
from asmlib import *
import asmlib
from layout import *

MFMA32 = "v_mfma_f32_32x32x16_bf16"
MFMA16 = "v_mfma_f32_16x16x32_bf16"
RING = 32768; NS = 4
SLOT = 20480; NS2 = 6
LX = NS2 * SLOT
LW = 132 * 1024
LST = 152 * 1024
LCS = LST + 1024
LCNT = LST + 2048
LDS_TOTAL = LCNT + 64
X_, SRE, SIM, HRE, HIM, WS = 4, 6, 8, 10, 12, 16
W1, W2, OUT, DBG = 64, 66, 68, 70
S_B, S_C, S_F0, S_J = 18, 19, 20, 21
S_T0, S_CT = 72, 73
S_SPIN = 74
SC = "sc1"
SPIN_MAX = 200000
CPW = 3

MAGIC = 0x5A3C96E1
S_E, S_EM = 75, 76
S_XCC = 77
S_LOCAL = 78

def spin(A, name, vp, vaddr, srdp, xcc=False):
    A(f"{name}:")
    if xcc:
        A(f"v_xor_b32 v{vp+1}, s{S_EM}, v{vp+1}\nv_cmp_ne_u32 vcc, s{S_E}, v{vp}\nv_cmp_lt_u32 s[60:61], 15, v{vp+1}\ns_nop 3\ns_or_b64 vcc, vcc, s[60:61]")
    else:
        A(f"v_cmp_ne_u32 vcc, s{S_E}, v{vp}\nv_cmp_ne_u32 s[60:61], s{S_EM}, v{vp+1}\ns_nop 3\ns_or_b64 vcc, vcc, s[60:61]")
    A(f"s_cbranch_vccz {name}_ok")
    if opt("P2ONLY"): A(f"s_branch {name}_ok")
    A(f"s_sub_u32 s{S_SPIN}, s{S_SPIN}, 1\ns_cmp_eq_u32 s{S_SPIN}, 0\ns_cbranch_scc1 {name}_ok")
    A(f"s_sleep {opt('SLEEP', 4)}")
    A(f"buffer_load_dwordx2 v[{vp}:{vp+1}], v{vaddr}, s[{srdp}:{srdp+3}], 0 offen {SC}\ns_waitcnt vmcnt(0)")
    if opt("SPINSTAMP") == name: stamp(A)
    A(f"s_branch {name}\n{name}_ok:")

def store_flags(A, vaddr, nlanes, srdp, vt, xcc=False, local=None):
    if xcc:
        A(f"s_xor_b32 s62, s{S_EM}, s{S_XCC}\nv_mov_b32 v{vt}, s{S_E}\nv_mov_b32 v{vt+1}, s62\ns_mov_b64 exec, {(1 << nlanes) - 1}")
    else:
        A(f"v_mov_b32 v{vt}, s{S_E}\nv_mov_b32 v{vt+1}, s{S_EM}\ns_mov_b64 exec, {(1 << nlanes) - 1}")
    if local:
        A(f"s_cmp_eq_u32 s{S_LOCAL}, 1\ns_cbranch_scc1 {local}_fp")
    A(f"buffer_store_dwordx2 v[{vt}:{vt+1}], v{vaddr}, s[{srdp}:{srdp+3}], 0 offen {SC}")
    if local:
        A(f"s_branch {local}_fd\n{local}_fp:")
        A(f"buffer_store_dwordx2 v[{vt}:{vt+1}], v{vaddr}, s[{srdp}:{srdp+3}], 0 offen")
        A(f"{local}_fd:")
    A("s_mov_b64 exec, -1")

def flag_addr_h(A, v):
    A(f"s_lshl_b32 s62, s{S_B}, 4\ns_add_u32 s62, s62, s{S_C}\ns_lshl_b32 s62, s62, 3\ns_add_u32 s62, s62, {FH_OFF}\nv_mov_b32 v{v}, s62")
def flag_addr_t(A, v):
    A(f"s_lshl_b32 s62, s{S_C}, 4\ns_add_u32 s62, s62, s{S_B}\ns_lshl_b32 s62, s62, 3\ns_add_u32 s62, s62, {FT_OFF}")
    A(f"v_lshlrev_b32 v{v}, 10, v1\nv_add_u32 v{v}, s62, v{v}")
def flag_addr_early(A, v):
    A(f"s_lshl_b32 s62, s{S_B}, 4\ns_add_u32 s62, s62, s{S_C}\ns_lshl_b32 s62, s62, 3\ns_add_u32 s58, s62, {FR1_OFF}")
    A(f"s_lshl_b32 s62, s{S_C}, 4\ns_add_u32 s62, s62, s{S_B}\ns_lshl_b32 s62, s62, 3\ns_add_u32 s62, s62, {FC1_OFF}")
    A(f"s_cmp_eq_u32 s3, 1\ns_cselect_b32 s58, s62, s58\nv_mov_b32 v{v}, s58")

def epoch_ready(A):
    A("s_waitcnt lgkmcnt(0)")
    A(f"s_add_u32 s{S_E}, s{S_E}, 1\ns_xor_b32 s{S_EM}, s{S_E}, {MAGIC}")
    srd(A, 48, WS, WS_USED)

def lds_arrive(A, word, vt, sdst):
    A(f"v_mov_b32 v{vt}, {LCNT + 4*word}\nv_mov_b32 v{vt+1}, 1\ns_mov_b64 exec, 1")
    A(f"ds_add_rtn_u32 v{vt+1}, v{vt}, v{vt+1}\ns_waitcnt lgkmcnt(0)\ns_mov_b64 exec, -1\ns_nop 0")
    A(f"v_readfirstlane_b32 s{sdst}, v{vt+1}")
    A("s_nop 3")

def code_prefetch(A, tag, mode):
    A(f"s_getpc_b64 s[50:51]\nJ_pc{tag}:")
    A(f"s_sub_u32 s50, s50, J_pc{tag}-{KNAME}\ns_subb_u32 s51, s51, 0")
    A(f"s_mov_b32 s52, ((L_code_end-{KNAME})>>7)-1")
    def lines(first_expr, n, dst):
        A(f"v_add_u32 v22, {first_expr}, v1\nv_min_u32 v22, s52, v22\nv_lshlrev_b32 v22, 7, v22")
        A("v_mov_b32 v23, s51\nv_add_co_u32 v22, vcc, s50, v22\ns_nop 1\nv_addc_co_u32 v23, vcc, 0, v23, vcc")
        A(f"global_load_dword v{dst}, v[22:23], off")
    if mode == 0:
        A("s_lshr_b32 s53, s2, 3\ns_mul_i32 s53, s53, 6\ns_mov_b64 exec, 63")
        lines("s53", 1, 127)
        A("s_mov_b64 exec, -1")
    elif mode == 4:
        A("s_lshr_b32 s53, s2, 3\ns_and_b32 s53, s53, 3\ns_mul_i32 s53, s53, 52\ns_mov_b32 exec_hi, 0xfffff")
        lines("s53", 1, 127)
        A("s_mov_b64 exec, -1")
    elif mode == 6:
        A("s_lshr_b32 s53, s2, 3\ns_and_b32 s53, s53, 7\ns_mul_i32 s53, s53, 26\ns_mov_b32 exec_hi, 0\ns_mov_b32 exec_lo, 0x3ffffff")
        lines("s53", 1, 127)
        A("s_mov_b64 exec, -1")
    elif mode == 5:
        A("s_lshr_b32 s53, s2, 3\ns_and_b32 s53, s53, 1\ns_mul_i32 s53, s53, 104")
        lines("s53", 1, 126)
        A("s_add_u32 s53, s53, 64\ns_mov_b32 exec_hi, 0xff")
        lines("s53", 1, 127)
        A("s_mov_b64 exec, -1")
    elif mode in (1, 2):
        for n in range(4): lines(64 * n, 1, (124 if mode == 1 else 24) + n)
    elif mode == 3 and tag == "a":
        lines(0, 1, 125)
        A(f"s_mov_b32 s53, (L_loader-{KNAME})>>7\ns_mov_b64 exec, 0xffffff")
        lines("s53", 1, 126)
        A("s_mov_b64 exec, -1")
    else:
        lines(64, 1, 24); lines(128, 1, 25)

def entry(A):
    A("s_cmp_ge_u32 s2, 256\ns_cbranch_scc1 L_end")
    A(f"s_load_dwordx4 s[4:7], s[0:1], {KA_X}")
    A(f"s_load_dwordx4 s[8:11], s[0:1], {KA_SIM}")
    A(f"s_load_dwordx2 s[12:13], s[0:1], {KA_HIM}")
    A(f"s_load_dwordx4 s[64:67], s[0:1], {KA_W1}")
    A(f"s_load_dwordx4 s[68:71], s[0:1], {KA_OUT}")
    A(f"s_load_dwordx2 s[16:17], s[0:1], {KA_WS}")
    A("v_lshrrev_b32 v2, 6, v0\nv_and_b32 v1, 63, v0\ns_nop 0\nv_readfirstlane_b32 s3, v2")
    if opt("CODEPF", 1) and opt("CPMODE", 1) in (0, 1, 3, 4, 5, 6):
        A(f"s_nop 3\ns_cmp_eq_u32 s3, {CPW}\ns_cbranch_scc0 L_nocp")
        code_prefetch(A, "a", opt("CPMODE", 1))
        A("L_nocp:")
    A("s_and_b32 s24, s2, 7\ns_lshr_b32 s25, s2, 3\ns_lshr_b32 s27, s25, 3\ns_and_b32 s28, s25, 7")
    if opt("MAP1", 1):
        A(f"s_lshl_b32 s26, s24, 1\ns_lshr_b32 s29, s25, 4\ns_add_u32 s{S_B}, s26, s29\ns_and_b32 s{S_C}, s25, 15")
    else:
        A(f"s_lshr_b32 s26, s24, 1\ns_lshl_b32 s26, s26, 2\ns_add_u32 s{S_B}, s26, s27")
        A(f"s_and_b32 s26, s24, 1\ns_lshl_b32 s26, s26, 3\ns_add_u32 s{S_C}, s26, s28")
    A(f"s_lshl_b32 s26, s{S_C}, 6\ns_lshl_b32 s29, s{S_C}, 7\ns_sub_u32 s29, s29, 320")
    A(f"s_cmp_lt_u32 s{S_C}, 5\ns_cselect_b32 s{S_F0}, s26, s29")
    A(f"s_lshl_b32 s24, s24, 2\ns_add_u32 s{S_T0}, s24, s27\ns_mov_b32 s{S_CT}, s28")
    A(f"s_mov_b32 s{S_SPIN}, {SPIN_MAX}")
    A(f"s_getreg_b32 s{S_XCC}, hwreg(HW_REG_XCC_ID)\ns_and_b32 s{S_XCC}, s{S_XCC}, 15")
    if opt("DBGT"): A("s_memrealtime s[88:89]")
    stamp_init(A)
    if opt("T0STAMP"): stamp(A, force=True)
    if opt("P2ONLY"): args_ready(A)

def args_ready(A):
    A("s_waitcnt lgkmcnt(0)")
    if opt("CLK"): A("s_memtime s[88:89]\ns_waitcnt lgkmcnt(0)")
    A(f"s_mov_b32 s62, {EP_OFF}\ns_load_dword s{S_E}, s[{WS}:{WS+1}], s62")
    stamp(A, 0, force=True)

def jobs_issue(A):
    A("s_cmp_eq_u32 s3, 0\ns_cbranch_scc1 J_x_i\ns_cmp_eq_u32 s3, 1\ns_cbranch_scc1 J_c_i")
    args_ready(A)
    srd(A, 36, WS, WS_USED)
    if opt("TLBPF", 1):
        A("s_cmp_eq_u32 s3, 2\ns_cbranch_scc0 J_i_done")
        srd(A, 40, OUT, X_BYTES); srd(A, 44, W2, W2_BYTES)
        A("v_lshlrev_b32 v22, 20, v1")
        A(f"s_mov_b64 exec, {(1 << ((WS_USED >> 20) + 1)) - 1}\nbuffer_load_dword v125, v22, s[36:39], 0 offen {SC}")
        A(f"s_mov_b64 exec, 7\nbuffer_load_dword v126, v22, s[40:43], 0 offen {SC}\nbuffer_load_dword v127, v22, s[44:47], 0 offen\ns_mov_b64 exec, -1")
        if opt("INPF"):
            srd(A, 40, X_, X_BYTES); srd(A, 44, W1, W1_BYTES)
            A("v_lshlrev_b32 v22, 7, v1\ns_mul_i32 s50, s2, 10240\ns_mul_i32 s51, s2, 8704")
            A("buffer_load_dword v124, v22, s[40:43], s50 offen\nbuffer_load_dword v123, v22, s[44:47], s51 offen")
            A("s_add_u32 s50, s50, 8192\ns_add_u32 s51, s51, 8192\ns_mov_b64 exec, 0xffff")
            A("buffer_load_dword v122, v22, s[40:43], s50 offen\ns_mov_b64 exec, 15\nbuffer_load_dword v121, v22, s[44:47], s51 offen\ns_mov_b64 exec, -1")
    A("s_branch J_i_done")
    A("J_x_i:")
    A(f"s_lshr_b32 s48, s{S_C}, 2\ns_and_b32 s49, s{S_C}, 3")
    A(f"s_lshl_b32 s50, s{S_B}, 1\ns_and_b32 s51, s48, 1\ns_add_u32 s50, s50, s51")
    A("s_lshr_b32 s51, s48, 1\ns_lshl_b32 s51, s51, 5\ns_add_u32 s50, s50, s51")
    A("s_lshl_b32 s51, s49, 9\ns_add_u32 s50, s50, s51\ns_mul_i32 s50, s50, 1280")
    A("v_lshrrev_b32 v22, 3, v1\ns_mov_b32 s51, 81920\nv_mul_lo_u32 v22, s51, v22")
    A("v_and_b32 v23, 7, v1\nv_lshlrev_b32 v23, 4, v23\nv_add_u32 v22, v22, v23")
    A(f"v_mov_b32 v20, {LCNT}\nv_mov_b32 v24, 0\nv_mov_b32 v25, 0\nv_mov_b32 v26, 0\nv_mov_b32 v27, 0\nds_write_b128 v20, v[24:27]\nds_write_b128 v20, v[24:27] offset:16")
    args_ready(A)
    srd(A, 24, X_, X_BYTES)
    for i in range(10):
        A(f"buffer_load_dwordx4 v[{32+4*i}:{35+4*i}], v22, s[24:27], s50 offen offset:{128*i}")
    srd(A, 36, WS, WS_USED)
    A("s_branch J_i_done")
    A("J_c_i:")
    A("v_lshrrev_b32 v22, 4, v1\nv_mul_u32_u24 v22, 3456, v22\nv_and_b32 v23, 15, v1\nv_lshlrev_b32 v23, 4, v23\nv_add_u32 v22, v22, v23")
    A(f"s_mul_i32 s50, s{S_B}, {40*3456}\ns_lshl_b32 s51, s{S_F0}, 1\ns_add_u32 s50, s50, s51")
    A(f"s_cmp_eq_u32 s{S_C}, 0\ns_cbranch_scc0 J_c_np")
    A("v_and_b32 v23, 7, v1\nv_lshlrev_b32 v23, 4, v23\nv_bfe_u32 v24, v1, 3, 2\nv_lshlrev_b32 v24, 15, v24\nv_add_u32 v23, v23, v24")
    A(f"v_add_u32 v23, {16384+8192+4096}, v23")
    A("v_mov_b32 v24, 0xbf803f80\nv_mov_b32 v25, 0x3f80bf80\nv_mov_b32 v26, 0xbf803f80\nv_mov_b32 v27, 0x3f80bf80")
    A("ds_write_b128 v23, v[24:27]")
    A("J_c_np:")
    args_ready(A)
    srd(A, 28, W1, W1_BYTES)
    for i in range(10):
        A(f"buffer_load_dwordx4 v[{32+4*i}:{35+4*i}], v22, s[28:31], s50 offen")
        if i < 9: A(f"s_add_u32 s50, s50, {4*3456}")
    srd(A, 36, WS, WS_USED)
    A("J_i_done:")

def dpp_add(A, r, ctrl):
    A(f"v_add_f32_dpp v{r}, v{r}, v{r} {ctrl} row_mask:0xf bank_mask:0xf")

def jobs_finish(A, nG_, tagx):
    nG = tagx
    class _N(str):
        pass
    A("s_cmp_eq_u32 s3, 0\ns_cbranch_scc1 %s\ns_cmp_eq_u32 s3, 1\ns_cbranch_scc1 %s\ns_branch %s" % (f"J_x_{nG}", f"J_c_{nG}", f"J_done_{nG}"))
    A(f"J_x_{nG}:")
    A("v_mov_b32 v22, 0\nv_mov_b32 v23, 0\nv_mov_b32 v24, 0\nv_mov_b32 v25, 0\ns_mov_b32 s52, 0x3f803f80")
    for i in range(10):
        A(f"s_waitcnt vmcnt({9-i+nG_})")
        for k in range(4):
            r = 32 + 4 * i + k
            A(f"v_dot2_f32_bf16 v{22+(k&1)}, v{r}, s52, v{22+(k&1)}")
            A(f"v_dot2_f32_bf16 v{24+(k&1)}, v{r}, v{r}, v{24+(k&1)}")
    A("s_nop 2\nv_add_f32 v22, v22, v23\nv_add_f32 v24, v24, v25\ns_nop 1")
    for ctrl in ["quad_perm:[1,0,3,2]", "quad_perm:[2,3,0,1]", "row_half_mirror"]:
        dpp_add(A, 22, ctrl); dpp_add(A, 24, ctrl); A("s_nop 0")
    A("s_mov_b32 s52, 0x3acccccd\nv_mul_f32 v22, s52, v22\nv_mul_f32 v24, s52, v24")
    A("v_fma_f32 v24, -v22, v22, v24\nv_max_f32 v24, 0, v24\nv_add_f32 v24, 0x3727c5ac, v24\nv_rsq_f32 v23, v24")
    A(f"s_lshl_b32 s52, s{S_B}, 10\ns_lshl_b32 s53, s{S_C}, 5\ns_add_u32 s52, s52, s53\ns_add_u32 s52, s52, {ST_OFF}")
    A("v_lshrrev_b32 v25, 3, v1\nv_lshlrev_b32 v25, 2, v25")
    A("v_and_b32 v26, 7, v1\nv_cmp_eq_u32 vcc, 0, v26\ns_and_saveexec_b64 s[54:55], vcc")
    A(f"buffer_store_dword v22, v25, s[36:39], s52 offen {SC}\nbuffer_store_dword v23, v25, s[36:39], s52 offen offset:512 {SC}")
    A("s_mov_b64 exec, s[54:55]")
    A(f"s_branch J_done_{nG}")
    A(f"J_c_{nG}:")
    for k in range(8): A(f"v_mov_b32 v{72+k}, 0")
    A("s_mov_b32 s52, 0x00003f80\ns_mov_b32 s53, 0x3f800000")
    for i in range(10):
        A(f"s_waitcnt vmcnt({9-i+nG_})")
        for k in range(4):
            r = 32 + 4 * i + k
            A(f"v_dot2_f32_bf16 v{72+2*k}, v{r}, s52, v{72+2*k}")
            A(f"v_dot2_f32_bf16 v{73+2*k}, v{r}, s53, v{73+2*k}")
    A("s_nop 2")
    for sw in ["v_permlane16_swap_b32", "v_permlane32_swap_b32"]:
        for k in range(8): A(f"v_mov_b32 v{80+k}, v{72+k}")
        A("s_nop 0")
        for k in range(8): A(f"{sw} v{72+k}, v{80+k}")
        A("s_nop 0")
        for k in range(8): A(f"v_add_f32 v{72+k}, v{72+k}, v{80+k}")
    A(f"s_lshl_b32 s52, s{S_B}, 13\ns_lshl_b32 s53, s{S_F0}, 2\ns_add_u32 s52, s52, s53\ns_add_u32 s52, s52, {CS_OFF}")
    A(f"v_lshlrev_b32 v22, 5, v1\ns_mov_b32 s53, 16\ns_cmp_lt_u32 s{S_C}, 5\ns_cselect_b32 s53, 8, s53")
    A("v_cmp_gt_u32 vcc, s53, v1\ns_and_saveexec_b64 s[54:55], vcc")
    A(f"buffer_store_dwordx4 v[72:75], v22, s[36:39], s52 offen {SC}\nbuffer_store_dwordx4 v[76:79], v22, s[36:39], s52 offen offset:16 {SC}")
    A("s_mov_b64 exec, s[54:55]")
    A(f"s_branch J_done_{nG}")
    A(f"J_done_{nG}:")
    A(f"s_cmp_ge_u32 s3, 2\ns_cbranch_scc0 J_dn2_{nG}\ns_waitcnt vmcnt(0)")
    if opt("CODEPF", 1) and opt("CPMODE", 1) in (2, 3):
        A(f"s_cmp_eq_u32 s3, {CPW}\ns_cbranch_scc0 J_dn2_{nG}")
        code_prefetch(A, "b" + nG, opt("CPMODE", 1))
    A(f"J_dn2_{nG}:")

def x_addr(A, dst, rowbase_sgpr, tmp):
    A(f"v_and_b32 v{tmp}, 31, v1\nv_add_u32 v{tmp+1}, s{rowbase_sgpr}, v{tmp}\nv_lshlrev_b32 v{tmp+1}, 7, v{tmp+1}")
    A(f"v_bfe_u32 v{tmp}, v1, 1, 3\nv_lshrrev_b32 v{tmp+2}, 5, v1\nv_xor_b32 v{tmp}, v{tmp}, v{tmp+2}")
    A(f"v_lshlrev_b32 v{tmp}, 4, v{tmp}\nv_add_u32 v{dst}, v{tmp+1}, v{tmp}")
    for j in range(1, 4):
        A(f"v_xor_b32 v{dst+j}, {32*j}, v{dst}")
def h_tr_addr(A, dst, tmp):
    A(f"v_bfe_u32 v{tmp}, v1, 5, 1\nv_lshlrev_b32 v{tmp}, 3, v{tmp}\nv_bfe_u32 v{tmp+1}, v1, 2, 2\nv_add_u32 v{tmp}, v{tmp}, v{tmp+1}")
    A(f"v_lshlrev_b32 v{tmp}, 7, v{tmp}")
    A(f"v_bfe_u32 v{tmp+1}, v1, 4, 1\nv_lshlrev_b32 v{tmp+1}, 1, v{tmp+1}\nv_bfe_u32 v{tmp+2}, v1, 1, 1\nv_add_u32 v{tmp+1}, v{tmp+1}, v{tmp+2}")
    A(f"v_bfe_u32 v{tmp+2}, v1, 3, 1\nv_lshlrev_b32 v{tmp+2}, 2, v{tmp+2}\nv_xor_b32 v{tmp+1}, v{tmp+1}, v{tmp+2}")
    A(f"v_lshlrev_b32 v{tmp+1}, 4, v{tmp+1}\nv_add_u32 v{tmp}, v{tmp}, v{tmp+1}")
    A(f"v_and_b32 v{tmp+1}, 1, v1\nv_lshlrev_b32 v{tmp+1}, 3, v{tmp+1}\nv_add_u32 v{dst}, v{tmp}, v{tmp+1}")
def interleave(A, mfmas, fillers, per_gap):
    if opt("NOCOMP1"):
        for f in fillers:
            if not f.startswith("ds_read") and not f.startswith("v_perm"): A(f)
        return
    k = 0
    for i, m in enumerate(mfmas):
        A(m)
        for _ in range(per_gap[i]):
            if k < len(fillers):
                A(fillers[k]); k += 1
    while k < len(fillers):
        A(fillers[k]); k += 1
def h_epilogue_tile(A, acc, mr, cs, tmp, vaddr, soff):
    for i in range(0, 16, 2):
        A(f"v_pk_fma_f32 v[{acc+i}:{acc+i+1}], v[{cs+i}:{cs+i+1}], v[{mr}:{mr+1}], v[{acc+i}:{acc+i+1}] op_sel:[0,0,0] op_sel_hi:[1,0,1] neg_lo:[0,1,0] neg_hi:[0,1,0]")
    for i in range(0, 16, 2):
        A(f"v_pk_mul_f32 v[{acc+i}:{acc+i+1}], v[{acc+i}:{acc+i+1}], v[{mr}:{mr+1}] op_sel:[0,1] op_sel_hi:[1,1]")
    for i in range(0, 16, 2):
        A(f"v_cvt_pk_bf16_f32 v{tmp+i//2}, v{acc+i}, v{acc+i+1}")
    for i in range(8):
        A(f"v_pk_max_i16 v{tmp+i}, v{tmp+i}, 0")
    if opt("LOCALH", 2) != 1:
        A(f"buffer_store_dwordx4 v[{tmp}:{tmp+3}], v{vaddr}, s[36:39], s{soff} offen {SC}")
        A(f"buffer_store_dwordx4 v[{tmp+4}:{tmp+7}], v{vaddr}, s[36:39], s{soff} offen offset:512 {SC}")
        return
    h_epilogue_tile.n += 1
    n = h_epilogue_tile.n
    A(f"s_cmp_eq_u32 s{S_LOCAL}, 1\ns_cbranch_scc1 L_hst{n}_p")
    A(f"buffer_store_dwordx4 v[{tmp}:{tmp+3}], v{vaddr}, s[36:39], s{soff} offen {SC}")
    A(f"buffer_store_dwordx4 v[{tmp+4}:{tmp+7}], v{vaddr}, s[36:39], s{soff} offen offset:512 {SC}")
    A(f"s_branch L_hst{n}_d\nL_hst{n}_p:")
    hst = {0: "", 1: "nt", 2: "sc0", 3: "sc0 nt"}[opt("HST", 0)]
    A(f"buffer_store_dwordx4 v[{tmp}:{tmp+3}], v{vaddr}, s[36:39], s{soff} offen {hst}")
    A(f"buffer_store_dwordx4 v[{tmp+4}:{tmp+7}], v{vaddr}, s[36:39], s{soff} offen offset:512 {hst}")
    A(f"L_hst{n}_d:")
h_epilogue_tile.n = 0
def h_store_voff(A, dst, tmp):
    A(f"v_bfe_u32 v{tmp}, v1, 4, 1\nv_mul_u32_u24 v{tmp}, {58*1024}, v{tmp}")
    A(f"v_lshrrev_b32 v{tmp+1}, 5, v1\nv_lshlrev_b32 v{tmp+1}, 8, v{tmp+1}\nv_add_u32 v{tmp}, v{tmp}, v{tmp+1}")
    A(f"v_and_b32 v{tmp+1}, 15, v1\nv_lshlrev_b32 v{tmp+1}, 4, v{tmp+1}\nv_add_u32 v{dst}, v{tmp}, v{tmp+1}")

def loop_hooks_top(A, tag):
    A(f"s_cmp_eq_u32 s29, s30\ns_cbranch_scc1 {tag}_flag1\n{tag}_flag1_ret:")
def loop_hooks_init(A):
    A(f"s_cmp_lt_u32 s3, 2\ns_cselect_b32 s30, {10 - opt('EARLY_IT', 1)}, 99")
def loop_hooks_ool(A, tag):
    A(f"{tag}_flag1:")
    flag_addr_early(A, 28)
    A("s_waitcnt vmcnt(0)")
    store_flags(A, 28, 1, 48, 30, xcc=True)
    A(f"s_branch {tag}_flag1_ret")

def publish(A, tag, word, kind, vt):
    A("s_waitcnt vmcnt(0)")
    lds_arrive(A, word, vt, 63)
    A(f"s_cmp_eq_u32 s63, 3\ns_cbranch_scc0 {tag}_np")
    if kind == "h":
        flag_addr_h(A, vt - 1); store_flags(A, vt - 1, 1, 48, vt, xcc=True, local=(tag if opt("LOCALF", 1) else None))
    else:
        flag_addr_t(A, vt - 1); store_flags(A, vt - 1, 8, 48, vt)
    A(f"{tag}_np:")

def p1_hh(A):
    A("L_hh:")
    ACC = 128; P, Q = 32, 64
    XB, WB = 2, 6; XC, WC = 8, 12
    A("s_lshr_b32 s24, s3, 1\ns_and_b32 s25, s3, 1")
    A("s_lshl_b32 s26, s24, 6")
    x_addr(A, XB, 26, 20)
    h_tr_addr(A, WB, 20)
    A("s_lshl_b32 s27, s25, 13\ns_add_u32 s27, s27, 16384")
    A(f"v_add_u32 v{WB}, s27, v{WB}\nv_xor_b32 v{WB+1}, 64, v{WB}")
    for i in range(64): A(f"v_mov_b32 v{ACC+i}, 0")
    for j in range(4): A(f"v_mov_b32 v{XC+j}, v{XB+j}")
    for j in range(2): A(f"v_mov_b32 v{WC+j}, v{WB+j}")
    A(f"v_and_b32 v20, 31, v1\nv_add_u32 v20, s26, v20\nv_lshlrev_b32 v20, 2, v20\nv_add_u32 v20, {LST}, v20")
    A(f"v_lshrrev_b32 v21, 5, v1\nv_lshlrev_b32 v21, 4, v21\ns_lshl_b32 s33, s25, 8\ns_add_u32 s33, s33, {LCS}\nv_add_u32 v21, s33, v21")
    h_store_voff(A, 19, 26)
    A(f"s_lshl_b32 s31, s{S_B}, 3\ns_lshl_b32 s32, s24, 1\ns_add_u32 s31, s31, s32\ns_mul_i32 s31, s31, 58")
    A(f"s_lshr_b32 s32, s{S_F0}, 5\ns_lshl_b32 s33, s25, 1\ns_add_u32 s32, s32, s33\ns_add_u32 s31, s31, s32")
    A(f"s_lshl_b32 s31, s31, 10\ns_add_u32 s31, s31, {HF_OFF}")
    jobs_finish(A, 0, 'h')
    epoch_ready(A)
    A("s_mov_b32 s28, 0")
    loop_hooks_init(A)
    def reads(buf, g):
        out = []
        for jj in range(2):
            j = 2 * g + jj; b = buf + 16 * jj
            out.append(f"ds_read_b128 v[{b}:{b+3}], v{XC+j}")
            out.append(f"ds_read_b64_tr_b16 v[{b+8}:{b+9}], v{WC} offset:{j*2048}")
            out.append(f"ds_read_b64_tr_b16 v[{b+10}:{b+11}], v{WC} offset:{j*2048+512}")
            out.append(f"ds_read_b128 v[{b+4}:{b+7}], v{XC+j} offset:4096")
            out.append(f"ds_read_b64_tr_b16 v[{b+12}:{b+13}], v{WC+1} offset:{j*2048}")
            out.append(f"ds_read_b64_tr_b16 v[{b+14}:{b+15}], v{WC+1} offset:{j*2048+512}")
        return out
    def mfmas(buf):
        out = []
        for jj in range(2):
            b = buf + 16 * jj
            for ft in range(2):
                for st in range(2):
                    a = ACC + 16 * (2 * ft + st)
                    out.append(f"{MFMA32} v[{a}:{a+15}], v[{b+8+4*ft}:{b+11+4*ft}], v[{b+4*st}:{b+3+4*st}], v[{a}:{a+15}]")
        return out
    stamp(A, 1)
    A("s_waitcnt lgkmcnt(0)\ns_barrier")
    stamp(A, 2)
    for r in reads(P, 0):
        if not opt("NOCOMP1"): A(r)
    A("s_mov_b32 s29, 10")
    A("L_hh_loop:")
    A.drop = (["v_mfma"] if opt("NOMF1") else []) + (["ds_read"] if opt("NODS1") else []) + (["v_perm"] if opt("NOPERM") else [])
    loop_hooks_top(A, "L_hh")
    A("s_waitcnt lgkmcnt(0)")
    A("s_cmp_eq_u32 s29, 1\ns_cbranch_scc1 L_hh_pre\nL_hh_pre_ret:")
    if opt("HHSTAMP"): stamp(A)
    upd = [f"v_add_u32 v{XC+j}, s28, v{XB+j}" for j in range(4)] + [f"v_add_u32 v{WC+j}, s28, v{WB+j}" for j in range(2)]
    ring = [f"s_add_u32 s28, s28, {RING}", f"s_and_b32 s28, s28, {NS*RING-1}"]
    pat = opt("HHPAT", 0)
    g1 = [[3, 3, 3, 3, 2, 3, 3, 0], [4, 4, 4, 2, 3, 3, 0, 0], [6, 6, 2, 3, 3, 0, 0, 0]][pat]
    g2 = [[3, 3, 3, 3, 0, 0, 0, 0], [4, 4, 4, 0, 0, 0, 0, 0], [6, 6, 0, 0, 0, 0, 0, 0]][pat]
    interleave(A, mfmas(P), reads(Q, 1) + ring + upd, g1)
    if opt("HHSTAMP"): A("s_waitcnt lgkmcnt(0)"); stamp(A)
    A("s_waitcnt lgkmcnt(0)")
    A("s_barrier")
    if opt("HHSTAMP"): stamp(A)
    interleave(A, mfmas(Q), reads(P, 0), g2)
    A.drop = []
    A("s_sub_u32 s29, s29, 1\ns_cmp_lg_u32 s29, 0\ns_cbranch_scc1 L_hh_loop")
    A("s_waitcnt vmcnt(0) lgkmcnt(0)")
    stamp(A, 3)
    A(f"v_readfirstlane_b32 s{S_LOCAL}, v18")
    A("s_nop 7")
    for st in range(2):
        for ft in range(2):
            A(f"s_add_u32 s32, s31, {(st*4*58+ft)*1024}")
            h_epilogue_tile(A, ACC + 16 * (2 * ft + st), 14 + 2 * st, 96 + 16 * ft, 64 + 8 * ((2 * st + ft) & 3), 19, 32)
    stamp(A, 4)
    publish(A, "L_hh_pub", 0, "h", 30)
    stamp(A)
    stamp_flush(A, 0, WS, 9)
    A("s_endpgm")
    loop_hooks_ool(A, "L_hh")
    A("L_hh_pre:")
    A("ds_read_b32 v14, v20\nds_read_b32 v15, v20 offset:512\nds_read_b32 v16, v20 offset:128\nds_read_b32 v17, v20 offset:640")
    A(f"v_mov_b32 v18, {LCNT + 12}\nds_read_b32 v18, v18")
    for ft in range(2):
        for q in range(4):
            b = 96 + 16 * ft + 4 * q
            A(f"ds_read_b128 v[{b}:{b+3}], v21 offset:{ft*128+q*32}")
    A("s_branch L_hh_pre_ret")

def p1_mx(A):
    A("L_mx:")
    P, Q = 32, 72
    EV, OD = 112, 116
    CE, CO, SE, SO = 120, 124, 128, 132
    HA, HB = 136, 152
    EC, ES, OC, OS = 168, 184, 200, 216
    G = 232
    XAB, WHB = 2, 6
    XAC, XBC, DAC, WHC = 7, 11, 15, 19
    def gmat():
        A("v_and_b32 v24, 31, v1\nv_cvt_f32_u32 v24, v24\nv_lshrrev_b32 v25, 5, v1\nv_cvt_f32_u32 v25, v25")
        A("v_mul_f32 v25, 0x3e000000, v25\nv_mul_f32 v25, v25, v24")
        for p in range(2):
            for uh in range(2):
                for u2 in range(2):
                    for k in range(2):
                        c = 16 * p + 8 * uh + 2 * u2 + k
                        import struct
                        lit = struct.unpack("<I", struct.pack("<f", c / 32.0))[0]
                        A(f"v_fmamk_f32 v26, v24, {lit:#x}, v25\nv_fract_f32 v26, v26")
                        A(f"v_cos_f32 v{28+k}, v26\nv_sin_f32 v{30+k}, v26")
                    A("s_nop 0")
                    A(f"v_cvt_pk_bf16_f32 v{G+4*p+2*uh+u2}, v28, v29\nv_cvt_pk_bf16_f32 v{G+16+4*p+2*uh+u2}, v30, v31")
        for i in range(8):
            A(f"v_xor_b32 v{G+8+i}, 0x80008000, v{G+16+i}")
    if not opt("GLATE", 1): gmat()
    A("s_lshr_b32 s24, s3, 1\ns_and_b32 s25, s3, 1")
    A("s_lshl_b32 s26, s3, 5\ns_xor_b32 s27, s26, 32")
    x_addr(A, XAB, 26, 24)
    h_tr_addr(A, WHB, 24)
    A(f"s_lshl_b32 s30, s25, 6\nv_xor_b32 v{WHB}, s30, v{WHB}\nv_add_u32 v{WHB}, 16384, v{WHB}")
    for i in range(96): A(f"v_mov_b32 v{HA+i}, 0")
    A("s_lshl_b32 s31, s3, 12\ns_sub_u32 s31, 24576, s31")
    def upd(js=(0, 1, 2, 3), wh=True):
        o = [f"v_add_u32 v{XAC+j}, s28, v{XAB+j}" for j in js] + ([f"v_add_u32 v{WHC}, s28, v{WHB}"] if wh else [])
        o += [f"v_xor_b32 v{XBC+j}, 0x1000, v{XAC+j}" for j in js]
        o += [f"v_add_u32 v{DAC+j}, s31, v{XAC+j}" for j in js]
        return o
    A("s_mov_b32 s28, 0")
    for t in upd(): A(t)
    jobs_finish(A, 0, 'm')
    epoch_ready(A)
    loop_hooks_init(A)
    A("s_mov_b32 s34, 0x05040100\ns_mov_b32 s35, 0x07060302")
    def reads(buf, m):
        out = []
        for jj in range(2):
            j = 2 * m + jj
            out.append(f"ds_read_b128 v[{buf+4*jj}:{buf+4*jj+3}], v{XAC+j}")
        for jj in range(2):
            j = 2 * m + jj
            out.append(f"ds_read_b64_tr_b16 v[{buf+16+4*jj}:{buf+17+4*jj}], v{WHC} offset:{j*2048}")
            out.append(f"ds_read_b64_tr_b16 v[{buf+18+4*jj}:{buf+19+4*jj}], v{WHC} offset:{j*2048+512}")
            out.append(f"ds_read_b128 v[{buf+8+4*jj}:{buf+11+4*jj}], v{XBC+j}")
        for jj in range(2):
            j = 2 * m + jj
            out.append(f"ds_read_b128 v[{buf+24+4*jj}:{buf+27+4*jj}], v{DAC+j}")
            out.append(f"ds_read_b128 v[{buf+32+4*jj}:{buf+35+4*jj}], v{DAC+j} offset:4096")
        return out
    def perms(src, e, o):
        ev = [f"v_perm_b32 v{e+k}, v{src+2*k+1}, v{src+2*k}, s34" for k in range(4)]
        od = [f"v_perm_b32 v{o+k}, v{src+2*k+1}, v{src+2*k}, s35" for k in range(4)]
        return ev, od
    def half(cur, nxt, m_next, extra):
        rd = reads(nxt, m_next)
        if opt("NOCOMP1"):
            for t in extra: A(t)
            return
        xe, xo = perms(cur, EV, OD); ce, co = perms(cur + 24, CE, CO); se, so = perms(cur + 32, SE, SO)
        H = []
        for jj in range(2):
            w = cur + 16 + 4 * jj
            H.append(f"{MFMA32} v[{HA}:{HA+15}], v[{w}:{w+3}], v[{cur+4*jj}:{cur+4*jj+3}], v[{HA}:{HA+15}]")
            H.append(f"{MFMA32} v[{HB}:{HB+15}], v[{w}:{w+3}], v[{cur+8+4*jj}:{cur+11+4*jj}], v[{HB}:{HB+15}]")
        Dm = [f"{MFMA32} v[{EC}:{EC+15}], v[{EV}:{EV+3}], v[{CE}:{CE+3}], v[{EC}:{EC+15}]",
              f"{MFMA32} v[{OC}:{OC+15}], v[{OD}:{OD+3}], v[{CO}:{CO+3}], v[{OC}:{OC+15}]",
              f"{MFMA32} v[{ES}:{ES+15}], v[{EV}:{EV+3}], v[{SE}:{SE+3}], v[{ES}:{ES+15}]",
              f"{MFMA32} v[{OS}:{OS+15}], v[{OD}:{OD+3}], v[{SO}:{SO+3}], v[{OS}:{OS+15}]"]
        if opt("MXSCHED", 1):
            ex = list(extra)
            def take(n):
                t = ex[:n]; del ex[:n]; return t
            pad = lambda n: (take(n) + ["s_nop 0"] * n)[:n]
            ms = H + [Dm[0], Dm[2], Dm[1], Dm[3]]
            gaps = [xe[0:2] + rd[0:3], xe[2:4] + rd[3:6], ce[0:2] + rd[6:9], ce[2:4] + rd[9:12],
                    se + xo[0:2], xo[2:4] + co + pad(2), so + pad(2), None]
            gaps[7] = ex
        else:
            gaps = [xe + rd[0:2], ce + rd[2:4], xo + rd[4:6], co + rd[6:8], se + rd[8:10], so + rd[10:12], extra[:8], extra[8:]]
            ms = H + Dm
        for i in range(8):
            A(ms[i])
            for t in gaps[i]: A(t)
    stamp(A, 1)
    A("s_waitcnt lgkmcnt(0)\ns_barrier")
    stamp(A, 2)
    for r in reads(P, 0):
        if not opt("NOCOMP1"): A(r)
    A("s_mov_b32 s29, 10")
    A("L_mx_loop:")
    A.drop = (["v_mfma"] if opt("NOMF1") else []) + (["ds_read"] if opt("NODS1") else []) + (["v_perm"] if opt("NOPERM") else [])
    loop_hooks_top(A, "L_mx")
    A("s_waitcnt lgkmcnt(0)")
    if opt("HHSTAMP"): stamp(A)
    ring = [f"s_add_u32 s28, s28, {RING}", f"s_and_b32 s28, s28, {NS*RING-1}"]
    if opt("MXSCHED", 1):
        half(P, Q, 1, ring + upd((0, 1), True))
        if opt("HHSTAMP"): A("s_waitcnt lgkmcnt(0)"); stamp(A)
        A("s_waitcnt lgkmcnt(0)")
        A("s_barrier")
        if opt("HHSTAMP"): stamp(A)
        half(Q, P, 0, upd((2, 3), False))
    else:
        half(P, Q, 1, ring + upd())
        A("s_waitcnt lgkmcnt(0)")
        A("s_barrier")
        half(Q, P, 0, [])
    A.drop = []
    A("s_sub_u32 s29, s29, 1\ns_cmp_lg_u32 s29, 0\ns_cbranch_scc1 L_mx_loop")
    A("s_waitcnt vmcnt(0) lgkmcnt(0)")
    stamp(A, 3)
    A(f"v_and_b32 v24, 31, v1\nv_add_u32 v25, s26, v24\nv_lshlrev_b32 v25, 2, v25\nv_add_u32 v25, {LST}, v25")
    A(f"v_add_u32 v26, s27, v24\nv_lshlrev_b32 v26, 2, v26\nv_add_u32 v26, {LST}, v26")
    A("ds_read_b32 v2, v25\nds_read_b32 v3, v25 offset:512\nds_read_b32 v4, v26\nds_read_b32 v5, v26 offset:512")
    A(f"v_mov_b32 v7, {LCNT + 12}\nds_read_b32 v7, v7")
    A(f"v_lshrrev_b32 v27, 5, v1\nv_lshlrev_b32 v27, 4, v27\ns_lshl_b32 s30, s25, 7\ns_add_u32 s30, s30, {LCS}\nv_add_u32 v28, s30, v27")
    for q in range(4):
        A(f"ds_read_b128 v[{32+4*q}:{35+4*q}], v28 offset:{q*32}")
    A(f"s_lshl_b32 s30, s26, 2\ns_add_u32 s30, s30, {LST+512}\nv_add_u32 v28, s30, v27")
    for q in range(4):
        A(f"ds_read_b128 v[{48+4*q}:{51+4*q}], v28 offset:{q*32}")
    h_store_voff(A, 6, 28)
    A(f"s_lshl_b32 s31, s{S_B}, 3\ns_lshl_b32 s30, s24, 1\ns_add_u32 s31, s31, s30\ns_mul_i32 s31, s31, 58")
    A(f"s_lshr_b32 s30, s{S_F0}, 5\ns_add_u32 s30, s30, s25\ns_add_u32 s31, s31, s30")
    A(f"s_lshl_b32 s31, s31, 10\ns_add_u32 s31, s31, {HF_OFF}")
    A(f"s_mul_i32 s30, s25, {4*58*1024}\ns_add_u32 s32, s31, s30")
    A(f"s_xor_b32 s30, s25, 1\ns_mul_i32 s30, s30, {4*58*1024}\ns_add_u32 s33, s31, s30")
    A("s_waitcnt lgkmcnt(0)")
    A(f"v_readfirstlane_b32 s{S_LOCAL}, v7")
    A("s_nop 7")
    h_epilogue_tile(A, HA, 2, 32, 64, 6, 32)
    h_epilogue_tile(A, HB, 4, 32, 72, 6, 33)
    stamp(A, 4)
    if opt("MXPUB", 0): publish(A, "L_mx_pubh", 0, "h", 30)
    stamp(A)
    if opt("GLATE", 1): gmat()
    R = 48
    for i in range(0, 16, 2):
        for a in (EC, OC, ES, OS):
            A(f"v_pk_mul_f32 v[{a+i}:{a+i+1}], v[{a+i}:{a+i+1}], v[{R+i}:{R+i+1}]")
    T0, T1 = 80, 96
    for i in range(0, 16, 2):
        A(f"v_pk_add_f32 v[{T0+i}:{T0+i+1}], v[{EC+i}:{EC+i+1}], v[{OC+i}:{OC+i+1}]")
        A(f"v_pk_add_f32 v[{EC+i}:{EC+i+1}], v[{EC+i}:{EC+i+1}], v[{OC+i}:{OC+i+1}] neg_lo:[0,1] neg_hi:[0,1]")
        A(f"v_pk_add_f32 v[{T1+i}:{T1+i+1}], v[{ES+i}:{ES+i+1}], v[{OS+i}:{OS+i+1}]")
        A(f"v_pk_add_f32 v[{OC+i}:{OC+i+1}], v[{OS+i}:{OS+i+1}], v[{ES+i}:{ES+i+1}] neg_lo:[0,1] neg_hi:[0,1]")
    A("v_and_b32 v24, 31, v1\nv_cmp_eq_u32 s[40:41], 0, v24\ns_nop 3")
    A(f"s_cmp_eq_u32 s{S_C}, 0\ns_cselect_b64 s[40:41], s[40:41], 0\ns_cbranch_scc0 L_mx_nofix")
    for i in range(16):
        A(f"v_cndmask_b32 v{T0+i}, v{T0+i}, v{ES+i}, s[40:41]")
        A(f"v_cndmask_b32 v{T1+i}, v{T1+i}, v{OS+i}, s[40:41]")
        A(f"v_cndmask_b32_e64 v{OC+i}, v{OC+i}, 0, s[40:41]")
    A("L_mx_nofix:")
    ZB = 32
    for k, a in enumerate([T0, T1, EC, OC]):
        for i in range(0, 16, 2):
            A(f"v_cvt_pk_bf16_f32 v{ZB+8*k+i//2}, v{a+i}, v{a+i+1}")
    Fr = lambda p: f"v[{G+4*p}:{G+4*p+3}]"
    Fi = lambda p: f"v[{G+8+4*p}:{G+8+4*p+3}]"
    nFi = lambda p: f"v[{G+16+4*p}:{G+16+4*p+3}]"
    Z = lambda k, p: f"v[{ZB+8*k+4*p}:{ZB+8*k+4*p+3}]"
    TR = [EC, OC]; TI = [ES, OS]
    A("s_nop 1")
    for st_ in range(2):
        zr, zi = 2 * st_, 2 * st_ + 1
        tr, ti = TR[st_], TI[st_]
        A(f"{MFMA32} v[{tr}:{tr+15}], {Fr(0)}, {Z(zr,0)}, 0")
        A(f"{MFMA32} v[{ti}:{ti+15}], {Fr(0)}, {Z(zi,0)}, 0")
        A(f"{MFMA32} v[{tr}:{tr+15}], {Fr(1)}, {Z(zr,1)}, v[{tr}:{tr+15}]")
        A(f"{MFMA32} v[{ti}:{ti+15}], {Fr(1)}, {Z(zi,1)}, v[{ti}:{ti+15}]")
        A(f"{MFMA32} v[{tr}:{tr+15}], {nFi(0)}, {Z(zi,0)}, v[{tr}:{tr+15}]")
        A(f"{MFMA32} v[{ti}:{ti+15}], {Fi(0)}, {Z(zr,0)}, v[{ti}:{ti+15}]")
        A(f"{MFMA32} v[{tr}:{tr+15}], {nFi(1)}, {Z(zi,1)}, v[{tr}:{tr+15}]")
        A(f"{MFMA32} v[{ti}:{ti+15}], {Fi(1)}, {Z(zr,1)}, v[{ti}:{ti+15}]")
    if not opt("MXPUB", 0): publish(A, "L_mx_pubh", 0, "h", 30)
    else: A("s_nop 7")
    stamp(A)
    A(f"v_and_b32 v24, 31, v1\nv_lshlrev_b32 v24, 2, v24\nv_lshrrev_b32 v25, 5, v1\nv_lshlrev_b32 v25, 9, v25\nv_add_u32 v24, v24, v25")
    A(f"s_lshl_b32 s30, s3, 13\ns_add_u32 s30, s30, {LX}\nv_add_u32 v24, s30, v24")
    A("s_nop 7")
    for st_ in range(2):
        for i in range(16):
            A(f"v_cvt_pk_bf16_f32 v{64+16*st_+i}, v{TR[st_]+i}, v{TI[st_]+i}")
    for st_ in range(2):
        for i in range(16):
            t0 = (i & 3) + 8 * (i >> 2)
            A(f"ds_write_b32 v24, v{64+16*st_+i} offset:{st_*4096+t0*128}")
    A("s_waitcnt lgkmcnt(0)")
    stamp(A)
    lds_arrive(A, 1, 30, 63)
    A(f"v_mov_b32 v30, {LCNT+4}")
    A("L_mx_rv:\nds_read_b32 v31, v30\ns_waitcnt lgkmcnt(0)\ns_nop 0\nv_readfirstlane_b32 s63, v31\ns_nop 3\ns_cmp_ge_u32 s63, 4\ns_cbranch_scc1 L_mx_rv_ok")
    A(f"s_sub_u32 s{S_SPIN}, s{S_SPIN}, 1\ns_cmp_eq_u32 s{S_SPIN}, 0\ns_cbranch_scc0 L_mx_rv\nL_mx_rv_ok:")
    A("v_and_b32 v24, 31, v1\nv_lshlrev_b32 v24, 2, v24\nv_lshrrev_b32 v25, 5, v1\nv_lshlrev_b32 v26, 7, v25\nv_add_u32 v24, v24, v26")
    A(f"s_lshl_b32 s30, s3, 10\ns_add_u32 s30, s30, {LX}\nv_add_u32 v24, s30, v24")
    for st_ in range(2):
        for n in range(4):
            b = 64 + 16 * st_ + 4 * n
            for w in range(4):
                A(f"ds_read_b32 v{b+w}, v24 offset:{w*8192+st_*4096+n*256}")
    A(f"v_and_b32 v26, 31, v1\ns_lshl_b32 s30, s{S_C}, 5\nv_add_u32 v27, s30, v26")
    A("v_mov_b32 v28, 160\nv_cndmask_b32 v29, v27, v28, s[40:41]")
    A("v_sub_u32 v27, 320, v27")
    A(f"s_mov_b32 s30, {TF_T0}\nv_mul_lo_u32 v25, s30, v25")
    A("v_lshlrev_b32 v29, 4, v29\nv_add_u32 v29, v29, v25")
    A("v_lshlrev_b32 v27, 4, v27\nv_add_u32 v27, v27, v25")
    A(f"s_mul_i32 s30, s3, {8*TF_T0}\ns_mul_i32 s31, s{S_B}, {TF_ROW}\ns_add_u32 s30, s30, s31\ns_add_u32 s30, s30, {TF_OFF}")
    A("s_waitcnt lgkmcnt(0)")
    for st_ in range(2):
        for n in range(4):
            b = 64 + 16 * st_ + 4 * n
            A(f"s_add_u32 s31, s30, {2*n*TF_T0}")
            if not opt("NOTST"): A(f"buffer_store_dwordx4 v[{b}:{b+3}], v{29 if st_ == 0 else 27}, s[36:39], s31 offen {'' if opt('TPLAIN') else SC}")
    stamp(A)
    A(f"s_cmp_eq_u32 s{S_C}, 0\ns_cbranch_scc0 L_mx_noz\ns_cmp_eq_u32 s3, 0\ns_cbranch_scc0 L_mx_noz")
    A(f"s_mov_b32 s30, {TF_T0}\nv_and_b32 v24, 31, v1\nv_mul_lo_u32 v24, s30, v24")
    A("v_mov_b32 v4, 0\nv_mov_b32 v5, 0\nv_mov_b32 v6, 0\nv_mov_b32 v7, 0")
    A(f"s_mul_i32 s31, s{S_B}, {TF_ROW}\ns_add_u32 s31, s31, {TF_OFF}")
    A(f"buffer_store_dwordx4 v[4:7], v24, s[36:39], s31 offen {SC}")
    A("L_mx_noz:")
    publish(A, "L_mx_pubt", 2, "t", 30)
    stamp(A)
    stamp_flush(A, 0, WS, 9)
    A("s_endpgm")
    loop_hooks_ool(A, "L_mx")

def loader(A):
    A("L_loader:")
    if opt("PRIOL"): A(f"s_setprio {opt('PRIOL')}")
    if opt("PRIOL1"): A(f"s_setprio {opt('PRIOL1')}")
    A(f"s_sub_u32 s{S_J}, s3, 4")
    for r in [11, 12, 13, 52, 53, 54, 55, 56, 57, 58, 59]: A(f"v_mov_b32 v{r}, 0")
    A("s_mov_b32 s58, 0\ns_mov_b32 s59, 99\ns_mov_b32 s63, 0")
    RS = 1280 if opt("XLIN") else 81920
    A(f"v_lshrrev_b32 v4, 3, v1\ns_mov_b32 s40, {RS}\nv_mul_lo_u32 v8, s40, v4")
    A("v_and_b32 v5, 7, v1\nv_lshrrev_b32 v6, 4, v1\nv_xor_b32 v5, v5, v6\nv_lshlrev_b32 v5, 4, v5")
    A("v_add_u32 v2, v8, v5\nv_xor_b32 v7, 64, v5")
    A(f"v_add_u32 v3, v8, v7\nv_add_u32 v3, {8*RS}, v3")
    A(f"s_lshl_b32 s40, s{S_B}, 1\ns_and_b32 s41, s{S_J}, 1\ns_add_u32 s40, s40, s41")
    A(f"s_lshr_b32 s41, s{S_J}, 1\ns_lshl_b32 s41, s41, 5\ns_add_u32 s40, s40, s41")
    if opt("XLIN"):
        A(f"s_lshl_b32 s40, s{S_B}, 2\ns_add_u32 s40, s40, s{S_J}\ns_mul_i32 s40, s40, {32*1280}\ns_add_u32 s41, s40, {16*1280}")
    else:
        A(f"s_mul_i32 s40, s40, 1280\ns_add_u32 s41, s40, {16*81920}")
    A("s_mov_b64 s[56:57], -1")
    A(f"s_cmp_lt_u32 s{S_C}, 5\ns_cbranch_scc0 L_ld_H")
    A(f"s_cmp_ge_u32 s{S_J}, 2\ns_cbranch_scc0 L_ld_H")
    A(f"s_and_b32 s50, s{S_J}, 1\ns_add_u32 s50, s50, 1\ns_mov_b32 s30, {HID_BYTES}")
    A("v_mul_u32_u24 v8, 1280, v4\nv_add_u32 v9, v8, v5")
    A(f"v_add_u32 v10, v8, v7\nv_add_u32 v10, {8*1280}, v10")
    A(f"s_mul_i32 s42, s{S_C}, {32*1280}")
    A(f"s_mov_b32 s44, s42\ns_mov_b32 s45, s42\ns_add_u32 s46, s42, {16*1280}\ns_add_u32 s47, s42, {16*1280}")
    A("s_mov_b32 s43, 128")
    A(f"s_cmp_eq_u32 s{S_C}, 0\ns_cbranch_scc0 L_ld_go\ns_cmp_eq_u32 s{S_J}, 3\ns_cbranch_scc0 L_ld_go")
    A("s_mov_b32 s56, 0xffffff00")
    A("s_branch L_ld_go")
    A("L_ld_H:")
    A(f"s_mov_b32 s50, 0\ns_mov_b32 s30, {W1_BYTES}")
    A("v_mul_u32_u24 v8, 3456, v4")
    A("v_and_b32 v9, 7, v1\nv_bfe_u32 v10, v1, 4, 1\nv_lshlrev_b32 v10, 2, v10\nv_xor_b32 v9, v9, v10")
    A("v_lshlrev_b32 v9, 4, v9\nv_add_u32 v9, v8, v9\nv_mov_b32 v10, v9")
    A(f"s_and_b32 s42, s{S_J}, 1\ns_mul_i32 s42, s42, {32*3456}")
    A(f"s_lshr_b32 s43, s{S_J}, 1\ns_lshl_b32 s43, s43, 6\ns_add_u32 s43, s43, s{S_F0}\ns_lshl_b32 s43, s43, 1")
    A("s_add_u32 s42, s42, s43")
    for q in range(4):
        A(f"s_add_u32 s{44+q}, s42, {8*q*3456}")
    A(f"s_mov_b32 s43, {64*3456}")
    A("L_ld_go:")
    A(f"s_lshl_b32 s48, s{S_J}, 12\ns_mov_b32 s31, 0x20000")
    args_ready(A)
    srd(A, 24, X_, X_BYTES)
    A(f"s_cmp_eq_u32 s50, 1\ns_cselect_b32 s28, s{HRE}, s{W1}\ns_cselect_b32 s29, s{HRE+1}, s{W1+1}")
    A(f"s_cmp_eq_u32 s50, 2\ns_cselect_b32 s28, s{HIM}, s28\ns_cselect_b32 s29, s{HIM+1}, s29")
    def chunk(slot_reg):
        for q in range(0 if opt("NOLOAD1") else 4):
            A(f"s_add_u32 m0, s{slot_reg}, {q*1024}")
            A("s_nop 0")
            A(f"buffer_load_dwordx4 v{2+(q&1)}, s[24:27], s{40+(q>>1)} offen {'nt ' if opt('XNT') else ''}lds")
            A(f"s_add_u32 m0, s{slot_reg}, {16384+q*1024}")
            if q == 0: A("s_mov_b64 exec, s[56:57]")
            else: A("s_nop 0")
            A(f"buffer_load_dwordx4 v{9+(q&1)}, s[28:31], s{44+q} offen {'nt ' if opt('WNT') else ''}lds")
            if q == 0: A("s_mov_b64 exec, -1")
        A("s_add_u32 s40, s40, 128\ns_add_u32 s41, s41, 128")
        for q in range(4):
            A(f"s_add_u32 s{44+q}, s{44+q}, s43")
        A(f"s_add_u32 s{slot_reg}, s{slot_reg}, {RING}\ns_cmp_ge_u32 s{slot_reg}, {NS*RING}\ns_cselect_b32 s52, {NS*RING}, 0\ns_sub_u32 s{slot_reg}, s{slot_reg}, s52")
    A("s_mov_b32 s49, s48")
    chunk(49); chunk(49)
    stamp(A, 1)
    srd(A, 36, WS, WS_USED)
    srd(A, 32, WS, WS_USED)
    A("s_waitcnt lgkmcnt(0)")
    A(f"s_add_u32 s{S_E}, s{S_E}, 1\ns_xor_b32 s{S_EM}, s{S_E}, {MAGIC}")
    A(f"s_cmp_ge_u32 s{S_J}, 2\ns_cbranch_scc0 L_ld_su01")
    A(f"s_sub_u32 s58, s{S_J}, 2\ns_lshl_b32 s59, s{S_T0}, 1\ns_add_u32 s59, s59, s58")
    A("s_mov_b32 s50, 6554\ns_mov_b32 s53, 1280")
    for q in range(5):
        A(f"v_add_u32 v22, {64*q}, v1")
        A("v_mul_lo_u32 v23, s50, v22\nv_lshrrev_b32 v23, 16, v23")
        A("v_mul_u32_u24 v24, 10, v23\nv_sub_u32 v24, v22, v24\nv_lshlrev_b32 v24, 4, v24")
        A(f"v_mul_lo_u32 v23, s53, v23\nv_add_u32 v{52+q}, v23, v24")
    A("v_lshrrev_b32 v23, 4, v1\nv_lshrrev_b32 v24, 1, v23\nv_lshlrev_b32 v24, 4, v24")
    A("v_and_b32 v25, 1, v23\nv_lshlrev_b32 v25, 2, v25\nv_add_u32 v24, v24, v25\nv_bfe_u32 v25, v1, 2, 2\nv_add_u32 v24, v24, v25")
    A("v_mul_u32_u24 v24, 160, v24\nv_and_b32 v25, 3, v1\nv_lshlrev_b32 v25, 3, v25\nv_add_u32 v24, v24, v25")
    A(f"s_mul_i32 s50, s58, 5120\ns_add_u32 s50, s50, {LW}\nv_add_u32 v57, s50, v24")
    A(f"s_lshl_b32 s50, s{S_CT}, 6\ns_add_u32 s50, s50, s59\ns_lshl_b32 s50, s50, 3\ns_add_u32 s50, s50, {FW_OFF}\nv_mov_b32 v58, s50")
    if opt("WSKIP"): A("s_mov_b32 s59, 99")
    A("s_branch L_ld_sud")
    A("L_ld_su01:")
    A("v_lshlrev_b32 v13, 3, v1\nv_and_b32 v16, 31, v1\nv_lshlrev_b32 v15, 3, v16")
    A(f"s_lshl_b32 s50, s{S_B}, 7\ns_add_u32 s50, s50, {FR1_OFF}\nv_add_u32 v12, s50, v15")
    A(f"s_lshl_b32 s50, s{S_C}, 7\ns_add_u32 s50, s50, {FC1_OFF-128}\nv_add_u32 v15, s50, v15")
    A("v_cmp_le_u32 vcc, 16, v16\ns_nop 1\nv_cndmask_b32 v12, v12, v15, vcc")
    A(f"s_lshl_b32 s50, s{S_CT}, 9\ns_add_u32 s50, s50, {FW_OFF}\nv_add_u32 v11, s50, v13")
    A("L_ld_sud:")
    A("s_waitcnt vmcnt(8)")
    stamp(A, 2)
    A("s_barrier")
    chunk(49)
    A(f"s_cmp_ge_u32 s{S_J}, 2\ns_cbranch_scc1 L_ld_h1w\nL_ld_h1w_ret:")
    A(f"s_cmp_ge_u32 s{S_J}, 2\ns_cbranch_scc1 L_ld_b1w")
    A("s_waitcnt vmcnt(8)\ns_branch L_ld_b1d\nL_ld_b1w:")
    A("s_cmp_ge_u32 s59, 54\ns_cbranch_scc1 L_ld_b1n\ns_waitcnt vmcnt(13)\ns_branch L_ld_b1d\nL_ld_b1n:\ns_waitcnt vmcnt(8)\nL_ld_b1d:")
    A("s_barrier")
    stamp(A)
    pk = opt("POLLK", 5)
    assert pk in (5, 6)
    A(f"s_mov_b32 s53, 99\ns_mov_b32 s54, 99\ns_mov_b32 s55, 0\ns_mov_b32 s79, 99\ns_mov_b32 s81, 99\ns_mov_b32 s82, 99\ns_mov_b32 s83, 0")
    A(f"s_cmp_eq_u32 s{S_J}, 0\ns_cselect_b32 s53, {9-pk}, s53\ns_cselect_b32 s54, {9-pk-2}, s54\ns_cselect_b32 s55, {9-pk-1}, s55\ns_cselect_b32 s81, {9-pk-2}, s81")
    A(f"s_cmp_eq_u32 s{S_J}, 1\ns_cselect_b32 s53, {opt('FWPOLL', 1)}, s53")
    A(f"s_cmp_ge_u32 s{S_J}, 2\ns_cselect_b32 s82, 6, s82\ns_cselect_b32 s79, 3, s79\ns_cselect_b32 s83, 1, s83")
    A("s_mov_b32 s51, 7")
    A("L_ld_loop:")
    A("s_cmp_eq_u32 s51, s54\ns_cbranch_scc1 L_ld_h2\nL_ld_h2_ret:")
    chunk(49)
    A("s_cmp_eq_u32 s51, s79\ns_cbranch_scc1 L_ld_h3\nL_ld_h3_ret:")
    A("s_cmp_eq_u32 s51, s53\ns_cbranch_scc1 L_ld_h1\nL_ld_h1_ret:")
    A("s_cmp_eq_u32 s51, s81\ns_cbranch_scc1 L_ld_h4\nL_ld_h4_ret:")
    A("s_cmp_eq_u32 s51, s82\ns_cbranch_scc1 L_ld_h2w\nL_ld_h2w_ret:")
    A("s_cmp_lt_u32 s51, s55\ns_cbranch_scc1 L_ld_w25")
    A("s_cmp_eq_u32 s83, 0\ns_cbranch_scc1 L_ld_w8")
    A("s_cmp_eq_u32 s51, 6\ns_cbranch_scc1 L_ld_wW\ns_cmp_eq_u32 s51, 5\ns_cbranch_scc1 L_ld_wW")
    A("s_cmp_eq_u32 s51, 3\ns_cbranch_scc1 L_ld_w9\ns_cmp_eq_u32 s51, 2\ns_cbranch_scc1 L_ld_w9")
    A("L_ld_w8:\ns_waitcnt vmcnt(8)\ns_branch L_ld_wd")
    A("L_ld_wW:\ns_cmp_ge_u32 s59, 54\ns_cbranch_scc1 L_ld_w8\ns_waitcnt vmcnt(13)\ns_branch L_ld_wd\nL_ld_w9:\ns_waitcnt vmcnt(9)\ns_branch L_ld_wd")
    A("L_ld_w25:\ns_waitcnt vmcnt(17)\nL_ld_wd:")
    stamp(A)
    A("s_barrier")
    stamp(A)
    A("s_sub_u32 s51, s51, 1\ns_cmp_lg_u32 s51, 0\ns_cbranch_scc1 L_ld_loop")
    A("s_waitcnt vmcnt(0)")
    if not opt("WLATE", 1):
        A(f"s_cmp_eq_u32 s{S_J}, 1\ns_cbranch_scc0 L_ld_no1")
        spin(A, "L_ld_spw", 48, 11, 32, xcc=True)
        A("L_ld_no1:")
    A(f"s_cmp_eq_u32 s{S_J}, 0\ns_cbranch_scc0 L_ld_nored")
    if opt("REDPRIO", 1): A("s_setprio 2")
    for b_ in range(1, 8):
        for k in range(4): A(f"v_add_f32 v{16+k}, v{16+k}, v{16+4*b_+k}")
    for k in range(4): A(f"v_mov_b32 v{20+k}, v{16+k}")
    A("s_nop 1")
    for k in range(4): A(f"v_permlane32_swap_b32 v{16+k}, v{20+k}")
    A("s_nop 0")
    for k in range(4): A(f"v_add_f32 v{16+k}, v{16+k}, v{20+k}")
    A(f"v_add_u32 v13, {LCS}, v13\nds_write_b128 v13, v[16:19]")
    if opt("REDPRIO", 1): A("s_setprio 0")
    A("s_waitcnt lgkmcnt(0)")
    A("L_ld_nored:")
    A("s_barrier")
    stamp(A)
    A("s_barrier")
    A("s_branch L_ld_p2")
    A("L_ld_h1:")
    A(f"s_cmp_eq_u32 s{S_J}, 1\ns_cbranch_scc1 L_ld_h1f")
    A(f"buffer_load_dwordx2 v[14:15], v12, s[32:35], 0 offen {SC}")
    A("s_branch L_ld_h1_ret")
    A("L_ld_h1f:")
    A(f"buffer_load_dwordx2 v[48:49], v11, s[32:35], 0 offen {SC}")
    A("s_branch L_ld_h1_ret")
    A("L_ld_h1w:")
    if opt("NOW"): A("s_branch L_ld_h1w_ret")
    A("s_cmp_ge_u32 s59, 54\ns_cbranch_scc1 L_ld_h1w_ret")
    srd(A, 84, W2, W2_BYTES)
    A(f"s_mul_i32 s50, s59, 40960\ns_mul_i32 s62, s{S_CT}, 160\ns_add_u32 s50, s50, s62")
    A(f"s_mul_i32 s62, s58, 5120\ns_add_u32 s62, s62, {LW}")
    for q in range(5):
        A(f"s_add_u32 m0, s62, {1024*q}\ns_nop 0")
        A(f"buffer_load_dwordx4 v{52+q}, s[84:87], s50 offen lds")
    A("s_branch L_ld_h1w_ret")
    A("L_ld_h2:")
    spin(A, "L_ld_sp", 14, 12, 32, xcc=True)
    A(f"v_and_b32 v50, 16, v1\nv_cmp_eq_u32 s[60:61], 0, v50\nv_cmp_ne_u32 vcc, s{S_XCC}, v15\ns_nop 3\ns_and_b64 vcc, vcc, s[60:61]")
    A(f"s_cmp_eq_u64 vcc, 0\ns_cselect_b32 s62, {1 if opt('LOCALH', 2) and opt('MAP1', 1) else 0}, 0")
    A(f"v_mov_b32 v50, {LCNT + 12}\nv_mov_b32 v51, s62\nds_write_b32 v50, v51")
    A("s_branch L_ld_h2_ret")
    A("L_ld_h4:")
    A(f"s_lshl_b32 s50, s{S_B}, 10\ns_add_u32 s50, s50, {ST_OFF}\ns_mov_b32 m0, {LST}\nv_lshlrev_b32 v13, 4, v1")
    A(f"buffer_load_dwordx4 v13, s[36:39], s50 offen {SC} lds")
    A(f"s_lshl_b32 s50, s{S_F0}, 2\ns_add_u32 s50, s50, {CS_OFF}")
    A("v_and_b32 v13, 31, v1\nv_lshlrev_b32 v13, 4, v13\nv_lshrrev_b32 v14, 5, v1\nv_lshlrev_b32 v14, 13, v14\nv_add_u32 v14, v13, v14")
    for b_ in range(8):
        A(f"buffer_load_dwordx4 v[{16+4*b_}:{19+4*b_}], v14, s[36:39], s50 offen {SC}")
        if b_ < 7: A("s_add_u32 s50, s50, 16384")
    A("s_branch L_ld_h4_ret")
    A("L_ld_h2w:")
    A("v_lshlrev_b32 v22, 4, v1")
    if opt("NOW"): A("s_branch L_ld_h2w_ret")
    A("s_cmp_ge_u32 s59, 54\ns_cbranch_scc1 L_ld_h2w_ret")
    for n in range(5):
        A(f"ds_read_b64_tr_b16 v[{24+4*n}:{25+4*n}], v57 offset:{32*n}")
        A(f"ds_read_b64_tr_b16 v[{26+4*n}:{27+4*n}], v57 offset:{32*n+1280}")
    A(f"s_mul_i32 s50, s{S_CT}, 54\ns_add_u32 s50, s50, s59\ns_mul_i32 s50, s50, 5120\ns_add_u32 s50, s50, {W2F_OFF}")
    A("v_add_u32 v23, 4096, v22\ns_waitcnt lgkmcnt(0)")
    for n in range(4):
        A(f"buffer_store_dwordx4 v[{24+4*n}:{27+4*n}], v22, s[32:35], s50 offen offset:{1024*n} {SC}")
    A(f"buffer_store_dwordx4 v[40:43], v23, s[32:35], s50 offen {SC}")
    A("s_branch L_ld_h2w_ret")
    A("L_ld_h3:")
    store_flags(A, 58, 1, 32, 64, xcc=True)
    A("s_branch L_ld_h3_ret")
def loader_p2(A):
    A("L_ld_p2:")
    if opt("PRIOL1"): A("s_setprio 0")
    stamp(A, 3)
    if opt("P1ONLY"):
        stamp_flush(A, 0, WS, 9)
        A("s_endpgm")
    if opt("WLATE", 1):
        A(f"v_mov_b32 v16, {LCNT + 20}")
        A(f"s_cmp_eq_u32 s{S_J}, 1\ns_cbranch_scc0 L_ld_ww")
        spin(A, "L_ld_spw", 48, 11, 32, xcc=True)
        A("v_mov_b32 v17, 1\nds_write_b32 v16, v17\ns_waitcnt lgkmcnt(0)\ns_branch L_ld_wgo")
        A("L_ld_ww:\nds_read_b32 v17, v16\ns_waitcnt lgkmcnt(0)\ns_nop 0\nv_readfirstlane_b32 s50, v17\ns_nop 3\ns_cmp_eq_u32 s50, 1\ns_cbranch_scc1 L_ld_wgo")
        A(f"s_sub_u32 s{S_SPIN}, s{S_SPIN}, 1\ns_cmp_eq_u32 s{S_SPIN}, 0\ns_cbranch_scc0 L_ld_ww")
        A("L_ld_wgo:")
    p2(A)

def p2(A):
    J = S_J
    HSC = "" if opt("HPLAIN") else SC
    WSC = "" if opt("WPLAIN") else SC
    if opt("W2NT"): WSC += " nt"
    ACC = 16
    SET = [96, 132, 168]
    XR = 204
    VP = 214
    acc = lambda nt, a: ACC + 4 * (4 * nt + a)
    srd(A, 24, WS, WS_USED)
    A("v_lshlrev_b32 v2, 4, v1\nv_add_u32 v3, 4096, v2")
    MXLAST = opt("MXLAST", 1)
    if MXLAST:
        A(f"s_add_u32 s44, s{J}, 12\ns_mov_b32 s45, s44")
    else:
        A(f"s_mov_b32 s44, s{J}\ns_mov_b32 s45, s44")
    A(f"s_mul_i32 s49, s{S_CT}, {54*5120}\ns_add_u32 s49, s49, {W2F_OFF}")
    def adv(r):
        A(f"s_add_u32 s{r}, s{r}, 4\ns_cmp_ge_u32 s{r}, 54\ns_cselect_b32 s{r}, s{J}, s{r}")
    def loadB(si):
        b = SET[si]
        A("s_mul_i32 s50, s44, 5120\ns_add_u32 s50, s50, s49")
        for n in range(4):
            A(f"buffer_load_dwordx4 v[{b+4*n}:{b+4*n+3}], v2, s[24:27], s50 offen offset:{1024*n} {WSC}")
        A(f"buffer_load_dwordx4 v[{b+16}:{b+19}], v3, s[24:27], s50 offen {WSC}")
        adv(44)
    NB0 = opt("NB0", 3)
    for si in range(NB0): loadB(si)
    A(f"s_lshr_b32 s50, s{S_T0}, 1\ns_lshl_b32 s50, s50, 7\ns_add_u32 s50, s50, {FH_OFF}")
    if MXLAST:
        A("v_min_u32 v14, 10, v1\nv_add_u32 v14, 5, v14\nv_lshlrev_b32 v14, 3, v14\nv_add_u32 v15, s50, v14")
    else:
        A("v_and_b32 v14, 15, v1\nv_lshlrev_b32 v14, 3, v14\nv_add_u32 v15, s50, v14")
    A(f"s_cmp_eq_u32 s{J}, 0\ns_cbranch_scc0 L_p2_np0")
    A(f"buffer_load_dwordx2 v[{VP}:{VP+1}], v15, s[24:27], 0 offen {SC}")
    A("L_p2_np0:")
    srd(A, 28, WS, 4 * HF_TILE)
    A(f"s_mul_i32 s50, s{S_T0}, {4*HF_TILE}")
    if HF_OFF: A(f"s_add_u32 s50, s50, {HF_OFF}")
    A("s_add_u32 s28, s28, s50\ns_addc_u32 s29, s29, 0")
    srd(A, 32, X_, X_BYTES)
    srd(A, 40, OUT, X_BYTES)
    for a_ in range(4):
        A(f"s_add_u32 s50, s{J}, {a_}\ns_and_b32 s50, s50, 3\ns_mul_i32 s50, s50, {HF_TILE}\nv_add_u32 v{4+a_}, s50, v2")
    RSTR = 336
    A(f"s_lshl_b32 s50, s{J}, 6\nv_add_u32 v8, s50, v1")
    A(f"s_mov_b32 s50, 3277\ns_mul_i32 s38, s{S_T0}, 1280\ns_mul_i32 s39, s{S_CT}, 160\ns_add_u32 s38, s38, s39")
    for n in range(5):
        A(f"v_add_u32 v9, {256*n}, v8\nv_mul_lo_u32 v10, s50, v9\nv_lshrrev_b32 v10, 16, v10")
        A("v_mul_u32_u24 v11, 20, v10\nv_sub_u32 v11, v9, v11")
        A(f"v_mul_u32_u24 v12, {RSTR}, v10\nv_lshlrev_b32 v13, 4, v11\nv_add_u32 v{220+n}, v12, v13")
        A("v_lshrrev_b32 v12, 5, v10\nv_mul_u32_u24 v12, 40960, v12\nv_and_b32 v10, 31, v10\nv_mul_u32_u24 v10, 81920, v10")
        A(f"v_lshlrev_b32 v11, 3, v11\nv_add3_u32 v{225+n}, v10, v12, v11")
    A(f"v_and_b32 v9, 15, v1\nv_mul_u32_u24 v9, {RSTR}, v9\nv_lshrrev_b32 v10, 4, v1\nv_lshlrev_b32 v10, 4, v10\nv_add_u32 v230, v9, v10")
    FFR = 236
    A(f"s_add_u32 s50, s{J}, 2\ns_and_b32 s50, s50, 3\ns_lshl_b32 s50, s50, 3\nv_lshrrev_b32 v9, 4, v1\nv_lshlrev_b32 v9, 1, v9\nv_add_u32 v9, s50, v9")
    A(f"s_mov_b32 s51, 0x3a000000\ns_mov_b32 s52, 0xba000000\ns_cmp_lt_u32 s{S_CT}, 4\ns_cselect_b32 s52, s51, s52")
    A("v_and_b32 v10, 15, v1\nv_lshlrev_b32 v10, 6, v10")
    for a_ in range(4):
        A(f"s_add_u32 s50, s{J}, {a_}\ns_and_b32 s50, s50, 3\ns_lshr_b32 s53, s50, 1\ns_lshl_b32 s53, s53, 5\ns_and_b32 s50, s50, 1\ns_lshl_b32 s50, s50, 10")
        A(f"s_add_u32 s50, s50, s53\ns_add_u32 s50, s50, s{S_T0}\nv_add_u32 v11, s50, v10")
        for k, ds in enumerate([0, 1, 32, 33]):
            A(f"v_add_u32 v12, {ds}, v9\nv_mul_u32_u24 v12, v11, v12\nv_and_b32 v12, 0x7ff, v12\nv_cvt_f32_u32 v12, v12")
            A(f"v_mul_f32 v13, s51, v12\nv_mul_f32 v12, s52, v12\nv_cos_f32 v13, v13\nv_sin_f32 v12, v12\ns_nop 0\nv_cvt_pk_bf16_f32 v{FFR+4*a_+k}, v13, v12")
    def loadA(si):
        b = SET[si] + 20
        A("s_lshl_b32 s50, s45, 10")
        for a_ in range(4):
            A(f"buffer_load_dwordx4 v[{b+4*a_}:{b+4*a_+3}], v{4+a_}, s[28:31], s50 offen {HSC}")
        adv(45)
    def loadT(si):
        b = SET[si]
        A("s_mov_b32 s50, s46")
        for n in range(5):
            A(f"buffer_load_dwordx4 v[{b+4*n}:{b+4*n+3}], v10, s[24:27], s50 offen {SC}")
            if n < 4: A("s_add_u32 s50, s50, s47")
    def mfmas(si):
        b = SET[si]
        for a_ in range(4):
            for nt in range(5):
                c = acc(nt, a_)
                if not opt("NOCOMP2"):
                    A(f"{MFMA16} v[{c}:{c+3}], v[{b+4*nt}:{b+4*nt+3}], v[{b+20+4*a_}:{b+23+4*a_}], v[{c}:{c+3}]")
    def last_step(si):
        b = SET[si]
        def grp(a_):
            for nt in range(5):
                c = acc(nt, a_)
                if not opt("NOCOMP2"):
                    A(f"{MFMA16} v[{c}:{c+3}], v[{b+4*nt}:{b+4*nt+3}], v[{FFR+4*a_}:{FFR+4*a_+3}], v[{c}:{c+3}]")
        def addr(a_):
            A(f"s_add_u32 s50, s{J}, {a_}\ns_and_b32 s50, s50, 3\ns_mul_i32 s50, s50, {16*336}\ns_mul_i32 s51, s{J}, {64*336}\ns_add_u32 s50, s50, s51\nv_add_u32 v{232+a_}, s50, v230")
        def wr(a_):
            for nt in range(5):
                c = acc(nt, a_)
                A(f"ds_write_b128 v{232+a_}, v[{c}:{c+3}] offset:{nt*64}")
        grp(0); addr(0); addr(1); grp(1); addr(2); wr(0); grp(2); addr(3); wr(1); grp(3); A("s_nop 3"); wr(2); A("s_nop 3"); wr(3)
    def xorA(si):
        b = SET[si] + 20
        for k in range(16): A(f"v_xor_b32 v{b+k}, s48, v{b+k}")
        A("s_nop 0")
    for i in range(80): A(f"v_mov_b32 v{ACC+i}, 0")
    A(f"v_lshrrev_b32 v10, 4, v1\nv_mul_u32_u24 v10, {TF_ROW}, v10\nv_and_b32 v11, 15, v1")
    A(f"s_mul_i32 s50, s{S_CT}, 80\nv_add_u32 v12, s50, v11\nv_sub_u32 v13, 576, v12")
    A(f"s_cmp_lt_u32 s{S_CT}, 4\ns_cselect_b64 s[60:61], -1, 0\nv_cndmask_b32 v12, v13, v12, s[60:61]")
    A("v_lshlrev_b32 v12, 4, v12\nv_add_u32 v10, v10, v12")
    A(f"s_sub_u32 s46, 32, s{S_T0}\ns_and_b32 s46, s46, 31\ns_cmp_lt_u32 s{S_CT}, 4\ns_cselect_b32 s46, s{S_T0}, s46")
    A(f"s_mul_i32 s46, s46, {TF_T0}\ns_add_u32 s46, s46, {TF_OFF}")
    A(f"s_mov_b32 s47, 256\ns_mov_b32 s50, -256\ns_cmp_lt_u32 s{S_CT}, 4\ns_cselect_b32 s47, s47, s50\ns_cselect_b32 s50, 0, 1024\ns_cselect_b32 s48, 0x80000000, 0")
    A("s_add_u32 s46, s46, s50")
    A(f"s_add_u32 s50, s{J}, 2\ns_and_b32 s50, s50, 3\ns_mul_i32 s50, s50, {4*TF_ROW}\ns_add_u32 s46, s46, s50")
    A(f"s_lshl_b32 s50, s{S_CT}, 10\ns_add_u32 s50, s50, {FT_OFF}\nv_lshlrev_b32 v12, 3, v1\nv_add_u32 v12, s50, v12")
    A("v_and_b32 v13, 15, v1\nv_lshlrev_b32 v13, 3, v13\nv_add_u32 v13, s50, v13\nv_add_u32 v13, 512, v13")
    A(f"s_lshr_b32 s50, s{S_T0}, 1\ns_lshl_b32 s50, s50, 7\ns_add_u32 s50, s50, {FH_OFF}\nv_min_u32 v9, 4, v1\nv_lshlrev_b32 v9, 3, v9\nv_add_u32 v9, s50, v9")
    A(f"s_cmp_eq_u32 s{J}, 0\ns_cbranch_scc0 L_p2_lw")
    A("s_waitcnt vmcnt(0)")
    if opt("SPINSTAMP") == "L_p2_sp1": stamp(A)
    spin(A, "L_p2_sp1", VP, 15, 24, xcc=True)
    A(f"v_mov_b32 v14, {LCNT + 16}\nv_mov_b32 v15, 1\nds_write_b32 v14, v15\ns_waitcnt lgkmcnt(0)")
    A("s_branch L_p2_go")
    A("L_p2_lw:")
    if opt("P2ONLY"): A("s_branch L_p2_go")
    A(f"v_mov_b32 v14, {LCNT + 16}")
    A("L_p2_lw1:\nds_read_b32 v15, v14\ns_waitcnt lgkmcnt(0)\ns_nop 0\nv_readfirstlane_b32 s50, v15\ns_nop 3\ns_cmp_eq_u32 s50, 1\ns_cbranch_scc1 L_p2_go")
    A(f"s_sleep 1\ns_sub_u32 s{S_SPIN}, s{S_SPIN}, 1\ns_cmp_eq_u32 s{S_SPIN}, 0\ns_cbranch_scc0 L_p2_lw1")
    A("L_p2_go:")
    stamp(A, 5)
    for si in range(NB0): loadA(si)
    for si in range(NB0, 3):
        loadB(si); loadA(si)
    def loadX():
        for n in range(5):
            A(f"buffer_load_dwordx2 v[{XR+2*n}:{XR+2*n+1}], v{225+n}, s[32:35], s38 offen")
    XLATE = opt("XLATE", 1)
    if not XLATE: loadX()
    def step(si, vm, pre):
        A(f"s_waitcnt vmcnt({vm})")
        mfmas(si)
        pre()
    reg = lambda si: (lambda: (loadB(si), loadA(si)))
    order = [(si, 4) for si in range(NB0)] + [(si, 9) for si in range(NB0, 3)] + ([] if XLATE else [(-1, 5)])
    for st_ in range(3):
        idx = max(i for i, (si, n) in enumerate(order) if si == st_)
        younger = sum(n for (si, n) in order[idx+1:]) + 9 * st_
        step(st_, younger, reg(st_))
        if opt("STEPSTAMP"): stamp(A)
    stamp(A)
    if MXLAST: A(f"buffer_load_dwordx2 v[{VP+4}:{VP+5}], v9, s[24:27], 0 offen {SC}")
    A("s_mov_b32 s51, 2")
    A("L_p2_loop:")
    for si in range(3):
        step(si, 18, reg(si))
        if opt("STEPSTAMP"): stamp(A)
    A("s_cmp_eq_u32 s51, 2\ns_cbranch_scc0 L_p2_nt")
    if MXLAST and not opt("NOMCHK"): spin(A, "L_p2_spm", VP + 4, 9, 24, xcc=True)
    if not opt("TLATE", 1):
        A(f"buffer_load_dwordx2 v[{VP}:{VP+1}], v12, s[24:27], 0 offen {SC}\nbuffer_load_dwordx2 v[{VP+2}:{VP+3}], v13, s[24:27], 0 offen {SC}")
    A("L_p2_nt:")
    A("s_sub_u32 s51, s51, 1\ns_cmp_lg_u32 s51, 0\ns_cbranch_scc1 L_p2_loop")
    stamp(A)
    TLATE = opt("TLATE", 1)
    if TLATE:
        A(f"buffer_load_dwordx2 v[{VP}:{VP+1}], v12, s[24:27], 0 offen {SC}\nbuffer_load_dwordx2 v[{VP+2}:{VP+3}], v13, s[24:27], 0 offen {SC}")
    step(0, 18, reg(0))
    def tcheck(tag, epoch):
        if not opt("NOTCHK"):
            spin(A, tag + "2", VP, 12, 24)
            spin(A, tag + "3", VP + 2, 13, 24)
        if epoch:
            A(f"s_cmp_eq_u32 s2, 0\ns_cbranch_scc0 {tag}_noep\ns_cmp_eq_u32 s{J}, 0\ns_cbranch_scc0 {tag}_noep")
            A(f"v_mov_b32 v14, s{S_E}\nv_mov_b32 v15, {EP_OFF}\ns_mov_b64 exec, 1\nbuffer_store_dword v14, v15, s[24:27], 0 offen {SC}\ns_mov_b64 exec, -1")
            A(f"{tag}_noep:")
    if not TLATE: tcheck("L_p2_sp", True)
    stamp(A)
    A(f"s_cmp_lt_u32 s{J}, 2\ns_cbranch_scc0 L_p2_hi")
    step(1, 18, reg(1))
    step(2, 18, lambda: (tcheck("L_p2_lo", True) if TLATE else None, loadT(2), loadX() if XLATE else None))
    xq = 5 if XLATE else 0
    step(0, 14 + xq, lambda: None)
    step(1, 5 + xq, lambda: None)
    A(f"s_waitcnt vmcnt({xq})"); last_step(2)
    A("s_branch L_p2_red")
    A("L_p2_hi:")
    step(1, 18, lambda: ((A("s_waitcnt vmcnt(9)"), tcheck("L_p2_hi", False)) if TLATE else None, loadT(1), loadX() if XLATE else None))
    step(2, 14 + xq, lambda: None)
    step(0, 5 + xq, lambda: None)
    A(f"s_waitcnt vmcnt({xq})"); last_step(1)
    A("L_p2_red:")
    stamp(A)
    A("s_waitcnt lgkmcnt(0)\ns_barrier")
    R0 = 96
    def rd(n):
        for w in range(4):
            r = R0 + 16 * n + 4 * w
            A(f"ds_read_b128 v[{r}:{r+3}], v{220+n} offset:{w*64*336}")
    rd(0); rd(1); rd(2)
    OSC = SC if opt("OUTSC") else ""
    for n in range(5):
        r = R0 + 16 * n; x = XR + 2 * n
        if n == 0: A("s_waitcnt vmcnt(0) lgkmcnt(8)")
        elif n == 1: A("s_waitcnt lgkmcnt(8)")
        elif n == 2: A("s_waitcnt lgkmcnt(8)")
        elif n == 3: A("s_waitcnt lgkmcnt(4)")
        else: A("s_waitcnt lgkmcnt(0)")
        A(f"v_pk_add_f32 v[{r}:{r+1}], v[{r}:{r+1}], v[{r+4}:{r+5}]\nv_pk_add_f32 v[{r+2}:{r+3}], v[{r+2}:{r+3}], v[{r+6}:{r+7}]")
        A(f"v_pk_add_f32 v[{r+8}:{r+9}], v[{r+8}:{r+9}], v[{r+12}:{r+13}]\nv_pk_add_f32 v[{r+10}:{r+11}], v[{r+10}:{r+11}], v[{r+14}:{r+15}]")
        if n + 3 < 5: pass
        A(f"v_lshlrev_b32 v{r+4}, 16, v{x}\nv_and_b32 v{r+5}, 0xffff0000, v{x}\nv_lshlrev_b32 v{r+6}, 16, v{x+1}\nv_and_b32 v{r+7}, 0xffff0000, v{x+1}")
        A(f"v_pk_add_f32 v[{r}:{r+1}], v[{r}:{r+1}], v[{r+8}:{r+9}]\nv_pk_add_f32 v[{r+2}:{r+3}], v[{r+2}:{r+3}], v[{r+10}:{r+11}]")
        A(f"v_pk_add_f32 v[{r}:{r+1}], v[{r}:{r+1}], v[{r+4}:{r+5}]\nv_pk_add_f32 v[{r+2}:{r+3}], v[{r+2}:{r+3}], v[{r+6}:{r+7}]")
        A(f"v_cvt_pk_bf16_f32 v{x}, v{r}, v{r+1}\nv_cvt_pk_bf16_f32 v{x+1}, v{r+2}, v{r+3}")
        A(f"buffer_store_dwordx2 v[{x}:{x+1}], v{225+n}, s[40:43], s38 offen {OSC}")
        if n == 0: rd(3)
        if n == 1: rd(4)
    stamp(A)
    if opt("DBGT"):
        A(f"s_waitcnt vmcnt(0)\ns_memrealtime s[90:91]\ns_waitcnt lgkmcnt(0)")
        A(f"s_cmp_eq_u32 s{S_J}, 1\ns_cbranch_scc0 L_dbg_d\ns_cmp_lt_u32 s2, 8\ns_cbranch_scc0 L_dbg_d")
        srd(A, 92, DBG, 256)
        A("s_lshl_b32 s96, s2, 3\nv_mov_b32 v4, s88\nv_mov_b32 v5, s90\nv_mov_b32 v6, 0\ns_mov_b64 exec, 1\nbuffer_store_dwordx2 v[4:5], v6, s[92:95], s96 offen\ns_waitcnt vmcnt(0)")
        A("L_dbg_d:")
    if opt("CLK") and asmlib.PROFILE:
        A("s_memtime s[90:91]\ns_waitcnt lgkmcnt(0)\ns_sub_u32 s90, s90, s88\ns_mov_b32 m0, 62\nv_writelane_b32 v0, s90, m0")
    stamp_flush(A, 0, WS, 9)
    A("s_endpgm")

def gen(A, name):
    global KNAME
    KNAME = name
    kernel_head(A, name)
    entry(A)
    if opt("P2ONLY"):
        A(f"s_mov_b32 s{S_SPIN}, 1\ns_cmp_lt_u32 s3, 4\ns_cbranch_scc1 L_end\ns_sub_u32 s{S_J}, s3, 4\ns_waitcnt lgkmcnt(0)\ns_branch L_ld_p2")
    lay = opt("LAYOUT", 0)
    if lay == 0:
        A("s_cmp_ge_u32 s3, 4\ns_cbranch_scc1 L_loader")
        jobs_issue(A)
        A(f"s_cmp_lt_u32 s{S_C}, 5\ns_cbranch_scc1 L_mx")
        p1_hh(A); p1_mx(A); loader(A); loader_p2(A)
    elif lay == 1:
        A("s_cmp_lt_u32 s3, 4\ns_cbranch_scc1 L_comp")
        loader(A)
        A("L_comp:")
        jobs_issue(A)
        A(f"s_cmp_lt_u32 s{S_C}, 5\ns_cbranch_scc1 L_mx")
        p1_hh(A); p1_mx(A); loader_p2(A)
    elif lay == 2:
        A("s_cmp_ge_u32 s3, 4\ns_cbranch_scc1 L_loader")
        jobs_issue(A)
        A(f"s_cmp_lt_u32 s{S_C}, 5\ns_cbranch_scc1 L_mx\ns_branch L_hh")
        loader(A)
        p1_hh(A); p1_mx(A); loader_p2(A)
    A("L_end:\ns_endpgm\nL_code_end:")
```

```python
from asmlib import *
import asmlib
from layout import *

MFMA32 = "v_mfma_f32_32x32x16_bf16"
MFMA16 = "v_mfma_f32_16x16x32_bf16"
RING = 32768; NS = 4
SLOT = 20480; NS2 = 6
LX = NS2 * SLOT
LW = 132 * 1024
LST = 152 * 1024
LCS = LST + 1024
LCNT = LST + 2048
LDS_TOTAL = LCNT + 64
X_, SRE, SIM, HRE, HIM, WS = 4, 6, 8, 10, 12, 16
W1, W2, OUT, DBG = 64, 66, 68, 70
S_B, S_C, S_F0, S_J = 18, 19, 20, 21
S_T0, S_CT = 72, 73
S_SPIN = 74
SC = "sc1"
SPIN_MAX = 200000
CPW = 3

MAGIC = 0x5A3C96E1
S_E, S_EM = 75, 76
S_XCC = 77
S_LOCAL = 78

def spin(A, name, vp, vaddr, srdp, xcc=False):
    A(f"{name}:")
    if xcc:
        A(f"v_xor_b32 v{vp+1}, s{S_EM}, v{vp+1}\nv_cmp_ne_u32 vcc, s{S_E}, v{vp}\nv_cmp_lt_u32 s[60:61], 15, v{vp+1}\ns_nop 3\ns_or_b64 vcc, vcc, s[60:61]")
    else:
        A(f"v_cmp_ne_u32 vcc, s{S_E}, v{vp}\nv_cmp_ne_u32 s[60:61], s{S_EM}, v{vp+1}\ns_nop 3\ns_or_b64 vcc, vcc, s[60:61]")
    A(f"s_cbranch_vccz {name}_ok")
    if opt("P2ONLY"): A(f"s_branch {name}_ok")
    A(f"s_sub_u32 s{S_SPIN}, s{S_SPIN}, 1\ns_cmp_eq_u32 s{S_SPIN}, 0\ns_cbranch_scc1 {name}_ok")
    A(f"s_sleep {opt('SLEEP', 4)}")
    A(f"buffer_load_dwordx2 v[{vp}:{vp+1}], v{vaddr}, s[{srdp}:{srdp+3}], 0 offen {SC}\ns_waitcnt vmcnt(0)")
    if opt("SPINSTAMP") == name: stamp(A)
    A(f"s_branch {name}\n{name}_ok:")

def store_flags(A, vaddr, nlanes, srdp, vt, xcc=False, local=None):
    if xcc:
        A(f"s_xor_b32 s62, s{S_EM}, s{S_XCC}\nv_mov_b32 v{vt}, s{S_E}\nv_mov_b32 v{vt+1}, s62\ns_mov_b64 exec, {(1 << nlanes) - 1}")
    else:
        A(f"v_mov_b32 v{vt}, s{S_E}\nv_mov_b32 v{vt+1}, s{S_EM}\ns_mov_b64 exec, {(1 << nlanes) - 1}")
    if local:
        A(f"s_cmp_eq_u32 s{S_LOCAL}, 1\ns_cbranch_scc1 {local}_fp")
    A(f"buffer_store_dwordx2 v[{vt}:{vt+1}], v{vaddr}, s[{srdp}:{srdp+3}], 0 offen {SC}")
    if local:
        A(f"s_branch {local}_fd\n{local}_fp:")
        A(f"buffer_store_dwordx2 v[{vt}:{vt+1}], v{vaddr}, s[{srdp}:{srdp+3}], 0 offen")
        A(f"{local}_fd:")
    A("s_mov_b64 exec, -1")

def flag_addr_h(A, v):
    A(f"s_lshl_b32 s62, s{S_B}, 4\ns_add_u32 s62, s62, s{S_C}\ns_lshl_b32 s62, s62, 3\ns_add_u32 s62, s62, {FH_OFF}\nv_mov_b32 v{v}, s62")
def flag_addr_t(A, v):
    A(f"s_lshl_b32 s62, s{S_C}, 4\ns_add_u32 s62, s62, s{S_B}\ns_lshl_b32 s62, s62, 3\ns_add_u32 s62, s62, {FT_OFF}")
    A(f"v_lshlrev_b32 v{v}, 10, v1\nv_add_u32 v{v}, s62, v{v}")
def flag_addr_early(A, v):
    A(f"s_lshl_b32 s62, s{S_B}, 4\ns_add_u32 s62, s62, s{S_C}\ns_lshl_b32 s62, s62, 3\ns_add_u32 s58, s62, {FR1_OFF}")
    A(f"s_lshl_b32 s62, s{S_C}, 4\ns_add_u32 s62, s62, s{S_B}\ns_lshl_b32 s62, s62, 3\ns_add_u32 s62, s62, {FC1_OFF}")
    A(f"s_cmp_eq_u32 s3, 1\ns_cselect_b32 s58, s62, s58\nv_mov_b32 v{v}, s58")

def epoch_ready(A):
    A("s_waitcnt lgkmcnt(0)")
    A(f"s_add_u32 s{S_E}, s{S_E}, 1\ns_xor_b32 s{S_EM}, s{S_E}, {MAGIC}")
    srd(A, 48, WS, WS_USED)

def lds_arrive(A, word, vt, sdst):
    A(f"v_mov_b32 v{vt}, {LCNT + 4*word}\nv_mov_b32 v{vt+1}, 1\ns_mov_b64 exec, 1")
    A(f"ds_add_rtn_u32 v{vt+1}, v{vt}, v{vt+1}\ns_waitcnt lgkmcnt(0)\ns_mov_b64 exec, -1\ns_nop 0")
    A(f"v_readfirstlane_b32 s{sdst}, v{vt+1}")
    A("s_nop 3")

def code_prefetch(A, tag, mode):
    A(f"s_getpc_b64 s[50:51]\nJ_pc{tag}:")
    A(f"s_sub_u32 s50, s50, J_pc{tag}-{KNAME}\ns_subb_u32 s51, s51, 0")
    A(f"s_mov_b32 s52, ((L_code_end-{KNAME})>>7)-1")
    def lines(first_expr, n, dst):
        A(f"v_add_u32 v22, {first_expr}, v1\nv_min_u32 v22, s52, v22\nv_lshlrev_b32 v22, 7, v22")
        A("v_mov_b32 v23, s51\nv_add_co_u32 v22, vcc, s50, v22\ns_nop 1\nv_addc_co_u32 v23, vcc, 0, v23, vcc")
        A(f"global_load_dword v{dst}, v[22:23], off")
    if mode == 0:
        A("s_lshr_b32 s53, s2, 3\ns_mul_i32 s53, s53, 6\ns_mov_b64 exec, 63")
        lines("s53", 1, 127)
        A("s_mov_b64 exec, -1")
    elif mode == 4:
        A("s_lshr_b32 s53, s2, 3\ns_and_b32 s53, s53, 3\ns_mul_i32 s53, s53, 52\ns_mov_b32 exec_hi, 0xfffff")
        lines("s53", 1, 127)
        A("s_mov_b64 exec, -1")
    elif mode == 6:
        A("s_lshr_b32 s53, s2, 3\ns_and_b32 s53, s53, 7\ns_mul_i32 s53, s53, 26\ns_mov_b32 exec_hi, 0\ns_mov_b32 exec_lo, 0x3ffffff")
        lines("s53", 1, 127)
        A("s_mov_b64 exec, -1")
    elif mode == 5:
        A("s_lshr_b32 s53, s2, 3\ns_and_b32 s53, s53, 1\ns_mul_i32 s53, s53, 104")
        lines("s53", 1, 126)
        A("s_add_u32 s53, s53, 64\ns_mov_b32 exec_hi, 0xff")
        lines("s53", 1, 127)
        A("s_mov_b64 exec, -1")
    elif mode in (1, 2):
        for n in range(4): lines(64 * n, 1, (124 if mode == 1 else 24) + n)
    elif mode == 3 and tag == "a":
        lines(0, 1, 125)
        A(f"s_mov_b32 s53, (L_loader-{KNAME})>>7\ns_mov_b64 exec, 0xffffff")
        lines("s53", 1, 126)
        A("s_mov_b64 exec, -1")
    else:
        lines(64, 1, 24); lines(128, 1, 25)

def entry(A):
    A("s_cmp_ge_u32 s2, 256\ns_cbranch_scc1 L_end")
    A(f"s_load_dwordx4 s[4:7], s[0:1], {KA_X}")
    A(f"s_load_dwordx4 s[8:11], s[0:1], {KA_SIM}")
    A(f"s_load_dwordx2 s[12:13], s[0:1], {KA_HIM}")
    A(f"s_load_dwordx4 s[64:67], s[0:1], {KA_W1}")
    A(f"s_load_dwordx4 s[68:71], s[0:1], {KA_OUT}")
    A(f"s_load_dwordx2 s[16:17], s[0:1], {KA_WS}")
    A("v_lshrrev_b32 v2, 6, v0\nv_and_b32 v1, 63, v0\ns_nop 0\nv_readfirstlane_b32 s3, v2")
    if opt("CODEPF", 1) and opt("CPMODE", 4) in (0, 1, 3, 4, 5, 6):
        A(f"s_nop 3\ns_cmp_eq_u32 s3, {CPW}\ns_cbranch_scc0 L_nocp")
        code_prefetch(A, "a", opt("CPMODE", 4))
        A("L_nocp:")
    A("s_and_b32 s24, s2, 7\ns_lshr_b32 s25, s2, 3\ns_lshr_b32 s27, s25, 3\ns_and_b32 s28, s25, 7")
    if opt("MAP1", 1):
        A(f"s_lshl_b32 s26, s24, 1\ns_lshr_b32 s29, s25, 4\ns_add_u32 s{S_B}, s26, s29\ns_and_b32 s{S_C}, s25, 15")
    else:
        A(f"s_lshr_b32 s26, s24, 1\ns_lshl_b32 s26, s26, 2\ns_add_u32 s{S_B}, s26, s27")
        A(f"s_and_b32 s26, s24, 1\ns_lshl_b32 s26, s26, 3\ns_add_u32 s{S_C}, s26, s28")
    A(f"s_lshl_b32 s26, s{S_C}, 6\ns_lshl_b32 s29, s{S_C}, 7\ns_sub_u32 s29, s29, 320")
    A(f"s_cmp_lt_u32 s{S_C}, 5\ns_cselect_b32 s{S_F0}, s26, s29")
    A(f"s_lshl_b32 s24, s24, 2\ns_add_u32 s{S_T0}, s24, s27\ns_mov_b32 s{S_CT}, s28")
    A(f"s_mov_b32 s{S_SPIN}, {SPIN_MAX}")
    A(f"s_getreg_b32 s{S_XCC}, hwreg(HW_REG_XCC_ID)\ns_and_b32 s{S_XCC}, s{S_XCC}, 15")
    if opt("DBGT"): A("s_memrealtime s[88:89]")
    stamp_init(A)
    if opt("T0STAMP"): stamp(A, force=True)
    if opt("P2ONLY"): args_ready(A)

def args_ready(A):
    A("s_waitcnt lgkmcnt(0)")
    if opt("CLK"): A("s_memtime s[88:89]\ns_waitcnt lgkmcnt(0)")
    A(f"s_mov_b32 s62, {EP_OFF}\ns_load_dword s{S_E}, s[{WS}:{WS+1}], s62")
    stamp(A, 0, force=True)

def tlb_touch(A, dst):
    srd(A, 40, OUT, X_BYTES); srd(A, 44, W2, W2_BYTES)
    A("v_lshlrev_b32 v22, 20, v1")
    A(f"s_mov_b64 exec, {(1 << ((WS_USED >> 20) + 1)) - 1}\nbuffer_load_dword v{dst}, v22, s[36:39], 0 offen {SC}")
    A(f"s_mov_b64 exec, 7\nbuffer_load_dword v{dst+1}, v22, s[40:43], 0 offen {SC}\nbuffer_load_dword v{dst+2}, v22, s[44:47], 0 offen\ns_mov_b64 exec, -1")

def jobs_issue(A):
    A("s_cmp_eq_u32 s3, 0\ns_cbranch_scc1 J_x_i\ns_cmp_eq_u32 s3, 1\ns_cbranch_scc1 J_c_i")
    args_ready(A)
    srd(A, 36, WS, WS_USED)
    if opt("TLBPF", 1) and not opt("TLBLATE"):
        A("s_cmp_eq_u32 s3, 2\ns_cbranch_scc0 J_i_done")
        tlb_touch(A, 125)
        if opt("INPF"):
            srd(A, 40, X_, X_BYTES); srd(A, 44, W1, W1_BYTES)
            A("v_lshlrev_b32 v22, 7, v1\ns_mul_i32 s50, s2, 10240\ns_mul_i32 s51, s2, 8704")
            A("buffer_load_dword v124, v22, s[40:43], s50 offen\nbuffer_load_dword v123, v22, s[44:47], s51 offen")
            A("s_add_u32 s50, s50, 8192\ns_add_u32 s51, s51, 8192\ns_mov_b64 exec, 0xffff")
            A("buffer_load_dword v122, v22, s[40:43], s50 offen\ns_mov_b64 exec, 15\nbuffer_load_dword v121, v22, s[44:47], s51 offen\ns_mov_b64 exec, -1")
    A("s_branch J_i_done")
    A("J_x_i:")
    A(f"s_lshr_b32 s48, s{S_C}, 2\ns_and_b32 s49, s{S_C}, 3")
    A(f"s_lshl_b32 s50, s{S_B}, 1\ns_and_b32 s51, s48, 1\ns_add_u32 s50, s50, s51")
    A("s_lshr_b32 s51, s48, 1\ns_lshl_b32 s51, s51, 5\ns_add_u32 s50, s50, s51")
    A("s_lshl_b32 s51, s49, 9\ns_add_u32 s50, s50, s51\ns_mul_i32 s50, s50, 1280")
    A("v_lshrrev_b32 v22, 3, v1\ns_mov_b32 s51, 81920\nv_mul_lo_u32 v22, s51, v22")
    A("v_and_b32 v23, 7, v1\nv_lshlrev_b32 v23, 4, v23\nv_add_u32 v22, v22, v23")
    A(f"v_mov_b32 v20, {LCNT}\nv_mov_b32 v24, 0\nv_mov_b32 v25, 0\nv_mov_b32 v26, 0\nv_mov_b32 v27, 0\nds_write_b128 v20, v[24:27]\nds_write_b128 v20, v[24:27] offset:16")
    args_ready(A)
    srd(A, 24, X_, X_BYTES)
    for i in range(10):
        A(f"buffer_load_dwordx4 v[{32+4*i}:{35+4*i}], v22, s[24:27], s50 offen offset:{128*i}")
    srd(A, 36, WS, WS_USED)
    A("s_branch J_i_done")
    A("J_c_i:")
    A("v_lshrrev_b32 v22, 4, v1\nv_mul_u32_u24 v22, 3456, v22\nv_and_b32 v23, 15, v1\nv_lshlrev_b32 v23, 4, v23\nv_add_u32 v22, v22, v23")
    A(f"s_mul_i32 s50, s{S_B}, {40*3456}\ns_lshl_b32 s51, s{S_F0}, 1\ns_add_u32 s50, s50, s51")
    A(f"s_cmp_eq_u32 s{S_C}, 0\ns_cbranch_scc0 J_c_np")
    A("v_and_b32 v23, 7, v1\nv_lshlrev_b32 v23, 4, v23\nv_bfe_u32 v24, v1, 3, 2\nv_lshlrev_b32 v24, 15, v24\nv_add_u32 v23, v23, v24")
    A(f"v_add_u32 v23, {16384+8192+4096}, v23")
    A("v_mov_b32 v24, 0xbf803f80\nv_mov_b32 v25, 0x3f80bf80\nv_mov_b32 v26, 0xbf803f80\nv_mov_b32 v27, 0x3f80bf80")
    A("ds_write_b128 v23, v[24:27]")
    A("J_c_np:")
    args_ready(A)
    srd(A, 28, W1, W1_BYTES)
    for i in range(10):
        A(f"buffer_load_dwordx4 v[{32+4*i}:{35+4*i}], v22, s[28:31], s50 offen")
        if i < 9: A(f"s_add_u32 s50, s50, {4*3456}")
    srd(A, 36, WS, WS_USED)
    A("J_i_done:")

def dpp_add(A, r, ctrl):
    A(f"v_add_f32_dpp v{r}, v{r}, v{r} {ctrl} row_mask:0xf bank_mask:0xf")

def jobs_finish(A, nG_, tagx):
    nG = tagx
    class _N(str):
        pass
    A("s_cmp_eq_u32 s3, 0\ns_cbranch_scc1 %s\ns_cmp_eq_u32 s3, 1\ns_cbranch_scc1 %s\ns_branch %s" % (f"J_x_{nG}", f"J_c_{nG}", f"J_done_{nG}"))
    A(f"J_x_{nG}:")
    A("v_mov_b32 v22, 0\nv_mov_b32 v23, 0\nv_mov_b32 v24, 0\nv_mov_b32 v25, 0\ns_mov_b32 s52, 0x3f803f80")
    for i in range(10):
        A(f"s_waitcnt vmcnt({9-i+nG_})")
        for k in range(4):
            r = 32 + 4 * i + k
            A(f"v_dot2_f32_bf16 v{22+(k&1)}, v{r}, s52, v{22+(k&1)}")
            A(f"v_dot2_f32_bf16 v{24+(k&1)}, v{r}, v{r}, v{24+(k&1)}")
    A("s_nop 2\nv_add_f32 v22, v22, v23\nv_add_f32 v24, v24, v25\ns_nop 1")
    for ctrl in ["quad_perm:[1,0,3,2]", "quad_perm:[2,3,0,1]", "row_half_mirror"]:
        dpp_add(A, 22, ctrl); dpp_add(A, 24, ctrl); A("s_nop 0")
    A("s_mov_b32 s52, 0x3acccccd\nv_mul_f32 v22, s52, v22\nv_mul_f32 v24, s52, v24")
    A("v_fma_f32 v24, -v22, v22, v24\nv_max_f32 v24, 0, v24\nv_add_f32 v24, 0x3727c5ac, v24\nv_rsq_f32 v23, v24")
    A(f"s_lshl_b32 s52, s{S_B}, 10\ns_lshl_b32 s53, s{S_C}, 5\ns_add_u32 s52, s52, s53\ns_add_u32 s52, s52, {ST_OFF}")
    A("v_lshrrev_b32 v25, 3, v1\nv_lshlrev_b32 v25, 2, v25")
    A("v_and_b32 v26, 7, v1\nv_cmp_eq_u32 vcc, 0, v26\ns_and_saveexec_b64 s[54:55], vcc")
    A(f"buffer_store_dword v22, v25, s[36:39], s52 offen {SC}\nbuffer_store_dword v23, v25, s[36:39], s52 offen offset:512 {SC}")
    A("s_mov_b64 exec, s[54:55]")
    A(f"s_branch J_done_{nG}")
    A(f"J_c_{nG}:")
    for k in range(8): A(f"v_mov_b32 v{72+k}, 0")
    A("s_mov_b32 s52, 0x00003f80\ns_mov_b32 s53, 0x3f800000")
    for i in range(10):
        A(f"s_waitcnt vmcnt({9-i+nG_})")
        for k in range(4):
            r = 32 + 4 * i + k
            A(f"v_dot2_f32_bf16 v{72+2*k}, v{r}, s52, v{72+2*k}")
            A(f"v_dot2_f32_bf16 v{73+2*k}, v{r}, s53, v{73+2*k}")
    A("s_nop 2")
    for sw in ["v_permlane16_swap_b32", "v_permlane32_swap_b32"]:
        for k in range(8): A(f"v_mov_b32 v{80+k}, v{72+k}")
        A("s_nop 0")
        for k in range(8): A(f"{sw} v{72+k}, v{80+k}")
        A("s_nop 0")
        for k in range(8): A(f"v_add_f32 v{72+k}, v{72+k}, v{80+k}")
    A(f"s_lshl_b32 s52, s{S_B}, 13\ns_lshl_b32 s53, s{S_F0}, 2\ns_add_u32 s52, s52, s53\ns_add_u32 s52, s52, {CS_OFF}")
    A(f"v_lshlrev_b32 v22, 5, v1\ns_mov_b32 s53, 16\ns_cmp_lt_u32 s{S_C}, 5\ns_cselect_b32 s53, 8, s53")
    A("v_cmp_gt_u32 vcc, s53, v1\ns_and_saveexec_b64 s[54:55], vcc")
    A(f"buffer_store_dwordx4 v[72:75], v22, s[36:39], s52 offen {SC}\nbuffer_store_dwordx4 v[76:79], v22, s[36:39], s52 offen offset:16 {SC}")
    A("s_mov_b64 exec, s[54:55]")
    A(f"s_branch J_done_{nG}")
    A(f"J_done_{nG}:")
    A(f"s_cmp_ge_u32 s3, 2\ns_cbranch_scc0 J_dn2_{nG}\ns_waitcnt vmcnt(0)")
    if opt("TLBPF", 1) and opt("TLBLATE"):
        A(f"s_cmp_eq_u32 s3, 2\ns_cbranch_scc0 J_dn3_{nG}")
        tlb_touch(A, 24)
        A(f"J_dn3_{nG}:")
    if opt("CODEPF", 1) and opt("CPMODE", 4) in (2, 3):
        A(f"s_cmp_eq_u32 s3, {CPW}\ns_cbranch_scc0 J_dn2_{nG}")
        code_prefetch(A, "b" + nG, opt("CPMODE", 4))
    A(f"J_dn2_{nG}:")

def x_addr(A, dst, rowbase_sgpr, tmp):
    A(f"v_and_b32 v{tmp}, 31, v1\nv_add_u32 v{tmp+1}, s{rowbase_sgpr}, v{tmp}\nv_lshlrev_b32 v{tmp+1}, 7, v{tmp+1}")
    A(f"v_bfe_u32 v{tmp}, v1, 1, 3\nv_lshrrev_b32 v{tmp+2}, 5, v1\nv_xor_b32 v{tmp}, v{tmp}, v{tmp+2}")
    A(f"v_lshlrev_b32 v{tmp}, 4, v{tmp}\nv_add_u32 v{dst}, v{tmp+1}, v{tmp}")
    for j in range(1, 4):
        A(f"v_xor_b32 v{dst+j}, {32*j}, v{dst}")
def h_tr_addr(A, dst, tmp):
    A(f"v_bfe_u32 v{tmp}, v1, 5, 1\nv_lshlrev_b32 v{tmp}, 3, v{tmp}\nv_bfe_u32 v{tmp+1}, v1, 2, 2\nv_add_u32 v{tmp}, v{tmp}, v{tmp+1}")
    A(f"v_lshlrev_b32 v{tmp}, 7, v{tmp}")
    A(f"v_bfe_u32 v{tmp+1}, v1, 4, 1\nv_lshlrev_b32 v{tmp+1}, 1, v{tmp+1}\nv_bfe_u32 v{tmp+2}, v1, 1, 1\nv_add_u32 v{tmp+1}, v{tmp+1}, v{tmp+2}")
    A(f"v_bfe_u32 v{tmp+2}, v1, 3, 1\nv_lshlrev_b32 v{tmp+2}, 2, v{tmp+2}\nv_xor_b32 v{tmp+1}, v{tmp+1}, v{tmp+2}")
    A(f"v_lshlrev_b32 v{tmp+1}, 4, v{tmp+1}\nv_add_u32 v{tmp}, v{tmp}, v{tmp+1}")
    A(f"v_and_b32 v{tmp+1}, 1, v1\nv_lshlrev_b32 v{tmp+1}, 3, v{tmp+1}\nv_add_u32 v{dst}, v{tmp}, v{tmp+1}")
def interleave(A, mfmas, fillers, per_gap):
    if opt("NOCOMP1"):
        for f in fillers:
            if not f.startswith("ds_read") and not f.startswith("v_perm"): A(f)
        return
    k = 0
    for i, m in enumerate(mfmas):
        A(m)
        for _ in range(per_gap[i]):
            if k < len(fillers):
                A(fillers[k]); k += 1
    while k < len(fillers):
        A(fillers[k]); k += 1
def h_epilogue_tile(A, acc, mr, cs, tmp, vaddr, soff):
    for i in range(0, 16, 2):
        A(f"v_pk_fma_f32 v[{acc+i}:{acc+i+1}], v[{cs+i}:{cs+i+1}], v[{mr}:{mr+1}], v[{acc+i}:{acc+i+1}] op_sel:[0,0,0] op_sel_hi:[1,0,1] neg_lo:[0,1,0] neg_hi:[0,1,0]")
    for i in range(0, 16, 2):
        A(f"v_pk_mul_f32 v[{acc+i}:{acc+i+1}], v[{acc+i}:{acc+i+1}], v[{mr}:{mr+1}] op_sel:[0,1] op_sel_hi:[1,1]")
    for i in range(0, 16, 2):
        A(f"v_cvt_pk_bf16_f32 v{tmp+i//2}, v{acc+i}, v{acc+i+1}")
    for i in range(8):
        A(f"v_pk_max_i16 v{tmp+i}, v{tmp+i}, 0")
    if opt("LOCALH", 2) != 1:
        A(f"buffer_store_dwordx4 v[{tmp}:{tmp+3}], v{vaddr}, s[36:39], s{soff} offen {SC}")
        A(f"buffer_store_dwordx4 v[{tmp+4}:{tmp+7}], v{vaddr}, s[36:39], s{soff} offen offset:512 {SC}")
        return
    h_epilogue_tile.n += 1
    n = h_epilogue_tile.n
    A(f"s_cmp_eq_u32 s{S_LOCAL}, 1\ns_cbranch_scc1 L_hst{n}_p")
    A(f"buffer_store_dwordx4 v[{tmp}:{tmp+3}], v{vaddr}, s[36:39], s{soff} offen {SC}")
    A(f"buffer_store_dwordx4 v[{tmp+4}:{tmp+7}], v{vaddr}, s[36:39], s{soff} offen offset:512 {SC}")
    A(f"s_branch L_hst{n}_d\nL_hst{n}_p:")
    hst = {0: "", 1: "nt", 2: "sc0", 3: "sc0 nt"}[opt("HST", 0)]
    A(f"buffer_store_dwordx4 v[{tmp}:{tmp+3}], v{vaddr}, s[36:39], s{soff} offen {hst}")
    A(f"buffer_store_dwordx4 v[{tmp+4}:{tmp+7}], v{vaddr}, s[36:39], s{soff} offen offset:512 {hst}")
    A(f"L_hst{n}_d:")
h_epilogue_tile.n = 0
def h_store_voff(A, dst, tmp):
    A(f"v_bfe_u32 v{tmp}, v1, 4, 1\nv_mul_u32_u24 v{tmp}, {58*1024}, v{tmp}")
    A(f"v_lshrrev_b32 v{tmp+1}, 5, v1\nv_lshlrev_b32 v{tmp+1}, 8, v{tmp+1}\nv_add_u32 v{tmp}, v{tmp}, v{tmp+1}")
    A(f"v_and_b32 v{tmp+1}, 15, v1\nv_lshlrev_b32 v{tmp+1}, 4, v{tmp+1}\nv_add_u32 v{dst}, v{tmp}, v{tmp+1}")

def loop_hooks_top(A, tag):
    A(f"s_cmp_eq_u32 s29, s30\ns_cbranch_scc1 {tag}_flag1\n{tag}_flag1_ret:")
def loop_hooks_init(A):
    A(f"s_cmp_lt_u32 s3, 2\ns_cselect_b32 s30, {10 - opt('EARLY_IT', 1)}, 99")
def loop_hooks_ool(A, tag):
    A(f"{tag}_flag1:")
    flag_addr_early(A, 28)
    A("s_waitcnt vmcnt(0)")
    store_flags(A, 28, 1, 48, 30, xcc=True)
    A(f"s_branch {tag}_flag1_ret")

def publish(A, tag, word, kind, vt):
    A("s_waitcnt vmcnt(0)")
    lds_arrive(A, word, vt, 63)
    A(f"s_cmp_eq_u32 s63, 3\ns_cbranch_scc0 {tag}_np")
    if kind == "h":
        flag_addr_h(A, vt - 1); store_flags(A, vt - 1, 1, 48, vt, xcc=True, local=(tag if opt("LOCALF", 1) else None))
    else:
        flag_addr_t(A, vt - 1); store_flags(A, vt - 1, 8, 48, vt)
    A(f"{tag}_np:")

def p1_hh(A):
    A("L_hh:")
    ACC = 128; P, Q = 32, 64
    XB, WB = 2, 6; XC, WC = 8, 12
    A("s_lshr_b32 s24, s3, 1\ns_and_b32 s25, s3, 1")
    A("s_lshl_b32 s26, s24, 6")
    x_addr(A, XB, 26, 20)
    h_tr_addr(A, WB, 20)
    A("s_lshl_b32 s27, s25, 13\ns_add_u32 s27, s27, 16384")
    A(f"v_add_u32 v{WB}, s27, v{WB}\nv_xor_b32 v{WB+1}, 64, v{WB}")
    for i in range(64): A(f"v_mov_b32 v{ACC+i}, 0")
    for j in range(4): A(f"v_mov_b32 v{XC+j}, v{XB+j}")
    for j in range(2): A(f"v_mov_b32 v{WC+j}, v{WB+j}")
    A(f"v_and_b32 v20, 31, v1\nv_add_u32 v20, s26, v20\nv_lshlrev_b32 v20, 2, v20\nv_add_u32 v20, {LST}, v20")
    A(f"v_lshrrev_b32 v21, 5, v1\nv_lshlrev_b32 v21, 4, v21\ns_lshl_b32 s33, s25, 8\ns_add_u32 s33, s33, {LCS}\nv_add_u32 v21, s33, v21")
    h_store_voff(A, 19, 26)
    A(f"s_lshl_b32 s31, s{S_B}, 3\ns_lshl_b32 s32, s24, 1\ns_add_u32 s31, s31, s32\ns_mul_i32 s31, s31, 58")
    A(f"s_lshr_b32 s32, s{S_F0}, 5\ns_lshl_b32 s33, s25, 1\ns_add_u32 s32, s32, s33\ns_add_u32 s31, s31, s32")
    A(f"s_lshl_b32 s31, s31, 10\ns_add_u32 s31, s31, {HF_OFF}")
    jobs_finish(A, 0, 'h')
    epoch_ready(A)
    A("s_mov_b32 s28, 0")
    loop_hooks_init(A)
    def reads(buf, g):
        out = []
        for jj in range(2):
            j = 2 * g + jj; b = buf + 16 * jj
            out.append(f"ds_read_b128 v[{b}:{b+3}], v{XC+j}")
            out.append(f"ds_read_b64_tr_b16 v[{b+8}:{b+9}], v{WC} offset:{j*2048}")
            out.append(f"ds_read_b64_tr_b16 v[{b+10}:{b+11}], v{WC} offset:{j*2048+512}")
            out.append(f"ds_read_b128 v[{b+4}:{b+7}], v{XC+j} offset:4096")
            out.append(f"ds_read_b64_tr_b16 v[{b+12}:{b+13}], v{WC+1} offset:{j*2048}")
            out.append(f"ds_read_b64_tr_b16 v[{b+14}:{b+15}], v{WC+1} offset:{j*2048+512}")
        return out
    def mfmas(buf):
        out = []
        for jj in range(2):
            b = buf + 16 * jj
            for ft in range(2):
                for st in range(2):
                    a = ACC + 16 * (2 * ft + st)
                    out.append(f"{MFMA32} v[{a}:{a+15}], v[{b+8+4*ft}:{b+11+4*ft}], v[{b+4*st}:{b+3+4*st}], v[{a}:{a+15}]")
        return out
    stamp(A, 1)
    A("s_waitcnt lgkmcnt(0)\ns_barrier")
    stamp(A, 2)
    for r in reads(P, 0):
        if not opt("NOCOMP1"): A(r)
    A("s_mov_b32 s29, 10")
    A("L_hh_loop:")
    A.drop = (["v_mfma"] if opt("NOMF1") else []) + (["ds_read"] if opt("NODS1") else []) + (["v_perm"] if opt("NOPERM") else [])
    loop_hooks_top(A, "L_hh")
    A("s_waitcnt lgkmcnt(0)")
    A("s_cmp_eq_u32 s29, 1\ns_cbranch_scc1 L_hh_pre\nL_hh_pre_ret:")
    if opt("HHSTAMP"): stamp(A)
    upd = [f"v_add_u32 v{XC+j}, s28, v{XB+j}" for j in range(4)] + [f"v_add_u32 v{WC+j}, s28, v{WB+j}" for j in range(2)]
    ring = [f"s_add_u32 s28, s28, {RING}", f"s_and_b32 s28, s28, {NS*RING-1}"]
    pat = opt("HHPAT", 0)
    g1 = [[3, 3, 3, 3, 2, 3, 3, 0], [4, 4, 4, 2, 3, 3, 0, 0], [6, 6, 2, 3, 3, 0, 0, 0]][pat]
    g2 = [[3, 3, 3, 3, 0, 0, 0, 0], [4, 4, 4, 0, 0, 0, 0, 0], [6, 6, 0, 0, 0, 0, 0, 0]][pat]
    interleave(A, mfmas(P), reads(Q, 1) + ring + upd, g1)
    if opt("HHSTAMP"): A("s_waitcnt lgkmcnt(0)"); stamp(A)
    A("s_waitcnt lgkmcnt(0)")
    A("s_barrier")
    if opt("HHSTAMP"): stamp(A)
    interleave(A, mfmas(Q), reads(P, 0), g2)
    A.drop = []
    A("s_sub_u32 s29, s29, 1\ns_cmp_lg_u32 s29, 0\ns_cbranch_scc1 L_hh_loop")
    A("s_waitcnt vmcnt(0) lgkmcnt(0)")
    stamp(A, 3)
    A(f"v_readfirstlane_b32 s{S_LOCAL}, v18")
    A("s_nop 7")
    for st in range(2):
        for ft in range(2):
            A(f"s_add_u32 s32, s31, {(st*4*58+ft)*1024}")
            h_epilogue_tile(A, ACC + 16 * (2 * ft + st), 14 + 2 * st, 96 + 16 * ft, 64 + 8 * ((2 * st + ft) & 3), 19, 32)
    stamp(A, 4)
    publish(A, "L_hh_pub", 0, "h", 30)
    stamp(A)
    stamp_flush(A, 0, WS, 9)
    A("s_endpgm")
    loop_hooks_ool(A, "L_hh")
    A("L_hh_pre:")
    A("ds_read_b32 v14, v20\nds_read_b32 v15, v20 offset:512\nds_read_b32 v16, v20 offset:128\nds_read_b32 v17, v20 offset:640")
    A(f"v_mov_b32 v18, {LCNT + 12}\nds_read_b32 v18, v18")
    for ft in range(2):
        for q in range(4):
            b = 96 + 16 * ft + 4 * q
            A(f"ds_read_b128 v[{b}:{b+3}], v21 offset:{ft*128+q*32}")
    A("s_branch L_hh_pre_ret")

def p1_mx(A):
    A("L_mx:")
    P, Q = 32, 72
    EV, OD = 112, 116
    CE, CO, SE, SO = 120, 124, 128, 132
    HA, HB = 136, 152
    EC, ES, OC, OS = 168, 184, 200, 216
    G = 232
    XAB, WHB = 2, 6
    XAC, XBC, DAC, WHC = 7, 11, 15, 19
    def gmat():
        A("v_and_b32 v24, 31, v1\nv_cvt_f32_u32 v24, v24\nv_lshrrev_b32 v25, 5, v1\nv_cvt_f32_u32 v25, v25")
        A("v_mul_f32 v25, 0x3e000000, v25\nv_mul_f32 v25, v25, v24")
        for p in range(2):
            for uh in range(2):
                for u2 in range(2):
                    for k in range(2):
                        c = 16 * p + 8 * uh + 2 * u2 + k
                        import struct
                        lit = struct.unpack("<I", struct.pack("<f", c / 32.0))[0]
                        A(f"v_fmamk_f32 v26, v24, {lit:#x}, v25\nv_fract_f32 v26, v26")
                        A(f"v_cos_f32 v{28+k}, v26\nv_sin_f32 v{30+k}, v26")
                    A("s_nop 0")
                    A(f"v_cvt_pk_bf16_f32 v{G+4*p+2*uh+u2}, v28, v29\nv_cvt_pk_bf16_f32 v{G+16+4*p+2*uh+u2}, v30, v31")
        for i in range(8):
            A(f"v_xor_b32 v{G+8+i}, 0x80008000, v{G+16+i}")
    if not opt("GLATE", 1): gmat()
    A("s_lshr_b32 s24, s3, 1\ns_and_b32 s25, s3, 1")
    A("s_lshl_b32 s26, s3, 5\ns_xor_b32 s27, s26, 32")
    x_addr(A, XAB, 26, 24)
    h_tr_addr(A, WHB, 24)
    A(f"s_lshl_b32 s30, s25, 6\nv_xor_b32 v{WHB}, s30, v{WHB}\nv_add_u32 v{WHB}, 16384, v{WHB}")
    for i in range(96): A(f"v_mov_b32 v{HA+i}, 0")
    A("s_lshl_b32 s31, s3, 12\ns_sub_u32 s31, 24576, s31")
    def upd(js=(0, 1, 2, 3), wh=True):
        o = [f"v_add_u32 v{XAC+j}, s28, v{XAB+j}" for j in js] + ([f"v_add_u32 v{WHC}, s28, v{WHB}"] if wh else [])
        o += [f"v_xor_b32 v{XBC+j}, 0x1000, v{XAC+j}" for j in js]
        o += [f"v_add_u32 v{DAC+j}, s31, v{XAC+j}" for j in js]
        return o
    A("s_mov_b32 s28, 0")
    for t in upd(): A(t)
    jobs_finish(A, 0, 'm')
    epoch_ready(A)
    loop_hooks_init(A)
    A("s_mov_b32 s34, 0x05040100\ns_mov_b32 s35, 0x07060302")
    def reads(buf, m):
        out = []
        for jj in range(2):
            j = 2 * m + jj
            out.append(f"ds_read_b128 v[{buf+4*jj}:{buf+4*jj+3}], v{XAC+j}")
        for jj in range(2):
            j = 2 * m + jj
            out.append(f"ds_read_b64_tr_b16 v[{buf+16+4*jj}:{buf+17+4*jj}], v{WHC} offset:{j*2048}")
            out.append(f"ds_read_b64_tr_b16 v[{buf+18+4*jj}:{buf+19+4*jj}], v{WHC} offset:{j*2048+512}")
            out.append(f"ds_read_b128 v[{buf+8+4*jj}:{buf+11+4*jj}], v{XBC+j}")
        for jj in range(2):
            j = 2 * m + jj
            out.append(f"ds_read_b128 v[{buf+24+4*jj}:{buf+27+4*jj}], v{DAC+j}")
            out.append(f"ds_read_b128 v[{buf+32+4*jj}:{buf+35+4*jj}], v{DAC+j} offset:4096")
        return out
    def perms(src, e, o):
        ev = [f"v_perm_b32 v{e+k}, v{src+2*k+1}, v{src+2*k}, s34" for k in range(4)]
        od = [f"v_perm_b32 v{o+k}, v{src+2*k+1}, v{src+2*k}, s35" for k in range(4)]
        return ev, od
    def half(cur, nxt, m_next, extra):
        rd = reads(nxt, m_next)
        if opt("NOCOMP1"):
            for t in extra: A(t)
            return
        xe, xo = perms(cur, EV, OD); ce, co = perms(cur + 24, CE, CO); se, so = perms(cur + 32, SE, SO)
        H = []
        for jj in range(2):
            w = cur + 16 + 4 * jj
            H.append(f"{MFMA32} v[{HA}:{HA+15}], v[{w}:{w+3}], v[{cur+4*jj}:{cur+4*jj+3}], v[{HA}:{HA+15}]")
            H.append(f"{MFMA32} v[{HB}:{HB+15}], v[{w}:{w+3}], v[{cur+8+4*jj}:{cur+11+4*jj}], v[{HB}:{HB+15}]")
        Dm = [f"{MFMA32} v[{EC}:{EC+15}], v[{EV}:{EV+3}], v[{CE}:{CE+3}], v[{EC}:{EC+15}]",
              f"{MFMA32} v[{OC}:{OC+15}], v[{OD}:{OD+3}], v[{CO}:{CO+3}], v[{OC}:{OC+15}]",
              f"{MFMA32} v[{ES}:{ES+15}], v[{EV}:{EV+3}], v[{SE}:{SE+3}], v[{ES}:{ES+15}]",
              f"{MFMA32} v[{OS}:{OS+15}], v[{OD}:{OD+3}], v[{SO}:{SO+3}], v[{OS}:{OS+15}]"]
        if opt("MXSCHED", 1):
            ex = list(extra)
            def take(n):
                t = ex[:n]; del ex[:n]; return t
            pad = lambda n: (take(n) + ["s_nop 0"] * n)[:n]
            ms = H + [Dm[0], Dm[2], Dm[1], Dm[3]]
            gaps = [xe[0:2] + rd[0:3], xe[2:4] + rd[3:6], ce[0:2] + rd[6:9], ce[2:4] + rd[9:12],
                    se + xo[0:2], xo[2:4] + co + pad(2), so + pad(2), None]
            gaps[7] = ex
        else:
            gaps = [xe + rd[0:2], ce + rd[2:4], xo + rd[4:6], co + rd[6:8], se + rd[8:10], so + rd[10:12], extra[:8], extra[8:]]
            ms = H + Dm
        for i in range(8):
            A(ms[i])
            for t in gaps[i]: A(t)
    stamp(A, 1)
    A("s_waitcnt lgkmcnt(0)\ns_barrier")
    stamp(A, 2)
    for r in reads(P, 0):
        if not opt("NOCOMP1"): A(r)
    A("s_mov_b32 s29, 10")
    A("L_mx_loop:")
    A.drop = (["v_mfma"] if opt("NOMF1") else []) + (["ds_read"] if opt("NODS1") else []) + (["v_perm"] if opt("NOPERM") else [])
    loop_hooks_top(A, "L_mx")
    A("s_waitcnt lgkmcnt(0)")
    if opt("HHSTAMP"): stamp(A)
    ring = [f"s_add_u32 s28, s28, {RING}", f"s_and_b32 s28, s28, {NS*RING-1}"]
    if opt("MXSCHED", 1):
        half(P, Q, 1, ring + upd((0, 1), True))
        if opt("HHSTAMP"): A("s_waitcnt lgkmcnt(0)"); stamp(A)
        A("s_waitcnt lgkmcnt(0)")
        A("s_barrier")
        if opt("HHSTAMP"): stamp(A)
        half(Q, P, 0, upd((2, 3), False))
    else:
        half(P, Q, 1, ring + upd())
        A("s_waitcnt lgkmcnt(0)")
        A("s_barrier")
        half(Q, P, 0, [])
    A.drop = []
    A("s_sub_u32 s29, s29, 1\ns_cmp_lg_u32 s29, 0\ns_cbranch_scc1 L_mx_loop")
    A("s_waitcnt vmcnt(0) lgkmcnt(0)")
    stamp(A, 3)
    A(f"v_and_b32 v24, 31, v1\nv_add_u32 v25, s26, v24\nv_lshlrev_b32 v25, 2, v25\nv_add_u32 v25, {LST}, v25")
    A(f"v_add_u32 v26, s27, v24\nv_lshlrev_b32 v26, 2, v26\nv_add_u32 v26, {LST}, v26")
    A("ds_read_b32 v2, v25\nds_read_b32 v3, v25 offset:512\nds_read_b32 v4, v26\nds_read_b32 v5, v26 offset:512")
    A(f"v_mov_b32 v7, {LCNT + 12}\nds_read_b32 v7, v7")
    A(f"v_lshrrev_b32 v27, 5, v1\nv_lshlrev_b32 v27, 4, v27\ns_lshl_b32 s30, s25, 7\ns_add_u32 s30, s30, {LCS}\nv_add_u32 v28, s30, v27")
    for q in range(4):
        A(f"ds_read_b128 v[{32+4*q}:{35+4*q}], v28 offset:{q*32}")
    A(f"s_lshl_b32 s30, s26, 2\ns_add_u32 s30, s30, {LST+512}\nv_add_u32 v28, s30, v27")
    for q in range(4):
        A(f"ds_read_b128 v[{48+4*q}:{51+4*q}], v28 offset:{q*32}")
    h_store_voff(A, 6, 28)
    A(f"s_lshl_b32 s31, s{S_B}, 3\ns_lshl_b32 s30, s24, 1\ns_add_u32 s31, s31, s30\ns_mul_i32 s31, s31, 58")
    A(f"s_lshr_b32 s30, s{S_F0}, 5\ns_add_u32 s30, s30, s25\ns_add_u32 s31, s31, s30")
    A(f"s_lshl_b32 s31, s31, 10\ns_add_u32 s31, s31, {HF_OFF}")
    A(f"s_mul_i32 s30, s25, {4*58*1024}\ns_add_u32 s32, s31, s30")
    A(f"s_xor_b32 s30, s25, 1\ns_mul_i32 s30, s30, {4*58*1024}\ns_add_u32 s33, s31, s30")
    A("s_waitcnt lgkmcnt(0)")
    A(f"v_readfirstlane_b32 s{S_LOCAL}, v7")
    A("s_nop 7")
    h_epilogue_tile(A, HA, 2, 32, 64, 6, 32)
    h_epilogue_tile(A, HB, 4, 32, 72, 6, 33)
    stamp(A, 4)
    if opt("MXPUB", 0): publish(A, "L_mx_pubh", 0, "h", 30)
    stamp(A)
    if opt("GLATE", 1): gmat()
    R = 48
    for i in range(0, 16, 2):
        for a in (EC, OC, ES, OS):
            A(f"v_pk_mul_f32 v[{a+i}:{a+i+1}], v[{a+i}:{a+i+1}], v[{R+i}:{R+i+1}]")
    T0, T1 = 80, 96
    for i in range(0, 16, 2):
        A(f"v_pk_add_f32 v[{T0+i}:{T0+i+1}], v[{EC+i}:{EC+i+1}], v[{OC+i}:{OC+i+1}]")
        A(f"v_pk_add_f32 v[{EC+i}:{EC+i+1}], v[{EC+i}:{EC+i+1}], v[{OC+i}:{OC+i+1}] neg_lo:[0,1] neg_hi:[0,1]")
        A(f"v_pk_add_f32 v[{T1+i}:{T1+i+1}], v[{ES+i}:{ES+i+1}], v[{OS+i}:{OS+i+1}]")
        A(f"v_pk_add_f32 v[{OC+i}:{OC+i+1}], v[{OS+i}:{OS+i+1}], v[{ES+i}:{ES+i+1}] neg_lo:[0,1] neg_hi:[0,1]")
    A("v_and_b32 v24, 31, v1\nv_cmp_eq_u32 s[40:41], 0, v24\ns_nop 3")
    A(f"s_cmp_eq_u32 s{S_C}, 0\ns_cselect_b64 s[40:41], s[40:41], 0\ns_cbranch_scc0 L_mx_nofix")
    for i in range(16):
        A(f"v_cndmask_b32 v{T0+i}, v{T0+i}, v{ES+i}, s[40:41]")
        A(f"v_cndmask_b32 v{T1+i}, v{T1+i}, v{OS+i}, s[40:41]")
        A(f"v_cndmask_b32_e64 v{OC+i}, v{OC+i}, 0, s[40:41]")
    A("L_mx_nofix:")
    ZB = 32
    for k, a in enumerate([T0, T1, EC, OC]):
        for i in range(0, 16, 2):
            A(f"v_cvt_pk_bf16_f32 v{ZB+8*k+i//2}, v{a+i}, v{a+i+1}")
    Fr = lambda p: f"v[{G+4*p}:{G+4*p+3}]"
    Fi = lambda p: f"v[{G+8+4*p}:{G+8+4*p+3}]"
    nFi = lambda p: f"v[{G+16+4*p}:{G+16+4*p+3}]"
    Z = lambda k, p: f"v[{ZB+8*k+4*p}:{ZB+8*k+4*p+3}]"
    TR = [EC, OC]; TI = [ES, OS]
    A("s_nop 1")
    for st_ in range(2):
        zr, zi = 2 * st_, 2 * st_ + 1
        tr, ti = TR[st_], TI[st_]
        A(f"{MFMA32} v[{tr}:{tr+15}], {Fr(0)}, {Z(zr,0)}, 0")
        A(f"{MFMA32} v[{ti}:{ti+15}], {Fr(0)}, {Z(zi,0)}, 0")
        A(f"{MFMA32} v[{tr}:{tr+15}], {Fr(1)}, {Z(zr,1)}, v[{tr}:{tr+15}]")
        A(f"{MFMA32} v[{ti}:{ti+15}], {Fr(1)}, {Z(zi,1)}, v[{ti}:{ti+15}]")
        A(f"{MFMA32} v[{tr}:{tr+15}], {nFi(0)}, {Z(zi,0)}, v[{tr}:{tr+15}]")
        A(f"{MFMA32} v[{ti}:{ti+15}], {Fi(0)}, {Z(zr,0)}, v[{ti}:{ti+15}]")
        A(f"{MFMA32} v[{tr}:{tr+15}], {nFi(1)}, {Z(zi,1)}, v[{tr}:{tr+15}]")
        A(f"{MFMA32} v[{ti}:{ti+15}], {Fi(1)}, {Z(zr,1)}, v[{ti}:{ti+15}]")
    if not opt("MXPUB", 0): publish(A, "L_mx_pubh", 0, "h", 30)
    else: A("s_nop 7")
    stamp(A)
    A(f"v_and_b32 v24, 31, v1\nv_lshlrev_b32 v24, 2, v24\nv_lshrrev_b32 v25, 5, v1\nv_lshlrev_b32 v25, 9, v25\nv_add_u32 v24, v24, v25")
    A(f"s_lshl_b32 s30, s3, 13\ns_add_u32 s30, s30, {LX}\nv_add_u32 v24, s30, v24")
    A("s_nop 7")
    for st_ in range(2):
        for i in range(16):
            A(f"v_cvt_pk_bf16_f32 v{64+16*st_+i}, v{TR[st_]+i}, v{TI[st_]+i}")
    for st_ in range(2):
        for i in range(16):
            t0 = (i & 3) + 8 * (i >> 2)
            A(f"ds_write_b32 v24, v{64+16*st_+i} offset:{st_*4096+t0*128}")
    A("s_waitcnt lgkmcnt(0)")
    stamp(A)
    lds_arrive(A, 1, 30, 63)
    A(f"v_mov_b32 v30, {LCNT+4}")
    A("L_mx_rv:\nds_read_b32 v31, v30\ns_waitcnt lgkmcnt(0)\ns_nop 0\nv_readfirstlane_b32 s63, v31\ns_nop 3\ns_cmp_ge_u32 s63, 4\ns_cbranch_scc1 L_mx_rv_ok")
    A(f"s_sub_u32 s{S_SPIN}, s{S_SPIN}, 1\ns_cmp_eq_u32 s{S_SPIN}, 0\ns_cbranch_scc0 L_mx_rv\nL_mx_rv_ok:")
    A("v_and_b32 v24, 31, v1\nv_lshlrev_b32 v24, 2, v24\nv_lshrrev_b32 v25, 5, v1\nv_lshlrev_b32 v26, 7, v25\nv_add_u32 v24, v24, v26")
    A(f"s_lshl_b32 s30, s3, 10\ns_add_u32 s30, s30, {LX}\nv_add_u32 v24, s30, v24")
    for st_ in range(2):
        for n in range(4):
            b = 64 + 16 * st_ + 4 * n
            for w in range(4):
                A(f"ds_read_b32 v{b+w}, v24 offset:{w*8192+st_*4096+n*256}")
    A(f"v_and_b32 v26, 31, v1\ns_lshl_b32 s30, s{S_C}, 5\nv_add_u32 v27, s30, v26")
    A("v_mov_b32 v28, 160\nv_cndmask_b32 v29, v27, v28, s[40:41]")
    A("v_sub_u32 v27, 320, v27")
    A(f"s_mov_b32 s30, {TF_T0}\nv_mul_lo_u32 v25, s30, v25")
    A("v_lshlrev_b32 v29, 4, v29\nv_add_u32 v29, v29, v25")
    A("v_lshlrev_b32 v27, 4, v27\nv_add_u32 v27, v27, v25")
    A(f"s_mul_i32 s30, s3, {8*TF_T0}\ns_mul_i32 s31, s{S_B}, {TF_ROW}\ns_add_u32 s30, s30, s31\ns_add_u32 s30, s30, {TF_OFF}")
    A("s_waitcnt lgkmcnt(0)")
    for st_ in range(2):
        for n in range(4):
            b = 64 + 16 * st_ + 4 * n
            A(f"s_add_u32 s31, s30, {2*n*TF_T0}")
            if not opt("NOTST"): A(f"buffer_store_dwordx4 v[{b}:{b+3}], v{29 if st_ == 0 else 27}, s[36:39], s31 offen {'' if opt('TPLAIN') else SC}")
    stamp(A)
    A(f"s_cmp_eq_u32 s{S_C}, 0\ns_cbranch_scc0 L_mx_noz\ns_cmp_eq_u32 s3, 0\ns_cbranch_scc0 L_mx_noz")
    A(f"s_mov_b32 s30, {TF_T0}\nv_and_b32 v24, 31, v1\nv_mul_lo_u32 v24, s30, v24")
    A("v_mov_b32 v4, 0\nv_mov_b32 v5, 0\nv_mov_b32 v6, 0\nv_mov_b32 v7, 0")
    A(f"s_mul_i32 s31, s{S_B}, {TF_ROW}\ns_add_u32 s31, s31, {TF_OFF}")
    A(f"buffer_store_dwordx4 v[4:7], v24, s[36:39], s31 offen {SC}")
    A("L_mx_noz:")
    publish(A, "L_mx_pubt", 2, "t", 30)
    stamp(A)
    stamp_flush(A, 0, WS, 9)
    A("s_endpgm")
    loop_hooks_ool(A, "L_mx")

def loader(A):
    A("L_loader:")
    if opt("PRIOL"): A(f"s_setprio {opt('PRIOL')}")
    if opt("PRIOL1"): A(f"s_setprio {opt('PRIOL1')}")
    A(f"s_sub_u32 s{S_J}, s3, 4")
    for r in [11, 12, 13, 52, 53, 54, 55, 56, 57, 58, 59]: A(f"v_mov_b32 v{r}, 0")
    A("s_mov_b32 s58, 0\ns_mov_b32 s59, 99\ns_mov_b32 s63, 0")
    RS = 1280 if opt("XLIN") else 81920
    A(f"v_lshrrev_b32 v4, 3, v1\ns_mov_b32 s40, {RS}\nv_mul_lo_u32 v8, s40, v4")
    A("v_and_b32 v5, 7, v1\nv_lshrrev_b32 v6, 4, v1\nv_xor_b32 v5, v5, v6\nv_lshlrev_b32 v5, 4, v5")
    A("v_add_u32 v2, v8, v5\nv_xor_b32 v7, 64, v5")
    A(f"v_add_u32 v3, v8, v7\nv_add_u32 v3, {8*RS}, v3")
    A(f"s_lshl_b32 s40, s{S_B}, 1\ns_and_b32 s41, s{S_J}, 1\ns_add_u32 s40, s40, s41")
    A(f"s_lshr_b32 s41, s{S_J}, 1\ns_lshl_b32 s41, s41, 5\ns_add_u32 s40, s40, s41")
    if opt("XLIN"):
        A(f"s_lshl_b32 s40, s{S_B}, 2\ns_add_u32 s40, s40, s{S_J}\ns_mul_i32 s40, s40, {32*1280}\ns_add_u32 s41, s40, {16*1280}")
    else:
        A(f"s_mul_i32 s40, s40, 1280\ns_add_u32 s41, s40, {16*81920}")
    A("s_mov_b64 s[56:57], -1")
    A(f"s_cmp_lt_u32 s{S_C}, 5\ns_cbranch_scc0 L_ld_H")
    A(f"s_cmp_ge_u32 s{S_J}, 2\ns_cbranch_scc0 L_ld_H")
    A(f"s_and_b32 s50, s{S_J}, 1\ns_add_u32 s50, s50, 1\ns_mov_b32 s30, {HID_BYTES}")
    A("v_mul_u32_u24 v8, 1280, v4\nv_add_u32 v9, v8, v5")
    A(f"v_add_u32 v10, v8, v7\nv_add_u32 v10, {8*1280}, v10")
    A(f"s_mul_i32 s42, s{S_C}, {32*1280}")
    A(f"s_mov_b32 s44, s42\ns_mov_b32 s45, s42\ns_add_u32 s46, s42, {16*1280}\ns_add_u32 s47, s42, {16*1280}")
    A("s_mov_b32 s43, 128")
    A(f"s_cmp_eq_u32 s{S_C}, 0\ns_cbranch_scc0 L_ld_go\ns_cmp_eq_u32 s{S_J}, 3\ns_cbranch_scc0 L_ld_go")
    A("s_mov_b32 s56, 0xffffff00")
    A("s_branch L_ld_go")
    A("L_ld_H:")
    A(f"s_mov_b32 s50, 0\ns_mov_b32 s30, {W1_BYTES}")
    A("v_mul_u32_u24 v8, 3456, v4")
    A("v_and_b32 v9, 7, v1\nv_bfe_u32 v10, v1, 4, 1\nv_lshlrev_b32 v10, 2, v10\nv_xor_b32 v9, v9, v10")
    A("v_lshlrev_b32 v9, 4, v9\nv_add_u32 v9, v8, v9\nv_mov_b32 v10, v9")
    A(f"s_and_b32 s42, s{S_J}, 1\ns_mul_i32 s42, s42, {32*3456}")
    A(f"s_lshr_b32 s43, s{S_J}, 1\ns_lshl_b32 s43, s43, 6\ns_add_u32 s43, s43, s{S_F0}\ns_lshl_b32 s43, s43, 1")
    A("s_add_u32 s42, s42, s43")
    for q in range(4):
        A(f"s_add_u32 s{44+q}, s42, {8*q*3456}")
    A(f"s_mov_b32 s43, {64*3456}")
    A("L_ld_go:")
    A(f"s_lshl_b32 s48, s{S_J}, 12\ns_mov_b32 s31, 0x20000")
    args_ready(A)
    srd(A, 24, X_, X_BYTES)
    A(f"s_cmp_eq_u32 s50, 1\ns_cselect_b32 s28, s{HRE}, s{W1}\ns_cselect_b32 s29, s{HRE+1}, s{W1+1}")
    A(f"s_cmp_eq_u32 s50, 2\ns_cselect_b32 s28, s{HIM}, s28\ns_cselect_b32 s29, s{HIM+1}, s29")
    def chunk(slot_reg):
        for q in range(0 if opt("NOLOAD1") else 4):
            A(f"s_add_u32 m0, s{slot_reg}, {q*1024}")
            A("s_nop 0")
            A(f"buffer_load_dwordx4 v{2+(q&1)}, s[24:27], s{40+(q>>1)} offen {'nt ' if opt('XNT') else ''}lds")
            A(f"s_add_u32 m0, s{slot_reg}, {16384+q*1024}")
            if q == 0: A("s_mov_b64 exec, s[56:57]")
            else: A("s_nop 0")
            A(f"buffer_load_dwordx4 v{9+(q&1)}, s[28:31], s{44+q} offen {'nt ' if opt('WNT') else ''}lds")
            if q == 0: A("s_mov_b64 exec, -1")
        A("s_add_u32 s40, s40, 128\ns_add_u32 s41, s41, 128")
        for q in range(4):
            A(f"s_add_u32 s{44+q}, s{44+q}, s43")
        A(f"s_add_u32 s{slot_reg}, s{slot_reg}, {RING}\ns_cmp_ge_u32 s{slot_reg}, {NS*RING}\ns_cselect_b32 s52, {NS*RING}, 0\ns_sub_u32 s{slot_reg}, s{slot_reg}, s52")
    A("s_mov_b32 s49, s48")
    chunk(49); chunk(49)
    stamp(A, 1)
    srd(A, 36, WS, WS_USED)
    srd(A, 32, WS, WS_USED)
    A("s_waitcnt lgkmcnt(0)")
    A(f"s_add_u32 s{S_E}, s{S_E}, 1\ns_xor_b32 s{S_EM}, s{S_E}, {MAGIC}")
    A(f"s_cmp_ge_u32 s{S_J}, 2\ns_cbranch_scc0 L_ld_su01")
    A(f"s_sub_u32 s58, s{S_J}, 2\ns_lshl_b32 s59, s{S_T0}, 1\ns_add_u32 s59, s59, s58")
    A("s_mov_b32 s50, 6554\ns_mov_b32 s53, 1280")
    for q in range(5):
        A(f"v_add_u32 v22, {64*q}, v1")
        A("v_mul_lo_u32 v23, s50, v22\nv_lshrrev_b32 v23, 16, v23")
        A("v_mul_u32_u24 v24, 10, v23\nv_sub_u32 v24, v22, v24\nv_lshlrev_b32 v24, 4, v24")
        A(f"v_mul_lo_u32 v23, s53, v23\nv_add_u32 v{52+q}, v23, v24")
    A("v_lshrrev_b32 v23, 4, v1\nv_lshrrev_b32 v24, 1, v23\nv_lshlrev_b32 v24, 4, v24")
    A("v_and_b32 v25, 1, v23\nv_lshlrev_b32 v25, 2, v25\nv_add_u32 v24, v24, v25\nv_bfe_u32 v25, v1, 2, 2\nv_add_u32 v24, v24, v25")
    A("v_mul_u32_u24 v24, 160, v24\nv_and_b32 v25, 3, v1\nv_lshlrev_b32 v25, 3, v25\nv_add_u32 v24, v24, v25")
    A(f"s_mul_i32 s50, s58, 5120\ns_add_u32 s50, s50, {LW}\nv_add_u32 v57, s50, v24")
    A(f"s_lshl_b32 s50, s{S_CT}, 6\ns_add_u32 s50, s50, s59\ns_lshl_b32 s50, s50, 3\ns_add_u32 s50, s50, {FW_OFF}\nv_mov_b32 v58, s50")
    if opt("WSKIP"): A("s_mov_b32 s59, 99")
    A("s_branch L_ld_sud")
    A("L_ld_su01:")
    A("v_lshlrev_b32 v13, 3, v1\nv_and_b32 v16, 31, v1\nv_lshlrev_b32 v15, 3, v16")
    A(f"s_lshl_b32 s50, s{S_B}, 7\ns_add_u32 s50, s50, {FR1_OFF}\nv_add_u32 v12, s50, v15")
    A(f"s_lshl_b32 s50, s{S_C}, 7\ns_add_u32 s50, s50, {FC1_OFF-128}\nv_add_u32 v15, s50, v15")
    A("v_cmp_le_u32 vcc, 16, v16\ns_nop 1\nv_cndmask_b32 v12, v12, v15, vcc")
    A(f"s_lshl_b32 s50, s{S_CT}, 9\ns_add_u32 s50, s50, {FW_OFF}\nv_add_u32 v11, s50, v13")
    A("L_ld_sud:")
    A("s_waitcnt vmcnt(8)")
    stamp(A, 2)
    A("s_barrier")
    chunk(49)
    A(f"s_cmp_ge_u32 s{S_J}, 2\ns_cbranch_scc1 L_ld_h1w\nL_ld_h1w_ret:")
    A(f"s_cmp_ge_u32 s{S_J}, 2\ns_cbranch_scc1 L_ld_b1w")
    A("s_waitcnt vmcnt(8)\ns_branch L_ld_b1d\nL_ld_b1w:")
    A("s_cmp_ge_u32 s59, 54\ns_cbranch_scc1 L_ld_b1n\ns_waitcnt vmcnt(13)\ns_branch L_ld_b1d\nL_ld_b1n:\ns_waitcnt vmcnt(8)\nL_ld_b1d:")
    A("s_barrier")
    stamp(A)
    pk = opt("POLLK", 5)
    assert pk in (5, 6)
    A(f"s_mov_b32 s53, 99\ns_mov_b32 s54, 99\ns_mov_b32 s55, 0\ns_mov_b32 s79, 99\ns_mov_b32 s81, 99\ns_mov_b32 s82, 99\ns_mov_b32 s83, 0")
    A(f"s_cmp_eq_u32 s{S_J}, 0\ns_cselect_b32 s53, {9-pk}, s53\ns_cselect_b32 s54, {9-pk-2}, s54\ns_cselect_b32 s55, {9-pk-1}, s55\ns_cselect_b32 s81, {9-pk-2}, s81")
    A(f"s_cmp_eq_u32 s{S_J}, 1\ns_cselect_b32 s53, {opt('FWPOLL', 1)}, s53")
    A(f"s_cmp_ge_u32 s{S_J}, 2\ns_cselect_b32 s82, 6, s82\ns_cselect_b32 s79, 3, s79\ns_cselect_b32 s83, 1, s83")
    A("s_mov_b32 s51, 7")
    A("L_ld_loop:")
    A("s_cmp_eq_u32 s51, s54\ns_cbranch_scc1 L_ld_h2\nL_ld_h2_ret:")
    chunk(49)
    A("s_cmp_eq_u32 s51, s79\ns_cbranch_scc1 L_ld_h3\nL_ld_h3_ret:")
    A("s_cmp_eq_u32 s51, s53\ns_cbranch_scc1 L_ld_h1\nL_ld_h1_ret:")
    A("s_cmp_eq_u32 s51, s81\ns_cbranch_scc1 L_ld_h4\nL_ld_h4_ret:")
    A("s_cmp_eq_u32 s51, s82\ns_cbranch_scc1 L_ld_h2w\nL_ld_h2w_ret:")
    A("s_cmp_lt_u32 s51, s55\ns_cbranch_scc1 L_ld_w25")
    A("s_cmp_eq_u32 s83, 0\ns_cbranch_scc1 L_ld_w8")
    A("s_cmp_eq_u32 s51, 6\ns_cbranch_scc1 L_ld_wW\ns_cmp_eq_u32 s51, 5\ns_cbranch_scc1 L_ld_wW")
    A("s_cmp_eq_u32 s51, 3\ns_cbranch_scc1 L_ld_w9\ns_cmp_eq_u32 s51, 2\ns_cbranch_scc1 L_ld_w9")
    A("L_ld_w8:\ns_waitcnt vmcnt(8)\ns_branch L_ld_wd")
    A("L_ld_wW:\ns_cmp_ge_u32 s59, 54\ns_cbranch_scc1 L_ld_w8\ns_waitcnt vmcnt(13)\ns_branch L_ld_wd\nL_ld_w9:\ns_waitcnt vmcnt(9)\ns_branch L_ld_wd")
    A("L_ld_w25:\ns_waitcnt vmcnt(17)\nL_ld_wd:")
    stamp(A)
    A("s_barrier")
    stamp(A)
    A("s_sub_u32 s51, s51, 1\ns_cmp_lg_u32 s51, 0\ns_cbranch_scc1 L_ld_loop")
    A("s_waitcnt vmcnt(0)")
    if not opt("WLATE", 1):
        A(f"s_cmp_eq_u32 s{S_J}, 1\ns_cbranch_scc0 L_ld_no1")
        spin(A, "L_ld_spw", 48, 11, 32, xcc=True)
        A("L_ld_no1:")
    A(f"s_cmp_eq_u32 s{S_J}, 0\ns_cbranch_scc0 L_ld_nored")
    if opt("REDPRIO", 1): A("s_setprio 2")
    for b_ in range(1, 8):
        for k in range(4): A(f"v_add_f32 v{16+k}, v{16+k}, v{16+4*b_+k}")
    for k in range(4): A(f"v_mov_b32 v{20+k}, v{16+k}")
    A("s_nop 1")
    for k in range(4): A(f"v_permlane32_swap_b32 v{16+k}, v{20+k}")
    A("s_nop 0")
    for k in range(4): A(f"v_add_f32 v{16+k}, v{16+k}, v{20+k}")
    A(f"v_add_u32 v13, {LCS}, v13\nds_write_b128 v13, v[16:19]")
    if opt("REDPRIO", 1): A("s_setprio 0")
    A("s_waitcnt lgkmcnt(0)")
    A("L_ld_nored:")
    A("s_barrier")
    stamp(A)
    A("s_barrier")
    A("s_branch L_ld_p2")
    A("L_ld_h1:")
    A(f"s_cmp_eq_u32 s{S_J}, 1\ns_cbranch_scc1 L_ld_h1f")
    A(f"buffer_load_dwordx2 v[14:15], v12, s[32:35], 0 offen {SC}")
    A("s_branch L_ld_h1_ret")
    A("L_ld_h1f:")
    A(f"buffer_load_dwordx2 v[48:49], v11, s[32:35], 0 offen {SC}")
    A("s_branch L_ld_h1_ret")
    A("L_ld_h1w:")
    if opt("NOW"): A("s_branch L_ld_h1w_ret")
    A("s_cmp_ge_u32 s59, 54\ns_cbranch_scc1 L_ld_h1w_ret")
    srd(A, 84, W2, W2_BYTES)
    A(f"s_mul_i32 s50, s59, 40960\ns_mul_i32 s62, s{S_CT}, 160\ns_add_u32 s50, s50, s62")
    A(f"s_mul_i32 s62, s58, 5120\ns_add_u32 s62, s62, {LW}")
    for q in range(5):
        A(f"s_add_u32 m0, s62, {1024*q}\ns_nop 0")
        A(f"buffer_load_dwordx4 v{52+q}, s[84:87], s50 offen lds")
    A("s_branch L_ld_h1w_ret")
    A("L_ld_h2:")
    spin(A, "L_ld_sp", 14, 12, 32, xcc=True)
    A(f"v_and_b32 v50, 16, v1\nv_cmp_eq_u32 s[60:61], 0, v50\nv_cmp_ne_u32 vcc, s{S_XCC}, v15\ns_nop 3\ns_and_b64 vcc, vcc, s[60:61]")
    A(f"s_cmp_eq_u64 vcc, 0\ns_cselect_b32 s62, {1 if opt('LOCALH', 2) and opt('MAP1', 1) else 0}, 0")
    A(f"v_mov_b32 v50, {LCNT + 12}\nv_mov_b32 v51, s62\nds_write_b32 v50, v51")
    A("s_branch L_ld_h2_ret")
    A("L_ld_h4:")
    A(f"s_lshl_b32 s50, s{S_B}, 10\ns_add_u32 s50, s50, {ST_OFF}\ns_mov_b32 m0, {LST}\nv_lshlrev_b32 v13, 4, v1")
    A(f"buffer_load_dwordx4 v13, s[36:39], s50 offen {SC} lds")
    A(f"s_lshl_b32 s50, s{S_F0}, 2\ns_add_u32 s50, s50, {CS_OFF}")
    A("v_and_b32 v13, 31, v1\nv_lshlrev_b32 v13, 4, v13\nv_lshrrev_b32 v14, 5, v1\nv_lshlrev_b32 v14, 13, v14\nv_add_u32 v14, v13, v14")
    for b_ in range(8):
        A(f"buffer_load_dwordx4 v[{16+4*b_}:{19+4*b_}], v14, s[36:39], s50 offen {SC}")
        if b_ < 7: A("s_add_u32 s50, s50, 16384")
    A("s_branch L_ld_h4_ret")
    A("L_ld_h2w:")
    A("v_lshlrev_b32 v22, 4, v1")
    if opt("NOW"): A("s_branch L_ld_h2w_ret")
    A("s_cmp_ge_u32 s59, 54\ns_cbranch_scc1 L_ld_h2w_ret")
    for n in range(5):
        A(f"ds_read_b64_tr_b16 v[{24+4*n}:{25+4*n}], v57 offset:{32*n}")
        A(f"ds_read_b64_tr_b16 v[{26+4*n}:{27+4*n}], v57 offset:{32*n+1280}")
    A(f"s_mul_i32 s50, s{S_CT}, 54\ns_add_u32 s50, s50, s59\ns_mul_i32 s50, s50, 5120\ns_add_u32 s50, s50, {W2F_OFF}")
    A("v_add_u32 v23, 4096, v22\ns_waitcnt lgkmcnt(0)")
    for n in range(4):
        A(f"buffer_store_dwordx4 v[{24+4*n}:{27+4*n}], v22, s[32:35], s50 offen offset:{1024*n} {SC}")
    A(f"buffer_store_dwordx4 v[40:43], v23, s[32:35], s50 offen {SC}")
    A("s_branch L_ld_h2w_ret")
    A("L_ld_h3:")
    store_flags(A, 58, 1, 32, 64, xcc=True)
    A("s_branch L_ld_h3_ret")
def loader_p2(A):
    A("L_ld_p2:")
    if opt("PRIOL1"): A("s_setprio 0")
    stamp(A, 3)
    if opt("P1ONLY"):
        stamp_flush(A, 0, WS, 9)
        A("s_endpgm")
    if opt("WLATE", 1):
        A(f"v_mov_b32 v16, {LCNT + 20}")
        A(f"s_cmp_eq_u32 s{S_J}, 1\ns_cbranch_scc0 L_ld_ww")
        spin(A, "L_ld_spw", 48, 11, 32, xcc=True)
        A("v_mov_b32 v17, 1\nds_write_b32 v16, v17\ns_waitcnt lgkmcnt(0)\ns_branch L_ld_wgo")
        A("L_ld_ww:\nds_read_b32 v17, v16\ns_waitcnt lgkmcnt(0)\ns_nop 0\nv_readfirstlane_b32 s50, v17\ns_nop 3\ns_cmp_eq_u32 s50, 1\ns_cbranch_scc1 L_ld_wgo")
        A(f"s_sub_u32 s{S_SPIN}, s{S_SPIN}, 1\ns_cmp_eq_u32 s{S_SPIN}, 0\ns_cbranch_scc0 L_ld_ww")
        A("L_ld_wgo:")
    p2(A)

def p2(A):
    J = S_J
    HSC = "" if opt("HPLAIN") else SC
    WSC = "" if opt("WPLAIN") else SC
    if opt("W2NT"): WSC += " nt"
    ACC = 16
    SET = [96, 132, 168]
    XR = 204
    VP = 214
    acc = lambda nt, a: ACC + 4 * (4 * nt + a)
    srd(A, 24, WS, WS_USED)
    A("v_lshlrev_b32 v2, 4, v1\nv_add_u32 v3, 4096, v2")
    MXLAST = opt("MXLAST", 1)
    if MXLAST:
        A(f"s_add_u32 s44, s{J}, 12\ns_mov_b32 s45, s44")
    else:
        A(f"s_mov_b32 s44, s{J}\ns_mov_b32 s45, s44")
    A(f"s_mul_i32 s49, s{S_CT}, {54*5120}\ns_add_u32 s49, s49, {W2F_OFF}")
    def adv(r):
        A(f"s_add_u32 s{r}, s{r}, 4\ns_cmp_ge_u32 s{r}, 54\ns_cselect_b32 s{r}, s{J}, s{r}")
    def loadB(si):
        b = SET[si]
        A("s_mul_i32 s50, s44, 5120\ns_add_u32 s50, s50, s49")
        for n in range(4):
            A(f"buffer_load_dwordx4 v[{b+4*n}:{b+4*n+3}], v2, s[24:27], s50 offen offset:{1024*n} {WSC}")
        A(f"buffer_load_dwordx4 v[{b+16}:{b+19}], v3, s[24:27], s50 offen {WSC}")
        adv(44)
    NB0 = opt("NB0", 3)
    for si in range(NB0): loadB(si)
    A(f"s_lshr_b32 s50, s{S_T0}, 1\ns_lshl_b32 s50, s50, 7\ns_add_u32 s50, s50, {FH_OFF}")
    if MXLAST:
        A("v_min_u32 v14, 10, v1\nv_add_u32 v14, 5, v14\nv_lshlrev_b32 v14, 3, v14\nv_add_u32 v15, s50, v14")
    else:
        A("v_and_b32 v14, 15, v1\nv_lshlrev_b32 v14, 3, v14\nv_add_u32 v15, s50, v14")
    A(f"s_cmp_eq_u32 s{J}, 0\ns_cbranch_scc0 L_p2_np0")
    A(f"buffer_load_dwordx2 v[{VP}:{VP+1}], v15, s[24:27], 0 offen {SC}")
    A("L_p2_np0:")
    srd(A, 28, WS, 4 * HF_TILE)
    A(f"s_mul_i32 s50, s{S_T0}, {4*HF_TILE}")
    if HF_OFF: A(f"s_add_u32 s50, s50, {HF_OFF}")
    A("s_add_u32 s28, s28, s50\ns_addc_u32 s29, s29, 0")
    srd(A, 32, X_, X_BYTES)
    srd(A, 40, OUT, X_BYTES)
    for a_ in range(4):
        A(f"s_add_u32 s50, s{J}, {a_}\ns_and_b32 s50, s50, 3\ns_mul_i32 s50, s50, {HF_TILE}\nv_add_u32 v{4+a_}, s50, v2")
    RSTR = 336
    A(f"s_lshl_b32 s50, s{J}, 6\nv_add_u32 v8, s50, v1")
    A(f"s_mov_b32 s50, 3277\ns_mul_i32 s38, s{S_T0}, 1280\ns_mul_i32 s39, s{S_CT}, 160\ns_add_u32 s38, s38, s39")
    for n in range(5):
        A(f"v_add_u32 v9, {256*n}, v8\nv_mul_lo_u32 v10, s50, v9\nv_lshrrev_b32 v10, 16, v10")
        A("v_mul_u32_u24 v11, 20, v10\nv_sub_u32 v11, v9, v11")
        A(f"v_mul_u32_u24 v12, {RSTR}, v10\nv_lshlrev_b32 v13, 4, v11\nv_add_u32 v{220+n}, v12, v13")
        A("v_lshrrev_b32 v12, 5, v10\nv_mul_u32_u24 v12, 40960, v12\nv_and_b32 v10, 31, v10\nv_mul_u32_u24 v10, 81920, v10")
        A(f"v_lshlrev_b32 v11, 3, v11\nv_add3_u32 v{225+n}, v10, v12, v11")
    A(f"v_and_b32 v9, 15, v1\nv_mul_u32_u24 v9, {RSTR}, v9\nv_lshrrev_b32 v10, 4, v1\nv_lshlrev_b32 v10, 4, v10\nv_add_u32 v230, v9, v10")
    FFR = 236
    A(f"s_add_u32 s50, s{J}, 2\ns_and_b32 s50, s50, 3\ns_lshl_b32 s50, s50, 3\nv_lshrrev_b32 v9, 4, v1\nv_lshlrev_b32 v9, 1, v9\nv_add_u32 v9, s50, v9")
    A(f"s_mov_b32 s51, 0x3a000000\ns_mov_b32 s52, 0xba000000\ns_cmp_lt_u32 s{S_CT}, 4\ns_cselect_b32 s52, s51, s52")
    A("v_and_b32 v10, 15, v1\nv_lshlrev_b32 v10, 6, v10")
    for a_ in range(4):
        A(f"s_add_u32 s50, s{J}, {a_}\ns_and_b32 s50, s50, 3\ns_lshr_b32 s53, s50, 1\ns_lshl_b32 s53, s53, 5\ns_and_b32 s50, s50, 1\ns_lshl_b32 s50, s50, 10")
        A(f"s_add_u32 s50, s50, s53\ns_add_u32 s50, s50, s{S_T0}\nv_add_u32 v11, s50, v10")
        for k, ds in enumerate([0, 1, 32, 33]):
            A(f"v_add_u32 v12, {ds}, v9\nv_mul_u32_u24 v12, v11, v12\nv_and_b32 v12, 0x7ff, v12\nv_cvt_f32_u32 v12, v12")
            A(f"v_mul_f32 v13, s51, v12\nv_mul_f32 v12, s52, v12\nv_cos_f32 v13, v13\nv_sin_f32 v12, v12\ns_nop 0\nv_cvt_pk_bf16_f32 v{FFR+4*a_+k}, v13, v12")
    def loadA(si):
        b = SET[si] + 20
        A("s_lshl_b32 s50, s45, 10")
        for a_ in range(4):
            A(f"buffer_load_dwordx4 v[{b+4*a_}:{b+4*a_+3}], v{4+a_}, s[28:31], s50 offen {HSC}")
        adv(45)
    def loadT(si):
        b = SET[si]
        A("s_mov_b32 s50, s46")
        for n in range(5):
            A(f"buffer_load_dwordx4 v[{b+4*n}:{b+4*n+3}], v10, s[24:27], s50 offen {SC}")
            if n < 4: A("s_add_u32 s50, s50, s47")
    def mfmas(si):
        b = SET[si]
        for a_ in range(4):
            for nt in range(5):
                c = acc(nt, a_)
                if not opt("NOCOMP2"):
                    A(f"{MFMA16} v[{c}:{c+3}], v[{b+4*nt}:{b+4*nt+3}], v[{b+20+4*a_}:{b+23+4*a_}], v[{c}:{c+3}]")
    def last_step(si):
        b = SET[si]
        def grp(a_):
            for nt in range(5):
                c = acc(nt, a_)
                if not opt("NOCOMP2"):
                    A(f"{MFMA16} v[{c}:{c+3}], v[{b+4*nt}:{b+4*nt+3}], v[{FFR+4*a_}:{FFR+4*a_+3}], v[{c}:{c+3}]")
        def addr(a_):
            A(f"s_add_u32 s50, s{J}, {a_}\ns_and_b32 s50, s50, 3\ns_mul_i32 s50, s50, {16*336}\ns_mul_i32 s51, s{J}, {64*336}\ns_add_u32 s50, s50, s51\nv_add_u32 v{232+a_}, s50, v230")
        def wr(a_):
            for nt in range(5):
                c = acc(nt, a_)
                A(f"ds_write_b128 v{232+a_}, v[{c}:{c+3}] offset:{nt*64}")
        grp(0); addr(0); addr(1); grp(1); addr(2); wr(0); grp(2); addr(3); wr(1); grp(3); A("s_nop 3"); wr(2); A("s_nop 3"); wr(3)
    def xorA(si):
        b = SET[si] + 20
        for k in range(16): A(f"v_xor_b32 v{b+k}, s48, v{b+k}")
        A("s_nop 0")
    for i in range(80): A(f"v_mov_b32 v{ACC+i}, 0")
    A(f"v_lshrrev_b32 v10, 4, v1\nv_mul_u32_u24 v10, {TF_ROW}, v10\nv_and_b32 v11, 15, v1")
    A(f"s_mul_i32 s50, s{S_CT}, 80\nv_add_u32 v12, s50, v11\nv_sub_u32 v13, 576, v12")
    A(f"s_cmp_lt_u32 s{S_CT}, 4\ns_cselect_b64 s[60:61], -1, 0\nv_cndmask_b32 v12, v13, v12, s[60:61]")
    A("v_lshlrev_b32 v12, 4, v12\nv_add_u32 v10, v10, v12")
    A(f"s_sub_u32 s46, 32, s{S_T0}\ns_and_b32 s46, s46, 31\ns_cmp_lt_u32 s{S_CT}, 4\ns_cselect_b32 s46, s{S_T0}, s46")
    A(f"s_mul_i32 s46, s46, {TF_T0}\ns_add_u32 s46, s46, {TF_OFF}")
    A(f"s_mov_b32 s47, 256\ns_mov_b32 s50, -256\ns_cmp_lt_u32 s{S_CT}, 4\ns_cselect_b32 s47, s47, s50\ns_cselect_b32 s50, 0, 1024\ns_cselect_b32 s48, 0x80000000, 0")
    A("s_add_u32 s46, s46, s50")
    A(f"s_add_u32 s50, s{J}, 2\ns_and_b32 s50, s50, 3\ns_mul_i32 s50, s50, {4*TF_ROW}\ns_add_u32 s46, s46, s50")
    A(f"s_lshl_b32 s50, s{S_CT}, 10\ns_add_u32 s50, s50, {FT_OFF}\nv_lshlrev_b32 v12, 3, v1\nv_add_u32 v12, s50, v12")
    A("v_and_b32 v13, 15, v1\nv_lshlrev_b32 v13, 3, v13\nv_add_u32 v13, s50, v13\nv_add_u32 v13, 512, v13")
    A(f"s_lshr_b32 s50, s{S_T0}, 1\ns_lshl_b32 s50, s50, 7\ns_add_u32 s50, s50, {FH_OFF}\nv_min_u32 v9, 4, v1\nv_lshlrev_b32 v9, 3, v9\nv_add_u32 v9, s50, v9")
    A(f"s_cmp_eq_u32 s{J}, 0\ns_cbranch_scc0 L_p2_lw")
    A("s_waitcnt vmcnt(0)")
    if opt("SPINSTAMP") == "L_p2_sp1": stamp(A)
    spin(A, "L_p2_sp1", VP, 15, 24, xcc=True)
    A(f"v_mov_b32 v14, {LCNT + 16}\nv_mov_b32 v15, 1\nds_write_b32 v14, v15\ns_waitcnt lgkmcnt(0)")
    A("s_branch L_p2_go")
    A("L_p2_lw:")
    if opt("P2ONLY"): A("s_branch L_p2_go")
    A(f"v_mov_b32 v14, {LCNT + 16}")
    A("L_p2_lw1:\nds_read_b32 v15, v14\ns_waitcnt lgkmcnt(0)\ns_nop 0\nv_readfirstlane_b32 s50, v15\ns_nop 3\ns_cmp_eq_u32 s50, 1\ns_cbranch_scc1 L_p2_go")
    A(f"s_sleep 1\ns_sub_u32 s{S_SPIN}, s{S_SPIN}, 1\ns_cmp_eq_u32 s{S_SPIN}, 0\ns_cbranch_scc0 L_p2_lw1")
    A("L_p2_go:")
    stamp(A, 5)
    for si in range(NB0): loadA(si)
    for si in range(NB0, 3):
        loadB(si); loadA(si)
    def loadX():
        for n in range(5):
            A(f"buffer_load_dwordx2 v[{XR+2*n}:{XR+2*n+1}], v{225+n}, s[32:35], s38 offen")
    XLATE = opt("XLATE", 1)
    if not XLATE: loadX()
    def step(si, vm, pre):
        A(f"s_waitcnt vmcnt({vm})")
        mfmas(si)
        pre()
    reg = lambda si: (lambda: (loadB(si), loadA(si)))
    order = [(si, 4) for si in range(NB0)] + [(si, 9) for si in range(NB0, 3)] + ([] if XLATE else [(-1, 5)])
    for st_ in range(3):
        idx = max(i for i, (si, n) in enumerate(order) if si == st_)
        younger = sum(n for (si, n) in order[idx+1:]) + 9 * st_
        step(st_, younger, reg(st_))
        if opt("STEPSTAMP"): stamp(A)
    stamp(A)
    if MXLAST: A(f"buffer_load_dwordx2 v[{VP+4}:{VP+5}], v9, s[24:27], 0 offen {SC}")
    A("s_mov_b32 s51, 2")
    A("L_p2_loop:")
    for si in range(3):
        step(si, 18, reg(si))
        if opt("STEPSTAMP"): stamp(A)
    A("s_cmp_eq_u32 s51, 2\ns_cbranch_scc0 L_p2_nt")
    if MXLAST and not opt("NOMCHK"): spin(A, "L_p2_spm", VP + 4, 9, 24, xcc=True)
    if not opt("TLATE", 1):
        A(f"buffer_load_dwordx2 v[{VP}:{VP+1}], v12, s[24:27], 0 offen {SC}\nbuffer_load_dwordx2 v[{VP+2}:{VP+3}], v13, s[24:27], 0 offen {SC}")
    A("L_p2_nt:")
    A("s_sub_u32 s51, s51, 1\ns_cmp_lg_u32 s51, 0\ns_cbranch_scc1 L_p2_loop")
    stamp(A)
    TLATE = opt("TLATE", 1)
    if TLATE:
        A(f"buffer_load_dwordx2 v[{VP}:{VP+1}], v12, s[24:27], 0 offen {SC}\nbuffer_load_dwordx2 v[{VP+2}:{VP+3}], v13, s[24:27], 0 offen {SC}")
    step(0, 18, reg(0))
    def tcheck(tag, epoch):
        if not opt("NOTCHK"):
            spin(A, tag + "2", VP, 12, 24)
            spin(A, tag + "3", VP + 2, 13, 24)
        if epoch:
            A(f"s_cmp_eq_u32 s2, 0\ns_cbranch_scc0 {tag}_noep\ns_cmp_eq_u32 s{J}, 0\ns_cbranch_scc0 {tag}_noep")
            A(f"v_mov_b32 v14, s{S_E}\nv_mov_b32 v15, {EP_OFF}\ns_mov_b64 exec, 1\nbuffer_store_dword v14, v15, s[24:27], 0 offen {SC}\ns_mov_b64 exec, -1")
            A(f"{tag}_noep:")
    if not TLATE: tcheck("L_p2_sp", True)
    stamp(A)
    A(f"s_cmp_lt_u32 s{J}, 2\ns_cbranch_scc0 L_p2_hi")
    step(1, 18, reg(1))
    step(2, 18, lambda: (tcheck("L_p2_lo", True) if TLATE else None, loadT(2), loadX() if XLATE else None))
    xq = 5 if XLATE else 0
    step(0, 14 + xq, lambda: None)
    step(1, 5 + xq, lambda: None)
    A(f"s_waitcnt vmcnt({xq})"); last_step(2)
    A("s_branch L_p2_red")
    A("L_p2_hi:")
    step(1, 18, lambda: ((A("s_waitcnt vmcnt(9)"), tcheck("L_p2_hi", False)) if TLATE else None, loadT(1), loadX() if XLATE else None))
    step(2, 14 + xq, lambda: None)
    step(0, 5 + xq, lambda: None)
    A(f"s_waitcnt vmcnt({xq})"); last_step(1)
    A("L_p2_red:")
    stamp(A)
    A("s_waitcnt lgkmcnt(0)\ns_barrier")
    R0 = 96
    def rd(n):
        for w in range(4):
            r = R0 + 16 * n + 4 * w
            A(f"ds_read_b128 v[{r}:{r+3}], v{220+n} offset:{w*64*336}")
    rd(0); rd(1); rd(2)
    OSC = SC if opt("OUTSC") else ""
    for n in range(5):
        r = R0 + 16 * n; x = XR + 2 * n
        if n == 0: A("s_waitcnt vmcnt(0) lgkmcnt(8)")
        elif n == 1: A("s_waitcnt lgkmcnt(8)")
        elif n == 2: A("s_waitcnt lgkmcnt(8)")
        elif n == 3: A("s_waitcnt lgkmcnt(4)")
        else: A("s_waitcnt lgkmcnt(0)")
        A(f"v_pk_add_f32 v[{r}:{r+1}], v[{r}:{r+1}], v[{r+4}:{r+5}]\nv_pk_add_f32 v[{r+2}:{r+3}], v[{r+2}:{r+3}], v[{r+6}:{r+7}]")
        A(f"v_pk_add_f32 v[{r+8}:{r+9}], v[{r+8}:{r+9}], v[{r+12}:{r+13}]\nv_pk_add_f32 v[{r+10}:{r+11}], v[{r+10}:{r+11}], v[{r+14}:{r+15}]")
        if n + 3 < 5: pass
        A(f"v_lshlrev_b32 v{r+4}, 16, v{x}\nv_and_b32 v{r+5}, 0xffff0000, v{x}\nv_lshlrev_b32 v{r+6}, 16, v{x+1}\nv_and_b32 v{r+7}, 0xffff0000, v{x+1}")
        A(f"v_pk_add_f32 v[{r}:{r+1}], v[{r}:{r+1}], v[{r+8}:{r+9}]\nv_pk_add_f32 v[{r+2}:{r+3}], v[{r+2}:{r+3}], v[{r+10}:{r+11}]")
        A(f"v_pk_add_f32 v[{r}:{r+1}], v[{r}:{r+1}], v[{r+4}:{r+5}]\nv_pk_add_f32 v[{r+2}:{r+3}], v[{r+2}:{r+3}], v[{r+6}:{r+7}]")
        A(f"v_cvt_pk_bf16_f32 v{x}, v{r}, v{r+1}\nv_cvt_pk_bf16_f32 v{x+1}, v{r+2}, v{r+3}")
        A(f"buffer_store_dwordx2 v[{x}:{x+1}], v{225+n}, s[40:43], s38 offen {OSC}")
        if n == 0: rd(3)
        if n == 1: rd(4)
    stamp(A)
    if opt("DBGT"):
        A(f"s_waitcnt vmcnt(0)\ns_memrealtime s[90:91]\ns_waitcnt lgkmcnt(0)")
        A(f"s_cmp_eq_u32 s{S_J}, 1\ns_cbranch_scc0 L_dbg_d\ns_cmp_lt_u32 s2, 8\ns_cbranch_scc0 L_dbg_d")
        srd(A, 92, DBG, 256)
        A("s_lshl_b32 s96, s2, 3\nv_mov_b32 v4, s88\nv_mov_b32 v5, s90\nv_mov_b32 v6, 0\ns_mov_b64 exec, 1\nbuffer_store_dwordx2 v[4:5], v6, s[92:95], s96 offen\ns_waitcnt vmcnt(0)")
        A("L_dbg_d:")
    if opt("CLK") and asmlib.PROFILE:
        A("s_memtime s[90:91]\ns_waitcnt lgkmcnt(0)\ns_sub_u32 s90, s90, s88\ns_mov_b32 m0, 62\nv_writelane_b32 v0, s90, m0")
    stamp_flush(A, 0, WS, 9)
    A("s_endpgm")

def gen(A, name):
    global KNAME
    KNAME = name
    kernel_head(A, name)
    entry(A)
    if opt("P2ONLY"):
        A(f"s_mov_b32 s{S_SPIN}, 1\ns_cmp_lt_u32 s3, 4\ns_cbranch_scc1 L_end\ns_sub_u32 s{S_J}, s3, 4\ns_waitcnt lgkmcnt(0)\ns_branch L_ld_p2")
    lay = opt("LAYOUT", 0)
    if lay == 0:
        A("s_cmp_ge_u32 s3, 4\ns_cbranch_scc1 L_loader")
        jobs_issue(A)
        A(f"s_cmp_lt_u32 s{S_C}, 5\ns_cbranch_scc1 L_mx")
        p1_hh(A); p1_mx(A); loader(A); loader_p2(A)
    elif lay == 1:
        A("s_cmp_lt_u32 s3, 4\ns_cbranch_scc1 L_comp")
        loader(A)
        A("L_comp:")
        jobs_issue(A)
        A(f"s_cmp_lt_u32 s{S_C}, 5\ns_cbranch_scc1 L_mx")
        p1_hh(A); p1_mx(A); loader_p2(A)
    elif lay == 2:
        A("s_cmp_ge_u32 s3, 4\ns_cbranch_scc1 L_loader")
        jobs_issue(A)
        A(f"s_cmp_lt_u32 s{S_C}, 5\ns_cbranch_scc1 L_mx\ns_branch L_hh")
        loader(A)
        p1_hh(A); p1_mx(A); loader_p2(A)
    A("L_end:\ns_endpgm\nL_code_end:")
```

```python
from asmlib import *
import asmlib
from layout import *

MFMA32 = "v_mfma_f32_32x32x16_bf16"
MFMA16 = "v_mfma_f32_16x16x32_bf16"
RING = 32768; NS = 4
SLOT = 20480; NS2 = 6
LX = NS2 * SLOT
LW = 132 * 1024
LST = 152 * 1024
LCS = LST + 1024
LCNT = LST + 2048
LDS_TOTAL = LCNT + 64
X_, SRE, SIM, HRE, HIM, WS = 4, 6, 8, 10, 12, 16
W1, W2, OUT, DBG = 64, 66, 68, 70
S_B, S_C, S_F0, S_J = 18, 19, 20, 21
S_T0, S_CT = 72, 73
S_SPIN = 74
SC = "sc1"
SPIN_MAX = 200000
CPW = 3

MAGIC = 0x5A3C96E1
S_E, S_EM = 75, 76
S_XCC = 77
S_LOCAL = 78

def spin(A, name, vp, vaddr, srdp, xcc=False):
    A(f"{name}:")
    if xcc:
        A(f"v_xor_b32 v{vp+1}, s{S_EM}, v{vp+1}\nv_cmp_ne_u32 vcc, s{S_E}, v{vp}\nv_cmp_lt_u32 s[60:61], 15, v{vp+1}\ns_nop 3\ns_or_b64 vcc, vcc, s[60:61]")
    else:
        A(f"v_cmp_ne_u32 vcc, s{S_E}, v{vp}\nv_cmp_ne_u32 s[60:61], s{S_EM}, v{vp+1}\ns_nop 3\ns_or_b64 vcc, vcc, s[60:61]")
    A(f"s_cbranch_vccz {name}_ok")
    if opt("P2ONLY"): A(f"s_branch {name}_ok")
    A(f"s_sub_u32 s{S_SPIN}, s{S_SPIN}, 1\ns_cmp_eq_u32 s{S_SPIN}, 0\ns_cbranch_scc1 {name}_ok")
    A(f"s_sleep {opt('SLEEP', 4)}")
    A(f"buffer_load_dwordx2 v[{vp}:{vp+1}], v{vaddr}, s[{srdp}:{srdp+3}], 0 offen {SC}\ns_waitcnt vmcnt(0)")
    if opt("SPINSTAMP") == name: stamp(A)
    A(f"s_branch {name}\n{name}_ok:")

def store_flags(A, vaddr, nlanes, srdp, vt, xcc=False, local=None):
    if xcc:
        A(f"s_xor_b32 s62, s{S_EM}, s{S_XCC}\nv_mov_b32 v{vt}, s{S_E}\nv_mov_b32 v{vt+1}, s62\ns_mov_b64 exec, {(1 << nlanes) - 1}")
    else:
        A(f"v_mov_b32 v{vt}, s{S_E}\nv_mov_b32 v{vt+1}, s{S_EM}\ns_mov_b64 exec, {(1 << nlanes) - 1}")
    if local:
        A(f"s_cmp_eq_u32 s{S_LOCAL}, 1\ns_cbranch_scc1 {local}_fp")
    A(f"buffer_store_dwordx2 v[{vt}:{vt+1}], v{vaddr}, s[{srdp}:{srdp+3}], 0 offen {SC}")
    if local:
        A(f"s_branch {local}_fd\n{local}_fp:")
        A(f"buffer_store_dwordx2 v[{vt}:{vt+1}], v{vaddr}, s[{srdp}:{srdp+3}], 0 offen")
        A(f"{local}_fd:")
    A("s_mov_b64 exec, -1")

def flag_addr_h(A, v):
    A(f"s_lshl_b32 s62, s{S_B}, 4\ns_add_u32 s62, s62, s{S_C}\ns_lshl_b32 s62, s62, 3\ns_add_u32 s62, s62, {FH_OFF}\nv_mov_b32 v{v}, s62")
def flag_addr_t(A, v):
    A(f"s_lshl_b32 s62, s{S_C}, 4\ns_add_u32 s62, s62, s{S_B}\ns_lshl_b32 s62, s62, 3\ns_add_u32 s62, s62, {FT_OFF}")
    A(f"v_lshlrev_b32 v{v}, 10, v1\nv_add_u32 v{v}, s62, v{v}")
def flag_addr_early(A, v):
    A(f"s_lshl_b32 s62, s{S_B}, 4\ns_add_u32 s62, s62, s{S_C}\ns_lshl_b32 s62, s62, 3\ns_add_u32 s58, s62, {FR1_OFF}")
    A(f"s_lshl_b32 s62, s{S_C}, 4\ns_add_u32 s62, s62, s{S_B}\ns_lshl_b32 s62, s62, 3\ns_add_u32 s62, s62, {FC1_OFF}")
    A(f"s_cmp_eq_u32 s3, 1\ns_cselect_b32 s58, s62, s58\nv_mov_b32 v{v}, s58")

def epoch_ready(A):
    A("s_waitcnt lgkmcnt(0)")
    A(f"s_add_u32 s{S_E}, s{S_E}, 1\ns_xor_b32 s{S_EM}, s{S_E}, {MAGIC}")
    srd(A, 48, WS, WS_USED)

def lds_arrive(A, word, vt, sdst):
    A(f"v_mov_b32 v{vt}, {LCNT + 4*word}\nv_mov_b32 v{vt+1}, 1\ns_mov_b64 exec, 1")
    A(f"ds_add_rtn_u32 v{vt+1}, v{vt}, v{vt+1}\ns_waitcnt lgkmcnt(0)\ns_mov_b64 exec, -1\ns_nop 0")
    A(f"v_readfirstlane_b32 s{sdst}, v{vt+1}")
    A("s_nop 3")

def code_prefetch(A, tag, mode):
    A(f"s_getpc_b64 s[50:51]\nJ_pc{tag}:")
    A(f"s_sub_u32 s50, s50, J_pc{tag}-{KNAME}\ns_subb_u32 s51, s51, 0")
    A(f"s_mov_b32 s52, ((L_code_end-{KNAME})>>7)-1")
    def lines(first_expr, n, dst):
        A(f"v_add_u32 v22, {first_expr}, v1\nv_min_u32 v22, s52, v22\nv_lshlrev_b32 v22, 7, v22")
        A("v_mov_b32 v23, s51\nv_add_co_u32 v22, vcc, s50, v22\ns_nop 1\nv_addc_co_u32 v23, vcc, 0, v23, vcc")
        A(f"global_load_dword v{dst}, v[22:23], off")
    if mode == 0:
        A("s_lshr_b32 s53, s2, 3\ns_mul_i32 s53, s53, 6\ns_mov_b64 exec, 63")
        lines("s53", 1, 127)
        A("s_mov_b64 exec, -1")
    elif mode == 4:
        A("s_lshr_b32 s53, s2, 3\ns_and_b32 s53, s53, 3\ns_mul_i32 s53, s53, 52\ns_mov_b32 exec_hi, 0xfffff")
        lines("s53", 1, 127)
        A("s_mov_b64 exec, -1")
    elif mode == 6:
        A("s_lshr_b32 s53, s2, 3\ns_and_b32 s53, s53, 7\ns_mul_i32 s53, s53, 26\ns_mov_b32 exec_hi, 0\ns_mov_b32 exec_lo, 0x3ffffff")
        lines("s53", 1, 127)
        A("s_mov_b64 exec, -1")
    elif mode == 5:
        A("s_lshr_b32 s53, s2, 3\ns_and_b32 s53, s53, 1\ns_mul_i32 s53, s53, 104")
        lines("s53", 1, 126)
        A("s_add_u32 s53, s53, 64\ns_mov_b32 exec_hi, 0xff")
        lines("s53", 1, 127)
        A("s_mov_b64 exec, -1")
    elif mode in (1, 2):
        for n in range(4): lines(64 * n, 1, (124 if mode == 1 else 24) + n)
    elif mode == 3 and tag == "a":
        lines(0, 1, 125)
        A(f"s_mov_b32 s53, (L_loader-{KNAME})>>7\ns_mov_b64 exec, 0xffffff")
        lines("s53", 1, 126)
        A("s_mov_b64 exec, -1")
    else:
        lines(64, 1, 24); lines(128, 1, 25)

def entry(A):
    A("s_cmp_ge_u32 s2, 256\ns_cbranch_scc1 L_end")
    A(f"s_load_dwordx4 s[4:7], s[0:1], {KA_X}")
    A(f"s_load_dwordx4 s[8:11], s[0:1], {KA_SIM}")
    A(f"s_load_dwordx2 s[12:13], s[0:1], {KA_HIM}")
    A(f"s_load_dwordx4 s[64:67], s[0:1], {KA_W1}")
    A(f"s_load_dwordx4 s[68:71], s[0:1], {KA_OUT}")
    A(f"s_load_dwordx2 s[16:17], s[0:1], {KA_WS}")
    A("v_lshrrev_b32 v2, 6, v0\nv_and_b32 v1, 63, v0\ns_nop 0\nv_readfirstlane_b32 s3, v2")
    if opt("CODEPF", 1) and opt("CPMODE", 4) in (0, 1, 3, 4, 5, 6):
        A(f"s_nop 3\ns_cmp_eq_u32 s3, {CPW}\ns_cbranch_scc0 L_nocp")
        code_prefetch(A, "a", opt("CPMODE", 4))
        A("L_nocp:")
    A("s_and_b32 s24, s2, 7\ns_lshr_b32 s25, s2, 3\ns_lshr_b32 s27, s25, 3\ns_and_b32 s28, s25, 7")
    if opt("MAP1", 1):
        A(f"s_lshl_b32 s26, s24, 1\ns_lshr_b32 s29, s25, 4\ns_add_u32 s{S_B}, s26, s29\ns_and_b32 s{S_C}, s25, 15")
    else:
        A(f"s_lshr_b32 s26, s24, 1\ns_lshl_b32 s26, s26, 2\ns_add_u32 s{S_B}, s26, s27")
        A(f"s_and_b32 s26, s24, 1\ns_lshl_b32 s26, s26, 3\ns_add_u32 s{S_C}, s26, s28")
    A(f"s_lshl_b32 s26, s{S_C}, 6\ns_lshl_b32 s29, s{S_C}, 7\ns_sub_u32 s29, s29, 320")
    A(f"s_cmp_lt_u32 s{S_C}, 5\ns_cselect_b32 s{S_F0}, s26, s29")
    A(f"s_lshl_b32 s24, s24, 2\ns_add_u32 s{S_T0}, s24, s27\ns_mov_b32 s{S_CT}, s28")
    A(f"s_mov_b32 s{S_SPIN}, {SPIN_MAX}")
    A(f"s_getreg_b32 s{S_XCC}, hwreg(HW_REG_XCC_ID)\ns_and_b32 s{S_XCC}, s{S_XCC}, 15")
    if opt("DBGT"): A("s_memrealtime s[88:89]")
    stamp_init(A)
    if opt("T0STAMP"): stamp(A, force=True)
    if opt("P2ONLY"): args_ready(A)

def args_ready(A):
    A("s_waitcnt lgkmcnt(0)")
    if opt("CLK"): A("s_memtime s[88:89]\ns_waitcnt lgkmcnt(0)")
    A(f"s_mov_b32 s62, {EP_OFF}\ns_load_dword s{S_E}, s[{WS}:{WS+1}], s62")
    stamp(A, 0, force=True)

def tlb_touch(A, dst):
    srd(A, 40, OUT, X_BYTES); srd(A, 44, W2, W2_BYTES)
    A("v_lshlrev_b32 v22, 20, v1")
    A(f"s_mov_b64 exec, {(1 << ((WS_USED >> 20) + 1)) - 1}\nbuffer_load_dword v{dst}, v22, s[36:39], 0 offen {SC}")
    A(f"s_mov_b64 exec, 7\nbuffer_load_dword v{dst+1}, v22, s[40:43], 0 offen {SC}\nbuffer_load_dword v{dst+2}, v22, s[44:47], 0 offen\ns_mov_b64 exec, -1")

def jobs_issue(A):
    A("s_cmp_eq_u32 s3, 0\ns_cbranch_scc1 J_x_i\ns_cmp_eq_u32 s3, 1\ns_cbranch_scc1 J_c_i")
    args_ready(A)
    srd(A, 36, WS, WS_USED)
    if opt("TLBPF", 1) and not opt("TLBLATE"):
        A("s_cmp_eq_u32 s3, 2\ns_cbranch_scc0 J_i_done")
        tlb_touch(A, 125)
        if opt("INPF"):
            srd(A, 40, X_, X_BYTES); srd(A, 44, W1, W1_BYTES)
            A("v_lshlrev_b32 v22, 7, v1\ns_mul_i32 s50, s2, 10240\ns_mul_i32 s51, s2, 8704")
            A("buffer_load_dword v124, v22, s[40:43], s50 offen\nbuffer_load_dword v123, v22, s[44:47], s51 offen")
            A("s_add_u32 s50, s50, 8192\ns_add_u32 s51, s51, 8192\ns_mov_b64 exec, 0xffff")
            A("buffer_load_dword v122, v22, s[40:43], s50 offen\ns_mov_b64 exec, 15\nbuffer_load_dword v121, v22, s[44:47], s51 offen\ns_mov_b64 exec, -1")
    A("s_branch J_i_done")
    A("J_x_i:")
    A(f"s_lshr_b32 s48, s{S_C}, 2\ns_and_b32 s49, s{S_C}, 3")
    A(f"s_lshl_b32 s50, s{S_B}, 1\ns_and_b32 s51, s48, 1\ns_add_u32 s50, s50, s51")
    A("s_lshr_b32 s51, s48, 1\ns_lshl_b32 s51, s51, 5\ns_add_u32 s50, s50, s51")
    A("s_lshl_b32 s51, s49, 9\ns_add_u32 s50, s50, s51\ns_mul_i32 s50, s50, 1280")
    A("v_lshrrev_b32 v22, 3, v1\ns_mov_b32 s51, 81920\nv_mul_lo_u32 v22, s51, v22")
    A("v_and_b32 v23, 7, v1\nv_lshlrev_b32 v23, 4, v23\nv_add_u32 v22, v22, v23")
    A(f"v_mov_b32 v20, {LCNT}\nv_mov_b32 v24, 0\nv_mov_b32 v25, 0\nv_mov_b32 v26, 0\nv_mov_b32 v27, 0\nds_write_b128 v20, v[24:27]\nds_write_b128 v20, v[24:27] offset:16")
    args_ready(A)
    srd(A, 24, X_, X_BYTES)
    for i in range(10):
        A(f"buffer_load_dwordx4 v[{32+4*i}:{35+4*i}], v22, s[24:27], s50 offen offset:{128*i}")
    srd(A, 36, WS, WS_USED)
    A("s_branch J_i_done")
    A("J_c_i:")
    A("v_lshrrev_b32 v22, 4, v1\nv_mul_u32_u24 v22, 3456, v22\nv_and_b32 v23, 15, v1\nv_lshlrev_b32 v23, 4, v23\nv_add_u32 v22, v22, v23")
    A(f"s_mul_i32 s50, s{S_B}, {40*3456}\ns_lshl_b32 s51, s{S_F0}, 1\ns_add_u32 s50, s50, s51")
    A(f"s_cmp_eq_u32 s{S_C}, 0\ns_cbranch_scc0 J_c_np")
    A("v_and_b32 v23, 7, v1\nv_lshlrev_b32 v23, 4, v23\nv_bfe_u32 v24, v1, 3, 2\nv_lshlrev_b32 v24, 15, v24\nv_add_u32 v23, v23, v24")
    A(f"v_add_u32 v23, {16384+8192+4096}, v23")
    A("v_mov_b32 v24, 0xbf803f80\nv_mov_b32 v25, 0x3f80bf80\nv_mov_b32 v26, 0xbf803f80\nv_mov_b32 v27, 0x3f80bf80")
    A("ds_write_b128 v23, v[24:27]")
    A("J_c_np:")
    args_ready(A)
    srd(A, 28, W1, W1_BYTES)
    for i in range(10):
        A(f"buffer_load_dwordx4 v[{32+4*i}:{35+4*i}], v22, s[28:31], s50 offen")
        if i < 9: A(f"s_add_u32 s50, s50, {4*3456}")
    srd(A, 36, WS, WS_USED)
    A("J_i_done:")

def dpp_add(A, r, ctrl):
    A(f"v_add_f32_dpp v{r}, v{r}, v{r} {ctrl} row_mask:0xf bank_mask:0xf")

def jobs_finish(A, nG_, tagx):
    nG = tagx
    class _N(str):
        pass
    A("s_cmp_eq_u32 s3, 0\ns_cbranch_scc1 %s\ns_cmp_eq_u32 s3, 1\ns_cbranch_scc1 %s\ns_branch %s" % (f"J_x_{nG}", f"J_c_{nG}", f"J_done_{nG}"))
    A(f"J_x_{nG}:")
    A("v_mov_b32 v22, 0\nv_mov_b32 v23, 0\nv_mov_b32 v24, 0\nv_mov_b32 v25, 0\ns_mov_b32 s52, 0x3f803f80")
    for i in range(10):
        A(f"s_waitcnt vmcnt({9-i+nG_})")
        for k in range(4):
            r = 32 + 4 * i + k
            A(f"v_dot2_f32_bf16 v{22+(k&1)}, v{r}, s52, v{22+(k&1)}")
            A(f"v_dot2_f32_bf16 v{24+(k&1)}, v{r}, v{r}, v{24+(k&1)}")
    A("s_nop 2\nv_add_f32 v22, v22, v23\nv_add_f32 v24, v24, v25\ns_nop 1")
    for ctrl in ["quad_perm:[1,0,3,2]", "quad_perm:[2,3,0,1]", "row_half_mirror"]:
        dpp_add(A, 22, ctrl); dpp_add(A, 24, ctrl); A("s_nop 0")
    A("s_mov_b32 s52, 0x3acccccd\nv_mul_f32 v22, s52, v22\nv_mul_f32 v24, s52, v24")
    A("v_fma_f32 v24, -v22, v22, v24\nv_max_f32 v24, 0, v24\nv_add_f32 v24, 0x3727c5ac, v24\nv_rsq_f32 v23, v24")
    A(f"s_lshl_b32 s52, s{S_B}, 10\ns_lshl_b32 s53, s{S_C}, 5\ns_add_u32 s52, s52, s53\ns_add_u32 s52, s52, {ST_OFF}")
    A("v_lshrrev_b32 v25, 3, v1\nv_lshlrev_b32 v25, 2, v25")
    A("v_and_b32 v26, 7, v1\nv_cmp_eq_u32 vcc, 0, v26\ns_and_saveexec_b64 s[54:55], vcc")
    A(f"buffer_store_dword v22, v25, s[36:39], s52 offen {SC}\nbuffer_store_dword v23, v25, s[36:39], s52 offen offset:512 {SC}")
    A("s_mov_b64 exec, s[54:55]")
    A(f"s_branch J_done_{nG}")
    A(f"J_c_{nG}:")
    for k in range(8): A(f"v_mov_b32 v{72+k}, 0")
    A("s_mov_b32 s52, 0x00003f80\ns_mov_b32 s53, 0x3f800000")
    for i in range(10):
        A(f"s_waitcnt vmcnt({9-i+nG_})")
        for k in range(4):
            r = 32 + 4 * i + k
            A(f"v_dot2_f32_bf16 v{72+2*k}, v{r}, s52, v{72+2*k}")
            A(f"v_dot2_f32_bf16 v{73+2*k}, v{r}, s53, v{73+2*k}")
    A("s_nop 2")
    for sw in ["v_permlane16_swap_b32", "v_permlane32_swap_b32"]:
        for k in range(8): A(f"v_mov_b32 v{80+k}, v{72+k}")
        A("s_nop 0")
        for k in range(8): A(f"{sw} v{72+k}, v{80+k}")
        A("s_nop 0")
        for k in range(8): A(f"v_add_f32 v{72+k}, v{72+k}, v{80+k}")
    A(f"s_lshl_b32 s52, s{S_B}, 13\ns_lshl_b32 s53, s{S_F0}, 2\ns_add_u32 s52, s52, s53\ns_add_u32 s52, s52, {CS_OFF}")
    A(f"v_lshlrev_b32 v22, 5, v1\ns_mov_b32 s53, 16\ns_cmp_lt_u32 s{S_C}, 5\ns_cselect_b32 s53, 8, s53")
    A("v_cmp_gt_u32 vcc, s53, v1\ns_and_saveexec_b64 s[54:55], vcc")
    A(f"buffer_store_dwordx4 v[72:75], v22, s[36:39], s52 offen {SC}\nbuffer_store_dwordx4 v[76:79], v22, s[36:39], s52 offen offset:16 {SC}")
    A("s_mov_b64 exec, s[54:55]")
    A(f"s_branch J_done_{nG}")
    A(f"J_done_{nG}:")
    A(f"s_cmp_ge_u32 s3, 2\ns_cbranch_scc0 J_dn2_{nG}\ns_waitcnt vmcnt(0)")
    if opt("TLBPF", 1) and opt("TLBLATE"):
        A(f"s_cmp_eq_u32 s3, 2\ns_cbranch_scc0 J_dn3_{nG}")
        tlb_touch(A, 24)
        A(f"J_dn3_{nG}:")
    if opt("CODEPF", 1) and opt("CPMODE", 4) in (2, 3):
        A(f"s_cmp_eq_u32 s3, {CPW}\ns_cbranch_scc0 J_dn2_{nG}")
        code_prefetch(A, "b" + nG, opt("CPMODE", 4))
    A(f"J_dn2_{nG}:")

def x_addr(A, dst, rowbase_sgpr, tmp):
    A(f"v_and_b32 v{tmp}, 31, v1\nv_add_u32 v{tmp+1}, s{rowbase_sgpr}, v{tmp}\nv_lshlrev_b32 v{tmp+1}, 7, v{tmp+1}")
    A(f"v_bfe_u32 v{tmp}, v1, 1, 3\nv_lshrrev_b32 v{tmp+2}, 5, v1\nv_xor_b32 v{tmp}, v{tmp}, v{tmp+2}")
    A(f"v_lshlrev_b32 v{tmp}, 4, v{tmp}\nv_add_u32 v{dst}, v{tmp+1}, v{tmp}")
    for j in range(1, 4):
        A(f"v_xor_b32 v{dst+j}, {32*j}, v{dst}")
def h_tr_addr(A, dst, tmp):
    A(f"v_bfe_u32 v{tmp}, v1, 5, 1\nv_lshlrev_b32 v{tmp}, 3, v{tmp}\nv_bfe_u32 v{tmp+1}, v1, 2, 2\nv_add_u32 v{tmp}, v{tmp}, v{tmp+1}")
    A(f"v_lshlrev_b32 v{tmp}, 7, v{tmp}")
    A(f"v_bfe_u32 v{tmp+1}, v1, 4, 1\nv_lshlrev_b32 v{tmp+1}, 1, v{tmp+1}\nv_bfe_u32 v{tmp+2}, v1, 1, 1\nv_add_u32 v{tmp+1}, v{tmp+1}, v{tmp+2}")
    A(f"v_bfe_u32 v{tmp+2}, v1, 3, 1\nv_lshlrev_b32 v{tmp+2}, 2, v{tmp+2}\nv_xor_b32 v{tmp+1}, v{tmp+1}, v{tmp+2}")
    A(f"v_lshlrev_b32 v{tmp+1}, 4, v{tmp+1}\nv_add_u32 v{tmp}, v{tmp}, v{tmp+1}")
    A(f"v_and_b32 v{tmp+1}, 1, v1\nv_lshlrev_b32 v{tmp+1}, 3, v{tmp+1}\nv_add_u32 v{dst}, v{tmp}, v{tmp+1}")
def interleave(A, mfmas, fillers, per_gap):
    if opt("NOCOMP1"):
        for f in fillers:
            if not f.startswith("ds_read") and not f.startswith("v_perm"): A(f)
        return
    k = 0
    for i, m in enumerate(mfmas):
        A(m)
        for _ in range(per_gap[i]):
            if k < len(fillers):
                A(fillers[k]); k += 1
    while k < len(fillers):
        A(fillers[k]); k += 1
def h_epilogue_tile(A, acc, mr, cs, tmp, vaddr, soff):
    for i in range(0, 16, 2):
        A(f"v_pk_fma_f32 v[{acc+i}:{acc+i+1}], v[{cs+i}:{cs+i+1}], v[{mr}:{mr+1}], v[{acc+i}:{acc+i+1}] op_sel:[0,0,0] op_sel_hi:[1,0,1] neg_lo:[0,1,0] neg_hi:[0,1,0]")
    for i in range(0, 16, 2):
        A(f"v_pk_mul_f32 v[{acc+i}:{acc+i+1}], v[{acc+i}:{acc+i+1}], v[{mr}:{mr+1}] op_sel:[0,1] op_sel_hi:[1,1]")
    for i in range(0, 16, 2):
        A(f"v_cvt_pk_bf16_f32 v{tmp+i//2}, v{acc+i}, v{acc+i+1}")
    for i in range(8):
        A(f"v_pk_max_i16 v{tmp+i}, v{tmp+i}, 0")
    if opt("LOCALH", 2) != 1:
        A(f"buffer_store_dwordx4 v[{tmp}:{tmp+3}], v{vaddr}, s[36:39], s{soff} offen {SC}")
        A(f"buffer_store_dwordx4 v[{tmp+4}:{tmp+7}], v{vaddr}, s[36:39], s{soff} offen offset:512 {SC}")
        return
    h_epilogue_tile.n += 1
    n = h_epilogue_tile.n
    A(f"s_cmp_eq_u32 s{S_LOCAL}, 1\ns_cbranch_scc1 L_hst{n}_p")
    A(f"buffer_store_dwordx4 v[{tmp}:{tmp+3}], v{vaddr}, s[36:39], s{soff} offen {SC}")
    A(f"buffer_store_dwordx4 v[{tmp+4}:{tmp+7}], v{vaddr}, s[36:39], s{soff} offen offset:512 {SC}")
    A(f"s_branch L_hst{n}_d\nL_hst{n}_p:")
    hst = {0: "", 1: "nt", 2: "sc0", 3: "sc0 nt"}[opt("HST", 0)]
    A(f"buffer_store_dwordx4 v[{tmp}:{tmp+3}], v{vaddr}, s[36:39], s{soff} offen {hst}")
    A(f"buffer_store_dwordx4 v[{tmp+4}:{tmp+7}], v{vaddr}, s[36:39], s{soff} offen offset:512 {hst}")
    A(f"L_hst{n}_d:")
h_epilogue_tile.n = 0
def h_store_voff(A, dst, tmp):
    A(f"v_bfe_u32 v{tmp}, v1, 4, 1\nv_mul_u32_u24 v{tmp}, {58*1024}, v{tmp}")
    A(f"v_lshrrev_b32 v{tmp+1}, 5, v1\nv_lshlrev_b32 v{tmp+1}, 8, v{tmp+1}\nv_add_u32 v{tmp}, v{tmp}, v{tmp+1}")
    A(f"v_and_b32 v{tmp+1}, 15, v1\nv_lshlrev_b32 v{tmp+1}, 4, v{tmp+1}\nv_add_u32 v{dst}, v{tmp}, v{tmp+1}")

def loop_hooks_top(A, tag):
    A(f"s_cmp_eq_u32 s29, s30\ns_cbranch_scc1 {tag}_flag1\n{tag}_flag1_ret:")
def loop_hooks_init(A):
    A(f"s_cmp_lt_u32 s3, 2\ns_cselect_b32 s30, {10 - opt('EARLY_IT', 1)}, 99")
def loop_hooks_ool(A, tag):
    A(f"{tag}_flag1:")
    flag_addr_early(A, 28)
    A("s_waitcnt vmcnt(0)")
    store_flags(A, 28, 1, 48, 30, xcc=True)
    A(f"s_branch {tag}_flag1_ret")

def publish(A, tag, word, kind, vt):
    A("s_waitcnt vmcnt(0)")
    lds_arrive(A, word, vt, 63)
    A(f"s_cmp_eq_u32 s63, 3\ns_cbranch_scc0 {tag}_np")
    if kind == "h":
        flag_addr_h(A, vt - 1); store_flags(A, vt - 1, 1, 48, vt, xcc=True, local=(tag if opt("LOCALF", 1) else None))
    else:
        flag_addr_t(A, vt - 1); store_flags(A, vt - 1, 8, 48, vt)
    A(f"{tag}_np:")

def p1_hh(A):
    A("L_hh:")
    ACC = 128; P, Q = 32, 64
    XB, WB = 2, 6; XC, WC = 8, 12
    A("s_lshr_b32 s24, s3, 1\ns_and_b32 s25, s3, 1")
    A("s_lshl_b32 s26, s24, 6")
    x_addr(A, XB, 26, 20)
    h_tr_addr(A, WB, 20)
    A("s_lshl_b32 s27, s25, 13\ns_add_u32 s27, s27, 16384")
    A(f"v_add_u32 v{WB}, s27, v{WB}\nv_xor_b32 v{WB+1}, 64, v{WB}")
    for i in range(64): A(f"v_mov_b32 v{ACC+i}, 0")
    for j in range(4): A(f"v_mov_b32 v{XC+j}, v{XB+j}")
    for j in range(2): A(f"v_mov_b32 v{WC+j}, v{WB+j}")
    A(f"v_and_b32 v20, 31, v1\nv_add_u32 v20, s26, v20\nv_lshlrev_b32 v20, 2, v20\nv_add_u32 v20, {LST}, v20")
    A(f"v_lshrrev_b32 v21, 5, v1\nv_lshlrev_b32 v21, 4, v21\ns_lshl_b32 s33, s25, 8\ns_add_u32 s33, s33, {LCS}\nv_add_u32 v21, s33, v21")
    h_store_voff(A, 19, 26)
    A(f"s_lshl_b32 s31, s{S_B}, 3\ns_lshl_b32 s32, s24, 1\ns_add_u32 s31, s31, s32\ns_mul_i32 s31, s31, 58")
    A(f"s_lshr_b32 s32, s{S_F0}, 5\ns_lshl_b32 s33, s25, 1\ns_add_u32 s32, s32, s33\ns_add_u32 s31, s31, s32")
    A(f"s_lshl_b32 s31, s31, 10\ns_add_u32 s31, s31, {HF_OFF}")
    jobs_finish(A, 0, 'h')
    epoch_ready(A)
    A("s_mov_b32 s28, 0")
    loop_hooks_init(A)
    def reads(buf, g):
        out = []
        for jj in range(2):
            j = 2 * g + jj; b = buf + 16 * jj
            out.append(f"ds_read_b128 v[{b}:{b+3}], v{XC+j}")
            out.append(f"ds_read_b64_tr_b16 v[{b+8}:{b+9}], v{WC} offset:{j*2048}")
            out.append(f"ds_read_b64_tr_b16 v[{b+10}:{b+11}], v{WC} offset:{j*2048+512}")
            out.append(f"ds_read_b128 v[{b+4}:{b+7}], v{XC+j} offset:4096")
            out.append(f"ds_read_b64_tr_b16 v[{b+12}:{b+13}], v{WC+1} offset:{j*2048}")
            out.append(f"ds_read_b64_tr_b16 v[{b+14}:{b+15}], v{WC+1} offset:{j*2048+512}")
        return out
    def mfmas(buf):
        out = []
        for jj in range(2):
            b = buf + 16 * jj
            for ft in range(2):
                for st in range(2):
                    a = ACC + 16 * (2 * ft + st)
                    out.append(f"{MFMA32} v[{a}:{a+15}], v[{b+8+4*ft}:{b+11+4*ft}], v[{b+4*st}:{b+3+4*st}], v[{a}:{a+15}]")
        return out
    stamp(A, 1)
    A("s_waitcnt lgkmcnt(0)\ns_barrier")
    stamp(A, 2)
    for r in reads(P, 0):
        if not opt("NOCOMP1"): A(r)
    A("s_mov_b32 s29, 10")
    A("L_hh_loop:")
    A.drop = (["v_mfma"] if opt("NOMF1") else []) + (["ds_read"] if opt("NODS1") else []) + (["v_perm"] if opt("NOPERM") else [])
    loop_hooks_top(A, "L_hh")
    A("s_waitcnt lgkmcnt(0)")
    A("s_cmp_eq_u32 s29, 1\ns_cbranch_scc1 L_hh_pre\nL_hh_pre_ret:")
    if opt("HHSTAMP"): stamp(A)
    upd = [f"v_add_u32 v{XC+j}, s28, v{XB+j}" for j in range(4)] + [f"v_add_u32 v{WC+j}, s28, v{WB+j}" for j in range(2)]
    ring = [f"s_add_u32 s28, s28, {RING}", f"s_and_b32 s28, s28, {NS*RING-1}"]
    pat = opt("HHPAT", 0)
    g1 = [[3, 3, 3, 3, 2, 3, 3, 0], [4, 4, 4, 2, 3, 3, 0, 0], [6, 6, 2, 3, 3, 0, 0, 0]][pat]
    g2 = [[3, 3, 3, 3, 0, 0, 0, 0], [4, 4, 4, 0, 0, 0, 0, 0], [6, 6, 0, 0, 0, 0, 0, 0]][pat]
    interleave(A, mfmas(P), reads(Q, 1) + ring + upd, g1)
    if opt("HHSTAMP"): A("s_waitcnt lgkmcnt(0)"); stamp(A)
    A("s_waitcnt lgkmcnt(0)")
    A("s_barrier")
    if opt("HHSTAMP"): stamp(A)
    interleave(A, mfmas(Q), reads(P, 0), g2)
    A.drop = []
    A("s_sub_u32 s29, s29, 1\ns_cmp_lg_u32 s29, 0\ns_cbranch_scc1 L_hh_loop")
    A("s_waitcnt vmcnt(0) lgkmcnt(0)")
    stamp(A, 3)
    A(f"v_readfirstlane_b32 s{S_LOCAL}, v18")
    A("s_nop 7")
    for st in range(2):
        for ft in range(2):
            A(f"s_add_u32 s32, s31, {(st*4*58+ft)*1024}")
            h_epilogue_tile(A, ACC + 16 * (2 * ft + st), 14 + 2 * st, 96 + 16 * ft, 64 + 8 * ((2 * st + ft) & 3), 19, 32)
    stamp(A, 4)
    publish(A, "L_hh_pub", 0, "h", 30)
    stamp(A)
    stamp_flush(A, 0, WS, 9)
    A("s_endpgm")
    loop_hooks_ool(A, "L_hh")
    A("L_hh_pre:")
    A("ds_read_b32 v14, v20\nds_read_b32 v15, v20 offset:512\nds_read_b32 v16, v20 offset:128\nds_read_b32 v17, v20 offset:640")
    A(f"v_mov_b32 v18, {LCNT + 12}\nds_read_b32 v18, v18")
    for ft in range(2):
        for q in range(4):
            b = 96 + 16 * ft + 4 * q
            A(f"ds_read_b128 v[{b}:{b+3}], v21 offset:{ft*128+q*32}")
    A("s_branch L_hh_pre_ret")

def p1_mx(A):
    A("L_mx:")
    P, Q = 32, 72
    EV, OD = 112, 116
    CE, CO, SE, SO = 120, 124, 128, 132
    HA, HB = 136, 152
    EC, ES, OC, OS = 168, 184, 200, 216
    G = 232
    XAB, WHB = 2, 6
    XAC, XBC, DAC, WHC = 7, 11, 15, 19
    def gmat():
        A("v_and_b32 v24, 31, v1\nv_cvt_f32_u32 v24, v24\nv_lshrrev_b32 v25, 5, v1\nv_cvt_f32_u32 v25, v25")
        A("v_mul_f32 v25, 0x3e000000, v25\nv_mul_f32 v25, v25, v24")
        for p in range(2):
            for uh in range(2):
                for u2 in range(2):
                    for k in range(2):
                        c = 16 * p + 8 * uh + 2 * u2 + k
                        import struct
                        lit = struct.unpack("<I", struct.pack("<f", c / 32.0))[0]
                        A(f"v_fmamk_f32 v26, v24, {lit:#x}, v25\nv_fract_f32 v26, v26")
                        A(f"v_cos_f32 v{28+k}, v26\nv_sin_f32 v{30+k}, v26")
                    A("s_nop 0")
                    A(f"v_cvt_pk_bf16_f32 v{G+4*p+2*uh+u2}, v28, v29\nv_cvt_pk_bf16_f32 v{G+16+4*p+2*uh+u2}, v30, v31")
        for i in range(8):
            A(f"v_xor_b32 v{G+8+i}, 0x80008000, v{G+16+i}")
    if not opt("GLATE", 1): gmat()
    A("s_lshr_b32 s24, s3, 1\ns_and_b32 s25, s3, 1")
    A("s_lshl_b32 s26, s3, 5\ns_xor_b32 s27, s26, 32")
    x_addr(A, XAB, 26, 24)
    h_tr_addr(A, WHB, 24)
    A(f"s_lshl_b32 s30, s25, 6\nv_xor_b32 v{WHB}, s30, v{WHB}\nv_add_u32 v{WHB}, 16384, v{WHB}")
    for i in range(96): A(f"v_mov_b32 v{HA+i}, 0")
    A("s_lshl_b32 s31, s3, 12\ns_sub_u32 s31, 24576, s31")
    def upd(js=(0, 1, 2, 3), wh=True):
        o = [f"v_add_u32 v{XAC+j}, s28, v{XAB+j}" for j in js] + ([f"v_add_u32 v{WHC}, s28, v{WHB}"] if wh else [])
        o += [f"v_xor_b32 v{XBC+j}, 0x1000, v{XAC+j}" for j in js]
        o += [f"v_add_u32 v{DAC+j}, s31, v{XAC+j}" for j in js]
        return o
    A("s_mov_b32 s28, 0")
    for t in upd(): A(t)
    jobs_finish(A, 0, 'm')
    epoch_ready(A)
    loop_hooks_init(A)
    A("s_mov_b32 s34, 0x05040100\ns_mov_b32 s35, 0x07060302")
    def reads(buf, m):
        out = []
        for jj in range(2):
            j = 2 * m + jj
            out.append(f"ds_read_b128 v[{buf+4*jj}:{buf+4*jj+3}], v{XAC+j}")
        for jj in range(2):
            j = 2 * m + jj
            out.append(f"ds_read_b64_tr_b16 v[{buf+16+4*jj}:{buf+17+4*jj}], v{WHC} offset:{j*2048}")
            out.append(f"ds_read_b64_tr_b16 v[{buf+18+4*jj}:{buf+19+4*jj}], v{WHC} offset:{j*2048+512}")
            out.append(f"ds_read_b128 v[{buf+8+4*jj}:{buf+11+4*jj}], v{XBC+j}")
        for jj in range(2):
            j = 2 * m + jj
            out.append(f"ds_read_b128 v[{buf+24+4*jj}:{buf+27+4*jj}], v{DAC+j}")
            out.append(f"ds_read_b128 v[{buf+32+4*jj}:{buf+35+4*jj}], v{DAC+j} offset:4096")
        return out
    def perms(src, e, o):
        ev = [f"v_perm_b32 v{e+k}, v{src+2*k+1}, v{src+2*k}, s34" for k in range(4)]
        od = [f"v_perm_b32 v{o+k}, v{src+2*k+1}, v{src+2*k}, s35" for k in range(4)]
        return ev, od
    def half(cur, nxt, m_next, extra):
        rd = reads(nxt, m_next)
        if opt("NOCOMP1"):
            for t in extra: A(t)
            return
        xe, xo = perms(cur, EV, OD); ce, co = perms(cur + 24, CE, CO); se, so = perms(cur + 32, SE, SO)
        H = []
        for jj in range(2):
            w = cur + 16 + 4 * jj
            H.append(f"{MFMA32} v[{HA}:{HA+15}], v[{w}:{w+3}], v[{cur+4*jj}:{cur+4*jj+3}], v[{HA}:{HA+15}]")
            H.append(f"{MFMA32} v[{HB}:{HB+15}], v[{w}:{w+3}], v[{cur+8+4*jj}:{cur+11+4*jj}], v[{HB}:{HB+15}]")
        Dm = [f"{MFMA32} v[{EC}:{EC+15}], v[{EV}:{EV+3}], v[{CE}:{CE+3}], v[{EC}:{EC+15}]",
              f"{MFMA32} v[{OC}:{OC+15}], v[{OD}:{OD+3}], v[{CO}:{CO+3}], v[{OC}:{OC+15}]",
              f"{MFMA32} v[{ES}:{ES+15}], v[{EV}:{EV+3}], v[{SE}:{SE+3}], v[{ES}:{ES+15}]",
              f"{MFMA32} v[{OS}:{OS+15}], v[{OD}:{OD+3}], v[{SO}:{SO+3}], v[{OS}:{OS+15}]"]
        if opt("MXSCHED", 1):
            ex = list(extra)
            def take(n):
                t = ex[:n]; del ex[:n]; return t
            pad = lambda n: (take(n) + ["s_nop 0"] * n)[:n]
            ms = H + [Dm[0], Dm[2], Dm[1], Dm[3]]
            gaps = [xe[0:2] + rd[0:3], xe[2:4] + rd[3:6], ce[0:2] + rd[6:9], ce[2:4] + rd[9:12],
                    se + xo[0:2], xo[2:4] + co + pad(2), so + pad(2), None]
            gaps[7] = ex
        else:
            gaps = [xe + rd[0:2], ce + rd[2:4], xo + rd[4:6], co + rd[6:8], se + rd[8:10], so + rd[10:12], extra[:8], extra[8:]]
            ms = H + Dm
        for i in range(8):
            A(ms[i])
            for t in gaps[i]: A(t)
    stamp(A, 1)
    A("s_waitcnt lgkmcnt(0)\ns_barrier")
    stamp(A, 2)
    for r in reads(P, 0):
        if not opt("NOCOMP1"): A(r)
    A("s_mov_b32 s29, 10")
    A("L_mx_loop:")
    A.drop = (["v_mfma"] if opt("NOMF1") else []) + (["ds_read"] if opt("NODS1") else []) + (["v_perm"] if opt("NOPERM") else [])
    loop_hooks_top(A, "L_mx")
    A("s_waitcnt lgkmcnt(0)")
    if opt("HHSTAMP"): stamp(A)
    ring = [f"s_add_u32 s28, s28, {RING}", f"s_and_b32 s28, s28, {NS*RING-1}"]
    if opt("MXSCHED", 1):
        half(P, Q, 1, ring + upd((0, 1), True))
        if opt("HHSTAMP"): A("s_waitcnt lgkmcnt(0)"); stamp(A)
        A("s_waitcnt lgkmcnt(0)")
        A("s_barrier")
        if opt("HHSTAMP"): stamp(A)
        half(Q, P, 0, upd((2, 3), False))
    else:
        half(P, Q, 1, ring + upd())
        A("s_waitcnt lgkmcnt(0)")
        A("s_barrier")
        half(Q, P, 0, [])
    A.drop = []
    A("s_sub_u32 s29, s29, 1\ns_cmp_lg_u32 s29, 0\ns_cbranch_scc1 L_mx_loop")
    A("s_waitcnt vmcnt(0) lgkmcnt(0)")
    stamp(A, 3)
    A(f"v_and_b32 v24, 31, v1\nv_add_u32 v25, s26, v24\nv_lshlrev_b32 v25, 2, v25\nv_add_u32 v25, {LST}, v25")
    A(f"v_add_u32 v26, s27, v24\nv_lshlrev_b32 v26, 2, v26\nv_add_u32 v26, {LST}, v26")
    A("ds_read_b32 v2, v25\nds_read_b32 v3, v25 offset:512\nds_read_b32 v4, v26\nds_read_b32 v5, v26 offset:512")
    A(f"v_mov_b32 v7, {LCNT + 12}\nds_read_b32 v7, v7")
    A(f"v_lshrrev_b32 v27, 5, v1\nv_lshlrev_b32 v27, 4, v27\ns_lshl_b32 s30, s25, 7\ns_add_u32 s30, s30, {LCS}\nv_add_u32 v28, s30, v27")
    for q in range(4):
        A(f"ds_read_b128 v[{32+4*q}:{35+4*q}], v28 offset:{q*32}")
    A(f"s_lshl_b32 s30, s26, 2\ns_add_u32 s30, s30, {LST+512}\nv_add_u32 v28, s30, v27")
    for q in range(4):
        A(f"ds_read_b128 v[{48+4*q}:{51+4*q}], v28 offset:{q*32}")
    h_store_voff(A, 6, 28)
    A(f"s_lshl_b32 s31, s{S_B}, 3\ns_lshl_b32 s30, s24, 1\ns_add_u32 s31, s31, s30\ns_mul_i32 s31, s31, 58")
    A(f"s_lshr_b32 s30, s{S_F0}, 5\ns_add_u32 s30, s30, s25\ns_add_u32 s31, s31, s30")
    A(f"s_lshl_b32 s31, s31, 10\ns_add_u32 s31, s31, {HF_OFF}")
    A(f"s_mul_i32 s30, s25, {4*58*1024}\ns_add_u32 s32, s31, s30")
    A(f"s_xor_b32 s30, s25, 1\ns_mul_i32 s30, s30, {4*58*1024}\ns_add_u32 s33, s31, s30")
    A("s_waitcnt lgkmcnt(0)")
    A(f"v_readfirstlane_b32 s{S_LOCAL}, v7")
    A("s_nop 7")
    h_epilogue_tile(A, HA, 2, 32, 64, 6, 32)
    h_epilogue_tile(A, HB, 4, 32, 72, 6, 33)
    stamp(A, 4)
    if opt("MXPUB", 0): publish(A, "L_mx_pubh", 0, "h", 30)
    stamp(A)
    if opt("GLATE", 1): gmat()
    R = 48
    for i in range(0, 16, 2):
        for a in (EC, OC, ES, OS):
            A(f"v_pk_mul_f32 v[{a+i}:{a+i+1}], v[{a+i}:{a+i+1}], v[{R+i}:{R+i+1}]")
    T0, T1 = 80, 96
    for i in range(0, 16, 2):
        A(f"v_pk_add_f32 v[{T0+i}:{T0+i+1}], v[{EC+i}:{EC+i+1}], v[{OC+i}:{OC+i+1}]")
        A(f"v_pk_add_f32 v[{EC+i}:{EC+i+1}], v[{EC+i}:{EC+i+1}], v[{OC+i}:{OC+i+1}] neg_lo:[0,1] neg_hi:[0,1]")
        A(f"v_pk_add_f32 v[{T1+i}:{T1+i+1}], v[{ES+i}:{ES+i+1}], v[{OS+i}:{OS+i+1}]")
        A(f"v_pk_add_f32 v[{OC+i}:{OC+i+1}], v[{OS+i}:{OS+i+1}], v[{ES+i}:{ES+i+1}] neg_lo:[0,1] neg_hi:[0,1]")
    A("v_and_b32 v24, 31, v1\nv_cmp_eq_u32 s[40:41], 0, v24\ns_nop 3")
    A(f"s_cmp_eq_u32 s{S_C}, 0\ns_cselect_b64 s[40:41], s[40:41], 0\ns_cbranch_scc0 L_mx_nofix")
    for i in range(16):
        A(f"v_cndmask_b32 v{T0+i}, v{T0+i}, v{ES+i}, s[40:41]")
        A(f"v_cndmask_b32 v{T1+i}, v{T1+i}, v{OS+i}, s[40:41]")
        A(f"v_cndmask_b32_e64 v{OC+i}, v{OC+i}, 0, s[40:41]")
    A("L_mx_nofix:")
    ZB = 32
    for k, a in enumerate([T0, T1, EC, OC]):
        for i in range(0, 16, 2):
            A(f"v_cvt_pk_bf16_f32 v{ZB+8*k+i//2}, v{a+i}, v{a+i+1}")
    Fr = lambda p: f"v[{G+4*p}:{G+4*p+3}]"
    Fi = lambda p: f"v[{G+8+4*p}:{G+8+4*p+3}]"
    nFi = lambda p: f"v[{G+16+4*p}:{G+16+4*p+3}]"
    Z = lambda k, p: f"v[{ZB+8*k+4*p}:{ZB+8*k+4*p+3}]"
    TR = [EC, OC]; TI = [ES, OS]
    A("s_nop 1")
    for st_ in range(2):
        zr, zi = 2 * st_, 2 * st_ + 1
        tr, ti = TR[st_], TI[st_]
        A(f"{MFMA32} v[{tr}:{tr+15}], {Fr(0)}, {Z(zr,0)}, 0")
        A(f"{MFMA32} v[{ti}:{ti+15}], {Fr(0)}, {Z(zi,0)}, 0")
        A(f"{MFMA32} v[{tr}:{tr+15}], {Fr(1)}, {Z(zr,1)}, v[{tr}:{tr+15}]")
        A(f"{MFMA32} v[{ti}:{ti+15}], {Fr(1)}, {Z(zi,1)}, v[{ti}:{ti+15}]")
        A(f"{MFMA32} v[{tr}:{tr+15}], {nFi(0)}, {Z(zi,0)}, v[{tr}:{tr+15}]")
        A(f"{MFMA32} v[{ti}:{ti+15}], {Fi(0)}, {Z(zr,0)}, v[{ti}:{ti+15}]")
        A(f"{MFMA32} v[{tr}:{tr+15}], {nFi(1)}, {Z(zi,1)}, v[{tr}:{tr+15}]")
        A(f"{MFMA32} v[{ti}:{ti+15}], {Fi(1)}, {Z(zr,1)}, v[{ti}:{ti+15}]")
    if not opt("MXPUB", 0): publish(A, "L_mx_pubh", 0, "h", 30)
    else: A("s_nop 7")
    stamp(A)
    A(f"v_and_b32 v24, 31, v1\nv_lshlrev_b32 v24, 2, v24\nv_lshrrev_b32 v25, 5, v1\nv_lshlrev_b32 v25, 9, v25\nv_add_u32 v24, v24, v25")
    A(f"s_lshl_b32 s30, s3, 13\ns_add_u32 s30, s30, {LX}\nv_add_u32 v24, s30, v24")
    A("s_nop 7")
    for st_ in range(2):
        for i in range(16):
            A(f"v_cvt_pk_bf16_f32 v{64+16*st_+i}, v{TR[st_]+i}, v{TI[st_]+i}")
    for st_ in range(2):
        for i in range(16):
            t0 = (i & 3) + 8 * (i >> 2)
            A(f"ds_write_b32 v24, v{64+16*st_+i} offset:{st_*4096+t0*128}")
    A("s_waitcnt lgkmcnt(0)")
    stamp(A)
    lds_arrive(A, 1, 30, 63)
    A(f"v_mov_b32 v30, {LCNT+4}")
    A("L_mx_rv:\nds_read_b32 v31, v30\ns_waitcnt lgkmcnt(0)\ns_nop 0\nv_readfirstlane_b32 s63, v31\ns_nop 3\ns_cmp_ge_u32 s63, 4\ns_cbranch_scc1 L_mx_rv_ok")
    A(f"s_sub_u32 s{S_SPIN}, s{S_SPIN}, 1\ns_cmp_eq_u32 s{S_SPIN}, 0\ns_cbranch_scc0 L_mx_rv\nL_mx_rv_ok:")
    A("v_and_b32 v24, 31, v1\nv_lshlrev_b32 v24, 2, v24\nv_lshrrev_b32 v25, 5, v1\nv_lshlrev_b32 v26, 7, v25\nv_add_u32 v24, v24, v26")
    A(f"s_lshl_b32 s30, s3, 10\ns_add_u32 s30, s30, {LX}\nv_add_u32 v24, s30, v24")
    for st_ in range(2):
        for n in range(4):
            b = 64 + 16 * st_ + 4 * n
            for w in range(4):
                A(f"ds_read_b32 v{b+w}, v24 offset:{w*8192+st_*4096+n*256}")
    A(f"v_and_b32 v26, 31, v1\ns_lshl_b32 s30, s{S_C}, 5\nv_add_u32 v27, s30, v26")
    A("v_mov_b32 v28, 160\nv_cndmask_b32 v29, v27, v28, s[40:41]")
    A("v_sub_u32 v27, 320, v27")
    A(f"s_mov_b32 s30, {TF_T0}\nv_mul_lo_u32 v25, s30, v25")
    A("v_lshlrev_b32 v29, 4, v29\nv_add_u32 v29, v29, v25")
    A("v_lshlrev_b32 v27, 4, v27\nv_add_u32 v27, v27, v25")
    A(f"s_mul_i32 s30, s3, {8*TF_T0}\ns_mul_i32 s31, s{S_B}, {TF_ROW}\ns_add_u32 s30, s30, s31\ns_add_u32 s30, s30, {TF_OFF}")
    A("s_waitcnt lgkmcnt(0)")
    for st_ in range(2):
        for n in range(4):
            b = 64 + 16 * st_ + 4 * n
            A(f"s_add_u32 s31, s30, {2*n*TF_T0}")
            if not opt("NOTST"): A(f"buffer_store_dwordx4 v[{b}:{b+3}], v{29 if st_ == 0 else 27}, s[36:39], s31 offen {'' if opt('TPLAIN') else SC}")
    stamp(A)
    A(f"s_cmp_eq_u32 s{S_C}, 0\ns_cbranch_scc0 L_mx_noz\ns_cmp_eq_u32 s3, 0\ns_cbranch_scc0 L_mx_noz")
    A(f"s_mov_b32 s30, {TF_T0}\nv_and_b32 v24, 31, v1\nv_mul_lo_u32 v24, s30, v24")
    A("v_mov_b32 v4, 0\nv_mov_b32 v5, 0\nv_mov_b32 v6, 0\nv_mov_b32 v7, 0")
    A(f"s_mul_i32 s31, s{S_B}, {TF_ROW}\ns_add_u32 s31, s31, {TF_OFF}")
    A(f"buffer_store_dwordx4 v[4:7], v24, s[36:39], s31 offen {SC}")
    A("L_mx_noz:")
    publish(A, "L_mx_pubt", 2, "t", 30)
    stamp(A)
    stamp_flush(A, 0, WS, 9)
    A("s_endpgm")
    loop_hooks_ool(A, "L_mx")

def loader(A):
    A("L_loader:")
    if opt("PRIOL"): A(f"s_setprio {opt('PRIOL')}")
    if opt("PRIOL1"): A(f"s_setprio {opt('PRIOL1')}")
    A(f"s_sub_u32 s{S_J}, s3, 4")
    for r in [11, 12, 13, 52, 53, 54, 55, 56, 57, 58, 59]: A(f"v_mov_b32 v{r}, 0")
    A("s_mov_b32 s58, 0\ns_mov_b32 s59, 99\ns_mov_b32 s63, 0")
    RS = 1280 if opt("XLIN") else 81920
    A(f"v_lshrrev_b32 v4, 3, v1\ns_mov_b32 s40, {RS}\nv_mul_lo_u32 v8, s40, v4")
    A("v_and_b32 v5, 7, v1\nv_lshrrev_b32 v6, 4, v1\nv_xor_b32 v5, v5, v6\nv_lshlrev_b32 v5, 4, v5")
    A("v_add_u32 v2, v8, v5\nv_xor_b32 v7, 64, v5")
    A(f"v_add_u32 v3, v8, v7\nv_add_u32 v3, {8*RS}, v3")
    A(f"s_lshl_b32 s40, s{S_B}, 1\ns_and_b32 s41, s{S_J}, 1\ns_add_u32 s40, s40, s41")
    A(f"s_lshr_b32 s41, s{S_J}, 1\ns_lshl_b32 s41, s41, 5\ns_add_u32 s40, s40, s41")
    if opt("XLIN"):
        A(f"s_lshl_b32 s40, s{S_B}, 2\ns_add_u32 s40, s40, s{S_J}\ns_mul_i32 s40, s40, {32*1280}\ns_add_u32 s41, s40, {16*1280}")
    else:
        A(f"s_mul_i32 s40, s40, 1280\ns_add_u32 s41, s40, {16*81920}")
    A("s_mov_b64 s[56:57], -1")
    A(f"s_cmp_lt_u32 s{S_C}, 5\ns_cbranch_scc0 L_ld_H")
    A(f"s_cmp_ge_u32 s{S_J}, 2\ns_cbranch_scc0 L_ld_H")
    A(f"s_and_b32 s50, s{S_J}, 1\ns_add_u32 s50, s50, 1\ns_mov_b32 s30, {HID_BYTES}")
    A("v_mul_u32_u24 v8, 1280, v4\nv_add_u32 v9, v8, v5")
    A(f"v_add_u32 v10, v8, v7\nv_add_u32 v10, {8*1280}, v10")
    A(f"s_mul_i32 s42, s{S_C}, {32*1280}")
    A(f"s_mov_b32 s44, s42\ns_mov_b32 s45, s42\ns_add_u32 s46, s42, {16*1280}\ns_add_u32 s47, s42, {16*1280}")
    A("s_mov_b32 s43, 128")
    A(f"s_cmp_eq_u32 s{S_C}, 0\ns_cbranch_scc0 L_ld_go\ns_cmp_eq_u32 s{S_J}, 3\ns_cbranch_scc0 L_ld_go")
    A("s_mov_b32 s56, 0xffffff00")
    A("s_branch L_ld_go")
    A("L_ld_H:")
    A(f"s_mov_b32 s50, 0\ns_mov_b32 s30, {W1_BYTES}")
    A("v_mul_u32_u24 v8, 3456, v4")
    A("v_and_b32 v9, 7, v1\nv_bfe_u32 v10, v1, 4, 1\nv_lshlrev_b32 v10, 2, v10\nv_xor_b32 v9, v9, v10")
    A("v_lshlrev_b32 v9, 4, v9\nv_add_u32 v9, v8, v9\nv_mov_b32 v10, v9")
    A(f"s_and_b32 s42, s{S_J}, 1\ns_mul_i32 s42, s42, {32*3456}")
    A(f"s_lshr_b32 s43, s{S_J}, 1\ns_lshl_b32 s43, s43, 6\ns_add_u32 s43, s43, s{S_F0}\ns_lshl_b32 s43, s43, 1")
    A("s_add_u32 s42, s42, s43")
    for q in range(4):
        A(f"s_add_u32 s{44+q}, s42, {8*q*3456}")
    A(f"s_mov_b32 s43, {64*3456}")
    A("L_ld_go:")
    A(f"s_lshl_b32 s48, s{S_J}, 12\ns_mov_b32 s31, 0x20000")
    args_ready(A)
    srd(A, 24, X_, X_BYTES)
    A(f"s_cmp_eq_u32 s50, 1\ns_cselect_b32 s28, s{HRE}, s{W1}\ns_cselect_b32 s29, s{HRE+1}, s{W1+1}")
    A(f"s_cmp_eq_u32 s50, 2\ns_cselect_b32 s28, s{HIM}, s28\ns_cselect_b32 s29, s{HIM+1}, s29")
    def chunk(slot_reg):
        for q in range(0 if opt("NOLOAD1") else 4):
            A(f"s_add_u32 m0, s{slot_reg}, {q*1024}")
            A("s_nop 0")
            A(f"buffer_load_dwordx4 v{2+(q&1)}, s[24:27], s{40+(q>>1)} offen {'nt ' if opt('XNT') else ''}lds")
            A(f"s_add_u32 m0, s{slot_reg}, {16384+q*1024}")
            if q == 0: A("s_mov_b64 exec, s[56:57]")
            else: A("s_nop 0")
            A(f"buffer_load_dwordx4 v{9+(q&1)}, s[28:31], s{44+q} offen {'nt ' if opt('WNT') else ''}lds")
            if q == 0: A("s_mov_b64 exec, -1")
        A("s_add_u32 s40, s40, 128\ns_add_u32 s41, s41, 128")
        for q in range(4):
            A(f"s_add_u32 s{44+q}, s{44+q}, s43")
        A(f"s_add_u32 s{slot_reg}, s{slot_reg}, {RING}\ns_cmp_ge_u32 s{slot_reg}, {NS*RING}\ns_cselect_b32 s52, {NS*RING}, 0\ns_sub_u32 s{slot_reg}, s{slot_reg}, s52")
    A("s_mov_b32 s49, s48")
    chunk(49); chunk(49)
    stamp(A, 1)
    srd(A, 36, WS, WS_USED)
    srd(A, 32, WS, WS_USED)
    A("s_waitcnt lgkmcnt(0)")
    A(f"s_add_u32 s{S_E}, s{S_E}, 1\ns_xor_b32 s{S_EM}, s{S_E}, {MAGIC}")
    A(f"s_cmp_ge_u32 s{S_J}, 2\ns_cbranch_scc0 L_ld_su01")
    A(f"s_sub_u32 s58, s{S_J}, 2\ns_lshl_b32 s59, s{S_T0}, 1\ns_add_u32 s59, s59, s58")
    A("s_mov_b32 s50, 6554\ns_mov_b32 s53, 1280")
    for q in range(5):
        A(f"v_add_u32 v22, {64*q}, v1")
        A("v_mul_lo_u32 v23, s50, v22\nv_lshrrev_b32 v23, 16, v23")
        A("v_mul_u32_u24 v24, 10, v23\nv_sub_u32 v24, v22, v24\nv_lshlrev_b32 v24, 4, v24")
        A(f"v_mul_lo_u32 v23, s53, v23\nv_add_u32 v{52+q}, v23, v24")
    A("v_lshrrev_b32 v23, 4, v1\nv_lshrrev_b32 v24, 1, v23\nv_lshlrev_b32 v24, 4, v24")
    A("v_and_b32 v25, 1, v23\nv_lshlrev_b32 v25, 2, v25\nv_add_u32 v24, v24, v25\nv_bfe_u32 v25, v1, 2, 2\nv_add_u32 v24, v24, v25")
    A("v_mul_u32_u24 v24, 160, v24\nv_and_b32 v25, 3, v1\nv_lshlrev_b32 v25, 3, v25\nv_add_u32 v24, v24, v25")
    A(f"s_mul_i32 s50, s58, 5120\ns_add_u32 s50, s50, {LW}\nv_add_u32 v57, s50, v24")
    A(f"s_lshl_b32 s50, s{S_CT}, 6\ns_add_u32 s50, s50, s59\ns_lshl_b32 s50, s50, 3\ns_add_u32 s50, s50, {FW_OFF}\nv_mov_b32 v58, s50")
    if opt("WSKIP"): A("s_mov_b32 s59, 99")
    A("s_branch L_ld_sud")
    A("L_ld_su01:")
    A("v_lshlrev_b32 v13, 3, v1\nv_and_b32 v16, 31, v1\nv_lshlrev_b32 v15, 3, v16")
    A(f"s_lshl_b32 s50, s{S_B}, 7\ns_add_u32 s50, s50, {FR1_OFF}\nv_add_u32 v12, s50, v15")
    A(f"s_lshl_b32 s50, s{S_C}, 7\ns_add_u32 s50, s50, {FC1_OFF-128}\nv_add_u32 v15, s50, v15")
    A("v_cmp_le_u32 vcc, 16, v16\ns_nop 1\nv_cndmask_b32 v12, v12, v15, vcc")
    A(f"s_lshl_b32 s50, s{S_CT}, 9\ns_add_u32 s50, s50, {FW_OFF}\nv_add_u32 v11, s50, v13")
    A("L_ld_sud:")
    A("s_waitcnt vmcnt(8)")
    stamp(A, 2)
    A("s_barrier")
    chunk(49)
    A(f"s_cmp_ge_u32 s{S_J}, 2\ns_cbranch_scc1 L_ld_h1w\nL_ld_h1w_ret:")
    A(f"s_cmp_ge_u32 s{S_J}, 2\ns_cbranch_scc1 L_ld_b1w")
    A("s_waitcnt vmcnt(8)\ns_branch L_ld_b1d\nL_ld_b1w:")
    A("s_cmp_ge_u32 s59, 54\ns_cbranch_scc1 L_ld_b1n\ns_waitcnt vmcnt(13)\ns_branch L_ld_b1d\nL_ld_b1n:\ns_waitcnt vmcnt(8)\nL_ld_b1d:")
    A("s_barrier")
    stamp(A)
    pk = opt("POLLK", 5)
    assert pk in (5, 6)
    A(f"s_mov_b32 s53, 99\ns_mov_b32 s54, 99\ns_mov_b32 s55, 0\ns_mov_b32 s79, 99\ns_mov_b32 s81, 99\ns_mov_b32 s82, 99\ns_mov_b32 s83, 0")
    A(f"s_cmp_eq_u32 s{S_J}, 0\ns_cselect_b32 s53, {9-pk}, s53\ns_cselect_b32 s54, {9-pk-2}, s54\ns_cselect_b32 s55, {9-pk-1}, s55\ns_cselect_b32 s81, {9-pk-2}, s81")
    A(f"s_cmp_eq_u32 s{S_J}, 1\ns_cselect_b32 s53, {opt('FWPOLL', 1)}, s53")
    A(f"s_cmp_ge_u32 s{S_J}, 2\ns_cselect_b32 s82, 6, s82\ns_cselect_b32 s79, 3, s79\ns_cselect_b32 s83, 1, s83")
    A("s_mov_b32 s51, 7")
    A("L_ld_loop:")
    A("s_cmp_eq_u32 s51, s54\ns_cbranch_scc1 L_ld_h2\nL_ld_h2_ret:")
    chunk(49)
    A("s_cmp_eq_u32 s51, s79\ns_cbranch_scc1 L_ld_h3\nL_ld_h3_ret:")
    A("s_cmp_eq_u32 s51, s53\ns_cbranch_scc1 L_ld_h1\nL_ld_h1_ret:")
    A("s_cmp_eq_u32 s51, s81\ns_cbranch_scc1 L_ld_h4\nL_ld_h4_ret:")
    A("s_cmp_eq_u32 s51, s82\ns_cbranch_scc1 L_ld_h2w\nL_ld_h2w_ret:")
    A("s_cmp_lt_u32 s51, s55\ns_cbranch_scc1 L_ld_w25")
    A("s_cmp_eq_u32 s83, 0\ns_cbranch_scc1 L_ld_w8")
    A("s_cmp_eq_u32 s51, 6\ns_cbranch_scc1 L_ld_wW\ns_cmp_eq_u32 s51, 5\ns_cbranch_scc1 L_ld_wW")
    A("s_cmp_eq_u32 s51, 3\ns_cbranch_scc1 L_ld_w9\ns_cmp_eq_u32 s51, 2\ns_cbranch_scc1 L_ld_w9")
    A("L_ld_w8:\ns_waitcnt vmcnt(8)\ns_branch L_ld_wd")
    A("L_ld_wW:\ns_cmp_ge_u32 s59, 54\ns_cbranch_scc1 L_ld_w8\ns_waitcnt vmcnt(13)\ns_branch L_ld_wd\nL_ld_w9:\ns_waitcnt vmcnt(9)\ns_branch L_ld_wd")
    A("L_ld_w25:\ns_waitcnt vmcnt(17)\nL_ld_wd:")
    stamp(A)
    A("s_barrier")
    stamp(A)
    A("s_sub_u32 s51, s51, 1\ns_cmp_lg_u32 s51, 0\ns_cbranch_scc1 L_ld_loop")
    A("s_waitcnt vmcnt(0)")
    if not (opt("WLATE", 1) and not opt("PRE10")):
        A(f"s_cmp_eq_u32 s{S_J}, 1\ns_cbranch_scc0 L_ld_no1")
        spin(A, "L_ld_spw", 48, 11, 32, xcc=True)
        A("L_ld_no1:")
    A(f"s_cmp_eq_u32 s{S_J}, 0\ns_cbranch_scc0 L_ld_nored")
    if opt("REDPRIO", 1): A("s_setprio 2")
    for b_ in range(1, 8):
        for k in range(4): A(f"v_add_f32 v{16+k}, v{16+k}, v{16+4*b_+k}")
    for k in range(4): A(f"v_mov_b32 v{20+k}, v{16+k}")
    A("s_nop 1")
    for k in range(4): A(f"v_permlane32_swap_b32 v{16+k}, v{20+k}")
    A("s_nop 0")
    for k in range(4): A(f"v_add_f32 v{16+k}, v{16+k}, v{20+k}")
    A(f"v_add_u32 v13, {LCS}, v13\nds_write_b128 v13, v[16:19]")
    if opt("REDPRIO", 1): A("s_setprio 0")
    A("s_waitcnt lgkmcnt(0)")
    A("L_ld_nored:")
    A("s_barrier")
    stamp(A)
    if opt("PRE10"): p2(A, "early")
    A("s_barrier")
    A("s_branch L_ld_p2")
    A("L_ld_h1:")
    A(f"s_cmp_eq_u32 s{S_J}, 1\ns_cbranch_scc1 L_ld_h1f")
    A(f"buffer_load_dwordx2 v[14:15], v12, s[32:35], 0 offen {SC}")
    A("s_branch L_ld_h1_ret")
    A("L_ld_h1f:")
    A(f"buffer_load_dwordx2 v[48:49], v11, s[32:35], 0 offen {SC}")
    A("s_branch L_ld_h1_ret")
    A("L_ld_h1w:")
    if opt("NOW"): A("s_branch L_ld_h1w_ret")
    A("s_cmp_ge_u32 s59, 54\ns_cbranch_scc1 L_ld_h1w_ret")
    srd(A, 84, W2, W2_BYTES)
    A(f"s_mul_i32 s50, s59, 40960\ns_mul_i32 s62, s{S_CT}, 160\ns_add_u32 s50, s50, s62")
    A(f"s_mul_i32 s62, s58, 5120\ns_add_u32 s62, s62, {LW}")
    for q in range(5):
        A(f"s_add_u32 m0, s62, {1024*q}\ns_nop 0")
        A(f"buffer_load_dwordx4 v{52+q}, s[84:87], s50 offen lds")
    A("s_branch L_ld_h1w_ret")
    A("L_ld_h2:")
    spin(A, "L_ld_sp", 14, 12, 32, xcc=True)
    A(f"v_and_b32 v50, 16, v1\nv_cmp_eq_u32 s[60:61], 0, v50\nv_cmp_ne_u32 vcc, s{S_XCC}, v15\ns_nop 3\ns_and_b64 vcc, vcc, s[60:61]")
    A(f"s_cmp_eq_u64 vcc, 0\ns_cselect_b32 s62, {1 if opt('LOCALH', 2) and opt('MAP1', 1) else 0}, 0")
    A(f"v_mov_b32 v50, {LCNT + 12}\nv_mov_b32 v51, s62\nds_write_b32 v50, v51")
    A("s_branch L_ld_h2_ret")
    A("L_ld_h4:")
    A(f"s_lshl_b32 s50, s{S_B}, 10\ns_add_u32 s50, s50, {ST_OFF}\ns_mov_b32 m0, {LST}\nv_lshlrev_b32 v13, 4, v1")
    A(f"buffer_load_dwordx4 v13, s[36:39], s50 offen {SC} lds")
    A(f"s_lshl_b32 s50, s{S_F0}, 2\ns_add_u32 s50, s50, {CS_OFF}")
    A("v_and_b32 v13, 31, v1\nv_lshlrev_b32 v13, 4, v13\nv_lshrrev_b32 v14, 5, v1\nv_lshlrev_b32 v14, 13, v14\nv_add_u32 v14, v13, v14")
    for b_ in range(8):
        A(f"buffer_load_dwordx4 v[{16+4*b_}:{19+4*b_}], v14, s[36:39], s50 offen {SC}")
        if b_ < 7: A("s_add_u32 s50, s50, 16384")
    A("s_branch L_ld_h4_ret")
    A("L_ld_h2w:")
    A("v_lshlrev_b32 v22, 4, v1")
    if opt("NOW"): A("s_branch L_ld_h2w_ret")
    A("s_cmp_ge_u32 s59, 54\ns_cbranch_scc1 L_ld_h2w_ret")
    for n in range(5):
        A(f"ds_read_b64_tr_b16 v[{24+4*n}:{25+4*n}], v57 offset:{32*n}")
        A(f"ds_read_b64_tr_b16 v[{26+4*n}:{27+4*n}], v57 offset:{32*n+1280}")
    A(f"s_mul_i32 s50, s{S_CT}, 54\ns_add_u32 s50, s50, s59\ns_mul_i32 s50, s50, 5120\ns_add_u32 s50, s50, {W2F_OFF}")
    A("v_add_u32 v23, 4096, v22\ns_waitcnt lgkmcnt(0)")
    for n in range(4):
        A(f"buffer_store_dwordx4 v[{24+4*n}:{27+4*n}], v22, s[32:35], s50 offen offset:{1024*n} {SC}")
    A(f"buffer_store_dwordx4 v[40:43], v23, s[32:35], s50 offen {SC}")
    A("s_branch L_ld_h2w_ret")
    A("L_ld_h3:")
    store_flags(A, 58, 1, 32, 64, xcc=True)
    A("s_branch L_ld_h3_ret")
def loader_p2(A):
    A("L_ld_p2:")
    if opt("PRIOL1"): A("s_setprio 0")
    stamp(A, 3)
    if opt("P1ONLY"):
        stamp_flush(A, 0, WS, 9)
        A("s_endpgm")
    if opt("WLATE", 1) and not opt("PRE10"):
        A(f"v_mov_b32 v16, {LCNT + 20}")
        A(f"s_cmp_eq_u32 s{S_J}, 1\ns_cbranch_scc0 L_ld_ww")
        spin(A, "L_ld_spw", 48, 11, 32, xcc=True)
        A("v_mov_b32 v17, 1\nds_write_b32 v16, v17\ns_waitcnt lgkmcnt(0)\ns_branch L_ld_wgo")
        A("L_ld_ww:\nds_read_b32 v17, v16\ns_waitcnt lgkmcnt(0)\ns_nop 0\nv_readfirstlane_b32 s50, v17\ns_nop 3\ns_cmp_eq_u32 s50, 1\ns_cbranch_scc1 L_ld_wgo")
        A(f"s_sub_u32 s{S_SPIN}, s{S_SPIN}, 1\ns_cmp_eq_u32 s{S_SPIN}, 0\ns_cbranch_scc0 L_ld_ww")
        A("L_ld_wgo:")
    p2(A, "rest" if opt("PRE10") else "all")

def p2(A, part="all"):
    J = S_J
    HSC = "" if opt("HPLAIN") else SC
    WSC = "" if opt("WPLAIN") else SC
    if opt("W2NT"): WSC += " nt"
    ACC = 16
    SET = [96, 132, 168]
    XR = 204
    VP = 214
    acc = lambda nt, a: ACC + 4 * (4 * nt + a)
    MXLAST = opt("MXLAST", 1); NB0 = opt("NB0", 3)
    def adv(r):
        A(f"s_add_u32 s{r}, s{r}, 4\ns_cmp_ge_u32 s{r}, 54\ns_cselect_b32 s{r}, s{J}, s{r}")
    def loadB(si):
        b = SET[si]
        A("s_mul_i32 s50, s44, 5120\ns_add_u32 s50, s50, s49")
        for n in range(4):
            A(f"buffer_load_dwordx4 v[{b+4*n}:{b+4*n+3}], v2, s[24:27], s50 offen offset:{1024*n} {WSC}")
        A(f"buffer_load_dwordx4 v[{b+16}:{b+19}], v3, s[24:27], s50 offen {WSC}")
        adv(44)
    if part in ("early", "all"):
        srd(A, 24, WS, WS_USED)
        A("v_lshlrev_b32 v2, 4, v1\nv_add_u32 v3, 4096, v2")
        if MXLAST:
            A(f"s_add_u32 s44, s{J}, 12\ns_mov_b32 s45, s44")
        else:
            A(f"s_mov_b32 s44, s{J}\ns_mov_b32 s45, s44")
        A(f"s_mul_i32 s49, s{S_CT}, {54*5120}\ns_add_u32 s49, s49, {W2F_OFF}")
        for si in range(NB0): loadB(si)
        A(f"s_lshr_b32 s50, s{S_T0}, 1\ns_lshl_b32 s50, s50, 7\ns_add_u32 s50, s50, {FH_OFF}")
        if MXLAST:
            A("v_min_u32 v14, 10, v1\nv_add_u32 v14, 5, v14\nv_lshlrev_b32 v14, 3, v14\nv_add_u32 v15, s50, v14")
        else:
            A("v_and_b32 v14, 15, v1\nv_lshlrev_b32 v14, 3, v14\nv_add_u32 v15, s50, v14")
        A(f"s_cmp_eq_u32 s{J}, 0\ns_cbranch_scc0 L_p2_np0")
        A(f"buffer_load_dwordx2 v[{VP}:{VP+1}], v15, s[24:27], 0 offen {SC}")
        A("L_p2_np0:")
    if part == "early": return
    srd(A, 28, WS, 4 * HF_TILE)
    A(f"s_mul_i32 s50, s{S_T0}, {4*HF_TILE}")
    if HF_OFF: A(f"s_add_u32 s50, s50, {HF_OFF}")
    A("s_add_u32 s28, s28, s50\ns_addc_u32 s29, s29, 0")
    srd(A, 32, X_, X_BYTES)
    srd(A, 40, OUT, X_BYTES)
    for a_ in range(4):
        A(f"s_add_u32 s50, s{J}, {a_}\ns_and_b32 s50, s50, 3\ns_mul_i32 s50, s50, {HF_TILE}\nv_add_u32 v{4+a_}, s50, v2")
    RSTR = 336
    A(f"s_lshl_b32 s50, s{J}, 6\nv_add_u32 v8, s50, v1")
    A(f"s_mov_b32 s50, 3277\ns_mul_i32 s38, s{S_T0}, 1280\ns_mul_i32 s39, s{S_CT}, 160\ns_add_u32 s38, s38, s39")
    for n in range(5):
        A(f"v_add_u32 v9, {256*n}, v8\nv_mul_lo_u32 v10, s50, v9\nv_lshrrev_b32 v10, 16, v10")
        A("v_mul_u32_u24 v11, 20, v10\nv_sub_u32 v11, v9, v11")
        A(f"v_mul_u32_u24 v12, {RSTR}, v10\nv_lshlrev_b32 v13, 4, v11\nv_add_u32 v{220+n}, v12, v13")
        A("v_lshrrev_b32 v12, 5, v10\nv_mul_u32_u24 v12, 40960, v12\nv_and_b32 v10, 31, v10\nv_mul_u32_u24 v10, 81920, v10")
        A(f"v_lshlrev_b32 v11, 3, v11\nv_add3_u32 v{225+n}, v10, v12, v11")
    A(f"v_and_b32 v9, 15, v1\nv_mul_u32_u24 v9, {RSTR}, v9\nv_lshrrev_b32 v10, 4, v1\nv_lshlrev_b32 v10, 4, v10\nv_add_u32 v230, v9, v10")
    FFR = 236
    A(f"s_add_u32 s50, s{J}, 2\ns_and_b32 s50, s50, 3\ns_lshl_b32 s50, s50, 3\nv_lshrrev_b32 v9, 4, v1\nv_lshlrev_b32 v9, 1, v9\nv_add_u32 v9, s50, v9")
    A(f"s_mov_b32 s51, 0x3a000000\ns_mov_b32 s52, 0xba000000\ns_cmp_lt_u32 s{S_CT}, 4\ns_cselect_b32 s52, s51, s52")
    A("v_and_b32 v10, 15, v1\nv_lshlrev_b32 v10, 6, v10")
    for a_ in range(4):
        A(f"s_add_u32 s50, s{J}, {a_}\ns_and_b32 s50, s50, 3\ns_lshr_b32 s53, s50, 1\ns_lshl_b32 s53, s53, 5\ns_and_b32 s50, s50, 1\ns_lshl_b32 s50, s50, 10")
        A(f"s_add_u32 s50, s50, s53\ns_add_u32 s50, s50, s{S_T0}\nv_add_u32 v11, s50, v10")
        for k, ds in enumerate([0, 1, 32, 33]):
            A(f"v_add_u32 v12, {ds}, v9\nv_mul_u32_u24 v12, v11, v12\nv_and_b32 v12, 0x7ff, v12\nv_cvt_f32_u32 v12, v12")
            A(f"v_mul_f32 v13, s51, v12\nv_mul_f32 v12, s52, v12\nv_cos_f32 v13, v13\nv_sin_f32 v12, v12\ns_nop 0\nv_cvt_pk_bf16_f32 v{FFR+4*a_+k}, v13, v12")
    def loadA(si):
        b = SET[si] + 20
        A("s_lshl_b32 s50, s45, 10")
        for a_ in range(4):
            A(f"buffer_load_dwordx4 v[{b+4*a_}:{b+4*a_+3}], v{4+a_}, s[28:31], s50 offen {HSC}")
        adv(45)
    def loadT(si):
        b = SET[si]
        A("s_mov_b32 s50, s46")
        for n in range(5):
            A(f"buffer_load_dwordx4 v[{b+4*n}:{b+4*n+3}], v10, s[24:27], s50 offen {SC}")
            if n < 4: A("s_add_u32 s50, s50, s47")
    def mfmas(si):
        b = SET[si]
        for a_ in range(4):
            for nt in range(5):
                c = acc(nt, a_)
                if not opt("NOCOMP2"):
                    A(f"{MFMA16} v[{c}:{c+3}], v[{b+4*nt}:{b+4*nt+3}], v[{b+20+4*a_}:{b+23+4*a_}], v[{c}:{c+3}]")
    def last_step(si):
        b = SET[si]
        def grp(a_):
            for nt in range(5):
                c = acc(nt, a_)
                if not opt("NOCOMP2"):
                    A(f"{MFMA16} v[{c}:{c+3}], v[{b+4*nt}:{b+4*nt+3}], v[{FFR+4*a_}:{FFR+4*a_+3}], v[{c}:{c+3}]")
        def addr(a_):
            A(f"s_add_u32 s50, s{J}, {a_}\ns_and_b32 s50, s50, 3\ns_mul_i32 s50, s50, {16*336}\ns_mul_i32 s51, s{J}, {64*336}\ns_add_u32 s50, s50, s51\nv_add_u32 v{232+a_}, s50, v230")
        def wr(a_):
            for nt in range(5):
                c = acc(nt, a_)
                A(f"ds_write_b128 v{232+a_}, v[{c}:{c+3}] offset:{nt*64}")
        grp(0); addr(0); addr(1); grp(1); addr(2); wr(0); grp(2); addr(3); wr(1); grp(3); A("s_nop 3"); wr(2); A("s_nop 3"); wr(3)
    def xorA(si):
        b = SET[si] + 20
        for k in range(16): A(f"v_xor_b32 v{b+k}, s48, v{b+k}")
        A("s_nop 0")
    for i in range(80): A(f"v_mov_b32 v{ACC+i}, 0")
    A(f"v_lshrrev_b32 v10, 4, v1\nv_mul_u32_u24 v10, {TF_ROW}, v10\nv_and_b32 v11, 15, v1")
    A(f"s_mul_i32 s50, s{S_CT}, 80\nv_add_u32 v12, s50, v11\nv_sub_u32 v13, 576, v12")
    A(f"s_cmp_lt_u32 s{S_CT}, 4\ns_cselect_b64 s[60:61], -1, 0\nv_cndmask_b32 v12, v13, v12, s[60:61]")
    A("v_lshlrev_b32 v12, 4, v12\nv_add_u32 v10, v10, v12")
    A(f"s_sub_u32 s46, 32, s{S_T0}\ns_and_b32 s46, s46, 31\ns_cmp_lt_u32 s{S_CT}, 4\ns_cselect_b32 s46, s{S_T0}, s46")
    A(f"s_mul_i32 s46, s46, {TF_T0}\ns_add_u32 s46, s46, {TF_OFF}")
    A(f"s_mov_b32 s47, 256\ns_mov_b32 s50, -256\ns_cmp_lt_u32 s{S_CT}, 4\ns_cselect_b32 s47, s47, s50\ns_cselect_b32 s50, 0, 1024\ns_cselect_b32 s48, 0x80000000, 0")
    A("s_add_u32 s46, s46, s50")
    A(f"s_add_u32 s50, s{J}, 2\ns_and_b32 s50, s50, 3\ns_mul_i32 s50, s50, {4*TF_ROW}\ns_add_u32 s46, s46, s50")
    A(f"s_lshl_b32 s50, s{S_CT}, 10\ns_add_u32 s50, s50, {FT_OFF}\nv_lshlrev_b32 v12, 3, v1\nv_add_u32 v12, s50, v12")
    A("v_and_b32 v13, 15, v1\nv_lshlrev_b32 v13, 3, v13\nv_add_u32 v13, s50, v13\nv_add_u32 v13, 512, v13")
    A(f"s_lshr_b32 s50, s{S_T0}, 1\ns_lshl_b32 s50, s50, 7\ns_add_u32 s50, s50, {FH_OFF}\nv_min_u32 v9, 4, v1\nv_lshlrev_b32 v9, 3, v9\nv_add_u32 v9, s50, v9")
    A(f"s_cmp_eq_u32 s{J}, 0\ns_cbranch_scc0 L_p2_lw")
    A("s_waitcnt vmcnt(0)")
    if opt("SPINSTAMP") == "L_p2_sp1": stamp(A)
    spin(A, "L_p2_sp1", VP, 15, 24, xcc=True)
    A(f"v_mov_b32 v14, {LCNT + 16}\nv_mov_b32 v15, 1\nds_write_b32 v14, v15\ns_waitcnt lgkmcnt(0)")
    A("s_branch L_p2_go")
    A("L_p2_lw:")
    if opt("P2ONLY"): A("s_branch L_p2_go")
    A(f"v_mov_b32 v14, {LCNT + 16}")
    A("L_p2_lw1:\nds_read_b32 v15, v14\ns_waitcnt lgkmcnt(0)\ns_nop 0\nv_readfirstlane_b32 s50, v15\ns_nop 3\ns_cmp_eq_u32 s50, 1\ns_cbranch_scc1 L_p2_go")
    A(f"s_sleep 1\ns_sub_u32 s{S_SPIN}, s{S_SPIN}, 1\ns_cmp_eq_u32 s{S_SPIN}, 0\ns_cbranch_scc0 L_p2_lw1")
    A("L_p2_go:")
    stamp(A, 5)
    for si in range(NB0): loadA(si)
    for si in range(NB0, 3):
        loadB(si); loadA(si)
    def loadX():
        for n in range(5):
            A(f"buffer_load_dwordx2 v[{XR+2*n}:{XR+2*n+1}], v{225+n}, s[32:35], s38 offen")
    XLATE = opt("XLATE", 1)
    if not XLATE: loadX()
    def step(si, vm, pre):
        A(f"s_waitcnt vmcnt({vm})")
        mfmas(si)
        pre()
    reg = lambda si: (lambda: (loadB(si), loadA(si)))
    order = [(si, 4) for si in range(NB0)] + [(si, 9) for si in range(NB0, 3)] + ([] if XLATE else [(-1, 5)])
    for st_ in range(3):
        idx = max(i for i, (si, n) in enumerate(order) if si == st_)
        younger = sum(n for (si, n) in order[idx+1:]) + 9 * st_
        step(st_, younger, reg(st_))
        if opt("STEPSTAMP"): stamp(A)
    stamp(A)
    if MXLAST: A(f"buffer_load_dwordx2 v[{VP+4}:{VP+5}], v9, s[24:27], 0 offen {SC}")
    A("s_mov_b32 s51, 2")
    A("L_p2_loop:")
    for si in range(3):
        step(si, 18, reg(si))
        if opt("STEPSTAMP"): stamp(A)
    A("s_cmp_eq_u32 s51, 2\ns_cbranch_scc0 L_p2_nt")
    if MXLAST and not opt("NOMCHK"): spin(A, "L_p2_spm", VP + 4, 9, 24, xcc=True)
    if not opt("TLATE", 1):
        A(f"buffer_load_dwordx2 v[{VP}:{VP+1}], v12, s[24:27], 0 offen {SC}\nbuffer_load_dwordx2 v[{VP+2}:{VP+3}], v13, s[24:27], 0 offen {SC}")
    A("L_p2_nt:")
    A("s_sub_u32 s51, s51, 1\ns_cmp_lg_u32 s51, 0\ns_cbranch_scc1 L_p2_loop")
    stamp(A)
    TLATE = opt("TLATE", 1)
    if TLATE:
        A(f"buffer_load_dwordx2 v[{VP}:{VP+1}], v12, s[24:27], 0 offen {SC}\nbuffer_load_dwordx2 v[{VP+2}:{VP+3}], v13, s[24:27], 0 offen {SC}")
    step(0, 18, reg(0))
    def tcheck(tag, epoch):
        if not opt("NOTCHK"):
            spin(A, tag + "2", VP, 12, 24)
            spin(A, tag + "3", VP + 2, 13, 24)
        if epoch:
            A(f"s_cmp_eq_u32 s2, 0\ns_cbranch_scc0 {tag}_noep\ns_cmp_eq_u32 s{J}, 0\ns_cbranch_scc0 {tag}_noep")
            A(f"v_mov_b32 v14, s{S_E}\nv_mov_b32 v15, {EP_OFF}\ns_mov_b64 exec, 1\nbuffer_store_dword v14, v15, s[24:27], 0 offen {SC}\ns_mov_b64 exec, -1")
            A(f"{tag}_noep:")
    if not TLATE: tcheck("L_p2_sp", True)
    stamp(A)
    A(f"s_cmp_lt_u32 s{J}, 2\ns_cbranch_scc0 L_p2_hi")
    step(1, 18, reg(1))
    step(2, 18, lambda: (tcheck("L_p2_lo", True) if TLATE else None, loadT(2), loadX() if XLATE else None))
    xq = 5 if XLATE else 0
    step(0, 14 + xq, lambda: None)
    step(1, 5 + xq, lambda: None)
    A(f"s_waitcnt vmcnt({xq})"); last_step(2)
    A("s_branch L_p2_red")
    A("L_p2_hi:")
    step(1, 18, lambda: ((A("s_waitcnt vmcnt(9)"), tcheck("L_p2_hi", False)) if TLATE else None, loadT(1), loadX() if XLATE else None))
    step(2, 14 + xq, lambda: None)
    step(0, 5 + xq, lambda: None)
    A(f"s_waitcnt vmcnt({xq})"); last_step(1)
    A("L_p2_red:")
    stamp(A)
    A("s_waitcnt lgkmcnt(0)\ns_barrier")
    R0 = 96
    def rd(n):
        for w in range(4):
            r = R0 + 16 * n + 4 * w
            A(f"ds_read_b128 v[{r}:{r+3}], v{220+n} offset:{w*64*336}")
    rd(0); rd(1); rd(2)
    OSC = SC if opt("OUTSC") else ""
    for n in range(5):
        r = R0 + 16 * n; x = XR + 2 * n
        if n == 0: A("s_waitcnt vmcnt(0) lgkmcnt(8)")
        elif n == 1: A("s_waitcnt lgkmcnt(8)")
        elif n == 2: A("s_waitcnt lgkmcnt(8)")
        elif n == 3: A("s_waitcnt lgkmcnt(4)")
        else: A("s_waitcnt lgkmcnt(0)")
        A(f"v_pk_add_f32 v[{r}:{r+1}], v[{r}:{r+1}], v[{r+4}:{r+5}]\nv_pk_add_f32 v[{r+2}:{r+3}], v[{r+2}:{r+3}], v[{r+6}:{r+7}]")
        A(f"v_pk_add_f32 v[{r+8}:{r+9}], v[{r+8}:{r+9}], v[{r+12}:{r+13}]\nv_pk_add_f32 v[{r+10}:{r+11}], v[{r+10}:{r+11}], v[{r+14}:{r+15}]")
        if n + 3 < 5: pass
        A(f"v_lshlrev_b32 v{r+4}, 16, v{x}\nv_and_b32 v{r+5}, 0xffff0000, v{x}\nv_lshlrev_b32 v{r+6}, 16, v{x+1}\nv_and_b32 v{r+7}, 0xffff0000, v{x+1}")
        A(f"v_pk_add_f32 v[{r}:{r+1}], v[{r}:{r+1}], v[{r+8}:{r+9}]\nv_pk_add_f32 v[{r+2}:{r+3}], v[{r+2}:{r+3}], v[{r+10}:{r+11}]")
        A(f"v_pk_add_f32 v[{r}:{r+1}], v[{r}:{r+1}], v[{r+4}:{r+5}]\nv_pk_add_f32 v[{r+2}:{r+3}], v[{r+2}:{r+3}], v[{r+6}:{r+7}]")
        A(f"v_cvt_pk_bf16_f32 v{x}, v{r}, v{r+1}\nv_cvt_pk_bf16_f32 v{x+1}, v{r+2}, v{r+3}")
        A(f"buffer_store_dwordx2 v[{x}:{x+1}], v{225+n}, s[40:43], s38 offen {OSC}")
        if n == 0: rd(3)
        if n == 1: rd(4)
    stamp(A)
    if opt("DBGT"):
        A(f"s_waitcnt vmcnt(0)\ns_memrealtime s[90:91]\ns_waitcnt lgkmcnt(0)")
        A(f"s_cmp_eq_u32 s{S_J}, 1\ns_cbranch_scc0 L_dbg_d\ns_cmp_lt_u32 s2, 8\ns_cbranch_scc0 L_dbg_d")
        srd(A, 92, DBG, 256)
        A("s_lshl_b32 s96, s2, 3\nv_mov_b32 v4, s88\nv_mov_b32 v5, s90\nv_mov_b32 v6, 0\ns_mov_b64 exec, 1\nbuffer_store_dwordx2 v[4:5], v6, s[92:95], s96 offen\ns_waitcnt vmcnt(0)")
        A("L_dbg_d:")
    if opt("CLK") and asmlib.PROFILE:
        A("s_memtime s[90:91]\ns_waitcnt lgkmcnt(0)\ns_sub_u32 s90, s90, s88\ns_mov_b32 m0, 62\nv_writelane_b32 v0, s90, m0")
    stamp_flush(A, 0, WS, 9)
    A("s_endpgm")

def gen(A, name):
    global KNAME
    KNAME = name
    kernel_head(A, name)
    entry(A)
    if opt("P2ONLY"):
        A(f"s_mov_b32 s{S_SPIN}, 1\ns_cmp_lt_u32 s3, 4\ns_cbranch_scc1 L_end\ns_sub_u32 s{S_J}, s3, 4\ns_waitcnt lgkmcnt(0)\ns_branch L_ld_p2")
    lay = opt("LAYOUT", 0)
    if lay == 0:
        A("s_cmp_ge_u32 s3, 4\ns_cbranch_scc1 L_loader")
        jobs_issue(A)
        A(f"s_cmp_lt_u32 s{S_C}, 5\ns_cbranch_scc1 L_mx")
        p1_hh(A); p1_mx(A); loader(A); loader_p2(A)
    elif lay == 1:
        A("s_cmp_lt_u32 s3, 4\ns_cbranch_scc1 L_comp")
        loader(A)
        A("L_comp:")
        jobs_issue(A)
        A(f"s_cmp_lt_u32 s{S_C}, 5\ns_cbranch_scc1 L_mx")
        p1_hh(A); p1_mx(A); loader_p2(A)
    elif lay == 2:
        A("s_cmp_ge_u32 s3, 4\ns_cbranch_scc1 L_loader")
        jobs_issue(A)
        A(f"s_cmp_lt_u32 s{S_C}, 5\ns_cbranch_scc1 L_mx\ns_branch L_hh")
        loader(A)
        p1_hh(A); p1_mx(A); loader_p2(A)
    A("L_end:\ns_endpgm\nL_code_end:")
```
